```python
import torch

def _softmax(x, axis=-1):
    return torch.softmax(x, dim=axis)
def _gelu(x):
    return torch.nn.functional.gelu(x, approximate="tanh")
def _silu(x):
    return torch.nn.functional.silu(x)
def _sigmoid(x):
    return torch.sigmoid(x)
def _layernorm(x, axis=-1, eps=1e-5):
    m = x.mean(dim=axis, keepdim=True)
    v = x.var(dim=axis, keepdim=True, unbiased=False)
    return (x - m) / torch.sqrt(v + eps)
def _scatter_add(tgt, idx, src, axis=0):
    return tgt.clone().index_add_(axis, idx, src)
def _segment_sum(src, seg, n):
    out = torch.zeros((n,) + src.shape[1:], dtype=src.dtype)
    return out.index_add_(0, seg, src)
def _pad(x, pw):
    flat = tuple(v for pair in reversed(pw) for v in pair)
    return torch.nn.functional.pad(x, flat)

kernel_name = 'interleave_layers__sliding_local_dilated__mixer_token_mlp__prompt'

def setup_inputs():

    _w = (lambda a: (lambda t: t.to(torch.bfloat16) if t.is_floating_point() else t)(torch.as_tensor(a)))
    def _A_setup():
        B, S, D = 1, 2048, 1024
        return {
            "x": _w((lambda *s: torch.randn(*s, dtype=torch.bfloat16) * 0.05)(B, S, D)),
            "wqkv": _w((lambda *s: torch.randn(*s, dtype=torch.bfloat16) * 0.05)(D, 3 * D)),
            "wo": _w((lambda *s: torch.randn(*s, dtype=torch.bfloat16) * 0.05)(D, D)),
        }
    _A_in = _A_setup()

    def _B_setup():
        B, S, D, F = 1, 2048, 1024, 3584
        return {
            "x": _w((lambda *s: torch.randn(*s, dtype=torch.bfloat16) * 0.05)(B, S, D)),
            "w1": _w((lambda *s: torch.randn(*s, dtype=torch.bfloat16) * 1.6)(S, F) * (S ** -0.5)),
            "b1": _w((lambda *s: torch.randn(*s, dtype=torch.bfloat16) * 1.6)(F) * 0.02),
            "w2": _w((lambda *s: torch.randn(*s, dtype=torch.bfloat16) * 1.6)(F, S) * (F ** -0.5)),
            "b2": _w((lambda *s: torch.randn(*s, dtype=torch.bfloat16) * 1.6)(S) * 0.02),
        }
    _B_in = _B_setup()

    return {
        "A_x": _A_in["x"],
        "A_wqkv": _A_in["wqkv"],
        "A_wo": _A_in["wo"],
        "B_x": _B_in["x"],
        "B_w1": _B_in["w1"],
        "B_b1": _B_in["b1"],
        "B_w2": _B_in["w2"],
        "B_b2": _B_in["b2"],
    }

def reference(A_x, A_wqkv, A_wo, B_x, B_w1, B_b1, B_w2, B_b2):
    def _A_ref(x, wqkv, wo):
        B, S, D = x.shape
        H = 32; Dh = D // H
        W, dil = 8, 2
        qkv = (lambda x, *d: x.permute(*d))((x @ wqkv).reshape(B, S, 3, H, Dh), 2, 0, 3, 1, 4)
        q, k, v = qkv[0], qkv[1], qkv[2]
        scale = Dh ** -0.5
        pos = torch.arange(S)
        off = torch.arange(W) * dil
        idx = pos[:, None] - off[None, :]
        mask = idx >= 0
        idx_c = torch.where(mask, idx, 0).reshape(-1)
        kg = k[:, :, idx_c, :].reshape(B, H, S, W, Dh)
        vg = v[:, :, idx_c, :].reshape(B, H, S, W, Dh)
        logits = torch.einsum("bhsd,bhswd->bhsw", q, kg) * scale
        logits = torch.where(mask[None, None, :, :], logits, -1e9)
        attn = _softmax(logits, axis=-1)
        o = torch.einsum("bhsw,bhswd->bhsd", attn, vg)
        return (lambda x, *d: x.permute(*d))(o, 0, 2, 1, 3).reshape(B, S, D) @ wo

    def _B_ref(x, w1, b1, w2, b2):
        B, S, D = x.shape
        h = _layernorm(x, axis=-1)
        u = torch.einsum("bsd,sf->bdf", h, w1) + b1
        u = _gelu(u)
        y = torch.einsum("bdf,fs->bds", u, w2) + b2
        return (lambda x, *d: x.permute(*d))(y, 0, 2, 1)

    x = A_x
    x = x + _A_ref(_layernorm(x, axis=-1), A_wqkv, A_wo)
    x = x + _B_ref(_layernorm(x, axis=-1), B_w1, B_b1, B_w2, B_b2)
    x = x + _A_ref(_layernorm(x, axis=-1), A_wqkv, A_wo)
    x = x + _B_ref(_layernorm(x, axis=-1), B_w1, B_b1, B_w2, B_b2)
    return x
```

```python
import re

_REG = re.compile(r'\b([vsa])(\d+)\b|\b([vsa])\[(\d+):(\d+)\]|\b(vcc|exec|m0|scc)\b')

def regs_of(tok):
    out = set()
    for m in _REG.finditer(tok):
        if m.group(1):
            out.add((m.group(1), int(m.group(2))))
        elif m.group(3):
            for i in range(int(m.group(4)), int(m.group(5)) + 1):
                out.add((m.group(3), i))
        else:
            out.add((m.group(6), 0))
    return out

TRANS = ('v_exp_f32', 'v_log_f32', 'v_rcp_f32', 'v_rsq_f32', 'v_sqrt_f32', 'v_sin_f32', 'v_cos_f32')

class Ins:
    __slots__ = ('text', 'op', 'kind', 'wr', 'rd', 'srcc', 'srcab', 'passes', 'states', 'wide_data', 'dpp', 'lane_sel')
    def __init__(self, text):
        self.text = text
        t = text.split(';')[0].strip()
        self.op = t.split()[0] if t else ''
        self.kind = 'other'; self.wr = set(); self.rd = set(); self.srcc = set(); self.srcab = set()
        self.passes = 0; self.states = 1; self.wide_data = set(); self.dpp = False; self.lane_sel = set()
        if not t or t.endswith(':') or t.startswith('.'):
            self.kind = 'label' if t.endswith(':') else 'dir'; self.states = 0; return
        op = self.op
        rest = t[len(op):].strip()
        ops = [o.strip() for o in re.split(r',(?![^\[]*\])', rest)] if rest else []
        R = [regs_of(o) for o in ops]
        allr = set().union(*R) if R else set()
        if op == 's_nop':
            self.kind = 'nop'; self.states = int(ops[0], 0) + 1
        elif op.startswith('v_mfma'):
            self.kind = 'mfma'; self.wr = R[0]; self.srcab = R[1] | R[2]; self.srcc = R[3]; self.rd = self.srcab | self.srcc
            self.passes = 8 if '32x32' in op else 4
        elif op.startswith('v_cmp'):
            self.kind = 'valu'; self.wr = R[0]; self.rd = set().union(*R[1:])
            if op.startswith('v_cmpx'): self.wr = self.wr | {('exec', 0)}
        elif op.startswith('v_permlane') and 'swap' in op:
            self.kind = 'permlane'; self.wr = allr; self.rd = allr
        elif op.startswith('v_'):
            self.kind = 'trans' if op.replace('_e32', '').replace('_e64', '') in TRANS else ('dot' if op.startswith('v_dot') else 'valu')
            self.wr = set(R[0]); self.rd = set().union(*R[1:]) if len(R) > 1 else set()
            if op.startswith(('v_fmac', 'v_dot2c', 'v_pk_fmac', 'v_writelane')): self.rd |= R[0]
            if op.startswith(('v_add_co', 'v_sub_co', 'v_addc_co', 'v_subb_co')): self.wr |= R[1]
            if op.startswith('v_cndmask') and len(ops) == 3: self.rd.add(('vcc', 0))
            if 'dpp' in op or 'row_' in rest or 'quad_perm' in rest: self.dpp = True
            if op.startswith(('v_readlane', 'v_writelane')): self.lane_sel = R[2]
        elif op.startswith('ds_'):
            self.kind = 'ds'
            if 'read' in op or 'bpermute' in op or 'swizzle' in op or 'permute' in op:
                self.wr = R[0]; self.rd = set().union(*R[1:])
            else:
                self.rd = allr
        elif op.startswith(('buffer_', 'global_', 'flat_')):
            self.kind = 'vmem'
            if op in ('buffer_inv', 'buffer_wbl2'): return
            islds = re.search(r'\blds\b', rest) is not None or '_lds_' in op
            if 'load' in op and not islds:
                self.wr = R[0]; self.rd = set().union(*R[1:])
            elif 'atomic' in op and 'sc0' in rest:
                self.wr = R[0]; self.rd = allr
            else:
                self.rd = allr
                if islds: self.rd.add(('m0', 0)); self.kind = 'dma'
                if 'store' in op and ('x4' in op or 'x3' in op):
                    self.wide_data = R[0] if op.startswith('buffer_') else R[1]
        elif op.startswith('s_'):
            self.kind = 'salu'
            if op.startswith(('s_cmp', 's_cbranch', 's_branch', 's_waitcnt', 's_barrier', 's_setprio', 's_sleep', 's_endpgm', 's_bitcmp')):
                self.rd = allr
            elif op.startswith(('s_load', 's_buffer_load', 's_memtime', 's_memrealtime')):
                self.kind = 'smem'; self.wr = R[0]; self.rd = set().union(*R[1:]) if len(R) > 1 else set()
            else:
                self.wr = set(R[0]); self.rd = set().union(*R[1:]) if len(R) > 1 else set()
                if 'saveexec' in op: self.wr.add(('exec', 0))

VALUK = ('valu', 'trans', 'dot', 'permlane')

def need(prev, cur):
    n = 0
    pv = prev.kind in VALUK
    cv = cur.kind in VALUK
    vw = {r for r in prev.wr if r[0] in 'va'}
    sw = {r for r in prev.wr if r[0] == 's' or r[0] == 'vcc'}
    if prev.kind == 'mfma':
        D = prev.wr
        big = prev.passes == 8
        if cur.kind == 'mfma':
            if cur.srcab & D: n = max(n, 12 if big else 8)
            if cur.srcc & D:
                if not (cur.srcc == D and cur.passes == prev.passes): n = max(n, 10 if big else 6)
            elif cur.wr & D: n = max(n, 12 if big else 8)
        elif (cur.rd | cur.wr) & D and cur.kind in VALUK + ('ds', 'vmem', 'dma'):
            n = max(n, 12 if big else 8)
        if cv and (cur.wr & prev.srcc): n = max(n, 7 if big else 3)
    if pv:
        if cur.kind == 'mfma' and prev.kind != 'dot' and (cur.rd & vw): n = max(n, 2)
        if cur.kind == 'mfma' and prev.kind == 'dot' and (cur.rd & vw): n = max(n, 3)
        if cur.kind == 'mfma' and ('exec', 0) in prev.wr: n = max(n, 4)
        if cur.kind == 'permlane' and (cur.rd & vw): n = max(n, 2)
        if cv and cur.dpp and (cur.rd & vw): n = max(n, 2)
        if cv and cur.dpp and ('exec', 0) in prev.wr: n = max(n, 5)
        if prev.kind == 'trans' and cv and cur.kind != 'trans' and (cur.rd & vw): n = max(n, 1)
        if prev.kind == 'trans' and cur.kind in ('trans',) and (cur.rd & vw): n = max(n, 1)
        if prev.kind == 'dot' and cv and ((cur.rd | cur.wr) & vw):
            same = cur.op == prev.op
            if not (same and prev.op.startswith('v_dot2c') and (cur.wr & vw) and not ((cur.rd - cur.wr) & vw)): n = max(n, 3)
        if prev.kind == 'dot' and cur.kind in ('ds', 'vmem') and (cur.rd & vw): n = max(n, 3)
        if cur.op.startswith(('v_readfirstlane', 'v_readlane')) and (cur.rd & vw): n = max(n, 1)
        if sw:
            if cur.kind in ('vmem', 'dma') and (cur.rd & sw): n = max(n, 5)
            if cv and (cur.rd & sw): n = max(n, 2)
            if cv and (cur.lane_sel & sw): n = max(n, 4)
            if cur.kind in ('salu', 'smem') and (cur.rd & sw): n = max(n, 2)
        if 'op_sel' in prev.text and prev.op.startswith('v_cvt') and cv and (cur.rd & vw): n = max(n, 1)
    if prev.kind == 'salu' and ('m0', 0) in prev.wr and (cur.kind == 'dma' or ('m0', 0) in cur.rd): n = max(n, 1)
    if prev.wide_data and (cur.wr & prev.wide_data): n = max(n, 2 if cv else 1)
    return n

def nops_needed(hist, lines):
    seq = list(hist)
    out = []
    for ln in lines:
        cur = ln if isinstance(ln, Ins) else Ins(ln)
        req = 0
        if cur.kind not in ('label', 'dir', 'nop'):
            d = 0
            for p in reversed(seq):
                if d >= 20: break
                if p.states:
                    k = need(p, cur)
                    if k - d > req: req = k - d
                d += p.states
        out.append(req)
        if req:
            seq.append(Ins(f's_nop {req-1}'))
        seq.append(cur)
    return out

class Asm:
    def __init__(self):
        self.ins = []
    def e(self, *lines):
        for l in lines:
            for s in l.split('\n'):
                s = s.strip()
                if not s: continue
                cur = Ins(s)
                r = nops_needed(self.ins[-40:], [cur])[0]
                if r: self.ins.append(Ins(f's_nop {r-1}'))
                self.ins.append(cur)
    def loop(self, body):
        body = [Ins(s.strip()) for l in body for s in l.split('\n') if s.strip()]
        extra = [0] * len(body)
        for _ in range(6):
            def expand():
                o = []
                for x, b in zip(extra, body):
                    if x: o.append(Ins(f's_nop {x-1}'))
                    o.append(b)
                return o
            ex = expand()
            changed = False
            for hist in (self.ins[-40:], ex[-40:]):
                nn = nops_needed(hist, ex)
                j = 0
                idx = []
                for i, x in enumerate(extra):
                    if x: idx.append(None)
                    idx.append(i)
                for k, v in enumerate(nn):
                    if v:
                        i = idx[k]
                        assert i is not None
                        extra[i] += v; changed = True
                        break
                if changed: break
            if not changed: break
        else:
            return self._loop_slow(body, extra)
        self.ins += expand()
    def _loop_slow(self, body, extra):
        for _ in range(2000):
            o = []; idx = []
            for i, (x, b) in enumerate(zip(extra, body)):
                if x: o.append(Ins(f's_nop {x-1}')); idx.append(None)
                o.append(b); idx.append(i)
            changed = False
            for hist in (self.ins[-40:], o[-40:]):
                nn = nops_needed(hist, o)
                for k, v in enumerate(nn):
                    if v:
                        extra[idx[k]] += v; changed = True; break
                if changed: break
            if not changed:
                self.ins += o; return
        raise RuntimeError('hazard fix did not converge')
    def flush_hist(self):
        self.ins.append(Ins('s_nop 7')); self.ins.append(Ins('s_nop 7'))
    def text(self):
        return '\n'.join(('' if i.kind == 'label' or i.text.startswith('.') else '  ') + i.text for i in self.ins) + '\n'

def interleave(main, fill, start=0, per=1, every=1):
    out = []; f = list(fill)
    for i, m in enumerate(main):
        out.append(m)
        if i >= start and (i - start) % every == 0:
            for _ in range(per):
                if f: out.append(f.pop(0))
    out += f
    return out

def vr(a, n=1):
    return f'v{a}' if n == 1 else f'v[{a}:{a+n-1}]'
def sr(a, n=1):
    return f's{a}' if n == 1 else f's[{a}:{a+n-1}]'
```

```python
import sys, os
sys.path.insert(0, os.path.dirname(os.path.abspath(__file__)))
from asmlib import *

NAME = 'interleave_layers__sliding_local_dilated__mixer_token_mlp__prompt'
MB = 1 << 20
O_OFF, X1_OFF, H_OFF, U_OFF, X2_OFF, ST_OFF = 0, 4 * MB, 8 * MB, 12 * MB, 20 * MB, 24 * MB
XB = 2048 * 1024 * 2
EPS = 1e-5
import struct
def f32(x): return '0x%08x' % struct.unpack('<I', struct.pack('<f', x))[0]

S_VAR, S_WAVE, S_LI, S_LJ, S_PHI = 3, 4, 5, 6, 7
SRD_A, SRD_B, SRD_C, SRD_D, SRD_E = 8, 12, 16, 20, 24
S_TI, S_TJ = 28, 29
S_P, S_W, S_T0, S_K, S_BA, S_BB, S_OA, S_OB, S_LW, S_CNT, S_T1, S_T2, S_DELTA, S_CUR = 30, 31, 32, 33, 34, 35, 36, 37, 38, 39, 40, 41, 42, 43
S_G0 = 44
P_X, P_WQKV, P_WO, P_BX, P_W1, P_B1, P_W2, P_B2 = 64, 66, 68, 70, 72, 74, 76, 78
P_OUT, P_WS = 80, 82

def srd(a, d, ptr, off, nbytes):
    if off:
        a.e(f's_add_u32 s{d}, s{ptr}, {off}', f's_addc_u32 s{d+1}, s{ptr+1}, 0')
    else:
        a.e(f's_mov_b32 s{d}, s{ptr}', f's_mov_b32 s{d+1}, s{ptr+1}')
    a.e(f's_mov_b32 s{d+2}, {nbytes}', f's_mov_b32 s{d+3}, 0x20000')

def srd_sel(a, d, ptr0, off0, ptr1, off1, nbytes):
    a.e(f's_cmp_eq_u32 s{S_VAR}, 0',
        f's_cselect_b32 s{d}, s{ptr0}, s{ptr1}', f's_cselect_b32 s{d+1}, s{ptr0+1}, s{ptr1+1}',
        f's_cselect_b32 s{d+2}, {off0}, {off1}' if off0 and off1 else
        (f's_cselect_b32 s{d+2}, 0, {off1}' if off1 else f's_cselect_b32 s{d+2}, {off0}, 0'),
        f's_add_u32 s{d}, s{d}, s{d+2}', f's_addc_u32 s{d+1}, s{d+1}, 0',
        f's_mov_b32 s{d+2}, {nbytes}', f's_mov_b32 s{d+3}, 0x20000')

def prologue(a, kn, nwg, LN, xshift):
    a.e(f's_cmp_ge_u32 s2, {nwg}', f's_cbranch_scc1 {kn}_end',
        's_load_dwordx16 s[64:79], s[0:1], 0', 's_load_dwordx2 s[80:81], s[0:1], 64', 's_load_dwordx2 s[82:83], s[0:1], 80',
        'v_lshrrev_b32 v1, 6, v0', 'v_and_b32 v0, 63, v0', f'v_readfirstlane_b32 s{S_WAVE}, v1',
        f's_lshr_b32 s{S_T0}, s2, 3')
    if LN == 8:
        a.e(f's_lshr_b32 s{S_LI}, s{S_T0}, 3', f's_and_b32 s{S_LJ}, s{S_T0}, 7')
    else:
        a.e(f's_mul_i32 s{S_LI}, s{S_T0}, {65536 // LN + 1}', f's_lshr_b32 s{S_LI}, s{S_LI}, 16',
            f's_mul_i32 s{S_LJ}, s{S_LI}, {LN}', f's_sub_u32 s{S_LJ}, s{S_T0}, s{S_LJ}')
    a.e(f's_lshl_b32 s{S_PHI}, s{S_LI}, 1', f's_add_u32 s{S_PHI}, s{S_PHI}, s{S_LJ}', f's_and_b32 s{S_PHI}, s{S_PHI}, 7',
        f's_and_b32 s{S_T0}, s2, 7', f's_lshr_b32 s{S_TI}, s{S_T0}, {xshift}', f's_lshl_b32 s{S_TI}, s{S_TI}, 2',
        f's_add_u32 s{S_TI}, s{S_TI}, s{S_LI}',
        f's_and_b32 s{S_TJ}, s{S_T0}, {(1 << xshift) - 1}', f's_mul_i32 s{S_TJ}, s{S_TJ}, {LN}', f's_add_u32 s{S_TJ}, s{S_TJ}, s{S_LJ}',
        f's_cmp_ge_u32 s{S_WAVE}, 4', f's_cbranch_scc1 {kn}_loader')

_lab = [0]
def loader_issue(kn, NK, NS, stage, stepA, stepB, groups):
    _lab[0] += 1
    lab = f'{kn}_nk{_lab[0]}'
    R = NK // 8
    L = [f'{lab}:',
         f's_add_u32 s{S_P}, s{S_P}, 1', f's_and_b32 s{S_P}, s{S_P}, 7', f's_cselect_b32 s{S_T0}, 0, 1',
         f's_add_u32 s{S_W}, s{S_W}, s{S_T0}',
         f's_sub_u32 s{S_T0}, s{S_P}, s{S_PHI}', f's_and_b32 s{S_T0}, s{S_T0}, 7', f's_cmp_lt_u32 s{S_T0}, 2',
         f's_cselect_b32 s{S_T0}, 1, 0', f's_add_u32 s{S_T0}, s{S_T0}, s{S_W}', f's_cmp_ge_u32 s{S_T0}, {R}',
         f's_cbranch_scc1 {lab}',
         f's_lshl_b32 s{S_K}, s{S_T0}, 3', f's_add_u32 s{S_K}, s{S_K}, s{S_P}',
         f's_mul_i32 s{S_OA}, s{S_K}, {stepA}', f's_add_u32 s{S_OA}, s{S_OA}, s{S_BA}',
         f's_mul_i32 s{S_OB}, s{S_K}, {stepB}', f's_add_u32 s{S_OB}, s{S_OB}, s{S_BB}']
    for g in groups:
        L.append(f's_add_u32 m0, s{S_LW}, s{g["sg"]}')
        for (v, imm, st, ex) in g['dmas']:
            srdn, so = (SRD_A, S_OA) if st == 'A' else (SRD_B, S_OB)
            if ex: L.append(f's_mov_b64 exec, {ex}')
            L.append(f'buffer_load_dwordx4 v{v}, s[{srdn}:{srdn+3}], s{so} offen offset:{imm} lds')
            if ex: L.append('s_mov_b64 exec, -1')
    L += [f's_add_u32 s{S_LW}, s{S_LW}, {stage}', f's_cmp_eq_u32 s{S_LW}, {NS*stage}', f's_cselect_b32 s{S_LW}, 0, s{S_LW}']
    return L

def loader_main(a, kn, NK, NS, stage, stepA, stepB, groups, per_step=None, tag=''):
    n = sum(len(g['dmas']) for g in groups)
    a.e(f's_mov_b32 s{S_P}, 7', f's_mov_b32 s{S_W}, -2', f's_mov_b32 s{S_LW}, 0')
    for s in range(NS - 1):
        a.e(*loader_issue(kn + tag, NK, NS, stage, stepA, stepB, groups))
    a.e(f's_mov_b32 s{S_CNT}, {NK - NS + 1}')
    body = [f'{kn}{tag}_lloop:', f's_waitcnt vmcnt({(NS-2)*n})', 's_barrier']
    body += loader_issue(kn + tag, NK, NS, stage, stepA, stepB, groups)
    if per_step: body += per_step()
    body += [f's_sub_u32 s{S_CNT}, s{S_CNT}, 1', f's_cmp_lg_u32 s{S_CNT}, 0', f's_cbranch_scc1 {kn}{tag}_lloop']
    a.loop(body)
    for j in range(NS - 1):
        a.e(f's_waitcnt vmcnt({(NS-2-j)*n})', 's_barrier')
        if per_step: a.e(*per_step())

def consumer_main(a, kn, NK, NS, stage, reads, mfmas, addr_regs, rper=2, rstart=0):
    adv = [f's_add_u32 s{S_T0}, s{S_CUR}, {stage}', f's_cmp_eq_u32 s{S_T0}, {NS*stage}', f's_cselect_b32 s{S_T0}, 0, s{S_T0}',
           f's_sub_u32 s{S_DELTA}, s{S_T0}, s{S_CUR}', f's_mov_b32 s{S_CUR}, s{S_T0}']
    advv = [f'v_add_u32 v{r}, s{S_DELTA}, v{r}' for r in addr_regs]
    a.e(f's_mov_b32 s{S_CUR}, 0', f's_mov_b32 s{S_CNT}, {NK - 1}')
    a.e('s_barrier')
    a.e(*reads[0])
    a.e(*adv)
    body = [f'{kn}_cloop:', 's_waitcnt lgkmcnt(0)']
    body += interleave(mfmas[0], reads[1] + advv, start=rstart, per=rper)
    body += ['s_waitcnt lgkmcnt(0)', 's_barrier']
    body += interleave(mfmas[1], reads[0] + adv, start=rstart, per=rper)
    body += [f's_sub_u32 s{S_CNT}, s{S_CNT}, 1', f's_cmp_lg_u32 s{S_CNT}, 0', f's_cbranch_scc1 {kn}_cloop']
    a.loop(body)
    a.e('s_waitcnt lgkmcnt(0)')
    a.e(*interleave(mfmas[0], reads[1], start=rstart, per=rper))
    a.e('s_waitcnt lgkmcnt(0)')
    a.e(*mfmas[1])

def lane_fields(a):
    a.e('v_and_b32 v2, 31, v0', 'v_lshrrev_b32 v3, 5, v0', 'v_and_b32 v4, 15, v0', 'v_lshrrev_b32 v5, 4, v0',
        'v_lshrrev_b32 v6, 2, v4', 'v_and_b32 v7, 3, v0')

def perm_chunk(a, dst, c, t):
    a.e(f'v_and_b32 v{t}, 1, v{c}', f'v_lshlrev_b32 v{t}, 1, v{t}', f'v_and_b32 v{dst}, 4, v{c}', f'v_or_b32 v{t}, v{t}, v{dst}',
        f'v_bfe_u32 v{dst}, v{c}, 1, 1', f'v_or_b32 v{dst}, v{dst}, v{t}')

def ntype_addr32(a, regs, rowv, base, t0, t1):
    a.e(f'v_bfe_u32 v{t0}, v{rowv}, 1, 3', f'v_xor_b32 v{t0}, v{t0}, v3', f'v_lshlrev_b32 v{t0}, 4, v{t0}',
        f'v_lshlrev_b32 v{t1}, 7, v{rowv}', f'v_add_u32 v{t0}, v{t0}, v{t1}')
    if base: a.e(f'v_add_u32 v{t0}, {base}, v{t0}')
    for kk, r in enumerate(regs):
        a.e(f'v_xor_b32 v{r}, {kk << 5}, v{t0}')

def unpack8(src, dst):
    L = []
    for e in range(4):
        L += [f'v_lshlrev_b32 v{dst+2*e}, 16, v{src+e}', f'v_and_b32 v{dst+2*e+1}, 0xffff0000, v{src+e}']
    return L

def bf16r(a, v):
    a.e(f'v_cvt_pk_bf16_f32 v{v}, v{v}, v{v}', f'v_lshlrev_b32 v{v}, 16, v{v}')

MF32 = 'v_mfma_f32_32x32x16_bf16'
MF16 = 'v_mfma_f32_16x16x32_bf16'

def dma_w128(a, vregs, pitch, swz_bits, rows_per_wave, t0, t1, t2):
    for i, v in enumerate(vregs):
        a.e(f's_mul_i32 s{S_T0}, s{S_T2}, {rows_per_wave}', f's_add_u32 s{S_T0}, s{S_T0}, {8*i}',
            f'v_lshrrev_b32 v{t0}, 3, v0', f'v_add_u32 v{t0}, s{S_T0}, v{t0}')
        swz_bits(t1, t0, t2)
        a.e(f'v_and_b32 v{t2}, 7, v0', f'v_xor_b32 v{t1}, v{t1}, v{t2}', f'v_lshlrev_b32 v{t1}, 4, v{t1}',
            f's_mov_b32 s{S_T0}, {pitch}', f'v_mul_lo_u32 v{t0}, v{t0}, s{S_T0}', f'v_add_u32 v{v}, v{t0}, v{t1}')
        if i: a.e(f'v_subrev_u32 v{v}, {1024*i}, v{v}')

def gen_k4(a):
    kn = 'k4'; NK, NS, stage = 56, 6, 24576
    a.e('.p2align 8', 'k4a_kernel:', f's_mov_b32 s{S_VAR}, 0', 's_branch k4_body', '.p2align 8', 'k4b_kernel:', f's_mov_b32 s{S_VAR}, 1', 'k4_body:')
    prologue(a, kn, 256, 8, 2)
    lane_fields(a)
    a.e(f's_and_b32 s{S_T1}, s{S_WAVE}, 1', f's_lshr_b32 s{S_T2}, s{S_WAVE}, 1')
    a.e(f's_lshl_b32 s{S_T0}, s{S_TJ}, 6', f's_lshl_b32 s{S_G0}, s{S_T2}, 5', f's_add_u32 s{S_T0}, s{S_T0}, s{S_G0}',
        f'v_add_u32 v13, s{S_T0}, v2',
        'v_lshlrev_b32 v14, 11, v13', 'v_lshlrev_b32 v15, 4, v3', 'v_add_u32 v14, v14, v15',
        f's_lshl_b32 s{S_T0}, s{S_TI}, 8', f's_lshl_b32 s{S_G0}, s{S_T1}, 7', f's_add_u32 s{S_T0}, s{S_T0}, s{S_G0}',
        f'v_add_u32 v14, s{S_T0}, v14', 'v_lshlrev_b32 v13, 1, v13')
    a.e('s_waitcnt lgkmcnt(0)')
    srd(a, SRD_C, P_WS, X1_OFF, XB)
    srd(a, SRD_D, P_B2, 0, 4096)
    srd_sel(a, SRD_E, P_WS, X2_OFF, P_OUT, 0, XB)
    for t in range(2):
        for qp in range(2):
            a.e(f'buffer_load_dwordx4 {vr(96+8*t+4*qp,4)}, v14, s[{SRD_C}:{SRD_C+3}], 0 offen offset:{t*64+qp*32}')
    a.e(f'buffer_load_ushort v112, v13, s[{SRD_D}:{SRD_D+3}], 0 offen')
    a.e('v_lshrrev_b32 v16, 2, v2'); perm_chunk(a, 17, 16, 18)
    a.e('v_lshlrev_b32 v17, 2, v17', 'v_add_u32 v17, v17, v7', f's_lshl_b32 s{S_T0}, s{S_T1}, 6', f'v_add_u32 v17, s{S_T0}, v17')
    ntype_addr32(a, [8, 9, 10, 11], 17, 0, 18, 19)
    a.e('v_lshrrev_b32 v16, 1, v5', 'v_lshlrev_b32 v16, 3, v16', 'v_add_u32 v16, v16, v6', 'v_lshlrev_b32 v16, 7, v16',
        'v_and_b32 v17, 1, v5', 'v_lshlrev_b32 v17, 1, v17', 'v_lshrrev_b32 v18, 1, v7', 'v_add_u32 v17, v17, v18',
        f's_lshl_b32 s{S_T0}, s{S_T2}, 2', f'v_add_u32 v17, s{S_T0}, v17',
        'v_lshrrev_b32 v18, 1, v6', 'v_lshlrev_b32 v18, 2, v18', 'v_xor_b32 v17, v17, v18', 'v_lshlrev_b32 v17, 4, v17',
        'v_and_b32 v18, 1, v7', 'v_lshlrev_b32 v18, 3, v18', 'v_add3_u32 v12, v16, v17, v18')
    a.e('s_waitcnt vmcnt(0)', 'v_lshlrev_b32 v112, 16, v112')
    for t in range(2):
        for qp in range(2):
            d = 64 + 16 * t + 8 * qp
            a.e(*unpack8(96 + 8 * t + 4 * qp, d))
            for e in range(0, 8, 2):
                a.e(f'v_pk_add_f32 {vr(d+e,2)}, {vr(d+e,2)}, v[112:113] op_sel_hi:[1,0]')
    reads = [[], []]; mf = [[], []]
    for kk in range(4):
        h = kk >> 1; F = 16 + 12 * kk
        reads[h] += [f'ds_read_b128 {vr(F,4)}, v{8+kk}', f'ds_read_b64_tr_b16 {vr(F+8,2)}, v12 offset:{16384+kk*2048}',
                     f'ds_read_b64_tr_b16 {vr(F+10,2)}, v12 offset:{16384+kk*2048+512}', f'ds_read_b128 {vr(F+4,4)}, v{8+kk} offset:4096']
        for t in range(2):
            mf[h].append(f'{MF32} {vr(64+16*t,16)}, {vr(F+4*t,4)}, {vr(F+8,4)}, {vr(64+16*t,16)}')
    consumer_main(a, kn, NK, NS, stage, reads, mf, [8, 9, 10, 11, 12], rper=4)
    for t in range(2):
        for qp in range(2):
            d = 64 + 16 * t + 8 * qp; o = 96 + 8 * t + 4 * qp
            for e in range(4):
                a.e(f'v_cvt_pk_bf16_f32 v{o+e}, v{d+2*e}, v{d+2*e+1}')
            a.e(f'buffer_store_dwordx4 {vr(o,4)}, v14, s[{SRD_E}:{SRD_E+3}], 0 offen offset:{t*64+qp*32}')
    a.e('s_endpgm')
    a.e(f'{kn}_loader:'); a.flush_hist()
    a.e(f's_sub_u32 s{S_T2}, s{S_WAVE}, 4')
    a.e(f's_lshl_b32 s{S_G0}, s{S_T2}, 12', f's_lshl_b32 s{S_G0+1}, s{S_T2}, 11', f's_add_u32 s{S_G0+1}, s{S_G0+1}, 16384',
        'v_lshlrev_b32 v8, 4, v0', f'v_add_u32 v8, s{S_G0}, v8')
    def swz(d, row, t): a.e(f'v_bfe_u32 v{d}, v{row}, 1, 1', f'v_lshlrev_b32 v{d}, 2, v{d}')
    dma_w128(a, [9, 10], 4096, swz, 16, 2, 3, 4)
    a.e(f's_mul_i32 s{S_BA}, s{S_TI}, {56*16384}', f's_lshl_b32 s{S_BB}, s{S_TJ}, 7')
    a.e('s_waitcnt lgkmcnt(0)')
    srd(a, SRD_A, P_WS, U_OFF, 1024 * 3584 * 2)
    srd(a, SRD_B, P_W2, 0, 3584 * 2048 * 2)
    groups = [dict(sg=S_G0, dmas=[(8, 1024 * i, 'A', None) for i in range(4)]),
              dict(sg=S_G0 + 1, dmas=[(9, 0, 'B', None), (10, 1024, 'B', None)])]
    loader_main(a, kn, NK, NS, stage, 16384, 64 * 4096, groups)
    a.e(f'{kn}_end:', 's_endpgm')
    return dict(lds=NS * stage, grid=256, names=['k4a_kernel', 'k4b_kernel'], vgpr=128)

def gen_k3(a):
    kn = 'k3'; NK, NS, stage = 32, 5, 32768
    a.e('.p2align 8', 'k3_kernel:')
    prologue(a, kn, 224, 7, 2)
    lane_fields(a)
    a.e(f's_and_b32 s{S_T1}, s{S_WAVE}, 1', f's_lshr_b32 s{S_T2}, s{S_WAVE}, 1')
    a.e(f's_lshl_b32 s{S_T0}, s{S_TJ}, 8', f's_lshl_b32 s{S_G0}, s{S_T1}, 7', f's_add_u32 s{S_T0}, s{S_T0}, s{S_G0}',
        'v_lshlrev_b32 v13, 4, v3', f'v_add_u32 v13, s{S_T0}, v13')
    a.e('s_waitcnt lgkmcnt(0)')
    srd(a, SRD_C, P_B1, 0, 3584 * 2)
    srd(a, SRD_E, P_WS, U_OFF, 1024 * 3584 * 2)
    for tf in range(2):
        for qp in range(2):
            a.e(f'buffer_load_dwordx4 {vr(144+8*tf+4*qp,4)}, v13, s[{SRD_C}:{SRD_C+3}], 0 offen offset:{tf*64+qp*32}')
    a.e('v_lshrrev_b32 v16, 1, v5', 'v_lshlrev_b32 v16, 3, v16', 'v_add_u32 v16, v16, v6', 'v_lshlrev_b32 v16, 8, v16',
        'v_and_b32 v17, 1, v5', 'v_lshlrev_b32 v17, 2, v17', 'v_add_u32 v17, v17, v7',
        'v_lshlrev_b32 v20, 6, v6')
    perm_chunk(a, 18, 17, 19)
    a.e('v_lshlrev_b32 v18, 3, v18', f's_lshl_b32 s{S_T0}, s{S_T1}, 7', f'v_add_u32 v18, s{S_T0}, v18', 'v_xor_b32 v18, v18, v20',
        'v_add_u32 v8, v16, v18', 'v_add_u32 v8, 16384, v8', 'v_xor_b32 v9, 64, v8',
        'v_lshlrev_b32 v17, 3, v17', f's_lshl_b32 s{S_T0}, s{S_T2}, 7', f'v_add_u32 v17, s{S_T0}, v17', 'v_xor_b32 v17, v17, v20',
        'v_add_u32 v10, v16, v17', 'v_xor_b32 v11, 64, v10')
    a.e(f's_lshl_b32 s{S_T0}, s{S_T2}, 6', f'v_add_u32 v16, s{S_T0}, v2', 'v_bfe_u32 v17, v16, 1, 3', 'v_xor_b32 v17, v17, v3',
        'v_lshlrev_b32 v17, 4, v17', 'v_lshlrev_b32 v16, 7, v16', 'v_add_u32 v14, v16, v17',
        f's_mul_i32 s{S_T0}, s{S_TI}, 56', f's_lshl_b32 s{S_G0}, s{S_TJ}, 1', f's_add_u32 s{S_T0}, s{S_T0}, s{S_G0}',
        f's_add_u32 s{S_T0}, s{S_T0}, s{S_T1}', f's_lshl_b32 s{S_G0+2}, s{S_T0}, 14')
    a.e('s_waitcnt vmcnt(0)')
    ACC = 80
    def acc(tf, td): return ACC + 32 * tf + 16 * td
    for tf in range(2):
        for qp in range(2):
            a.e(*unpack8(144 + 8 * tf + 4 * qp, acc(tf, 0) + 8 * qp))
            for e in range(8):
                a.e(f'v_mov_b32 v{acc(tf,1)+8*qp+e}, v{acc(tf,0)+8*qp+e}')
    reads = [[], []]; mf = [[], []]
    for kk in range(4):
        h = kk >> 1; F = 16 + 16 * kk
        def rd(dst, av, o): return [f'ds_read_b64_tr_b16 {vr(dst,2)}, v{av} offset:{kk*4096+o}', f'ds_read_b64_tr_b16 {vr(dst+2,2)}, v{av} offset:{kk*4096+o+1024}']
        reads[h] += rd(F, 8, 0) + rd(F + 8, 10, 0) + rd(F + 12, 11, 0) + rd(F + 4, 9, 0)
        for tf, td in ((0, 0), (0, 1), (1, 1), (1, 0)):
            mf[h].append(f'{MF32} {vr(acc(tf,td),16)}, {vr(F+4*tf,4)}, {vr(F+8+4*td,4)}, {vr(acc(tf,td),16)}')
    consumer_main(a, kn, NK, NS, stage, reads, mf, [8, 9, 10, 11], rper=3)
    c1 = -2.0 * 0.7978845608028654 * 1.4426950408889634
    c2 = c1 * 0.044715
    a.e(f'v_mov_b32 v16, {f32(c1)}', f'v_mov_b32 v17, {f32(c2)}', 'v_mov_b32 v18, 1.0')
    for tf in range(2):
        for td in range(2):
            for qp in range(2):
                d = acc(tf, td) + 8 * qp
                T = 24 + 16 * ((td * 2 + qp) & 1)
                for e in range(0, 8, 2):
                    a.e(f'v_pk_mul_f32 {vr(T+e,2)}, {vr(d+e,2)}, {vr(d+e,2)}')
                for e in range(0, 8, 2):
                    a.e(f'v_pk_fma_f32 {vr(T+e,2)}, {vr(T+e,2)}, v[16:17], v[16:17] op_sel:[0,1,0] op_sel_hi:[1,1,0]')
                for e in range(0, 8, 2):
                    a.e(f'v_pk_mul_f32 {vr(T+e,2)}, {vr(T+e,2)}, {vr(d+e,2)}')
                for e in range(8):
                    a.e(f'v_exp_f32 v{T+e}, v{T+e}')
                for e in range(0, 8, 2):
                    a.e(f'v_pk_add_f32 {vr(T+e,2)}, {vr(T+e,2)}, v[18:19] op_sel_hi:[1,0]')
                for e in range(8):
                    a.e(f'v_rcp_f32 v{T+e}, v{T+e}')
                for e in range(0, 8, 2):
                    a.e(f'v_pk_mul_f32 {vr(T+e,2)}, {vr(T+e,2)}, {vr(d+e,2)}')
                for e in range(4):
                    a.e(f'v_cvt_pk_bf16_f32 v{T+8+e}, v{T+2*e}, v{T+2*e+1}')
                a.e(f'v_xor_b32 v{T+12}, {(4*tf+2*qp) << 4}, v14')
                a.e(f'buffer_store_dwordx4 {vr(T+8,4)}, v{T+12}, s[{SRD_E}:{SRD_E+3}], s{S_G0+2} offen offset:{0}' if td == 0 else
                    f'v_add_u32 v{T+12}, 4096, v{T+12}\nbuffer_store_dwordx4 {vr(T+8,4)}, v{T+12}, s[{SRD_E}:{SRD_E+3}], s{S_G0+2} offen')
    a.e('s_endpgm')
    a.e(f'{kn}_loader:'); a.flush_hist()
    a.e(f's_sub_u32 s{S_T2}, s{S_WAVE}, 4')
    a.e(f's_lshl_b32 s{S_G0}, s{S_T2}, 12', f's_add_u32 s{S_G0+1}, s{S_G0}, 16384',
        'v_lshlrev_b32 v8, 4, v0', f'v_add_u32 v8, s{S_G0}, v8')
    a.e('v_lshrrev_b32 v2, 4, v0', 'v_lshlrev_b32 v3, 2, v2', 'v_and_b32 v4, 15, v0', 'v_xor_b32 v3, v3, v4', 'v_lshlrev_b32 v3, 4, v3',
        f's_lshl_b32 s{S_T0}, s{S_T2}, 4', f'v_add_u32 v2, s{S_T0}, v2', f's_mov_b32 s{S_T0}, 7168', f'v_mul_lo_u32 v2, v2, s{S_T0}',
        'v_add_u32 v9, v2, v3')
    for i in range(1, 4):
        a.e(f'v_add_u32 v{9+i}, {i*(4*7168-1024)}, v9')
    a.e(f's_mul_i32 s{S_BA}, s{S_TI}, {32*16384}', f's_lshl_b32 s{S_BB}, s{S_TJ}, 8')
    a.e('s_waitcnt lgkmcnt(0)')
    srd(a, SRD_A, P_WS, H_OFF, XB)
    srd(a, SRD_B, P_W1, 0, 2048 * 3584 * 2)
    groups = [dict(sg=S_G0, dmas=[(8, 1024 * i, 'A', None) for i in range(4)]),
              dict(sg=S_G0 + 1, dmas=[(9 + i, 1024 * i, 'B', None) for i in range(4)])]
    loader_main(a, kn, NK, NS, stage, 16384, 64 * 7168, groups)
    a.e(f'{kn}_end:', 's_endpgm')
    return dict(lds=NS * stage, grid=224, names=['k3_kernel'], vgpr=160)

def stats_finish(a, S, Q, T, double):
    a.e(f'v_mul_f32 v{S}, {f32(1/1024)}, v{S}', f'v_mul_f32 v{Q}, {f32(1/1024)}, v{Q}',
        f'v_fma_f32 v{Q}, -v{S}, v{S}, v{Q}', f'v_max_f32 v{Q}, 0, v{Q}', f'v_mov_b32 v{T}, v{Q}')
    bf16r(a, T)
    a.e(f'v_add_f32 v{T}, {f32(EPS)}, v{T}'); bf16r(a, T)
    a.e(f'v_sqrt_f32 v{T}, v{T}'); bf16r(a, T)
    a.e(f'v_rcp_f32 v{T}, v{T}')
    if not double:
        bf16r(a, S)
        a.e(f'v_mov_b32 v{Q}, v{T}')
    else:
        a.e(f'v_mul_f32 v{Q}, v{Q}, v{T}', f'v_mul_f32 v{Q}, v{Q}, v{T}')
        bf16r(a, Q)
        a.e(f'v_add_f32 v{Q}, {f32(EPS)}, v{Q}'); bf16r(a, Q)
        a.e(f'v_sqrt_f32 v{Q}, v{Q}'); bf16r(a, Q)
        a.e(f'v_rcp_f32 v{Q}, v{Q}', f'v_mul_f32 v{Q}, v{Q}, v{T}')

def gen_k2(a):
    kn = 'k2'; NK, NS, stage = 16, 6, 24576
    PL = NS * stage
    QL = PL + 2048
    a.e('.p2align 8', 'k2a_kernel:', f's_mov_b32 s{S_VAR}, 0', 's_branch k2_body', '.p2align 8', 'k2b_kernel:', f's_mov_b32 s{S_VAR}, 1', 'k2_body:')
    prologue(a, kn, 256, 8, 1)
    lane_fields(a)
    a.e(f's_and_b32 s{S_T1}, s{S_WAVE}, 1', f's_lshr_b32 s{S_T2}, s{S_WAVE}, 1')
    a.e(f's_lshl_b32 s{S_T0}, s{S_TI}, 7', f's_lshl_b32 s{S_G0}, s{S_T2}, 6', f's_add_u32 s{S_T0}, s{S_T0}, s{S_G0}',
        f'v_add_u32 v13, s{S_T0}, v2', 'v_lshlrev_b32 v14, 11, v13', 'v_lshlrev_b32 v15, 4, v3', 'v_add_u32 v14, v14, v15',
        f's_lshl_b32 s{S_T0}, s{S_TJ}, 7', f's_lshl_b32 s{S_G0}, s{S_T1}, 6', f's_add_u32 s{S_T0}, s{S_T0}, s{S_G0}',
        f'v_add_u32 v14, s{S_T0}, v14', f's_mov_b32 s{S_G0+3}, 65536')
    a.e('s_waitcnt lgkmcnt(0)')
    srd_sel(a, SRD_C, P_X, 0, P_WS, X2_OFF, XB)
    srd(a, SRD_D, P_WS, X1_OFF, XB)
    srd(a, SRD_E, P_WS, H_OFF, XB)
    def so(t): return '0' if t == 0 else f's{S_G0+3}'
    for t in range(2):
        for qp in range(2):
            a.e(f'buffer_load_dwordx4 {vr(96+8*t+4*qp,4)}, v14, s[{SRD_C}:{SRD_C+3}], {so(t)} offen offset:{qp*32}')
    a.e(f's_lshl_b32 s{S_T0}, s{S_T2}, 6', f'v_add_u32 v17, s{S_T0}, v2')
    ntype_addr32(a, [8, 9, 10, 11], 17, 0, 18, 19)
    a.e('v_lshrrev_b32 v16, 1, v5', 'v_lshlrev_b32 v16, 3, v16', 'v_add_u32 v16, v16, v6', 'v_lshlrev_b32 v16, 7, v16',
        'v_and_b32 v17, 1, v5', 'v_lshlrev_b32 v17, 2, v17', 'v_add_u32 v17, v17, v7')
    perm_chunk(a, 18, 17, 19)
    a.e('v_lshlrev_b32 v18, 3, v18', f's_lshl_b32 s{S_T0}, s{S_T1}, 6', f'v_add_u32 v18, s{S_T0}, v18',
        'v_lshrrev_b32 v19, 1, v6', 'v_lshlrev_b32 v19, 6, v19', 'v_xor_b32 v18, v18, v19', 'v_add_u32 v12, v16, v18')
    a.e(f's_and_b32 s{S_T0}, s{S_TJ}, 1', f's_lshl_b32 s{S_T0}, s{S_T0}, 3', f's_lshl_b32 s{S_G0}, s{S_T1}, 2', f's_add_u32 s{S_T0}, s{S_T0}, s{S_G0}',
        f'v_add_u32 v16, s{S_T0}, v3', 'v_lshlrev_b32 v17, 2, v7', 'v_xor_b32 v16, v16, v17', 'v_lshlrev_b32 v16, 4, v16',
        'v_lshlrev_b32 v17, 8, v2', 'v_add_u32 v15, v16, v17',
        f's_lshr_b32 s{S_T0}, s{S_TJ}, 1', f's_lshl_b32 s{S_T0}, s{S_T0}, 5', f's_lshl_b32 s{S_G0}, s{S_TI}, 1', f's_add_u32 s{S_T0}, s{S_T0}, s{S_G0}',
        f's_add_u32 s{S_T0}, s{S_T0}, s{S_T2}', f's_lshl_b32 s{S_G0+2}, s{S_T0}, 14', f's_add_u32 s{S_G0+4}, s{S_G0+2}, 8192')
    a.e(f's_lshl_b32 s{S_T0}, s{S_T1}, 7', f's_lshl_b32 s{S_G0}, s{S_T2}, 6', f's_add_u32 s{S_T0}, s{S_T0}, s{S_G0}',
        f'v_add_u32 v113, s{S_T0}, v0', 'v_lshlrev_b32 v113, 3, v113', f'v_add_u32 v113, {PL}, v113',
        f'v_add_u32 v114, s{S_G0}, v2', 'v_lshlrev_b32 v114, 3, v114', f'v_add_u32 v114, {QL}, v114')
    a.e('s_waitcnt vmcnt(0)')
    for t in range(2):
        for qp in range(2):
            a.e(*unpack8(96 + 8 * t + 4 * qp, 64 + 16 * t + 8 * qp))
    reads = [[], []]; mf = [[], []]
    for kk in range(4):
        h = kk >> 1; F = 16 + 12 * kk
        reads[h] += [f'ds_read_b128 {vr(F,4)}, v{8+kk}', f'ds_read_b64_tr_b16 {vr(F+8,2)}, v12 offset:{16384+kk*2048}',
                     f'ds_read_b64_tr_b16 {vr(F+10,2)}, v12 offset:{16384+kk*2048+512}', f'ds_read_b128 {vr(F+4,4)}, v{8+kk} offset:4096']
        for t in range(2):
            mf[h].append(f'{MF32} {vr(64+16*t,16)}, {vr(F+8,4)}, {vr(F+4*t,4)}, {vr(64+16*t,16)}')
    consumer_main(a, kn, NK, NS, stage, reads, mf, [8, 9, 10, 11, 12], rper=4)
    for t in range(2):
        for qp in range(2):
            d = 64 + 16 * t + 8 * qp; o = 96 + 8 * t + 4 * qp
            for e in range(4):
                a.e(f'v_cvt_pk_bf16_f32 v{o+e}, v{d+2*e}, v{d+2*e+1}')
            a.e(*unpack8(o, d))
    for t in range(2):
        d = 64 + 16 * t; T = 20 + 4 * t
        a.e(f'v_pk_add_f32 {vr(T,2)}, {vr(d,2)}, {vr(d+2,2)}', f'v_pk_mul_f32 {vr(T+2,2)}, {vr(d,2)}, {vr(d,2)}',
            f'v_pk_fma_f32 {vr(T+2,2)}, {vr(d+2,2)}, {vr(d+2,2)}, {vr(T+2,2)}')
        for e in range(4, 16, 2):
            a.e(f'v_pk_add_f32 {vr(T,2)}, {vr(T,2)}, {vr(d+e,2)}', f'v_pk_fma_f32 {vr(T+2,2)}, {vr(d+e,2)}, {vr(d+e,2)}, {vr(T+2,2)}')
        a.e(f'v_add_f32 v{16+t}, v{T}, v{T+1}', f'v_add_f32 v{18+t}, v{T+2}, v{T+3}')
    a.e('v_permlane32_swap_b32 v16, v17', 'v_permlane32_swap_b32 v18, v19', 'v_add_f32 v28, v16, v17', 'v_add_f32 v29, v18, v19',
        'ds_write_b64 v113, v[28:29]')
    for t in range(2):
        for qp in range(2):
            a.e(f'buffer_store_dwordx4 {vr(96+8*t+4*qp,4)}, v14, s[{SRD_D}:{SRD_D+3}], {so(t)} offen offset:{qp*32}')
    a.e('s_waitcnt lgkmcnt(0)', 's_barrier', 's_barrier')
    a.e('ds_read_b64 v[16:17], v114', 'ds_read_b64 v[18:19], v114 offset:256', 's_waitcnt lgkmcnt(0)')
    for t in range(2):
        for qp in range(2):
            d = 64 + 16 * t + 8 * qp; o = 32 + 8 * t + 4 * qp
            for e in range(0, 8, 2):
                a.e(f'v_pk_add_f32 {vr(d+e,2)}, {vr(d+e,2)}, {vr(16+2*t,2)} op_sel_hi:[1,0] neg_lo:[0,1] neg_hi:[0,1]')
            for e in range(0, 8, 2):
                a.e(f'v_pk_mul_f32 {vr(d+e,2)}, {vr(d+e,2)}, {vr(16+2*t,2)} op_sel:[0,1] op_sel_hi:[1,1]')
            for e in range(4):
                a.e(f'v_cvt_pk_bf16_f32 v{o+e}, v{d+2*e}, v{d+2*e+1}')
            a.e(f'v_xor_b32 v{48+2*t+qp}, {qp << 5}, v15')
            a.e(f'buffer_store_dwordx4 {vr(o,4)}, v{48+2*t+qp}, s[{SRD_E}:{SRD_E+3}], s{S_G0+2+2*t} offen')
    a.e('s_endpgm')
    a.e(f'{kn}_loader:'); a.flush_hist()
    a.e(f's_sub_u32 s{S_T2}, s{S_WAVE}, 4')
    a.e(f's_lshl_b32 s{S_G0}, s{S_T2}, 12', f's_lshl_b32 s{S_G0+1}, s{S_T2}, 11', f's_add_u32 s{S_G0+1}, s{S_G0+1}, 16384',
        'v_lshlrev_b32 v8, 4, v0', f'v_add_u32 v8, s{S_G0}, v8')
    def swz(d, row, t): a.e(f'v_bfe_u32 v{d}, v{row}, 1, 1', f'v_lshlrev_b32 v{d}, 2, v{d}')
    dma_w128(a, [9, 10], 2048, swz, 16, 2, 3, 4)
    a.e(f's_mul_i32 s{S_BA}, s{S_TI}, {16*16384}', f's_lshl_b32 s{S_BB}, s{S_TJ}, 7')
    a.e('s_waitcnt lgkmcnt(0)')
    srd(a, SRD_A, P_WS, O_OFF, XB)
    srd(a, SRD_B, P_WO, 0, 1024 * 1024 * 2)
    srd(a, SRD_C, P_WS, ST_OFF, 16 * 2048 * 8)
    groups = [dict(sg=S_G0, dmas=[(8, 1024 * i, 'A', None) for i in range(4)]),
              dict(sg=S_G0 + 1, dmas=[(9, 0, 'B', None), (10, 1024, 'B', None)])]
    a.e('v_and_b32 v2, 31, v0', 'v_lshrrev_b32 v3, 5, v0', f's_lshl_b32 s{S_T0}, s{S_T2}, 5', f'v_add_u32 v12, s{S_T0}, v2', 'v_lshlrev_b32 v12, 3, v12',
        f's_lshl_b32 s{S_T0}, s{S_TI}, 10', f'v_add_u32 v14, s{S_T0}, v12', f's_lshl_b32 s{S_T0}, s{S_TJ}, 14', f'v_add_u32 v13, s{S_T0}, v14',
        'v_lshlrev_b32 v15, 17, v3', 'v_add_u32 v14, v14, v15', f'v_add_u32 v12, {PL}, v12')
    for p in range(1, 8):
        a.e(f's_mov_b32 s{52+p}, {p*16384}')
    loader_main(a, kn, NK, NS, stage, 16384, 64 * 2048, groups)
    a.e('s_barrier')
    a.e('ds_read_b64 v[16:17], v12', 'ds_read_b64 v[18:19], v12 offset:1024', 's_waitcnt lgkmcnt(0)',
        'v_add_f32 v16, v16, v18', 'v_add_f32 v17, v17, v19', 'v_and_b32 v17, 0x7fffffff, v17',
        's_mov_b32 exec_hi, 0', f'buffer_store_dwordx2 v[16:17], v13, s[{SRD_C}:{SRD_C+3}], 0 offen sc0 sc1', 's_mov_b64 exec, -1',
        f's_mov_b32 s{S_CNT}, 0')
    body = [f'{kn}_poll:']
    for p in range(8):
        body.append(f'buffer_load_dwordx2 {vr(20+2*p,2)}, v14, s[{SRD_C}:{SRD_C+3}], {"0" if p == 0 else f"s{52+p}"} offen sc0 sc1')
    body += ['s_waitcnt vmcnt(0)', 'v_min3_i32 v36, v21, v23, v25', 'v_min3_i32 v37, v27, v29, v31', 'v_min3_i32 v36, v36, v33, v35',
             'v_min_i32 v36, v36, v37', 'v_cmp_gt_i32 vcc, 0, v36', f's_add_u32 s{S_CNT}, s{S_CNT}, 1', f's_cmp_gt_u32 s{S_CNT}, 200000',
             f's_cbranch_scc1 {kn}_pdone', f's_cbranch_vccnz {kn}_poll']
    a.loop(body)
    a.e(f'{kn}_pdone:')
    a.e('v_pk_add_f32 v[20:21], v[20:21], v[22:23]', 'v_pk_add_f32 v[24:25], v[24:25], v[26:27]', 'v_pk_add_f32 v[28:29], v[28:29], v[30:31]',
        'v_pk_add_f32 v[32:33], v[32:33], v[34:35]', 'v_pk_add_f32 v[20:21], v[20:21], v[24:25]', 'v_pk_add_f32 v[28:29], v[28:29], v[32:33]',
        'v_pk_add_f32 v[20:21], v[20:21], v[28:29]', 'v_mov_b32 v22, v20', 'v_mov_b32 v23, v21',
        'v_permlane32_swap_b32 v20, v22', 'v_permlane32_swap_b32 v21, v23', 'v_add_f32 v20, v20, v22', 'v_add_f32 v21, v21, v23')
    stats_finish(a, 20, 21, 24, True)
    a.e('ds_write_b64 v12, v[20:21] offset:2048', 's_waitcnt lgkmcnt(0)', 's_barrier')
    a.e(f'{kn}_end:', 's_endpgm')
    return dict(lds=QL + 1024, grid=256, names=['k2a_kernel', 'k2b_kernel'], vgpr=128)

def gen_k1(a):
    kn = 'k1'; NK, NS = 16, 3
    XT = 18432; stage = XT + 24576
    SL = NS * stage
    QKV = stage
    PITCH = 400; PB = 72 * PITCH
    a.e('.p2align 8', 'k1a_kernel:', f's_mov_b32 s{S_VAR}, 0', 's_branch k1_body', '.p2align 8', 'k1b_kernel:', f's_mov_b32 s{S_VAR}, 1', 'k1_body:')
    prologue(a, kn, 256, 8, 1)
    lane_fields(a)
    ACC = 112
    def acc(m, rt): return ACC + 36 * m + 4 * rt
    a.e('s_waitcnt lgkmcnt(0)')
    srd(a, SRD_C, P_WS, ST_OFF, 16 * 2048 * 8)
    a.e(f's_cmp_lg_u32 s{S_WAVE}, 0', f's_cbranch_scc1 {kn}_norst',
        'v_mov_b32 v16, -1', 'v_mov_b32 v17, -1', 'v_mov_b32 v18, -1', 'v_mov_b32 v19, -1', 'v_lshlrev_b32 v20, 4, v0', f's_lshl_b32 s{S_T0}, s2, 10',
        f'buffer_store_dwordx4 v[16:19], v20, s[{SRD_C}:{SRD_C+3}], s{S_T0} offen sc0 sc1', f'{kn}_norst:')
    a.e('v_lshlrev_b32 v21, 3, v5', 'v_add_u32 v21, v21, v6', 'v_lshlrev_b32 v21, 7, v21',
        'v_lshrrev_b32 v22, 1, v7', f's_lshl_b32 s{S_T0}, s{S_WAVE}, 1', f'v_add_u32 v22, s{S_T0}, v22',
        'v_lshrrev_b32 v23, 1, v6', 'v_and_b32 v24, 1, v5', 'v_lshl_or_b32 v23, v24, 1, v23', 'v_lshlrev_b32 v23, 1, v23',
        'v_xor_b32 v22, v22, v23', 'v_lshlrev_b32 v22, 4, v22', 'v_and_b32 v23, 1, v7', 'v_lshlrev_b32 v23, 3, v23',
        'v_add3_u32 v8, v21, v22, v23', f'v_add_u32 v8, {XT}, v8')
    a.e('v_lshrrev_b32 v21, 1, v4', 'v_xor_b32 v21, v21, v5', 'v_lshlrev_b32 v21, 4, v21', 'v_lshlrev_b32 v22, 7, v4', 'v_add_u32 v9, v21, v22',
        'v_xor_b32 v10, 64, v9')
    a.e('v_and_b32 v21, 1, v4', f'v_mul_u32_u24 v21, {PB}, v21', 'v_lshrrev_b32 v22, 1, v4', f'v_mul_u32_u24 v22, {PITCH}, v22',
        'v_lshlrev_b32 v23, 3, v5', 'v_add3_u32 v11, v21, v22, v23', f's_lshl_b32 s{S_T0}, s{S_WAVE}, 5', f's_add_u32 s{S_T0}, s{S_T0}, {QKV}',
        f'v_add_u32 v11, s{S_T0}, v11', 'v_lshlrev_b32 v12, 3, v4', f'v_add_u32 v12, {SL}, v12')
    for r in range(ACC, ACC + 108):
        a.e(f'v_mov_b32 v{r}, 0')
    reads = [[], []]; mf = [[], []]
    for h in range(2):
        F = 16 + 48 * h
        ra = [[f'ds_read_b64_tr_b16 {vr(F+4*m,2)}, v8 offset:{m*8192+h*4096}', f'ds_read_b64_tr_b16 {vr(F+4*m+2,2)}, v8 offset:{m*8192+h*4096+512}'] for m in range(3)]
        rb = [f'ds_read_b128 {vr(F+12+4*rt,4)}, v{9+h} offset:{rt*2048}' for rt in range(9)]
        reads[h] = ra[0] + [rb[0]] + ra[1] + ra[2] + rb[1:]
        for rt in range(9):
            for m in range(3):
                mf[h].append(f'{MF16} {vr(acc(m,rt),4)}, {vr(F+4*m,4)}, {vr(F+12+4*rt,4)}, {vr(acc(m,rt),4)}')
    consumer_main(a, kn, NK, NS, stage, reads, mf, [8, 9, 10], rper=1)
    for m in range(3):
        for r in range(4):
            a.e(f'v_mov_b32_dpp v{16+4*m+r}, v{acc(m,0)+r} row_newbcast:0 row_mask:0xf bank_mask:0xf')
    a.e('s_barrier')
    for rt in range(9):
        a.e(f'ds_read_b64 {vr(32+2*rt,2)}, v12 offset:{rt*128}')
    a.e('s_waitcnt lgkmcnt(0)')
    k = 0
    for rt in range(9):
        for m in range(3):
            if m == 0 and rt == 0: continue
            d = acc(m, rt); st = vr(32 + 2 * rt, 2); o = 52 + 2 * (k & 7); k += 1
            for e in (0, 2):
                a.e(f'v_pk_fma_f32 {vr(d+e,2)}, {vr(16+4*m+e,2)}, {st}, {vr(d+e,2)} op_sel_hi:[1,0,1] neg_lo:[0,1,0] neg_hi:[0,1,0]')
            for e in (0, 2):
                a.e(f'v_pk_mul_f32 {vr(d+e,2)}, {vr(d+e,2)}, {st} op_sel:[0,1] op_sel_hi:[1,1]')
            a.e(f'v_cvt_pk_bf16_f32 v{o}, v{d}, v{d+1}', f'v_cvt_pk_bf16_f32 v{o+1}, v{d+2}, v{d+3}',
                f'ds_write_b64 v11, {vr(o,2)} offset:{rt*8*PITCH+m*128}')
    a.e('s_waitcnt lgkmcnt(0)', f's_branch {kn}_attn')
    a.e(f'{kn}_loader:'); a.flush_hist()
    a.e(f's_sub_u32 s{S_T2}, s{S_WAVE}, 4')
    a.e('v_mov_b32 v16, 0x3f803f80', 'v_mov_b32 v17, v16', 'v_mov_b32 v18, v16', 'v_mov_b32 v19, v16', 'v_lshlrev_b32 v20, 4, v0', f'v_add_u32 v21, {2*stage}, v20',
        f's_cmp_lg_u32 s{S_T2}, 0', f's_cbranch_scc1 {kn}_noones', 's_mov_b64 exec, 0xff',
        'ds_write_b128 v20, v[16:19]', f'ds_write_b128 v20, v[16:19] offset:{stage}', 'ds_write_b128 v21, v[16:19]', 's_mov_b64 exec, -1', f'{kn}_noones:')
    def xaddr(v, rowbase_s, comp):
        a.e('v_lshrrev_b32 v2, 3, v0', f'v_add_u32 v2, s{rowbase_s}, v2',
            'v_bfe_u32 v3, v2, 1, 3', 'v_and_b32 v4, 7, v0', 'v_xor_b32 v3, v3, v4', 'v_lshlrev_b32 v3, 4, v3',
            f's_lshl_b32 s{S_T1}, s{S_TI}, 7', f's_sub_u32 s{S_T1}, s{S_T1}, 16', f'v_add_u32 v2, s{S_T1}, v2', 'v_max_i32 v2, 0, v2',
            'v_lshlrev_b32 v2, 11, v2', f'v_add_u32 v{v}, v2, v3')
        if comp: a.e(f'v_subrev_u32 v{v}, {comp}, v{v}')
    for i in range(4):
        a.e(f's_lshl_b32 s{S_T0}, s{S_T2}, 5', f's_add_u32 s{S_T0}, s{S_T0}, {16+8*i}')
        xaddr(8 + i, S_T0, 1024 * i)
    a.e(f's_lshl_b32 s{S_T0}, s{S_T2}, 3'); xaddr(12, S_T0, 0)
    def swz(d, row, t): a.e(f'v_bfe_u32 v{d}, v{row}, 1, 1', f'v_bfe_u32 v{t}, v{row}, 3, 1', f'v_lshl_or_b32 v{d}, v{t}, 1, v{d}', f'v_lshlrev_b32 v{d}, 1, v{d}')
    dma_w128(a, [13, 14], 6144, swz, 16, 2, 3, 4)
    a.e('v_add_u32 v15, 2048, v13', 'v_add_u32 v16, 2048, v14', 'v_add_u32 v17, 4096, v13', 'v_add_u32 v18, 4096, v14')
    a.e(f's_lshl_b32 s{S_G0}, s{S_T2}, 12', f's_add_u32 s{S_G0}, s{S_G0}, 2048', f's_lshl_b32 s{S_G0+1}, s{S_T2}, 10',
        f's_lshl_b32 s{S_G0+2}, s{S_T2}, 11', f's_add_u32 s{S_G0+2}, s{S_G0+2}, {XT}', f's_add_u32 s{S_G0+3}, s{S_G0+2}, 8192', f's_add_u32 s{S_G0+4}, s{S_G0+2}, 16384',
        f's_mov_b32 s{S_BA}, 0', f's_lshl_b32 s{S_BB}, s{S_TJ}, 7')
    a.e('v_lshrrev_b32 v2, 1, v0', f's_lshl_b32 s{S_T0}, s{S_T2}, 5', f's_add_u32 s{S_T0}, s{S_T0}, 16', f'v_add_u32 v2, s{S_T0}, v2',
        'v_bfe_u32 v3, v2, 1, 3', 'v_and_b32 v4, 1, v0', 'v_lshlrev_b32 v4, 2, v4', 'v_xor_b32 v3, v3, v4', 'v_lshlrev_b32 v3, 4, v3',
        'v_lshlrev_b32 v4, 7, v2', 'v_add_u32 v20, v3, v4', 'v_xor_b32 v21, 16, v20', 'v_xor_b32 v22, 32, v20', 'v_xor_b32 v23, 48, v20',
        f'v_lshlrev_b32 v25, 3, v2', f'v_add_u32 v25, {SL}, v25',
        f's_and_b32 s{S_T0}, s{S_T2}, 1', f's_lshl_b32 s{S_T0}, s{S_T0}, 10', 'v_lshlrev_b32 v24, 4, v0', f'v_add_u32 v24, s{S_T0}, v24',
        'v_lshrrev_b32 v26, 7, v24', 'v_lshlrev_b32 v26, 3, v26', f'v_add_u32 v26, {SL}, v26',
        'v_mov_b32 v28, 0', 'v_mov_b32 v29, 0', 'v_mov_b32 v30, 0', 'v_mov_b32 v31, 0', 'v_mov_b32 v27, 0x3f803f80', f's_mov_b32 s{S_CUR}, 0')
    a.e('s_waitcnt lgkmcnt(0)')
    srd_sel(a, SRD_A, P_X, 0, P_WS, X2_OFF, XB)
    srd(a, SRD_B, P_WQKV, 0, 1024 * 3072 * 2)
    def per_step():
        L = [f'ds_read_b128 {vr(32+4*c,4)}, v{20+c}' for c in range(5)]
        L += [f's_add_u32 s{S_T0}, s{S_CUR}, {stage}', f's_cmp_eq_u32 s{S_T0}, {NS*stage}', f's_cselect_b32 s{S_T0}, 0, s{S_T0}',
              f's_sub_u32 s{S_DELTA}, s{S_T0}, s{S_CUR}', f's_mov_b32 s{S_CUR}, s{S_T0}']
        L += [f'v_add_u32 v{20+c}, s{S_DELTA}, v{20+c}' for c in range(5)]
        for c in range(5):
            L.append(f's_waitcnt lgkmcnt({4-c})')
            sa, sq = (28, 29) if c < 4 else (30, 31)
            for e in range(4):
                L += [f'v_dot2c_f32_bf16 v{sa}, v27, v{32+4*c+e}', f'v_dot2c_f32_bf16 v{sq}, v{32+4*c+e}, v{32+4*c+e}']
        return L
    gx = dict(sg=S_G0, dmas=[(8 + i, 1024 * i, 'A', None) for i in range(4)])
    gw = [dict(sg=S_G0 + 2 + m, dmas=[(13 + 2 * m, 0, 'B', None), (14 + 2 * m, 1024, 'B', None)]) for m in range(3)]
    a.e(f's_cmp_ge_u32 s{S_T2}, 2', f's_cbranch_scc1 {kn}_ldB')
    a.e(f's_cmp_eq_u32 s{S_T2}, 0', f's_cselect_b32 s52, 0xffffff00, -1', 's_mov_b32 s53, -1')
    gh = dict(sg=S_G0 + 1, dmas=[(12, 0, 'A', 's[52:53]')])
    loader_main(a, kn, NK, NS, stage, 128, 64 * 6144, [gh, gx] + gw, per_step, tag='A')
    a.e(f's_branch {kn}_ldone', f'{kn}_ldB:'); a.flush_hist()
    loader_main(a, kn, NK, NS, stage, 128, 64 * 6144, [gx] + gw, per_step, tag='B')
    a.e(f'{kn}_ldone:'); a.flush_hist()
    def xadd(v, t, ctl): a.e(f'v_add_f32_dpp v{t}, v{v}, v{v} {ctl} row_mask:0xf bank_mask:0xf', f'v_mov_b32 v{v}, v{t}')
    for v in (28, 29): xadd(v, 32, 'quad_perm:[1,0,3,2]')
    for v in (30, 31):
        xadd(v, 32, 'quad_perm:[1,0,3,2]'); xadd(v, 32, 'quad_perm:[2,3,0,1]'); xadd(v, 32, 'row_half_mirror')
    stats_finish(a, 28, 29, 32, False)
    stats_finish(a, 30, 31, 32, False)
    a.e('ds_write_b64 v25, v[28:29]', 'ds_write_b64 v26, v[30:31]', 's_waitcnt lgkmcnt(0)', 's_barrier')
    lane_fields(a)
    a.e(f'{kn}_attn:'); a.flush_hist()
    srd(a, SRD_D, P_WS, O_OFF, XB)
    a.e(f's_lshr_b32 s{S_T1}, s{S_WAVE}, 1', f's_and_b32 s{S_T2}, s{S_WAVE}, 1',
        f's_mul_i32 s{S_T0}, s{S_T2}, {PB}', f's_add_u32 s{S_T0}, s{S_T0}, {QKV}',
        f's_lshl_b32 s{S_G0}, s{S_T1}, 4')
    a.e(f'v_add_u32 v16, s{S_G0}, v4', 'v_lshlrev_b32 v17, 4, v5', f'v_add_u32 v17, s{S_T0}, v17',
        f'v_mul_u32_u24 v18, {PITCH}, v16', 'v_add_u32 v8, v18, v17', f'v_add_u32 v10, {8*PITCH}, v8', 'v_add_u32 v8, 128, v8',
        'v_add_u32 v16, 16, v16', 'v_min_u32 v16, 71, v16', f'v_mul_u32_u24 v18, {PITCH}, v16', 'v_add3_u32 v9, v18, v17, 64', 'v_add_u32 v9, 64, v9')
    a.e('v_lshl_add_u32 v16, v5, 2, v6', f'v_add_u32 v16, s{S_G0}, v16', 'v_lshlrev_b32 v17, 4, v7', f'v_add_u32 v17, s{S_T0}, v17', 'v_add_u32 v17, 256, v17',
        f'v_mul_u32_u24 v18, {PITCH}, v16', 'v_add_u32 v11, v18, v17',
        'v_add_u32 v16, 16, v16', 'v_min_u32 v16, 71, v16', f'v_mul_u32_u24 v18, {PITCH}, v16', 'v_add_u32 v12, v18, v17')
    a.e(f's_lshl_b32 s{S_G0+1}, s{S_T1}, 5', f's_add_u32 s{S_G0+1}, s{S_G0+1}, s{S_T2}', 'v_lshlrev_b32 v16, 1, v4', f'v_add_u32 v16, s{S_G0+1}, v16',
        'v_bfe_u32 v17, v16, 1, 3', 'v_xor_b32 v17, v17, v5', 'v_lshlrev_b32 v17, 4, v17', 'v_lshlrev_b32 v16, 7, v16', 'v_add_u32 v13, v16, v17', 'v_xor_b32 v14, 64, v13',
        f's_lshl_b32 s{S_G0+2}, s{S_TI}, 4', f's_add_u32 s{S_G0+2}, s{S_G0+2}, s{S_TJ}', f's_lshl_b32 s{S_G0+2}, s{S_G0+2}, 14')
    a.e('v_lshlrev_b32 v16, 2, v5', 'v_sub_u32 v16, v16, v4', f's_or_b32 s{S_G0+3}, s{S_TI}, s{S_T1}', f's_cmp_eq_u32 s{S_G0+3}, 0',
        f's_cselect_b32 s{S_G0+4}, 0, -1')
    for k in range(8):
        i0 = 16 * (k >> 2) + (k & 3) - 1
        a.e(f'v_add_u32 v17, {i0}, v16', f'v_cmp_gt_u32 s[{52+2*k}:{53+2*k}], 8, v17')
    for k in range(4):
        a.e(f's_and_b32 s{52+2*k}, s{52+2*k}, s{S_G0+4}')
    a.e('s_barrier')
    cs = (32 ** -0.5) * 1.4426950408889634
    a.e(f'v_mov_b32 v15, {f32(cs)}', 'v_mov_b32 v7, 0xff800000')
    B = [32, 80]
    for hd in range(2):
        b = B[hd]; o = 64 * hd
        a.e(f'ds_read_b128 {vr(b,4)}, v10 offset:{o}', f'ds_read_b128 {vr(b+4,4)}, v8 offset:{o}', f'ds_read_b128 {vr(b+8,4)}, v9 offset:{o}')
        for dt in range(2):
            a.e(f'ds_read_b64_tr_b16 {vr(b+12+4*dt,2)}, v11 offset:{o+8*dt}', f'ds_read_b64_tr_b16 {vr(b+14+4*dt,2)}, v12 offset:{o+8*dt}')
    for hd in range(2):
        b = B[hd]
        a.e(f's_waitcnt lgkmcnt({11 - 7*hd})')
        a.e(f'{MF16} {vr(b+20,4)}, {vr(b+4,4)}, {vr(b,4)}, 0', f'{MF16} {vr(b+24,4)}, {vr(b+8,4)}, {vr(b,4)}, 0')
    def both(f):
        L = [f(B[0]), f(B[1])]
        for x, y in zip(*L): a.e(x, y)
    both(lambda b: [f'v_cndmask_b32 v{b+20+k}, v7, v{b+20+k}, s[{52+2*k}:{53+2*k}]' for k in range(8)])
    both(lambda b: [f'v_max3_f32 v{b+28}, v{b+20}, v{b+21}, v{b+22}', f'v_max3_f32 v{b+29}, v{b+23}, v{b+24}, v{b+25}',
                    f'v_max3_f32 v{b+28}, v{b+28}, v{b+26}, v{b+27}', f'v_max_f32 v{b+28}, v{b+28}, v{b+29}', f'v_mov_b32 v{b+29}, v{b+28}',
                    f'v_permlane16_swap_b32 v{b+28}, v{b+29}', f'v_max_f32 v{b+28}, v{b+28}, v{b+29}', f'v_mov_b32 v{b+29}, v{b+28}',
                    f'v_permlane32_swap_b32 v{b+28}, v{b+29}', f'v_max_f32 v{b+28}, v{b+28}, v{b+29}', f'v_mul_f32 v{b+28}, v15, v{b+28}'])
    both(lambda b: [f'v_fma_f32 v{b+20+k}, v{b+20+k}, v15, -v{b+28}' for k in range(8)])
    both(lambda b: [f'v_exp_f32 v{b+20+k}, v{b+20+k}' for k in range(8)])
    both(lambda b: [f'v_pk_add_f32 {vr(b+28,2)}, {vr(b+20,2)}, {vr(b+22,2)}', f'v_pk_add_f32 {vr(b+30,2)}, {vr(b+24,2)}, {vr(b+26,2)}',
                    f'v_pk_add_f32 {vr(b+28,2)}, {vr(b+28,2)}, {vr(b+30,2)}', f'v_add_f32 v{b+28}, v{b+28}, v{b+29}', f'v_mov_b32 v{b+29}, v{b+28}',
                    f'v_permlane16_swap_b32 v{b+28}, v{b+29}', f'v_add_f32 v{b+28}, v{b+28}, v{b+29}', f'v_mov_b32 v{b+29}, v{b+28}',
                    f'v_permlane32_swap_b32 v{b+28}, v{b+29}', f'v_add_f32 v{b+28}, v{b+28}, v{b+29}', f'v_rcp_f32 v{b+28}, v{b+28}'])
    both(lambda b: [f'v_pk_mul_f32 {vr(b+20+e,2)}, {vr(b+20+e,2)}, {vr(b+28,2)} op_sel_hi:[1,0]' for e in range(0, 8, 2)])
    both(lambda b: [f'v_cvt_pk_bf16_f32 v{b+32+e}, v{b+20+2*e}, v{b+21+2*e}' for e in range(4)])
    a.e('s_waitcnt lgkmcnt(0)')
    both(lambda b: [f'{MF16} {vr(b+36+4*dt,4)}, {vr(b+12+4*dt,4)}, {vr(b+32,4)}, 0' for dt in range(2)])
    both(lambda b: [f'v_cvt_pk_bf16_f32 v{b+e}, v{b+36+2*e}, v{b+37+2*e}' for e in range(4)])
    for hd in range(2):
        a.e(f'buffer_store_dwordx4 {vr(B[hd],4)}, v{13+hd}, s[{SRD_D}:{SRD_D+3}], s{S_G0+2} offen')
    a.e(f'{kn}_end:', 's_endpgm')
    return dict(lds=SL + 1152, grid=256, names=['k1a_kernel', 'k1b_kernel'], vgpr=224)

def main(out):
    a = Asm()
    info = {}
    for g in (gen_k1, gen_k2, gen_k3, gen_k4):
        m = g(a)
        for n in m['names']: info[n] = m
        a.flush_hist()
    order = ['k1a_kernel', 'k2a_kernel', 'k3_kernel', 'k4a_kernel', 'k1b_kernel', 'k2b_kernel', 'k3_kernel', 'k4b_kernel']
    ref = open(os.path.join(os.path.dirname(os.path.abspath(__file__)), '..', NAME + '.s.ref')).read().splitlines()
    hdr = [l for l in ref if l.startswith(';') and '@launch' not in l and 'Override launch' not in l and 'grid=ceil' not in l]
    hdr += [f'; @launch kernel={n} grid=({info[n]["grid"]},1,1) block=(512,1,1) lds={info[n]["lds"]}' for n in order]
    s = '\n'.join(hdr) + '\n; generated by gen/gen.py\n.amdgcn_target "amdgcn-amd-amdhsa--gfx950"\n.text\n' + a.text()
    s += '.section .rodata,"a"\n'
    for n, m in info.items():
        s += f'''.p2align 6
.amdhsa_kernel {n}
  .amdhsa_next_free_vgpr {m["vgpr"]}
  .amdhsa_next_free_sgpr 96
  .amdhsa_accum_offset {m["vgpr"]}
  .amdhsa_group_segment_fixed_size 0
  .amdhsa_kernarg_size 88
  .amdhsa_user_sgpr_count 2
  .amdhsa_user_sgpr_kernarg_segment_ptr 1
  .amdhsa_system_sgpr_workgroup_id_x 1
.end_amdhsa_kernel
'''
    open(out, 'w').write(s)

if __name__ == '__main__':
    main(sys.argv[1] if len(sys.argv) > 1 else os.path.join(os.path.dirname(os.path.abspath(__file__)), '..', NAME + '.s'))
```

```python
import sys, os, struct
sys.path.insert(0, os.path.dirname(os.path.abspath(__file__)))
from asmlib import *

NAME = 'interleave_layers__sliding_local_dilated__mixer_token_mlp__prompt'
MB = 1 << 20
O_OFF, X1_OFF, H_OFF, U_OFF, X2_OFF, ST_OFF, RS_OFF = 0, 4 * MB, 8 * MB, 12 * MB, 20 * MB, 24 * MB, 25 * MB
XB = 2048 * 1024 * 2
UB = 1024 * 3584 * 2
EPS = 1e-5
def f32(x): return '0x%08x' % struct.unpack('<I', struct.pack('<f', x))[0]
def env(k, d='0'): return os.environ.get(k, d)

S_VAR, S_WAVE, S_LI, S_LJ, S_PHI = 3, 4, 5, 6, 7
SRD_A, SRD_B, SRD_C, SRD_D, SRD_E = 8, 12, 16, 20, 24
S_TI, S_TJ = 28, 29
S_P, S_W, S_T0, S_K, S_BA, S_BB, S_OA, S_OB, S_LW, S_CNT, S_T1, S_T2, S_DELTA, S_CUR = 30, 31, 32, 33, 34, 35, 36, 37, 38, 39, 40, 41, 42, 43
S_G0 = 44
P_X, P_WQKV, P_WO, P_BX, P_W1, P_B1, P_W2, P_B2 = 64, 66, 68, 70, 72, 74, 76, 78
P_OUT, P_DBG, P_WS = 80, 82, 84
MF16 = 'v_mfma_f32_16x16x32_bf16'

_lab = [0]
PROF = env('PROF') == '1'
NOREAD = env('NOREAD') == '1'; NODMA = env('NODMA') == '1'; NOMFMA = env('NOMFMA') == '1'
PV = 250
def stamp(idx=None):
    if not PROF: return []
    L = ['s_memrealtime s[88:89]', 's_waitcnt lgkmcnt(0)']
    if idx is None: L = ['s_memtime s[92:93]'] + L + ['s_mov_b32 m0, s90', 's_add_u32 s90, s90, 1', f'v_writelane_b32 v{PV}, s88, m0', f'v_writelane_b32 v{PV-1}, s92, m0']
    else: L += [f'v_writelane_b32 v{PV}, s88, {idx}']
    return L
def cstamp(idx):
    return ['s_memtime s[88:89]', 's_waitcnt lgkmcnt(0)', f'v_writelane_b32 v{PV}, s88, {idx}'] if PROF else []
def stamp_init(): return ['s_mov_b32 s90, 1', f'v_mov_b32 v{PV}, 0'] + stamp(0) if PROF else []
def stamp_dump(a, kid):
    if not PROF: return
    a.e('s_waitcnt vmcnt(0)'); a.e(*stamp(63))
    _lab[0] += 1
    a.e(f's_and_b32 s88, s{S_WAVE}, 3', 's_cmp_lg_u32 s88, 0', f's_cbranch_scc1 pd{_lab[0]}')
    a.e(f's_add_u32 s88, s{S_VAR}, {kid*2}', 's_lshl_b32 s88, s88, 8', 's_add_u32 s88, s88, s2', 's_lshl_b32 s88, s88, 9',
        f's_lshl_b32 s89, s{S_WAVE}, 6', 's_add_u32 s88, s88, s89', f's_add_u32 s88, s88, {32*MB}',
        'v_mbcnt_lo_u32_b32 v251, -1, 0', 'v_mbcnt_hi_u32_b32 v251, -1, v251', 'v_lshlrev_b32 v251, 2, v251', 'v_add_u32 v251, s88, v251',
        f'global_store_dword v251, v{PV}, s[{P_WS}:{P_WS+1}]', f'v_add_u32 v251, {MB}, v251', f'global_store_dword v251, v{PV-1}, s[{P_WS}:{P_WS+1}]', f'pd{_lab[0]}:')

def S4(d): return f's[{d}:{d+3}]'

def srd(a, d, ptr, off, nbytes):
    if off: a.e(f's_add_u32 s{d}, s{ptr}, {off}', f's_addc_u32 s{d+1}, s{ptr+1}, 0')
    else: a.e(f's_mov_b32 s{d}, s{ptr}', f's_mov_b32 s{d+1}, s{ptr+1}')
    a.e(f's_mov_b32 s{d+2}, {nbytes}', f's_mov_b32 s{d+3}, 0x20000')

def srd_sel(a, d, ptr0, off0, ptr1, off1, nbytes):
    assert not (off0 and off1)
    a.e(f's_cmp_eq_u32 s{S_VAR}, 0',
        f's_cselect_b32 s{d}, s{ptr0}, s{ptr1}', f's_cselect_b32 s{d+1}, s{ptr0+1}, s{ptr1+1}',
        f's_cselect_b32 s{d+2}, {off0}, {off1}',
        f's_add_u32 s{d}, s{d}, s{d+2}', f's_addc_u32 s{d+1}, s{d+1}, 0',
        f's_mov_b32 s{d+2}, {nbytes}', f's_mov_b32 s{d+3}, 0x20000')

def entry(a, kn, two):
    if two:
        a.e('.p2align 8', f'{kn}a_kernel:', f's_mov_b32 s{S_VAR}, 0', f's_branch {kn}_body', '.p2align 8', f'{kn}b_kernel:', f's_mov_b32 s{S_VAR}, 1', f'{kn}_body:')
    else:
        a.e('.p2align 8', f'{kn}_kernel:', f's_mov_b32 s{S_VAR}, 0')

def prologue(a, kn, nwg, LN, xshift):
    a.e(f's_cmp_ge_u32 s2, {nwg}', f's_cbranch_scc1 {kn}_end',
        's_load_dwordx16 s[64:79], s[0:1], 0', 's_load_dwordx4 s[80:83], s[0:1], 64', 's_load_dwordx2 s[84:85], s[0:1], 80',
        'v_lshrrev_b32 v1, 6, v0', 'v_and_b32 v0, 63, v0', f'v_readfirstlane_b32 s{S_WAVE}, v1',
        f's_lshr_b32 s{S_T0}, s2, 3')
    if LN == 8:
        a.e(f's_lshr_b32 s{S_LI}, s{S_T0}, 3', f's_and_b32 s{S_LJ}, s{S_T0}, 7')
    else:
        a.e(f's_mul_i32 s{S_LI}, s{S_T0}, {65536 // LN + 1}', f's_lshr_b32 s{S_LI}, s{S_LI}, 16',
            f's_mul_i32 s{S_LJ}, s{S_LI}, {LN}', f's_sub_u32 s{S_LJ}, s{S_T0}, s{S_LJ}')
    a.e(f's_lshl_b32 s{S_PHI}, s{S_LI}, 1', f's_add_u32 s{S_PHI}, s{S_PHI}, s{S_LJ}', f's_and_b32 s{S_PHI}, s{S_PHI}, 7',
        f's_and_b32 s{S_T0}, s2, 7', f's_lshr_b32 s{S_TI}, s{S_T0}, {xshift}', f's_lshl_b32 s{S_TI}, s{S_TI}, 2',
        f's_add_u32 s{S_TI}, s{S_TI}, s{S_LI}',
        f's_and_b32 s{S_TJ}, s{S_T0}, {(1 << xshift) - 1}', f's_mul_i32 s{S_TJ}, s{S_TJ}, {LN}', f's_add_u32 s{S_TJ}, s{S_TJ}, s{S_LJ}',
        f's_mov_b32 s{S_P}, 7', f's_mov_b32 s{S_W}, -1',
        *stamp_init(), f's_cmp_ge_u32 s{S_WAVE}, 4', f's_cbranch_scc1 {kn}_loader')

def next_k(NK):
    R = NK // 8
    return [f's_add_u32 s{S_P}, s{S_P}, 1', f's_and_b32 s{S_P}, s{S_P}, 7', f's_cselect_b32 s{S_T0}, 0, 1',
            f's_add_u32 s{S_W}, s{S_W}, s{S_T0}',
            f's_sub_u32 s{S_T0}, s{S_P}, s{S_PHI}', f's_and_b32 s{S_T0}, s{S_T0}, 7', f's_cmp_lt_u32 s{S_T0}, 2',
            f's_cselect_b32 s{S_T0}, 1, 0', f's_add_u32 s{S_T0}, s{S_T0}, s{S_W}', f's_cmp_ge_u32 s{S_T0}, {R}',
            f's_cselect_b32 s{S_T0}, 0, s{S_T0}',
            f's_lshl_b32 s{S_K}, s{S_T0}, 3', f's_add_u32 s{S_K}, s{S_K}, s{S_P}']

def loader_issue(NK, NS, stage, stepA, stepB, groups):
    L = next_k(NK)
    if stepA: L += [f's_mul_i32 s{S_OA}, s{S_K}, {stepA}', f's_add_u32 s{S_OA}, s{S_OA}, s{S_BA}']
    L += [f's_mul_i32 s{S_OB}, s{S_K}, {stepB}', f's_add_u32 s{S_OB}, s{S_OB}, s{S_BB}']
    for g in groups:
        L.append(f's_add_u32 m0, s{S_LW}, s{g["sg"]}')
        for (v, imm, st, ex) in g['dmas']:
            srdn, so = (SRD_A, S_OA) if st == 'A' else (SRD_B, S_OB)
            if ex: L.append(f's_mov_b64 exec, {ex}')
            if not NODMA: L.append(f'buffer_load_dwordx4 v{v}, {S4(srdn)}, s{so} offen offset:{imm} lds')
            if ex: L.append('s_mov_b64 exec, -1')
    L += [f's_add_u32 s{S_LW}, s{S_LW}, {stage}', f's_cmp_eq_u32 s{S_LW}, {NS*stage}', f's_cselect_b32 s{S_LW}, 0, s{S_LW}']
    return L

def loader_main(a, kn, NK, NS, stage, stepA, stepB, groups, tag='', first=2, per_step=None, late=False, tail=0):
    n = sum(len(g['dmas']) for g in groups)
    AH = NS - 2 if late else NS - 1
    iss = lambda: loader_issue(NK, NS, stage, stepA, stepB, groups)
    ps = per_step or (lambda: [])
    a.e(f's_mov_b32 s{S_LW}, 0')
    issued = min(first, AH)
    for s in range(issued): a.e(*iss())
    t = 0
    while issued < t + AH:
        a.e(f's_waitcnt vmcnt({(issued - t - 1) * n})', 's_barrier', *stamp())
        k = min(issued + 2, t + AH + 1) - issued
        for _ in range(k): a.e(*iss())
        a.e(*ps())
        issued += k; t += 1
    a.e(f's_mov_b32 s{S_CNT}, {NK - AH - t}')
    body = [f'{kn}{tag}_lloop:', f's_waitcnt vmcnt({(AH-1)*n})', 's_barrier'] + stamp() + iss() + ps()
    body += [f's_sub_u32 s{S_CNT}, s{S_CNT}, 1', f's_cmp_lg_u32 s{S_CNT}, 0', f's_cbranch_scc1 {kn}{tag}_lloop']
    a.loop(body)
    for j in range(AH - tail):
        a.e(f's_waitcnt vmcnt({(AH-1-j)*n})', 's_barrier', *stamp(), *ps())

def adv_s(NS, stage):
    return [f's_add_u32 s{S_T1}, s{S_CUR}, {stage}', f's_cmp_eq_u32 s{S_T1}, {NS*stage}', f's_cselect_b32 s{S_T1}, 0, s{S_T1}',
            f's_sub_u32 s{S_DELTA}, s{S_T1}, s{S_CUR}', f's_mov_b32 s{S_CUR}, s{S_T1}']

def bundle(reads, advv):
    out = [[r] for r in reads]
    for x in advv:
        reg = Ins(x).wr
        idx = [i for i, r in enumerate(reads) if Ins(r).rd & reg]
        out[idx[-1] if idx else -1].append(x)
    return out

def sched(mfmas, fill, queue, per=1, start=0, vq=None):
    out = []; f = list(fill)
    def put(x):
        for y in (x if isinstance(x, list) else [x]):
            out.append(y)
            if y.startswith('ds_read'): queue.append(Ins(y).wr)
            if y.startswith('buffer_load') and vq is not None: vq.append(Ins(y).wr)
    for i, m in enumerate(mfmas):
        rd = Ins(m).srcab
        w = []
        for q, nm, cap in ((vq or [], 'vmcnt', 63), (queue, 'lgkmcnt', 15)):
            last = max([k for k, x in enumerate(q) if x & rd], default=-1)
            if last >= 0:
                w.append(f'{nm}({min(len(q) - 1 - last, cap)})')
                del q[:last + 1]
        if w: out.append('s_waitcnt ' + ' '.join(w))
        out.append(m)
        for _ in range(per if i >= start else 0):
            if f: put(f.pop(0))
    for x in f: put(x)
    return out

def consumer_direct(a, kn, NK, NS, stage, reads, mf, addr_regs, DR, D, vaddr, init):
    adv = adv_s(NS, stage)
    if NOREAD: reads = [['s_nop 0'], ['s_nop 0']]
    if NOMFMA: mf = lambda h, b: ['s_nop 0']
    advv = [f'v_add_u32 v{r}, s{S_DELTA}, v{r}' for r in addr_regs]
    nk = next_k(NK) + [f's_lshl_b32 s{S_OA}, s{S_K}, 12', f's_add_u32 s{S_OA}, s{S_OA}, s{S_BA}']
    ld = lambda slot, i: 's_nop 0' if NODMA else f'buffer_load_dwordx4 {vr(DR+16*slot+4*i,4)}, v{vaddr}, {S4(SRD_A)}, s{S_OA} offen offset:{1024*i}'
    vq = []
    for sl in range(D):
        a.e(*nk)
        for i in range(4 if sl < D - 1 else 2):
            a.e(ld(sl, i)); vq.append(Ins(ld(sl, i)).wr)
        if sl == 1: init(8)
    assert NK % D == 0
    a.e(f's_mov_b32 s{S_CUR}, 0', f's_mov_b32 s{S_CNT}, {NK // D - 1}', *stamp(1), 's_barrier', *stamp(2), *cstamp(58))
    a.e(*reads[0]); a.e(*adv)
    q0 = [Ins(x).wr for x in reads[0] if x.startswith('ds_read')]
    def mix(items, loads, pos):
        items = [list(x) for x in items]
        for l, p in zip(loads, pos):
            while len(items) <= p: items.append([])
            items[p] = items[p] + (l if isinstance(l, list) else [l])
        return items
    def step(slot, t, vq):
        q = list(q0)
        final = t == NK - 1
        prev = (slot - 1) % D
        l0 = [ld(prev, 2), ld(prev, 3)] if t is None or t - 1 + D < NK else []
        L = sched(mf(0, DR + 16 * slot), mix(bundle(reads[1], [] if final else advv), l0, (1, 5)), q, 1, vq=vq)
        if final: return L + sched(mf(1, DR + 16 * slot + 8), [], q, 1, vq=vq)
        more = t is None or t + D < NK
        sc = adv + (nk if more else [])
        it = [[r] for r in reads[0]]
        for i, x in enumerate(sc): it[min(i // 3, len(it) - 1)].append(x)
        l1 = [ld(slot, 0), ld(slot, 1)] if more else []
        return L + ['s_barrier'] + sched(mf(1, DR + 16 * slot + 8), mix(it, l1, (6, 7)), q, 1, vq=vq)
    v1 = list(vq)
    body = [f'{kn}_cloop:']
    for sl in range(D): body += step(sl, None, v1)
    assert NODMA or NOMFMA or v1 == vq
    body += [f's_sub_u32 s{S_CNT}, s{S_CNT}, 1', f's_cmp_lg_u32 s{S_CNT}, 0', f's_cbranch_scc1 {kn}_cloop']
    a.loop(body)
    for sl in range(D): a.e(*step(sl, NK - D + sl, vq))
    a.e('s_waitcnt lgkmcnt(0)', *stamp(60), *cstamp(59))

def spread(reads, extra):
    out = [[r] for r in reads]
    for i, x in enumerate(extra): out[min(i, len(out) - 1)].append(x)
    return out

def consumer_main(a, kn, NK, NS, stage, reads, mfmas, addr_regs, rper=1, late=False, peel=None):
    adv = adv_s(NS, stage)
    if NOREAD: reads = [['s_nop 0'], ['s_nop 0']]
    if NOMFMA: mfmas = [['s_nop 0'], ['s_nop 0']]
    advv = [f'v_add_u32 v{r}, s{S_DELTA}, v{r}' for r in addr_regs]
    a.e(f's_mov_b32 s{S_CUR}, 0', f's_mov_b32 s{S_CNT}, {NK - 1}', *stamp(1), 's_barrier', *stamp(2), *cstamp(58))
    a.e(*reads[0]); a.e(*adv)
    q0 = [Ins(x).wr for x in reads[0] if x.startswith('ds_read')]
    def iteration(pre=(), post=()):
        q = list(q0)
        L = sched(mfmas[0], bundle(reads[1], advv), q, rper)
        if not late: L.append('s_waitcnt lgkmcnt(0)'); q.clear()
        L += list(pre) + ['s_barrier'] + list(post) + sched(mfmas[1], spread(reads[0], adv), q, rper)
        assert NOREAD or NOMFMA or q == q0
        return L
    if peel:
        a.e(*iteration(*peel)); a.e(f's_sub_u32 s{S_CNT}, s{S_CNT}, 1')
    body = [f'{kn}_cloop:'] + iteration()
    body += [f's_sub_u32 s{S_CNT}, s{S_CNT}, 1', f's_cmp_lg_u32 s{S_CNT}, 0', f's_cbranch_scc1 {kn}_cloop']
    a.loop(body)
    q = list(q0)
    a.e(*sched(mfmas[0], reads[1], q, rper))
    a.e(*sched(mfmas[1], [], q)); a.e('s_waitcnt lgkmcnt(0)', *stamp(60), *cstamp(59))

def lane_fields(a):
    a.e('v_and_b32 v4, 15, v0', 'v_lshrrev_b32 v5, 4, v0', 'v_lshrrev_b32 v6, 2, v4', 'v_and_b32 v7, 3, v0',
        'v_lshrrev_b32 v3, 5, v0', 'v_and_b32 v2, 1, v5', 'v_lshl_or_b32 v3, v2, 1, v3')

def tr128_addr(a, regs, base, t0, t1):
    a.e(f'v_lshl_add_u32 v{t0}, v5, 3, v6', f'v_lshlrev_b32 v{t0}, 7, v{t0}', f'v_lshl_add_u32 v{t0}, v7, 3, v{t0}',
        f'v_lshrrev_b32 v{t1}, 1, v6', f'v_lshl_or_b32 v{t1}, v2, 1, v{t1}', f'v_lshl_add_u32 v{t0}, v{t1}, 5, v{t0}')
    if base: a.e(f'v_add_u32 v{t0}, {base}, v{t0}')
    for n, r in enumerate(regs): a.e(f'v_xor_b32 v{r}, {n << 5}, v{t0}')

def swz128(a):
    return lambda d, row, t: a.e(f'v_bfe_u32 v{d}, v{row}, 1, 1', f'v_bfe_u32 v{t}, v{row}, 3, 1', f'v_lshl_or_b32 v{d}, v{t}, 1, v{d}', f'v_lshlrev_b32 v{d}, 1, v{d}')

def unpack4(lo, hi, dst):
    return [f'v_lshlrev_b32 v{dst}, 16, v{lo}', f'v_and_b32 v{dst+1}, 0xffff0000, v{lo}', f'v_lshlrev_b32 v{dst+2}, 16, v{hi}', f'v_and_b32 v{dst+3}, 0xffff0000, v{hi}']

def bf16r(a, v):
    a.e(f'v_cvt_pk_bf16_f32 v{v}, v{v}, v{v}', f'v_lshlrev_b32 v{v}, 16, v{v}')

def dma_w128(a, vregs, pitch, swz_bits, rows_per_wave, t0, t1, t2):
    for i, v in enumerate(vregs):
        a.e(f's_mul_i32 s{S_T0}, s{S_T2}, {rows_per_wave}', f's_add_u32 s{S_T0}, s{S_T0}, {8*i}',
            f'v_lshrrev_b32 v{t0}, 3, v0', f'v_add_u32 v{t0}, s{S_T0}, v{t0}')
        swz_bits(t1, t0, t2)
        a.e(f'v_and_b32 v{t2}, 7, v0', f'v_xor_b32 v{t1}, v{t1}, v{t2}', f'v_lshlrev_b32 v{t1}, 4, v{t1}',
            f's_mov_b32 s{S_T0}, {pitch}', f'v_mul_lo_u32 v{t0}, v{t0}, s{S_T0}', f'v_add_u32 v{v}, v{t0}, v{t1}')
        if i: a.e(f'v_subrev_u32 v{v}, {1024*i}, v{v}')

def stats_finish(a, S, Q, T, double):
    a.e(f'v_mul_f32 v{S}, {f32(1/1024)}, v{S}', f'v_mul_f32 v{Q}, {f32(1/1024)}, v{Q}',
        f'v_fma_f32 v{Q}, -v{S}, v{S}, v{Q}', f'v_max_f32 v{Q}, 0, v{Q}', f'v_mov_b32 v{T}, v{Q}')
    bf16r(a, T)
    a.e(f'v_add_f32 v{T}, {f32(EPS)}, v{T}'); bf16r(a, T)
    a.e(f'v_sqrt_f32 v{T}, v{T}'); bf16r(a, T)
    a.e(f'v_rcp_f32 v{T}, v{T}')
    if not double:
        bf16r(a, S)
        a.e(f'v_mov_b32 v{Q}, v{T}')
    else:
        a.e(f'v_mul_f32 v{Q}, v{Q}, v{T}', f'v_mul_f32 v{Q}, v{Q}, v{T}')
        bf16r(a, Q)
        a.e(f'v_add_f32 v{Q}, {f32(EPS)}, v{Q}'); bf16r(a, Q)
        a.e(f'v_sqrt_f32 v{Q}, v{Q}'); bf16r(a, Q)
        a.e(f'v_rcp_f32 v{Q}, v{Q}', f'v_mul_f32 v{Q}, v{Q}, v{T}')

DIRECT = env('DIRECT', '1') == '1'
DD = int(env('DD', '4'))
def loader24(a, kn, NK, NS, aoff, abytes, ptr, pitch, wbytes):
    a.e(f'{kn}_loader:'); a.flush_hist()
    a.e(f's_sub_u32 s{S_T2}, s{S_WAVE}, 4', f's_lshl_b32 s{S_G0}, s{S_T2}, 12', f's_lshl_b32 s{S_G0+1}, s{S_T2}, 11', f's_add_u32 s{S_G0+1}, s{S_G0+1}, 16384',
        'v_lshlrev_b32 v8, 4, v0', f's_lshl_b32 s{S_BA}, s{S_TI}, 2', f's_add_u32 s{S_BA}, s{S_BA}, s{S_T2}', f's_mul_i32 s{S_BA}, s{S_BA}, {NK*4096}')
    dma_w128(a, [9, 10], pitch, swz128(a), 16, 2, 3, 4)
    a.e(f's_lshl_b32 s{S_BB}, s{S_TJ}, 7', 's_waitcnt lgkmcnt(0)')
    srd(a, SRD_A, P_WS, aoff, abytes)
    srd(a, SRD_B, ptr, 0, wbytes)
    groups = [dict(sg=S_G0, dmas=[(8, 1024 * i, 'A', None) for i in range(4)]),
              dict(sg=S_G0 + 1, dmas=[(9, 0, 'B', None), (10, 1024, 'B', None)])]
    if DIRECT:
        a.e(f's_sub_u32 s{S_G0+1}, s{S_G0+1}, 16384')
        loader_main(a, kn, NK, NS, 8192, 0, 64 * pitch, groups[1:], late=True)
    else:
        loader_main(a, kn, NK, NS, 24576, 4096, 64 * pitch, groups, late=True)

def reads24(regs, va):
    R = []
    for h in range(2):
        F = 16 + 24 * h
        w = [[f'ds_read_b64_tr_b16 {vr(F+4*n+2*q,2)}, v{regs[n]} offset:{h*4096+q*512}' for q in range(2)] for n in range(4)]
        d = [f'ds_read_b128 {vr(F+16+4*i,4)}, v{va} offset:{(2*h+i)*1024}' for i in range(2)]
        R.append(w[0] + w[1] + w[2] + w[3] if DIRECT else [d[0]] + w[0] + [d[1]] + w[1] + w[2] + w[3])
    return R

def gen_k4(a):
    kn = 'k4'; NK, NS, stage = 56, int(env('NS4', '6')), (8192 if DIRECT else 24576)
    entry(a, kn, True)
    prologue(a, kn, 256, 8, 2)
    lane_fields(a)
    ACC = 64; RES = 96
    def acc(aa, n): return ACC + 8 * n + 4 * aa
    a.e(f's_lshl_b32 s{S_T0}, s{S_TJ}, 6', f'v_add_u32 v13, s{S_T0}, v4', 'v_lshlrev_b32 v12, 11, v13', 'v_lshl_add_u32 v12, v5, 4, v12',
        f's_lshl_b32 s{S_T0}, s{S_TI}, 8', f's_lshl_b32 s{S_T1}, s{S_WAVE}, 6', f's_add_u32 s{S_T0}, s{S_T0}, s{S_T1}',
        f'v_add_u32 v12, s{S_T0}, v12', 'v_lshlrev_b32 v13, 1, v13', 'v_lshlrev_b32 v14, 4, v0',
        *([f's_lshl_b32 s{S_BA}, s{S_TI}, 2', f's_add_u32 s{S_BA}, s{S_BA}, s{S_WAVE}', f's_mul_i32 s{S_BA}, s{S_BA}, {NK*4096}'] if DIRECT else
          [f's_lshl_b32 s{S_T0}, s{S_WAVE}, 12', f'v_add_u32 v14, s{S_T0}, v14']),
        's_mov_b32 s45, 32768', 's_mov_b32 s46, 65536', 's_mov_b32 s47, 98304')
    so = ['0', 's45', 's46', 's47']
    a.e('s_waitcnt lgkmcnt(0)')
    srd(a, SRD_C, P_WS, X1_OFF, XB)
    srd(a, SRD_D, P_B2, 0, 4096)
    for n in range(4):
        a.e(f'buffer_load_dwordx4 {vr(RES+4*n,4)}, v12, {S4(SRD_C)}, {so[n]} offen')
        a.e(f'buffer_load_ushort v{RES+16+2*n}, v13, {S4(SRD_D)}, 0 offen offset:{32*n}')
    srd_sel(a, SRD_E, P_WS, X2_OFF, P_OUT, 0, XB)
    srd(a, SRD_B, P_WS, RS_OFF, 8 * 2048 * 8)
    tr128_addr(a, [8, 9, 10, 11], stage - 8192, 16, 17)
    def init(outstanding):
        a.e(f's_waitcnt vmcnt({outstanding})')
        for n in range(4):
            a.e(f'v_lshlrev_b32 v{RES+16+2*n}, 16, v{RES+16+2*n}')
            a.e(*unpack4(RES + 4 * n, RES + 4 * n + 1, acc(0, n)), *unpack4(RES + 4 * n + 2, RES + 4 * n + 3, acc(1, n)))
            for e in range(0, 8, 2):
                a.e(f'v_pk_add_f32 {vr(acc(0,n)+e,2)}, {vr(acc(0,n)+e,2)}, {vr(RES+16+2*n,2)} op_sel_hi:[1,0]')
    mf = lambda h, b: [f'{MF16} {vr(acc(aa,n),4)}, {vr(b+4*aa,4)}, {vr(16+24*h+4*n,4)}, {vr(acc(aa,n),4)}' for n in range(4) for aa in range(2)]
    if DIRECT:
        srd(a, SRD_A, P_WS, U_OFF, UB)
        consumer_direct(a, kn, NK, NS, stage, reads24([8, 9, 10, 11], 14), mf, [8, 9, 10, 11], 120, DD, 14, init)
    else:
        init(0)
        consumer_main(a, kn, NK, NS, stage, reads24([8, 9, 10, 11], 14), [mf(0, 32), mf(1, 56)], [8, 9, 10, 11, 14], rper=2, late=True)
    for n in range(4):
        for e in range(4):
            a.e(f'v_cvt_pk_bf16_f32 v{RES+4*n+e}, v{acc(0,n)+2*e}, v{acc(0,n)+2*e+1}')
        a.e(f'buffer_store_dwordx4 {vr(RES+4*n,4)}, v12, {S4(SRD_E)}, {so[n]} offen')
    PL = NS * stage
    a.e(f's_cmp_lg_u32 s{S_VAR}, 0', f's_cbranch_scc1 {kn}_nost')
    for n in range(4):
        a.e(*unpack4(RES + 4 * n, RES + 4 * n + 1, acc(0, n)), *unpack4(RES + 4 * n + 2, RES + 4 * n + 3, acc(1, n)))
    for n in range(4):
        d = acc(0, n); T = 16 + 4 * n
        a.e(f'v_pk_add_f32 {vr(T,2)}, {vr(d,2)}, {vr(d+2,2)}', f'v_pk_mul_f32 {vr(T+2,2)}, {vr(d,2)}, {vr(d,2)}',
            f'v_pk_fma_f32 {vr(T+2,2)}, {vr(d+2,2)}, {vr(d+2,2)}, {vr(T+2,2)}')
        for e in (4, 6):
            a.e(f'v_pk_add_f32 {vr(T,2)}, {vr(T,2)}, {vr(d+e,2)}', f'v_pk_fma_f32 {vr(T+2,2)}, {vr(d+e,2)}, {vr(d+e,2)}, {vr(T+2,2)}')
        a.e(f'v_add_f32 v{32+n}, v{T}, v{T+1}', f'v_add_f32 v{36+n}, v{T+2}, v{T+3}')
    for b in (32, 36):
        a.e(f'v_permlane16_swap_b32 v{b}, v{b+1}', f'v_permlane16_swap_b32 v{b+2}, v{b+3}')
    for b in (32, 36):
        a.e(f'v_add_f32 v{b}, v{b}, v{b+1}', f'v_add_f32 v{b+2}, v{b+2}, v{b+3}')
    a.e('v_permlane32_swap_b32 v32, v34', 'v_permlane32_swap_b32 v36, v38', 'v_add_f32 v40, v32, v34', 'v_add_f32 v41, v36, v38',
        'v_lshlrev_b32 v42, 3, v0', f's_lshl_b32 s{S_T0}, s{S_WAVE}, 9', f's_add_u32 s{S_T0}, s{S_T0}, {PL}', f'v_add_u32 v43, s{S_T0}, v42',
        'ds_write_b64 v43, v[40:41]', 's_waitcnt lgkmcnt(0)', 's_barrier', f's_cmp_lg_u32 s{S_WAVE}, 0', f's_cbranch_scc1 {kn}_nost',
        f'v_add_u32 v43, {PL}, v42', 'ds_read_b64 v[44:45], v43 offset:512', 'ds_read_b64 v[46:47], v43 offset:1024', 'ds_read_b64 v[48:49], v43 offset:1536',
        f's_lshl_b32 s{S_T0}, s{S_TI}, 14', f's_lshl_b32 s{S_T1}, s{S_TJ}, 9', f's_add_u32 s{S_T0}, s{S_T0}, s{S_T1}', 's_waitcnt lgkmcnt(0)',
        'v_pk_add_f32 v[40:41], v[40:41], v[44:45]', 'v_pk_add_f32 v[46:47], v[46:47], v[48:49]', 'v_pk_add_f32 v[40:41], v[40:41], v[46:47]',
        f'buffer_store_dwordx2 v[40:41], v42, {S4(SRD_B)}, s{S_T0} offen', f'{kn}_nost:')
    stamp_dump(a, 3)
    a.e('s_endpgm')
    loader24(a, kn, NK, NS, U_OFF, UB, P_W2, 4096, 3584 * 2048 * 2)
    stamp_dump(a, 3)
    a.e(f'{kn}_end:', 's_endpgm')
    return dict(lds=PL + 2048, grid=256, names=['k4a_kernel', 'k4b_kernel'], vgpr=120 + 16 * DD)

def gen_k2(a):
    kn = 'k2'; NK, NS, stage = 16, int(env('NS4', '6')), (8192 if DIRECT else 24576)
    entry(a, kn, True)
    prologue(a, kn, 256, 8, 1)
    lane_fields(a)
    ACC = 64; RES = 96
    def acc(t, b): return ACC + 16 * b + 4 * t
    a.e(f's_lshl_b32 s{S_T0}, s{S_TI}, 2', f's_add_u32 s{S_T0}, s{S_T0}, s{S_WAVE}',
        f's_lshl_b32 s{S_T1}, s{S_T0}, 5',
        'v_lshlrev_b32 v13, 1, v4', f'v_add_u32 v13, s{S_T1}, v13',
        'v_lshlrev_b32 v12, 11, v13', 'v_lshl_add_u32 v12, v3, 4, v12', f's_lshl_b32 s{S_T0}, s{S_TJ}, 7', f'v_add_u32 v12, s{S_T0}, v12',
        'v_lshlrev_b32 v14, 4, v0',
        *([f's_lshl_b32 s{S_BA}, s{S_TI}, 2', f's_add_u32 s{S_BA}, s{S_BA}, s{S_WAVE}', f's_mul_i32 s{S_BA}, s{S_BA}, {NK*4096}'] if DIRECT else
          [f's_lshl_b32 s{S_T0}, s{S_WAVE}, 12', f'v_add_u32 v14, s{S_T0}, v14']))
    a.e('s_waitcnt lgkmcnt(0)')
    srd_sel(a, SRD_C, P_X, 0, P_WS, X2_OFF, XB)
    for b in range(2):
        for P in range(2):
            a.e(f'buffer_load_dwordx4 {vr(RES+8*b+4*P,4)}, v12, {S4(SRD_C)}, 0 offen offset:{b*2048+P*64}')
    srd(a, SRD_D, P_WS, X1_OFF, XB)
    srd(a, SRD_E, P_WS, H_OFF, XB)
    srd(a, SRD_B, P_WS, ST_OFF, 16 * 2048 * 8)
    tr128_addr(a, [8, 9, 10, 11], stage - 8192, 16, 17)
    a.e('v_add_u32 v16, v13, v2', 'v_lshlrev_b32 v16, 3, v16', f's_lshl_b32 s{S_T0}, s{S_TJ}, 14', f'v_add_u32 v112, s{S_T0}, v16',
        'v_lshrrev_b32 v17, 5, v0', 'v_lshlrev_b32 v17, 17, v17', 'v_add_u32 v113, v16, v17')
    a.e(f's_and_b32 s{S_T0}, s{S_WAVE}, 1', f's_lshl_b32 s{S_T0}, s{S_T0}, 5', 'v_lshlrev_b32 v16, 1, v4', f'v_add_u32 v16, s{S_T0}, v16',
        f's_and_b32 s{S_T0}, s{S_TJ}, 1', f's_lshl_b32 s{S_T0}, s{S_T0}, 3', f'v_add_u32 v17, s{S_T0}, v3')
    for b in range(2):
        a.e(f'v_add_u32 v18, {b}, v16', 'v_and_b32 v19, 3, v18', 'v_bfe_u32 v20, v18, 3, 1', 'v_lshl_or_b32 v19, v20, 2, v19', 'v_lshlrev_b32 v19, 1, v19',
            'v_xor_b32 v19, v19, v17', 'v_lshlrev_b32 v19, 4, v19', f'v_lshl_add_u32 v{114+b}, v18, 8, v19', f'v_xor_b32 v{116+b}, 64, v{114+b}')
    a.e(f's_lshr_b32 s{S_T0}, s{S_TJ}, 1', f's_lshl_b32 s{S_T0}, s{S_T0}, 5', f's_lshl_b32 s{S_T1}, s{S_TI}, 1', f's_add_u32 s{S_T0}, s{S_T0}, s{S_T1}',
        f's_lshr_b32 s{S_T1}, s{S_WAVE}, 1', f's_add_u32 s{S_T0}, s{S_T0}, s{S_T1}', f's_lshl_b32 s{S_G0}, s{S_T0}, 14')
    for p in range(1, 8): a.e(f's_mov_b32 s{52+p}, {p*16384}')
    def init(outstanding):
        a.e(f's_waitcnt vmcnt({outstanding})')
        for b in range(2):
            for P in range(2):
                r = RES + 8 * b + 4 * P
                a.e(f'v_permlane16_swap_b32 v{r}, v{r+2}', f'v_permlane16_swap_b32 v{r+1}, v{r+3}')
        for b in range(2):
            for P in range(2):
                r = RES + 8 * b + 4 * P
                a.e(*unpack4(r, r + 1, acc(2 * P, b)), *unpack4(r + 2, r + 3, acc(2 * P + 1, b)))
    mf = lambda h, bb: [f'{MF16} {vr(acc(t,b),4)}, {vr(16+24*h+4*t,4)}, {vr(bb+4*b,4)}, {vr(acc(t,b),4)}' for t in range(4) for b in range(2)]
    if DIRECT:
        srd(a, SRD_A, P_WS, O_OFF, XB)
        consumer_direct(a, kn, NK, NS, stage, reads24([8, 9, 10, 11], 14), mf, [8, 9, 10, 11], 120, DD, 14, init)
    else:
        init(0)
        consumer_main(a, kn, NK, NS, stage, reads24([8, 9, 10, 11], 14), [mf(0, 32), mf(1, 56)], [8, 9, 10, 11, 14], rper=2, late=True)
    for b in range(2):
        for t in range(4):
            r = RES + 8 * b + 2 * t; d = acc(t, b)
            a.e(f'v_cvt_pk_bf16_f32 v{r}, v{d}, v{d+1}', f'v_cvt_pk_bf16_f32 v{r+1}, v{d+2}, v{d+3}')
    for b in range(2):
        for t in range(4):
            r = RES + 8 * b + 2 * t
            a.e(*unpack4(r, r + 1, acc(t, b)))
    for b in range(2):
        d = acc(0, b); T = 16 + 4 * b
        a.e(f'v_pk_add_f32 {vr(T,2)}, {vr(d,2)}, {vr(d+2,2)}', f'v_pk_mul_f32 {vr(T+2,2)}, {vr(d,2)}, {vr(d,2)}',
            f'v_pk_fma_f32 {vr(T+2,2)}, {vr(d+2,2)}, {vr(d+2,2)}, {vr(T+2,2)}')
        for e in range(4, 16, 2):
            a.e(f'v_pk_add_f32 {vr(T,2)}, {vr(T,2)}, {vr(d+e,2)}', f'v_pk_fma_f32 {vr(T+2,2)}, {vr(d+e,2)}, {vr(d+e,2)}, {vr(T+2,2)}')
        a.e(f'v_add_f32 v{24+b}, v{T}, v{T+1}', f'v_add_f32 v{26+b}, v{T+2}, v{T+3}')
    a.e('v_permlane16_swap_b32 v24, v25', 'v_permlane16_swap_b32 v26, v27', 'v_add_f32 v28, v24, v25', 'v_add_f32 v29, v26, v27',
        'v_mov_b32 v30, v28', 'v_mov_b32 v31, v29', 'v_permlane32_swap_b32 v28, v30', 'v_permlane32_swap_b32 v29, v31',
        'v_add_f32 v28, v28, v30', 'v_add_f32 v29, v29, v31', 'v_and_b32 v29, 0x7fffffff, v29',
        's_mov_b32 exec_hi, 0', f'buffer_store_dwordx2 v[28:29], v112, {S4(SRD_B)}, 0 offen sc0 sc1', 's_mov_b64 exec, -1')
    for b in range(2):
        for P in range(2):
            r = RES + 8 * b + 4 * P
            a.e(f'v_permlane16_swap_b32 v{r}, v{r+2}', f'v_permlane16_swap_b32 v{r+1}, v{r+3}')
            a.e(f'buffer_store_dwordx4 {vr(r,4)}, v12, {S4(SRD_D)}, 0 offen offset:{b*2048+P*64}')
    a.e(*stamp(61))
    a.e(f's_mov_b32 s{S_CNT}, 0')
    body = [f'{kn}_poll:']
    for p in range(8):
        body.append(f'buffer_load_dwordx2 {vr(32+2*p,2)}, v113, {S4(SRD_B)}, {"0" if p == 0 else f"s{52+p}"} offen sc0 sc1')
    body += ['s_waitcnt vmcnt(0)', 'v_min3_i32 v48, v33, v35, v37', 'v_min3_i32 v49, v39, v41, v43', 'v_min3_i32 v48, v48, v45, v47',
             'v_min_i32 v48, v48, v49', 'v_cmp_gt_i32 vcc, 0, v48', f's_add_u32 s{S_CNT}, s{S_CNT}, 1', f's_cmp_gt_u32 s{S_CNT}, 200000',
             f's_cbranch_scc1 {kn}_pdone', f's_cbranch_vccz {kn}_pdone', f's_sleep {env("PSLEEP", "4")}', f's_branch {kn}_poll']
    a.loop(body)
    a.e(f'{kn}_pdone:', *stamp(62))
    a.e('v_pk_add_f32 v[32:33], v[32:33], v[34:35]', 'v_pk_add_f32 v[36:37], v[36:37], v[38:39]', 'v_pk_add_f32 v[40:41], v[40:41], v[42:43]',
        'v_pk_add_f32 v[44:45], v[44:45], v[46:47]', 'v_pk_add_f32 v[32:33], v[32:33], v[36:37]', 'v_pk_add_f32 v[40:41], v[40:41], v[44:45]',
        'v_pk_add_f32 v[32:33], v[32:33], v[40:41]', 'v_mov_b32 v34, v32', 'v_mov_b32 v35, v33',
        'v_permlane32_swap_b32 v32, v34', 'v_permlane32_swap_b32 v33, v35', 'v_add_f32 v32, v32, v34', 'v_add_f32 v33, v33, v35')
    stats_finish(a, 32, 33, 36, True)
    a.e('v_mov_b32 v34, v32', 'v_mov_b32 v35, v33', 'v_permlane16_swap_b32 v32, v34', 'v_permlane16_swap_b32 v33, v35')
    for b in range(2):
        st = vr(32 + 2 * b, 2)
        for P in range(2):
            d = acc(2 * P, b); o = 40 + 8 * b + 4 * P
            for e in range(0, 8, 2):
                a.e(f'v_pk_add_f32 {vr(d+e,2)}, {vr(d+e,2)}, {st} op_sel_hi:[1,0] neg_lo:[0,1] neg_hi:[0,1]')
            for e in range(0, 8, 2):
                a.e(f'v_pk_mul_f32 {vr(d+e,2)}, {vr(d+e,2)}, {st} op_sel:[0,1] op_sel_hi:[1,1]')
            for e in range(4):
                a.e(f'v_cvt_pk_bf16_f32 v{o+e}, v{d+2*e}, v{d+2*e+1}')
            a.e(f'v_permlane16_swap_b32 v{o}, v{o+2}', f'v_permlane16_swap_b32 v{o+1}, v{o+3}')
            a.e(f'buffer_store_dwordx4 {vr(o,4)}, v{114+2*P+b}, {S4(SRD_E)}, s{S_G0} offen')
    stamp_dump(a, 1)
    a.e('s_endpgm')
    loader24(a, kn, NK, NS, O_OFF, XB, P_WO, 2048, 1024 * 1024 * 2)
    stamp_dump(a, 1)
    a.e(f'{kn}_end:', 's_endpgm')
    return dict(lds=NS * stage, grid=256, names=['k2a_kernel', 'k2b_kernel'], vgpr=120 + 16 * DD)

def gen_k3(a):
    kn = 'k3'; NK, NS, stage = 32, 5, 32768
    entry(a, kn, False)
    prologue(a, kn, 224, 7, 2)
    lane_fields(a)
    ACC = 80
    def acc(tf, td): return ACC + 16 * td + 4 * tf
    a.e(f's_and_b32 s{S_T1}, s{S_WAVE}, 1', f's_lshr_b32 s{S_T2}, s{S_WAVE}, 1')
    a.e(f's_lshl_b32 s{S_T0}, s{S_TJ}, 8', f's_lshl_b32 s{S_G0}, s{S_T1}, 7', f's_add_u32 s{S_T0}, s{S_T0}, s{S_G0}',
        'v_lshlrev_b32 v16, 3, v5', f'v_add_u32 v16, s{S_T0}, v16')
    a.e('s_waitcnt lgkmcnt(0)')
    srd(a, SRD_C, P_B1, 0, 3584 * 2)
    for tf in range(4):
        a.e(f'buffer_load_dwordx2 {vr(144+2*tf,2)}, v16, {S4(SRD_C)}, 0 offen offset:{32*tf}')
    srd(a, SRD_E, P_WS, U_OFF, UB)
    a.e('v_lshl_add_u32 v17, v5, 3, v6', 'v_lshlrev_b32 v17, 8, v17', 'v_lshl_add_u32 v17, v7, 3, v17',
        'v_lshl_or_b32 v18, v2, 2, v6', 'v_lshl_add_u32 v17, v18, 5, v17',
        f's_lshl_b32 s{S_T0}, s{S_T1}, 7', f's_add_u32 s{S_T0}, s{S_T0}, 16384', f'v_xor_b32 v18, s{S_T0}, v17',
        f's_lshl_b32 s{S_T0}, s{S_T2}, 7', f'v_xor_b32 v19, s{S_T0}, v17')
    for t in range(4):
        a.e(f'v_xor_b32 v{8+t}, {t << 5}, v18', f'v_xor_b32 v{12+t}, {t << 5}, v19')
    a.e('v_bfe_u32 v17, v4, 2, 1', 'v_lshlrev_b32 v17, 10, v17', 'v_lshl_add_u32 v17, v3, 8, v17', 'v_lshrrev_b32 v18, 3, v4', 'v_lshl_add_u32 v17, v18, 6, v17',
        'v_lshl_add_u32 v152, v7, 4, v17',
        f's_lshl_b32 s{S_T0}, s{S_TI}, 1', f's_add_u32 s{S_T0}, s{S_T0}, s{S_T2}', f's_mul_i32 s{S_T0}, s{S_T0}, 224',
        f's_lshl_b32 s{S_G0}, s{S_TJ}, 2', f's_add_u32 s{S_T0}, s{S_T0}, s{S_G0}', f's_lshl_b32 s{S_G0}, s{S_T1}, 1', f's_add_u32 s{S_T0}, s{S_T0}, s{S_G0}',
        f's_lshl_b32 s{S_G0}, s{S_T0}, 11', f's_add_u32 s{S_G0+1}, s{S_G0}, {112*2048}')
    a.e('s_waitcnt vmcnt(0)')
    for tf in range(4):
        a.e(*unpack4(144 + 2 * tf, 145 + 2 * tf, acc(tf, 0)))
        for td in range(1, 4):
            a.e(f'v_pk_mul_f32 {vr(acc(tf,td),2)}, {vr(acc(tf,0),2)}, 1.0 op_sel_hi:[1,0]', f'v_pk_mul_f32 {vr(acc(tf,td)+2,2)}, {vr(acc(tf,0)+2,2)}, 1.0 op_sel_hi:[1,0]')
    reads = [[], []]; mf = [[], []]
    for h in range(2):
        F = 16 + 32 * h
        rd = lambda dst, av: [f'ds_read_b64_tr_b16 {vr(dst,2)}, v{av} offset:{h*8192}', f'ds_read_b64_tr_b16 {vr(dst+2,2)}, v{av} offset:{h*8192+1024}']
        for t in range(4): reads[h] += rd(F + 4 * t, 8 + t) + rd(F + 16 + 4 * t, 12 + t)
        order = sorted([(tf, td) for tf in range(4) for td in range(4)], key=lambda x: (max(x), x))
        for tf, td in order:
            mf[h].append(f'{MF16} {vr(acc(tf,td),4)}, {vr(F+4*tf,4)}, {vr(F+16+4*td,4)}, {vr(acc(tf,td),4)}')
    consumer_main(a, kn, NK, NS, stage, reads, mf, list(range(8, 16)), rper=int(env('RP3', '1')), late=True)
    c1 = -2.0 * 0.7978845608028654 * 1.4426950408889634
    a.e(f'v_mov_b32 v16, {f32(c1)}', f'v_mov_b32 v17, {f32(c1 * 0.044715)}', 'v_add_u32 v153, 128, v152')
    k = 0
    for td in range(4):
        for P in range(2):
            d = acc(2 * P, td); T = 24 + 16 * (k & 1); k += 1
            for e in range(0, 8, 2): a.e(f'v_pk_mul_f32 {vr(T+e,2)}, {vr(d+e,2)}, {vr(d+e,2)}')
            for e in range(0, 8, 2): a.e(f'v_pk_fma_f32 {vr(T+e,2)}, {vr(T+e,2)}, v[16:17], v[16:17] op_sel:[0,1,0] op_sel_hi:[1,1,0]')
            for e in range(0, 8, 2): a.e(f'v_pk_mul_f32 {vr(T+e,2)}, {vr(T+e,2)}, {vr(d+e,2)}')
            for e in range(8): a.e(f'v_exp_f32 v{T+e}, v{T+e}')
            for e in range(0, 8, 2): a.e(f'v_pk_add_f32 {vr(T+e,2)}, {vr(T+e,2)}, 1.0 op_sel_hi:[1,0]')
            for e in range(8): a.e(f'v_rcp_f32 v{T+e}, v{T+e}')
            for e in range(0, 8, 2): a.e(f'v_pk_mul_f32 {vr(T+e,2)}, {vr(T+e,2)}, {vr(d+e,2)}')
            for e in range(4): a.e(f'v_cvt_pk_bf16_f32 v{T+8+e}, v{T+2*e}, v{T+2*e+1}')
            a.e(f'v_permlane16_swap_b32 v{T+8}, v{T+10}', f'v_permlane16_swap_b32 v{T+9}, v{T+11}')
            a.e(f'buffer_store_dwordx4 {vr(T+8,4)}, v{152+(td&1)}, {S4(SRD_E)}, s{S_G0+(td>>1)} offen offset:{2048*P}')
    stamp_dump(a, 2)
    a.e('s_endpgm')
    a.e(f'{kn}_loader:'); a.flush_hist()
    a.e(f's_sub_u32 s{S_T2}, s{S_WAVE}, 4', f's_lshl_b32 s{S_G0}, s{S_T2}, 12', f's_add_u32 s{S_G0+1}, s{S_G0}, 16384',
        'v_lshlrev_b32 v8, 4, v0', f'v_add_u32 v8, s{S_G0}, v8')
    a.e('v_lshrrev_b32 v2, 4, v0', 'v_lshlrev_b32 v3, 1, v2', 'v_and_b32 v4, 15, v0', 'v_xor_b32 v3, v3, v4', 'v_lshlrev_b32 v3, 4, v3',
        f's_lshl_b32 s{S_T0}, s{S_T2}, 4', f'v_add_u32 v2, s{S_T0}, v2', f's_mov_b32 s{S_T0}, 7168', f'v_mul_lo_u32 v2, v2, s{S_T0}',
        'v_add_u32 v9, v2, v3', 'v_xor_b32 v3, 128, v3', 'v_add_u32 v11, v2, v3',
        f'v_add_u32 v10, {4*7168-1024}, v9', f'v_add_u32 v12, {3*(4*7168-1024)}, v11', f'v_add_u32 v11, {2*(4*7168-1024)}, v11',
        f's_mul_i32 s{S_BA}, s{S_TI}, {32*16384}', f's_lshl_b32 s{S_BB}, s{S_TJ}, 8', 's_waitcnt lgkmcnt(0)')
    srd(a, SRD_A, P_WS, H_OFF, XB)
    srd(a, SRD_B, P_W1, 0, 2048 * 3584 * 2)
    groups = [dict(sg=S_G0, dmas=[(8, 1024 * i, 'A', None) for i in range(4)]),
              dict(sg=S_G0 + 1, dmas=[(9 + i, 1024 * i, 'B', None) for i in range(4)])]
    loader_main(a, kn, NK, NS, stage, 16384, 64 * 7168, groups, late=True)
    stamp_dump(a, 2)
    a.e(f'{kn}_end:', 's_endpgm')
    return dict(lds=NS * stage, grid=224, names=['k3_kernel'], vgpr=160)

def gen_k1(a):
    kn = 'k1'; NK, NS = 16, 3
    XT = 18432; stage = XT + 24576
    SL = NS * stage
    QKV = stage
    PITCH = 400; PB = 72 * PITCH
    entry(a, kn, True)
    prologue(a, kn, 256, 8, 1)
    lane_fields(a)
    ACC = 112
    def acc(m, rt): return ACC + 36 * m + 4 * rt
    a.e(f's_lshl_b32 s{S_T0}, s2, 3', f's_lshl_b32 s{S_T1}, s{S_WAVE}, 1', f's_add_u32 s{S_T0}, s{S_T0}, s{S_T1}',
        'v_lshrrev_b32 v16, 5, v0', f'v_add_u32 v16, s{S_T0}, v16', 'v_lshlrev_b32 v17, 11, v16', 'v_and_b32 v18, 31, v0', 'v_lshl_add_u32 v17, v18, 4, v17',
        'v_lshlrev_b32 v16, 3, v16')
    a.e('s_waitcnt lgkmcnt(0)')
    srd(a, SRD_A, P_X, 0, XB)
    a.e(f's_cmp_lg_u32 s{S_VAR}, 0', f's_cbranch_scc1 {kn}_nst0')
    for c in range(4):
        a.e(f'buffer_load_dwordx4 {vr(32+4*c,4)}, v17, {S4(SRD_A)}, 0 offen offset:{512*c}')
    a.e(f'{kn}_nst0:')
    srd(a, SRD_C, P_WS, ST_OFF, 16 * 2048 * 8)
    srd(a, SRD_D, P_WS, RS_OFF, 8 * 2048 * 8)
    tr128_addr(a, [8], XT, 21, 22)
    a.e(f's_lshl_b32 s{S_T0}, s{S_WAVE}, 5', f'v_xor_b32 v8, s{S_T0}, v8')
    a.e('v_lshrrev_b32 v21, 1, v4', 'v_xor_b32 v21, v21, v5', 'v_lshlrev_b32 v21, 4, v21', 'v_lshlrev_b32 v22, 7, v4', 'v_add_u32 v9, v21, v22',
        'v_xor_b32 v10, 64, v9')
    a.e('v_and_b32 v21, 1, v4', f'v_mul_u32_u24 v21, {PB}, v21', 'v_lshrrev_b32 v22, 1, v4', f'v_mul_u32_u24 v22, {PITCH}, v22',
        'v_lshlrev_b32 v23, 3, v5', 'v_add3_u32 v11, v21, v22, v23', f's_add_u32 s{S_T0}, s{S_T0}, {QKV}',
        f'v_add_u32 v11, s{S_T0}, v11', 'v_lshlrev_b32 v12, 3, v4', f'v_add_u32 v12, {SL}, v12')
    for r in range(ACC, ACC + 108, 2):
        a.e(f'v_pk_mul_f32 {vr(r,2)}, 0, 0 op_sel_hi:[0,0]' if False else f'v_mov_b64 {vr(r,2)}, 0')
    a.e('v_mov_b32 v24, -1', 'v_lshlrev_b32 v25, 2, v0', f's_lshl_b32 s{S_T0}, s2, 10', f's_lshl_b32 s{S_T1}, s{S_WAVE}, 8', f's_add_u32 s{S_G0+6}, s{S_T0}, s{S_T1}',
        'v_mov_b32 v220, v24', 'v_mov_b32 v221, v25')
    a.e(f's_lshr_b32 s{S_T0}, s2, 4', f's_lshl_b32 s{S_T0}, s{S_T0}, 4', f'v_mov_b32 v222, s{S_T0}', 'v_mov_b32 v223, 1',
        f's_or_b32 s{S_G0+7}, s{S_VAR}, s{S_WAVE}',
        f's_cmp_lg_u32 s{S_VAR}, 0', f's_cbranch_scc1 {kn}_nst1', 'v_mov_b32 v28, 0', 'v_mov_b32 v29, 0', 'v_mov_b32 v27, 0x3f803f80')
    for c in range(4):
        a.e(f's_waitcnt vmcnt({3-c})')
        for e in range(4):
            a.e(f'v_dot2c_f32_bf16 v28, v27, v{32+4*c+e}', f'v_dot2c_f32_bf16 v29, v{32+4*c+e}, v{32+4*c+e}')
    for ctl in ('quad_perm:[1,0,3,2]', 'quad_perm:[2,3,0,1]', 'row_half_mirror', 'row_mirror'):
        a.e(f'v_add_f32_dpp v28, v28, v28 {ctl} row_mask:0xf bank_mask:0xf', f'v_add_f32_dpp v29, v29, v29 {ctl} row_mask:0xf bank_mask:0xf')
    a.e('v_mov_b32 v30, v28', 'v_mov_b32 v31, v29', 'v_permlane16_swap_b32 v28, v30', 'v_permlane16_swap_b32 v29, v31', 'v_add_f32 v28, v28, v30', 'v_add_f32 v29, v29, v31',
        's_mov_b32 exec_lo, 1', 's_mov_b32 exec_hi, 1', f'buffer_store_dwordx2 v[28:29], v16, {S4(SRD_D)}, 0 offen sc0 sc1', 's_mov_b64 exec, -1', f'{kn}_nst1:', 's_nop 1')
    peel = (['s_waitcnt vmcnt(0)'],
            [f's_cmp_lg_u32 s{S_G0+7}, 0', f's_cbranch_scc1 {kn}_nat', 's_mov_b64 exec, 1', f'global_atomic_add v222, v223, s[{P_DBG}:{P_DBG+1}] sc1', 's_mov_b64 exec, -1', f'{kn}_nat:'])
    reads = [[], []]; mf = [[], []]
    for h in range(2):
        F = 16 + 48 * h
        ra = [[f'ds_read_b64_tr_b16 {vr(F+4*m,2)}, v8 offset:{m*8192+h*4096}', f'ds_read_b64_tr_b16 {vr(F+4*m+2,2)}, v8 offset:{m*8192+h*4096+512}'] for m in range(3)]
        rb = [f'ds_read_b128 {vr(F+12+4*rt,4)}, v{9+h} offset:{rt*2048}' for rt in range(9)]
        reads[h] = ra[0] + [rb[0]] + ra[1] + ra[2] + rb[1:]
        for rt in range(9):
            for m in range(3):
                mf[h].append(f'{MF16} {vr(acc(m,rt),4)}, {vr(F+4*m,4)}, {vr(F+12+4*rt,4)}, {vr(acc(m,rt),4)}')
    consumer_main(a, kn, NK, NS, stage, reads, mf, [8, 9, 10], rper=1, peel=peel)
    a.e(f'buffer_store_dword v220, v221, {S4(SRD_C)}, s{S_G0+6} offen sc0 sc1')
    a.e('s_barrier', *stamp(61))
    for rt in range(9):
        a.e(f'ds_read_b64 {vr(32+2*rt,2)}, v12 offset:{rt*128}')
    for m in range(3):
        for r in range(4):
            a.e(f'v_mov_b32_dpp v{16+4*m+r}, v{acc(m,0)+r} row_newbcast:0 row_mask:0xf bank_mask:0xf')
    a.e('s_waitcnt lgkmcnt(0)')
    k = 0
    for rt in range(9):
        ms = [m for m in range(3) if not (m == 0 and rt == 0)]
        st = vr(32 + 2 * rt, 2)
        for m in ms:
            for e in (0, 2):
                a.e(f'v_pk_fma_f32 {vr(acc(m,rt)+e,2)}, {vr(16+4*m+e,2)}, {st}, {vr(acc(m,rt)+e,2)} op_sel_hi:[1,0,1] neg_lo:[0,1,0] neg_hi:[0,1,0]')
        for m in ms:
            for e in (0, 2):
                a.e(f'v_pk_mul_f32 {vr(acc(m,rt)+e,2)}, {vr(acc(m,rt)+e,2)}, {st} op_sel:[0,1] op_sel_hi:[1,1]')
        for m in ms:
            d = acc(m, rt); o = 52 + 2 * (k & 7); k += 1
            a.e(f'v_cvt_pk_bf16_f32 v{o}, v{d}, v{d+1}', f'v_cvt_pk_bf16_f32 v{o+1}, v{d+2}, v{d+3}',
                f'ds_write_b64 v11, {vr(o,2)} offset:{rt*8*PITCH+m*128}')
    a.e(f's_branch {kn}_attn')
    a.e(f'{kn}_loader:'); a.flush_hist()
    a.e(f's_sub_u32 s{S_T2}, s{S_WAVE}, 4')
    def xaddr(v, rowbase_s, comp):
        a.e('v_lshrrev_b32 v2, 3, v0', f'v_add_u32 v2, s{rowbase_s}, v2',
            'v_bfe_u32 v3, v2, 1, 3', 'v_and_b32 v4, 7, v0', 'v_xor_b32 v3, v3, v4', 'v_lshlrev_b32 v3, 4, v3',
            f'v_add_u32 v2, s{S_T1}, v2', 'v_max_i32 v2, 0, v2', 'v_lshlrev_b32 v2, 11, v2', f'v_add_u32 v{v}, v2, v3')
        if comp: a.e(f'v_subrev_u32 v{v}, {comp}, v{v}')
    a.e(f's_lshl_b32 s{S_T1}, s{S_TI}, 7', f's_sub_u32 s{S_T1}, s{S_T1}, 16')
    for i in range(2):
        a.e(f's_lshl_b32 s{S_T0}, s{S_T2}, 5', f's_add_u32 s{S_T0}, s{S_T0}, {16+8*i}')
        xaddr(8 + i, S_T0, 1024 * i)
        a.e(f'v_add_u32 v{10+i}, {16*2048-2048}, v{8+i}')
    a.e(f's_lshl_b32 s{S_T0}, s{S_T2}, 3'); xaddr(12, S_T0, 0)
    dma_w128(a, [13, 14], 6144, swz128(a), 16, 2, 3, 4)
    a.e('v_add_u32 v15, 2048, v13', 'v_add_u32 v16, 2048, v14', 'v_add_u32 v17, 4096, v13', 'v_add_u32 v18, 4096, v14')
    a.e(f's_lshl_b32 s{S_G0}, s{S_T2}, 12', f's_add_u32 s{S_G0}, s{S_G0}, 2048', f's_lshl_b32 s{S_G0+1}, s{S_T2}, 10',
        f's_lshl_b32 s{S_G0+2}, s{S_T2}, 11', f's_add_u32 s{S_G0+2}, s{S_G0+2}, {XT}', f's_add_u32 s{S_G0+3}, s{S_G0+2}, 8192', f's_add_u32 s{S_G0+4}, s{S_G0+2}, 16384',
        f's_mov_b32 s{S_BA}, 0', f's_lshl_b32 s{S_BB}, s{S_TJ}, 7',
        f's_cmp_eq_u32 s{S_T2}, 0', 's_cselect_b32 s52, 0xffffff00, -1', 's_mov_b32 s53, -1')
    a.e('v_mov_b32 v20, 0x3f803f80', 'v_mov_b32 v21, v20', 'v_mov_b32 v22, v20', 'v_mov_b32 v23, v20', 'v_lshlrev_b32 v24, 4, v0', f'v_add_u32 v25, {2*stage}, v24',
        's_mov_b64 exec, 0xff', 'ds_write_b128 v24, v[20:23]', f'ds_write_b128 v24, v[20:23] offset:{stage}', 'ds_write_b128 v25, v[20:23]', 's_mov_b64 exec, -1')
    a.e('s_waitcnt lgkmcnt(0)')
    srd_sel(a, SRD_A, P_X, 0, P_WS, X2_OFF, XB)
    srd(a, SRD_B, P_WQKV, 0, 1024 * 3072 * 2)
    srd(a, SRD_D, P_WS, RS_OFF, 8 * 2048 * 8)
    a.e(f's_lshl_b32 s{S_T0}, s{S_T2}, 6', f'v_add_u32 v26, s{S_T0}, v0', 'v_min_u32 v26, 143, v26', f'v_add_u32 v27, s{S_T1}, v26', 'v_max_i32 v27, 0, v27',
        'v_lshlrev_b32 v27, 3, v27', 'v_lshlrev_b32 v26, 3, v26', f'v_add_u32 v26, {SL}, v26',
        'v_and_b32 v28, 1, v0', f's_sub_u32 s{S_T0}, s{S_TI}, 1', f'v_add_u32 v28, s{S_T0}, v28', 'v_max_i32 v28, 0, v28', 'v_lshlrev_b32 v28, 4, v28')
    for p in range(1, 8): a.e(f's_mov_b32 s{54+p}, {p*16384}')
    gx = dict(sg=S_G0, dmas=[(8 + i, 1024 * i, 'A', None) for i in range(4)])
    gw = [dict(sg=S_G0 + 2 + m, dmas=[(13 + 2 * m, 0, 'B', None), (14 + 2 * m, 1024, 'B', None)]) for m in range(3)]
    gh = dict(sg=S_G0 + 1, dmas=[(12, 0, 'A', 's[52:53]')])
    a.e(f's_cmp_ge_u32 s{S_T2}, 2', f's_cbranch_scc1 {kn}_ldB')
    loader_main(a, kn, NK, NS, stage, 128, 64 * 6144, [gh, gx] + gw, tag='A', tail=1)
    a.e(f's_branch {kn}_ldone', f'{kn}_ldB:'); a.flush_hist()
    loader_main(a, kn, NK, NS, stage, 128, 64 * 6144, [gx] + gw, tag='B', tail=1)
    a.e(f'{kn}_ldone:'); a.flush_hist()
    a.e(f's_cmp_lg_u32 s{S_VAR}, 0', f's_cbranch_scc1 {kn}_fetb', f's_mov_b32 s{S_CNT}, 0')
    a.loop([f'{kn}_poll:', f'global_load_dword v29, v28, s[{P_DBG}:{P_DBG+1}] sc0 sc1', 's_waitcnt vmcnt(0)', 'v_cmp_gt_u32 vcc, 16, v29',
            f's_add_u32 s{S_CNT}, s{S_CNT}, 1', f's_cmp_gt_u32 s{S_CNT}, 200000', f's_cbranch_scc1 {kn}_pdone', f's_cbranch_vccz {kn}_pdone', 's_sleep 4', f's_branch {kn}_poll'])
    a.e(f'{kn}_pdone:', f'buffer_load_dwordx2 v[30:31], v27, {S4(SRD_D)}, 0 offen sc0 sc1', 's_barrier', *stamp(), 's_waitcnt vmcnt(0)', f's_branch {kn}_fin', f'{kn}_fetb:')
    for p in range(8):
        a.e(f'buffer_load_dwordx2 {vr(30+2*p,2)}, v27, {S4(SRD_D)}, {"0" if p == 0 else f"s{54+p}"} offen')
    a.e('s_waitcnt vmcnt(8)', 's_barrier', *stamp(), 's_waitcnt vmcnt(0)')
    a.e('v_pk_add_f32 v[30:31], v[30:31], v[32:33]', 'v_pk_add_f32 v[34:35], v[34:35], v[36:37]', 'v_pk_add_f32 v[38:39], v[38:39], v[40:41]',
        'v_pk_add_f32 v[42:43], v[42:43], v[44:45]', 'v_pk_add_f32 v[30:31], v[30:31], v[34:35]', 'v_pk_add_f32 v[38:39], v[38:39], v[42:43]',
        'v_pk_add_f32 v[30:31], v[30:31], v[38:39]', f'{kn}_fin:', 's_nop 1')
    stats_finish(a, 30, 31, 32, False)
    a.e('ds_write_b64 v26, v[30:31]')
    lane_fields(a)
    a.e('s_waitcnt lgkmcnt(0)', 's_barrier')
    a.e(f'{kn}_attn:'); a.flush_hist()
    srd(a, SRD_D, P_WS, O_OFF, XB)
    a.e(f's_lshr_b32 s{S_T1}, s{S_WAVE}, 1', f's_and_b32 s{S_T2}, s{S_WAVE}, 1',
        f's_mul_i32 s{S_T0}, s{S_T2}, {PB}', f's_add_u32 s{S_T0}, s{S_T0}, {QKV}', f's_lshl_b32 s{S_G0}, s{S_T1}, 4')
    a.e(f'v_add_u32 v16, s{S_G0}, v4', 'v_lshlrev_b32 v17, 4, v5', f'v_add_u32 v17, s{S_T0}, v17',
        f'v_mul_u32_u24 v18, {PITCH}, v16', 'v_add_u32 v8, v18, v17', f'v_add_u32 v10, {8*PITCH}, v8', 'v_add_u32 v8, 128, v8',
        'v_add_u32 v16, 16, v16', 'v_min_u32 v16, 71, v16', f'v_mul_u32_u24 v18, {PITCH}, v16', 'v_add3_u32 v9, v18, v17, 64', 'v_add_u32 v9, 64, v9')
    a.e('v_lshl_add_u32 v16, v5, 2, v6', f'v_add_u32 v16, s{S_G0}, v16', 'v_lshlrev_b32 v17, 4, v7', f'v_add_u32 v17, s{S_T0}, v17', 'v_add_u32 v17, 256, v17',
        f'v_mul_u32_u24 v18, {PITCH}, v16', 'v_add_u32 v14, v18, v17',
        'v_add_u32 v16, 16, v16', 'v_min_u32 v16, 71, v16', f'v_mul_u32_u24 v18, {PITCH}, v16', 'v_add_u32 v15, v18, v17')
    a.e('v_lshlrev_b32 v13, 4, v0', f's_lshl_b32 s{S_G0+2}, s{S_TI}, 2', f's_add_u32 s{S_G0+2}, s{S_G0+2}, s{S_T1}', f's_lshl_b32 s{S_G0+2}, s{S_G0+2}, 16',
        f's_lshl_b32 s{S_G0+1}, s{S_TJ}, 12', f's_add_u32 s{S_G0+2}, s{S_G0+2}, s{S_G0+1}', f's_lshl_b32 s{S_G0+1}, s{S_T2}, 10', f's_add_u32 s{S_G0+2}, s{S_G0+2}, s{S_G0+1}')
    a.e('v_lshlrev_b32 v16, 2, v5', 'v_sub_u32 v16, v16, v4', f's_or_b32 s{S_G0+3}, s{S_TI}, s{S_T1}', f's_cmp_eq_u32 s{S_G0+3}, 0',
        f's_cselect_b32 s{S_G0+4}, 0, -1')
    for k in range(8):
        i0 = 16 * (k >> 2) + (k & 3) - 1
        a.e(f'v_add_u32 v17, {i0}, v16', f'v_cmp_gt_u32 s[{52+2*k}:{53+2*k}], 8, v17')
    for k in range(4):
        a.e(f's_and_b32 s{52+2*k}, s{52+2*k}, s{S_G0+4}')
    cs = (32 ** -0.5) * 1.4426950408889634
    a.e(f'v_mov_b32 v6, {f32(cs)}', 'v_mov_b32 v7, 0xff800000')
    a.e('s_waitcnt lgkmcnt(0)', 's_barrier', *stamp(62))
    B = [32, 80]
    for hd in range(2):
        b = B[hd]; o = 64 * hd
        a.e(f'ds_read_b128 {vr(b,4)}, v10 offset:{o}', f'ds_read_b128 {vr(b+4,4)}, v8 offset:{o}', f'ds_read_b128 {vr(b+8,4)}, v9 offset:{o}')
    for hd in range(2):
        b = B[hd]; o = 64 * hd
        for dt in range(2):
            a.e(f'ds_read_b64_tr_b16 {vr(b+12+4*dt,2)}, v14 offset:{o+8*dt}', f'ds_read_b64_tr_b16 {vr(b+14+4*dt,2)}, v15 offset:{o+8*dt}')
    for hd in range(2):
        b = B[hd]
        a.e(f's_waitcnt lgkmcnt({11 - 3*hd})')
        a.e(f'{MF16} {vr(b+20,4)}, {vr(b+4,4)}, {vr(b,4)}, 0', f'{MF16} {vr(b+24,4)}, {vr(b+8,4)}, {vr(b,4)}, 0')
    def both(f):
        L = [f(B[0]), f(B[1])]
        for x, y in zip(*L): a.e(x, y)
    both(lambda b: [f'v_cndmask_b32 v{b+20+k}, v7, v{b+20+k}, s[{52+2*k}:{53+2*k}]' for k in range(8)])
    both(lambda b: [f'v_max3_f32 v{b+28}, v{b+20}, v{b+21}, v{b+22}', f'v_max3_f32 v{b+29}, v{b+23}, v{b+24}, v{b+25}',
                    f'v_max3_f32 v{b+28}, v{b+28}, v{b+26}, v{b+27}', f'v_max_f32 v{b+28}, v{b+28}, v{b+29}', f'v_mov_b32 v{b+29}, v{b+28}',
                    f'v_permlane16_swap_b32 v{b+28}, v{b+29}', f'v_max_f32 v{b+28}, v{b+28}, v{b+29}', f'v_mov_b32 v{b+29}, v{b+28}',
                    f'v_permlane32_swap_b32 v{b+28}, v{b+29}', f'v_max_f32 v{b+28}, v{b+28}, v{b+29}', f'v_mul_f32 v{b+28}, v6, v{b+28}'])
    both(lambda b: [f'v_fma_f32 v{b+20+k}, v{b+20+k}, v6, -v{b+28}' for k in range(8)])
    both(lambda b: [f'v_exp_f32 v{b+20+k}, v{b+20+k}' for k in range(8)])
    both(lambda b: [f'v_pk_add_f32 {vr(b+28,2)}, {vr(b+20,2)}, {vr(b+22,2)}', f'v_pk_add_f32 {vr(b+30,2)}, {vr(b+24,2)}, {vr(b+26,2)}',
                    f'v_pk_add_f32 {vr(b+28,2)}, {vr(b+28,2)}, {vr(b+30,2)}', f'v_add_f32 v{b+28}, v{b+28}, v{b+29}', f'v_mov_b32 v{b+29}, v{b+28}',
                    f'v_permlane16_swap_b32 v{b+28}, v{b+29}', f'v_add_f32 v{b+28}, v{b+28}, v{b+29}', f'v_mov_b32 v{b+29}, v{b+28}',
                    f'v_permlane32_swap_b32 v{b+28}, v{b+29}', f'v_add_f32 v{b+28}, v{b+28}, v{b+29}', f'v_rcp_f32 v{b+28}, v{b+28}'])
    both(lambda b: [f'v_pk_mul_f32 {vr(b+20+e,2)}, {vr(b+20+e,2)}, {vr(b+28,2)} op_sel_hi:[1,0]' for e in range(0, 8, 2)])
    both(lambda b: [f'v_cvt_pk_bf16_f32 v{b+32+e}, v{b+20+2*e}, v{b+21+2*e}' for e in range(4)])
    a.e('s_waitcnt lgkmcnt(0)')
    both(lambda b: [f'{MF16} {vr(b+36+4*dt,4)}, {vr(b+12+4*dt,4)}, {vr(b+32,4)}, 0' for dt in range(2)])
    both(lambda b: [f'v_cvt_pk_bf16_f32 v{b+e}, v{b+36+2*e}, v{b+37+2*e}' for e in range(4)])
    for hd in range(2):
        a.e(f'buffer_store_dwordx4 {vr(B[hd],4)}, v13, {S4(SRD_D)}, s{S_G0+2} offen offset:{2048*hd}')
    stamp_dump(a, 0)
    a.e(f'{kn}_end:', 's_endpgm')
    return dict(lds=SL + 1152, grid=256, names=['k1a_kernel', 'k1b_kernel'], vgpr=224)

def main(out):
    a = Asm()
    info = {}
    for g in (gen_k1, gen_k2, gen_k3, gen_k4):
        m = g(a)
        for n in m['names']: info[n] = m
        a.flush_hist()
    order = ['k1a_kernel', 'k2a_kernel', 'k3_kernel', 'k4a_kernel', 'k1b_kernel', 'k2b_kernel', 'k3_kernel', 'k4b_kernel']
    ref = open(os.path.join(os.path.dirname(os.path.abspath(__file__)), '..', NAME + '.s.ref')).read().splitlines()
    hdr = [l for l in ref if l.startswith(';') and '@launch' not in l and 'Override launch' not in l and 'grid=ceil' not in l]
    hdr += [f'; @launch kernel={n} grid=({info[n]["grid"]},1,1) block=(512,1,1) lds={info[n]["lds"]}' for n in order]
    s = '\n'.join(hdr) + '\n; generated by gen/gen.py\n.amdgcn_target "amdgcn-amd-amdhsa--gfx950"\n.text\n' + a.text()
    s += '.section .rodata,"a"\n'
    for n, m in info.items():
        s += f'''.p2align 6
.amdhsa_kernel {n}
  .amdhsa_next_free_vgpr {256 if PROF else m["vgpr"]}
  .amdhsa_next_free_sgpr 96
  .amdhsa_accum_offset {256 if PROF else m["vgpr"]}
  .amdhsa_group_segment_fixed_size 0
  .amdhsa_kernarg_size 88
  .amdhsa_user_sgpr_count 2
  .amdhsa_user_sgpr_kernarg_segment_ptr 1
  .amdhsa_system_sgpr_workgroup_id_x 1
.end_amdhsa_kernel
'''
    open(out, 'w').write(s)

if __name__ == '__main__':
    main(sys.argv[1] if len(sys.argv) > 1 else os.path.join(os.path.dirname(os.path.abspath(__file__)), '..', NAME + '.s'))
```

```python
import sys, os, struct
sys.path.insert(0, os.path.dirname(os.path.abspath(__file__)))
from asmlib import *
import gen as G
from gen import (NAME, MB, XB, UB, f32, env, S4, srd, next_k, adv_s, sched, bundle, spread, lane_fields, tr128_addr, swz128, unpack4,
                 dma_w128, stats_finish, MF16, S_VAR, S_WAVE, S_LI, S_LJ, S_PHI, SRD_A, SRD_B, SRD_C, SRD_D, SRD_E, S_TI, S_TJ,
                 S_P, S_W, S_T0, S_K, S_BA, S_BB, S_OA, S_OB, S_LW, S_CNT, S_T1, S_T2, S_DELTA, S_CUR, S_G0,
                 P_X, P_WQKV, P_WO, P_W1, P_B1, P_W2, P_B2, P_OUT, P_WS)

LSTR = 32 * MB
O_OFF, X1_OFF, H_OFF, U_OFF, ST_OFF, RS_OFF = 0, 4 * MB, 8 * MB, 12 * MB, 20 * MB, 21 * MB
X2_OFF, FL_OFF, PR_OFF = 24 * MB, 28 * MB, 64 * MB
P_WL = 82
S_LWV, S_FLG = 57, 56
SC = 'sc0 sc1'
LDF = env('LDF', 'sc1')
PROF = env('PROF') == '1'
PV = 250
SPIN = 100000

def stamp(k):
    if not PROF: return []
    return ['s_memrealtime s[58:59]', 's_memtime s[62:63]', 's_waitcnt lgkmcnt(0)', f's_lshl_b32 s60, s{S_VAR}, 4', f's_add_u32 m0, s60, {k+1}', 's_nop 0', f'v_writelane_b32 v{PV}, s58, m0',
            's_add_u32 m0, m0, 32', 's_nop 0', f'v_writelane_b32 v{PV}, s62, m0']
G.stamp = lambda idx=None: []
G.cstamp = lambda idx: []

def tiles(a, LN, xshift):
    a.e(f's_lshr_b32 s{S_T0}, s2, 3')
    if LN == 8: a.e(f's_lshr_b32 s{S_LI}, s{S_T0}, 3', f's_and_b32 s{S_LJ}, s{S_T0}, 7')
    else: a.e(f's_mul_i32 s{S_LI}, s{S_T0}, {65536 // LN + 1}', f's_lshr_b32 s{S_LI}, s{S_LI}, 16', f's_mul_i32 s{S_LJ}, s{S_LI}, {LN}', f's_sub_u32 s{S_LJ}, s{S_T0}, s{S_LJ}')
    a.e(f's_lshl_b32 s{S_PHI}, s{S_LI}, 1', f's_add_u32 s{S_PHI}, s{S_PHI}, s{S_LJ}', f's_and_b32 s{S_PHI}, s{S_PHI}, 7',
        f's_and_b32 s{S_T0}, s2, 7', f's_lshr_b32 s{S_TI}, s{S_T0}, {xshift}', f's_lshl_b32 s{S_TI}, s{S_TI}, 2', f's_add_u32 s{S_TI}, s{S_TI}, s{S_LI}',
        f's_and_b32 s{S_TJ}, s{S_T0}, {(1 << xshift) - 1}', f's_mul_i32 s{S_TJ}, s{S_TJ}, {LN}', f's_add_u32 s{S_TJ}, s{S_TJ}, s{S_LJ}', *INITK)
INITK = [f's_mov_b32 s{S_P}, 7', f's_mov_b32 s{S_W}, -1']

def flag_idx(a, ph, hi, mul, lo):
    a.e(f's_lshl_b32 s{S_FLG}, s{S_VAR}, 10', f's_mul_i32 s{S_T0}, s{hi}, {mul}', f's_add_u32 s{S_FLG}, s{S_FLG}, s{S_T0}', f's_add_u32 s{S_FLG}, s{S_FLG}, s{lo}',
        f's_add_u32 s{S_FLG}, s{S_FLG}, {ph*256}', f's_lshl_b32 s{S_FLG}, s{S_FLG}, 7')

_n = [0]
def lab(p): _n[0] += 1; return f'{p}{_n[0]}'

def publish(a, vt):
    l = lab('pub')
    a.e(f's_cmp_lg_u32 s{S_LWV}, 0', f's_cbranch_scc1 {l}')
    srd(a, SRD_E, P_WS, FL_OFF, 8 * 256 * 128)
    a.e(f'v_mov_b32 v{vt}, 0', f'v_mov_b32 v{vt+1}, 1', 's_mov_b64 exec, 1', f'buffer_store_dword v{vt+1}, v{vt}, {S4(SRD_E)}, s{S_FLG} offen {SC}', 's_mov_b64 exec, -1', f'{l}:')

def poll_setup(a, sr_, va, ph, dl, base_lines, n):
    srd(a, sr_, P_WS, FL_OFF, 8 * 256 * 128)
    a.e(*base_lines, f'v_min_u32 v{va}, {n-1}, v0', f'v_add_u32 v{va}, s{S_T0}, v{va}', f'v_max_i32 v{va}, 0, v{va}', f'v_lshlrev_b32 v{va}, 7, v{va}',
        f's_lshl_b32 s55, s{S_VAR}, 17', f's_add_u32 s55, s55, {(dl * 4 + ph) * 32768}')

def poll(a, sr_, va, vt):
    l = lab('poll')
    a.e(f's_mov_b32 s{S_CNT}, 0')
    a.loop([f'{l}:', f'buffer_load_dword v{vt}, v{va}, {S4(sr_)}, s55 offen {SC}', 's_waitcnt vmcnt(0)', f'v_cmp_eq_u32 vcc, 0, v{vt}',
            f's_add_u32 s{S_CNT}, s{S_CNT}, 1', f's_cmp_gt_u32 s{S_CNT}, {SPIN}', f's_cbranch_scc1 {l}d', f's_cbranch_vccnz {l}'])
    a.e(f'{l}d:')

def dma_groups(groups, lw_s):
    L = []
    for g in groups:
        L.append(f's_add_u32 m0, s{lw_s}, s{g["sg"]}')
        for (v, imm, st, ex) in g['dmas']:
            srdn, so, fl = (SRD_A, S_OA, LDF) if st == 'A' else (SRD_B, S_OB, '')
            if ex: L.append(f's_mov_b64 exec, {ex}')
            L.append(f'buffer_load_dwordx4 v{v}, {S4(srdn)}, s{so} offen offset:{imm} {fl} lds')
            if ex: L.append('s_mov_b64 exec, -1')
    return L

def issue(NK, NS, stage, base, stepA, stepB, gA, gW):
    L = next_k(NK)
    if gA: L += [f's_mul_i32 s{S_OA}, s{S_K}, {stepA}', f's_add_u32 s{S_OA}, s{S_OA}, s{S_BA}']
    if gW: L += [f's_mul_i32 s{S_OB}, s{S_K}, {stepB}', f's_add_u32 s{S_OB}, s{S_OB}, s{S_BB}']
    L += dma_groups(gA + gW, S_LW)
    L += [f's_add_u32 s{S_LW}, s{S_LW}, {stage}', f's_cmp_eq_u32 s{S_LW}, {base + NS*stage}', f's_cselect_b32 s{S_LW}, {base}, s{S_LW}']
    return L

def pre_w(a, NK, NS, AH, stage, base, stepB, gW):
    a.e(*INITK, f's_mov_b32 s{S_LW}, {base}')
    for s in range(AH): a.e(*issue(NK, NS, stage, base, 0, stepB, [], gW))

def l_loop(a, NK, NS, AH, stage, base, stepA, stepB, gA, gW, tail=0, hook=lambda: []):
    nA = sum(len(g['dmas']) for g in gA); n = nA + sum(len(g['dmas']) for g in gW)
    iss = lambda: issue(NK, NS, stage, base, stepA, stepB, gA, gW) + hook()
    t0 = 0
    if gA:
        a.e(*INITK, f's_mov_b32 s{S_LW}, {base}')
        for s in range(AH): a.e(*issue(NK, NS, stage, base, stepA, stepB, gA, []))
        for t in range(AH - 1):
            a.e(f's_waitcnt vmcnt({(AH - 1 - t) * nA + t * n})', 's_barrier', *iss())
        t0 = AH - 1
    l = lab('ll')
    a.e(f's_mov_b32 s{S_CNT}, {NK - AH - t0}')
    a.loop([f'{l}:', f's_waitcnt vmcnt({(AH-1)*n})', 's_barrier'] + iss() + [f's_sub_u32 s{S_CNT}, s{S_CNT}, 1', f's_cmp_lg_u32 s{S_CNT}, 0', f's_cbranch_scc1 {l}'])
    for j in range(AH - tail):
        a.e(f's_waitcnt vmcnt({(AH-1-j)*n})', 's_barrier')

def c_loop(a, NK, NS, stage, reads, mfmas, addr_regs, late, st0, post=()):
    adv = adv_s(NS, stage)
    advv = [f'v_add_u32 v{r}, s{S_DELTA}, v{r}' for r in addr_regs]
    a.e(f's_mov_b32 s{S_CUR}, 0', f's_mov_b32 s{S_CNT}, {NK - 1}', 's_barrier', *stamp(st0))
    a.e(*reads[0]); a.e(*adv)
    q0 = [Ins(x).wr for x in reads[0]]
    q = list(q0)
    l = lab('cl')
    body = [f'{l}:'] + sched(mfmas[0], bundle(reads[1], advv), q, 1)
    if not late: body.append('s_waitcnt lgkmcnt(0)'); q.clear()
    body += ['s_barrier'] + list(post) + sched(mfmas[1], spread(reads[0], adv), q, 1)
    assert q == q0
    body += [f's_sub_u32 s{S_CNT}, s{S_CNT}, 1', f's_cmp_lg_u32 s{S_CNT}, 0', f's_cbranch_scc1 {l}']
    a.loop(body)
    q = list(q0)
    a.e(*sched(mfmas[0], reads[1], q, 1)); a.e(*sched(mfmas[1], [], q)); a.e('s_waitcnt lgkmcnt(0)', *stamp(st0 + 1))

S_LM, S_B0, S_B1 = 48, 49, 50
def c_direct(a, NK, NS, stage, reads, mf, addr_regs, DR, D, vaddr, init, st0, slots=None):
    R = NK // 8
    advv = lambda src: [f'v_add_u32 v{r}, {src}, v{r}' for r in addr_regs]
    def nk(t):
        p = t % 8
        L = []
        if p == 0 and t != 0: L += [f's_mov_b32 s{S_B0}, s{S_B1}', f's_add_u32 s{S_B1}, s{S_B1}, 32768', f's_cmp_eq_u32 s{S_B1}, s{S_T2}', f's_cselect_b32 s{S_B1}, s{S_BA}, s{S_B1}']
        return L + [f's_bitcmp1_b32 s{S_LM}, {p}', f's_cselect_b32 s{S_OA}, s{S_B1}, s{S_B0}', f's_add_u32 s{S_OA}, s{S_OA}, {p*4096}']
    ld = lambda slot, i: f'buffer_load_dwordx4 {vr(DR+16*slot+4*i,4)}, v{vaddr}, {S4(SRD_A)}, s{S_OA} offen offset:{1024*i} {LDF}'
    adv = [] if slots else adv_s(NS, stage)
    vq = []
    for sl in range(D):
        a.e(*nk(sl))
        for i in range(4 if sl < D - 1 else 2):
            a.e(ld(sl, i)); vq.append(Ins(ld(sl, i)).wr)
        if sl == 1: init(8)
    a.e(f's_mov_b32 s{S_CUR}, 0', f's_mov_b32 s{S_CNT}, {R - 1}', 's_barrier', *stamp(st0))
    a.e(*reads[0]); a.e(*adv)
    q0 = [Ins(x).wr for x in reads[0]]
    def mix(items, loads, pos):
        items = [list(x) for x in items]
        for l, p in zip(loads, pos): items[p] = items[p] + [l]
        return items
    def step(t, vq, generic):
        slot = t % D
        q = list(q0)
        final = not generic and t == NK - 1
        l0 = [ld((slot - 1) % D, 2), ld((slot - 1) % D, 3)] if generic or t - 1 + D < NK else []
        av = [] if final else advv(f's{S_DELTA}' if not slots else (slots[t + 1] - slots[t]) & 0xffffffff)
        L = sched(mf(0, DR + 16 * slot), mix(bundle(reads[1], av), l0, (2, 6)), q, 1, vq=vq)
        if final: return L + sched(mf(1, DR + 16 * slot + 8), [], q, 1, vq=vq)
        more = generic or t + D < NK
        it = [[r] for r in reads[0]]
        sc = (nk(t + D) if more else []) + adv
        for i, x in enumerate(sc): it[min(i // 2, len(it) - 1)].append(x)
        l1 = [ld(slot, 0), ld(slot, 1)] if more else []
        return L + ([] if slots else ['s_barrier']) + sched(mf(1, DR + 16 * slot + 8), mix(it, l1, (4, 7)), q, 1, vq=vq)
    if slots:
        for t in range(NK): a.e(*step(t, vq, False))
    else:
        v1 = list(vq); l = lab('cd')
        body = [f'{l}:']
        for t in range(8, 16): body += step(t, v1, True)
        assert v1 == vq
        a.loop(body + [f's_sub_u32 s{S_CNT}, s{S_CNT}, 1', f's_cmp_lg_u32 s{S_CNT}, 0', f's_cbranch_scc1 {l}'])
        for t in range(NK - 8, NK): a.e(*step(t, vq, False))
    a.e('s_waitcnt lgkmcnt(0)', *stamp(st0 + 1))

def direct_setup(a, NK):
    a.e(f's_lshl_b32 s{S_LM}, 0x303, s{S_PHI}', f's_lshr_b32 s{S_LM}, s{S_LM}, 8', f's_mov_b32 s{S_B0}, s{S_BA}', f's_add_u32 s{S_B1}, s{S_BA}, 32768',
        f's_add_u32 s{S_T2}, s{S_BA}, {NK*4096}')

def w_reads(regs):
    return [[f'ds_read_b64_tr_b16 {vr(16+16*h+4*n+2*q,2)}, v{regs[n]} offset:{h*4096+q*512}' for n in range(4) for q in range(2)] for h in range(2)]

def sel(a, d, ptr0, off0, ptr1, off1, nbytes): G.srd_sel(a, d, ptr0, off0, ptr1, off1, nbytes)

XT = 18432; ST1 = XT + 24576; SL = 3 * ST1; QKV = ST1; PITCH = 400; PB = 72 * PITCH
WO_SLOTS = [131072 + 8192 * i for i in range(4)] + [100608 + 8192 * i for i in range(3)] + [8192 * i for i in range(5)] + [QKV + 8192 * i for i in range(4)]
K4_BASE, K4_NS, K4_AH = 98304, 8, 6
K4_SCR = 90112
D = 4; DR = 120
PF1 = int(env('PF1', '0x102'), 0); CPRIO = int(env('CPRIO', '0'))
NPF = int(env('NPF', '0')); K0W = int(env('K0W', '0')); W1_K0 = K0W * 256 * 64 * 128
PF2 = env('PF2', '1') == '1'; LATEW = env('LATEW', '1') == '1'

def gen_mega(a):
    kn = 'mega'
    a.e('.p2align 8', 'mega_kernel:', 's_cmp_ge_u32 s2, 256', f's_cbranch_scc1 {kn}_end',
        's_load_dwordx16 s[64:79], s[0:1], 0', 's_load_dwordx2 s[80:81], s[0:1], 64', 's_load_dwordx2 s[84:85], s[0:1], 80',
        'v_lshrrev_b32 v1, 6, v0', 'v_and_b32 v0, 63, v0', f'v_readfirstlane_b32 s{S_WAVE}, v1', f's_mov_b32 s{S_VAR}, 0')
    if PROF: a.e(f'v_mov_b32 v{PV}, 0', *stamp(-1))
    a.e(f's_cmp_ge_u32 s{S_WAVE}, 4', f's_cbranch_scc1 L_start')

    ACC1 = 112
    def acc1(m, rt): return ACC1 + 36 * m + 4 * rt
    def k1_setup_c():
        tiles(a, 8, 1)
        lane_fields(a)
        tr128_addr(a, [8], XT, 21, 22)
        a.e(f's_lshl_b32 s{S_T0}, s{S_WAVE}, 5', f'v_xor_b32 v8, s{S_T0}, v8',
            'v_lshrrev_b32 v21, 1, v4', 'v_xor_b32 v21, v21, v5', 'v_lshlrev_b32 v21, 4, v21', 'v_lshlrev_b32 v22, 7, v4', 'v_add_u32 v9, v21, v22', 'v_xor_b32 v10, 64, v9',
            'v_and_b32 v21, 1, v4', f'v_mul_u32_u24 v21, {PB}, v21', 'v_lshrrev_b32 v22, 1, v4', f'v_mul_u32_u24 v22, {PITCH}, v22',
            'v_lshlrev_b32 v23, 3, v5', 'v_add3_u32 v11, v21, v22, v23', f's_add_u32 s{S_T0}, s{S_T0}, {QKV}',
            f'v_add_u32 v11, s{S_T0}, v11', 'v_lshlrev_b32 v12, 3, v4', f'v_add_u32 v12, {SL}, v12')
        for r in range(ACC1, ACC1 + 108, 2): a.e(f'v_mov_b64 {vr(r,2)}, 0')
    if CPRIO: a.e(f's_setprio {CPRIO}')
    k1_setup_c()
    a.e('s_waitcnt lgkmcnt(0)', f's_mov_b32 s{P_WL}, s{P_WS}', f's_mov_b32 s{P_WL+1}, s{P_WS+1}')
    a.e('C_top:'); a.flush_hist()
    reads = [[], []]; mf = [[], []]
    for h in range(2):
        F = 16 + 48 * h
        ra = [[f'ds_read_b64_tr_b16 {vr(F+4*m,2)}, v8 offset:{m*8192+h*4096}', f'ds_read_b64_tr_b16 {vr(F+4*m+2,2)}, v8 offset:{m*8192+h*4096+512}'] for m in range(3)]
        rb = [f'ds_read_b128 {vr(F+12+4*rt,4)}, v{9+h} offset:{rt*2048}' for rt in range(9)]
        reads[h] = ra[0] + [rb[0]] + ra[1] + ra[2] + rb[1:]
        mf[h] = [f'{MF16} {vr(acc1(m,rt),4)}, {vr(F+4*m,4)}, {vr(F+12+4*rt,4)}, {vr(acc1(m,rt),4)}' for rt in range(9) for m in range(3)]
    post = []
    if PF1:
        srd(a, SRD_C, P_W1, 0, 2048 * 3584 * 2)
        a.e(f's_lshr_b32 s{S_T0}, s2, 5', f's_lshl_b32 s48, {PF1}, s{S_T0}', f's_cmp_eq_u32 s{S_VAR}, 0', 's_cselect_b32 s48, s48, 0',
            f's_xor_b32 s{S_T0}, s{S_T0}, 7', f's_lshl_b32 s49, s{S_T0}, 5', 's_and_b32 s50, s2, 31', 's_add_u32 s49, s49, s50', 's_lshl_b32 s49, s49, 2', f's_add_u32 s49, s49, s{S_WAVE}',
            's_lshl_b32 s49, s49, 13', f's_add_u32 s49, s49, {W1_K0}', 'v_lshlrev_b32 v13, 7, v0')
        post = [f's_bitcmp1_b32 s48, s{S_CNT}', 's_cbranch_scc0 C_npf1', f'buffer_load_dword v14, v13, {S4(SRD_C)}, s49 offen', f's_add_u32 s49, s49, {1024*8192}', 'C_npf1:']
    c_loop(a, 16, 3, ST1, reads, mf, [8, 9, 10], False, 0, post)
    a.e('s_barrier')
    for rt in range(9): a.e(f'ds_read_b64 {vr(32+2*rt,2)}, v12 offset:{rt*128}')
    for m in range(3):
        for r in range(4): a.e(f'v_mov_b32_dpp v{16+4*m+r}, v{acc1(m,0)+r} row_newbcast:0 row_mask:0xf bank_mask:0xf')
    a.e('s_waitcnt lgkmcnt(0)')
    k = 0
    for rt in range(9):
        ms = [m for m in range(3) if not (m == 0 and rt == 0)]
        st = vr(32 + 2 * rt, 2)
        for m in ms:
            for e in (0, 2): a.e(f'v_pk_fma_f32 {vr(acc1(m,rt)+e,2)}, {vr(16+4*m+e,2)}, {st}, {vr(acc1(m,rt)+e,2)} op_sel_hi:[1,0,1] neg_lo:[0,1,0] neg_hi:[0,1,0]')
        for m in ms:
            for e in (0, 2): a.e(f'v_pk_mul_f32 {vr(acc1(m,rt)+e,2)}, {vr(acc1(m,rt)+e,2)}, {st} op_sel:[0,1] op_sel_hi:[1,1]')
        for m in ms:
            d = acc1(m, rt); o = 52 + 2 * (k & 7); k += 1
            a.e(f'v_cvt_pk_bf16_f32 v{o}, v{d}, v{d+1}', f'v_cvt_pk_bf16_f32 v{o+1}, v{d+2}, v{d+3}', f'ds_write_b64 v11, {vr(o,2)} offset:{rt*8*PITCH+m*128}')
    a.e('attn:'); a.flush_hist()
    MK = 86
    srd(a, SRD_D, P_WL, O_OFF, XB)
    a.e(f's_lshr_b32 s{S_T1}, s{S_WAVE}, 1', f's_and_b32 s{S_T2}, s{S_WAVE}, 1',
        f's_mul_i32 s{S_T0}, s{S_T2}, {PB}', f's_add_u32 s{S_T0}, s{S_T0}, {QKV}', f's_lshl_b32 s{S_G0+5}, s{S_T1}, 4')
    a.e(f'v_add_u32 v16, s{S_G0+5}, v4', 'v_lshlrev_b32 v17, 4, v5', f'v_add_u32 v17, s{S_T0}, v17',
        f'v_mul_u32_u24 v18, {PITCH}, v16', 'v_add_u32 v8, v18, v17', f'v_add_u32 v10, {8*PITCH}, v8', 'v_add_u32 v8, 128, v8',
        'v_add_u32 v16, 16, v16', 'v_min_u32 v16, 71, v16', f'v_mul_u32_u24 v18, {PITCH}, v16', 'v_add3_u32 v9, v18, v17, 64', 'v_add_u32 v9, 64, v9')
    a.e('v_lshl_add_u32 v16, v5, 2, v6', f'v_add_u32 v16, s{S_G0+5}, v16', 'v_lshlrev_b32 v17, 4, v7', f'v_add_u32 v17, s{S_T0}, v17', 'v_add_u32 v17, 256, v17',
        f'v_mul_u32_u24 v18, {PITCH}, v16', 'v_add_u32 v14, v18, v17',
        'v_add_u32 v16, 16, v16', 'v_min_u32 v16, 71, v16', f'v_mul_u32_u24 v18, {PITCH}, v16', 'v_add_u32 v15, v18, v17')
    a.e('v_lshlrev_b32 v13, 4, v0', f's_lshl_b32 s{S_G0+6}, s{S_TI}, 2', f's_add_u32 s{S_G0+6}, s{S_G0+6}, s{S_T1}', f's_lshl_b32 s{S_G0+6}, s{S_G0+6}, 16',
        f's_lshl_b32 s{S_G0+7}, s{S_TJ}, 12', f's_add_u32 s{S_G0+6}, s{S_G0+6}, s{S_G0+7}', f's_lshl_b32 s{S_G0+7}, s{S_T2}, 10', f's_add_u32 s{S_G0+6}, s{S_G0+6}, s{S_G0+7}')
    a.e('v_lshlrev_b32 v16, 2, v5', 'v_sub_u32 v16, v16, v4', f's_or_b32 s{S_G0+7}, s{S_TI}, s{S_T1}', f's_cmp_eq_u32 s{S_G0+7}, 0', f's_cselect_b32 s{S_G0+7}, 0, -1')
    for k in range(8):
        a.e(f'v_add_u32 v17, {16 * (k >> 2) + (k & 3) - 1}, v16', f'v_cmp_gt_u32 s[{MK+2*k}:{MK+1+2*k}], 8, v17')
    for k in range(4): a.e(f's_and_b32 s{MK+2*k}, s{MK+2*k}, s{S_G0+7}')
    cs = (32 ** -0.5) * 1.4426950408889634
    a.e(f'v_mov_b32 v18, {f32(cs)}', 'v_mov_b32 v19, 0xff800000')
    a.e('s_waitcnt lgkmcnt(0)', 's_barrier')
    B = [32, 80]
    for hd in range(2):
        b = B[hd]; o = 64 * hd
        a.e(f'ds_read_b128 {vr(b,4)}, v10 offset:{o}', f'ds_read_b128 {vr(b+4,4)}, v8 offset:{o}', f'ds_read_b128 {vr(b+8,4)}, v9 offset:{o}')
    for hd in range(2):
        b = B[hd]; o = 64 * hd
        for dt in range(2): a.e(f'ds_read_b64_tr_b16 {vr(b+12+4*dt,2)}, v14 offset:{o+8*dt}', f'ds_read_b64_tr_b16 {vr(b+14+4*dt,2)}, v15 offset:{o+8*dt}')
    for hd in range(2):
        b = B[hd]
        a.e(f's_waitcnt lgkmcnt({11 - 3*hd})', f'{MF16} {vr(b+20,4)}, {vr(b+4,4)}, {vr(b,4)}, 0', f'{MF16} {vr(b+24,4)}, {vr(b+8,4)}, {vr(b,4)}, 0')
    def both(f):
        for x, y in zip(f(B[0]), f(B[1])): a.e(x, y)
    both(lambda b: [f'v_cndmask_b32 v{b+20+k}, v19, v{b+20+k}, s[{MK+2*k}:{MK+1+2*k}]' for k in range(8)])
    both(lambda b: [f'v_max3_f32 v{b+28}, v{b+20}, v{b+21}, v{b+22}', f'v_max3_f32 v{b+29}, v{b+23}, v{b+24}, v{b+25}',
                    f'v_max3_f32 v{b+28}, v{b+28}, v{b+26}, v{b+27}', f'v_max_f32 v{b+28}, v{b+28}, v{b+29}', f'v_mov_b32 v{b+29}, v{b+28}',
                    f'v_permlane16_swap_b32 v{b+28}, v{b+29}', f'v_max_f32 v{b+28}, v{b+28}, v{b+29}', f'v_mov_b32 v{b+29}, v{b+28}',
                    f'v_permlane32_swap_b32 v{b+28}, v{b+29}', f'v_max_f32 v{b+28}, v{b+28}, v{b+29}', f'v_mul_f32 v{b+28}, v18, v{b+28}'])
    both(lambda b: [f'v_fma_f32 v{b+20+k}, v{b+20+k}, v18, -v{b+28}' for k in range(8)])
    both(lambda b: [f'v_exp_f32 v{b+20+k}, v{b+20+k}' for k in range(8)])
    both(lambda b: [f'v_pk_add_f32 {vr(b+28,2)}, {vr(b+20,2)}, {vr(b+22,2)}', f'v_pk_add_f32 {vr(b+30,2)}, {vr(b+24,2)}, {vr(b+26,2)}',
                    f'v_pk_add_f32 {vr(b+28,2)}, {vr(b+28,2)}, {vr(b+30,2)}', f'v_add_f32 v{b+28}, v{b+28}, v{b+29}', f'v_mov_b32 v{b+29}, v{b+28}',
                    f'v_permlane16_swap_b32 v{b+28}, v{b+29}', f'v_add_f32 v{b+28}, v{b+28}, v{b+29}', f'v_mov_b32 v{b+29}, v{b+28}',
                    f'v_permlane32_swap_b32 v{b+28}, v{b+29}', f'v_add_f32 v{b+28}, v{b+28}, v{b+29}', f'v_rcp_f32 v{b+28}, v{b+28}'])
    both(lambda b: [f'v_pk_mul_f32 {vr(b+20+e,2)}, {vr(b+20+e,2)}, {vr(b+28,2)} op_sel_hi:[1,0]' for e in range(0, 8, 2)])
    both(lambda b: [f'v_cvt_pk_bf16_f32 v{b+32+e}, v{b+20+2*e}, v{b+21+2*e}' for e in range(4)])
    a.e('s_waitcnt lgkmcnt(0)')
    both(lambda b: [f'{MF16} {vr(b+36+4*dt,4)}, {vr(b+12+4*dt,4)}, {vr(b+32,4)}, 0' for dt in range(2)])
    both(lambda b: [f'v_cvt_pk_bf16_f32 v{b+e}, v{b+36+2*e}, v{b+37+2*e}' for e in range(4)])
    for hd in range(2): a.e(f'buffer_store_dwordx4 {vr(B[hd],4)}, v13, {S4(SRD_D)}, s{S_G0+6} offen offset:{2048*hd} {SC}')
    a.e(f's_cmp_ge_u32 s{S_WAVE}, 4', 's_cbranch_scc1 L_k1done')

    ACC = 48; RES = 96
    def acc2(t, b): return ACC + 16 * b + 4 * t
    a.e(f's_lshl_b32 s{S_T0}, s{S_TI}, 2', f's_add_u32 s{S_T0}, s{S_T0}, s{S_WAVE}', f's_lshl_b32 s{S_BA}, s{S_T0}, 16', f's_lshl_b32 s{S_T1}, s{S_T0}, 5',
        'v_lshlrev_b32 v13, 1, v4', f'v_add_u32 v13, s{S_T1}, v13',
        'v_lshlrev_b32 v12, 11, v13', 'v_lshl_add_u32 v12, v3, 4, v12', f's_lshl_b32 s{S_T0}, s{S_TJ}, 7', f'v_add_u32 v12, s{S_T0}, v12', 'v_lshlrev_b32 v14, 4, v0')
    srd(a, SRD_A, P_WL, O_OFF, XB)
    sel(a, SRD_C, P_X, 0, P_WS, X2_OFF, XB)
    srd(a, SRD_B, P_WL, ST_OFF, 16 * 2048 * 8)
    tr128_addr(a, [8, 9, 10, 11], WO_SLOTS[0], 16, 17)
    a.e('v_add_u32 v16, v13, v2', 'v_lshlrev_b32 v16, 3, v16', f's_lshl_b32 s{S_T0}, s{S_TJ}, 14', f'v_add_u32 v112, s{S_T0}, v16',
        'v_lshrrev_b32 v17, 5, v0', 'v_lshlrev_b32 v17, 17, v17', 'v_add_u32 v113, v16, v17')
    a.e(f's_lshl_b32 s{S_T0}, s{S_WAVE}, 12', 'v_lshlrev_b32 v16, 8, v4', 'v_lshl_add_u32 v16, v5, 3, v16', f'v_add_u32 v16, s{S_T0}, v16',
        'v_and_b32 v17, 1, v4', 'v_bfe_u32 v18, v4, 2, 1', 'v_lshl_or_b32 v17, v18, 1, v17', 'v_lshl_add_u32 v114, v17, 5, v16',
        f's_lshl_b32 s{S_G0}, s{S_TJ}, 8', f's_lshl_b32 s{S_T1}, s{S_TI}, 2', f's_add_u32 s{S_G0}, s{S_G0}, s{S_T1}', f's_add_u32 s{S_G0}, s{S_G0}, s{S_WAVE}', f's_lshl_b32 s{S_G0}, s{S_G0}, 10')
    tr128_addr(a, [115], 0, 16, 17)
    a.e(f'v_add_u32 v115, s{S_T0}, v115')
    for t in range(1, 4): a.e(f's_add_u32 s{S_G0+t}, s{S_G0}, {t*65536}')
    for p in range(1, 8): a.e(f's_mov_b32 s{86+p}, {p*16384}')
    direct_setup(a, 16)
    poll_setup(a, SRD_E, 119, 0, 0, [f's_lshl_b32 s{S_T0}, s{S_TI}, 4'], 16)
    a.e('s_waitcnt vmcnt(0)', 's_barrier', *stamp(2))
    poll(a, SRD_E, 119, 16)
    a.e(*stamp(3))
    for b in range(2):
        for P in range(2): a.e(f'buffer_load_dwordx4 {vr(RES+8*b+4*P,4)}, v12, {S4(SRD_C)}, 0 offen offset:{b*2048+P*64} {LDF}')
    def init2(out):
        a.e(f's_waitcnt vmcnt({out})')
        for b in range(2):
            for P in range(2):
                r = RES + 8 * b + 4 * P
                a.e(f'v_permlane16_swap_b32 v{r}, v{r+2}', f'v_permlane16_swap_b32 v{r+1}, v{r+3}')
        for b in range(2):
            for P in range(2):
                r = RES + 8 * b + 4 * P
                a.e(*unpack4(r, r + 1, acc2(2 * P, b)), *unpack4(r + 2, r + 3, acc2(2 * P + 1, b)))
    mf2 = lambda h, bb: [f'{MF16} {vr(acc2(t,b),4)}, {vr(16+16*h+4*t,4)}, {vr(bb+4*b,4)}, {vr(acc2(t,b),4)}' for t in range(4) for b in range(2)]
    c_direct(a, 16, 0, 0, w_reads([8, 9, 10, 11]), mf2, [8, 9, 10, 11], DR, D, 14, init2, 4, slots=WO_SLOTS)
    a.e('s_barrier')
    srd(a, SRD_D, P_WL, X1_OFF, XB)
    srd(a, SRD_E, P_WL, H_OFF, XB)
    for b in range(2):
        d = acc2(0, b); T = 16 + 4 * b
        a.e(f'v_pk_add_f32 {vr(T,2)}, {vr(d,2)}, {vr(d+2,2)}', f'v_pk_mul_f32 {vr(T+2,2)}, {vr(d,2)}, {vr(d,2)}', f'v_pk_fma_f32 {vr(T+2,2)}, {vr(d+2,2)}, {vr(d+2,2)}, {vr(T+2,2)}')
        for e in range(4, 16, 2):
            a.e(f'v_pk_add_f32 {vr(T,2)}, {vr(T,2)}, {vr(d+e,2)}', f'v_pk_fma_f32 {vr(T+2,2)}, {vr(d+e,2)}, {vr(d+e,2)}, {vr(T+2,2)}')
        a.e(f'v_add_f32 v{24+b}, v{T}, v{T+1}', f'v_add_f32 v{26+b}, v{T+2}, v{T+3}')
    a.e('v_permlane16_swap_b32 v24, v25', 'v_permlane16_swap_b32 v26, v27', 'v_add_f32 v28, v24, v25', 'v_add_f32 v29, v26, v27',
        'v_mov_b32 v30, v28', 'v_mov_b32 v31, v29', 'v_permlane32_swap_b32 v28, v30', 'v_permlane32_swap_b32 v29, v31',
        'v_add_f32 v28, v28, v30', 'v_add_f32 v29, v29, v31', 'v_and_b32 v29, 0x7fffffff, v29',
        's_mov_b32 exec_hi, 0', f'buffer_store_dwordx2 v[28:29], v112, {S4(SRD_B)}, 0 offen {SC}', 's_mov_b64 exec, -1')
    for b in range(2):
        for t in range(4):
            r = RES + 8 * b + 2 * t; d = acc2(t, b)
            a.e(f'v_cvt_pk_bf16_f32 v{r}, v{d}, v{d+1}', f'v_cvt_pk_bf16_f32 v{r+1}, v{d+2}, v{d+3}')
    for b in range(2):
        for P in range(2):
            r = RES + 8 * b + 4 * P
            a.e(f'v_permlane16_swap_b32 v{r}, v{r+2}', f'v_permlane16_swap_b32 v{r+1}, v{r+3}')
    for t in range(1, 4): a.e(f'v_xor_b32 v{115+t}, {t << 5}, v115', f'v_xor_b32 v{120+t}, {t << 5}, v114')
    a.e('v_mov_b32 v120, v114', f's_mov_b32 s{S_CNT}, 0')
    body = ['k2_poll:'] + [f'buffer_load_dwordx2 {vr(32+2*p,2)}, v113, {S4(SRD_B)}, {"0" if p == 0 else f"s{86+p}"} offen {SC}' for p in range(8)]
    body += ['s_waitcnt vmcnt(0)', 'v_min3_i32 v16, v33, v35, v37', 'v_min3_i32 v17, v39, v41, v43', 'v_min3_i32 v16, v16, v45, v47',
             'v_min_i32 v16, v16, v17', 'v_cmp_gt_i32 vcc, 0, v16', f's_add_u32 s{S_CNT}, s{S_CNT}, 1', f's_cmp_gt_u32 s{S_CNT}, {SPIN}',
             's_cbranch_scc1 k2_pdone', 's_cbranch_vccnz k2_poll']
    a.loop(body)
    a.e('k2_pdone:', *stamp(6))
    for b in range(2):
        for P in range(2): a.e(f'buffer_store_dwordx4 {vr(RES+8*b+4*P,4)}, v12, {S4(SRD_D)}, 0 offen offset:{b*2048+P*64} {SC}')
    a.e('v_pk_add_f32 v[32:33], v[32:33], v[34:35]', 'v_pk_add_f32 v[36:37], v[36:37], v[38:39]', 'v_pk_add_f32 v[40:41], v[40:41], v[42:43]',
        'v_pk_add_f32 v[44:45], v[44:45], v[46:47]', 'v_pk_add_f32 v[32:33], v[32:33], v[36:37]', 'v_pk_add_f32 v[40:41], v[40:41], v[44:45]',
        'v_pk_add_f32 v[32:33], v[32:33], v[40:41]', 'v_mov_b32 v34, v32', 'v_mov_b32 v35, v33',
        'v_permlane32_swap_b32 v32, v34', 'v_permlane32_swap_b32 v33, v35', 'v_add_f32 v32, v32, v34', 'v_add_f32 v33, v33, v35')
    stats_finish(a, 32, 33, 36, True)
    a.e('v_mov_b32 v34, v32', 'v_mov_b32 v35, v33', 'v_permlane16_swap_b32 v32, v34', 'v_permlane16_swap_b32 v33, v35')
    for b in range(2):
        st = vr(32 + 2 * b, 2); d = acc2(0, b); o = 160 + 8 * b
        for e in range(0, 16, 2): a.e(f'v_pk_add_f32 {vr(d+e,2)}, {vr(d+e,2)}, {st} op_sel_hi:[1,0] neg_lo:[0,1] neg_hi:[0,1]')
        for e in range(0, 16, 2): a.e(f'v_pk_mul_f32 {vr(d+e,2)}, {vr(d+e,2)}, {st} op_sel:[0,1] op_sel_hi:[1,1]')
        for t in range(4):
            a.e(f'v_cvt_pk_bf16_f32 v{o+2*t}, v{d+4*t}, v{d+4*t+1}', f'v_cvt_pk_bf16_f32 v{o+2*t+1}, v{d+4*t+2}, v{d+4*t+3}',
                f'ds_write_b64 v{120+t}, {vr(o+2*t,2)} offset:{128*b}')
    a.e('s_waitcnt lgkmcnt(0)')
    for t in range(4): a.e(f'ds_read_b64_tr_b16 {vr(176+4*t,2)}, v{115+t}', f'ds_read_b64_tr_b16 {vr(178+4*t,2)}, v{115+t} offset:512')
    for t in range(4): a.e(f's_waitcnt lgkmcnt({6-2*t})', f'buffer_store_dwordx4 {vr(176+4*t,4)}, v14, {S4(SRD_E)}, s{S_G0+t} offen {SC}')
    a.e('s_cmp_ge_u32 s2, 224', 's_cbranch_scc1 C_k3skip')

    ACC3 = 80
    def acc3(tf, td): return ACC3 + 16 * td + 4 * tf
    tiles(a, 7, 2)
    a.e(f's_and_b32 s{S_G0+2}, s{S_WAVE}, 1', f's_lshr_b32 s{S_T2}, s{S_WAVE}, 1',
        f's_lshl_b32 s{S_T0}, s{S_TJ}, 8', f's_lshl_b32 s{S_G0}, s{S_G0+2}, 7', f's_add_u32 s{S_T0}, s{S_T0}, s{S_G0}',
        'v_lshlrev_b32 v16, 3, v5', f'v_add_u32 v16, s{S_T0}, v16')
    srd(a, SRD_C, P_B1, 0, 3584 * 2)
    for tf in range(4): a.e(f'buffer_load_dwordx2 {vr(144+2*tf,2)}, v16, {S4(SRD_C)}, 0 offen offset:{32*tf}')
    srd(a, SRD_D, P_WL, U_OFF, UB)
    a.e('v_lshl_add_u32 v17, v5, 3, v6', 'v_lshlrev_b32 v17, 8, v17', 'v_lshl_add_u32 v17, v7, 3, v17', 'v_lshl_or_b32 v18, v2, 2, v6', 'v_lshl_add_u32 v17, v18, 5, v17',
        f's_lshl_b32 s{S_T0}, s{S_G0+2}, 7', f's_add_u32 s{S_T0}, s{S_T0}, 16384', f'v_xor_b32 v18, s{S_T0}, v17', f's_lshl_b32 s{S_T0}, s{S_T2}, 13', f'v_add_u32 v12, s{S_T0}, v14')
    for t in range(4): a.e(f'v_xor_b32 v{8+t}, {t << 5}, v18')
    a.e('v_bfe_u32 v17, v4, 2, 1', 'v_lshlrev_b32 v17, 10, v17', 'v_lshl_add_u32 v17, v3, 8, v17', 'v_lshrrev_b32 v18, 3, v4', 'v_lshl_add_u32 v17, v18, 6, v17',
        'v_lshl_add_u32 v152, v7, 4, v17', 'v_add_u32 v153, 128, v152',
        f's_lshl_b32 s{S_T0}, s{S_TI}, 1', f's_add_u32 s{S_T0}, s{S_T0}, s{S_T2}', f's_mul_i32 s{S_T0}, s{S_T0}, 224',
        f's_lshl_b32 s{S_G0}, s{S_TJ}, 2', f's_add_u32 s{S_T0}, s{S_T0}, s{S_G0}', f's_lshl_b32 s{S_G0}, s{S_G0+2}, 1', f's_add_u32 s{S_T0}, s{S_T0}, s{S_G0}',
        f's_lshl_b32 s{S_G0}, s{S_T0}, 11', f's_add_u32 s{S_G0+1}, s{S_G0}, {112*2048}')
    a.e('s_waitcnt vmcnt(0)', 's_barrier', *stamp(7))
    for tf in range(4):
        a.e(*unpack4(144 + 2 * tf, 145 + 2 * tf, acc3(tf, 0)))
        for td in range(1, 4): a.e(f'v_mov_b64 {vr(acc3(tf,td),2)}, {vr(acc3(tf,0),2)}', f'v_mov_b64 {vr(acc3(tf,td)+2,2)}, {vr(acc3(tf,0)+2,2)}')
    reads = [[], []]; mf = [[], []]
    for h in range(2):
        F = 16 + 32 * h
        rd = lambda dst, av: [f'ds_read_b64_tr_b16 {vr(dst,2)}, v{av} offset:{h*8192}', f'ds_read_b64_tr_b16 {vr(dst+2,2)}, v{av} offset:{h*8192+1024}']
        for t in range(4): reads[h] += rd(F + 4 * t, 8 + t) + [f'ds_read_b128 {vr(F+16+4*t,4)}, v12 offset:{(2*t+h)*1024}']
        for tf, td in sorted([(tf, td) for tf in range(4) for td in range(4)], key=lambda x: (max(x), x)):
            mf[h].append(f'{MF16} {vr(acc3(tf,td),4)}, {vr(F+4*tf,4)}, {vr(F+16+4*td,4)}, {vr(acc3(tf,td),4)}')
    c_loop(a, 32, 5, 32768, reads, mf, list(range(8, 13)), True, 8)
    c1 = -2.0 * 0.7978845608028654 * 1.4426950408889634
    a.e(f'v_mov_b32 v16, {f32(c1)}', f'v_mov_b32 v17, {f32(c1 * 0.044715)}')
    k = 0
    for td in range(4):
        for P in range(2):
            d = acc3(2 * P, td); T = 24 + 16 * (k & 1); k += 1
            O = 160 + 4 * k
            for e in range(0, 8, 2): a.e(f'v_pk_mul_f32 {vr(T+e,2)}, {vr(d+e,2)}, {vr(d+e,2)}')
            for e in range(0, 8, 2): a.e(f'v_pk_fma_f32 {vr(T+e,2)}, {vr(T+e,2)}, v[16:17], v[16:17] op_sel:[0,1,0] op_sel_hi:[1,1,0]')
            for e in range(0, 8, 2): a.e(f'v_pk_mul_f32 {vr(T+e,2)}, {vr(T+e,2)}, {vr(d+e,2)}')
            for e in range(8): a.e(f'v_exp_f32 v{T+e}, v{T+e}')
            for e in range(0, 8, 2): a.e(f'v_pk_add_f32 {vr(T+e,2)}, {vr(T+e,2)}, 1.0 op_sel_hi:[1,0]')
            for e in range(8): a.e(f'v_rcp_f32 v{T+e}, v{T+e}')
            for e in range(0, 8, 2): a.e(f'v_pk_mul_f32 {vr(T+e,2)}, {vr(T+e,2)}, {vr(d+e,2)}')
            for e in range(4): a.e(f'v_cvt_pk_bf16_f32 v{O+e}, v{T+2*e}, v{T+2*e+1}')
            a.e(f'v_permlane16_swap_b32 v{O}, v{O+2}', f'v_permlane16_swap_b32 v{O+1}, v{O+3}')
            a.e(f'buffer_store_dwordx4 {vr(O,4)}, v{152+(td&1)}, {S4(SRD_D)}, s{S_G0+(td>>1)} offen offset:{2048*P} {SC}')
    a.e('C_k3skip:'); a.flush_hist()

    def acc4(aa, n): return ACC + 8 * n + 4 * aa
    tiles(a, 8, 2)
    a.e(f's_lshl_b32 s{S_T0}, s{S_TJ}, 6', f'v_add_u32 v13, s{S_T0}, v4', 'v_lshlrev_b32 v12, 11, v13', 'v_lshl_add_u32 v12, v5, 4, v12',
        f's_lshl_b32 s{S_T0}, s{S_TI}, 8', f's_lshl_b32 s{S_T1}, s{S_WAVE}, 6', f's_add_u32 s{S_T0}, s{S_T0}, s{S_T1}',
        f'v_add_u32 v12, s{S_T0}, v12', 'v_lshlrev_b32 v13, 1, v13', 'v_lshlrev_b32 v14, 4, v0',
        f's_lshl_b32 s{S_BA}, s{S_TI}, 2', f's_add_u32 s{S_BA}, s{S_BA}, s{S_WAVE}', f's_mul_i32 s{S_BA}, s{S_BA}, {56*4096}',
        's_mov_b32 s45, 32768', 's_mov_b32 s46, 65536', 's_mov_b32 s47, 98304')
    so = ['0', 's45', 's46', 's47']
    srd(a, SRD_A, P_WL, U_OFF, UB)
    srd(a, SRD_C, P_WL, X1_OFF, XB)
    srd(a, SRD_B, P_B2, 0, 4096)
    for n in range(4): a.e(f'buffer_load_ushort v{RES+16+2*n}, v13, {S4(SRD_B)}, 0 offen offset:{32*n}')
    tr128_addr(a, [8, 9, 10, 11], K4_BASE, 16, 17)
    direct_setup(a, 56)
    poll_setup(a, SRD_E, 15, 2, 0, [f's_lshl_b32 s{S_T0}, s{S_TI}, 5'], 28)
    a.e('s_waitcnt vmcnt(0)', 's_barrier', *stamp(10))
    if PF2:
        a.e('s_cmp_lt_u32 s2, 224', 's_cbranch_scc1 C_nopf', f's_cmp_lg_u32 s{S_VAR}, 0', 's_cbranch_scc1 C_nopf')
        srd(a, SRD_D, P_W2, 0, 3584 * 2048 * 2)
        a.e(f's_sub_u32 s{S_T0}, s2, 224', f's_lshl_b32 s{S_T0}, s{S_T0}, 2', f's_add_u32 s{S_T0}, s{S_T0}, s{S_WAVE}', f's_lshl_b32 s{S_T0}, s{S_T0}, 13', 'v_lshlrev_b32 v17, 7, v0')
        for j in range(14):
            a.e(f'buffer_load_dword v18, v17, {S4(SRD_D)}, s{S_T0} offen', f's_add_u32 s{S_T0}, s{S_T0}, {128*8192}', *(['s_waitcnt vmcnt(1)'] if j else []))
        a.e('C_nopf:')
    poll(a, SRD_E, 15, 16)
    a.e(*stamp(11))
    for n in range(4): a.e(f'buffer_load_dwordx4 {vr(RES+4*n,4)}, v12, {S4(SRD_C)}, {so[n]} offen {LDF}')
    sel(a, SRD_E, P_WS, X2_OFF, P_OUT, 0, XB)
    srd(a, SRD_B, P_WS, LSTR + RS_OFF, 8 * 2048 * 8)
    def init4(out):
        a.e(f's_waitcnt vmcnt({out})')
        for n in range(4):
            a.e(f'v_lshlrev_b32 v{RES+16+2*n}, 16, v{RES+16+2*n}')
            a.e(*unpack4(RES + 4 * n, RES + 4 * n + 1, acc4(0, n)), *unpack4(RES + 4 * n + 2, RES + 4 * n + 3, acc4(1, n)))
            for e in range(0, 8, 2): a.e(f'v_pk_add_f32 {vr(acc4(0,n)+e,2)}, {vr(acc4(0,n)+e,2)}, {vr(RES+16+2*n,2)} op_sel_hi:[1,0]')
    mf4 = lambda h, b: [f'{MF16} {vr(acc4(aa,n),4)}, {vr(b+4*aa,4)}, {vr(16+16*h+4*n,4)}, {vr(acc4(aa,n),4)}' for n in range(4) for aa in range(2)]
    c_direct(a, 56, K4_NS, 8192, w_reads([8, 9, 10, 11]), mf4, [8, 9, 10, 11], DR, D, 14, init4, 12)
    for n in range(4):
        for e in range(4): a.e(f'v_cvt_pk_bf16_f32 v{RES+4*n+e}, v{acc4(0,n)+2*e}, v{acc4(0,n)+2*e+1}')
        a.e(f'buffer_store_dwordx4 {vr(RES+4*n,4)}, v12, {S4(SRD_E)}, {so[n]} offen {SC}')
    a.e(f's_cmp_lg_u32 s{S_VAR}, 0', 's_cbranch_scc1 C_end')
    for n in range(4): a.e(*unpack4(RES + 4 * n, RES + 4 * n + 1, acc4(0, n)), *unpack4(RES + 4 * n + 2, RES + 4 * n + 3, acc4(1, n)))
    for n in range(4):
        d = acc4(0, n); T = 16 + 4 * n
        a.e(f'v_pk_add_f32 {vr(T,2)}, {vr(d,2)}, {vr(d+2,2)}', f'v_pk_mul_f32 {vr(T+2,2)}, {vr(d,2)}, {vr(d,2)}', f'v_pk_fma_f32 {vr(T+2,2)}, {vr(d+2,2)}, {vr(d+2,2)}, {vr(T+2,2)}')
        for e in (4, 6): a.e(f'v_pk_add_f32 {vr(T,2)}, {vr(T,2)}, {vr(d+e,2)}', f'v_pk_fma_f32 {vr(T+2,2)}, {vr(d+e,2)}, {vr(d+e,2)}, {vr(T+2,2)}')
        a.e(f'v_add_f32 v{32+n}, v{T}, v{T+1}', f'v_add_f32 v{36+n}, v{T+2}, v{T+3}')
    for b in (32, 36): a.e(f'v_permlane16_swap_b32 v{b}, v{b+1}', f'v_permlane16_swap_b32 v{b+2}, v{b+3}')
    for b in (32, 36): a.e(f'v_add_f32 v{b}, v{b}, v{b+1}', f'v_add_f32 v{b+2}, v{b+2}, v{b+3}')
    a.e('v_permlane32_swap_b32 v32, v34', 'v_permlane32_swap_b32 v36, v38', 'v_add_f32 v40, v32, v34', 'v_add_f32 v41, v36, v38',
        'v_lshlrev_b32 v42, 3, v0', f's_lshl_b32 s{S_T0}, s{S_WAVE}, 9', f's_add_u32 s{S_T0}, s{S_T0}, {K4_SCR}', f'v_add_u32 v43, s{S_T0}, v42',
        'ds_write_b64 v43, v[40:41]', 's_waitcnt lgkmcnt(0)', 's_barrier',
        f's_cmp_lg_u32 s{S_WAVE}, 0', 's_cbranch_scc1 C_nost',
        'ds_read_b64 v[44:45], v43 offset:512', 'ds_read_b64 v[46:47], v43 offset:1024', 'ds_read_b64 v[48:49], v43 offset:1536',
        f's_lshl_b32 s{S_T0}, s{S_TI}, 14', f's_lshl_b32 s{S_T1}, s{S_TJ}, 9', f's_add_u32 s{S_T0}, s{S_T0}, s{S_T1}', 's_waitcnt lgkmcnt(0)',
        'v_pk_add_f32 v[40:41], v[40:41], v[44:45]', 'v_pk_add_f32 v[46:47], v[46:47], v[48:49]', 'v_pk_add_f32 v[40:41], v[40:41], v[46:47]',
        f'buffer_store_dwordx2 v[40:41], v42, {S4(SRD_B)}, s{S_T0} offen {SC}', 'C_nost:', 's_nop 1')
    k1_setup_c()
    a.e('s_waitcnt vmcnt(0)', 's_barrier', *stamp(14))
    a.e(f's_mov_b32 s{S_VAR}, 1', f's_add_u32 s{P_WL}, s{P_WS}, {LSTR}', f's_addc_u32 s{P_WL+1}, s{P_WS+1}, 0', 's_branch C_top')
    a.e('C_end:'); dump(a)
    a.e('s_endpgm')

    gx = dict(sg=S_G0, dmas=[(8 + i, 1024 * i, 'A', None) for i in range(4)])
    gw = [dict(sg=S_G0 + 2 + m, dmas=[(13 + 2 * m, 0, 'B', None), (14 + 2 * m, 1024, 'B', None)]) for m in range(3)]
    gh = dict(sg=S_G0 + 1, dmas=[(12, 0, 'A', 's[52:53]')])
    def k1_setup_l(layer):
        tiles(a, 8, 1)
        a.e(f's_mov_b32 s{S_T2}, s{S_LWV}')
        dma_w128(a, [13, 14], 6144, swz128(a), 16, 2, 3, 4)
        a.e('v_add_u32 v15, 2048, v13', 'v_add_u32 v16, 2048, v14', 'v_add_u32 v17, 4096, v13', 'v_add_u32 v18, 4096, v14',
            f's_lshl_b32 s{S_G0+2}, s{S_T2}, 11', f's_add_u32 s{S_G0+2}, s{S_G0+2}, {XT}', f's_add_u32 s{S_G0+3}, s{S_G0+2}, 8192', f's_add_u32 s{S_G0+4}, s{S_G0+2}, 16384',
            f's_lshl_b32 s{S_BB}, s{S_TJ}, 7')
        if layer == 0: a.e('s_waitcnt lgkmcnt(0)')
        srd(a, SRD_B, P_WQKV, 0, 1024 * 3072 * 2)
        pre_w(a, 16, 3, 2, ST1, 0, 64 * 6144, gw)
        def xaddr(v, comp):
            a.e('v_lshrrev_b32 v2, 3, v0', f'v_add_u32 v2, s{S_T0}, v2', 'v_bfe_u32 v3, v2, 1, 3', 'v_and_b32 v4, 7, v0', 'v_xor_b32 v3, v3, v4', 'v_lshlrev_b32 v3, 4, v3',
                f'v_add_u32 v2, s{S_T1}, v2', 'v_max_i32 v2, 0, v2', 'v_lshlrev_b32 v2, 11, v2', f'v_add_u32 v{v}, v2, v3')
            if comp: a.e(f'v_subrev_u32 v{v}, {comp}, v{v}')
        a.e(f's_lshl_b32 s{S_T1}, s{S_TI}, 7', f's_sub_u32 s{S_T1}, s{S_T1}, 16')
        for i in range(2):
            a.e(f's_lshl_b32 s{S_T0}, s{S_T2}, 5', f's_add_u32 s{S_T0}, s{S_T0}, {16+8*i}')
            xaddr(8 + i, 1024 * i)
            a.e(f'v_add_u32 v{10+i}, {16*2048-2048}, v{8+i}')
        a.e(f's_lshl_b32 s{S_T0}, s{S_T2}, 3'); xaddr(12, 0)
        a.e(f's_lshl_b32 s{S_G0}, s{S_T2}, 12', f's_add_u32 s{S_G0}, s{S_G0}, 2048', f's_lshl_b32 s{S_G0+1}, s{S_T2}, 10', f's_mov_b32 s{S_BA}, 0',
            f's_cmp_eq_u32 s{S_T2}, 0', 's_cselect_b32 s52, 0xffffff00, -1', 's_mov_b32 s53, -1')
        a.e('v_mov_b32 v20, 0x3f803f80', 'v_mov_b32 v21, v20', 'v_mov_b32 v22, v20', 'v_mov_b32 v23, v20', 'v_lshlrev_b32 v24, 4, v0', f'v_add_u32 v25, {2*ST1}, v24',
            's_mov_b64 exec, 0xff', 'ds_write_b128 v24, v[20:23]', f'ds_write_b128 v24, v[20:23] offset:{ST1}', 'ds_write_b128 v25, v[20:23]', 's_mov_b64 exec, -1')
        if layer == 0: srd(a, SRD_A, P_X, 0, XB)
        else: srd(a, SRD_A, P_WS, X2_OFF, XB)
        srd(a, SRD_D, P_WS, layer * LSTR + RS_OFF, 8 * 2048 * 8)
        a.e(f's_lshl_b32 s{S_T0}, s{S_T2}, 6', f'v_add_u32 v26, s{S_T0}, v0', 'v_min_u32 v26, 143, v26', f'v_add_u32 v27, s{S_T1}, v26', 'v_max_i32 v27, 0, v27',
            'v_lshlrev_b32 v27, 3, v27', 'v_lshlrev_b32 v26, 3, v26', f'v_add_u32 v26, {SL}, v26', 's_waitcnt lgkmcnt(0)')
    a.e('L_start:'); a.flush_hist()
    a.e(f's_sub_u32 s{S_LWV}, s{S_WAVE}, 4')
    k1_setup_l(0)
    a.e(f's_mov_b32 s{P_WL}, s{P_WS}', f's_mov_b32 s{P_WL+1}, s{P_WS+1}')
    a.e('L_top:'); a.flush_hist()
    flag_idx(a, 0, S_TI, 16, S_TJ)
    srd(a, SRD_E, P_W1, 0, 2048 * 3584 * 2)
    a.e(f's_lshl_b32 s54, s2, 2', f's_add_u32 s54, s54, s{S_LWV}', f's_mul_i32 s54, s54, {NPF*128}', f's_add_u32 s54, s54, {W1_K0}')
    def pf():
        if not NPF: return []
        l = lab('pf')
        return [f's_cmp_lg_u32 s{S_VAR}, 0', f's_cbranch_scc1 {l}'] + [f's_buffer_load_dword s61, {S4(SRD_E)}, s54 offset:{128*i}' for i in range(NPF)] + \
               [f's_add_u32 s54, s54, {1024*NPF*128}', f'{l}:']
    a.e(f's_cmp_ge_u32 s{S_LWV}, 2', 's_cbranch_scc1 L_k1B')
    l_loop(a, 16, 3, 2, ST1, 0, 128, 64 * 6144, [gh, gx], gw, tail=1, hook=pf)
    a.e('s_branch L_k1t', 'L_k1B:'); a.flush_hist()
    l_loop(a, 16, 3, 2, ST1, 0, 128, 64 * 6144, [gx], gw, tail=1, hook=pf)
    a.e('L_k1t:'); a.flush_hist()
    for p in range(8):
        if p: a.e(f's_mov_b32 s{S_T0}, {p*16384}')
        a.e(f'buffer_load_dwordx2 {vr(30+2*p,2)}, v27, {S4(SRD_D)}, {"0" if p == 0 else f"s{S_T0}"} offen {LDF}')
    a.e(f's_mov_b32 s{S_T2}, s{S_LWV}')
    dma_w128(a, [130, 131], 2048, swz128(a), 16, 2, 3, 4)
    srd(a, SRD_B, P_WO, 0, 1024 * 1024 * 2)
    a.e(*INITK, f's_lshl_b32 s{S_G0+8}, s{S_LWV}, 11')
    def wo(t0, t1):
        for t in range(t0, t1):
            a.e(*next_k(16), f's_lshl_b32 s{S_OB}, s{S_K}, 17', f's_add_u32 s{S_OB}, s{S_OB}, s{S_BB}', f's_add_u32 m0, s{S_G0+8}, {WO_SLOTS[t]}',
                f'buffer_load_dwordx4 v130, {S4(SRD_B)}, s{S_OB} offen lds', f'buffer_load_dwordx4 v131, {S4(SRD_B)}, s{S_OB} offen offset:1024 lds')
    wo(0, 4)
    a.e('s_waitcnt vmcnt(16)', 's_barrier')
    wo(4, 7)
    a.e('s_waitcnt vmcnt(14)')
    a.e('v_pk_add_f32 v[30:31], v[30:31], v[32:33]', 'v_pk_add_f32 v[34:35], v[34:35], v[36:37]', 'v_pk_add_f32 v[38:39], v[38:39], v[40:41]',
        'v_pk_add_f32 v[42:43], v[42:43], v[44:45]', 'v_pk_add_f32 v[30:31], v[30:31], v[34:35]', 'v_pk_add_f32 v[38:39], v[38:39], v[42:43]',
        'v_pk_add_f32 v[30:31], v[30:31], v[38:39]')
    stats_finish(a, 30, 31, 32, False)
    a.e('ds_write_b64 v26, v[30:31]')
    lane_fields(a)
    a.e('s_waitcnt lgkmcnt(0)', 's_barrier')
    wo(7, 12)
    a.e('s_branch attn')
    a.e('L_k1done:'); a.flush_hist()
    a.e('s_waitcnt vmcnt(0)', 's_barrier')
    publish(a, 2)
    wo(12, 16)
    flag_idx(a, 1, S_TJ, 16, S_TI)
    a.e('s_waitcnt vmcnt(0)', 's_barrier')
    g4 = [dict(sg=S_G0 + 1, dmas=[(9, 0, 'B', None), (10, 1024, 'B', None)])]
    def k4_setup_l():
        tiles(a, 8, 2)
        a.e(f's_mov_b32 s{S_T2}, s{S_LWV}', f's_lshl_b32 s{S_G0+1}, s{S_T2}, 11')
        dma_w128(a, [9, 10], 4096, swz128(a), 16, 2, 3, 4)
        a.e(f's_lshl_b32 s{S_BB}, s{S_TJ}, 7')
        srd(a, SRD_B, P_W2, 0, 3584 * 2048 * 2)
    a.e('s_cmp_ge_u32 s2, 224', 's_cbranch_scc1 L_k3skip')
    tiles(a, 7, 2)
    a.e(f's_lshl_b32 s{S_G0}, s{S_LWV}, 12', f's_add_u32 s{S_G0+1}, s{S_G0}, 16384', 'v_lshlrev_b32 v8, 4, v0', f'v_add_u32 v13, {65536-2048}, v8',
        'v_lshrrev_b32 v2, 4, v0', 'v_lshlrev_b32 v3, 1, v2', 'v_and_b32 v4, 15, v0', 'v_xor_b32 v3, v3, v4', 'v_lshlrev_b32 v3, 4, v3',
        f's_lshl_b32 s{S_T0}, s{S_LWV}, 4', f'v_add_u32 v2, s{S_T0}, v2', f's_mov_b32 s{S_T0}, 7168', f'v_mul_lo_u32 v2, v2, s{S_T0}',
        'v_add_u32 v9, v2, v3', 'v_xor_b32 v3, 128, v3', 'v_add_u32 v11, v2, v3',
        f'v_add_u32 v10, {4*7168-1024}, v9', f'v_add_u32 v12, {3*(4*7168-1024)}, v11', f'v_add_u32 v11, {2*(4*7168-1024)}, v11',
        f's_lshl_b32 s{S_BA}, s{S_TI}, 2', f's_add_u32 s{S_BA}, s{S_BA}, s{S_LWV}', f's_lshl_b32 s{S_BA}, s{S_BA}, 17', f's_lshl_b32 s{S_BB}, s{S_TJ}, 8')
    srd(a, SRD_A, P_WL, H_OFF, XB)
    srd(a, SRD_B, P_W1, 0, 2048 * 3584 * 2)
    g3a = [dict(sg=S_G0, dmas=[(8 if i < 2 else 13, 1024 * i, 'A', None) for i in range(4)])]
    g3w = [dict(sg=S_G0 + 1, dmas=[(9 + i, 1024 * i, 'B', None) for i in range(4)])]
    poll_setup(a, SRD_C, 14, 1, 0, [f's_lshl_b32 s{S_T0}, s{S_TI}, 5'], 32)
    a.e('s_barrier')
    if not LATEW: pre_w(a, 32, 5, 3, 32768, 0, 64 * 7168, g3w)
    a.e('s_barrier')
    publish(a, 2)
    if LATEW: pre_w(a, 32, 5, 3, 32768, 0, 64 * 7168, g3w)
    flag_idx(a, 2, S_TI, 32, S_TJ)
    poll(a, SRD_C, 14, 15)
    l_loop(a, 32, 5, 3, 32768, 0, 2048, 64 * 7168, g3a, g3w)
    k4_setup_l()
    a.e('s_branch L_k4', 'L_k3skip:'); a.flush_hist()
    k4_setup_l()
    a.e('s_barrier')
    a.e('L_k4:'); a.flush_hist()
    pre_w(a, 56, K4_NS, K4_AH, 8192, K4_BASE, 64 * 4096, g4)
    a.e('s_barrier')
    publish(a, 2)
    flag_idx(a, 3, S_TJ, 8, S_TI)
    l_loop(a, 56, K4_NS, K4_AH, 8192, K4_BASE, 0, 64 * 4096, [], g4)
    a.e(f's_cmp_lg_u32 s{S_VAR}, 0', 's_cbranch_scc1 L_end')
    k1_setup_l(1)
    poll_setup(a, SRD_C, 28, 3, 0, [f's_lshl_b32 s{S_T0}, s{S_TI}, 4', f's_sub_u32 s{S_T0}, s{S_T0}, 8'], 24)
    a.e('s_barrier', 's_barrier')
    publish(a, 2)
    poll(a, SRD_C, 28, 29)
    a.e(f's_mov_b32 s{S_VAR}, 1', f's_add_u32 s{P_WL}, s{P_WS}, {LSTR}', f's_addc_u32 s{P_WL+1}, s{P_WS+1}, 0', 's_branch L_top')
    a.e('L_end:', f'{kn}_end:', 's_endpgm')

def dump(a):
    if not PROF: return
    a.e('s_waitcnt vmcnt(0)', *stamp(14), f's_cmp_lg_u32 s{S_WAVE}, 0', 's_cbranch_scc1 nodump', 's_lshl_b32 s58, s2, 8', f's_add_u32 s58, s58, {PR_OFF}',
        'v_lshlrev_b32 v251, 2, v0', 'v_add_u32 v251, s58, v251', f'global_store_dword v251, v{PV}, s[{P_WS}:{P_WS+1}]', 'nodump:')

def gen_k0(a):
    a.e('.p2align 8', 'k0_kernel:', 's_cmp_ge_u32 s2, 256', 's_cbranch_scc1 k0_end',
        's_load_dwordx16 s[64:79], s[0:1], 0', 's_load_dwordx2 s[84:85], s[0:1], 80',
        'v_lshrrev_b32 v1, 6, v0', 'v_lshlrev_b32 v20, 4, v0', 'v_and_b32 v0, 63, v0', f'v_readfirstlane_b32 s{S_WAVE}, v1',
        's_lshl_b32 s30, s2, 3', f's_add_u32 s30, s30, s{S_WAVE}',
        's_lshl_b32 s31, s30, 11', 'v_lshlrev_b32 v2, 5, v0',
        's_lshl_b32 s32, s2, 2', f's_and_b32 s33, s{S_WAVE}, 3', 's_add_u32 s32, s32, s33', 's_lshl_b32 s32, s32, 13', 'v_lshlrev_b32 v3, 7, v0', 'v_add_u32 v3, s32, v3',
        f'v_subrev_u32 v4, {1024*3072*2}, v3', 's_waitcnt lgkmcnt(0)')
    srd(a, SRD_A, P_X, 0, XB)
    a.e(f'buffer_load_dwordx4 v[8:11], v2, {S4(SRD_A)}, s31 offen', f'buffer_load_dwordx4 v[12:15], v2, {S4(SRD_A)}, s31 offen offset:16')
    srd(a, SRD_B, P_WQKV, 0, 1024 * 3072 * 2)
    srd(a, SRD_C, P_WO, 0, 1024 * 1024 * 2)
    srd(a, SRD_E, P_W1, 0, W1_K0)
    a.e(f's_sub_u32 s33, s{S_WAVE}, 4', 's_lshl_b32 s33, s33, 8', 's_add_u32 s33, s33, s2', 's_lshl_b32 s33, s33, 13', 'v_lshlrev_b32 v7, 7, v0',
        f's_cmp_ge_u32 s{S_WAVE}, 4', 's_cbranch_scc1 k0_nw', f'buffer_load_dword v5, v3, {S4(SRD_B)}, 0 offen', f'buffer_load_dword v6, v4, {S4(SRD_C)}, 0 offen', 's_branch k0_nx',
        'k0_nw:', f'buffer_load_dword v5, v7, {S4(SRD_E)}, s33 offen', 'k0_nx:')
    srd(a, SRD_D, P_WS, 0, 64 * MB)
    a.e(f's_cmp_eq_u32 s{S_WAVE}, 0', 's_cselect_b32 s33, 0, -1', 'v_mov_b32 v16, s33', 'v_mov_b32 v17, s33', 'v_mov_b32 v18, s33', 'v_mov_b32 v19, s33',
        f's_mov_b32 s34, {ST_OFF}', f's_cselect_b32 s34, {FL_OFF}, s34', f's_cmp_eq_u32 s{S_WAVE}, 2', f's_cselect_b32 s34, {LSTR + ST_OFF}, s34', 's_lshl_b32 s35, s2, 10', 's_add_u32 s34, s34, s35',
        'v_lshlrev_b32 v20, 4, v0', f's_cmp_ge_u32 s{S_WAVE}, 3', 's_cbranch_scc1 k0_nr', f'buffer_store_dwordx4 v[16:19], v20, {S4(SRD_D)}, s34 offen', 'k0_nr:')
    a.e('v_mov_b32 v22, 0', 'v_mov_b32 v23, 0', 'v_mov_b32 v21, 0x3f803f80', 'v_lshrrev_b32 v24, 3, v0', 'v_lshlrev_b32 v24, 14, v24', 's_lshl_b32 s36, s30, 3', f's_add_u32 s36, s36, {RS_OFF}',
        's_waitcnt vmcnt(0)')
    for e in range(8): a.e(f'v_dot2c_f32_bf16 v22, v21, v{8+e}', f'v_dot2c_f32_bf16 v23, v{8+e}, v{8+e}')
    for ctl in ('quad_perm:[1,0,3,2]', 'quad_perm:[2,3,0,1]', 'row_half_mirror'):
        a.e(f'v_add_f32_dpp v22, v22, v22 {ctl} row_mask:0xf bank_mask:0xf', f'v_add_f32_dpp v23, v23, v23 {ctl} row_mask:0xf bank_mask:0xf')
    a.e('s_mov_b32 exec_lo, 0x01010101', 's_mov_b32 exec_hi, 0x01010101', f'buffer_store_dwordx2 v[22:23], v24, {S4(SRD_D)}, s36 offen', 'k0_end:', 's_endpgm')

def main(out):
    a = Asm()
    gen_k0(a); a.flush_hist(); gen_mega(a)
    info = {'k0_kernel': (32, 0), 'mega_kernel': (256 if PROF else 224, 163840)}
    ref = open(os.path.join(os.path.dirname(os.path.abspath(__file__)), '..', NAME + '.s.ref')).read().splitlines()
    hdr = [l for l in ref if l.startswith(';') and '@launch' not in l and 'Override launch' not in l and 'grid=ceil' not in l]
    hdr += [f'; @launch kernel={n} grid=(256,1,1) block=(512,1,1) lds={v[1]}' for n, v in info.items()]
    s = '\n'.join(hdr) + '\n; generated by gen/gen2.py\n.amdgcn_target "amdgcn-amd-amdhsa--gfx950"\n.text\n' + a.text() + '.section .rodata,"a"\n'
    for n, (vg, _) in info.items():
        s += f'''.p2align 6
.amdhsa_kernel {n}
  .amdhsa_next_free_vgpr {vg}
  .amdhsa_next_free_sgpr 102
  .amdhsa_accum_offset {vg}
  .amdhsa_group_segment_fixed_size 0
  .amdhsa_kernarg_size 88
  .amdhsa_user_sgpr_count 2
  .amdhsa_user_sgpr_kernarg_segment_ptr 1
  .amdhsa_system_sgpr_workgroup_id_x 1
.end_amdhsa_kernel
'''
    open(out, 'w').write(s)

if __name__ == '__main__':
    main(sys.argv[1])
```

```python
import sys, os, struct
sys.path.insert(0, os.path.dirname(os.path.abspath(__file__)))
from asmlib import *
import gen as G
from gen import (NAME, MB, XB, UB, f32, env, S4, srd, next_k, adv_s, sched, bundle, spread, lane_fields, tr128_addr, swz128, unpack4,
                 dma_w128, stats_finish, MF16, S_VAR, S_WAVE, S_LI, S_LJ, S_PHI, SRD_A, SRD_B, SRD_C, SRD_D, SRD_E, S_TI, S_TJ,
                 S_P, S_W, S_T0, S_K, S_BA, S_BB, S_OA, S_OB, S_LW, S_CNT, S_T1, S_T2, S_DELTA, S_CUR, S_G0,
                 P_X, P_WQKV, P_WO, P_W1, P_B1, P_W2, P_B2, P_OUT, P_WS)

LSTR = 32 * MB
O_OFF, X1_OFF, H_OFF, U_OFF, ST_OFF, RS_OFF = 0, 4 * MB, 8 * MB, 12 * MB, 20 * MB, 21 * MB
X2_OFF, FL_OFF, PR_OFF = 24 * MB, 28 * MB, 64 * MB
P_WL = 82
S_LWV, S_FLG = 57, 56
SC = 'sc0 sc1'
LDF = env('LDF', 'sc1')
PROF = env('PROF') == '1'
PV = 250
SPIN = 100000

def stamp(k):
    if not PROF: return []
    return ['s_memrealtime s[58:59]', 's_memtime s[62:63]', 's_waitcnt lgkmcnt(0)', f's_lshl_b32 s60, s{S_VAR}, 4', f's_add_u32 m0, s60, {k+1}', 's_nop 0', f'v_writelane_b32 v{PV}, s58, m0',
            's_add_u32 m0, m0, 32', 's_nop 0', f'v_writelane_b32 v{PV}, s62, m0']
G.stamp = lambda idx=None: []
G.cstamp = lambda idx: []

def tiles(a, LN, xshift):
    a.e(f's_lshr_b32 s{S_T0}, s2, 3')
    if LN == 8: a.e(f's_lshr_b32 s{S_LI}, s{S_T0}, 3', f's_and_b32 s{S_LJ}, s{S_T0}, 7')
    else: a.e(f's_mul_i32 s{S_LI}, s{S_T0}, {65536 // LN + 1}', f's_lshr_b32 s{S_LI}, s{S_LI}, 16', f's_mul_i32 s{S_LJ}, s{S_LI}, {LN}', f's_sub_u32 s{S_LJ}, s{S_T0}, s{S_LJ}')
    a.e(f's_lshl_b32 s{S_PHI}, s{S_LI}, 1', f's_add_u32 s{S_PHI}, s{S_PHI}, s{S_LJ}', f's_and_b32 s{S_PHI}, s{S_PHI}, 7',
        f's_and_b32 s{S_T0}, s2, 7', f's_lshr_b32 s{S_TI}, s{S_T0}, {xshift}', f's_lshl_b32 s{S_TI}, s{S_TI}, 2', f's_add_u32 s{S_TI}, s{S_TI}, s{S_LI}',
        f's_and_b32 s{S_TJ}, s{S_T0}, {(1 << xshift) - 1}', f's_mul_i32 s{S_TJ}, s{S_TJ}, {LN}', f's_add_u32 s{S_TJ}, s{S_TJ}, s{S_LJ}', *INITK)
INITK = [f's_mov_b32 s{S_P}, 7', f's_mov_b32 s{S_W}, -1']

def flag_idx(a, ph, hi, mul, lo):
    a.e(f's_lshl_b32 s{S_FLG}, s{S_VAR}, 10', f's_mul_i32 s{S_T0}, s{hi}, {mul}', f's_add_u32 s{S_FLG}, s{S_FLG}, s{S_T0}', f's_add_u32 s{S_FLG}, s{S_FLG}, s{lo}',
        f's_add_u32 s{S_FLG}, s{S_FLG}, {ph*256}', f's_lshl_b32 s{S_FLG}, s{S_FLG}, 7')

_n = [0]
def lab(p): _n[0] += 1; return f'{p}{_n[0]}'

def publish(a, vt):
    l = lab('pub')
    a.e(f's_cmp_lg_u32 s{S_LWV}, 0', f's_cbranch_scc1 {l}')
    srd(a, SRD_E, P_WS, FL_OFF, 8 * 256 * 128)
    a.e(f'v_mov_b32 v{vt}, 0', f'v_mov_b32 v{vt+1}, 1', 's_mov_b64 exec, 1', f'buffer_store_dword v{vt+1}, v{vt}, {S4(SRD_E)}, s{S_FLG} offen {SC}', 's_mov_b64 exec, -1', f'{l}:')

def poll_setup(a, sr_, va, ph, dl, base_lines, n):
    srd(a, sr_, P_WS, FL_OFF, 8 * 256 * 128)
    a.e(*base_lines, f'v_min_u32 v{va}, {n-1}, v0', f'v_add_u32 v{va}, s{S_T0}, v{va}', f'v_max_i32 v{va}, 0, v{va}', f'v_lshlrev_b32 v{va}, 7, v{va}',
        f's_lshl_b32 s55, s{S_VAR}, 17', f's_add_u32 s55, s55, {(dl * 4 + ph) * 32768}')

def poll(a, sr_, va, vt):
    l = lab('poll')
    a.e(f's_mov_b32 s{S_CNT}, 0')
    a.loop([f'{l}:', f'buffer_load_dword v{vt}, v{va}, {S4(sr_)}, s55 offen {SC}', 's_waitcnt vmcnt(0)', f'v_cmp_eq_u32 vcc, 0, v{vt}',
            f's_add_u32 s{S_CNT}, s{S_CNT}, 1', f's_cmp_gt_u32 s{S_CNT}, {SPIN}', f's_cbranch_scc1 {l}d', f's_cbranch_vccnz {l}'])
    a.e(f'{l}d:')

def dma_groups(groups, lw_s):
    L = []
    for g in groups:
        L.append(f's_add_u32 m0, s{lw_s}, s{g["sg"]}')
        for (v, imm, st, ex) in g['dmas']:
            srdn, so, fl = (SRD_A, S_OA, LDF) if st == 'A' else (SRD_B, S_OB, '')
            if ex: L.append(f's_mov_b64 exec, {ex}')
            L.append(f'buffer_load_dwordx4 v{v}, {S4(srdn)}, s{so} offen offset:{imm} {fl} lds')
            if ex: L.append('s_mov_b64 exec, -1')
    return L

def issue(NK, NS, stage, base, stepA, stepB, gA, gW):
    L = next_k(NK)
    if gA: L += [f's_mul_i32 s{S_OA}, s{S_K}, {stepA}', f's_add_u32 s{S_OA}, s{S_OA}, s{S_BA}']
    if gW: L += [f's_mul_i32 s{S_OB}, s{S_K}, {stepB}', f's_add_u32 s{S_OB}, s{S_OB}, s{S_BB}']
    L += dma_groups(gA + gW, S_LW)
    L += [f's_add_u32 s{S_LW}, s{S_LW}, {stage}', f's_cmp_eq_u32 s{S_LW}, {base + NS*stage}', f's_cselect_b32 s{S_LW}, {base}, s{S_LW}']
    return L

def pre_w(a, NK, NS, AH, stage, base, stepB, gW):
    a.e(*INITK, f's_mov_b32 s{S_LW}, {base}')
    for s in range(AH): a.e(*issue(NK, NS, stage, base, 0, stepB, [], gW))

def l_loop(a, NK, NS, AH, stage, base, stepA, stepB, gA, gW, tail=0, hook=lambda: []):
    nA = sum(len(g['dmas']) for g in gA); n = nA + sum(len(g['dmas']) for g in gW)
    iss = lambda: issue(NK, NS, stage, base, stepA, stepB, gA, gW) + hook()
    t0 = 0
    if gA:
        a.e(*INITK, f's_mov_b32 s{S_LW}, {base}')
        for s in range(AH): a.e(*issue(NK, NS, stage, base, stepA, stepB, gA, []))
        for t in range(AH - 1):
            a.e(f's_waitcnt vmcnt({(AH - 1 - t) * nA + t * n})', 's_barrier', *iss())
        t0 = AH - 1
    l = lab('ll')
    a.e(f's_mov_b32 s{S_CNT}, {NK - AH - t0}')
    a.loop([f'{l}:', f's_waitcnt vmcnt({(AH-1)*n})', 's_barrier'] + iss() + [f's_sub_u32 s{S_CNT}, s{S_CNT}, 1', f's_cmp_lg_u32 s{S_CNT}, 0', f's_cbranch_scc1 {l}'])
    for j in range(AH - tail):
        a.e(f's_waitcnt vmcnt({(AH-1-j)*n})', 's_barrier')

def c_loop(a, NK, NS, stage, reads, mfmas, addr_regs, late, st0, post=()):
    adv = adv_s(NS, stage)
    advv = [f'v_add_u32 v{r}, s{S_DELTA}, v{r}' for r in addr_regs]
    a.e(f's_mov_b32 s{S_CUR}, 0', f's_mov_b32 s{S_CNT}, {NK - 1}', 's_barrier', *stamp(st0))
    a.e(*reads[0]); a.e(*adv)
    q0 = [Ins(x).wr for x in reads[0]]
    q = list(q0)
    l = lab('cl')
    body = [f'{l}:'] + sched(mfmas[0], bundle(reads[1], advv), q, 1)
    if not late: body.append('s_waitcnt lgkmcnt(0)'); q.clear()
    body += ['s_barrier'] + list(post) + sched(mfmas[1], spread(reads[0], adv), q, 1)
    assert q == q0
    body += [f's_sub_u32 s{S_CNT}, s{S_CNT}, 1', f's_cmp_lg_u32 s{S_CNT}, 0', f's_cbranch_scc1 {l}']
    a.loop(body)
    q = list(q0)
    a.e(*sched(mfmas[0], reads[1], q, 1)); a.e(*sched(mfmas[1], [], q)); a.e('s_waitcnt lgkmcnt(0)', *stamp(st0 + 1))

S_LM, S_B0, S_B1 = 48, 49, 50
def c_direct(a, NK, NS, stage, reads, mf, addr_regs, DR, D, vaddr, init, st0, slots=None):
    R = NK // 8
    advv = lambda src: [f'v_add_u32 v{r}, {src}, v{r}' for r in addr_regs]
    def nk(t):
        p = t % 8
        L = []
        if p == 0 and t != 0: L += [f's_mov_b32 s{S_B0}, s{S_B1}', f's_add_u32 s{S_B1}, s{S_B1}, 32768', f's_cmp_eq_u32 s{S_B1}, s{S_T2}', f's_cselect_b32 s{S_B1}, s{S_BA}, s{S_B1}']
        return L + [f's_bitcmp1_b32 s{S_LM}, {p}', f's_cselect_b32 s{S_OA}, s{S_B1}, s{S_B0}', f's_add_u32 s{S_OA}, s{S_OA}, {p*4096}']
    ld = lambda slot, i: f'buffer_load_dwordx4 {vr(DR+16*slot+4*i,4)}, v{vaddr}, {S4(SRD_A)}, s{S_OA} offen offset:{1024*i} {LDF}'
    adv = [] if slots else adv_s(NS, stage)
    vq = []
    for sl in range(D):
        a.e(*nk(sl))
        for i in range(4 if sl < D - 1 else 2):
            a.e(ld(sl, i)); vq.append(Ins(ld(sl, i)).wr)
        if sl == 1: init(8)
    a.e(f's_mov_b32 s{S_CUR}, 0', f's_mov_b32 s{S_CNT}, {R - 1}', 's_barrier', *stamp(st0))
    a.e(*reads[0]); a.e(*adv)
    q0 = [Ins(x).wr for x in reads[0]]
    def mix(items, loads, pos):
        items = [list(x) for x in items]
        for l, p in zip(loads, pos): items[p] = items[p] + [l]
        return items
    def step(t, vq, generic):
        slot = t % D
        q = list(q0)
        final = not generic and t == NK - 1
        l0 = [ld((slot - 1) % D, 2), ld((slot - 1) % D, 3)] if generic or t - 1 + D < NK else []
        av = [] if final else advv(f's{S_DELTA}' if not slots else (slots[t + 1] - slots[t]) & 0xffffffff)
        L = sched(mf(0, DR + 16 * slot), mix(bundle(reads[1], av), l0, (2, 6)), q, 1, vq=vq)
        if final: return L + sched(mf(1, DR + 16 * slot + 8), [], q, 1, vq=vq)
        more = generic or t + D < NK
        it = [[r] for r in reads[0]]
        sc = (nk(t + D) if more else []) + adv
        for i, x in enumerate(sc): it[min(i // 2, len(it) - 1)].append(x)
        l1 = [ld(slot, 0), ld(slot, 1)] if more else []
        return L + ([] if slots else ['s_barrier']) + sched(mf(1, DR + 16 * slot + 8), mix(it, l1, (4, 7)), q, 1, vq=vq)
    if slots:
        for t in range(NK): a.e(*step(t, vq, False))
    else:
        v1 = list(vq); l = lab('cd')
        body = [f'{l}:']
        for t in range(8, 16): body += step(t, v1, True)
        assert v1 == vq
        a.loop(body + [f's_sub_u32 s{S_CNT}, s{S_CNT}, 1', f's_cmp_lg_u32 s{S_CNT}, 0', f's_cbranch_scc1 {l}'])
        for t in range(NK - 8, NK): a.e(*step(t, vq, False))
    a.e('s_waitcnt lgkmcnt(0)', *stamp(st0 + 1))

def direct_setup(a, NK):
    a.e(f's_lshl_b32 s{S_LM}, 0x303, s{S_PHI}', f's_lshr_b32 s{S_LM}, s{S_LM}, 8', f's_mov_b32 s{S_B0}, s{S_BA}', f's_add_u32 s{S_B1}, s{S_BA}, 32768',
        f's_add_u32 s{S_T2}, s{S_BA}, {NK*4096}')

def w_reads(regs):
    return [[f'ds_read_b64_tr_b16 {vr(16+16*h+4*n+2*q,2)}, v{regs[n]} offset:{h*4096+q*512}' for n in range(4) for q in range(2)] for h in range(2)]

def sel(a, d, ptr0, off0, ptr1, off1, nbytes): G.srd_sel(a, d, ptr0, off0, ptr1, off1, nbytes)

XT = 18432; ST1 = XT + 24576; SL = 3 * ST1; QKV = ST1; PITCH = 400; PB = 72 * PITCH
WO_SLOTS = [131072 + 8192 * i for i in range(4)] + [100608 + 8192 * i for i in range(3)] + [8192 * i for i in range(5)] + [QKV + 8192 * i for i in range(4)]
K4_BASE, K4_NS, K4_AH = 98304, 8, 6
K4_SCR = 90112
D = 4; DR = 120
PF1 = int(env('PF1', '0'), 0); CPRIO = int(env('CPRIO', '0'))
NPF = int(env('NPF', '0')); K0W = int(env('K0W', '0')); W1_K0 = K0W * 256 * 64 * 128
CODEPF = env('CODEPF', '0') == '1'; PF2 = env('PF2', '1') == '1'; LATEW = env('LATEW', '1') == '1'

def gen_mega(a):
    kn = 'mega'
    a.e('.p2align 8', 'mega_kernel:', 's_cmp_ge_u32 s2, 256', f's_cbranch_scc1 {kn}_end',
        's_load_dwordx16 s[64:79], s[0:1], 0', 's_load_dwordx2 s[80:81], s[0:1], 64', 's_load_dwordx2 s[84:85], s[0:1], 80',
        'v_lshrrev_b32 v1, 6, v0', 'v_and_b32 v0, 63, v0', f'v_readfirstlane_b32 s{S_WAVE}, v1', f's_mov_b32 s{S_VAR}, 0')
    if PROF: a.e(f'v_mov_b32 v{PV}, 0', *stamp(-1))
    a.e(f's_cmp_ge_u32 s{S_WAVE}, 4', f's_cbranch_scc1 L_start')

    ACC1 = 112
    def acc1(m, rt): return ACC1 + 36 * m + 4 * rt
    def k1_setup_c():
        tiles(a, 8, 1)
        lane_fields(a)
        tr128_addr(a, [8], XT, 21, 22)
        a.e(f's_lshl_b32 s{S_T0}, s{S_WAVE}, 5', f'v_xor_b32 v8, s{S_T0}, v8',
            'v_lshrrev_b32 v21, 1, v4', 'v_xor_b32 v21, v21, v5', 'v_lshlrev_b32 v21, 4, v21', 'v_lshlrev_b32 v22, 7, v4', 'v_add_u32 v9, v21, v22', 'v_xor_b32 v10, 64, v9',
            'v_and_b32 v21, 1, v4', f'v_mul_u32_u24 v21, {PB}, v21', 'v_lshrrev_b32 v22, 1, v4', f'v_mul_u32_u24 v22, {PITCH}, v22',
            'v_lshlrev_b32 v23, 3, v5', 'v_add3_u32 v11, v21, v22, v23', f's_add_u32 s{S_T0}, s{S_T0}, {QKV}',
            f'v_add_u32 v11, s{S_T0}, v11', 'v_lshlrev_b32 v12, 3, v4', f'v_add_u32 v12, {SL}, v12')
        for r in range(ACC1, ACC1 + 108, 2): a.e(f'v_mov_b64 {vr(r,2)}, 0')
    if CPRIO: a.e(f's_setprio {CPRIO}')
    k1_setup_c()
    a.e('s_waitcnt lgkmcnt(0)', f's_mov_b32 s{P_WL}, s{P_WS}', f's_mov_b32 s{P_WL+1}, s{P_WS+1}')
    a.e('C_top:'); a.flush_hist()
    reads = [[], []]; mf = [[], []]
    for h in range(2):
        F = 16 + 48 * h
        ra = [[f'ds_read_b64_tr_b16 {vr(F+4*m,2)}, v8 offset:{m*8192+h*4096}', f'ds_read_b64_tr_b16 {vr(F+4*m+2,2)}, v8 offset:{m*8192+h*4096+512}'] for m in range(3)]
        rb = [f'ds_read_b128 {vr(F+12+4*rt,4)}, v{9+h} offset:{rt*2048}' for rt in range(9)]
        reads[h] = ra[0] + [rb[0]] + ra[1] + ra[2] + rb[1:]
        mf[h] = [f'{MF16} {vr(acc1(m,rt),4)}, {vr(F+4*m,4)}, {vr(F+12+4*rt,4)}, {vr(acc1(m,rt),4)}' for rt in range(9) for m in range(3)]
    post = []
    if PF1:
        srd(a, SRD_C, P_W1, 0, 2048 * 3584 * 2)
        a.e(f's_lshr_b32 s{S_T0}, s2, 5', f's_lshl_b32 s48, {PF1}, s{S_T0}', f's_cmp_eq_u32 s{S_VAR}, 0', 's_cselect_b32 s48, s48, 0',
            f's_xor_b32 s{S_T0}, s{S_T0}, 7', f's_lshl_b32 s49, s{S_T0}, 5', 's_and_b32 s50, s2, 31', 's_add_u32 s49, s49, s50', 's_lshl_b32 s49, s49, 2', f's_add_u32 s49, s49, s{S_WAVE}',
            's_lshl_b32 s49, s49, 13', f's_add_u32 s49, s49, {W1_K0}', 'v_lshlrev_b32 v13, 7, v0')
        post = [f's_bitcmp1_b32 s48, s{S_CNT}', 's_cbranch_scc0 C_npf1', f'buffer_load_dword v222, v13, {S4(SRD_C)}, s49 offen', f's_add_u32 s49, s49, {1024*8192}', 'C_npf1:']
    c_loop(a, 16, 3, ST1, reads, mf, [8, 9, 10], False, 0, post)
    a.e('s_barrier')
    for rt in range(9): a.e(f'ds_read_b64 {vr(32+2*rt,2)}, v12 offset:{rt*128}')
    for m in range(3):
        for r in range(4): a.e(f'v_mov_b32_dpp v{16+4*m+r}, v{acc1(m,0)+r} row_newbcast:0 row_mask:0xf bank_mask:0xf')
    a.e('s_waitcnt lgkmcnt(0)')
    k = 0
    for rt in range(9):
        ms = [m for m in range(3) if not (m == 0 and rt == 0)]
        st = vr(32 + 2 * rt, 2)
        for m in ms:
            for e in (0, 2): a.e(f'v_pk_fma_f32 {vr(acc1(m,rt)+e,2)}, {vr(16+4*m+e,2)}, {st}, {vr(acc1(m,rt)+e,2)} op_sel_hi:[1,0,1] neg_lo:[0,1,0] neg_hi:[0,1,0]')
        for m in ms:
            for e in (0, 2): a.e(f'v_pk_mul_f32 {vr(acc1(m,rt)+e,2)}, {vr(acc1(m,rt)+e,2)}, {st} op_sel:[0,1] op_sel_hi:[1,1]')
        for m in ms:
            d = acc1(m, rt); o = 52 + 2 * (k & 7); k += 1
            a.e(f'v_cvt_pk_bf16_f32 v{o}, v{d}, v{d+1}', f'v_cvt_pk_bf16_f32 v{o+1}, v{d+2}, v{d+3}', f'ds_write_b64 v11, {vr(o,2)} offset:{rt*8*PITCH+m*128}')
    a.e('attn:'); a.flush_hist()
    MK = 86
    srd(a, SRD_D, P_WL, O_OFF, XB)
    a.e(f's_lshr_b32 s{S_T1}, s{S_WAVE}, 1', f's_and_b32 s{S_T2}, s{S_WAVE}, 1',
        f's_mul_i32 s{S_T0}, s{S_T2}, {PB}', f's_add_u32 s{S_T0}, s{S_T0}, {QKV}', f's_lshl_b32 s{S_G0+5}, s{S_T1}, 4')
    a.e(f'v_add_u32 v16, s{S_G0+5}, v4', 'v_lshlrev_b32 v17, 4, v5', f'v_add_u32 v17, s{S_T0}, v17',
        f'v_mul_u32_u24 v18, {PITCH}, v16', 'v_add_u32 v8, v18, v17', f'v_add_u32 v10, {8*PITCH}, v8', 'v_add_u32 v8, 128, v8',
        'v_add_u32 v16, 16, v16', 'v_min_u32 v16, 71, v16', f'v_mul_u32_u24 v18, {PITCH}, v16', 'v_add3_u32 v9, v18, v17, 64', 'v_add_u32 v9, 64, v9')
    a.e('v_lshl_add_u32 v16, v5, 2, v6', f'v_add_u32 v16, s{S_G0+5}, v16', 'v_lshlrev_b32 v17, 4, v7', f'v_add_u32 v17, s{S_T0}, v17', 'v_add_u32 v17, 256, v17',
        f'v_mul_u32_u24 v18, {PITCH}, v16', 'v_add_u32 v14, v18, v17',
        'v_add_u32 v16, 16, v16', 'v_min_u32 v16, 71, v16', f'v_mul_u32_u24 v18, {PITCH}, v16', 'v_add_u32 v15, v18, v17')
    a.e('v_lshlrev_b32 v13, 4, v0', f's_lshl_b32 s{S_G0+6}, s{S_TI}, 2', f's_add_u32 s{S_G0+6}, s{S_G0+6}, s{S_T1}', f's_lshl_b32 s{S_G0+6}, s{S_G0+6}, 16',
        f's_lshl_b32 s{S_G0+7}, s{S_TJ}, 12', f's_add_u32 s{S_G0+6}, s{S_G0+6}, s{S_G0+7}', f's_lshl_b32 s{S_G0+7}, s{S_T2}, 10', f's_add_u32 s{S_G0+6}, s{S_G0+6}, s{S_G0+7}')
    a.e('v_lshlrev_b32 v16, 2, v5', 'v_sub_u32 v16, v16, v4', f's_or_b32 s{S_G0+7}, s{S_TI}, s{S_T1}', f's_cmp_eq_u32 s{S_G0+7}, 0', f's_cselect_b32 s{S_G0+7}, 0, -1')
    for k in range(8):
        a.e(f'v_add_u32 v17, {16 * (k >> 2) + (k & 3) - 1}, v16', f'v_cmp_gt_u32 s[{MK+2*k}:{MK+1+2*k}], 8, v17')
    for k in range(4): a.e(f's_and_b32 s{MK+2*k}, s{MK+2*k}, s{S_G0+7}')
    cs = (32 ** -0.5) * 1.4426950408889634
    a.e(f'v_mov_b32 v18, {f32(cs)}', 'v_mov_b32 v19, 0xff800000')
    a.e('s_waitcnt lgkmcnt(0)', 's_barrier')
    B = [32, 80]
    for hd in range(2):
        b = B[hd]; o = 64 * hd
        a.e(f'ds_read_b128 {vr(b,4)}, v10 offset:{o}', f'ds_read_b128 {vr(b+4,4)}, v8 offset:{o}', f'ds_read_b128 {vr(b+8,4)}, v9 offset:{o}')
    for hd in range(2):
        b = B[hd]; o = 64 * hd
        for dt in range(2): a.e(f'ds_read_b64_tr_b16 {vr(b+12+4*dt,2)}, v14 offset:{o+8*dt}', f'ds_read_b64_tr_b16 {vr(b+14+4*dt,2)}, v15 offset:{o+8*dt}')
    for hd in range(2):
        b = B[hd]
        a.e(f's_waitcnt lgkmcnt({11 - 3*hd})', f'{MF16} {vr(b+20,4)}, {vr(b+4,4)}, {vr(b,4)}, 0', f'{MF16} {vr(b+24,4)}, {vr(b+8,4)}, {vr(b,4)}, 0')
    def both(f):
        for x, y in zip(f(B[0]), f(B[1])): a.e(x, y)
    both(lambda b: [f'v_cndmask_b32 v{b+20+k}, v19, v{b+20+k}, s[{MK+2*k}:{MK+1+2*k}]' for k in range(8)])
    both(lambda b: [f'v_max3_f32 v{b+28}, v{b+20}, v{b+21}, v{b+22}', f'v_max3_f32 v{b+29}, v{b+23}, v{b+24}, v{b+25}',
                    f'v_max3_f32 v{b+28}, v{b+28}, v{b+26}, v{b+27}', f'v_max_f32 v{b+28}, v{b+28}, v{b+29}', f'v_mov_b32 v{b+29}, v{b+28}',
                    f'v_permlane16_swap_b32 v{b+28}, v{b+29}', f'v_max_f32 v{b+28}, v{b+28}, v{b+29}', f'v_mov_b32 v{b+29}, v{b+28}',
                    f'v_permlane32_swap_b32 v{b+28}, v{b+29}', f'v_max_f32 v{b+28}, v{b+28}, v{b+29}', f'v_mul_f32 v{b+28}, v18, v{b+28}'])
    both(lambda b: [f'v_fma_f32 v{b+20+k}, v{b+20+k}, v18, -v{b+28}' for k in range(8)])
    both(lambda b: [f'v_exp_f32 v{b+20+k}, v{b+20+k}' for k in range(8)])
    both(lambda b: [f'v_pk_add_f32 {vr(b+28,2)}, {vr(b+20,2)}, {vr(b+22,2)}', f'v_pk_add_f32 {vr(b+30,2)}, {vr(b+24,2)}, {vr(b+26,2)}',
                    f'v_pk_add_f32 {vr(b+28,2)}, {vr(b+28,2)}, {vr(b+30,2)}', f'v_add_f32 v{b+28}, v{b+28}, v{b+29}', f'v_mov_b32 v{b+29}, v{b+28}',
                    f'v_permlane16_swap_b32 v{b+28}, v{b+29}', f'v_add_f32 v{b+28}, v{b+28}, v{b+29}', f'v_mov_b32 v{b+29}, v{b+28}',
                    f'v_permlane32_swap_b32 v{b+28}, v{b+29}', f'v_add_f32 v{b+28}, v{b+28}, v{b+29}', f'v_rcp_f32 v{b+28}, v{b+28}'])
    both(lambda b: [f'v_pk_mul_f32 {vr(b+20+e,2)}, {vr(b+20+e,2)}, {vr(b+28,2)} op_sel_hi:[1,0]' for e in range(0, 8, 2)])
    both(lambda b: [f'v_cvt_pk_bf16_f32 v{b+32+e}, v{b+20+2*e}, v{b+21+2*e}' for e in range(4)])
    a.e('s_waitcnt lgkmcnt(0)')
    both(lambda b: [f'{MF16} {vr(b+36+4*dt,4)}, {vr(b+12+4*dt,4)}, {vr(b+32,4)}, 0' for dt in range(2)])
    both(lambda b: [f'v_cvt_pk_bf16_f32 v{b+e}, v{b+36+2*e}, v{b+37+2*e}' for e in range(4)])
    for hd in range(2): a.e(f'buffer_store_dwordx4 {vr(B[hd],4)}, v13, {S4(SRD_D)}, s{S_G0+6} offen offset:{2048*hd} {SC}')
    a.e(f's_cmp_ge_u32 s{S_WAVE}, 4', 's_cbranch_scc1 L_k1done')

    ACC = 48; RES = 96
    def acc2(t, b): return ACC + 16 * b + 4 * t
    a.e(f's_lshl_b32 s{S_T0}, s{S_TI}, 2', f's_add_u32 s{S_T0}, s{S_T0}, s{S_WAVE}', f's_lshl_b32 s{S_BA}, s{S_T0}, 16', f's_lshl_b32 s{S_T1}, s{S_T0}, 5',
        'v_lshlrev_b32 v13, 1, v4', f'v_add_u32 v13, s{S_T1}, v13',
        'v_lshlrev_b32 v12, 11, v13', 'v_lshl_add_u32 v12, v3, 4, v12', f's_lshl_b32 s{S_T0}, s{S_TJ}, 7', f'v_add_u32 v12, s{S_T0}, v12', 'v_lshlrev_b32 v14, 4, v0')
    srd(a, SRD_A, P_WL, O_OFF, XB)
    sel(a, SRD_C, P_X, 0, P_WS, X2_OFF, XB)
    srd(a, SRD_B, P_WL, ST_OFF, 16 * 2048 * 8)
    tr128_addr(a, [8, 9, 10, 11], WO_SLOTS[0], 16, 17)
    a.e('v_add_u32 v16, v13, v2', 'v_lshlrev_b32 v16, 3, v16', f's_lshl_b32 s{S_T0}, s{S_TJ}, 14', f'v_add_u32 v112, s{S_T0}, v16',
        'v_lshrrev_b32 v17, 5, v0', 'v_lshlrev_b32 v17, 17, v17', 'v_add_u32 v113, v16, v17')
    a.e(f's_lshl_b32 s{S_T0}, s{S_WAVE}, 12', 'v_lshlrev_b32 v16, 8, v4', 'v_lshl_add_u32 v16, v5, 3, v16', f'v_add_u32 v16, s{S_T0}, v16',
        'v_and_b32 v17, 1, v4', 'v_bfe_u32 v18, v4, 2, 1', 'v_lshl_or_b32 v17, v18, 1, v17', 'v_lshl_add_u32 v114, v17, 5, v16',
        f's_lshl_b32 s{S_G0}, s{S_TJ}, 8', f's_lshl_b32 s{S_T1}, s{S_TI}, 2', f's_add_u32 s{S_G0}, s{S_G0}, s{S_T1}', f's_add_u32 s{S_G0}, s{S_G0}, s{S_WAVE}', f's_lshl_b32 s{S_G0}, s{S_G0}, 10')
    tr128_addr(a, [115], 0, 16, 17)
    a.e(f'v_add_u32 v115, s{S_T0}, v115')
    for t in range(1, 4): a.e(f's_add_u32 s{S_G0+t}, s{S_G0}, {t*65536}')
    for p in range(1, 8): a.e(f's_mov_b32 s{86+p}, {p*16384}')
    direct_setup(a, 16)
    poll_setup(a, SRD_E, 119, 0, 0, [f's_lshl_b32 s{S_T0}, s{S_TI}, 4'], 16)
    a.e('s_waitcnt vmcnt(0)', 's_barrier', *stamp(2))
    poll(a, SRD_E, 119, 16)
    a.e(*stamp(3))
    for b in range(2):
        for P in range(2): a.e(f'buffer_load_dwordx4 {vr(RES+8*b+4*P,4)}, v12, {S4(SRD_C)}, 0 offen offset:{b*2048+P*64} {LDF}')
    def init2(out):
        a.e(f's_waitcnt vmcnt({out})')
        for b in range(2):
            for P in range(2):
                r = RES + 8 * b + 4 * P
                a.e(f'v_permlane16_swap_b32 v{r}, v{r+2}', f'v_permlane16_swap_b32 v{r+1}, v{r+3}')
        for b in range(2):
            for P in range(2):
                r = RES + 8 * b + 4 * P
                a.e(*unpack4(r, r + 1, acc2(2 * P, b)), *unpack4(r + 2, r + 3, acc2(2 * P + 1, b)))
    mf2 = lambda h, bb: [f'{MF16} {vr(acc2(t,b),4)}, {vr(16+16*h+4*t,4)}, {vr(bb+4*b,4)}, {vr(acc2(t,b),4)}' for t in range(4) for b in range(2)]
    c_direct(a, 16, 0, 0, w_reads([8, 9, 10, 11]), mf2, [8, 9, 10, 11], DR, D, 14, init2, 4, slots=WO_SLOTS)
    a.e('s_barrier')
    srd(a, SRD_D, P_WL, X1_OFF, XB)
    srd(a, SRD_E, P_WL, H_OFF, XB)
    for b in range(2):
        d = acc2(0, b); T = 16 + 4 * b
        a.e(f'v_pk_add_f32 {vr(T,2)}, {vr(d,2)}, {vr(d+2,2)}', f'v_pk_mul_f32 {vr(T+2,2)}, {vr(d,2)}, {vr(d,2)}', f'v_pk_fma_f32 {vr(T+2,2)}, {vr(d+2,2)}, {vr(d+2,2)}, {vr(T+2,2)}')
        for e in range(4, 16, 2):
            a.e(f'v_pk_add_f32 {vr(T,2)}, {vr(T,2)}, {vr(d+e,2)}', f'v_pk_fma_f32 {vr(T+2,2)}, {vr(d+e,2)}, {vr(d+e,2)}, {vr(T+2,2)}')
        a.e(f'v_add_f32 v{24+b}, v{T}, v{T+1}', f'v_add_f32 v{26+b}, v{T+2}, v{T+3}')
    a.e('v_permlane16_swap_b32 v24, v25', 'v_permlane16_swap_b32 v26, v27', 'v_add_f32 v28, v24, v25', 'v_add_f32 v29, v26, v27',
        'v_mov_b32 v30, v28', 'v_mov_b32 v31, v29', 'v_permlane32_swap_b32 v28, v30', 'v_permlane32_swap_b32 v29, v31',
        'v_add_f32 v28, v28, v30', 'v_add_f32 v29, v29, v31', 'v_and_b32 v29, 0x7fffffff, v29',
        's_mov_b32 exec_hi, 0', f'buffer_store_dwordx2 v[28:29], v112, {S4(SRD_B)}, 0 offen {SC}', 's_mov_b64 exec, -1')
    for b in range(2):
        for t in range(4):
            r = RES + 8 * b + 2 * t; d = acc2(t, b)
            a.e(f'v_cvt_pk_bf16_f32 v{r}, v{d}, v{d+1}', f'v_cvt_pk_bf16_f32 v{r+1}, v{d+2}, v{d+3}')
    for b in range(2):
        for P in range(2):
            r = RES + 8 * b + 4 * P
            a.e(f'v_permlane16_swap_b32 v{r}, v{r+2}', f'v_permlane16_swap_b32 v{r+1}, v{r+3}')
    for t in range(1, 4): a.e(f'v_xor_b32 v{115+t}, {t << 5}, v115', f'v_xor_b32 v{120+t}, {t << 5}, v114')
    a.e('v_mov_b32 v120, v114', f's_mov_b32 s{S_CNT}, 0')
    body = ['k2_poll:'] + [f'buffer_load_dwordx2 {vr(32+2*p,2)}, v113, {S4(SRD_B)}, {"0" if p == 0 else f"s{86+p}"} offen {SC}' for p in range(8)]
    body += ['s_waitcnt vmcnt(0)', 'v_min3_i32 v16, v33, v35, v37', 'v_min3_i32 v17, v39, v41, v43', 'v_min3_i32 v16, v16, v45, v47',
             'v_min_i32 v16, v16, v17', 'v_cmp_gt_i32 vcc, 0, v16', f's_add_u32 s{S_CNT}, s{S_CNT}, 1', f's_cmp_gt_u32 s{S_CNT}, {SPIN}',
             's_cbranch_scc1 k2_pdone', 's_cbranch_vccnz k2_poll']
    a.loop(body)
    a.e('k2_pdone:', *stamp(6))
    for b in range(2):
        for P in range(2): a.e(f'buffer_store_dwordx4 {vr(RES+8*b+4*P,4)}, v12, {S4(SRD_D)}, 0 offen offset:{b*2048+P*64} {SC}')
    a.e('v_pk_add_f32 v[32:33], v[32:33], v[34:35]', 'v_pk_add_f32 v[36:37], v[36:37], v[38:39]', 'v_pk_add_f32 v[40:41], v[40:41], v[42:43]',
        'v_pk_add_f32 v[44:45], v[44:45], v[46:47]', 'v_pk_add_f32 v[32:33], v[32:33], v[36:37]', 'v_pk_add_f32 v[40:41], v[40:41], v[44:45]',
        'v_pk_add_f32 v[32:33], v[32:33], v[40:41]', 'v_mov_b32 v34, v32', 'v_mov_b32 v35, v33',
        'v_permlane32_swap_b32 v32, v34', 'v_permlane32_swap_b32 v33, v35', 'v_add_f32 v32, v32, v34', 'v_add_f32 v33, v33, v35')
    stats_finish(a, 32, 33, 36, True)
    a.e('v_mov_b32 v34, v32', 'v_mov_b32 v35, v33', 'v_permlane16_swap_b32 v32, v34', 'v_permlane16_swap_b32 v33, v35')
    for b in range(2):
        st = vr(32 + 2 * b, 2); d = acc2(0, b); o = 160 + 8 * b
        for e in range(0, 16, 2): a.e(f'v_pk_add_f32 {vr(d+e,2)}, {vr(d+e,2)}, {st} op_sel_hi:[1,0] neg_lo:[0,1] neg_hi:[0,1]')
        for e in range(0, 16, 2): a.e(f'v_pk_mul_f32 {vr(d+e,2)}, {vr(d+e,2)}, {st} op_sel:[0,1] op_sel_hi:[1,1]')
        for t in range(4):
            a.e(f'v_cvt_pk_bf16_f32 v{o+2*t}, v{d+4*t}, v{d+4*t+1}', f'v_cvt_pk_bf16_f32 v{o+2*t+1}, v{d+4*t+2}, v{d+4*t+3}',
                f'ds_write_b64 v{120+t}, {vr(o+2*t,2)} offset:{128*b}')
    a.e('s_waitcnt lgkmcnt(0)')
    for t in range(4): a.e(f'ds_read_b64_tr_b16 {vr(176+4*t,2)}, v{115+t}', f'ds_read_b64_tr_b16 {vr(178+4*t,2)}, v{115+t} offset:512')
    for t in range(4): a.e(f's_waitcnt lgkmcnt({6-2*t})', f'buffer_store_dwordx4 {vr(176+4*t,4)}, v14, {S4(SRD_E)}, s{S_G0+t} offen {SC}')
    a.e('s_cmp_ge_u32 s2, 224', 's_cbranch_scc1 C_k3skip')

    ACC3 = 80
    def acc3(tf, td): return ACC3 + 16 * td + 4 * tf
    tiles(a, 7, 2)
    a.e(f's_and_b32 s{S_G0+2}, s{S_WAVE}, 1', f's_lshr_b32 s{S_T2}, s{S_WAVE}, 1',
        f's_lshl_b32 s{S_T0}, s{S_TJ}, 8', f's_lshl_b32 s{S_G0}, s{S_G0+2}, 7', f's_add_u32 s{S_T0}, s{S_T0}, s{S_G0}',
        'v_lshlrev_b32 v16, 3, v5', f'v_add_u32 v16, s{S_T0}, v16')
    srd(a, SRD_C, P_B1, 0, 3584 * 2)
    for tf in range(4): a.e(f'buffer_load_dwordx2 {vr(144+2*tf,2)}, v16, {S4(SRD_C)}, 0 offen offset:{32*tf}')
    srd(a, SRD_D, P_WL, U_OFF, UB)
    a.e('v_lshl_add_u32 v17, v5, 3, v6', 'v_lshlrev_b32 v17, 8, v17', 'v_lshl_add_u32 v17, v7, 3, v17', 'v_lshl_or_b32 v18, v2, 2, v6', 'v_lshl_add_u32 v17, v18, 5, v17',
        f's_lshl_b32 s{S_T0}, s{S_G0+2}, 7', f's_add_u32 s{S_T0}, s{S_T0}, 16384', f'v_xor_b32 v18, s{S_T0}, v17', f's_lshl_b32 s{S_T0}, s{S_T2}, 13', f'v_add_u32 v12, s{S_T0}, v14')
    for t in range(4): a.e(f'v_xor_b32 v{8+t}, {t << 5}, v18')
    a.e('v_bfe_u32 v17, v4, 2, 1', 'v_lshlrev_b32 v17, 10, v17', 'v_lshl_add_u32 v17, v3, 8, v17', 'v_lshrrev_b32 v18, 3, v4', 'v_lshl_add_u32 v17, v18, 6, v17',
        'v_lshl_add_u32 v152, v7, 4, v17', 'v_add_u32 v153, 128, v152',
        f's_lshl_b32 s{S_T0}, s{S_TI}, 1', f's_add_u32 s{S_T0}, s{S_T0}, s{S_T2}', f's_mul_i32 s{S_T0}, s{S_T0}, 224',
        f's_lshl_b32 s{S_G0}, s{S_TJ}, 2', f's_add_u32 s{S_T0}, s{S_T0}, s{S_G0}', f's_lshl_b32 s{S_G0}, s{S_G0+2}, 1', f's_add_u32 s{S_T0}, s{S_T0}, s{S_G0}',
        f's_lshl_b32 s{S_G0}, s{S_T0}, 11', f's_add_u32 s{S_G0+1}, s{S_G0}, {112*2048}')
    a.e('s_waitcnt vmcnt(0)', 's_barrier', *stamp(7))
    for tf in range(4):
        a.e(*unpack4(144 + 2 * tf, 145 + 2 * tf, acc3(tf, 0)))
        for td in range(1, 4): a.e(f'v_mov_b64 {vr(acc3(tf,td),2)}, {vr(acc3(tf,0),2)}', f'v_mov_b64 {vr(acc3(tf,td)+2,2)}, {vr(acc3(tf,0)+2,2)}')
    reads = [[], []]; mf = [[], []]
    for h in range(2):
        F = 16 + 32 * h
        rd = lambda dst, av: [f'ds_read_b64_tr_b16 {vr(dst,2)}, v{av} offset:{h*8192}', f'ds_read_b64_tr_b16 {vr(dst+2,2)}, v{av} offset:{h*8192+1024}']
        for t in range(4): reads[h] += rd(F + 4 * t, 8 + t) + [f'ds_read_b128 {vr(F+16+4*t,4)}, v12 offset:{(2*t+h)*1024}']
        for tf, td in sorted([(tf, td) for tf in range(4) for td in range(4)], key=lambda x: (max(x), x)):
            mf[h].append(f'{MF16} {vr(acc3(tf,td),4)}, {vr(F+4*tf,4)}, {vr(F+16+4*td,4)}, {vr(acc3(tf,td),4)}')
    c_loop(a, 32, 5, 32768, reads, mf, list(range(8, 13)), True, 8)
    c1 = -2.0 * 0.7978845608028654 * 1.4426950408889634
    a.e(f'v_mov_b32 v16, {f32(c1)}', f'v_mov_b32 v17, {f32(c1 * 0.044715)}')
    k = 0
    for td in range(4):
        for P in range(2):
            d = acc3(2 * P, td); T = 24 + 16 * (k & 1); k += 1
            O = 160 + 4 * k
            for e in range(0, 8, 2): a.e(f'v_pk_mul_f32 {vr(T+e,2)}, {vr(d+e,2)}, {vr(d+e,2)}')
            for e in range(0, 8, 2): a.e(f'v_pk_fma_f32 {vr(T+e,2)}, {vr(T+e,2)}, v[16:17], v[16:17] op_sel:[0,1,0] op_sel_hi:[1,1,0]')
            for e in range(0, 8, 2): a.e(f'v_pk_mul_f32 {vr(T+e,2)}, {vr(T+e,2)}, {vr(d+e,2)}')
            for e in range(8): a.e(f'v_exp_f32 v{T+e}, v{T+e}')
            for e in range(0, 8, 2): a.e(f'v_pk_add_f32 {vr(T+e,2)}, {vr(T+e,2)}, 1.0 op_sel_hi:[1,0]')
            for e in range(8): a.e(f'v_rcp_f32 v{T+e}, v{T+e}')
            for e in range(0, 8, 2): a.e(f'v_pk_mul_f32 {vr(T+e,2)}, {vr(T+e,2)}, {vr(d+e,2)}')
            for e in range(4): a.e(f'v_cvt_pk_bf16_f32 v{O+e}, v{T+2*e}, v{T+2*e+1}')
            a.e(f'v_permlane16_swap_b32 v{O}, v{O+2}', f'v_permlane16_swap_b32 v{O+1}, v{O+3}')
            a.e(f'buffer_store_dwordx4 {vr(O,4)}, v{152+(td&1)}, {S4(SRD_D)}, s{S_G0+(td>>1)} offen offset:{2048*P} {SC}')
    a.e('C_k3skip:'); a.flush_hist()

    def acc4(aa, n): return ACC + 8 * n + 4 * aa
    tiles(a, 8, 2)
    a.e(f's_lshl_b32 s{S_T0}, s{S_TJ}, 6', f'v_add_u32 v13, s{S_T0}, v4', 'v_lshlrev_b32 v12, 11, v13', 'v_lshl_add_u32 v12, v5, 4, v12',
        f's_lshl_b32 s{S_T0}, s{S_TI}, 8', f's_lshl_b32 s{S_T1}, s{S_WAVE}, 6', f's_add_u32 s{S_T0}, s{S_T0}, s{S_T1}',
        f'v_add_u32 v12, s{S_T0}, v12', 'v_lshlrev_b32 v13, 1, v13', 'v_lshlrev_b32 v14, 4, v0',
        f's_lshl_b32 s{S_BA}, s{S_TI}, 2', f's_add_u32 s{S_BA}, s{S_BA}, s{S_WAVE}', f's_mul_i32 s{S_BA}, s{S_BA}, {56*4096}',
        's_mov_b32 s45, 32768', 's_mov_b32 s46, 65536', 's_mov_b32 s47, 98304')
    so = ['0', 's45', 's46', 's47']
    srd(a, SRD_A, P_WL, U_OFF, UB)
    srd(a, SRD_C, P_WL, X1_OFF, XB)
    srd(a, SRD_B, P_B2, 0, 4096)
    for n in range(4): a.e(f'buffer_load_ushort v{RES+16+2*n}, v13, {S4(SRD_B)}, 0 offen offset:{32*n}')
    tr128_addr(a, [8, 9, 10, 11], K4_BASE, 16, 17)
    direct_setup(a, 56)
    poll_setup(a, SRD_E, 15, 2, 0, [f's_lshl_b32 s{S_T0}, s{S_TI}, 5'], 28)
    a.e('s_waitcnt vmcnt(0)', 's_barrier', *stamp(10))
    if PF2:
        a.e('s_cmp_lt_u32 s2, 224', 's_cbranch_scc1 C_nopf', f's_cmp_lg_u32 s{S_VAR}, 0', 's_cbranch_scc1 C_nopf')
        srd(a, SRD_D, P_W2, 0, 3584 * 2048 * 2)
        a.e(f's_sub_u32 s{S_T0}, s2, 224', f's_lshl_b32 s{S_T0}, s{S_T0}, 2', f's_add_u32 s{S_T0}, s{S_T0}, s{S_WAVE}', f's_lshl_b32 s{S_T0}, s{S_T0}, 13', 'v_lshlrev_b32 v17, 7, v0')
        for j in range(14):
            a.e(f'buffer_load_dword v18, v17, {S4(SRD_D)}, s{S_T0} offen', f's_add_u32 s{S_T0}, s{S_T0}, {128*8192}', *(['s_waitcnt vmcnt(1)'] if j else []))
        a.e('C_nopf:')
    poll(a, SRD_E, 15, 16)
    a.e(*stamp(11))
    for n in range(4): a.e(f'buffer_load_dwordx4 {vr(RES+4*n,4)}, v12, {S4(SRD_C)}, {so[n]} offen {LDF}')
    sel(a, SRD_E, P_WS, X2_OFF, P_OUT, 0, XB)
    srd(a, SRD_B, P_WS, LSTR + RS_OFF, 8 * 2048 * 8)
    def init4(out):
        a.e(f's_waitcnt vmcnt({out})')
        for n in range(4):
            a.e(f'v_lshlrev_b32 v{RES+16+2*n}, 16, v{RES+16+2*n}')
            a.e(*unpack4(RES + 4 * n, RES + 4 * n + 1, acc4(0, n)), *unpack4(RES + 4 * n + 2, RES + 4 * n + 3, acc4(1, n)))
            for e in range(0, 8, 2): a.e(f'v_pk_add_f32 {vr(acc4(0,n)+e,2)}, {vr(acc4(0,n)+e,2)}, {vr(RES+16+2*n,2)} op_sel_hi:[1,0]')
    mf4 = lambda h, b: [f'{MF16} {vr(acc4(aa,n),4)}, {vr(b+4*aa,4)}, {vr(16+16*h+4*n,4)}, {vr(acc4(aa,n),4)}' for n in range(4) for aa in range(2)]
    c_direct(a, 56, K4_NS, 8192, w_reads([8, 9, 10, 11]), mf4, [8, 9, 10, 11], DR, D, 14, init4, 12)
    for n in range(4):
        for e in range(4): a.e(f'v_cvt_pk_bf16_f32 v{RES+4*n+e}, v{acc4(0,n)+2*e}, v{acc4(0,n)+2*e+1}')
        a.e(f'buffer_store_dwordx4 {vr(RES+4*n,4)}, v12, {S4(SRD_E)}, {so[n]} offen {SC}')
    a.e(f's_cmp_lg_u32 s{S_VAR}, 0', 's_cbranch_scc1 C_end')
    for n in range(4): a.e(*unpack4(RES + 4 * n, RES + 4 * n + 1, acc4(0, n)), *unpack4(RES + 4 * n + 2, RES + 4 * n + 3, acc4(1, n)))
    for n in range(4):
        d = acc4(0, n); T = 16 + 4 * n
        a.e(f'v_pk_add_f32 {vr(T,2)}, {vr(d,2)}, {vr(d+2,2)}', f'v_pk_mul_f32 {vr(T+2,2)}, {vr(d,2)}, {vr(d,2)}', f'v_pk_fma_f32 {vr(T+2,2)}, {vr(d+2,2)}, {vr(d+2,2)}, {vr(T+2,2)}')
        for e in (4, 6): a.e(f'v_pk_add_f32 {vr(T,2)}, {vr(T,2)}, {vr(d+e,2)}', f'v_pk_fma_f32 {vr(T+2,2)}, {vr(d+e,2)}, {vr(d+e,2)}, {vr(T+2,2)}')
        a.e(f'v_add_f32 v{32+n}, v{T}, v{T+1}', f'v_add_f32 v{36+n}, v{T+2}, v{T+3}')
    for b in (32, 36): a.e(f'v_permlane16_swap_b32 v{b}, v{b+1}', f'v_permlane16_swap_b32 v{b+2}, v{b+3}')
    for b in (32, 36): a.e(f'v_add_f32 v{b}, v{b}, v{b+1}', f'v_add_f32 v{b+2}, v{b+2}, v{b+3}')
    a.e('v_permlane32_swap_b32 v32, v34', 'v_permlane32_swap_b32 v36, v38', 'v_add_f32 v40, v32, v34', 'v_add_f32 v41, v36, v38',
        'v_lshlrev_b32 v42, 3, v0', f's_lshl_b32 s{S_T0}, s{S_WAVE}, 9', f's_add_u32 s{S_T0}, s{S_T0}, {K4_SCR}', f'v_add_u32 v43, s{S_T0}, v42',
        'ds_write_b64 v43, v[40:41]', 's_waitcnt lgkmcnt(0)', 's_barrier',
        f's_cmp_lg_u32 s{S_WAVE}, 0', 's_cbranch_scc1 C_nost',
        'ds_read_b64 v[44:45], v43 offset:512', 'ds_read_b64 v[46:47], v43 offset:1024', 'ds_read_b64 v[48:49], v43 offset:1536',
        f's_lshl_b32 s{S_T0}, s{S_TI}, 14', f's_lshl_b32 s{S_T1}, s{S_TJ}, 9', f's_add_u32 s{S_T0}, s{S_T0}, s{S_T1}', 's_waitcnt lgkmcnt(0)',
        'v_pk_add_f32 v[40:41], v[40:41], v[44:45]', 'v_pk_add_f32 v[46:47], v[46:47], v[48:49]', 'v_pk_add_f32 v[40:41], v[40:41], v[46:47]',
        f'buffer_store_dwordx2 v[40:41], v42, {S4(SRD_B)}, s{S_T0} offen {SC}', 'C_nost:', 's_nop 1')
    k1_setup_c()
    a.e('s_waitcnt vmcnt(0)', 's_barrier', *stamp(14))
    a.e(f's_mov_b32 s{S_VAR}, 1', f's_add_u32 s{P_WL}, s{P_WS}, {LSTR}', f's_addc_u32 s{P_WL+1}, s{P_WS+1}, 0', 's_branch C_top')
    a.e('C_end:'); dump(a)
    a.e('s_endpgm')

    gx = dict(sg=S_G0, dmas=[(8 + i, 1024 * i, 'A', None) for i in range(4)])
    gw = [dict(sg=S_G0 + 2 + m, dmas=[(13 + 2 * m, 0, 'B', None), (14 + 2 * m, 1024, 'B', None)]) for m in range(3)]
    gh = dict(sg=S_G0 + 1, dmas=[(12, 0, 'A', 's[52:53]')])
    def k1_setup_l(layer):
        tiles(a, 8, 1)
        a.e(f's_mov_b32 s{S_T2}, s{S_LWV}')
        dma_w128(a, [13, 14], 6144, swz128(a), 16, 2, 3, 4)
        a.e('v_add_u32 v15, 2048, v13', 'v_add_u32 v16, 2048, v14', 'v_add_u32 v17, 4096, v13', 'v_add_u32 v18, 4096, v14',
            f's_lshl_b32 s{S_G0+2}, s{S_T2}, 11', f's_add_u32 s{S_G0+2}, s{S_G0+2}, {XT}', f's_add_u32 s{S_G0+3}, s{S_G0+2}, 8192', f's_add_u32 s{S_G0+4}, s{S_G0+2}, 16384',
            f's_lshl_b32 s{S_BB}, s{S_TJ}, 7')
        if layer == 0: a.e('s_waitcnt lgkmcnt(0)')
        srd(a, SRD_B, P_WQKV, 0, 1024 * 3072 * 2)
        pre_w(a, 16, 3, 2, ST1, 0, 64 * 6144, gw)
        def xaddr(v, comp):
            a.e('v_lshrrev_b32 v2, 3, v0', f'v_add_u32 v2, s{S_T0}, v2', 'v_bfe_u32 v3, v2, 1, 3', 'v_and_b32 v4, 7, v0', 'v_xor_b32 v3, v3, v4', 'v_lshlrev_b32 v3, 4, v3',
                f'v_add_u32 v2, s{S_T1}, v2', 'v_max_i32 v2, 0, v2', 'v_lshlrev_b32 v2, 11, v2', f'v_add_u32 v{v}, v2, v3')
            if comp: a.e(f'v_subrev_u32 v{v}, {comp}, v{v}')
        a.e(f's_lshl_b32 s{S_T1}, s{S_TI}, 7', f's_sub_u32 s{S_T1}, s{S_T1}, 16')
        for i in range(2):
            a.e(f's_lshl_b32 s{S_T0}, s{S_T2}, 5', f's_add_u32 s{S_T0}, s{S_T0}, {16+8*i}')
            xaddr(8 + i, 1024 * i)
            a.e(f'v_add_u32 v{10+i}, {16*2048-2048}, v{8+i}')
        a.e(f's_lshl_b32 s{S_T0}, s{S_T2}, 3'); xaddr(12, 0)
        a.e(f's_lshl_b32 s{S_G0}, s{S_T2}, 12', f's_add_u32 s{S_G0}, s{S_G0}, 2048', f's_lshl_b32 s{S_G0+1}, s{S_T2}, 10', f's_mov_b32 s{S_BA}, 0',
            f's_cmp_eq_u32 s{S_T2}, 0', 's_cselect_b32 s52, 0xffffff00, -1', 's_mov_b32 s53, -1')
        a.e('v_mov_b32 v20, 0x3f803f80', 'v_mov_b32 v21, v20', 'v_mov_b32 v22, v20', 'v_mov_b32 v23, v20', 'v_lshlrev_b32 v24, 4, v0', f'v_add_u32 v25, {2*ST1}, v24',
            's_mov_b64 exec, 0xff', 'ds_write_b128 v24, v[20:23]', f'ds_write_b128 v24, v[20:23] offset:{ST1}', 'ds_write_b128 v25, v[20:23]', 's_mov_b64 exec, -1')
        if layer == 0: srd(a, SRD_A, P_X, 0, XB)
        else: srd(a, SRD_A, P_WS, X2_OFF, XB)
        srd(a, SRD_D, P_WS, layer * LSTR + RS_OFF, 8 * 2048 * 8)
        a.e(f's_lshl_b32 s{S_T0}, s{S_T2}, 6', f'v_add_u32 v26, s{S_T0}, v0', 'v_min_u32 v26, 143, v26', f'v_add_u32 v27, s{S_T1}, v26', 'v_max_i32 v27, 0, v27',
            'v_lshlrev_b32 v27, 3, v27', 'v_lshlrev_b32 v26, 3, v26', f'v_add_u32 v26, {SL}, v26', 's_waitcnt lgkmcnt(0)')
    a.e('L_start:'); a.flush_hist()
    a.e(f's_sub_u32 s{S_LWV}, s{S_WAVE}, 4')
    k1_setup_l(0)
    a.e(f's_mov_b32 s{P_WL}, s{P_WS}', f's_mov_b32 s{P_WL+1}, s{P_WS+1}')
    a.e('L_top:'); a.flush_hist()
    flag_idx(a, 0, S_TI, 16, S_TJ)
    srd(a, SRD_E, P_W1, 0, 2048 * 3584 * 2)
    a.e(f's_lshl_b32 s54, s2, 2', f's_add_u32 s54, s54, s{S_LWV}', f's_mul_i32 s54, s54, {NPF*128}', f's_add_u32 s54, s54, {W1_K0}')
    def pf():
        if not NPF: return []
        l = lab('pf')
        return [f's_cmp_lg_u32 s{S_VAR}, 0', f's_cbranch_scc1 {l}'] + [f's_buffer_load_dword s61, {S4(SRD_E)}, s54 offset:{128*i}' for i in range(NPF)] + \
               [f's_add_u32 s54, s54, {1024*NPF*128}', f'{l}:']
    a.e(f's_cmp_ge_u32 s{S_LWV}, 2', 's_cbranch_scc1 L_k1B')
    l_loop(a, 16, 3, 2, ST1, 0, 128, 64 * 6144, [gh, gx], gw, tail=1, hook=pf)
    a.e('s_branch L_k1t', 'L_k1B:'); a.flush_hist()
    l_loop(a, 16, 3, 2, ST1, 0, 128, 64 * 6144, [gx], gw, tail=1, hook=pf)
    a.e('L_k1t:'); a.flush_hist()
    for p in range(8):
        if p: a.e(f's_mov_b32 s{S_T0}, {p*16384}')
        a.e(f'buffer_load_dwordx2 {vr(30+2*p,2)}, v27, {S4(SRD_D)}, {"0" if p == 0 else f"s{S_T0}"} offen {LDF}')
    a.e(f's_mov_b32 s{S_T2}, s{S_LWV}')
    dma_w128(a, [130, 131], 2048, swz128(a), 16, 2, 3, 4)
    srd(a, SRD_B, P_WO, 0, 1024 * 1024 * 2)
    a.e(*INITK, f's_lshl_b32 s{S_G0+8}, s{S_LWV}, 11')
    def wo(t0, t1):
        for t in range(t0, t1):
            a.e(*next_k(16), f's_lshl_b32 s{S_OB}, s{S_K}, 17', f's_add_u32 s{S_OB}, s{S_OB}, s{S_BB}', f's_add_u32 m0, s{S_G0+8}, {WO_SLOTS[t]}',
                f'buffer_load_dwordx4 v130, {S4(SRD_B)}, s{S_OB} offen lds', f'buffer_load_dwordx4 v131, {S4(SRD_B)}, s{S_OB} offen offset:1024 lds')
    wo(0, 4)
    a.e('s_waitcnt vmcnt(16)', 's_barrier')
    wo(4, 7)
    a.e('s_waitcnt vmcnt(14)')
    a.e('v_pk_add_f32 v[30:31], v[30:31], v[32:33]', 'v_pk_add_f32 v[34:35], v[34:35], v[36:37]', 'v_pk_add_f32 v[38:39], v[38:39], v[40:41]',
        'v_pk_add_f32 v[42:43], v[42:43], v[44:45]', 'v_pk_add_f32 v[30:31], v[30:31], v[34:35]', 'v_pk_add_f32 v[38:39], v[38:39], v[42:43]',
        'v_pk_add_f32 v[30:31], v[30:31], v[38:39]')
    stats_finish(a, 30, 31, 32, False)
    a.e('ds_write_b64 v26, v[30:31]')
    lane_fields(a)
    a.e('s_waitcnt lgkmcnt(0)', 's_barrier')
    wo(7, 12)
    a.e('s_branch attn')
    a.e('L_k1done:'); a.flush_hist()
    a.e('s_waitcnt vmcnt(0)', 's_barrier')
    publish(a, 2)
    wo(12, 16)
    flag_idx(a, 1, S_TJ, 16, S_TI)
    a.e('s_waitcnt vmcnt(0)', 's_barrier')
    g4 = [dict(sg=S_G0 + 1, dmas=[(9, 0, 'B', None), (10, 1024, 'B', None)])]
    def k4_setup_l():
        tiles(a, 8, 2)
        a.e(f's_mov_b32 s{S_T2}, s{S_LWV}', f's_lshl_b32 s{S_G0+1}, s{S_T2}, 11')
        dma_w128(a, [9, 10], 4096, swz128(a), 16, 2, 3, 4)
        a.e(f's_lshl_b32 s{S_BB}, s{S_TJ}, 7')
        srd(a, SRD_B, P_W2, 0, 3584 * 2048 * 2)
    a.e('s_cmp_ge_u32 s2, 224', 's_cbranch_scc1 L_k3skip')
    tiles(a, 7, 2)
    a.e(f's_lshl_b32 s{S_G0}, s{S_LWV}, 12', f's_add_u32 s{S_G0+1}, s{S_G0}, 16384', 'v_lshlrev_b32 v8, 4, v0', f'v_add_u32 v13, {65536-2048}, v8',
        'v_lshrrev_b32 v2, 4, v0', 'v_lshlrev_b32 v3, 1, v2', 'v_and_b32 v4, 15, v0', 'v_xor_b32 v3, v3, v4', 'v_lshlrev_b32 v3, 4, v3',
        f's_lshl_b32 s{S_T0}, s{S_LWV}, 4', f'v_add_u32 v2, s{S_T0}, v2', f's_mov_b32 s{S_T0}, 7168', f'v_mul_lo_u32 v2, v2, s{S_T0}',
        'v_add_u32 v9, v2, v3', 'v_xor_b32 v3, 128, v3', 'v_add_u32 v11, v2, v3',
        f'v_add_u32 v10, {4*7168-1024}, v9', f'v_add_u32 v12, {3*(4*7168-1024)}, v11', f'v_add_u32 v11, {2*(4*7168-1024)}, v11',
        f's_lshl_b32 s{S_BA}, s{S_TI}, 2', f's_add_u32 s{S_BA}, s{S_BA}, s{S_LWV}', f's_lshl_b32 s{S_BA}, s{S_BA}, 17', f's_lshl_b32 s{S_BB}, s{S_TJ}, 8')
    srd(a, SRD_A, P_WL, H_OFF, XB)
    srd(a, SRD_B, P_W1, 0, 2048 * 3584 * 2)
    g3a = [dict(sg=S_G0, dmas=[(8 if i < 2 else 13, 1024 * i, 'A', None) for i in range(4)])]
    g3w = [dict(sg=S_G0 + 1, dmas=[(9 + i, 1024 * i, 'B', None) for i in range(4)])]
    poll_setup(a, SRD_C, 14, 1, 0, [f's_lshl_b32 s{S_T0}, s{S_TI}, 5'], 32)
    a.e('s_barrier')
    if not LATEW: pre_w(a, 32, 5, 3, 32768, 0, 64 * 7168, g3w)
    a.e('s_barrier')
    publish(a, 2)
    if LATEW: pre_w(a, 32, 5, 3, 32768, 0, 64 * 7168, g3w)
    flag_idx(a, 2, S_TI, 32, S_TJ)
    poll(a, SRD_C, 14, 15)
    l_loop(a, 32, 5, 3, 32768, 0, 2048, 64 * 7168, g3a, g3w)
    k4_setup_l()
    a.e('s_branch L_k4', 'L_k3skip:'); a.flush_hist()
    k4_setup_l()
    a.e('s_barrier')
    a.e('L_k4:'); a.flush_hist()
    pre_w(a, 56, K4_NS, K4_AH, 8192, K4_BASE, 64 * 4096, g4)
    a.e('s_barrier')
    publish(a, 2)
    flag_idx(a, 3, S_TJ, 8, S_TI)
    l_loop(a, 56, K4_NS, K4_AH, 8192, K4_BASE, 0, 64 * 4096, [], g4)
    a.e(f's_cmp_lg_u32 s{S_VAR}, 0', 's_cbranch_scc1 L_end')
    k1_setup_l(1)
    poll_setup(a, SRD_C, 28, 3, 0, [f's_lshl_b32 s{S_T0}, s{S_TI}, 4', f's_sub_u32 s{S_T0}, s{S_T0}, 8'], 24)
    a.e('s_barrier', 's_barrier')
    publish(a, 2)
    poll(a, SRD_C, 28, 29)
    a.e(f's_mov_b32 s{S_VAR}, 1', f's_add_u32 s{P_WL}, s{P_WS}, {LSTR}', f's_addc_u32 s{P_WL+1}, s{P_WS+1}, 0', 's_branch L_top')
    a.e('L_end:', f'{kn}_end:', 's_endpgm')

def dump(a):
    if not PROF: return
    a.e('s_waitcnt vmcnt(0)', *stamp(14), f's_cmp_lg_u32 s{S_WAVE}, 0', 's_cbranch_scc1 nodump', 's_lshl_b32 s58, s2, 8', f's_add_u32 s58, s58, {PR_OFF}',
        'v_lshlrev_b32 v251, 2, v0', 'v_add_u32 v251, s58, v251', f'global_store_dword v251, v{PV}, s[{P_WS}:{P_WS+1}]', 'nodump:')

def gen_k0(a):
    a.e('.p2align 8', 'k0_kernel:', 's_cmp_ge_u32 s2, 256', 's_cbranch_scc1 k0_end',
        's_load_dwordx16 s[64:79], s[0:1], 0', 's_load_dwordx2 s[84:85], s[0:1], 80',
        'v_lshrrev_b32 v1, 6, v0', 'v_lshlrev_b32 v20, 4, v0', 'v_and_b32 v0, 63, v0', f'v_readfirstlane_b32 s{S_WAVE}, v1',
        's_lshl_b32 s30, s2, 3', f's_add_u32 s30, s30, s{S_WAVE}',
        's_lshl_b32 s31, s30, 11', 'v_lshlrev_b32 v2, 5, v0',
        's_lshl_b32 s32, s2, 2', f's_and_b32 s33, s{S_WAVE}, 3', 's_add_u32 s32, s32, s33', 's_lshl_b32 s32, s32, 13', 'v_lshlrev_b32 v3, 7, v0', 'v_add_u32 v3, s32, v3',
        f'v_subrev_u32 v4, {1024*3072*2}, v3', 's_waitcnt lgkmcnt(0)')
    srd(a, SRD_A, P_X, 0, XB)
    a.e(f'buffer_load_dwordx4 v[8:11], v2, {S4(SRD_A)}, s31 offen', f'buffer_load_dwordx4 v[12:15], v2, {S4(SRD_A)}, s31 offen offset:16')
    KW = int(env('K0WARM', '1'))
    srd(a, SRD_B, P_WQKV, 0, 1024 * 3072 * 2 * KW)
    srd(a, SRD_C, P_WO, 0, 1024 * 1024 * 2 * KW)
    srd(a, SRD_E, P_W1, 0, W1_K0)
    a.e(f's_sub_u32 s33, s{S_WAVE}, 4', 's_lshl_b32 s33, s33, 8', 's_add_u32 s33, s33, s2', 's_lshl_b32 s33, s33, 13', 'v_lshlrev_b32 v7, 7, v0',
        f's_cmp_ge_u32 s{S_WAVE}, 4', 's_cbranch_scc1 k0_nw', f'buffer_load_dword v5, v3, {S4(SRD_B)}, 0 offen', f'buffer_load_dword v6, v4, {S4(SRD_C)}, 0 offen', 's_branch k0_nx',
        'k0_nw:', f'buffer_load_dword v5, v7, {S4(SRD_E)}, s33 offen', 'k0_nx:')
    if CODEPF:
        a.e(f's_cmp_lg_u32 s{S_WAVE}, 7', 's_cbranch_scc1 k0_nc', 's_getpc_b64 s[40:41]', 'k0_pc:', 's_add_u32 s40, s40, mega_kernel-k0_pc', 's_addc_u32 s41, s41, 0',
            's_lshr_b32 s42, s2, 3', 's_lshl_b32 s42, s42, 11', 'v_and_b32 v25, 15, v0', 'v_lshlrev_b32 v25, 7, v25', 'v_add_u32 v25, s42, v25',
            'v_min_u32 v25, mega_end-mega_kernel, v25', 'global_load_dword v26, v25, s[40:41]', 'k0_nc:')
    srd(a, SRD_D, P_WS, 0, 64 * MB)
    a.e(f's_cmp_eq_u32 s{S_WAVE}, 0', 's_cselect_b32 s33, 0, -1', 'v_mov_b32 v16, s33', 'v_mov_b32 v17, s33', 'v_mov_b32 v18, s33', 'v_mov_b32 v19, s33',
        f's_mov_b32 s34, {ST_OFF}', f's_cselect_b32 s34, {FL_OFF}, s34', f's_cmp_eq_u32 s{S_WAVE}, 2', f's_cselect_b32 s34, {LSTR + ST_OFF}, s34', 's_lshl_b32 s35, s2, 10', 's_add_u32 s34, s34, s35',
        'v_lshlrev_b32 v20, 4, v0', f's_cmp_ge_u32 s{S_WAVE}, 3', 's_cbranch_scc1 k0_nr', f'buffer_store_dwordx4 v[16:19], v20, {S4(SRD_D)}, s34 offen', 'k0_nr:')
    a.e('v_mov_b32 v22, 0', 'v_mov_b32 v23, 0', 'v_mov_b32 v21, 0x3f803f80', 'v_lshrrev_b32 v24, 3, v0', 'v_lshlrev_b32 v24, 14, v24', 's_lshl_b32 s36, s30, 3', f's_add_u32 s36, s36, {RS_OFF}',
        's_waitcnt vmcnt(0)')
    for e in range(8): a.e(f'v_dot2c_f32_bf16 v22, v21, v{8+e}', f'v_dot2c_f32_bf16 v23, v{8+e}, v{8+e}')
    for ctl in ('quad_perm:[1,0,3,2]', 'quad_perm:[2,3,0,1]', 'row_half_mirror'):
        a.e(f'v_add_f32_dpp v22, v22, v22 {ctl} row_mask:0xf bank_mask:0xf', f'v_add_f32_dpp v23, v23, v23 {ctl} row_mask:0xf bank_mask:0xf')
    a.e('s_mov_b32 exec_lo, 0x01010101', 's_mov_b32 exec_hi, 0x01010101', f'buffer_store_dwordx2 v[22:23], v24, {S4(SRD_D)}, s36 offen', 'k0_end:', 's_endpgm')

def main(out):
    a = Asm()
    gen_k0(a); a.flush_hist(); gen_mega(a)
    info = {'k0_kernel': (32, 0), 'mega_kernel': (256 if PROF else 224, 163840)}
    ref = open(os.path.join(os.path.dirname(os.path.abspath(__file__)), '..', NAME + '.s.ref')).read().splitlines()
    hdr = [l for l in ref if l.startswith(';') and '@launch' not in l and 'Override launch' not in l and 'grid=ceil' not in l]
    hdr += [f'; @launch kernel={n} grid=(256,1,1) block=(512,1,1) lds={v[1]}' for n, v in info.items()]
    s = '\n'.join(hdr) + '\n; generated by gen/gen2.py\n.amdgcn_target "amdgcn-amd-amdhsa--gfx950"\n.text\n' + a.text() + '.section .rodata,"a"\n'
    for n, (vg, _) in info.items():
        s += f'''.p2align 6
.amdhsa_kernel {n}
  .amdhsa_next_free_vgpr {vg}
  .amdhsa_next_free_sgpr 102
  .amdhsa_accum_offset {vg}
  .amdhsa_group_segment_fixed_size 0
  .amdhsa_kernarg_size 88
  .amdhsa_user_sgpr_count 2
  .amdhsa_user_sgpr_kernarg_segment_ptr 1
  .amdhsa_system_sgpr_workgroup_id_x 1
.end_amdhsa_kernel
'''
    open(out, 'w').write(s)

if __name__ == '__main__':
    main(sys.argv[1])
```

```python
import sys, os, struct
sys.path.insert(0, os.path.dirname(os.path.abspath(__file__)))
from asmlib import *
import gen as G
from gen import (NAME, MB, XB, UB, f32, env, S4, srd, next_k, adv_s, sched, bundle, spread, lane_fields, tr128_addr, swz128, unpack4,
                 dma_w128, stats_finish, MF16, S_VAR, S_WAVE, S_LI, S_LJ, S_PHI, SRD_A, SRD_B, SRD_C, SRD_D, SRD_E, S_TI, S_TJ,
                 S_P, S_W, S_T0, S_K, S_BA, S_BB, S_OA, S_OB, S_LW, S_CNT, S_T1, S_T2, S_DELTA, S_CUR, S_G0,
                 P_X, P_WQKV, P_WO, P_W1, P_B1, P_W2, P_B2, P_OUT, P_WS)

LSTR = 32 * MB
O_OFF, X1_OFF, H_OFF, U_OFF, ST_OFF, RS_OFF = 0, 4 * MB, 8 * MB, 12 * MB, 20 * MB, 21 * MB
X2_OFF, FL_OFF, PR_OFF = 24 * MB, 28 * MB, 64 * MB
P_WL = 82
S_LWV, S_FLG = 57, 56
SC = 'sc0 sc1'
LDF = env('LDF', 'sc1')
PROF = env('PROF') == '1'
PV = 250
SPIN = 100000

def stamp(k):
    if not PROF: return []
    return ['s_memrealtime s[58:59]', 's_memtime s[62:63]', 's_waitcnt lgkmcnt(0)', f's_lshl_b32 s60, s{S_VAR}, 4', f's_add_u32 m0, s60, {k+1}', 's_nop 0', f'v_writelane_b32 v{PV}, s58, m0',
            's_add_u32 m0, m0, 32', 's_nop 0', f'v_writelane_b32 v{PV}, s62, m0']
G.stamp = lambda idx=None: []
G.cstamp = lambda idx: []

def tiles(a, LN, xshift):
    a.e(f's_lshr_b32 s{S_T0}, s2, 3')
    if LN == 8: a.e(f's_lshr_b32 s{S_LI}, s{S_T0}, 3', f's_and_b32 s{S_LJ}, s{S_T0}, 7')
    else: a.e(f's_mul_i32 s{S_LI}, s{S_T0}, {65536 // LN + 1}', f's_lshr_b32 s{S_LI}, s{S_LI}, 16', f's_mul_i32 s{S_LJ}, s{S_LI}, {LN}', f's_sub_u32 s{S_LJ}, s{S_T0}, s{S_LJ}')
    a.e(f's_lshl_b32 s{S_PHI}, s{S_LI}, 1', f's_add_u32 s{S_PHI}, s{S_PHI}, s{S_LJ}', f's_and_b32 s{S_PHI}, s{S_PHI}, 7',
        f's_and_b32 s{S_T0}, s2, 7', f's_lshr_b32 s{S_TI}, s{S_T0}, {xshift}', f's_lshl_b32 s{S_TI}, s{S_TI}, 2', f's_add_u32 s{S_TI}, s{S_TI}, s{S_LI}',
        f's_and_b32 s{S_TJ}, s{S_T0}, {(1 << xshift) - 1}', f's_mul_i32 s{S_TJ}, s{S_TJ}, {LN}', f's_add_u32 s{S_TJ}, s{S_TJ}, s{S_LJ}', *INITK)
INITK = [f's_mov_b32 s{S_P}, 7', f's_mov_b32 s{S_W}, -1']

def flag_idx(a, ph, hi, mul, lo):
    a.e(f's_lshl_b32 s{S_FLG}, s{S_VAR}, 10', f's_mul_i32 s{S_T0}, s{hi}, {mul}', f's_add_u32 s{S_FLG}, s{S_FLG}, s{S_T0}', f's_add_u32 s{S_FLG}, s{S_FLG}, s{lo}',
        f's_add_u32 s{S_FLG}, s{S_FLG}, {ph*256}', f's_lshl_b32 s{S_FLG}, s{S_FLG}, 7')

_n = [0]
def lab(p): _n[0] += 1; return f'{p}{_n[0]}'

def publish(a, vt):
    l = lab('pub')
    a.e(f's_cmp_lg_u32 s{S_LWV}, 0', f's_cbranch_scc1 {l}')
    srd(a, SRD_E, P_WS, FL_OFF, 8 * 256 * 128)
    a.e(f'v_mov_b32 v{vt}, 0', f'v_mov_b32 v{vt+1}, 1', 's_mov_b64 exec, 1', f'buffer_store_dword v{vt+1}, v{vt}, {S4(SRD_E)}, s{S_FLG} offen {SC}', 's_mov_b64 exec, -1', f'{l}:')

def poll_setup(a, sr_, va, ph, dl, base_lines, n):
    srd(a, sr_, P_WS, FL_OFF, 8 * 256 * 128)
    a.e(*base_lines, f'v_min_u32 v{va}, {n-1}, v0', f'v_add_u32 v{va}, s{S_T0}, v{va}', f'v_max_i32 v{va}, 0, v{va}', f'v_lshlrev_b32 v{va}, 7, v{va}',
        f's_lshl_b32 s55, s{S_VAR}, 17', f's_add_u32 s55, s55, {(dl * 4 + ph) * 32768}')

def poll(a, sr_, va, vt):
    l = lab('poll')
    a.e(f's_mov_b32 s{S_CNT}, 0')
    a.loop([f'{l}:', f'buffer_load_dword v{vt}, v{va}, {S4(sr_)}, s55 offen {SC}', 's_waitcnt vmcnt(0)', f'v_cmp_eq_u32 vcc, 0, v{vt}',
            f's_add_u32 s{S_CNT}, s{S_CNT}, 1', f's_cmp_gt_u32 s{S_CNT}, {SPIN}', f's_cbranch_scc1 {l}d', f's_cbranch_vccnz {l}'])
    a.e(f'{l}d:')

def dma_groups(groups, lw_s):
    L = []
    for g in groups:
        L.append(f's_add_u32 m0, s{lw_s}, s{g["sg"]}')
        for (v, imm, st, ex) in g['dmas']:
            srdn, so, fl = (SRD_A, S_OA, LDF) if st == 'A' else (SRD_B, S_OB, '')
            if ex: L.append(f's_mov_b64 exec, {ex}')
            L.append(f'buffer_load_dwordx4 v{v}, {S4(srdn)}, s{so} offen offset:{imm} {fl} lds')
            if ex: L.append('s_mov_b64 exec, -1')
    return L

def issue(NK, NS, stage, base, stepA, stepB, gA, gW):
    L = next_k(NK)
    if gA: L += [f's_mul_i32 s{S_OA}, s{S_K}, {stepA}', f's_add_u32 s{S_OA}, s{S_OA}, s{S_BA}']
    if gW: L += [f's_mul_i32 s{S_OB}, s{S_K}, {stepB}', f's_add_u32 s{S_OB}, s{S_OB}, s{S_BB}']
    L += dma_groups(gA + gW, S_LW)
    L += [f's_add_u32 s{S_LW}, s{S_LW}, {stage}', f's_cmp_eq_u32 s{S_LW}, {base + NS*stage}', f's_cselect_b32 s{S_LW}, {base}, s{S_LW}']
    return L

def pre_w(a, NK, NS, AH, stage, base, stepB, gW):
    a.e(*INITK, f's_mov_b32 s{S_LW}, {base}')
    for s in range(AH): a.e(*issue(NK, NS, stage, base, 0, stepB, [], gW))

def l_loop(a, NK, NS, AH, stage, base, stepA, stepB, gA, gW, tail=0, hook=lambda: []):
    nA = sum(len(g['dmas']) for g in gA); n = nA + sum(len(g['dmas']) for g in gW)
    iss = lambda: issue(NK, NS, stage, base, stepA, stepB, gA, gW) + hook()
    t0 = 0
    if gA:
        a.e(*INITK, f's_mov_b32 s{S_LW}, {base}')
        for s in range(AH): a.e(*issue(NK, NS, stage, base, stepA, stepB, gA, []))
        for t in range(AH - 1):
            a.e(f's_waitcnt vmcnt({(AH - 1 - t) * nA + t * n})', 's_barrier', *iss())
        t0 = AH - 1
    l = lab('ll')
    a.e(f's_mov_b32 s{S_CNT}, {NK - AH - t0}')
    a.loop([f'{l}:', f's_waitcnt vmcnt({(AH-1)*n})', 's_barrier'] + iss() + [f's_sub_u32 s{S_CNT}, s{S_CNT}, 1', f's_cmp_lg_u32 s{S_CNT}, 0', f's_cbranch_scc1 {l}'])
    for j in range(AH - tail):
        a.e(f's_waitcnt vmcnt({(AH-1-j)*n})', 's_barrier')

def c_loop(a, NK, NS, stage, reads, mfmas, addr_regs, late, st0, post=()):
    adv = adv_s(NS, stage)
    advv = [f'v_add_u32 v{r}, s{S_DELTA}, v{r}' for r in addr_regs]
    a.e(f's_mov_b32 s{S_CUR}, 0', f's_mov_b32 s{S_CNT}, {NK - 1}', 's_barrier', *stamp(st0))
    a.e(*reads[0]); a.e(*adv)
    q0 = [Ins(x).wr for x in reads[0]]
    q = list(q0)
    l = lab('cl')
    body = [f'{l}:'] + sched(mfmas[0], bundle(reads[1], advv), q, 1)
    if not late: body.append('s_waitcnt lgkmcnt(0)'); q.clear()
    body += ['s_barrier'] + list(post) + sched(mfmas[1], spread(reads[0], adv), q, 1)
    assert q == q0
    body += [f's_sub_u32 s{S_CNT}, s{S_CNT}, 1', f's_cmp_lg_u32 s{S_CNT}, 0', f's_cbranch_scc1 {l}']
    a.loop(body)
    q = list(q0)
    a.e(*sched(mfmas[0], reads[1], q, 1)); a.e(*sched(mfmas[1], [], q)); a.e('s_waitcnt lgkmcnt(0)', *stamp(st0 + 1))

S_LM, S_B0, S_B1 = 48, 49, 50
def c_direct(a, NK, NS, stage, reads, mf, addr_regs, DR, D, vaddr, init, st0, slots=None):
    R = NK // 8
    advv = lambda src: [f'v_add_u32 v{r}, {src}, v{r}' for r in addr_regs]
    def nk(t):
        p = t % 8
        L = []
        if p == 0 and t != 0: L += [f's_mov_b32 s{S_B0}, s{S_B1}', f's_add_u32 s{S_B1}, s{S_B1}, 32768', f's_cmp_eq_u32 s{S_B1}, s{S_T2}', f's_cselect_b32 s{S_B1}, s{S_BA}, s{S_B1}']
        return L + [f's_bitcmp1_b32 s{S_LM}, {p}', f's_cselect_b32 s{S_OA}, s{S_B1}, s{S_B0}', f's_add_u32 s{S_OA}, s{S_OA}, {p*4096}']
    ld = lambda slot, i: f'buffer_load_dwordx4 {vr(DR+16*slot+4*i,4)}, v{vaddr}, {S4(SRD_A)}, s{S_OA} offen offset:{1024*i} {LDF}'
    adv = [] if slots else adv_s(NS, stage)
    vq = []
    for sl in range(D):
        a.e(*nk(sl))
        for i in range(4 if sl < D - 1 else 2):
            a.e(ld(sl, i)); vq.append(Ins(ld(sl, i)).wr)
        if sl == 1: init(8)
    a.e(f's_mov_b32 s{S_CUR}, 0', f's_mov_b32 s{S_CNT}, {R - 1}', 's_barrier', *stamp(st0))
    a.e(*reads[0]); a.e(*adv)
    q0 = [Ins(x).wr for x in reads[0]]
    def mix(items, loads, pos):
        items = [list(x) for x in items]
        for l, p in zip(loads, pos): items[p] = items[p] + [l]
        return items
    def step(t, vq, generic):
        slot = t % D
        q = list(q0)
        final = not generic and t == NK - 1
        l0 = [ld((slot - 1) % D, 2), ld((slot - 1) % D, 3)] if generic or t - 1 + D < NK else []
        av = [] if final else advv(f's{S_DELTA}' if not slots else (slots[t + 1] - slots[t]) & 0xffffffff)
        L = sched(mf(0, DR + 16 * slot), mix(bundle(reads[1], av), l0, (2, 6)), q, 1, vq=vq)
        if final: return L + sched(mf(1, DR + 16 * slot + 8), [], q, 1, vq=vq)
        more = generic or t + D < NK
        it = [[r] for r in reads[0]]
        sc = (nk(t + D) if more else []) + adv
        for i, x in enumerate(sc): it[min(i // 2, len(it) - 1)].append(x)
        l1 = [ld(slot, 0), ld(slot, 1)] if more else []
        return L + ([] if slots else ['s_barrier']) + sched(mf(1, DR + 16 * slot + 8), mix(it, l1, (4, 7)), q, 1, vq=vq)
    if slots:
        for t in range(NK): a.e(*step(t, vq, False))
    else:
        v1 = list(vq); l = lab('cd')
        body = [f'{l}:']
        for t in range(8, 16): body += step(t, v1, True)
        assert v1 == vq
        a.loop(body + [f's_sub_u32 s{S_CNT}, s{S_CNT}, 1', f's_cmp_lg_u32 s{S_CNT}, 0', f's_cbranch_scc1 {l}'])
        for t in range(NK - 8, NK): a.e(*step(t, vq, False))
    a.e('s_waitcnt lgkmcnt(0)', *stamp(st0 + 1))

def direct_setup(a, NK):
    a.e(f's_lshl_b32 s{S_LM}, 0x303, s{S_PHI}', f's_lshr_b32 s{S_LM}, s{S_LM}, 8', f's_mov_b32 s{S_B0}, s{S_BA}', f's_add_u32 s{S_B1}, s{S_BA}, 32768',
        f's_add_u32 s{S_T2}, s{S_BA}, {NK*4096}')

def w_reads(regs):
    return [[f'ds_read_b64_tr_b16 {vr(16+16*h+4*n+2*q,2)}, v{regs[n]} offset:{h*4096+q*512}' for n in range(4) for q in range(2)] for h in range(2)]

def sel(a, d, ptr0, off0, ptr1, off1, nbytes): G.srd_sel(a, d, ptr0, off0, ptr1, off1, nbytes)

XT = 18432; ST1 = XT + 24576; SL = 3 * ST1; QKV = ST1; PITCH = 400; PB = 72 * PITCH
WO_SLOTS = [131072 + 8192 * i for i in range(4)] + [100608 + 8192 * i for i in range(3)] + [8192 * i for i in range(5)] + [QKV + 8192 * i for i in range(4)]
K4_BASE, K4_NS, K4_AH = 98304, 8, 6
K4_SCR = 90112
D = 4; DR = 120
PF1 = int(env('PF1', '0'), 0); CPRIO = int(env('CPRIO', '0'))
NPF = int(env('NPF', '0')); K0W = int(env('K0W', '0')); W1_K0 = K0W * 256 * 64 * 128
PF3 = int(env('PF3', '0')); CODEPF = env('CODEPF', '0') == '1'; PF2 = env('PF2', '1') == '1'; LATEW = env('LATEW', '1') == '1'

def gen_mega(a):
    kn = 'mega'
    a.e('.p2align 8', 'mega_kernel:', 's_cmp_ge_u32 s2, 256', f's_cbranch_scc1 {kn}_end',
        's_load_dwordx16 s[64:79], s[0:1], 0', 's_load_dwordx2 s[80:81], s[0:1], 64', 's_load_dwordx2 s[84:85], s[0:1], 80',
        'v_lshrrev_b32 v1, 6, v0', 'v_and_b32 v0, 63, v0', f'v_readfirstlane_b32 s{S_WAVE}, v1', f's_mov_b32 s{S_VAR}, 0')
    if PROF: a.e(f'v_mov_b32 v{PV}, 0', *stamp(-1))
    a.e(f's_cmp_ge_u32 s{S_WAVE}, 4', f's_cbranch_scc1 L_start')

    ACC1 = 112
    def acc1(m, rt): return ACC1 + 36 * m + 4 * rt
    def k1_setup_c():
        tiles(a, 8, 1)
        lane_fields(a)
        tr128_addr(a, [8], XT, 21, 22)
        a.e(f's_lshl_b32 s{S_T0}, s{S_WAVE}, 5', f'v_xor_b32 v8, s{S_T0}, v8',
            'v_lshrrev_b32 v21, 1, v4', 'v_xor_b32 v21, v21, v5', 'v_lshlrev_b32 v21, 4, v21', 'v_lshlrev_b32 v22, 7, v4', 'v_add_u32 v9, v21, v22', 'v_xor_b32 v10, 64, v9',
            'v_and_b32 v21, 1, v4', f'v_mul_u32_u24 v21, {PB}, v21', 'v_lshrrev_b32 v22, 1, v4', f'v_mul_u32_u24 v22, {PITCH}, v22',
            'v_lshlrev_b32 v23, 3, v5', 'v_add3_u32 v11, v21, v22, v23', f's_add_u32 s{S_T0}, s{S_T0}, {QKV}',
            f'v_add_u32 v11, s{S_T0}, v11', 'v_lshlrev_b32 v12, 3, v4', f'v_add_u32 v12, {SL}, v12')
        for r in range(ACC1, ACC1 + 108, 2): a.e(f'v_mov_b64 {vr(r,2)}, 0')
    if CPRIO: a.e(f's_setprio {CPRIO}')
    k1_setup_c()
    a.e('s_waitcnt lgkmcnt(0)', f's_mov_b32 s{P_WL}, s{P_WS}', f's_mov_b32 s{P_WL+1}, s{P_WS+1}')
    a.e('C_top:'); a.flush_hist()
    reads = [[], []]; mf = [[], []]
    for h in range(2):
        F = 16 + 48 * h
        ra = [[f'ds_read_b64_tr_b16 {vr(F+4*m,2)}, v8 offset:{m*8192+h*4096}', f'ds_read_b64_tr_b16 {vr(F+4*m+2,2)}, v8 offset:{m*8192+h*4096+512}'] for m in range(3)]
        rb = [f'ds_read_b128 {vr(F+12+4*rt,4)}, v{9+h} offset:{rt*2048}' for rt in range(9)]
        reads[h] = ra[0] + [rb[0]] + ra[1] + ra[2] + rb[1:]
        mf[h] = [f'{MF16} {vr(acc1(m,rt),4)}, {vr(F+4*m,4)}, {vr(F+12+4*rt,4)}, {vr(acc1(m,rt),4)}' for rt in range(9) for m in range(3)]
    post = []
    if PF1:
        srd(a, SRD_C, P_W1, 0, 2048 * 3584 * 2)
        a.e(f's_lshr_b32 s{S_T0}, s2, 5', f's_lshl_b32 s48, {PF1}, s{S_T0}', f's_cmp_eq_u32 s{S_VAR}, 0', 's_cselect_b32 s48, s48, 0',
            f's_xor_b32 s{S_T0}, s{S_T0}, 7', f's_lshl_b32 s49, s{S_T0}, 5', 's_and_b32 s50, s2, 31', 's_add_u32 s49, s49, s50', 's_lshl_b32 s49, s49, 2', f's_add_u32 s49, s49, s{S_WAVE}',
            's_lshl_b32 s49, s49, 13', f's_add_u32 s49, s49, {W1_K0}', 'v_lshlrev_b32 v13, 7, v0')
        post = [f's_bitcmp1_b32 s48, s{S_CNT}', 's_cbranch_scc0 C_npf1', f'buffer_load_dword v222, v13, {S4(SRD_C)}, s49 offen', f's_add_u32 s49, s49, {1024*8192}', 'C_npf1:']
    c_loop(a, 16, 3, ST1, reads, mf, [8, 9, 10], False, 0, post)
    a.e('s_barrier')
    for rt in range(9): a.e(f'ds_read_b64 {vr(32+2*rt,2)}, v12 offset:{rt*128}')
    for m in range(3):
        for r in range(4): a.e(f'v_mov_b32_dpp v{16+4*m+r}, v{acc1(m,0)+r} row_newbcast:0 row_mask:0xf bank_mask:0xf')
    a.e('s_waitcnt lgkmcnt(0)')
    k = 0
    for rt in range(9):
        ms = [m for m in range(3) if not (m == 0 and rt == 0)]
        st = vr(32 + 2 * rt, 2)
        for m in ms:
            for e in (0, 2): a.e(f'v_pk_fma_f32 {vr(acc1(m,rt)+e,2)}, {vr(16+4*m+e,2)}, {st}, {vr(acc1(m,rt)+e,2)} op_sel_hi:[1,0,1] neg_lo:[0,1,0] neg_hi:[0,1,0]')
        for m in ms:
            for e in (0, 2): a.e(f'v_pk_mul_f32 {vr(acc1(m,rt)+e,2)}, {vr(acc1(m,rt)+e,2)}, {st} op_sel:[0,1] op_sel_hi:[1,1]')
        for m in ms:
            d = acc1(m, rt); o = 52 + 2 * (k & 7); k += 1
            a.e(f'v_cvt_pk_bf16_f32 v{o}, v{d}, v{d+1}', f'v_cvt_pk_bf16_f32 v{o+1}, v{d+2}, v{d+3}', f'ds_write_b64 v11, {vr(o,2)} offset:{rt*8*PITCH+m*128}')
    a.e('attn:'); a.flush_hist()
    MK = 86
    srd(a, SRD_D, P_WL, O_OFF, XB)
    a.e(f's_lshr_b32 s{S_T1}, s{S_WAVE}, 1', f's_and_b32 s{S_T2}, s{S_WAVE}, 1',
        f's_mul_i32 s{S_T0}, s{S_T2}, {PB}', f's_add_u32 s{S_T0}, s{S_T0}, {QKV}', f's_lshl_b32 s{S_G0+5}, s{S_T1}, 4')
    a.e(f'v_add_u32 v16, s{S_G0+5}, v4', 'v_lshlrev_b32 v17, 4, v5', f'v_add_u32 v17, s{S_T0}, v17',
        f'v_mul_u32_u24 v18, {PITCH}, v16', 'v_add_u32 v8, v18, v17', f'v_add_u32 v10, {8*PITCH}, v8', 'v_add_u32 v8, 128, v8',
        'v_add_u32 v16, 16, v16', 'v_min_u32 v16, 71, v16', f'v_mul_u32_u24 v18, {PITCH}, v16', 'v_add3_u32 v9, v18, v17, 64', 'v_add_u32 v9, 64, v9')
    a.e('v_lshl_add_u32 v16, v5, 2, v6', f'v_add_u32 v16, s{S_G0+5}, v16', 'v_lshlrev_b32 v17, 4, v7', f'v_add_u32 v17, s{S_T0}, v17', 'v_add_u32 v17, 256, v17',
        f'v_mul_u32_u24 v18, {PITCH}, v16', 'v_add_u32 v14, v18, v17',
        'v_add_u32 v16, 16, v16', 'v_min_u32 v16, 71, v16', f'v_mul_u32_u24 v18, {PITCH}, v16', 'v_add_u32 v15, v18, v17')
    a.e('v_lshlrev_b32 v13, 4, v0', f's_lshl_b32 s{S_G0+6}, s{S_TI}, 2', f's_add_u32 s{S_G0+6}, s{S_G0+6}, s{S_T1}', f's_lshl_b32 s{S_G0+6}, s{S_G0+6}, 16',
        f's_lshl_b32 s{S_G0+7}, s{S_TJ}, 12', f's_add_u32 s{S_G0+6}, s{S_G0+6}, s{S_G0+7}', f's_lshl_b32 s{S_G0+7}, s{S_T2}, 10', f's_add_u32 s{S_G0+6}, s{S_G0+6}, s{S_G0+7}')
    a.e('v_lshlrev_b32 v16, 2, v5', 'v_sub_u32 v16, v16, v4', f's_or_b32 s{S_G0+7}, s{S_TI}, s{S_T1}', f's_cmp_eq_u32 s{S_G0+7}, 0', f's_cselect_b32 s{S_G0+7}, 0, -1')
    for k in range(8):
        a.e(f'v_add_u32 v17, {16 * (k >> 2) + (k & 3) - 1}, v16', f'v_cmp_gt_u32 s[{MK+2*k}:{MK+1+2*k}], 8, v17')
    for k in range(4): a.e(f's_and_b32 s{MK+2*k}, s{MK+2*k}, s{S_G0+7}')
    cs = (32 ** -0.5) * 1.4426950408889634
    a.e(f'v_mov_b32 v18, {f32(cs)}', 'v_mov_b32 v19, 0xff800000')
    a.e('s_waitcnt lgkmcnt(0)', 's_barrier')
    B = [32, 80]
    for hd in range(2):
        b = B[hd]; o = 64 * hd
        a.e(f'ds_read_b128 {vr(b,4)}, v10 offset:{o}', f'ds_read_b128 {vr(b+4,4)}, v8 offset:{o}', f'ds_read_b128 {vr(b+8,4)}, v9 offset:{o}')
    for hd in range(2):
        b = B[hd]; o = 64 * hd
        for dt in range(2): a.e(f'ds_read_b64_tr_b16 {vr(b+12+4*dt,2)}, v14 offset:{o+8*dt}', f'ds_read_b64_tr_b16 {vr(b+14+4*dt,2)}, v15 offset:{o+8*dt}')
    for hd in range(2):
        b = B[hd]
        a.e(f's_waitcnt lgkmcnt({11 - 3*hd})', f'{MF16} {vr(b+20,4)}, {vr(b+4,4)}, {vr(b,4)}, 0', f'{MF16} {vr(b+24,4)}, {vr(b+8,4)}, {vr(b,4)}, 0')
    def both(f):
        for x, y in zip(f(B[0]), f(B[1])): a.e(x, y)
    both(lambda b: [f'v_cndmask_b32 v{b+20+k}, v19, v{b+20+k}, s[{MK+2*k}:{MK+1+2*k}]' for k in range(8)])
    both(lambda b: [f'v_max3_f32 v{b+28}, v{b+20}, v{b+21}, v{b+22}', f'v_max3_f32 v{b+29}, v{b+23}, v{b+24}, v{b+25}',
                    f'v_max3_f32 v{b+28}, v{b+28}, v{b+26}, v{b+27}', f'v_max_f32 v{b+28}, v{b+28}, v{b+29}', f'v_mov_b32 v{b+29}, v{b+28}',
                    f'v_permlane16_swap_b32 v{b+28}, v{b+29}', f'v_max_f32 v{b+28}, v{b+28}, v{b+29}', f'v_mov_b32 v{b+29}, v{b+28}',
                    f'v_permlane32_swap_b32 v{b+28}, v{b+29}', f'v_max_f32 v{b+28}, v{b+28}, v{b+29}', f'v_mul_f32 v{b+28}, v18, v{b+28}'])
    both(lambda b: [f'v_fma_f32 v{b+20+k}, v{b+20+k}, v18, -v{b+28}' for k in range(8)])
    both(lambda b: [f'v_exp_f32 v{b+20+k}, v{b+20+k}' for k in range(8)])
    both(lambda b: [f'v_pk_add_f32 {vr(b+28,2)}, {vr(b+20,2)}, {vr(b+22,2)}', f'v_pk_add_f32 {vr(b+30,2)}, {vr(b+24,2)}, {vr(b+26,2)}',
                    f'v_pk_add_f32 {vr(b+28,2)}, {vr(b+28,2)}, {vr(b+30,2)}', f'v_add_f32 v{b+28}, v{b+28}, v{b+29}', f'v_mov_b32 v{b+29}, v{b+28}',
                    f'v_permlane16_swap_b32 v{b+28}, v{b+29}', f'v_add_f32 v{b+28}, v{b+28}, v{b+29}', f'v_mov_b32 v{b+29}, v{b+28}',
                    f'v_permlane32_swap_b32 v{b+28}, v{b+29}', f'v_add_f32 v{b+28}, v{b+28}, v{b+29}', f'v_rcp_f32 v{b+28}, v{b+28}'])
    both(lambda b: [f'v_pk_mul_f32 {vr(b+20+e,2)}, {vr(b+20+e,2)}, {vr(b+28,2)} op_sel_hi:[1,0]' for e in range(0, 8, 2)])
    both(lambda b: [f'v_cvt_pk_bf16_f32 v{b+32+e}, v{b+20+2*e}, v{b+21+2*e}' for e in range(4)])
    a.e('s_waitcnt lgkmcnt(0)')
    both(lambda b: [f'{MF16} {vr(b+36+4*dt,4)}, {vr(b+12+4*dt,4)}, {vr(b+32,4)}, 0' for dt in range(2)])
    both(lambda b: [f'v_cvt_pk_bf16_f32 v{b+e}, v{b+36+2*e}, v{b+37+2*e}' for e in range(4)])
    for hd in range(2): a.e(f'buffer_store_dwordx4 {vr(B[hd],4)}, v13, {S4(SRD_D)}, s{S_G0+6} offen offset:{2048*hd} {SC}')
    a.e(f's_cmp_ge_u32 s{S_WAVE}, 4', 's_cbranch_scc1 L_k1done')

    ACC = 48; RES = 96
    def acc2(t, b): return ACC + 16 * b + 4 * t
    a.e(f's_lshl_b32 s{S_T0}, s{S_TI}, 2', f's_add_u32 s{S_T0}, s{S_T0}, s{S_WAVE}', f's_lshl_b32 s{S_BA}, s{S_T0}, 16', f's_lshl_b32 s{S_T1}, s{S_T0}, 5',
        'v_lshlrev_b32 v13, 1, v4', f'v_add_u32 v13, s{S_T1}, v13',
        'v_lshlrev_b32 v12, 11, v13', 'v_lshl_add_u32 v12, v3, 4, v12', f's_lshl_b32 s{S_T0}, s{S_TJ}, 7', f'v_add_u32 v12, s{S_T0}, v12', 'v_lshlrev_b32 v14, 4, v0')
    srd(a, SRD_A, P_WL, O_OFF, XB)
    sel(a, SRD_C, P_X, 0, P_WS, X2_OFF, XB)
    srd(a, SRD_B, P_WL, ST_OFF, 16 * 2048 * 8)
    tr128_addr(a, [8, 9, 10, 11], WO_SLOTS[0], 16, 17)
    a.e('v_add_u32 v16, v13, v2', 'v_lshlrev_b32 v16, 3, v16', f's_lshl_b32 s{S_T0}, s{S_TJ}, 14', f'v_add_u32 v112, s{S_T0}, v16',
        'v_lshrrev_b32 v17, 5, v0', 'v_lshlrev_b32 v17, 17, v17', 'v_add_u32 v113, v16, v17')
    a.e(f's_lshl_b32 s{S_T0}, s{S_WAVE}, 12', 'v_lshlrev_b32 v16, 8, v4', 'v_lshl_add_u32 v16, v5, 3, v16', f'v_add_u32 v16, s{S_T0}, v16',
        'v_and_b32 v17, 1, v4', 'v_bfe_u32 v18, v4, 2, 1', 'v_lshl_or_b32 v17, v18, 1, v17', 'v_lshl_add_u32 v114, v17, 5, v16',
        f's_lshl_b32 s{S_G0}, s{S_TJ}, 8', f's_lshl_b32 s{S_T1}, s{S_TI}, 2', f's_add_u32 s{S_G0}, s{S_G0}, s{S_T1}', f's_add_u32 s{S_G0}, s{S_G0}, s{S_WAVE}', f's_lshl_b32 s{S_G0}, s{S_G0}, 10')
    tr128_addr(a, [115], 0, 16, 17)
    a.e(f'v_add_u32 v115, s{S_T0}, v115')
    for t in range(1, 4): a.e(f's_add_u32 s{S_G0+t}, s{S_G0}, {t*65536}')
    for p in range(1, 8): a.e(f's_mov_b32 s{86+p}, {p*16384}')
    direct_setup(a, 16)
    poll_setup(a, SRD_E, 119, 0, 0, [f's_lshl_b32 s{S_T0}, s{S_TI}, 4'], 16)
    a.e('s_waitcnt vmcnt(0)', 's_barrier', *stamp(2))
    poll(a, SRD_E, 119, 16)
    a.e(*stamp(3))
    for b in range(2):
        for P in range(2): a.e(f'buffer_load_dwordx4 {vr(RES+8*b+4*P,4)}, v12, {S4(SRD_C)}, 0 offen offset:{b*2048+P*64} {LDF}')
    def init2(out):
        a.e(f's_waitcnt vmcnt({out})')
        for b in range(2):
            for P in range(2):
                r = RES + 8 * b + 4 * P
                a.e(f'v_permlane16_swap_b32 v{r}, v{r+2}', f'v_permlane16_swap_b32 v{r+1}, v{r+3}')
        for b in range(2):
            for P in range(2):
                r = RES + 8 * b + 4 * P
                a.e(*unpack4(r, r + 1, acc2(2 * P, b)), *unpack4(r + 2, r + 3, acc2(2 * P + 1, b)))
    mf2 = lambda h, bb: [f'{MF16} {vr(acc2(t,b),4)}, {vr(16+16*h+4*t,4)}, {vr(bb+4*b,4)}, {vr(acc2(t,b),4)}' for t in range(4) for b in range(2)]
    c_direct(a, 16, 0, 0, w_reads([8, 9, 10, 11]), mf2, [8, 9, 10, 11], DR, D, 14, init2, 4, slots=WO_SLOTS)
    a.e('s_barrier')
    srd(a, SRD_D, P_WL, X1_OFF, XB)
    srd(a, SRD_E, P_WL, H_OFF, XB)
    for b in range(2):
        d = acc2(0, b); T = 16 + 4 * b
        a.e(f'v_pk_add_f32 {vr(T,2)}, {vr(d,2)}, {vr(d+2,2)}', f'v_pk_mul_f32 {vr(T+2,2)}, {vr(d,2)}, {vr(d,2)}', f'v_pk_fma_f32 {vr(T+2,2)}, {vr(d+2,2)}, {vr(d+2,2)}, {vr(T+2,2)}')
        for e in range(4, 16, 2):
            a.e(f'v_pk_add_f32 {vr(T,2)}, {vr(T,2)}, {vr(d+e,2)}', f'v_pk_fma_f32 {vr(T+2,2)}, {vr(d+e,2)}, {vr(d+e,2)}, {vr(T+2,2)}')
        a.e(f'v_add_f32 v{24+b}, v{T}, v{T+1}', f'v_add_f32 v{26+b}, v{T+2}, v{T+3}')
    a.e('v_permlane16_swap_b32 v24, v25', 'v_permlane16_swap_b32 v26, v27', 'v_add_f32 v28, v24, v25', 'v_add_f32 v29, v26, v27',
        'v_mov_b32 v30, v28', 'v_mov_b32 v31, v29', 'v_permlane32_swap_b32 v28, v30', 'v_permlane32_swap_b32 v29, v31',
        'v_add_f32 v28, v28, v30', 'v_add_f32 v29, v29, v31', 'v_and_b32 v29, 0x7fffffff, v29',
        's_mov_b32 exec_hi, 0', f'buffer_store_dwordx2 v[28:29], v112, {S4(SRD_B)}, 0 offen {SC}', 's_mov_b64 exec, -1')
    for b in range(2):
        for t in range(4):
            r = RES + 8 * b + 2 * t; d = acc2(t, b)
            a.e(f'v_cvt_pk_bf16_f32 v{r}, v{d}, v{d+1}', f'v_cvt_pk_bf16_f32 v{r+1}, v{d+2}, v{d+3}')
    for b in range(2):
        for P in range(2):
            r = RES + 8 * b + 4 * P
            a.e(f'v_permlane16_swap_b32 v{r}, v{r+2}', f'v_permlane16_swap_b32 v{r+1}, v{r+3}')
    for t in range(1, 4): a.e(f'v_xor_b32 v{115+t}, {t << 5}, v115', f'v_xor_b32 v{120+t}, {t << 5}, v114')
    a.e('v_mov_b32 v120, v114', f's_mov_b32 s{S_CNT}, 0')
    body = ['k2_poll:'] + [f'buffer_load_dwordx2 {vr(32+2*p,2)}, v113, {S4(SRD_B)}, {"0" if p == 0 else f"s{86+p}"} offen {SC}' for p in range(8)]
    body += ['s_waitcnt vmcnt(0)', 'v_min3_i32 v16, v33, v35, v37', 'v_min3_i32 v17, v39, v41, v43', 'v_min3_i32 v16, v16, v45, v47',
             'v_min_i32 v16, v16, v17', 'v_cmp_gt_i32 vcc, 0, v16', f's_add_u32 s{S_CNT}, s{S_CNT}, 1', f's_cmp_gt_u32 s{S_CNT}, {SPIN}',
             's_cbranch_scc1 k2_pdone', 's_cbranch_vccnz k2_poll']
    a.loop(body)
    a.e('k2_pdone:', *stamp(6))
    for b in range(2):
        for P in range(2): a.e(f'buffer_store_dwordx4 {vr(RES+8*b+4*P,4)}, v12, {S4(SRD_D)}, 0 offen offset:{b*2048+P*64} {SC}')
    a.e('v_pk_add_f32 v[32:33], v[32:33], v[34:35]', 'v_pk_add_f32 v[36:37], v[36:37], v[38:39]', 'v_pk_add_f32 v[40:41], v[40:41], v[42:43]',
        'v_pk_add_f32 v[44:45], v[44:45], v[46:47]', 'v_pk_add_f32 v[32:33], v[32:33], v[36:37]', 'v_pk_add_f32 v[40:41], v[40:41], v[44:45]',
        'v_pk_add_f32 v[32:33], v[32:33], v[40:41]', 'v_mov_b32 v34, v32', 'v_mov_b32 v35, v33',
        'v_permlane32_swap_b32 v32, v34', 'v_permlane32_swap_b32 v33, v35', 'v_add_f32 v32, v32, v34', 'v_add_f32 v33, v33, v35')
    stats_finish(a, 32, 33, 36, True)
    a.e('v_mov_b32 v34, v32', 'v_mov_b32 v35, v33', 'v_permlane16_swap_b32 v32, v34', 'v_permlane16_swap_b32 v33, v35')
    for b in range(2):
        st = vr(32 + 2 * b, 2); d = acc2(0, b); o = 160 + 8 * b
        for e in range(0, 16, 2): a.e(f'v_pk_add_f32 {vr(d+e,2)}, {vr(d+e,2)}, {st} op_sel_hi:[1,0] neg_lo:[0,1] neg_hi:[0,1]')
        for e in range(0, 16, 2): a.e(f'v_pk_mul_f32 {vr(d+e,2)}, {vr(d+e,2)}, {st} op_sel:[0,1] op_sel_hi:[1,1]')
        for t in range(4):
            a.e(f'v_cvt_pk_bf16_f32 v{o+2*t}, v{d+4*t}, v{d+4*t+1}', f'v_cvt_pk_bf16_f32 v{o+2*t+1}, v{d+4*t+2}, v{d+4*t+3}',
                f'ds_write_b64 v{120+t}, {vr(o+2*t,2)} offset:{128*b}')
    a.e('s_waitcnt lgkmcnt(0)')
    for t in range(4): a.e(f'ds_read_b64_tr_b16 {vr(176+4*t,2)}, v{115+t}', f'ds_read_b64_tr_b16 {vr(178+4*t,2)}, v{115+t} offset:512')
    for t in range(4): a.e(f's_waitcnt lgkmcnt({6-2*t})', f'buffer_store_dwordx4 {vr(176+4*t,4)}, v14, {S4(SRD_E)}, s{S_G0+t} offen {SC}')
    a.e('s_cmp_ge_u32 s2, 224', 's_cbranch_scc1 C_k3skip')

    ACC3 = 80
    def acc3(tf, td): return ACC3 + 16 * td + 4 * tf
    tiles(a, 7, 2)
    a.e(f's_and_b32 s{S_G0+2}, s{S_WAVE}, 1', f's_lshr_b32 s{S_T2}, s{S_WAVE}, 1',
        f's_lshl_b32 s{S_T0}, s{S_TJ}, 8', f's_lshl_b32 s{S_G0}, s{S_G0+2}, 7', f's_add_u32 s{S_T0}, s{S_T0}, s{S_G0}',
        'v_lshlrev_b32 v16, 3, v5', f'v_add_u32 v16, s{S_T0}, v16')
    srd(a, SRD_C, P_B1, 0, 3584 * 2)
    for tf in range(4): a.e(f'buffer_load_dwordx2 {vr(144+2*tf,2)}, v16, {S4(SRD_C)}, 0 offen offset:{32*tf}')
    srd(a, SRD_D, P_WL, U_OFF, UB)
    a.e('v_lshl_add_u32 v17, v5, 3, v6', 'v_lshlrev_b32 v17, 8, v17', 'v_lshl_add_u32 v17, v7, 3, v17', 'v_lshl_or_b32 v18, v2, 2, v6', 'v_lshl_add_u32 v17, v18, 5, v17',
        f's_lshl_b32 s{S_T0}, s{S_G0+2}, 7', f's_add_u32 s{S_T0}, s{S_T0}, 16384', f'v_xor_b32 v18, s{S_T0}, v17', f's_lshl_b32 s{S_T0}, s{S_T2}, 13', f'v_add_u32 v12, s{S_T0}, v14')
    for t in range(4): a.e(f'v_xor_b32 v{8+t}, {t << 5}, v18')
    a.e('v_bfe_u32 v17, v4, 2, 1', 'v_lshlrev_b32 v17, 10, v17', 'v_lshl_add_u32 v17, v3, 8, v17', 'v_lshrrev_b32 v18, 3, v4', 'v_lshl_add_u32 v17, v18, 6, v17',
        'v_lshl_add_u32 v152, v7, 4, v17', 'v_add_u32 v153, 128, v152',
        f's_lshl_b32 s{S_T0}, s{S_TI}, 1', f's_add_u32 s{S_T0}, s{S_T0}, s{S_T2}', f's_mul_i32 s{S_T0}, s{S_T0}, 224',
        f's_lshl_b32 s{S_G0}, s{S_TJ}, 2', f's_add_u32 s{S_T0}, s{S_T0}, s{S_G0}', f's_lshl_b32 s{S_G0}, s{S_G0+2}, 1', f's_add_u32 s{S_T0}, s{S_T0}, s{S_G0}',
        f's_lshl_b32 s{S_G0}, s{S_T0}, 11', f's_add_u32 s{S_G0+1}, s{S_G0}, {112*2048}')
    a.e('s_waitcnt vmcnt(0)', 's_barrier', *stamp(7))
    for tf in range(4):
        a.e(*unpack4(144 + 2 * tf, 145 + 2 * tf, acc3(tf, 0)))
        for td in range(1, 4): a.e(f'v_mov_b64 {vr(acc3(tf,td),2)}, {vr(acc3(tf,0),2)}', f'v_mov_b64 {vr(acc3(tf,td)+2,2)}, {vr(acc3(tf,0)+2,2)}')
    reads = [[], []]; mf = [[], []]
    for h in range(2):
        F = 16 + 32 * h
        rd = lambda dst, av: [f'ds_read_b64_tr_b16 {vr(dst,2)}, v{av} offset:{h*8192}', f'ds_read_b64_tr_b16 {vr(dst+2,2)}, v{av} offset:{h*8192+1024}']
        for t in range(4): reads[h] += rd(F + 4 * t, 8 + t) + [f'ds_read_b128 {vr(F+16+4*t,4)}, v12 offset:{(2*t+h)*1024}']
        for tf, td in sorted([(tf, td) for tf in range(4) for td in range(4)], key=lambda x: (max(x), x)):
            mf[h].append(f'{MF16} {vr(acc3(tf,td),4)}, {vr(F+4*tf,4)}, {vr(F+16+4*td,4)}, {vr(acc3(tf,td),4)}')
    c_loop(a, 32, 5, 32768, reads, mf, list(range(8, 13)), True, 8)
    c1 = -2.0 * 0.7978845608028654 * 1.4426950408889634
    a.e(f'v_mov_b32 v16, {f32(c1)}', f'v_mov_b32 v17, {f32(c1 * 0.044715)}')
    k = 0
    for td in range(4):
        for P in range(2):
            d = acc3(2 * P, td); T = 24 + 16 * (k & 1); k += 1
            O = 160 + 4 * k
            for e in range(0, 8, 2): a.e(f'v_pk_mul_f32 {vr(T+e,2)}, {vr(d+e,2)}, {vr(d+e,2)}')
            for e in range(0, 8, 2): a.e(f'v_pk_fma_f32 {vr(T+e,2)}, {vr(T+e,2)}, v[16:17], v[16:17] op_sel:[0,1,0] op_sel_hi:[1,1,0]')
            for e in range(0, 8, 2): a.e(f'v_pk_mul_f32 {vr(T+e,2)}, {vr(T+e,2)}, {vr(d+e,2)}')
            for e in range(8): a.e(f'v_exp_f32 v{T+e}, v{T+e}')
            for e in range(0, 8, 2): a.e(f'v_pk_add_f32 {vr(T+e,2)}, {vr(T+e,2)}, 1.0 op_sel_hi:[1,0]')
            for e in range(8): a.e(f'v_rcp_f32 v{T+e}, v{T+e}')
            for e in range(0, 8, 2): a.e(f'v_pk_mul_f32 {vr(T+e,2)}, {vr(T+e,2)}, {vr(d+e,2)}')
            for e in range(4): a.e(f'v_cvt_pk_bf16_f32 v{O+e}, v{T+2*e}, v{T+2*e+1}')
            a.e(f'v_permlane16_swap_b32 v{O}, v{O+2}', f'v_permlane16_swap_b32 v{O+1}, v{O+3}')
            a.e(f'buffer_store_dwordx4 {vr(O,4)}, v{152+(td&1)}, {S4(SRD_D)}, s{S_G0+(td>>1)} offen offset:{2048*P} {SC}')
    a.e('C_k3skip:'); a.flush_hist()

    def acc4(aa, n): return ACC + 8 * n + 4 * aa
    tiles(a, 8, 2)
    a.e(f's_lshl_b32 s{S_T0}, s{S_TJ}, 6', f'v_add_u32 v13, s{S_T0}, v4', 'v_lshlrev_b32 v12, 11, v13', 'v_lshl_add_u32 v12, v5, 4, v12',
        f's_lshl_b32 s{S_T0}, s{S_TI}, 8', f's_lshl_b32 s{S_T1}, s{S_WAVE}, 6', f's_add_u32 s{S_T0}, s{S_T0}, s{S_T1}',
        f'v_add_u32 v12, s{S_T0}, v12', 'v_lshlrev_b32 v13, 1, v13', 'v_lshlrev_b32 v14, 4, v0',
        f's_lshl_b32 s{S_BA}, s{S_TI}, 2', f's_add_u32 s{S_BA}, s{S_BA}, s{S_WAVE}', f's_mul_i32 s{S_BA}, s{S_BA}, {56*4096}',
        's_mov_b32 s45, 32768', 's_mov_b32 s46, 65536', 's_mov_b32 s47, 98304')
    so = ['0', 's45', 's46', 's47']
    srd(a, SRD_A, P_WL, U_OFF, UB)
    srd(a, SRD_C, P_WL, X1_OFF, XB)
    srd(a, SRD_B, P_B2, 0, 4096)
    for n in range(4): a.e(f'buffer_load_ushort v{RES+16+2*n}, v13, {S4(SRD_B)}, 0 offen offset:{32*n}')
    tr128_addr(a, [8, 9, 10, 11], K4_BASE, 16, 17)
    direct_setup(a, 56)
    poll_setup(a, SRD_E, 15, 2, 0, [f's_lshl_b32 s{S_T0}, s{S_TI}, 5'], 28)
    a.e('s_waitcnt vmcnt(0)', 's_barrier', *stamp(10))
    if PF2:
        a.e('s_cmp_lt_u32 s2, 224', 's_cbranch_scc1 C_nopf', f's_cmp_lg_u32 s{S_VAR}, 0', 's_cbranch_scc1 C_nopf')
        srd(a, SRD_D, P_W2, 0, 3584 * 2048 * 2)
        a.e(f's_sub_u32 s{S_T0}, s2, 224', f's_lshl_b32 s{S_T0}, s{S_T0}, 2', f's_add_u32 s{S_T0}, s{S_T0}, s{S_WAVE}', f's_lshl_b32 s{S_T0}, s{S_T0}, 13', 'v_lshlrev_b32 v17, 7, v0')
        for j in range(14):
            a.e(f'buffer_load_dword v18, v17, {S4(SRD_D)}, s{S_T0} offen', f's_add_u32 s{S_T0}, s{S_T0}, {128*8192}', *(['s_waitcnt vmcnt(1)'] if j else []))
        a.e('C_nopf:')
    poll(a, SRD_E, 15, 16)
    a.e(*stamp(11))
    for n in range(4): a.e(f'buffer_load_dwordx4 {vr(RES+4*n,4)}, v12, {S4(SRD_C)}, {so[n]} offen {LDF}')
    sel(a, SRD_E, P_WS, X2_OFF, P_OUT, 0, XB)
    srd(a, SRD_B, P_WS, LSTR + RS_OFF, 8 * 2048 * 8)
    def init4(out):
        a.e(f's_waitcnt vmcnt({out})')
        for n in range(4):
            a.e(f'v_lshlrev_b32 v{RES+16+2*n}, 16, v{RES+16+2*n}')
            a.e(*unpack4(RES + 4 * n, RES + 4 * n + 1, acc4(0, n)), *unpack4(RES + 4 * n + 2, RES + 4 * n + 3, acc4(1, n)))
            for e in range(0, 8, 2): a.e(f'v_pk_add_f32 {vr(acc4(0,n)+e,2)}, {vr(acc4(0,n)+e,2)}, {vr(RES+16+2*n,2)} op_sel_hi:[1,0]')
    mf4 = lambda h, b: [f'{MF16} {vr(acc4(aa,n),4)}, {vr(b+4*aa,4)}, {vr(16+16*h+4*n,4)}, {vr(acc4(aa,n),4)}' for n in range(4) for aa in range(2)]
    c_direct(a, 56, K4_NS, 8192, w_reads([8, 9, 10, 11]), mf4, [8, 9, 10, 11], DR, D, 14, init4, 12)
    for n in range(4):
        for e in range(4): a.e(f'v_cvt_pk_bf16_f32 v{RES+4*n+e}, v{acc4(0,n)+2*e}, v{acc4(0,n)+2*e+1}')
        a.e(f'buffer_store_dwordx4 {vr(RES+4*n,4)}, v12, {S4(SRD_E)}, {so[n]} offen {SC}')
    a.e(f's_cmp_lg_u32 s{S_VAR}, 0', 's_cbranch_scc1 C_end')
    for n in range(4): a.e(*unpack4(RES + 4 * n, RES + 4 * n + 1, acc4(0, n)), *unpack4(RES + 4 * n + 2, RES + 4 * n + 3, acc4(1, n)))
    for n in range(4):
        d = acc4(0, n); T = 16 + 4 * n
        a.e(f'v_pk_add_f32 {vr(T,2)}, {vr(d,2)}, {vr(d+2,2)}', f'v_pk_mul_f32 {vr(T+2,2)}, {vr(d,2)}, {vr(d,2)}', f'v_pk_fma_f32 {vr(T+2,2)}, {vr(d+2,2)}, {vr(d+2,2)}, {vr(T+2,2)}')
        for e in (4, 6): a.e(f'v_pk_add_f32 {vr(T,2)}, {vr(T,2)}, {vr(d+e,2)}', f'v_pk_fma_f32 {vr(T+2,2)}, {vr(d+e,2)}, {vr(d+e,2)}, {vr(T+2,2)}')
        a.e(f'v_add_f32 v{32+n}, v{T}, v{T+1}', f'v_add_f32 v{36+n}, v{T+2}, v{T+3}')
    for b in (32, 36): a.e(f'v_permlane16_swap_b32 v{b}, v{b+1}', f'v_permlane16_swap_b32 v{b+2}, v{b+3}')
    for b in (32, 36): a.e(f'v_add_f32 v{b}, v{b}, v{b+1}', f'v_add_f32 v{b+2}, v{b+2}, v{b+3}')
    a.e('v_permlane32_swap_b32 v32, v34', 'v_permlane32_swap_b32 v36, v38', 'v_add_f32 v40, v32, v34', 'v_add_f32 v41, v36, v38',
        'v_lshlrev_b32 v42, 3, v0', f's_lshl_b32 s{S_T0}, s{S_WAVE}, 9', f's_add_u32 s{S_T0}, s{S_T0}, {K4_SCR}', f'v_add_u32 v43, s{S_T0}, v42',
        'ds_write_b64 v43, v[40:41]', 's_waitcnt lgkmcnt(0)', 's_barrier',
        f's_cmp_lg_u32 s{S_WAVE}, 0', 's_cbranch_scc1 C_nost',
        'ds_read_b64 v[44:45], v43 offset:512', 'ds_read_b64 v[46:47], v43 offset:1024', 'ds_read_b64 v[48:49], v43 offset:1536',
        f's_lshl_b32 s{S_T0}, s{S_TI}, 14', f's_lshl_b32 s{S_T1}, s{S_TJ}, 9', f's_add_u32 s{S_T0}, s{S_T0}, s{S_T1}', 's_waitcnt lgkmcnt(0)',
        'v_pk_add_f32 v[40:41], v[40:41], v[44:45]', 'v_pk_add_f32 v[46:47], v[46:47], v[48:49]', 'v_pk_add_f32 v[40:41], v[40:41], v[46:47]',
        f'buffer_store_dwordx2 v[40:41], v42, {S4(SRD_B)}, s{S_T0} offen {SC}', 'C_nost:', 's_nop 1')
    k1_setup_c()
    a.e('s_waitcnt vmcnt(0)', 's_barrier', *stamp(14))
    a.e(f's_mov_b32 s{S_VAR}, 1', f's_add_u32 s{P_WL}, s{P_WS}, {LSTR}', f's_addc_u32 s{P_WL+1}, s{P_WS+1}, 0', 's_branch C_top')
    a.e('C_end:'); dump(a)
    a.e('s_endpgm')

    gx = dict(sg=S_G0, dmas=[(8 + i, 1024 * i, 'A', None) for i in range(4)])
    gw = [dict(sg=S_G0 + 2 + m, dmas=[(13 + 2 * m, 0, 'B', None), (14 + 2 * m, 1024, 'B', None)]) for m in range(3)]
    gh = dict(sg=S_G0 + 1, dmas=[(12, 0, 'A', 's[52:53]')])
    def k1_setup_l(layer):
        tiles(a, 8, 1)
        a.e(f's_mov_b32 s{S_T2}, s{S_LWV}')
        dma_w128(a, [13, 14], 6144, swz128(a), 16, 2, 3, 4)
        a.e('v_add_u32 v15, 2048, v13', 'v_add_u32 v16, 2048, v14', 'v_add_u32 v17, 4096, v13', 'v_add_u32 v18, 4096, v14',
            f's_lshl_b32 s{S_G0+2}, s{S_T2}, 11', f's_add_u32 s{S_G0+2}, s{S_G0+2}, {XT}', f's_add_u32 s{S_G0+3}, s{S_G0+2}, 8192', f's_add_u32 s{S_G0+4}, s{S_G0+2}, 16384',
            f's_lshl_b32 s{S_BB}, s{S_TJ}, 7')
        if layer == 0: a.e('s_waitcnt lgkmcnt(0)')
        srd(a, SRD_B, P_WQKV, 0, 1024 * 3072 * 2)
        pre_w(a, 16, 3, 2, ST1, 0, 64 * 6144, gw)
        def xaddr(v, comp):
            a.e('v_lshrrev_b32 v2, 3, v0', f'v_add_u32 v2, s{S_T0}, v2', 'v_bfe_u32 v3, v2, 1, 3', 'v_and_b32 v4, 7, v0', 'v_xor_b32 v3, v3, v4', 'v_lshlrev_b32 v3, 4, v3',
                f'v_add_u32 v2, s{S_T1}, v2', 'v_max_i32 v2, 0, v2', 'v_lshlrev_b32 v2, 11, v2', f'v_add_u32 v{v}, v2, v3')
            if comp: a.e(f'v_subrev_u32 v{v}, {comp}, v{v}')
        a.e(f's_lshl_b32 s{S_T1}, s{S_TI}, 7', f's_sub_u32 s{S_T1}, s{S_T1}, 16')
        for i in range(2):
            a.e(f's_lshl_b32 s{S_T0}, s{S_T2}, 5', f's_add_u32 s{S_T0}, s{S_T0}, {16+8*i}')
            xaddr(8 + i, 1024 * i)
            a.e(f'v_add_u32 v{10+i}, {16*2048-2048}, v{8+i}')
        a.e(f's_lshl_b32 s{S_T0}, s{S_T2}, 3'); xaddr(12, 0)
        a.e(f's_lshl_b32 s{S_G0}, s{S_T2}, 12', f's_add_u32 s{S_G0}, s{S_G0}, 2048', f's_lshl_b32 s{S_G0+1}, s{S_T2}, 10', f's_mov_b32 s{S_BA}, 0',
            f's_cmp_eq_u32 s{S_T2}, 0', 's_cselect_b32 s52, 0xffffff00, -1', 's_mov_b32 s53, -1')
        a.e('v_mov_b32 v20, 0x3f803f80', 'v_mov_b32 v21, v20', 'v_mov_b32 v22, v20', 'v_mov_b32 v23, v20', 'v_lshlrev_b32 v24, 4, v0', f'v_add_u32 v25, {2*ST1}, v24',
            's_mov_b64 exec, 0xff', 'ds_write_b128 v24, v[20:23]', f'ds_write_b128 v24, v[20:23] offset:{ST1}', 'ds_write_b128 v25, v[20:23]', 's_mov_b64 exec, -1')
        if layer == 0: srd(a, SRD_A, P_X, 0, XB)
        else: srd(a, SRD_A, P_WS, X2_OFF, XB)
        srd(a, SRD_D, P_WS, layer * LSTR + RS_OFF, 8 * 2048 * 8)
        a.e(f's_lshl_b32 s{S_T0}, s{S_T2}, 6', f'v_add_u32 v26, s{S_T0}, v0', 'v_min_u32 v26, 143, v26', f'v_add_u32 v27, s{S_T1}, v26', 'v_max_i32 v27, 0, v27',
            'v_lshlrev_b32 v27, 3, v27', 'v_lshlrev_b32 v26, 3, v26', f'v_add_u32 v26, {SL}, v26', 's_waitcnt lgkmcnt(0)')
    a.e('L_start:'); a.flush_hist()
    a.e(f's_sub_u32 s{S_LWV}, s{S_WAVE}, 4')
    k1_setup_l(0)
    a.e(f's_mov_b32 s{P_WL}, s{P_WS}', f's_mov_b32 s{P_WL+1}, s{P_WS+1}')
    a.e('L_top:'); a.flush_hist()
    flag_idx(a, 0, S_TI, 16, S_TJ)
    srd(a, SRD_E, P_W1, 0, 2048 * 3584 * 2)
    a.e(f's_lshl_b32 s54, s2, 2', f's_add_u32 s54, s54, s{S_LWV}', f's_mul_i32 s54, s54, {NPF*128}', f's_add_u32 s54, s54, {W1_K0}')
    def pf():
        if not NPF: return []
        l = lab('pf')
        return [f's_cmp_lg_u32 s{S_VAR}, 0', f's_cbranch_scc1 {l}'] + [f's_buffer_load_dword s61, {S4(SRD_E)}, s54 offset:{128*i}' for i in range(NPF)] + \
               [f's_add_u32 s54, s54, {1024*NPF*128}', f'{l}:']
    a.e(f's_cmp_ge_u32 s{S_LWV}, 2', 's_cbranch_scc1 L_k1B')
    l_loop(a, 16, 3, 2, ST1, 0, 128, 64 * 6144, [gh, gx], gw, tail=1, hook=pf)
    a.e('s_branch L_k1t', 'L_k1B:'); a.flush_hist()
    l_loop(a, 16, 3, 2, ST1, 0, 128, 64 * 6144, [gx], gw, tail=1, hook=pf)
    a.e('L_k1t:'); a.flush_hist()
    for p in range(8):
        if p: a.e(f's_mov_b32 s{S_T0}, {p*16384}')
        a.e(f'buffer_load_dwordx2 {vr(30+2*p,2)}, v27, {S4(SRD_D)}, {"0" if p == 0 else f"s{S_T0}"} offen {LDF}')
    a.e(f's_mov_b32 s{S_T2}, s{S_LWV}')
    dma_w128(a, [130, 131], 2048, swz128(a), 16, 2, 3, 4)
    srd(a, SRD_B, P_WO, 0, 1024 * 1024 * 2)
    a.e(*INITK, f's_lshl_b32 s{S_G0+8}, s{S_LWV}, 11')
    def wo(t0, t1):
        for t in range(t0, t1):
            a.e(*next_k(16), f's_lshl_b32 s{S_OB}, s{S_K}, 17', f's_add_u32 s{S_OB}, s{S_OB}, s{S_BB}', f's_add_u32 m0, s{S_G0+8}, {WO_SLOTS[t]}',
                f'buffer_load_dwordx4 v130, {S4(SRD_B)}, s{S_OB} offen lds', f'buffer_load_dwordx4 v131, {S4(SRD_B)}, s{S_OB} offen offset:1024 lds')
    wo(0, 4)
    def pf3(j):
        if PF3 > j: a.e(f's_add_u32 s{S_T0}, s54, {j*8*MB}', f'buffer_load_dword v223, v132, {S4(SRD_E)}, s{S_T0} offen')
    if PF3:
        a.e(f's_cmp_eq_u32 s{S_VAR}, 0', f's_cselect_b32 s{SRD_E+2}, s{SRD_E+2}, 0', 's_lshl_b32 s54, s2, 2', f's_add_u32 s54, s54, s{S_LWV}', 's_lshl_b32 s54, s54, 13',
            f's_add_u32 s54, s54, {W1_K0}', 'v_lshlrev_b32 v132, 7, v0')
    pf3(0)
    x = 1 if PF3 else 0
    a.e(f's_waitcnt vmcnt({16+x})', 's_barrier')
    wo(4, 7)
    a.e(f's_waitcnt vmcnt({14+x})')
    a.e('v_pk_add_f32 v[30:31], v[30:31], v[32:33]', 'v_pk_add_f32 v[34:35], v[34:35], v[36:37]', 'v_pk_add_f32 v[38:39], v[38:39], v[40:41]',
        'v_pk_add_f32 v[42:43], v[42:43], v[44:45]', 'v_pk_add_f32 v[30:31], v[30:31], v[34:35]', 'v_pk_add_f32 v[38:39], v[38:39], v[42:43]',
        'v_pk_add_f32 v[30:31], v[30:31], v[38:39]')
    stats_finish(a, 30, 31, 32, False)
    a.e('ds_write_b64 v26, v[30:31]')
    lane_fields(a)
    a.e('s_waitcnt lgkmcnt(0)', 's_barrier')
    pf3(1)
    wo(7, 12)
    a.e('s_branch attn')
    a.e('L_k1done:'); a.flush_hist()
    a.e('s_waitcnt vmcnt(0)', 's_barrier')
    publish(a, 2)
    wo(12, 16)
    flag_idx(a, 1, S_TJ, 16, S_TI)
    a.e('s_waitcnt vmcnt(0)', 's_barrier')
    g4 = [dict(sg=S_G0 + 1, dmas=[(9, 0, 'B', None), (10, 1024, 'B', None)])]
    def k4_setup_l():
        tiles(a, 8, 2)
        a.e(f's_mov_b32 s{S_T2}, s{S_LWV}', f's_lshl_b32 s{S_G0+1}, s{S_T2}, 11')
        dma_w128(a, [9, 10], 4096, swz128(a), 16, 2, 3, 4)
        a.e(f's_lshl_b32 s{S_BB}, s{S_TJ}, 7')
        srd(a, SRD_B, P_W2, 0, 3584 * 2048 * 2)
    a.e('s_cmp_ge_u32 s2, 224', 's_cbranch_scc1 L_k3skip')
    tiles(a, 7, 2)
    a.e(f's_lshl_b32 s{S_G0}, s{S_LWV}, 12', f's_add_u32 s{S_G0+1}, s{S_G0}, 16384', 'v_lshlrev_b32 v8, 4, v0', f'v_add_u32 v13, {65536-2048}, v8',
        'v_lshrrev_b32 v2, 4, v0', 'v_lshlrev_b32 v3, 1, v2', 'v_and_b32 v4, 15, v0', 'v_xor_b32 v3, v3, v4', 'v_lshlrev_b32 v3, 4, v3',
        f's_lshl_b32 s{S_T0}, s{S_LWV}, 4', f'v_add_u32 v2, s{S_T0}, v2', f's_mov_b32 s{S_T0}, 7168', f'v_mul_lo_u32 v2, v2, s{S_T0}',
        'v_add_u32 v9, v2, v3', 'v_xor_b32 v3, 128, v3', 'v_add_u32 v11, v2, v3',
        f'v_add_u32 v10, {4*7168-1024}, v9', f'v_add_u32 v12, {3*(4*7168-1024)}, v11', f'v_add_u32 v11, {2*(4*7168-1024)}, v11',
        f's_lshl_b32 s{S_BA}, s{S_TI}, 2', f's_add_u32 s{S_BA}, s{S_BA}, s{S_LWV}', f's_lshl_b32 s{S_BA}, s{S_BA}, 17', f's_lshl_b32 s{S_BB}, s{S_TJ}, 8')
    srd(a, SRD_A, P_WL, H_OFF, XB)
    srd(a, SRD_B, P_W1, 0, 2048 * 3584 * 2)
    g3a = [dict(sg=S_G0, dmas=[(8 if i < 2 else 13, 1024 * i, 'A', None) for i in range(4)])]
    g3w = [dict(sg=S_G0 + 1, dmas=[(9 + i, 1024 * i, 'B', None) for i in range(4)])]
    poll_setup(a, SRD_C, 14, 1, 0, [f's_lshl_b32 s{S_T0}, s{S_TI}, 5'], 32)
    a.e('s_barrier')
    if not LATEW: pre_w(a, 32, 5, 3, 32768, 0, 64 * 7168, g3w)
    a.e('s_barrier')
    publish(a, 2)
    if LATEW: pre_w(a, 32, 5, 3, 32768, 0, 64 * 7168, g3w)
    flag_idx(a, 2, S_TI, 32, S_TJ)
    poll(a, SRD_C, 14, 15)
    l_loop(a, 32, 5, 3, 32768, 0, 2048, 64 * 7168, g3a, g3w)
    k4_setup_l()
    a.e('s_branch L_k4', 'L_k3skip:'); a.flush_hist()
    k4_setup_l()
    a.e('s_barrier')
    a.e('L_k4:'); a.flush_hist()
    pre_w(a, 56, K4_NS, K4_AH, 8192, K4_BASE, 64 * 4096, g4)
    a.e('s_barrier')
    publish(a, 2)
    flag_idx(a, 3, S_TJ, 8, S_TI)
    l_loop(a, 56, K4_NS, K4_AH, 8192, K4_BASE, 0, 64 * 4096, [], g4)
    a.e(f's_cmp_lg_u32 s{S_VAR}, 0', 's_cbranch_scc1 L_end')
    k1_setup_l(1)
    poll_setup(a, SRD_C, 28, 3, 0, [f's_lshl_b32 s{S_T0}, s{S_TI}, 4', f's_sub_u32 s{S_T0}, s{S_T0}, 8'], 24)
    a.e('s_barrier', 's_barrier')
    publish(a, 2)
    poll(a, SRD_C, 28, 29)
    a.e(f's_mov_b32 s{S_VAR}, 1', f's_add_u32 s{P_WL}, s{P_WS}, {LSTR}', f's_addc_u32 s{P_WL+1}, s{P_WS+1}, 0', 's_branch L_top')
    a.e('L_end:', f'{kn}_end:', 's_endpgm')

def dump(a):
    if not PROF: return
    a.e('s_waitcnt vmcnt(0)', *stamp(14), f's_cmp_lg_u32 s{S_WAVE}, 0', 's_cbranch_scc1 nodump', 's_lshl_b32 s58, s2, 8', f's_add_u32 s58, s58, {PR_OFF}',
        'v_lshlrev_b32 v251, 2, v0', 'v_add_u32 v251, s58, v251', f'global_store_dword v251, v{PV}, s[{P_WS}:{P_WS+1}]', 'nodump:')

def gen_k0(a):
    a.e('.p2align 8', 'k0_kernel:', 's_cmp_ge_u32 s2, 256', 's_cbranch_scc1 k0_end',
        's_load_dwordx16 s[64:79], s[0:1], 0', 's_load_dwordx2 s[84:85], s[0:1], 80',
        'v_lshrrev_b32 v1, 6, v0', 'v_lshlrev_b32 v20, 4, v0', 'v_and_b32 v0, 63, v0', f'v_readfirstlane_b32 s{S_WAVE}, v1',
        's_lshl_b32 s30, s2, 3', f's_add_u32 s30, s30, s{S_WAVE}',
        's_lshl_b32 s31, s30, 11', 'v_lshlrev_b32 v2, 5, v0',
        's_lshl_b32 s32, s2, 2', f's_and_b32 s33, s{S_WAVE}, 3', 's_add_u32 s32, s32, s33', 's_lshl_b32 s32, s32, 13', 'v_lshlrev_b32 v3, 7, v0', 'v_add_u32 v3, s32, v3',
        f'v_subrev_u32 v4, {1024*3072*2}, v3', 's_waitcnt lgkmcnt(0)')
    srd(a, SRD_A, P_X, 0, XB)
    a.e(f'buffer_load_dwordx4 v[8:11], v2, {S4(SRD_A)}, s31 offen', f'buffer_load_dwordx4 v[12:15], v2, {S4(SRD_A)}, s31 offen offset:16')
    KW = int(env('K0WARM', '1'))
    srd(a, SRD_B, P_WQKV, 0, 1024 * 3072 * 2 * KW)
    srd(a, SRD_C, P_WO, 0, 1024 * 1024 * 2 * KW)
    srd(a, SRD_E, P_W1, 0, W1_K0)
    a.e(f's_sub_u32 s33, s{S_WAVE}, 4', 's_lshl_b32 s33, s33, 8', 's_add_u32 s33, s33, s2', 's_lshl_b32 s33, s33, 13', 'v_lshlrev_b32 v7, 7, v0',
        f's_cmp_ge_u32 s{S_WAVE}, 4', 's_cbranch_scc1 k0_nw', f'buffer_load_dword v5, v3, {S4(SRD_B)}, 0 offen', f'buffer_load_dword v6, v4, {S4(SRD_C)}, 0 offen', 's_branch k0_nx',
        'k0_nw:', f'buffer_load_dword v5, v7, {S4(SRD_E)}, s33 offen', 'k0_nx:')
    if CODEPF:
        a.e(f's_cmp_lg_u32 s{S_WAVE}, 7', 's_cbranch_scc1 k0_nc', 's_getpc_b64 s[40:41]', 'k0_pc:', 's_add_u32 s40, s40, mega_kernel-k0_pc', 's_addc_u32 s41, s41, 0',
            's_lshr_b32 s42, s2, 3', 's_lshl_b32 s42, s42, 11', 'v_and_b32 v25, 15, v0', 'v_lshlrev_b32 v25, 7, v25', 'v_add_u32 v25, s42, v25',
            'v_min_u32 v25, mega_end-mega_kernel, v25', 'global_load_dword v26, v25, s[40:41]', 'k0_nc:')
    srd(a, SRD_D, P_WS, 0, 64 * MB)
    a.e(f's_cmp_eq_u32 s{S_WAVE}, 0', 's_cselect_b32 s33, 0, -1', 'v_mov_b32 v16, s33', 'v_mov_b32 v17, s33', 'v_mov_b32 v18, s33', 'v_mov_b32 v19, s33',
        f's_mov_b32 s34, {ST_OFF}', f's_cselect_b32 s34, {FL_OFF}, s34', f's_cmp_eq_u32 s{S_WAVE}, 2', f's_cselect_b32 s34, {LSTR + ST_OFF}, s34', 's_lshl_b32 s35, s2, 10', 's_add_u32 s34, s34, s35',
        'v_lshlrev_b32 v20, 4, v0', f's_cmp_ge_u32 s{S_WAVE}, 3', 's_cbranch_scc1 k0_nr', f'buffer_store_dwordx4 v[16:19], v20, {S4(SRD_D)}, s34 offen', 'k0_nr:')
    a.e('v_mov_b32 v22, 0', 'v_mov_b32 v23, 0', 'v_mov_b32 v21, 0x3f803f80', 'v_lshrrev_b32 v24, 3, v0', 'v_lshlrev_b32 v24, 14, v24', 's_lshl_b32 s36, s30, 3', f's_add_u32 s36, s36, {RS_OFF}',
        's_waitcnt vmcnt(0)')
    for e in range(8): a.e(f'v_dot2c_f32_bf16 v22, v21, v{8+e}', f'v_dot2c_f32_bf16 v23, v{8+e}, v{8+e}')
    for ctl in ('quad_perm:[1,0,3,2]', 'quad_perm:[2,3,0,1]', 'row_half_mirror'):
        a.e(f'v_add_f32_dpp v22, v22, v22 {ctl} row_mask:0xf bank_mask:0xf', f'v_add_f32_dpp v23, v23, v23 {ctl} row_mask:0xf bank_mask:0xf')
    a.e('s_mov_b32 exec_lo, 0x01010101', 's_mov_b32 exec_hi, 0x01010101', f'buffer_store_dwordx2 v[22:23], v24, {S4(SRD_D)}, s36 offen', 'k0_end:', 's_endpgm')

def main(out):
    a = Asm()
    gen_k0(a); a.flush_hist(); gen_mega(a)
    info = {'k0_kernel': (32, 0), 'mega_kernel': (256 if PROF else 224, 163840)}
    ref = open(os.path.join(os.path.dirname(os.path.abspath(__file__)), '..', NAME + '.s.ref')).read().splitlines()
    hdr = [l for l in ref if l.startswith(';') and '@launch' not in l and 'Override launch' not in l and 'grid=ceil' not in l]
    hdr += [f'; @launch kernel={n} grid=(256,1,1) block=(512,1,1) lds={v[1]}' for n, v in info.items()]
    s = '\n'.join(hdr) + '\n; generated by gen/gen2.py\n.amdgcn_target "amdgcn-amd-amdhsa--gfx950"\n.text\n' + a.text() + '.section .rodata,"a"\n'
    for n, (vg, _) in info.items():
        s += f'''.p2align 6
.amdhsa_kernel {n}
  .amdhsa_next_free_vgpr {vg}
  .amdhsa_next_free_sgpr 102
  .amdhsa_accum_offset {vg}
  .amdhsa_group_segment_fixed_size 0
  .amdhsa_kernarg_size 88
  .amdhsa_user_sgpr_count 2
  .amdhsa_user_sgpr_kernarg_segment_ptr 1
  .amdhsa_system_sgpr_workgroup_id_x 1
.end_amdhsa_kernel
'''
    open(out, 'w').write(s)

if __name__ == '__main__':
    main(sys.argv[1])
```

```python
import sys, os, struct
sys.path.insert(0, os.path.dirname(os.path.abspath(__file__)))
from asmlib import *
import gen as G
from gen import (NAME, MB, XB, UB, f32, env, S4, srd, next_k, adv_s, sched, bundle, spread, lane_fields, tr128_addr, swz128, unpack4,
                 dma_w128, stats_finish, MF16, S_VAR, S_WAVE, S_LI, S_LJ, S_PHI, SRD_A, SRD_B, SRD_C, SRD_D, SRD_E, S_TI, S_TJ,
                 S_P, S_W, S_T0, S_K, S_BA, S_BB, S_OA, S_OB, S_LW, S_CNT, S_T1, S_T2, S_DELTA, S_CUR, S_G0,
                 P_X, P_WQKV, P_WO, P_W1, P_B1, P_W2, P_B2, P_OUT, P_WS)

LSTR = 32 * MB
O_OFF, X1_OFF, H_OFF, U_OFF, ST_OFF, RS_OFF = 0, 4 * MB, 8 * MB, 12 * MB, 20 * MB, 21 * MB
X2_OFF, FL_OFF, PR_OFF = 24 * MB, 28 * MB, 64 * MB
P_WL = 82
S_LWV, S_FLG = 57, 56
SC = 'sc0 sc1'
LDF = env('LDF', 'sc1')
PROF = env('PROF') == '1'
PV = 250
SINGLE = env('SINGLE', '1') == '1'
MEGA = NAME + '_kernel' if SINGLE else 'mega_kernel'
P_DB = 62
SPIN = 100000

def stamp(k):
    if not PROF: return []
    return ['s_memrealtime s[58:59]', 's_memtime s[100:101]', 's_waitcnt lgkmcnt(0)', f's_lshl_b32 s60, s{S_VAR}, 4', f's_add_u32 m0, s60, {k+1}', 's_nop 0', f'v_writelane_b32 v{PV}, s58, m0',
            's_add_u32 m0, m0, 32', 's_nop 0', f'v_writelane_b32 v{PV}, s100, m0']
G.stamp = lambda idx=None: []
G.cstamp = lambda idx: []

def tiles(a, LN, xshift):
    a.e(f's_lshr_b32 s{S_T0}, s2, 3')
    if LN == 8: a.e(f's_lshr_b32 s{S_LI}, s{S_T0}, 3', f's_and_b32 s{S_LJ}, s{S_T0}, 7')
    else: a.e(f's_mul_i32 s{S_LI}, s{S_T0}, {65536 // LN + 1}', f's_lshr_b32 s{S_LI}, s{S_LI}, 16', f's_mul_i32 s{S_LJ}, s{S_LI}, {LN}', f's_sub_u32 s{S_LJ}, s{S_T0}, s{S_LJ}')
    a.e(f's_lshl_b32 s{S_PHI}, s{S_LI}, 1', f's_add_u32 s{S_PHI}, s{S_PHI}, s{S_LJ}', f's_and_b32 s{S_PHI}, s{S_PHI}, 7',
        f's_and_b32 s{S_T0}, s2, 7', f's_lshr_b32 s{S_TI}, s{S_T0}, {xshift}', f's_lshl_b32 s{S_TI}, s{S_TI}, 2', f's_add_u32 s{S_TI}, s{S_TI}, s{S_LI}',
        f's_and_b32 s{S_TJ}, s{S_T0}, {(1 << xshift) - 1}', f's_mul_i32 s{S_TJ}, s{S_TJ}, {LN}', f's_add_u32 s{S_TJ}, s{S_TJ}, s{S_LJ}', *INITK)
INITK = [f's_mov_b32 s{S_P}, 7', f's_mov_b32 s{S_W}, -1']

def flag_idx(a, ph, hi, mul, lo):
    a.e(f's_lshl_b32 s{S_FLG}, s{S_VAR}, 10', f's_mul_i32 s{S_T0}, s{hi}, {mul}', f's_add_u32 s{S_FLG}, s{S_FLG}, s{S_T0}', f's_add_u32 s{S_FLG}, s{S_FLG}, s{lo}',
        f's_add_u32 s{S_FLG}, s{S_FLG}, {ph*256}', f's_lshl_b32 s{S_FLG}, s{S_FLG}, 7')

_n = [0]
def lab(p): _n[0] += 1; return f'{p}{_n[0]}'

def publish(a, vt):
    l = lab('pub')
    a.e(f's_cmp_lg_u32 s{S_LWV}, 0', f's_cbranch_scc1 {l}')
    srd(a, SRD_E, P_WS, FL_OFF, 8 * 256 * 128)
    a.e(f'v_mov_b32 v{vt}, 0', f'v_mov_b32 v{vt+1}, 1', 's_mov_b64 exec, 1', f'buffer_store_dword v{vt+1}, v{vt}, {S4(SRD_E)}, s{S_FLG} offen {SC}', 's_mov_b64 exec, -1', f'{l}:')

def poll_setup(a, sr_, va, ph, dl, base_lines, n):
    srd(a, sr_, P_WS, FL_OFF, 8 * 256 * 128)
    a.e(*base_lines, f'v_min_u32 v{va}, {n-1}, v0', f'v_add_u32 v{va}, s{S_T0}, v{va}', f'v_max_i32 v{va}, 0, v{va}', f'v_lshlrev_b32 v{va}, 7, v{va}',
        f's_lshl_b32 s55, s{S_VAR}, 17', f's_add_u32 s55, s55, {(dl * 4 + ph) * 32768}')

def poll(a, sr_, va, vt):
    l = lab('poll')
    a.e(f's_mov_b32 s{S_CNT}, 0')
    a.loop([f'{l}:', f'buffer_load_dword v{vt}, v{va}, {S4(sr_)}, s55 offen {SC}', 's_waitcnt vmcnt(0)', f'v_cmp_eq_u32 vcc, 0, v{vt}',
            f's_add_u32 s{S_CNT}, s{S_CNT}, 1', f's_cmp_gt_u32 s{S_CNT}, {SPIN}', f's_cbranch_scc1 {l}d', f's_cbranch_vccnz {l}'])
    a.e(f'{l}d:')

def dma_groups(groups, lw_s):
    L = []
    for g in groups:
        L.append(f's_add_u32 m0, s{lw_s}, s{g["sg"]}')
        for (v, imm, st, ex) in g['dmas']:
            srdn, so, fl = (SRD_A, S_OA, LDF) if st == 'A' else (SRD_B, S_OB, '')
            if ex: L.append(f's_mov_b64 exec, {ex}')
            L.append(f'buffer_load_dwordx4 v{v}, {S4(srdn)}, s{so} offen offset:{imm} {fl} lds')
            if ex: L.append('s_mov_b64 exec, -1')
    return L

def issue(NK, NS, stage, base, stepA, stepB, gA, gW):
    L = next_k(NK)
    if gA: L += [f's_mul_i32 s{S_OA}, s{S_K}, {stepA}', f's_add_u32 s{S_OA}, s{S_OA}, s{S_BA}']
    if gW: L += [f's_mul_i32 s{S_OB}, s{S_K}, {stepB}', f's_add_u32 s{S_OB}, s{S_OB}, s{S_BB}']
    L += dma_groups(gA + gW, S_LW)
    L += [f's_add_u32 s{S_LW}, s{S_LW}, {stage}', f's_cmp_eq_u32 s{S_LW}, {base + NS*stage}', f's_cselect_b32 s{S_LW}, {base}, s{S_LW}']
    return L

def pre_w(a, NK, NS, AH, stage, base, stepB, gW):
    a.e(*INITK, f's_mov_b32 s{S_LW}, {base}')
    for s in range(AH): a.e(*issue(NK, NS, stage, base, 0, stepB, [], gW))

def l_loop(a, NK, NS, AH, stage, base, stepA, stepB, gA, gW, tail=0, hook=lambda: []):
    nA = sum(len(g['dmas']) for g in gA); n = nA + sum(len(g['dmas']) for g in gW)
    iss = lambda: issue(NK, NS, stage, base, stepA, stepB, gA, gW) + hook()
    t0 = 0
    if gA:
        a.e(*INITK, f's_mov_b32 s{S_LW}, {base}')
        for s in range(AH): a.e(*issue(NK, NS, stage, base, stepA, stepB, gA, []))
        for t in range(AH - 1):
            a.e(f's_waitcnt vmcnt({(AH - 1 - t) * nA + t * n})', 's_barrier', *iss())
        t0 = AH - 1
    l = lab('ll')
    a.e(f's_mov_b32 s{S_CNT}, {NK - AH - t0}')
    a.loop([f'{l}:', f's_waitcnt vmcnt({(AH-1)*n})', 's_barrier'] + iss() + [f's_sub_u32 s{S_CNT}, s{S_CNT}, 1', f's_cmp_lg_u32 s{S_CNT}, 0', f's_cbranch_scc1 {l}'])
    for j in range(AH - tail):
        a.e(f's_waitcnt vmcnt({(AH-1-j)*n})', 's_barrier')

def c_loop(a, NK, NS, stage, reads, mfmas, addr_regs, late, st0, post=(), pre=()):
    adv = adv_s(NS, stage)
    advv = [f'v_add_u32 v{r}, s{S_DELTA}, v{r}' for r in addr_regs]
    a.e(f's_mov_b32 s{S_CUR}, 0', f's_mov_b32 s{S_CNT}, {NK - 1}', 's_barrier', *stamp(st0))
    a.e(*reads[0]); a.e(*adv)
    q0 = [Ins(x).wr for x in reads[0]]
    q = list(q0)
    l = lab('cl')
    body = [f'{l}:'] + sched(mfmas[0], bundle(reads[1], advv), q, 1)
    if not late: body.append('s_waitcnt lgkmcnt(0)'); q.clear()
    body += list(pre) + ['s_barrier'] + list(post) + sched(mfmas[1], spread(reads[0], adv), q, 1)
    assert q == q0
    body += [f's_sub_u32 s{S_CNT}, s{S_CNT}, 1', f's_cmp_lg_u32 s{S_CNT}, 0', f's_cbranch_scc1 {l}']
    a.loop(body)
    q = list(q0)
    a.e(*sched(mfmas[0], reads[1], q, 1)); a.e(*sched(mfmas[1], [], q)); a.e('s_waitcnt lgkmcnt(0)', *stamp(st0 + 1))

S_LM, S_B0, S_B1 = 48, 49, 50
def c_direct(a, NK, NS, stage, reads, mf, addr_regs, DR, D, vaddr, init, st0, slots=None):
    R = NK // 8
    advv = lambda src: [f'v_add_u32 v{r}, {src}, v{r}' for r in addr_regs]
    def nk(t):
        p = t % 8
        L = []
        if p == 0 and t != 0: L += [f's_mov_b32 s{S_B0}, s{S_B1}', f's_add_u32 s{S_B1}, s{S_B1}, 32768', f's_cmp_eq_u32 s{S_B1}, s{S_T2}', f's_cselect_b32 s{S_B1}, s{S_BA}, s{S_B1}']
        return L + [f's_bitcmp1_b32 s{S_LM}, {p}', f's_cselect_b32 s{S_OA}, s{S_B1}, s{S_B0}', f's_add_u32 s{S_OA}, s{S_OA}, {p*4096}']
    ld = lambda slot, i: f'buffer_load_dwordx4 {vr(DR+16*slot+4*i,4)}, v{vaddr}, {S4(SRD_A)}, s{S_OA} offen offset:{1024*i} {LDF}'
    adv = [] if slots else adv_s(NS, stage)
    vq = []
    for sl in range(D):
        a.e(*nk(sl))
        for i in range(4 if sl < D - 1 else 2):
            a.e(ld(sl, i)); vq.append(Ins(ld(sl, i)).wr)
        if sl == 1: init(8)
    a.e(f's_mov_b32 s{S_CUR}, 0', f's_mov_b32 s{S_CNT}, {R - 1}', 's_barrier', *stamp(st0))
    a.e(*reads[0]); a.e(*adv)
    q0 = [Ins(x).wr for x in reads[0]]
    def mix(items, loads, pos):
        items = [list(x) for x in items]
        for l, p in zip(loads, pos): items[p] = items[p] + [l]
        return items
    def step(t, vq, generic):
        slot = t % D
        q = list(q0)
        final = not generic and t == NK - 1
        l0 = [ld((slot - 1) % D, 2), ld((slot - 1) % D, 3)] if generic or t - 1 + D < NK else []
        av = [] if final else advv(f's{S_DELTA}' if not slots else (slots[t + 1] - slots[t]) & 0xffffffff)
        L = sched(mf(0, DR + 16 * slot), mix(bundle(reads[1], av), l0, (2, 6)), q, 1, vq=vq)
        if final: return L + sched(mf(1, DR + 16 * slot + 8), [], q, 1, vq=vq)
        more = generic or t + D < NK
        it = [[r] for r in reads[0]]
        sc = (nk(t + D) if more else []) + adv
        for i, x in enumerate(sc): it[min(i // 2, len(it) - 1)].append(x)
        l1 = [ld(slot, 0), ld(slot, 1)] if more else []
        return L + ([] if slots else ['s_barrier']) + sched(mf(1, DR + 16 * slot + 8), mix(it, l1, (4, 7)), q, 1, vq=vq)
    if slots:
        for t in range(NK): a.e(*step(t, vq, False))
    else:
        v1 = list(vq); l = lab('cd')
        body = [f'{l}:']
        for t in range(8, 16): body += step(t, v1, True)
        assert v1 == vq
        a.loop(body + [f's_sub_u32 s{S_CNT}, s{S_CNT}, 1', f's_cmp_lg_u32 s{S_CNT}, 0', f's_cbranch_scc1 {l}'])
        for t in range(NK - 8, NK): a.e(*step(t, vq, False))
    a.e('s_waitcnt lgkmcnt(0)', *stamp(st0 + 1))

def direct_setup(a, NK):
    a.e(f's_lshl_b32 s{S_LM}, 0x303, s{S_PHI}', f's_lshr_b32 s{S_LM}, s{S_LM}, 8', f's_mov_b32 s{S_B0}, s{S_BA}', f's_add_u32 s{S_B1}, s{S_BA}, 32768',
        f's_add_u32 s{S_T2}, s{S_BA}, {NK*4096}')

def w_reads(regs):
    return [[f'ds_read_b64_tr_b16 {vr(16+16*h+4*n+2*q,2)}, v{regs[n]} offset:{h*4096+q*512}' for n in range(4) for q in range(2)] for h in range(2)]

def sel(a, d, ptr0, off0, ptr1, off1, nbytes): G.srd_sel(a, d, ptr0, off0, ptr1, off1, nbytes)

XT = 18432; ST1 = XT + 24576; SL = 3 * ST1; QKV = ST1; PITCH = 400; PB = 72 * PITCH
WO_SLOTS = [131072 + 8192 * i for i in range(4)] + [100608 + 8192 * i for i in range(3)] + [8192 * i for i in range(5)] + [QKV + 8192 * i for i in range(4)]
K4_BASE, K4_NS, K4_AH = 98304, 8, 6
K4_SCR = 90112
D = 4; DR = 120
PF1 = int(env('PF1', '0'), 0); CPRIO = int(env('CPRIO', '0'))
NPF = int(env('NPF', '0')); K0W = int(env('K0W', '0')); W1_K0 = K0W * 256 * 64 * 128
PF3 = int(env('PF3', '0')); CODEPF = env('CODEPF', '0') == '1'; PF2 = env('PF2', '1') == '1'; LATEW = env('LATEW', '1') == '1'

def gen_mega(a):
    kn = 'mega'
    a.e('.p2align 8', f'{MEGA}:', 's_cmp_ge_u32 s2, 256', f's_cbranch_scc1 {kn}_end',
        's_load_dwordx16 s[64:79], s[0:1], 0', 's_load_dwordx2 s[80:81], s[0:1], 64', 's_load_dwordx2 s[84:85], s[0:1], 80', f's_load_dwordx2 s[{P_DB}:{P_DB+1}], s[0:1], 72',
        'v_lshrrev_b32 v1, 6, v0', 'v_and_b32 v0, 63, v0', f'v_readfirstlane_b32 s{S_WAVE}, v1', f's_mov_b32 s{S_VAR}, 0')
    if PROF: a.e(f'v_mov_b32 v{PV}, 0', *stamp(-1))
    a.e(f's_cmp_ge_u32 s{S_WAVE}, 4', f's_cbranch_scc1 L_start')

    ACC1 = 112
    def acc1(m, rt): return ACC1 + 36 * m + 4 * rt
    def k1_setup_c():
        tiles(a, 8, 1)
        lane_fields(a)
        tr128_addr(a, [8], XT, 21, 22)
        a.e(f's_lshl_b32 s{S_T0}, s{S_WAVE}, 5', f'v_xor_b32 v8, s{S_T0}, v8',
            'v_lshrrev_b32 v21, 1, v4', 'v_xor_b32 v21, v21, v5', 'v_lshlrev_b32 v21, 4, v21', 'v_lshlrev_b32 v22, 7, v4', 'v_add_u32 v9, v21, v22', 'v_xor_b32 v10, 64, v9',
            'v_and_b32 v21, 1, v4', f'v_mul_u32_u24 v21, {PB}, v21', 'v_lshrrev_b32 v22, 1, v4', f'v_mul_u32_u24 v22, {PITCH}, v22',
            'v_lshlrev_b32 v23, 3, v5', 'v_add3_u32 v11, v21, v22, v23', f's_add_u32 s{S_T0}, s{S_T0}, {QKV}',
            f'v_add_u32 v11, s{S_T0}, v11', 'v_lshlrev_b32 v12, 3, v4', f'v_add_u32 v12, {SL}, v12')
        for r in range(ACC1, ACC1 + 108, 2): a.e(f'v_mov_b64 {vr(r,2)}, 0')
    if CPRIO: a.e(f's_setprio {CPRIO}')
    if SINGLE:
        a.e(f's_lshl_b32 s{S_T0}, s2, 3', f's_lshl_b32 s{S_T1}, s{S_WAVE}, 1', f's_add_u32 s{S_T0}, s{S_T0}, s{S_T1}',
            'v_lshrrev_b32 v16, 5, v0', f'v_add_u32 v16, s{S_T0}, v16', 'v_lshlrev_b32 v17, 11, v16', 'v_and_b32 v18, 31, v0', 'v_lshl_add_u32 v17, v18, 4, v17',
            'v_lshlrev_b32 v16, 3, v16', f'v_add_u32 v16, {RS_OFF}, v16',
            f's_cmp_eq_u32 s{S_WAVE}, 0', 's_cselect_b32 s44, 0, -1', 'v_mov_b32 v24, s44', 'v_mov_b32 v25, s44', 'v_mov_b32 v26, s44', 'v_mov_b32 v27, s44',
            'v_lshrrev_b32 v19, 3, v0', 'v_lshlrev_b32 v19, 15, v19', 'v_and_b32 v20, 7, v0', 'v_lshl_add_u32 v19, v20, 4, v19', 'v_lshlrev_b32 v20, 4, v0',
            's_cselect_b64 vcc, -1, 0', 's_lshl_b32 s45, s2, 7', f's_add_u32 s45, s45, {FL_OFF}', 's_lshl_b32 s46, s2, 10', f's_add_u32 s46, s46, {ST_OFF}',
            f's_cmp_eq_u32 s{S_WAVE}, 0', 's_cselect_b32 s45, s45, s46', f's_add_u32 s46, s46, {LSTR}', f's_cmp_eq_u32 s{S_WAVE}, 2', 's_cselect_b32 s45, s46, s45',
            'v_cndmask_b32 v19, v20, v19, vcc', 's_waitcnt lgkmcnt(0)')
        srd(a, SRD_A, P_X, 0, XB)
        for c in range(4): a.e(f'buffer_load_dwordx4 {vr(32+4*c,4)}, v17, {S4(SRD_A)}, 0 offen offset:{512*c}')
        srd(a, SRD_C, P_WS, 0, 64 * MB)
        a.e(f's_cmp_eq_u32 s{S_WAVE}, 3', 's_cbranch_scc1 C_nors', f'buffer_store_dwordx4 v[24:27], v19, {S4(SRD_C)}, s45 offen {SC}', 'C_nors:')
    k1_setup_c()
    a.e('s_waitcnt lgkmcnt(0)', f's_mov_b32 s{P_WL}, s{P_WS}', f's_mov_b32 s{P_WL+1}, s{P_WS+1}')
    if SINGLE:
        a.e('v_mov_b32 v28, 0', 'v_mov_b32 v29, 0', 'v_mov_b32 v31, 0x3f803f80', 's_and_b32 s44, s2, 3', 's_lshl_b32 s44, s44, 6', 'v_mov_b32 v220, s44', 'v_mov_b32 v221, 1', f's_cmp_eq_u32 s{S_WAVE}, 3', 's_cbranch_scc0 C_w1', 's_waitcnt vmcnt(0)', 'C_w1:', 's_waitcnt vmcnt(1)')
        for e in range(16): a.e(f'v_dot2c_f32_bf16 v28, v31, v{32+e}', f'v_dot2c_f32_bf16 v29, v{32+e}, v{32+e}')
        for ctl in ('quad_perm:[1,0,3,2]', 'quad_perm:[2,3,0,1]', 'row_half_mirror', 'row_mirror'):
            a.e(f'v_add_f32_dpp v28, v28, v28 {ctl} row_mask:0xf bank_mask:0xf', f'v_add_f32_dpp v29, v29, v29 {ctl} row_mask:0xf bank_mask:0xf')
        a.e('v_mov_b32 v30, v28', 'v_mov_b32 v31, v29', 'v_permlane16_swap_b32 v28, v30', 'v_permlane16_swap_b32 v29, v31', 'v_add_f32 v28, v28, v30', 'v_add_f32 v29, v29, v31',
            's_mov_b32 exec_lo, 1', 's_mov_b32 exec_hi, 1', f'buffer_store_dwordx2 v[28:29], v16, {S4(SRD_C)}, 0 offen {SC}', 's_mov_b64 exec, -1')
    a.e('C_top:'); a.flush_hist()
    reads = [[], []]; mf = [[], []]
    for h in range(2):
        F = 16 + 48 * h
        ra = [[f'ds_read_b64_tr_b16 {vr(F+4*m,2)}, v8 offset:{m*8192+h*4096}', f'ds_read_b64_tr_b16 {vr(F+4*m+2,2)}, v8 offset:{m*8192+h*4096+512}'] for m in range(3)]
        rb = [f'ds_read_b128 {vr(F+12+4*rt,4)}, v{9+h} offset:{rt*2048}' for rt in range(9)]
        reads[h] = ra[0] + [rb[0]] + ra[1] + ra[2] + rb[1:]
        mf[h] = [f'{MF16} {vr(acc1(m,rt),4)}, {vr(F+4*m,4)}, {vr(F+12+4*rt,4)}, {vr(acc1(m,rt),4)}' for rt in range(9) for m in range(3)]
    post = []; pre = []
    if SINGLE:
        a.e(f's_or_b32 s51, s{S_VAR}, s{S_WAVE}', 's_cmp_eq_u32 s51, 0', 's_cselect_b32 s51, 15, 0')
        pre = [f's_cmp_lg_u32 s{S_CNT}, 15', 's_cbranch_scc1 C_nodr', 's_waitcnt vmcnt(0)', 'C_nodr:']
        post = [f's_cmp_lg_u32 s{S_CNT}, s51', 's_cbranch_scc1 C_nogate', 's_mov_b64 exec, 1', f'global_atomic_add v220, v221, s[{P_DB}:{P_DB+1}] sc1', 's_mov_b64 exec, -1', 'C_nogate:']
    if PF1:
        srd(a, SRD_C, P_W1, 0, 2048 * 3584 * 2)
        a.e(f's_lshr_b32 s{S_T0}, s2, 5', f's_lshl_b32 s48, {PF1}, s{S_T0}', f's_cmp_eq_u32 s{S_VAR}, 0', 's_cselect_b32 s48, s48, 0',
            f's_xor_b32 s{S_T0}, s{S_T0}, 7', f's_lshl_b32 s49, s{S_T0}, 5', 's_and_b32 s50, s2, 31', 's_add_u32 s49, s49, s50', 's_lshl_b32 s49, s49, 2', f's_add_u32 s49, s49, s{S_WAVE}',
            's_lshl_b32 s49, s49, 13', f's_add_u32 s49, s49, {W1_K0}', 'v_lshlrev_b32 v13, 7, v0')
        post += [f's_bitcmp1_b32 s48, s{S_CNT}', 's_cbranch_scc0 C_npf1', f'buffer_load_dword v222, v13, {S4(SRD_C)}, s49 offen', f's_add_u32 s49, s49, {1024*8192}', 'C_npf1:']
    c_loop(a, 16, 3, ST1, reads, mf, [8, 9, 10], False, 0, post, pre)
    a.e('s_barrier')
    for rt in range(9): a.e(f'ds_read_b64 {vr(32+2*rt,2)}, v12 offset:{rt*128}')
    for m in range(3):
        for r in range(4): a.e(f'v_mov_b32_dpp v{16+4*m+r}, v{acc1(m,0)+r} row_newbcast:0 row_mask:0xf bank_mask:0xf')
    a.e('s_waitcnt lgkmcnt(0)')
    k = 0
    for rt in range(9):
        ms = [m for m in range(3) if not (m == 0 and rt == 0)]
        st = vr(32 + 2 * rt, 2)
        for m in ms:
            for e in (0, 2): a.e(f'v_pk_fma_f32 {vr(acc1(m,rt)+e,2)}, {vr(16+4*m+e,2)}, {st}, {vr(acc1(m,rt)+e,2)} op_sel_hi:[1,0,1] neg_lo:[0,1,0] neg_hi:[0,1,0]')
        for m in ms:
            for e in (0, 2): a.e(f'v_pk_mul_f32 {vr(acc1(m,rt)+e,2)}, {vr(acc1(m,rt)+e,2)}, {st} op_sel:[0,1] op_sel_hi:[1,1]')
        for m in ms:
            d = acc1(m, rt); o = 52 + 2 * (k & 7); k += 1
            a.e(f'v_cvt_pk_bf16_f32 v{o}, v{d}, v{d+1}', f'v_cvt_pk_bf16_f32 v{o+1}, v{d+2}, v{d+3}', f'ds_write_b64 v11, {vr(o,2)} offset:{rt*8*PITCH+m*128}')
    a.e('attn:'); a.flush_hist()
    MK = 86
    srd(a, SRD_D, P_WL, O_OFF, XB)
    a.e(f's_lshr_b32 s{S_T1}, s{S_WAVE}, 1', f's_and_b32 s{S_T2}, s{S_WAVE}, 1',
        f's_mul_i32 s{S_T0}, s{S_T2}, {PB}', f's_add_u32 s{S_T0}, s{S_T0}, {QKV}', f's_lshl_b32 s{S_G0+5}, s{S_T1}, 4')
    a.e(f'v_add_u32 v16, s{S_G0+5}, v4', 'v_lshlrev_b32 v17, 4, v5', f'v_add_u32 v17, s{S_T0}, v17',
        f'v_mul_u32_u24 v18, {PITCH}, v16', 'v_add_u32 v8, v18, v17', f'v_add_u32 v10, {8*PITCH}, v8', 'v_add_u32 v8, 128, v8',
        'v_add_u32 v16, 16, v16', 'v_min_u32 v16, 71, v16', f'v_mul_u32_u24 v18, {PITCH}, v16', 'v_add3_u32 v9, v18, v17, 64', 'v_add_u32 v9, 64, v9')
    a.e('v_lshl_add_u32 v16, v5, 2, v6', f'v_add_u32 v16, s{S_G0+5}, v16', 'v_lshlrev_b32 v17, 4, v7', f'v_add_u32 v17, s{S_T0}, v17', 'v_add_u32 v17, 256, v17',
        f'v_mul_u32_u24 v18, {PITCH}, v16', 'v_add_u32 v14, v18, v17',
        'v_add_u32 v16, 16, v16', 'v_min_u32 v16, 71, v16', f'v_mul_u32_u24 v18, {PITCH}, v16', 'v_add_u32 v15, v18, v17')
    a.e('v_lshlrev_b32 v13, 4, v0', f's_lshl_b32 s{S_G0+6}, s{S_TI}, 2', f's_add_u32 s{S_G0+6}, s{S_G0+6}, s{S_T1}', f's_lshl_b32 s{S_G0+6}, s{S_G0+6}, 16',
        f's_lshl_b32 s{S_G0+7}, s{S_TJ}, 12', f's_add_u32 s{S_G0+6}, s{S_G0+6}, s{S_G0+7}', f's_lshl_b32 s{S_G0+7}, s{S_T2}, 10', f's_add_u32 s{S_G0+6}, s{S_G0+6}, s{S_G0+7}')
    a.e('v_lshlrev_b32 v16, 2, v5', 'v_sub_u32 v16, v16, v4', f's_or_b32 s{S_G0+7}, s{S_TI}, s{S_T1}', f's_cmp_eq_u32 s{S_G0+7}, 0', f's_cselect_b32 s{S_G0+7}, 0, -1')
    for k in range(8):
        a.e(f'v_add_u32 v17, {16 * (k >> 2) + (k & 3) - 1}, v16', f'v_cmp_gt_u32 s[{MK+2*k}:{MK+1+2*k}], 8, v17')
    for k in range(4): a.e(f's_and_b32 s{MK+2*k}, s{MK+2*k}, s{S_G0+7}')
    cs = (32 ** -0.5) * 1.4426950408889634
    a.e(f'v_mov_b32 v18, {f32(cs)}', 'v_mov_b32 v19, 0xff800000')
    a.e('s_waitcnt lgkmcnt(0)', 's_barrier')
    B = [32, 80]
    for hd in range(2):
        b = B[hd]; o = 64 * hd
        a.e(f'ds_read_b128 {vr(b,4)}, v10 offset:{o}', f'ds_read_b128 {vr(b+4,4)}, v8 offset:{o}', f'ds_read_b128 {vr(b+8,4)}, v9 offset:{o}')
    for hd in range(2):
        b = B[hd]; o = 64 * hd
        for dt in range(2): a.e(f'ds_read_b64_tr_b16 {vr(b+12+4*dt,2)}, v14 offset:{o+8*dt}', f'ds_read_b64_tr_b16 {vr(b+14+4*dt,2)}, v15 offset:{o+8*dt}')
    for hd in range(2):
        b = B[hd]
        a.e(f's_waitcnt lgkmcnt({11 - 3*hd})', f'{MF16} {vr(b+20,4)}, {vr(b+4,4)}, {vr(b,4)}, 0', f'{MF16} {vr(b+24,4)}, {vr(b+8,4)}, {vr(b,4)}, 0')
    def both(f):
        for x, y in zip(f(B[0]), f(B[1])): a.e(x, y)
    both(lambda b: [f'v_cndmask_b32 v{b+20+k}, v19, v{b+20+k}, s[{MK+2*k}:{MK+1+2*k}]' for k in range(8)])
    both(lambda b: [f'v_max3_f32 v{b+28}, v{b+20}, v{b+21}, v{b+22}', f'v_max3_f32 v{b+29}, v{b+23}, v{b+24}, v{b+25}',
                    f'v_max3_f32 v{b+28}, v{b+28}, v{b+26}, v{b+27}', f'v_max_f32 v{b+28}, v{b+28}, v{b+29}', f'v_mov_b32 v{b+29}, v{b+28}',
                    f'v_permlane16_swap_b32 v{b+28}, v{b+29}', f'v_max_f32 v{b+28}, v{b+28}, v{b+29}', f'v_mov_b32 v{b+29}, v{b+28}',
                    f'v_permlane32_swap_b32 v{b+28}, v{b+29}', f'v_max_f32 v{b+28}, v{b+28}, v{b+29}', f'v_mul_f32 v{b+28}, v18, v{b+28}'])
    both(lambda b: [f'v_fma_f32 v{b+20+k}, v{b+20+k}, v18, -v{b+28}' for k in range(8)])
    both(lambda b: [f'v_exp_f32 v{b+20+k}, v{b+20+k}' for k in range(8)])
    both(lambda b: [f'v_pk_add_f32 {vr(b+28,2)}, {vr(b+20,2)}, {vr(b+22,2)}', f'v_pk_add_f32 {vr(b+30,2)}, {vr(b+24,2)}, {vr(b+26,2)}',
                    f'v_pk_add_f32 {vr(b+28,2)}, {vr(b+28,2)}, {vr(b+30,2)}', f'v_add_f32 v{b+28}, v{b+28}, v{b+29}', f'v_mov_b32 v{b+29}, v{b+28}',
                    f'v_permlane16_swap_b32 v{b+28}, v{b+29}', f'v_add_f32 v{b+28}, v{b+28}, v{b+29}', f'v_mov_b32 v{b+29}, v{b+28}',
                    f'v_permlane32_swap_b32 v{b+28}, v{b+29}', f'v_add_f32 v{b+28}, v{b+28}, v{b+29}', f'v_rcp_f32 v{b+28}, v{b+28}'])
    both(lambda b: [f'v_pk_mul_f32 {vr(b+20+e,2)}, {vr(b+20+e,2)}, {vr(b+28,2)} op_sel_hi:[1,0]' for e in range(0, 8, 2)])
    both(lambda b: [f'v_cvt_pk_bf16_f32 v{b+32+e}, v{b+20+2*e}, v{b+21+2*e}' for e in range(4)])
    a.e('s_waitcnt lgkmcnt(0)')
    both(lambda b: [f'{MF16} {vr(b+36+4*dt,4)}, {vr(b+12+4*dt,4)}, {vr(b+32,4)}, 0' for dt in range(2)])
    both(lambda b: [f'v_cvt_pk_bf16_f32 v{b+e}, v{b+36+2*e}, v{b+37+2*e}' for e in range(4)])
    for hd in range(2): a.e(f'buffer_store_dwordx4 {vr(B[hd],4)}, v13, {S4(SRD_D)}, s{S_G0+6} offen offset:{2048*hd} {SC}')
    a.e(f's_cmp_ge_u32 s{S_WAVE}, 4', 's_cbranch_scc1 L_k1done')

    ACC = 48; RES = 96
    def acc2(t, b): return ACC + 16 * b + 4 * t
    a.e(f's_lshl_b32 s{S_T0}, s{S_TI}, 2', f's_add_u32 s{S_T0}, s{S_T0}, s{S_WAVE}', f's_lshl_b32 s{S_BA}, s{S_T0}, 16', f's_lshl_b32 s{S_T1}, s{S_T0}, 5',
        'v_lshlrev_b32 v13, 1, v4', f'v_add_u32 v13, s{S_T1}, v13',
        'v_lshlrev_b32 v12, 11, v13', 'v_lshl_add_u32 v12, v3, 4, v12', f's_lshl_b32 s{S_T0}, s{S_TJ}, 7', f'v_add_u32 v12, s{S_T0}, v12', 'v_lshlrev_b32 v14, 4, v0')
    srd(a, SRD_A, P_WL, O_OFF, XB)
    sel(a, SRD_C, P_X, 0, P_WS, X2_OFF, XB)
    srd(a, SRD_B, P_WL, ST_OFF, 16 * 2048 * 8)
    tr128_addr(a, [8, 9, 10, 11], WO_SLOTS[0], 16, 17)
    a.e('v_add_u32 v16, v13, v2', 'v_lshlrev_b32 v16, 3, v16', f's_lshl_b32 s{S_T0}, s{S_TJ}, 14', f'v_add_u32 v112, s{S_T0}, v16',
        'v_lshrrev_b32 v17, 5, v0', 'v_lshlrev_b32 v17, 17, v17', 'v_add_u32 v113, v16, v17')
    a.e(f's_lshl_b32 s{S_T0}, s{S_WAVE}, 12', 'v_lshlrev_b32 v16, 8, v4', 'v_lshl_add_u32 v16, v5, 3, v16', f'v_add_u32 v16, s{S_T0}, v16',
        'v_and_b32 v17, 1, v4', 'v_bfe_u32 v18, v4, 2, 1', 'v_lshl_or_b32 v17, v18, 1, v17', 'v_lshl_add_u32 v114, v17, 5, v16',
        f's_lshl_b32 s{S_G0}, s{S_TJ}, 8', f's_lshl_b32 s{S_T1}, s{S_TI}, 2', f's_add_u32 s{S_G0}, s{S_G0}, s{S_T1}', f's_add_u32 s{S_G0}, s{S_G0}, s{S_WAVE}', f's_lshl_b32 s{S_G0}, s{S_G0}, 10')
    tr128_addr(a, [115], 0, 16, 17)
    a.e(f'v_add_u32 v115, s{S_T0}, v115')
    for t in range(1, 4): a.e(f's_add_u32 s{S_G0+t}, s{S_G0}, {t*65536}')
    for p in range(1, 8): a.e(f's_mov_b32 s{86+p}, {p*16384}')
    direct_setup(a, 16)
    poll_setup(a, SRD_E, 119, 0, 0, [f's_lshl_b32 s{S_T0}, s{S_TI}, 4'], 16)
    a.e('s_waitcnt vmcnt(0)', 's_barrier', *stamp(2))
    poll(a, SRD_E, 119, 16)
    a.e(*stamp(3))
    for b in range(2):
        for P in range(2): a.e(f'buffer_load_dwordx4 {vr(RES+8*b+4*P,4)}, v12, {S4(SRD_C)}, 0 offen offset:{b*2048+P*64} {LDF}')
    def init2(out):
        a.e(f's_waitcnt vmcnt({out})')
        for b in range(2):
            for P in range(2):
                r = RES + 8 * b + 4 * P
                a.e(f'v_permlane16_swap_b32 v{r}, v{r+2}', f'v_permlane16_swap_b32 v{r+1}, v{r+3}')
        for b in range(2):
            for P in range(2):
                r = RES + 8 * b + 4 * P
                a.e(*unpack4(r, r + 1, acc2(2 * P, b)), *unpack4(r + 2, r + 3, acc2(2 * P + 1, b)))
    mf2 = lambda h, bb: [f'{MF16} {vr(acc2(t,b),4)}, {vr(16+16*h+4*t,4)}, {vr(bb+4*b,4)}, {vr(acc2(t,b),4)}' for t in range(4) for b in range(2)]
    c_direct(a, 16, 0, 0, w_reads([8, 9, 10, 11]), mf2, [8, 9, 10, 11], DR, D, 14, init2, 4, slots=WO_SLOTS)
    a.e('s_barrier')
    srd(a, SRD_D, P_WL, X1_OFF, XB)
    srd(a, SRD_E, P_WL, H_OFF, XB)
    for b in range(2):
        d = acc2(0, b); T = 16 + 4 * b
        a.e(f'v_pk_add_f32 {vr(T,2)}, {vr(d,2)}, {vr(d+2,2)}', f'v_pk_mul_f32 {vr(T+2,2)}, {vr(d,2)}, {vr(d,2)}', f'v_pk_fma_f32 {vr(T+2,2)}, {vr(d+2,2)}, {vr(d+2,2)}, {vr(T+2,2)}')
        for e in range(4, 16, 2):
            a.e(f'v_pk_add_f32 {vr(T,2)}, {vr(T,2)}, {vr(d+e,2)}', f'v_pk_fma_f32 {vr(T+2,2)}, {vr(d+e,2)}, {vr(d+e,2)}, {vr(T+2,2)}')
        a.e(f'v_add_f32 v{24+b}, v{T}, v{T+1}', f'v_add_f32 v{26+b}, v{T+2}, v{T+3}')
    a.e('v_permlane16_swap_b32 v24, v25', 'v_permlane16_swap_b32 v26, v27', 'v_add_f32 v28, v24, v25', 'v_add_f32 v29, v26, v27',
        'v_mov_b32 v30, v28', 'v_mov_b32 v31, v29', 'v_permlane32_swap_b32 v28, v30', 'v_permlane32_swap_b32 v29, v31',
        'v_add_f32 v28, v28, v30', 'v_add_f32 v29, v29, v31', 'v_and_b32 v29, 0x7fffffff, v29',
        's_mov_b32 exec_hi, 0', f'buffer_store_dwordx2 v[28:29], v112, {S4(SRD_B)}, 0 offen {SC}', 's_mov_b64 exec, -1')
    for b in range(2):
        for t in range(4):
            r = RES + 8 * b + 2 * t; d = acc2(t, b)
            a.e(f'v_cvt_pk_bf16_f32 v{r}, v{d}, v{d+1}', f'v_cvt_pk_bf16_f32 v{r+1}, v{d+2}, v{d+3}')
    for b in range(2):
        for P in range(2):
            r = RES + 8 * b + 4 * P
            a.e(f'v_permlane16_swap_b32 v{r}, v{r+2}', f'v_permlane16_swap_b32 v{r+1}, v{r+3}')
    for t in range(1, 4): a.e(f'v_xor_b32 v{115+t}, {t << 5}, v115', f'v_xor_b32 v{120+t}, {t << 5}, v114')
    a.e('v_mov_b32 v120, v114', f's_mov_b32 s{S_CNT}, 0')
    body = ['k2_poll:'] + [f'buffer_load_dwordx2 {vr(32+2*p,2)}, v113, {S4(SRD_B)}, {"0" if p == 0 else f"s{86+p}"} offen {SC}' for p in range(8)]
    body += ['s_waitcnt vmcnt(0)', 'v_min3_i32 v16, v33, v35, v37', 'v_min3_i32 v17, v39, v41, v43', 'v_min3_i32 v16, v16, v45, v47',
             'v_min_i32 v16, v16, v17', 'v_cmp_gt_i32 vcc, 0, v16', f's_add_u32 s{S_CNT}, s{S_CNT}, 1', f's_cmp_gt_u32 s{S_CNT}, {SPIN}',
             's_cbranch_scc1 k2_pdone', 's_cbranch_vccnz k2_poll']
    a.loop(body)
    a.e('k2_pdone:', *stamp(6))
    for b in range(2):
        for P in range(2): a.e(f'buffer_store_dwordx4 {vr(RES+8*b+4*P,4)}, v12, {S4(SRD_D)}, 0 offen offset:{b*2048+P*64} {SC}')
    a.e('v_pk_add_f32 v[32:33], v[32:33], v[34:35]', 'v_pk_add_f32 v[36:37], v[36:37], v[38:39]', 'v_pk_add_f32 v[40:41], v[40:41], v[42:43]',
        'v_pk_add_f32 v[44:45], v[44:45], v[46:47]', 'v_pk_add_f32 v[32:33], v[32:33], v[36:37]', 'v_pk_add_f32 v[40:41], v[40:41], v[44:45]',
        'v_pk_add_f32 v[32:33], v[32:33], v[40:41]', 'v_mov_b32 v34, v32', 'v_mov_b32 v35, v33',
        'v_permlane32_swap_b32 v32, v34', 'v_permlane32_swap_b32 v33, v35', 'v_add_f32 v32, v32, v34', 'v_add_f32 v33, v33, v35')
    stats_finish(a, 32, 33, 36, True)
    a.e('v_mov_b32 v34, v32', 'v_mov_b32 v35, v33', 'v_permlane16_swap_b32 v32, v34', 'v_permlane16_swap_b32 v33, v35')
    for b in range(2):
        st = vr(32 + 2 * b, 2); d = acc2(0, b); o = 160 + 8 * b
        for e in range(0, 16, 2): a.e(f'v_pk_add_f32 {vr(d+e,2)}, {vr(d+e,2)}, {st} op_sel_hi:[1,0] neg_lo:[0,1] neg_hi:[0,1]')
        for e in range(0, 16, 2): a.e(f'v_pk_mul_f32 {vr(d+e,2)}, {vr(d+e,2)}, {st} op_sel:[0,1] op_sel_hi:[1,1]')
        for t in range(4):
            a.e(f'v_cvt_pk_bf16_f32 v{o+2*t}, v{d+4*t}, v{d+4*t+1}', f'v_cvt_pk_bf16_f32 v{o+2*t+1}, v{d+4*t+2}, v{d+4*t+3}',
                f'ds_write_b64 v{120+t}, {vr(o+2*t,2)} offset:{128*b}')
    a.e('s_waitcnt lgkmcnt(0)')
    for t in range(4): a.e(f'ds_read_b64_tr_b16 {vr(176+4*t,2)}, v{115+t}', f'ds_read_b64_tr_b16 {vr(178+4*t,2)}, v{115+t} offset:512')
    for t in range(4): a.e(f's_waitcnt lgkmcnt({6-2*t})', f'buffer_store_dwordx4 {vr(176+4*t,4)}, v14, {S4(SRD_E)}, s{S_G0+t} offen {SC}')
    a.e('s_cmp_ge_u32 s2, 224', 's_cbranch_scc1 C_k3skip')

    ACC3 = 80
    def acc3(tf, td): return ACC3 + 16 * td + 4 * tf
    tiles(a, 7, 2)
    a.e(f's_and_b32 s{S_G0+2}, s{S_WAVE}, 1', f's_lshr_b32 s{S_T2}, s{S_WAVE}, 1',
        f's_lshl_b32 s{S_T0}, s{S_TJ}, 8', f's_lshl_b32 s{S_G0}, s{S_G0+2}, 7', f's_add_u32 s{S_T0}, s{S_T0}, s{S_G0}',
        'v_lshlrev_b32 v16, 3, v5', f'v_add_u32 v16, s{S_T0}, v16')
    srd(a, SRD_C, P_B1, 0, 3584 * 2)
    for tf in range(4): a.e(f'buffer_load_dwordx2 {vr(144+2*tf,2)}, v16, {S4(SRD_C)}, 0 offen offset:{32*tf}')
    srd(a, SRD_D, P_WL, U_OFF, UB)
    a.e('v_lshl_add_u32 v17, v5, 3, v6', 'v_lshlrev_b32 v17, 8, v17', 'v_lshl_add_u32 v17, v7, 3, v17', 'v_lshl_or_b32 v18, v2, 2, v6', 'v_lshl_add_u32 v17, v18, 5, v17',
        f's_lshl_b32 s{S_T0}, s{S_G0+2}, 7', f's_add_u32 s{S_T0}, s{S_T0}, 16384', f'v_xor_b32 v18, s{S_T0}, v17', f's_lshl_b32 s{S_T0}, s{S_T2}, 13', f'v_add_u32 v12, s{S_T0}, v14')
    for t in range(4): a.e(f'v_xor_b32 v{8+t}, {t << 5}, v18')
    a.e('v_bfe_u32 v17, v4, 2, 1', 'v_lshlrev_b32 v17, 10, v17', 'v_lshl_add_u32 v17, v3, 8, v17', 'v_lshrrev_b32 v18, 3, v4', 'v_lshl_add_u32 v17, v18, 6, v17',
        'v_lshl_add_u32 v152, v7, 4, v17', 'v_add_u32 v153, 128, v152',
        f's_lshl_b32 s{S_T0}, s{S_TI}, 1', f's_add_u32 s{S_T0}, s{S_T0}, s{S_T2}', f's_mul_i32 s{S_T0}, s{S_T0}, 224',
        f's_lshl_b32 s{S_G0}, s{S_TJ}, 2', f's_add_u32 s{S_T0}, s{S_T0}, s{S_G0}', f's_lshl_b32 s{S_G0}, s{S_G0+2}, 1', f's_add_u32 s{S_T0}, s{S_T0}, s{S_G0}',
        f's_lshl_b32 s{S_G0}, s{S_T0}, 11', f's_add_u32 s{S_G0+1}, s{S_G0}, {112*2048}')
    a.e('s_waitcnt vmcnt(0)', 's_barrier', *stamp(7))
    for tf in range(4):
        a.e(*unpack4(144 + 2 * tf, 145 + 2 * tf, acc3(tf, 0)))
        for td in range(1, 4): a.e(f'v_mov_b64 {vr(acc3(tf,td),2)}, {vr(acc3(tf,0),2)}', f'v_mov_b64 {vr(acc3(tf,td)+2,2)}, {vr(acc3(tf,0)+2,2)}')
    reads = [[], []]; mf = [[], []]
    for h in range(2):
        F = 16 + 32 * h
        rd = lambda dst, av: [f'ds_read_b64_tr_b16 {vr(dst,2)}, v{av} offset:{h*8192}', f'ds_read_b64_tr_b16 {vr(dst+2,2)}, v{av} offset:{h*8192+1024}']
        for t in range(4): reads[h] += rd(F + 4 * t, 8 + t) + [f'ds_read_b128 {vr(F+16+4*t,4)}, v12 offset:{(2*t+h)*1024}']
        for tf, td in sorted([(tf, td) for tf in range(4) for td in range(4)], key=lambda x: (max(x), x)):
            mf[h].append(f'{MF16} {vr(acc3(tf,td),4)}, {vr(F+4*tf,4)}, {vr(F+16+4*td,4)}, {vr(acc3(tf,td),4)}')
    c_loop(a, 32, 5, 32768, reads, mf, list(range(8, 13)), True, 8)
    c1 = -2.0 * 0.7978845608028654 * 1.4426950408889634
    a.e(f'v_mov_b32 v16, {f32(c1)}', f'v_mov_b32 v17, {f32(c1 * 0.044715)}')
    k = 0
    for td in range(4):
        for P in range(2):
            d = acc3(2 * P, td); T = 24 + 16 * (k & 1); k += 1
            O = 160 + 4 * k
            for e in range(0, 8, 2): a.e(f'v_pk_mul_f32 {vr(T+e,2)}, {vr(d+e,2)}, {vr(d+e,2)}')
            for e in range(0, 8, 2): a.e(f'v_pk_fma_f32 {vr(T+e,2)}, {vr(T+e,2)}, v[16:17], v[16:17] op_sel:[0,1,0] op_sel_hi:[1,1,0]')
            for e in range(0, 8, 2): a.e(f'v_pk_mul_f32 {vr(T+e,2)}, {vr(T+e,2)}, {vr(d+e,2)}')
            for e in range(8): a.e(f'v_exp_f32 v{T+e}, v{T+e}')
            for e in range(0, 8, 2): a.e(f'v_pk_add_f32 {vr(T+e,2)}, {vr(T+e,2)}, 1.0 op_sel_hi:[1,0]')
            for e in range(8): a.e(f'v_rcp_f32 v{T+e}, v{T+e}')
            for e in range(0, 8, 2): a.e(f'v_pk_mul_f32 {vr(T+e,2)}, {vr(T+e,2)}, {vr(d+e,2)}')
            for e in range(4): a.e(f'v_cvt_pk_bf16_f32 v{O+e}, v{T+2*e}, v{T+2*e+1}')
            a.e(f'v_permlane16_swap_b32 v{O}, v{O+2}', f'v_permlane16_swap_b32 v{O+1}, v{O+3}')
            a.e(f'buffer_store_dwordx4 {vr(O,4)}, v{152+(td&1)}, {S4(SRD_D)}, s{S_G0+(td>>1)} offen offset:{2048*P} {SC}')
    a.e('C_k3skip:'); a.flush_hist()

    def acc4(aa, n): return ACC + 8 * n + 4 * aa
    tiles(a, 8, 2)
    a.e(f's_lshl_b32 s{S_T0}, s{S_TJ}, 6', f'v_add_u32 v13, s{S_T0}, v4', 'v_lshlrev_b32 v12, 11, v13', 'v_lshl_add_u32 v12, v5, 4, v12',
        f's_lshl_b32 s{S_T0}, s{S_TI}, 8', f's_lshl_b32 s{S_T1}, s{S_WAVE}, 6', f's_add_u32 s{S_T0}, s{S_T0}, s{S_T1}',
        f'v_add_u32 v12, s{S_T0}, v12', 'v_lshlrev_b32 v13, 1, v13', 'v_lshlrev_b32 v14, 4, v0',
        f's_lshl_b32 s{S_BA}, s{S_TI}, 2', f's_add_u32 s{S_BA}, s{S_BA}, s{S_WAVE}', f's_mul_i32 s{S_BA}, s{S_BA}, {56*4096}',
        's_mov_b32 s45, 32768', 's_mov_b32 s46, 65536', 's_mov_b32 s47, 98304')
    so = ['0', 's45', 's46', 's47']
    srd(a, SRD_A, P_WL, U_OFF, UB)
    srd(a, SRD_C, P_WL, X1_OFF, XB)
    srd(a, SRD_B, P_B2, 0, 4096)
    for n in range(4): a.e(f'buffer_load_ushort v{RES+16+2*n}, v13, {S4(SRD_B)}, 0 offen offset:{32*n}')
    tr128_addr(a, [8, 9, 10, 11], K4_BASE, 16, 17)
    direct_setup(a, 56)
    poll_setup(a, SRD_E, 15, 2, 0, [f's_lshl_b32 s{S_T0}, s{S_TI}, 5'], 28)
    a.e('s_waitcnt vmcnt(0)', 's_barrier', *stamp(10))
    if PF2:
        a.e('s_cmp_lt_u32 s2, 224', 's_cbranch_scc1 C_nopf', f's_cmp_lg_u32 s{S_VAR}, 0', 's_cbranch_scc1 C_nopf')
        srd(a, SRD_D, P_W2, 0, 3584 * 2048 * 2)
        a.e(f's_sub_u32 s{S_T0}, s2, 224', f's_lshl_b32 s{S_T0}, s{S_T0}, 2', f's_add_u32 s{S_T0}, s{S_T0}, s{S_WAVE}', f's_lshl_b32 s{S_T0}, s{S_T0}, 13', 'v_lshlrev_b32 v17, 7, v0')
        for j in range(14):
            a.e(f'buffer_load_dword v18, v17, {S4(SRD_D)}, s{S_T0} offen', f's_add_u32 s{S_T0}, s{S_T0}, {128*8192}', *(['s_waitcnt vmcnt(1)'] if j else []))
        a.e('C_nopf:')
    poll(a, SRD_E, 15, 16)
    a.e(*stamp(11))
    for n in range(4): a.e(f'buffer_load_dwordx4 {vr(RES+4*n,4)}, v12, {S4(SRD_C)}, {so[n]} offen {LDF}')
    sel(a, SRD_E, P_WS, X2_OFF, P_OUT, 0, XB)
    srd(a, SRD_B, P_WS, LSTR + RS_OFF, 8 * 2048 * 8)
    def init4(out):
        a.e(f's_waitcnt vmcnt({out})')
        for n in range(4):
            a.e(f'v_lshlrev_b32 v{RES+16+2*n}, 16, v{RES+16+2*n}')
            a.e(*unpack4(RES + 4 * n, RES + 4 * n + 1, acc4(0, n)), *unpack4(RES + 4 * n + 2, RES + 4 * n + 3, acc4(1, n)))
            for e in range(0, 8, 2): a.e(f'v_pk_add_f32 {vr(acc4(0,n)+e,2)}, {vr(acc4(0,n)+e,2)}, {vr(RES+16+2*n,2)} op_sel_hi:[1,0]')
    mf4 = lambda h, b: [f'{MF16} {vr(acc4(aa,n),4)}, {vr(b+4*aa,4)}, {vr(16+16*h+4*n,4)}, {vr(acc4(aa,n),4)}' for n in range(4) for aa in range(2)]
    c_direct(a, 56, K4_NS, 8192, w_reads([8, 9, 10, 11]), mf4, [8, 9, 10, 11], DR, D, 14, init4, 12)
    for n in range(4):
        for e in range(4): a.e(f'v_cvt_pk_bf16_f32 v{RES+4*n+e}, v{acc4(0,n)+2*e}, v{acc4(0,n)+2*e+1}')
        a.e(f'buffer_store_dwordx4 {vr(RES+4*n,4)}, v12, {S4(SRD_E)}, {so[n]} offen {SC}')
    a.e(f's_cmp_lg_u32 s{S_VAR}, 0', 's_cbranch_scc1 C_end')
    for n in range(4): a.e(*unpack4(RES + 4 * n, RES + 4 * n + 1, acc4(0, n)), *unpack4(RES + 4 * n + 2, RES + 4 * n + 3, acc4(1, n)))
    for n in range(4):
        d = acc4(0, n); T = 16 + 4 * n
        a.e(f'v_pk_add_f32 {vr(T,2)}, {vr(d,2)}, {vr(d+2,2)}', f'v_pk_mul_f32 {vr(T+2,2)}, {vr(d,2)}, {vr(d,2)}', f'v_pk_fma_f32 {vr(T+2,2)}, {vr(d+2,2)}, {vr(d+2,2)}, {vr(T+2,2)}')
        for e in (4, 6): a.e(f'v_pk_add_f32 {vr(T,2)}, {vr(T,2)}, {vr(d+e,2)}', f'v_pk_fma_f32 {vr(T+2,2)}, {vr(d+e,2)}, {vr(d+e,2)}, {vr(T+2,2)}')
        a.e(f'v_add_f32 v{32+n}, v{T}, v{T+1}', f'v_add_f32 v{36+n}, v{T+2}, v{T+3}')
    for b in (32, 36): a.e(f'v_permlane16_swap_b32 v{b}, v{b+1}', f'v_permlane16_swap_b32 v{b+2}, v{b+3}')
    for b in (32, 36): a.e(f'v_add_f32 v{b}, v{b}, v{b+1}', f'v_add_f32 v{b+2}, v{b+2}, v{b+3}')
    a.e('v_permlane32_swap_b32 v32, v34', 'v_permlane32_swap_b32 v36, v38', 'v_add_f32 v40, v32, v34', 'v_add_f32 v41, v36, v38',
        'v_lshlrev_b32 v42, 3, v0', f's_lshl_b32 s{S_T0}, s{S_WAVE}, 9', f's_add_u32 s{S_T0}, s{S_T0}, {K4_SCR}', f'v_add_u32 v43, s{S_T0}, v42',
        'ds_write_b64 v43, v[40:41]', 's_waitcnt lgkmcnt(0)', 's_barrier',
        f's_cmp_lg_u32 s{S_WAVE}, 0', 's_cbranch_scc1 C_nost',
        'ds_read_b64 v[44:45], v43 offset:512', 'ds_read_b64 v[46:47], v43 offset:1024', 'ds_read_b64 v[48:49], v43 offset:1536',
        f's_lshl_b32 s{S_T0}, s{S_TI}, 14', f's_lshl_b32 s{S_T1}, s{S_TJ}, 9', f's_add_u32 s{S_T0}, s{S_T0}, s{S_T1}', 's_waitcnt lgkmcnt(0)',
        'v_pk_add_f32 v[40:41], v[40:41], v[44:45]', 'v_pk_add_f32 v[46:47], v[46:47], v[48:49]', 'v_pk_add_f32 v[40:41], v[40:41], v[46:47]',
        f'buffer_store_dwordx2 v[40:41], v42, {S4(SRD_B)}, s{S_T0} offen {SC}', 'C_nost:', 's_nop 1')
    k1_setup_c()
    a.e('s_waitcnt vmcnt(0)', 's_barrier', *stamp(14))
    a.e(f's_mov_b32 s{S_VAR}, 1', f's_add_u32 s{P_WL}, s{P_WS}, {LSTR}', f's_addc_u32 s{P_WL+1}, s{P_WS+1}, 0', 's_branch C_top')
    a.e('C_end:'); dump(a)
    a.e('s_endpgm')

    gx = dict(sg=S_G0, dmas=[(8 + i, 1024 * i, 'A', None) for i in range(4)])
    gw = [dict(sg=S_G0 + 2 + m, dmas=[(13 + 2 * m, 0, 'B', None), (14 + 2 * m, 1024, 'B', None)]) for m in range(3)]
    gh = dict(sg=S_G0 + 1, dmas=[(12, 0, 'A', 's[52:53]')])
    def k1_setup_l(layer):
        tiles(a, 8, 1)
        a.e(f's_mov_b32 s{S_T2}, s{S_LWV}')
        dma_w128(a, [13, 14], 6144, swz128(a), 16, 2, 3, 4)
        a.e('v_add_u32 v15, 2048, v13', 'v_add_u32 v16, 2048, v14', 'v_add_u32 v17, 4096, v13', 'v_add_u32 v18, 4096, v14',
            f's_lshl_b32 s{S_G0+2}, s{S_T2}, 11', f's_add_u32 s{S_G0+2}, s{S_G0+2}, {XT}', f's_add_u32 s{S_G0+3}, s{S_G0+2}, 8192', f's_add_u32 s{S_G0+4}, s{S_G0+2}, 16384',
            f's_lshl_b32 s{S_BB}, s{S_TJ}, 7')
        if layer == 0: a.e('s_waitcnt lgkmcnt(0)')
        srd(a, SRD_B, P_WQKV, 0, 1024 * 3072 * 2)
        pre_w(a, 16, 3, 2, ST1, 0, 64 * 6144, gw)
        def xaddr(v, comp):
            a.e('v_lshrrev_b32 v2, 3, v0', f'v_add_u32 v2, s{S_T0}, v2', 'v_bfe_u32 v3, v2, 1, 3', 'v_and_b32 v4, 7, v0', 'v_xor_b32 v3, v3, v4', 'v_lshlrev_b32 v3, 4, v3',
                f'v_add_u32 v2, s{S_T1}, v2', 'v_max_i32 v2, 0, v2', 'v_lshlrev_b32 v2, 11, v2', f'v_add_u32 v{v}, v2, v3')
            if comp: a.e(f'v_subrev_u32 v{v}, {comp}, v{v}')
        a.e(f's_lshl_b32 s{S_T1}, s{S_TI}, 7', f's_sub_u32 s{S_T1}, s{S_T1}, 16')
        for i in range(2):
            a.e(f's_lshl_b32 s{S_T0}, s{S_T2}, 5', f's_add_u32 s{S_T0}, s{S_T0}, {16+8*i}')
            xaddr(8 + i, 1024 * i)
            a.e(f'v_add_u32 v{10+i}, {16*2048-2048}, v{8+i}')
        a.e(f's_lshl_b32 s{S_T0}, s{S_T2}, 3'); xaddr(12, 0)
        a.e(f's_lshl_b32 s{S_G0}, s{S_T2}, 12', f's_add_u32 s{S_G0}, s{S_G0}, 2048', f's_lshl_b32 s{S_G0+1}, s{S_T2}, 10', f's_mov_b32 s{S_BA}, 0',
            f's_cmp_eq_u32 s{S_T2}, 0', 's_cselect_b32 s52, 0xffffff00, -1', 's_mov_b32 s53, -1')
        a.e('v_mov_b32 v20, 0x3f803f80', 'v_mov_b32 v21, v20', 'v_mov_b32 v22, v20', 'v_mov_b32 v23, v20', 'v_lshlrev_b32 v24, 4, v0', f'v_add_u32 v25, {2*ST1}, v24',
            's_mov_b64 exec, 0xff', 'ds_write_b128 v24, v[20:23]', f'ds_write_b128 v24, v[20:23] offset:{ST1}', 'ds_write_b128 v25, v[20:23]', 's_mov_b64 exec, -1')
        if layer == 0: srd(a, SRD_A, P_X, 0, XB)
        else: srd(a, SRD_A, P_WS, X2_OFF, XB)
        srd(a, SRD_D, P_WS, layer * LSTR + RS_OFF, 2048 * 8 if SINGLE and layer == 0 else 8 * 2048 * 8)
        a.e(f's_lshl_b32 s{S_T0}, s{S_T2}, 6', f'v_add_u32 v26, s{S_T0}, v0', 'v_min_u32 v26, 143, v26', f'v_add_u32 v27, s{S_T1}, v26', 'v_max_i32 v27, 0, v27',
            'v_lshlrev_b32 v27, 3, v27', 'v_lshlrev_b32 v26, 3, v26', f'v_add_u32 v26, {SL}, v26', 's_waitcnt lgkmcnt(0)')
    a.e('L_start:'); a.flush_hist()
    a.e(f's_sub_u32 s{S_LWV}, s{S_WAVE}, 4')
    k1_setup_l(0)
    a.e(f's_mov_b32 s{P_WL}, s{P_WS}', f's_mov_b32 s{P_WL+1}, s{P_WS+1}')
    a.e('L_top:'); a.flush_hist()
    flag_idx(a, 0, S_TI, 16, S_TJ)
    srd(a, SRD_E, P_W1, 0, 2048 * 3584 * 2)
    a.e(f's_lshl_b32 s54, s2, 2', f's_add_u32 s54, s54, s{S_LWV}', f's_mul_i32 s54, s54, {NPF*128}', f's_add_u32 s54, s54, {W1_K0}')
    def pf(n):
        l = lab('st'); b = Asm()
        gl = f'global_load_dword v29, v28, s[{P_DB}:{P_DB+1}] {SC}'
        b.e(f's_cmp_gt_u32 s{S_CNT}, 5', f's_cbranch_scc1 {l}', f's_cmp_lt_u32 s{S_CNT}, 3', f's_cbranch_scc1 {l}',
            f's_cmp_eq_u32 s{S_CNT}, 3', f's_cbranch_scc1 {l}f', f's_cmp_eq_u32 s{S_CNT}, 4', f's_cbranch_scc1 {l}c')
        if SINGLE: b.e(f's_cmp_lg_u32 s{S_VAR}, 0', f's_cbranch_scc1 {l}', 'v_and_b32 v28, 3, v0', 'v_lshlrev_b32 v28, 6, v28', 's_mov_b32 s61, 0', gl)
        b.e(f's_branch {l}', f'{l}c:')
        if SINGLE:
            b.e(f's_cmp_lg_u32 s{S_VAR}, 0', f's_cbranch_scc1 {l}g', f's_waitcnt vmcnt({n})', f'{l}p:', 'v_cmp_gt_u32 vcc, 64, v29',
                's_add_u32 s61, s61, 1', f's_cmp_gt_u32 s61, {SPIN}', f's_cbranch_scc1 {l}g', f's_cbranch_vccz {l}g', gl, 's_waitcnt vmcnt(0)', f's_branch {l}p', f'{l}g:')
        for p in range(8):
            if p: b.e(f's_mov_b32 s{S_T0}, {p*16384}')
            b.e(f'buffer_load_dwordx2 {vr(30+2*p,2)}, v27, {S4(SRD_D)}, {"0" if p == 0 else f"s{S_T0}"} offen {LDF}')
        b.e(f's_branch {l}', f'{l}f:')
        b.e(f's_waitcnt vmcnt({n})', 'v_pk_add_f32 v[30:31], v[30:31], v[32:33]', 'v_pk_add_f32 v[34:35], v[34:35], v[36:37]', 'v_pk_add_f32 v[38:39], v[38:39], v[40:41]',
            'v_pk_add_f32 v[42:43], v[42:43], v[44:45]', 'v_pk_add_f32 v[30:31], v[30:31], v[34:35]', 'v_pk_add_f32 v[38:39], v[38:39], v[42:43]',
            'v_pk_add_f32 v[30:31], v[30:31], v[38:39]')
        stats_finish(b, 30, 31, 32, False)
        b.e('ds_write_b64 v26, v[30:31]', f'{l}:')
        return [i.text for i in b.ins]
    a.e(f's_mov_b32 s{S_CNT}, 0')
    a.e(f's_cmp_ge_u32 s{S_LWV}, 2', 's_cbranch_scc1 L_k1B')
    l_loop(a, 16, 3, 2, ST1, 0, 128, 64 * 6144, [gh, gx], gw, tail=1, hook=lambda: pf(11))
    a.e('s_branch L_k1t', 'L_k1B:'); a.flush_hist()
    l_loop(a, 16, 3, 2, ST1, 0, 128, 64 * 6144, [gx], gw, tail=1, hook=lambda: pf(10))
    a.e('L_k1t:'); a.flush_hist()
    a.e(f's_mov_b32 s{S_T2}, s{S_LWV}')
    dma_w128(a, [130, 131], 2048, swz128(a), 16, 2, 3, 4)
    srd(a, SRD_B, P_WO, 0, 1024 * 1024 * 2)
    a.e(*INITK, f's_lshl_b32 s{S_G0+8}, s{S_LWV}, 11')
    def wo(t0, t1):
        for t in range(t0, t1):
            a.e(*next_k(16), f's_lshl_b32 s{S_OB}, s{S_K}, 17', f's_add_u32 s{S_OB}, s{S_OB}, s{S_BB}', f's_add_u32 m0, s{S_G0+8}, {WO_SLOTS[t]}',
                f'buffer_load_dwordx4 v130, {S4(SRD_B)}, s{S_OB} offen lds', f'buffer_load_dwordx4 v131, {S4(SRD_B)}, s{S_OB} offen offset:1024 lds')
    wo(0, 4)
    def pf3(j):
        if PF3 > j: a.e(f's_add_u32 s{S_T0}, s54, {j*8*MB}', f'buffer_load_dword v223, v132, {S4(SRD_E)}, s{S_T0} offen')
    if PF3:
        a.e(f's_cmp_eq_u32 s{S_VAR}, 0', f's_cselect_b32 s{SRD_E+2}, s{SRD_E+2}, 0', 's_lshl_b32 s54, s2, 2', f's_add_u32 s54, s54, s{S_LWV}', 's_lshl_b32 s54, s54, 13',
            f's_add_u32 s54, s54, {W1_K0}', 'v_lshlrev_b32 v132, 7, v0')
    pf3(0)
    x = 1 if PF3 else 0
    a.e(f's_waitcnt vmcnt({8+x})', 's_barrier')
    wo(4, 7)
    lane_fields(a)
    a.e('s_waitcnt lgkmcnt(0)', 's_barrier')
    pf3(1)
    wo(7, 12)
    a.e('s_branch attn')
    a.e('L_k1done:'); a.flush_hist()
    a.e('s_waitcnt vmcnt(0)', 's_barrier')
    publish(a, 2)
    wo(12, 16)
    flag_idx(a, 1, S_TJ, 16, S_TI)
    a.e('s_waitcnt vmcnt(0)', 's_barrier')
    g4 = [dict(sg=S_G0 + 1, dmas=[(9, 0, 'B', None), (10, 1024, 'B', None)])]
    def k4_setup_l():
        tiles(a, 8, 2)
        a.e(f's_mov_b32 s{S_T2}, s{S_LWV}', f's_lshl_b32 s{S_G0+1}, s{S_T2}, 11')
        dma_w128(a, [9, 10], 4096, swz128(a), 16, 2, 3, 4)
        a.e(f's_lshl_b32 s{S_BB}, s{S_TJ}, 7')
        srd(a, SRD_B, P_W2, 0, 3584 * 2048 * 2)
    a.e('s_cmp_ge_u32 s2, 224', 's_cbranch_scc1 L_k3skip')
    tiles(a, 7, 2)
    a.e(f's_lshl_b32 s{S_G0}, s{S_LWV}, 12', f's_add_u32 s{S_G0+1}, s{S_G0}, 16384', 'v_lshlrev_b32 v8, 4, v0', f'v_add_u32 v13, {65536-2048}, v8',
        'v_lshrrev_b32 v2, 4, v0', 'v_lshlrev_b32 v3, 1, v2', 'v_and_b32 v4, 15, v0', 'v_xor_b32 v3, v3, v4', 'v_lshlrev_b32 v3, 4, v3',
        f's_lshl_b32 s{S_T0}, s{S_LWV}, 4', f'v_add_u32 v2, s{S_T0}, v2', f's_mov_b32 s{S_T0}, 7168', f'v_mul_lo_u32 v2, v2, s{S_T0}',
        'v_add_u32 v9, v2, v3', 'v_xor_b32 v3, 128, v3', 'v_add_u32 v11, v2, v3',
        f'v_add_u32 v10, {4*7168-1024}, v9', f'v_add_u32 v12, {3*(4*7168-1024)}, v11', f'v_add_u32 v11, {2*(4*7168-1024)}, v11',
        f's_lshl_b32 s{S_BA}, s{S_TI}, 2', f's_add_u32 s{S_BA}, s{S_BA}, s{S_LWV}', f's_lshl_b32 s{S_BA}, s{S_BA}, 17', f's_lshl_b32 s{S_BB}, s{S_TJ}, 8')
    srd(a, SRD_A, P_WL, H_OFF, XB)
    srd(a, SRD_B, P_W1, 0, 2048 * 3584 * 2)
    g3a = [dict(sg=S_G0, dmas=[(8 if i < 2 else 13, 1024 * i, 'A', None) for i in range(4)])]
    g3w = [dict(sg=S_G0 + 1, dmas=[(9 + i, 1024 * i, 'B', None) for i in range(4)])]
    poll_setup(a, SRD_C, 14, 1, 0, [f's_lshl_b32 s{S_T0}, s{S_TI}, 5'], 32)
    a.e('s_barrier')
    if not LATEW: pre_w(a, 32, 5, 3, 32768, 0, 64 * 7168, g3w)
    a.e('s_barrier')
    publish(a, 2)
    if LATEW: pre_w(a, 32, 5, 3, 32768, 0, 64 * 7168, g3w)
    flag_idx(a, 2, S_TI, 32, S_TJ)
    poll(a, SRD_C, 14, 15)
    l_loop(a, 32, 5, 3, 32768, 0, 2048, 64 * 7168, g3a, g3w)
    k4_setup_l()
    a.e('s_branch L_k4', 'L_k3skip:'); a.flush_hist()
    k4_setup_l()
    a.e('s_barrier')
    a.e('L_k4:'); a.flush_hist()
    pre_w(a, 56, K4_NS, K4_AH, 8192, K4_BASE, 64 * 4096, g4)
    a.e('s_barrier')
    publish(a, 2)
    flag_idx(a, 3, S_TJ, 8, S_TI)
    l_loop(a, 56, K4_NS, K4_AH, 8192, K4_BASE, 0, 64 * 4096, [], g4)
    a.e(f's_cmp_lg_u32 s{S_VAR}, 0', 's_cbranch_scc1 L_end')
    k1_setup_l(1)
    poll_setup(a, SRD_C, 28, 3, 0, [f's_lshl_b32 s{S_T0}, s{S_TI}, 4', f's_sub_u32 s{S_T0}, s{S_T0}, 8'], 24)
    a.e('s_barrier', 's_barrier')
    publish(a, 2)
    poll(a, SRD_C, 28, 29)
    a.e(f's_mov_b32 s{S_VAR}, 1', f's_add_u32 s{P_WL}, s{P_WS}, {LSTR}', f's_addc_u32 s{P_WL+1}, s{P_WS+1}, 0', 's_branch L_top')
    a.e('L_end:', f'{kn}_end:', 's_endpgm')

def dump(a):
    if not PROF: return
    a.e('s_waitcnt vmcnt(0)', *stamp(14), f's_cmp_lg_u32 s{S_WAVE}, 0', 's_cbranch_scc1 nodump', 's_lshl_b32 s58, s2, 8', f's_add_u32 s58, s58, {PR_OFF}',
        'v_lshlrev_b32 v251, 2, v0', 'v_add_u32 v251, s58, v251', f'global_store_dword v251, v{PV}, s[{P_WS}:{P_WS+1}]', 'nodump:')

def gen_k0(a):
    a.e('.p2align 8', 'k0_kernel:', 's_cmp_ge_u32 s2, 256', 's_cbranch_scc1 k0_end',
        's_load_dwordx16 s[64:79], s[0:1], 0', 's_load_dwordx2 s[84:85], s[0:1], 80',
        'v_lshrrev_b32 v1, 6, v0', 'v_lshlrev_b32 v20, 4, v0', 'v_and_b32 v0, 63, v0', f'v_readfirstlane_b32 s{S_WAVE}, v1',
        's_lshl_b32 s30, s2, 3', f's_add_u32 s30, s30, s{S_WAVE}',
        's_lshl_b32 s31, s30, 11', 'v_lshlrev_b32 v2, 5, v0',
        's_lshl_b32 s32, s2, 2', f's_and_b32 s33, s{S_WAVE}, 3', 's_add_u32 s32, s32, s33', 's_lshl_b32 s32, s32, 13', 'v_lshlrev_b32 v3, 7, v0', 'v_add_u32 v3, s32, v3',
        f'v_subrev_u32 v4, {1024*3072*2}, v3', 's_waitcnt lgkmcnt(0)')
    srd(a, SRD_A, P_X, 0, XB)
    a.e(f'buffer_load_dwordx4 v[8:11], v2, {S4(SRD_A)}, s31 offen', f'buffer_load_dwordx4 v[12:15], v2, {S4(SRD_A)}, s31 offen offset:16')
    KW = int(env('K0WARM', '1'))
    srd(a, SRD_B, P_WQKV, 0, 1024 * 3072 * 2 * KW)
    srd(a, SRD_C, P_WO, 0, 1024 * 1024 * 2 * KW)
    srd(a, SRD_E, P_W1, 0, W1_K0)
    a.e(f's_sub_u32 s33, s{S_WAVE}, 4', 's_lshl_b32 s33, s33, 8', 's_add_u32 s33, s33, s2', 's_lshl_b32 s33, s33, 13', 'v_lshlrev_b32 v7, 7, v0',
        f's_cmp_ge_u32 s{S_WAVE}, 4', 's_cbranch_scc1 k0_nw', f'buffer_load_dword v5, v3, {S4(SRD_B)}, 0 offen', f'buffer_load_dword v6, v4, {S4(SRD_C)}, 0 offen', 's_branch k0_nx',
        'k0_nw:', f'buffer_load_dword v5, v7, {S4(SRD_E)}, s33 offen', 'k0_nx:')
    if CODEPF:
        a.e(f's_cmp_lg_u32 s{S_WAVE}, 7', 's_cbranch_scc1 k0_nc', 's_getpc_b64 s[40:41]', 'k0_pc:', 's_add_u32 s40, s40, mega_kernel-k0_pc', 's_addc_u32 s41, s41, 0',
            's_lshr_b32 s42, s2, 3', 's_lshl_b32 s42, s42, 11', 'v_and_b32 v25, 15, v0', 'v_lshlrev_b32 v25, 7, v25', 'v_add_u32 v25, s42, v25',
            'v_min_u32 v25, mega_end-mega_kernel, v25', 'global_load_dword v26, v25, s[40:41]', 'k0_nc:')
    srd(a, SRD_D, P_WS, 0, 64 * MB)
    a.e(f's_cmp_eq_u32 s{S_WAVE}, 0', 's_cselect_b32 s33, 0, -1', 'v_mov_b32 v16, s33', 'v_mov_b32 v17, s33', 'v_mov_b32 v18, s33', 'v_mov_b32 v19, s33',
        f's_mov_b32 s34, {ST_OFF}', f's_cselect_b32 s34, {FL_OFF}, s34', f's_cmp_eq_u32 s{S_WAVE}, 2', f's_cselect_b32 s34, {LSTR + ST_OFF}, s34', 's_lshl_b32 s35, s2, 10', 's_add_u32 s34, s34, s35',
        'v_lshlrev_b32 v20, 4, v0', f's_cmp_ge_u32 s{S_WAVE}, 3', 's_cbranch_scc1 k0_nr', f'buffer_store_dwordx4 v[16:19], v20, {S4(SRD_D)}, s34 offen', 'k0_nr:')
    a.e('v_mov_b32 v22, 0', 'v_mov_b32 v23, 0', 'v_mov_b32 v21, 0x3f803f80', 'v_lshrrev_b32 v24, 3, v0', 'v_lshlrev_b32 v24, 14, v24', 's_lshl_b32 s36, s30, 3', f's_add_u32 s36, s36, {RS_OFF}',
        's_waitcnt vmcnt(0)')
    for e in range(8): a.e(f'v_dot2c_f32_bf16 v22, v21, v{8+e}', f'v_dot2c_f32_bf16 v23, v{8+e}, v{8+e}')
    for ctl in ('quad_perm:[1,0,3,2]', 'quad_perm:[2,3,0,1]', 'row_half_mirror'):
        a.e(f'v_add_f32_dpp v22, v22, v22 {ctl} row_mask:0xf bank_mask:0xf', f'v_add_f32_dpp v23, v23, v23 {ctl} row_mask:0xf bank_mask:0xf')
    a.e('s_mov_b32 exec_lo, 0x01010101', 's_mov_b32 exec_hi, 0x01010101', f'buffer_store_dwordx2 v[22:23], v24, {S4(SRD_D)}, s36 offen', 'k0_end:', 's_endpgm')

def main(out):
    a = Asm()
    if not SINGLE: gen_k0(a); a.flush_hist()
    gen_mega(a)
    info = {} if SINGLE else {'k0_kernel': (32, 0)}
    info[MEGA] = (256 if PROF else 224, 163840)
    ref = open(os.path.join(os.path.dirname(os.path.abspath(__file__)), '..', NAME + '.s.ref')).read().splitlines()
    hdr = [l for l in ref if l.startswith(';') and '@launch' not in l and 'Override launch' not in l and 'grid=ceil' not in l]
    if SINGLE: hdr += ['; @launch grid=(256,1,1) block=(512,1,1) lds=163840']
    else: hdr += [f'; @launch kernel={n} grid=(256,1,1) block=(512,1,1) lds={v[1]}' for n, v in info.items()]
    s = '\n'.join(hdr) + '\n; generated by gen/gen2.py\n.amdgcn_target "amdgcn-amd-amdhsa--gfx950"\n.text\n'
    if SINGLE: s += f'.globl {MEGA}\n.type {MEGA},@function\n'
    s += a.text() + '.section .rodata,"a"\n'
    for n, (vg, _) in info.items():
        s += f'''.p2align 6
.amdhsa_kernel {n}
  .amdhsa_next_free_vgpr {vg}
  .amdhsa_next_free_sgpr 102
  .amdhsa_accum_offset {vg}
  .amdhsa_group_segment_fixed_size 0
  .amdhsa_kernarg_size 88
  .amdhsa_user_sgpr_count 2
  .amdhsa_user_sgpr_kernarg_segment_ptr 1
  .amdhsa_system_sgpr_workgroup_id_x 1
.end_amdhsa_kernel
'''
    open(out, 'w').write(s)

if __name__ == '__main__':
    main(sys.argv[1])
```

```python
import sys, os, struct
sys.path.insert(0, os.path.dirname(os.path.abspath(__file__)))
from asmlib import *
import gen as G
from gen import (NAME, MB, XB, UB, f32, env, S4, srd, next_k, adv_s, sched, bundle, spread, lane_fields, tr128_addr, swz128, unpack4,
                 dma_w128, stats_finish, MF16, S_VAR, S_WAVE, S_LI, S_LJ, S_PHI, SRD_A, SRD_B, SRD_C, SRD_D, SRD_E, S_TI, S_TJ,
                 S_P, S_W, S_T0, S_K, S_BA, S_BB, S_OA, S_OB, S_LW, S_CNT, S_T1, S_T2, S_DELTA, S_CUR, S_G0,
                 P_X, P_WQKV, P_WO, P_W1, P_B1, P_W2, P_B2, P_OUT, P_WS)

LSTR = 32 * MB
O_OFF, X1_OFF, H_OFF, U_OFF, ST_OFF, RS_OFF = 0, 4 * MB, 8 * MB, 12 * MB, 20 * MB, 21 * MB
X2_OFF, FL_OFF, PR_OFF = 24 * MB, 28 * MB, 64 * MB
P_WL = 82
S_LWV, S_FLG = 57, 56
SC = 'sc0 sc1'
LDF = env('LDF', 'sc1')
PROF = env('PROF') == '1'
PV = 250
SINGLE = env('SINGLE', '1') == '1'
MEGA = NAME + '_kernel' if SINGLE else 'mega_kernel'
P_DB = 62
SPIN = 100000

def stamp(k):
    if not PROF: return []
    return ['s_memrealtime s[58:59]', 's_memtime s[100:101]', 's_waitcnt lgkmcnt(0)', f's_lshl_b32 s60, s{S_VAR}, 4', f's_add_u32 m0, s60, {k+1}', 's_nop 0', f'v_writelane_b32 v{PV}, s58, m0',
            's_add_u32 m0, m0, 32', 's_nop 0', f'v_writelane_b32 v{PV}, s100, m0']
G.stamp = lambda idx=None: []
G.cstamp = lambda idx: []

def tiles(a, LN, xshift):
    a.e(f's_lshr_b32 s{S_T0}, s2, 3')
    if LN == 8: a.e(f's_lshr_b32 s{S_LI}, s{S_T0}, 3', f's_and_b32 s{S_LJ}, s{S_T0}, 7')
    else: a.e(f's_mul_i32 s{S_LI}, s{S_T0}, {65536 // LN + 1}', f's_lshr_b32 s{S_LI}, s{S_LI}, 16', f's_mul_i32 s{S_LJ}, s{S_LI}, {LN}', f's_sub_u32 s{S_LJ}, s{S_T0}, s{S_LJ}')
    a.e(f's_lshl_b32 s{S_PHI}, s{S_LI}, 1', f's_add_u32 s{S_PHI}, s{S_PHI}, s{S_LJ}', f's_and_b32 s{S_PHI}, s{S_PHI}, 7',
        f's_and_b32 s{S_T0}, s2, 7', f's_lshr_b32 s{S_TI}, s{S_T0}, {xshift}', f's_lshl_b32 s{S_TI}, s{S_TI}, 2', f's_add_u32 s{S_TI}, s{S_TI}, s{S_LI}',
        f's_and_b32 s{S_TJ}, s{S_T0}, {(1 << xshift) - 1}', f's_mul_i32 s{S_TJ}, s{S_TJ}, {LN}', f's_add_u32 s{S_TJ}, s{S_TJ}, s{S_LJ}', *INITK)
INITK = [f's_mov_b32 s{S_P}, 7', f's_mov_b32 s{S_W}, -1']

def flag_idx(a, ph, hi, mul, lo):
    a.e(f's_lshl_b32 s{S_FLG}, s{S_VAR}, 10', f's_mul_i32 s{S_T0}, s{hi}, {mul}', f's_add_u32 s{S_FLG}, s{S_FLG}, s{S_T0}', f's_add_u32 s{S_FLG}, s{S_FLG}, s{lo}',
        f's_add_u32 s{S_FLG}, s{S_FLG}, {ph*256}', f's_lshl_b32 s{S_FLG}, s{S_FLG}, 7')

_n = [0]
def lab(p): _n[0] += 1; return f'{p}{_n[0]}'

def publish(a, vt):
    l = lab('pub')
    a.e(f's_cmp_lg_u32 s{S_LWV}, 0', f's_cbranch_scc1 {l}')
    srd(a, SRD_E, P_WS, FL_OFF, 8 * 256 * 128)
    a.e(f'v_mov_b32 v{vt}, 0', f'v_mov_b32 v{vt+1}, 1', 's_mov_b64 exec, 1', f'buffer_store_dword v{vt+1}, v{vt}, {S4(SRD_E)}, s{S_FLG} offen {SC}', 's_mov_b64 exec, -1', f'{l}:')

def poll_setup(a, sr_, va, ph, dl, base_lines, n):
    srd(a, sr_, P_WS, FL_OFF, 8 * 256 * 128)
    a.e(*base_lines, f'v_min_u32 v{va}, {n-1}, v0', f'v_add_u32 v{va}, s{S_T0}, v{va}', f'v_max_i32 v{va}, 0, v{va}', f'v_lshlrev_b32 v{va}, 7, v{va}',
        f's_lshl_b32 s55, s{S_VAR}, 17', f's_add_u32 s55, s55, {(dl * 4 + ph) * 32768}')

def poll(a, sr_, va, vt):
    l = lab('poll')
    a.e(f's_mov_b32 s{S_CNT}, 0')
    a.loop([f'{l}:', f'buffer_load_dword v{vt}, v{va}, {S4(sr_)}, s55 offen {SC}', 's_waitcnt vmcnt(0)', f'v_cmp_eq_u32 vcc, 0, v{vt}',
            f's_add_u32 s{S_CNT}, s{S_CNT}, 1', f's_cmp_gt_u32 s{S_CNT}, {SPIN}', f's_cbranch_scc1 {l}d', f's_cbranch_vccnz {l}'])
    a.e(f'{l}d:')

def dma_groups(groups, lw_s):
    L = []
    for g in groups:
        L.append(f's_add_u32 m0, s{lw_s}, s{g["sg"]}')
        for (v, imm, st, ex) in g['dmas']:
            srdn, so, fl = (SRD_A, S_OA, LDF) if st == 'A' else (SRD_B, S_OB, '')
            if ex: L.append(f's_mov_b64 exec, {ex}')
            L.append(f'buffer_load_dwordx4 v{v}, {S4(srdn)}, s{so} offen offset:{imm} {fl} lds')
            if ex: L.append('s_mov_b64 exec, -1')
    return L

def issue(NK, NS, stage, base, stepA, stepB, gA, gW):
    L = next_k(NK)
    if gA: L += [f's_mul_i32 s{S_OA}, s{S_K}, {stepA}', f's_add_u32 s{S_OA}, s{S_OA}, s{S_BA}']
    if gW: L += [f's_mul_i32 s{S_OB}, s{S_K}, {stepB}', f's_add_u32 s{S_OB}, s{S_OB}, s{S_BB}']
    L += dma_groups(gA + gW, S_LW)
    L += [f's_add_u32 s{S_LW}, s{S_LW}, {stage}', f's_cmp_eq_u32 s{S_LW}, {base + NS*stage}', f's_cselect_b32 s{S_LW}, {base}, s{S_LW}']
    return L

def pre_w(a, NK, NS, AH, stage, base, stepB, gW):
    a.e(*INITK, f's_mov_b32 s{S_LW}, {base}')
    for s in range(AH): a.e(*issue(NK, NS, stage, base, 0, stepB, [], gW))

def l_loop(a, NK, NS, AH, stage, base, stepA, stepB, gA, gW, tail=0, hooks=()):
    nA = sum(len(g['dmas']) for g in gA); n = nA + sum(len(g['dmas']) for g in gW)
    iss = lambda: issue(NK, NS, stage, base, stepA, stepB, gA, gW)
    t0 = 0
    if gA:
        a.e(*INITK, f's_mov_b32 s{S_LW}, {base}')
        for s in range(AH): a.e(*issue(NK, NS, stage, base, stepA, stepB, gA, []))
        for t in range(AH - 1):
            a.e(f's_waitcnt vmcnt({(AH - 1 - t) * nA + t * n})', 's_barrier', *iss())
        t0 = AH - 1
    l = lab('ll')
    a.e(f's_mov_b32 s{S_CNT}, {NK - AH - t0 - len(hooks)}')
    a.loop([f'{l}:', f's_waitcnt vmcnt({(AH-1)*n})', 's_barrier'] + iss() + [f's_sub_u32 s{S_CNT}, s{S_CNT}, 1', f's_cmp_lg_u32 s{S_CNT}, 0', f's_cbranch_scc1 {l}'])
    for h in hooks:
        a.e(f's_waitcnt vmcnt({(AH-1)*n})', 's_barrier', *iss()); h(n)
    for j in range(AH - tail):
        a.e(f's_waitcnt vmcnt({(AH-1-j)*n})', 's_barrier')

def c_loop(a, NK, NS, stage, reads, mfmas, addr_regs, late, st0, peel=None):
    adv = adv_s(NS, stage)
    advv = [f'v_add_u32 v{r}, s{S_DELTA}, v{r}' for r in addr_regs]
    a.e(f's_mov_b32 s{S_CUR}, 0', f's_mov_b32 s{S_CNT}, {NK - 1 - (1 if peel else 0)}', 's_barrier', *stamp(st0))
    a.e(*reads[0]); a.e(*adv)
    q0 = [Ins(x).wr for x in reads[0]]
    def it(pre=(), post=()):
        q = list(q0)
        L = sched(mfmas[0], bundle(reads[1], advv), q, 1)
        if not late: L.append('s_waitcnt lgkmcnt(0)'); q.clear()
        L += list(pre) + ['s_barrier'] + list(post) + sched(mfmas[1], spread(reads[0], adv), q, 1)
        assert q == q0
        return L
    if peel: a.e(*it(*peel))
    l = lab('cl')
    a.loop([f'{l}:'] + it() + [f's_sub_u32 s{S_CNT}, s{S_CNT}, 1', f's_cmp_lg_u32 s{S_CNT}, 0', f's_cbranch_scc1 {l}'])
    q = list(q0)
    a.e(*sched(mfmas[0], reads[1], q, 1)); a.e(*sched(mfmas[1], [], q)); a.e('s_waitcnt lgkmcnt(0)', *stamp(st0 + 1))

S_LM, S_B0, S_B1 = 48, 49, 50
def c_direct(a, NK, NS, stage, reads, mf, addr_regs, DR, D, vaddr, init, st0, slots=None):
    R = NK // 8
    advv = lambda src: [f'v_add_u32 v{r}, {src}, v{r}' for r in addr_regs]
    def nk(t):
        p = t % 8
        L = []
        if p == 0 and t != 0: L += [f's_mov_b32 s{S_B0}, s{S_B1}', f's_add_u32 s{S_B1}, s{S_B1}, 32768', f's_cmp_eq_u32 s{S_B1}, s{S_T2}', f's_cselect_b32 s{S_B1}, s{S_BA}, s{S_B1}']
        return L + [f's_bitcmp1_b32 s{S_LM}, {p}', f's_cselect_b32 s{S_OA}, s{S_B1}, s{S_B0}', f's_add_u32 s{S_OA}, s{S_OA}, {p*4096}']
    ld = lambda slot, i: f'buffer_load_dwordx4 {vr(DR+16*slot+4*i,4)}, v{vaddr}, {S4(SRD_A)}, s{S_OA} offen offset:{1024*i} {LDF}'
    adv = [] if slots else adv_s(NS, stage)
    vq = []
    for sl in range(D):
        a.e(*nk(sl))
        for i in range(4 if sl < D - 1 else 2):
            a.e(ld(sl, i)); vq.append(Ins(ld(sl, i)).wr)
        if sl == 1: init(8)
    a.e(f's_mov_b32 s{S_CUR}, 0', f's_mov_b32 s{S_CNT}, {R - 1}', 's_barrier', *stamp(st0))
    a.e(*reads[0]); a.e(*adv)
    q0 = [Ins(x).wr for x in reads[0]]
    def mix(items, loads, pos):
        items = [list(x) for x in items]
        for l, p in zip(loads, pos): items[p] = items[p] + [l]
        return items
    def step(t, vq, generic):
        slot = t % D
        q = list(q0)
        final = not generic and t == NK - 1
        l0 = [ld((slot - 1) % D, 2), ld((slot - 1) % D, 3)] if generic or t - 1 + D < NK else []
        av = [] if final else advv(f's{S_DELTA}' if not slots else (slots[t + 1] - slots[t]) & 0xffffffff)
        L = sched(mf(0, DR + 16 * slot), mix(bundle(reads[1], av), l0, (2, 6)), q, 1, vq=vq)
        if final: return L + sched(mf(1, DR + 16 * slot + 8), [], q, 1, vq=vq)
        more = generic or t + D < NK
        it = [[r] for r in reads[0]]
        sc = (nk(t + D) if more else []) + adv
        for i, x in enumerate(sc): it[min(i // 2, len(it) - 1)].append(x)
        l1 = [ld(slot, 0), ld(slot, 1)] if more else []
        return L + ([] if slots else ['s_barrier']) + sched(mf(1, DR + 16 * slot + 8), mix(it, l1, (4, 7)), q, 1, vq=vq)
    if slots:
        for t in range(NK): a.e(*step(t, vq, False))
    else:
        v1 = list(vq); l = lab('cd')
        body = [f'{l}:']
        for t in range(8, 16): body += step(t, v1, True)
        assert v1 == vq
        a.loop(body + [f's_sub_u32 s{S_CNT}, s{S_CNT}, 1', f's_cmp_lg_u32 s{S_CNT}, 0', f's_cbranch_scc1 {l}'])
        for t in range(NK - 8, NK): a.e(*step(t, vq, False))
    a.e('s_waitcnt lgkmcnt(0)', *stamp(st0 + 1))

def direct_setup(a, NK):
    a.e(f's_lshl_b32 s{S_LM}, 0x303, s{S_PHI}', f's_lshr_b32 s{S_LM}, s{S_LM}, 8', f's_mov_b32 s{S_B0}, s{S_BA}', f's_add_u32 s{S_B1}, s{S_BA}, 32768',
        f's_add_u32 s{S_T2}, s{S_BA}, {NK*4096}')

def w_reads(regs):
    return [[f'ds_read_b64_tr_b16 {vr(16+16*h+4*n+2*q,2)}, v{regs[n]} offset:{h*4096+q*512}' for n in range(4) for q in range(2)] for h in range(2)]

def sel(a, d, ptr0, off0, ptr1, off1, nbytes): G.srd_sel(a, d, ptr0, off0, ptr1, off1, nbytes)

XT = 18432; ST1 = XT + 24576; SL = 3 * ST1; QKV = ST1; PITCH = 400; PB = 72 * PITCH
WO_SLOTS = [131072 + 8192 * i for i in range(4)] + [100608 + 8192 * i for i in range(3)] + [8192 * i for i in range(5)] + [QKV + 8192 * i for i in range(4)]
K4_BASE, K4_NS, K4_AH = 98304, 8, 6
K4_SCR = 90112
D = 4; DR = 120
PF1 = int(env('PF1', '0'), 0); CPRIO = int(env('CPRIO', '0'))
NPF = int(env('NPF', '0')); K0W = int(env('K0W', '0')); W1_K0 = K0W * 256 * 64 * 128
PFT = int(env('PFT', '0')); PF3 = int(env('PF3', '0')); CODEPF = env('CODEPF', '0') == '1'; PF2 = env('PF2', '1') == '1'; LATEW = env('LATEW', '1') == '1'

def gen_mega(a):
    kn = 'mega'
    a.e('.p2align 8', f'{MEGA}:', 's_cmp_ge_u32 s2, 256', f's_cbranch_scc1 {kn}_end',
        's_load_dwordx16 s[64:79], s[0:1], 0', 's_load_dwordx2 s[80:81], s[0:1], 64', 's_load_dwordx2 s[84:85], s[0:1], 80', f's_load_dwordx2 s[{P_DB}:{P_DB+1}], s[0:1], 72',
        'v_lshrrev_b32 v1, 6, v0', 'v_and_b32 v0, 63, v0', f'v_readfirstlane_b32 s{S_WAVE}, v1', f's_mov_b32 s{S_VAR}, 0')
    if PROF: a.e(f'v_mov_b32 v{PV}, 0', *stamp(-1))
    a.e(f's_cmp_ge_u32 s{S_WAVE}, 4', f's_cbranch_scc1 L_start')

    ACC1 = 112
    def acc1(m, rt): return ACC1 + 36 * m + 4 * rt
    def k1_setup_c():
        tiles(a, 8, 1)
        lane_fields(a)
        tr128_addr(a, [8], XT, 21, 22)
        a.e(f's_lshl_b32 s{S_T0}, s{S_WAVE}, 5', f'v_xor_b32 v8, s{S_T0}, v8',
            'v_lshrrev_b32 v21, 1, v4', 'v_xor_b32 v21, v21, v5', 'v_lshlrev_b32 v21, 4, v21', 'v_lshlrev_b32 v22, 7, v4', 'v_add_u32 v9, v21, v22', 'v_xor_b32 v10, 64, v9',
            'v_and_b32 v21, 1, v4', f'v_mul_u32_u24 v21, {PB}, v21', 'v_lshrrev_b32 v22, 1, v4', f'v_mul_u32_u24 v22, {PITCH}, v22',
            'v_lshlrev_b32 v23, 3, v5', 'v_add3_u32 v11, v21, v22, v23', f's_add_u32 s{S_T0}, s{S_T0}, {QKV}',
            f'v_add_u32 v11, s{S_T0}, v11', 'v_lshlrev_b32 v12, 3, v4', f'v_add_u32 v12, {SL}, v12')
        for r in range(ACC1, ACC1 + 108, 2): a.e(f'v_mov_b64 {vr(r,2)}, 0')
    if CPRIO: a.e(f's_setprio {CPRIO}')
    if SINGLE:
        a.e(f's_lshl_b32 s{S_T0}, s2, 3', f's_lshl_b32 s{S_T1}, s{S_WAVE}, 1', f's_add_u32 s{S_T0}, s{S_T0}, s{S_T1}',
            'v_lshrrev_b32 v16, 5, v0', f'v_add_u32 v16, s{S_T0}, v16', 'v_lshlrev_b32 v17, 11, v16', 'v_and_b32 v18, 31, v0', 'v_lshl_add_u32 v17, v18, 4, v17',
            'v_lshlrev_b32 v16, 3, v16', f'v_add_u32 v16, {RS_OFF}, v16',
            f's_cmp_eq_u32 s{S_WAVE}, 0', 's_cselect_b32 s44, 0, -1', 'v_mov_b32 v24, s44', 'v_mov_b32 v25, s44', 'v_mov_b32 v26, s44', 'v_mov_b32 v27, s44',
            'v_lshrrev_b32 v19, 3, v0', 'v_lshlrev_b32 v19, 15, v19', 'v_and_b32 v20, 7, v0', 'v_lshl_add_u32 v19, v20, 4, v19', 'v_lshlrev_b32 v20, 4, v0',
            's_cselect_b64 vcc, -1, 0', 's_lshl_b32 s45, s2, 7', f's_add_u32 s45, s45, {FL_OFF}', 's_lshl_b32 s46, s2, 10', f's_add_u32 s46, s46, {ST_OFF}',
            f's_cmp_eq_u32 s{S_WAVE}, 0', 's_cselect_b32 s45, s45, s46', f's_add_u32 s46, s46, {LSTR}', f's_cmp_eq_u32 s{S_WAVE}, 2', 's_cselect_b32 s45, s46, s45',
            'v_cndmask_b32 v19, v20, v19, vcc', 's_waitcnt lgkmcnt(0)')
        srd(a, SRD_A, P_X, 0, XB)
        for c in range(4): a.e(f'buffer_load_dwordx4 {vr(32+4*c,4)}, v17, {S4(SRD_A)}, 0 offen offset:{512*c}')
        srd(a, SRD_C, P_WS, 0, 64 * MB)
        a.e(f's_cmp_eq_u32 s{S_WAVE}, 3', 's_cbranch_scc1 C_nors', f'buffer_store_dwordx4 v[24:27], v19, {S4(SRD_C)}, s45 offen {SC}', 'C_nors:')
    k1_setup_c()
    a.e('s_waitcnt lgkmcnt(0)', f's_mov_b32 s{P_WL}, s{P_WS}', f's_mov_b32 s{P_WL+1}, s{P_WS+1}')
    if SINGLE:
        a.e('v_mov_b32 v28, 0', 'v_mov_b32 v29, 0', 'v_mov_b32 v31, 0x3f803f80', 's_and_b32 s44, s2, 3', 's_lshl_b32 s44, s44, 6', 'v_mov_b32 v220, s44', 'v_mov_b32 v221, 1', f's_cmp_eq_u32 s{S_WAVE}, 3', 's_cbranch_scc0 C_w1', 's_waitcnt vmcnt(0)', 'C_w1:', 's_waitcnt vmcnt(1)')
        for e in range(16): a.e(f'v_dot2c_f32_bf16 v28, v31, v{32+e}', f'v_dot2c_f32_bf16 v29, v{32+e}, v{32+e}')
        for ctl in ('quad_perm:[1,0,3,2]', 'quad_perm:[2,3,0,1]', 'row_half_mirror', 'row_mirror'):
            a.e(f'v_add_f32_dpp v28, v28, v28 {ctl} row_mask:0xf bank_mask:0xf', f'v_add_f32_dpp v29, v29, v29 {ctl} row_mask:0xf bank_mask:0xf')
        a.e('v_mov_b32 v30, v28', 'v_mov_b32 v31, v29', 'v_permlane16_swap_b32 v28, v30', 'v_permlane16_swap_b32 v29, v31', 'v_add_f32 v28, v28, v30', 'v_add_f32 v29, v29, v31',
            's_mov_b32 exec_lo, 1', 's_mov_b32 exec_hi, 1', f'buffer_store_dwordx2 v[28:29], v16, {S4(SRD_C)}, 0 offen {SC}', 's_mov_b64 exec, -1')
    a.e('C_top:'); a.flush_hist()
    reads = [[], []]; mf = [[], []]
    for h in range(2):
        F = 16 + 48 * h
        ra = [[f'ds_read_b64_tr_b16 {vr(F+4*m,2)}, v8 offset:{m*8192+h*4096}', f'ds_read_b64_tr_b16 {vr(F+4*m+2,2)}, v8 offset:{m*8192+h*4096+512}'] for m in range(3)]
        rb = [f'ds_read_b128 {vr(F+12+4*rt,4)}, v{9+h} offset:{rt*2048}' for rt in range(9)]
        reads[h] = ra[0] + [rb[0]] + ra[1] + ra[2] + rb[1:]
        mf[h] = [f'{MF16} {vr(acc1(m,rt),4)}, {vr(F+4*m,4)}, {vr(F+12+4*rt,4)}, {vr(acc1(m,rt),4)}' for rt in range(9) for m in range(3)]
    peel = None
    if SINGLE:
        a.e(f's_or_b32 s51, s{S_VAR}, s{S_WAVE}')
        peel = (['s_waitcnt vmcnt(0)'], ['s_cmp_lg_u32 s51, 0', 's_cbranch_scc1 C_nogate', 's_mov_b64 exec, 1', f'global_atomic_add v220, v221, s[{P_DB}:{P_DB+1}] sc1', 's_mov_b64 exec, -1', 'C_nogate:'])
    c_loop(a, 16, 3, ST1, reads, mf, [8, 9, 10], False, 0, peel)
    a.e('s_barrier')
    for rt in range(9): a.e(f'ds_read_b64 {vr(32+2*rt,2)}, v12 offset:{rt*128}')
    for m in range(3):
        for r in range(4): a.e(f'v_mov_b32_dpp v{16+4*m+r}, v{acc1(m,0)+r} row_newbcast:0 row_mask:0xf bank_mask:0xf')
    a.e('s_waitcnt lgkmcnt(0)')
    k = 0
    for rt in range(9):
        ms = [m for m in range(3) if not (m == 0 and rt == 0)]
        st = vr(32 + 2 * rt, 2)
        for m in ms:
            for e in (0, 2): a.e(f'v_pk_fma_f32 {vr(acc1(m,rt)+e,2)}, {vr(16+4*m+e,2)}, {st}, {vr(acc1(m,rt)+e,2)} op_sel_hi:[1,0,1] neg_lo:[0,1,0] neg_hi:[0,1,0]')
        for m in ms:
            for e in (0, 2): a.e(f'v_pk_mul_f32 {vr(acc1(m,rt)+e,2)}, {vr(acc1(m,rt)+e,2)}, {st} op_sel:[0,1] op_sel_hi:[1,1]')
        for m in ms:
            d = acc1(m, rt); o = 52 + 2 * (k & 7); k += 1
            a.e(f'v_cvt_pk_bf16_f32 v{o}, v{d}, v{d+1}', f'v_cvt_pk_bf16_f32 v{o+1}, v{d+2}, v{d+3}', f'ds_write_b64 v11, {vr(o,2)} offset:{rt*8*PITCH+m*128}')
    a.e('attn:'); a.flush_hist()
    MK = 86
    srd(a, SRD_D, P_WL, O_OFF, XB)
    a.e(f's_lshr_b32 s{S_T1}, s{S_WAVE}, 1', f's_and_b32 s{S_T2}, s{S_WAVE}, 1',
        f's_mul_i32 s{S_T0}, s{S_T2}, {PB}', f's_add_u32 s{S_T0}, s{S_T0}, {QKV}', f's_lshl_b32 s{S_G0+5}, s{S_T1}, 4')
    a.e(f'v_add_u32 v16, s{S_G0+5}, v4', 'v_lshlrev_b32 v17, 4, v5', f'v_add_u32 v17, s{S_T0}, v17',
        f'v_mul_u32_u24 v18, {PITCH}, v16', 'v_add_u32 v8, v18, v17', f'v_add_u32 v10, {8*PITCH}, v8', 'v_add_u32 v8, 128, v8',
        'v_add_u32 v16, 16, v16', 'v_min_u32 v16, 71, v16', f'v_mul_u32_u24 v18, {PITCH}, v16', 'v_add3_u32 v9, v18, v17, 64', 'v_add_u32 v9, 64, v9')
    a.e('v_lshl_add_u32 v16, v5, 2, v6', f'v_add_u32 v16, s{S_G0+5}, v16', 'v_lshlrev_b32 v17, 4, v7', f'v_add_u32 v17, s{S_T0}, v17', 'v_add_u32 v17, 256, v17',
        f'v_mul_u32_u24 v18, {PITCH}, v16', 'v_add_u32 v14, v18, v17',
        'v_add_u32 v16, 16, v16', 'v_min_u32 v16, 71, v16', f'v_mul_u32_u24 v18, {PITCH}, v16', 'v_add_u32 v15, v18, v17')
    a.e('v_lshlrev_b32 v13, 4, v0', f's_lshl_b32 s{S_G0+6}, s{S_TI}, 2', f's_add_u32 s{S_G0+6}, s{S_G0+6}, s{S_T1}', f's_lshl_b32 s{S_G0+6}, s{S_G0+6}, 16',
        f's_lshl_b32 s{S_G0+7}, s{S_TJ}, 12', f's_add_u32 s{S_G0+6}, s{S_G0+6}, s{S_G0+7}', f's_lshl_b32 s{S_G0+7}, s{S_T2}, 10', f's_add_u32 s{S_G0+6}, s{S_G0+6}, s{S_G0+7}')
    a.e('v_lshlrev_b32 v16, 2, v5', 'v_sub_u32 v16, v16, v4', f's_or_b32 s{S_G0+7}, s{S_TI}, s{S_T1}', f's_cmp_eq_u32 s{S_G0+7}, 0', f's_cselect_b32 s{S_G0+7}, 0, -1')
    for k in range(8):
        a.e(f'v_add_u32 v17, {16 * (k >> 2) + (k & 3) - 1}, v16', f'v_cmp_gt_u32 s[{MK+2*k}:{MK+1+2*k}], 8, v17')
    for k in range(4): a.e(f's_and_b32 s{MK+2*k}, s{MK+2*k}, s{S_G0+7}')
    cs = (32 ** -0.5) * 1.4426950408889634
    a.e(f'v_mov_b32 v18, {f32(cs)}', 'v_mov_b32 v19, 0xff800000')
    a.e('s_waitcnt lgkmcnt(0)', 's_barrier')
    B = [32, 80]
    for hd in range(2):
        b = B[hd]; o = 64 * hd
        a.e(f'ds_read_b128 {vr(b,4)}, v10 offset:{o}', f'ds_read_b128 {vr(b+4,4)}, v8 offset:{o}', f'ds_read_b128 {vr(b+8,4)}, v9 offset:{o}')
    for hd in range(2):
        b = B[hd]; o = 64 * hd
        for dt in range(2): a.e(f'ds_read_b64_tr_b16 {vr(b+12+4*dt,2)}, v14 offset:{o+8*dt}', f'ds_read_b64_tr_b16 {vr(b+14+4*dt,2)}, v15 offset:{o+8*dt}')
    for hd in range(2):
        b = B[hd]
        a.e(f's_waitcnt lgkmcnt({11 - 3*hd})', f'{MF16} {vr(b+20,4)}, {vr(b+4,4)}, {vr(b,4)}, 0', f'{MF16} {vr(b+24,4)}, {vr(b+8,4)}, {vr(b,4)}, 0')
    def both(f):
        for x, y in zip(f(B[0]), f(B[1])): a.e(x, y)
    both(lambda b: [f'v_cndmask_b32 v{b+20+k}, v19, v{b+20+k}, s[{MK+2*k}:{MK+1+2*k}]' for k in range(8)])
    both(lambda b: [f'v_max3_f32 v{b+28}, v{b+20}, v{b+21}, v{b+22}', f'v_max3_f32 v{b+29}, v{b+23}, v{b+24}, v{b+25}',
                    f'v_max3_f32 v{b+28}, v{b+28}, v{b+26}, v{b+27}', f'v_max_f32 v{b+28}, v{b+28}, v{b+29}', f'v_mov_b32 v{b+29}, v{b+28}',
                    f'v_permlane16_swap_b32 v{b+28}, v{b+29}', f'v_max_f32 v{b+28}, v{b+28}, v{b+29}', f'v_mov_b32 v{b+29}, v{b+28}',
                    f'v_permlane32_swap_b32 v{b+28}, v{b+29}', f'v_max_f32 v{b+28}, v{b+28}, v{b+29}', f'v_mul_f32 v{b+28}, v18, v{b+28}'])
    both(lambda b: [f'v_fma_f32 v{b+20+k}, v{b+20+k}, v18, -v{b+28}' for k in range(8)])
    both(lambda b: [f'v_exp_f32 v{b+20+k}, v{b+20+k}' for k in range(8)])
    both(lambda b: [f'v_pk_add_f32 {vr(b+28,2)}, {vr(b+20,2)}, {vr(b+22,2)}', f'v_pk_add_f32 {vr(b+30,2)}, {vr(b+24,2)}, {vr(b+26,2)}',
                    f'v_pk_add_f32 {vr(b+28,2)}, {vr(b+28,2)}, {vr(b+30,2)}', f'v_add_f32 v{b+28}, v{b+28}, v{b+29}', f'v_mov_b32 v{b+29}, v{b+28}',
                    f'v_permlane16_swap_b32 v{b+28}, v{b+29}', f'v_add_f32 v{b+28}, v{b+28}, v{b+29}', f'v_mov_b32 v{b+29}, v{b+28}',
                    f'v_permlane32_swap_b32 v{b+28}, v{b+29}', f'v_add_f32 v{b+28}, v{b+28}, v{b+29}', f'v_rcp_f32 v{b+28}, v{b+28}'])
    both(lambda b: [f'v_pk_mul_f32 {vr(b+20+e,2)}, {vr(b+20+e,2)}, {vr(b+28,2)} op_sel_hi:[1,0]' for e in range(0, 8, 2)])
    both(lambda b: [f'v_cvt_pk_bf16_f32 v{b+32+e}, v{b+20+2*e}, v{b+21+2*e}' for e in range(4)])
    a.e('s_waitcnt lgkmcnt(0)')
    both(lambda b: [f'{MF16} {vr(b+36+4*dt,4)}, {vr(b+12+4*dt,4)}, {vr(b+32,4)}, 0' for dt in range(2)])
    both(lambda b: [f'v_cvt_pk_bf16_f32 v{b+e}, v{b+36+2*e}, v{b+37+2*e}' for e in range(4)])
    for hd in range(2): a.e(f'buffer_store_dwordx4 {vr(B[hd],4)}, v13, {S4(SRD_D)}, s{S_G0+6} offen offset:{2048*hd} {SC}')
    a.e(f's_cmp_ge_u32 s{S_WAVE}, 4', 's_cbranch_scc1 L_k1done')

    ACC = 48; RES = 96
    def acc2(t, b): return ACC + 16 * b + 4 * t
    a.e(f's_lshl_b32 s{S_T0}, s{S_TI}, 2', f's_add_u32 s{S_T0}, s{S_T0}, s{S_WAVE}', f's_lshl_b32 s{S_BA}, s{S_T0}, 16', f's_lshl_b32 s{S_T1}, s{S_T0}, 5',
        'v_lshlrev_b32 v13, 1, v4', f'v_add_u32 v13, s{S_T1}, v13',
        'v_lshlrev_b32 v12, 11, v13', 'v_lshl_add_u32 v12, v3, 4, v12', f's_lshl_b32 s{S_T0}, s{S_TJ}, 7', f'v_add_u32 v12, s{S_T0}, v12', 'v_lshlrev_b32 v14, 4, v0')
    srd(a, SRD_A, P_WL, O_OFF, XB)
    sel(a, SRD_C, P_X, 0, P_WS, X2_OFF, XB)
    srd(a, SRD_B, P_WL, ST_OFF, 16 * 2048 * 8)
    tr128_addr(a, [8, 9, 10, 11], WO_SLOTS[0], 16, 17)
    a.e('v_add_u32 v16, v13, v2', 'v_lshlrev_b32 v16, 3, v16', f's_lshl_b32 s{S_T0}, s{S_TJ}, 14', f'v_add_u32 v112, s{S_T0}, v16',
        'v_lshrrev_b32 v17, 5, v0', 'v_lshlrev_b32 v17, 17, v17', 'v_add_u32 v113, v16, v17')
    a.e(f's_lshl_b32 s{S_T0}, s{S_WAVE}, 12', 'v_lshlrev_b32 v16, 8, v4', 'v_lshl_add_u32 v16, v5, 3, v16', f'v_add_u32 v16, s{S_T0}, v16',
        'v_and_b32 v17, 1, v4', 'v_bfe_u32 v18, v4, 2, 1', 'v_lshl_or_b32 v17, v18, 1, v17', 'v_lshl_add_u32 v114, v17, 5, v16',
        f's_lshl_b32 s{S_G0}, s{S_TJ}, 8', f's_lshl_b32 s{S_T1}, s{S_TI}, 2', f's_add_u32 s{S_G0}, s{S_G0}, s{S_T1}', f's_add_u32 s{S_G0}, s{S_G0}, s{S_WAVE}', f's_lshl_b32 s{S_G0}, s{S_G0}, 10')
    tr128_addr(a, [115], 0, 16, 17)
    a.e(f'v_add_u32 v115, s{S_T0}, v115')
    for t in range(1, 4): a.e(f's_add_u32 s{S_G0+t}, s{S_G0}, {t*65536}')
    for p in range(1, 8): a.e(f's_mov_b32 s{86+p}, {p*16384}')
    direct_setup(a, 16)
    poll_setup(a, SRD_E, 119, 0, 0, [f's_lshl_b32 s{S_T0}, s{S_TI}, 4'], 16)
    a.e('s_waitcnt vmcnt(0)', 's_barrier', *stamp(2))
    poll(a, SRD_E, 119, 16)
    a.e(*stamp(3))
    for b in range(2):
        for P in range(2): a.e(f'buffer_load_dwordx4 {vr(RES+8*b+4*P,4)}, v12, {S4(SRD_C)}, 0 offen offset:{b*2048+P*64} {LDF}')
    def init2(out):
        a.e(f's_waitcnt vmcnt({out})')
        for b in range(2):
            for P in range(2):
                r = RES + 8 * b + 4 * P
                a.e(f'v_permlane16_swap_b32 v{r}, v{r+2}', f'v_permlane16_swap_b32 v{r+1}, v{r+3}')
        for b in range(2):
            for P in range(2):
                r = RES + 8 * b + 4 * P
                a.e(*unpack4(r, r + 1, acc2(2 * P, b)), *unpack4(r + 2, r + 3, acc2(2 * P + 1, b)))
    mf2 = lambda h, bb: [f'{MF16} {vr(acc2(t,b),4)}, {vr(16+16*h+4*t,4)}, {vr(bb+4*b,4)}, {vr(acc2(t,b),4)}' for t in range(4) for b in range(2)]
    c_direct(a, 16, 0, 0, w_reads([8, 9, 10, 11]), mf2, [8, 9, 10, 11], DR, D, 14, init2, 4, slots=WO_SLOTS)
    a.e('s_barrier')
    srd(a, SRD_D, P_WL, X1_OFF, XB)
    srd(a, SRD_E, P_WL, H_OFF, XB)
    for b in range(2):
        d = acc2(0, b); T = 16 + 4 * b
        a.e(f'v_pk_add_f32 {vr(T,2)}, {vr(d,2)}, {vr(d+2,2)}', f'v_pk_mul_f32 {vr(T+2,2)}, {vr(d,2)}, {vr(d,2)}', f'v_pk_fma_f32 {vr(T+2,2)}, {vr(d+2,2)}, {vr(d+2,2)}, {vr(T+2,2)}')
        for e in range(4, 16, 2):
            a.e(f'v_pk_add_f32 {vr(T,2)}, {vr(T,2)}, {vr(d+e,2)}', f'v_pk_fma_f32 {vr(T+2,2)}, {vr(d+e,2)}, {vr(d+e,2)}, {vr(T+2,2)}')
        a.e(f'v_add_f32 v{24+b}, v{T}, v{T+1}', f'v_add_f32 v{26+b}, v{T+2}, v{T+3}')
    a.e('v_permlane16_swap_b32 v24, v25', 'v_permlane16_swap_b32 v26, v27', 'v_add_f32 v28, v24, v25', 'v_add_f32 v29, v26, v27',
        'v_mov_b32 v30, v28', 'v_mov_b32 v31, v29', 'v_permlane32_swap_b32 v28, v30', 'v_permlane32_swap_b32 v29, v31',
        'v_add_f32 v28, v28, v30', 'v_add_f32 v29, v29, v31', 'v_and_b32 v29, 0x7fffffff, v29',
        's_mov_b32 exec_hi, 0', f'buffer_store_dwordx2 v[28:29], v112, {S4(SRD_B)}, 0 offen {SC}', 's_mov_b64 exec, -1')
    for b in range(2):
        for t in range(4):
            r = RES + 8 * b + 2 * t; d = acc2(t, b)
            a.e(f'v_cvt_pk_bf16_f32 v{r}, v{d}, v{d+1}', f'v_cvt_pk_bf16_f32 v{r+1}, v{d+2}, v{d+3}')
    for b in range(2):
        for P in range(2):
            r = RES + 8 * b + 4 * P
            a.e(f'v_permlane16_swap_b32 v{r}, v{r+2}', f'v_permlane16_swap_b32 v{r+1}, v{r+3}')
    for t in range(1, 4): a.e(f'v_xor_b32 v{115+t}, {t << 5}, v115', f'v_xor_b32 v{120+t}, {t << 5}, v114')
    a.e('v_mov_b32 v120, v114', f's_mov_b32 s{S_CNT}, 0')
    body = ['k2_poll:'] + [f'buffer_load_dwordx2 {vr(32+2*p,2)}, v113, {S4(SRD_B)}, {"0" if p == 0 else f"s{86+p}"} offen {SC}' for p in range(8)]
    body += ['s_waitcnt vmcnt(0)', 'v_min3_i32 v16, v33, v35, v37', 'v_min3_i32 v17, v39, v41, v43', 'v_min3_i32 v16, v16, v45, v47',
             'v_min_i32 v16, v16, v17', 'v_cmp_gt_i32 vcc, 0, v16', f's_add_u32 s{S_CNT}, s{S_CNT}, 1', f's_cmp_gt_u32 s{S_CNT}, {SPIN}',
             's_cbranch_scc1 k2_pdone', 's_cbranch_vccnz k2_poll']
    a.loop(body)
    a.e('k2_pdone:', *stamp(6))
    for b in range(2):
        for P in range(2): a.e(f'buffer_store_dwordx4 {vr(RES+8*b+4*P,4)}, v12, {S4(SRD_D)}, 0 offen offset:{b*2048+P*64} {SC}')
    a.e('v_pk_add_f32 v[32:33], v[32:33], v[34:35]', 'v_pk_add_f32 v[36:37], v[36:37], v[38:39]', 'v_pk_add_f32 v[40:41], v[40:41], v[42:43]',
        'v_pk_add_f32 v[44:45], v[44:45], v[46:47]', 'v_pk_add_f32 v[32:33], v[32:33], v[36:37]', 'v_pk_add_f32 v[40:41], v[40:41], v[44:45]',
        'v_pk_add_f32 v[32:33], v[32:33], v[40:41]', 'v_mov_b32 v34, v32', 'v_mov_b32 v35, v33',
        'v_permlane32_swap_b32 v32, v34', 'v_permlane32_swap_b32 v33, v35', 'v_add_f32 v32, v32, v34', 'v_add_f32 v33, v33, v35')
    stats_finish(a, 32, 33, 36, True)
    a.e('v_mov_b32 v34, v32', 'v_mov_b32 v35, v33', 'v_permlane16_swap_b32 v32, v34', 'v_permlane16_swap_b32 v33, v35')
    for b in range(2):
        st = vr(32 + 2 * b, 2); d = acc2(0, b); o = 160 + 8 * b
        for e in range(0, 16, 2): a.e(f'v_pk_add_f32 {vr(d+e,2)}, {vr(d+e,2)}, {st} op_sel_hi:[1,0] neg_lo:[0,1] neg_hi:[0,1]')
        for e in range(0, 16, 2): a.e(f'v_pk_mul_f32 {vr(d+e,2)}, {vr(d+e,2)}, {st} op_sel:[0,1] op_sel_hi:[1,1]')
        for t in range(4):
            a.e(f'v_cvt_pk_bf16_f32 v{o+2*t}, v{d+4*t}, v{d+4*t+1}', f'v_cvt_pk_bf16_f32 v{o+2*t+1}, v{d+4*t+2}, v{d+4*t+3}',
                f'ds_write_b64 v{120+t}, {vr(o+2*t,2)} offset:{128*b}')
    a.e('s_waitcnt lgkmcnt(0)')
    for t in range(4): a.e(f'ds_read_b64_tr_b16 {vr(176+4*t,2)}, v{115+t}', f'ds_read_b64_tr_b16 {vr(178+4*t,2)}, v{115+t} offset:512')
    for t in range(4): a.e(f's_waitcnt lgkmcnt({6-2*t})', f'buffer_store_dwordx4 {vr(176+4*t,4)}, v14, {S4(SRD_E)}, s{S_G0+t} offen {SC}')
    a.e('s_cmp_ge_u32 s2, 224', 's_cbranch_scc1 C_k3skip')

    ACC3 = 80
    def acc3(tf, td): return ACC3 + 16 * td + 4 * tf
    tiles(a, 7, 2)
    a.e(f's_and_b32 s{S_G0+2}, s{S_WAVE}, 1', f's_lshr_b32 s{S_T2}, s{S_WAVE}, 1',
        f's_lshl_b32 s{S_T0}, s{S_TJ}, 8', f's_lshl_b32 s{S_G0}, s{S_G0+2}, 7', f's_add_u32 s{S_T0}, s{S_T0}, s{S_G0}',
        'v_lshlrev_b32 v16, 3, v5', f'v_add_u32 v16, s{S_T0}, v16')
    srd(a, SRD_C, P_B1, 0, 3584 * 2)
    for tf in range(4): a.e(f'buffer_load_dwordx2 {vr(144+2*tf,2)}, v16, {S4(SRD_C)}, 0 offen offset:{32*tf}')
    srd(a, SRD_D, P_WL, U_OFF, UB)
    a.e('v_lshl_add_u32 v17, v5, 3, v6', 'v_lshlrev_b32 v17, 8, v17', 'v_lshl_add_u32 v17, v7, 3, v17', 'v_lshl_or_b32 v18, v2, 2, v6', 'v_lshl_add_u32 v17, v18, 5, v17',
        f's_lshl_b32 s{S_T0}, s{S_G0+2}, 7', f's_add_u32 s{S_T0}, s{S_T0}, 16384', f'v_xor_b32 v18, s{S_T0}, v17', f's_lshl_b32 s{S_T0}, s{S_T2}, 13', f'v_add_u32 v12, s{S_T0}, v14')
    for t in range(4): a.e(f'v_xor_b32 v{8+t}, {t << 5}, v18')
    a.e('v_bfe_u32 v17, v4, 2, 1', 'v_lshlrev_b32 v17, 10, v17', 'v_lshl_add_u32 v17, v3, 8, v17', 'v_lshrrev_b32 v18, 3, v4', 'v_lshl_add_u32 v17, v18, 6, v17',
        'v_lshl_add_u32 v152, v7, 4, v17', 'v_add_u32 v153, 128, v152',
        f's_lshl_b32 s{S_T0}, s{S_TI}, 1', f's_add_u32 s{S_T0}, s{S_T0}, s{S_T2}', f's_mul_i32 s{S_T0}, s{S_T0}, 224',
        f's_lshl_b32 s{S_G0}, s{S_TJ}, 2', f's_add_u32 s{S_T0}, s{S_T0}, s{S_G0}', f's_lshl_b32 s{S_G0}, s{S_G0+2}, 1', f's_add_u32 s{S_T0}, s{S_T0}, s{S_G0}',
        f's_lshl_b32 s{S_G0}, s{S_T0}, 11', f's_add_u32 s{S_G0+1}, s{S_G0}, {112*2048}')
    a.e('s_waitcnt vmcnt(0)', 's_barrier', *stamp(7))
    for tf in range(4):
        a.e(*unpack4(144 + 2 * tf, 145 + 2 * tf, acc3(tf, 0)))
        for td in range(1, 4): a.e(f'v_mov_b64 {vr(acc3(tf,td),2)}, {vr(acc3(tf,0),2)}', f'v_mov_b64 {vr(acc3(tf,td)+2,2)}, {vr(acc3(tf,0)+2,2)}')
    reads = [[], []]; mf = [[], []]
    for h in range(2):
        F = 16 + 32 * h
        rd = lambda dst, av: [f'ds_read_b64_tr_b16 {vr(dst,2)}, v{av} offset:{h*8192}', f'ds_read_b64_tr_b16 {vr(dst+2,2)}, v{av} offset:{h*8192+1024}']
        for t in range(4): reads[h] += rd(F + 4 * t, 8 + t) + [f'ds_read_b128 {vr(F+16+4*t,4)}, v12 offset:{(2*t+h)*1024}']
        for tf, td in sorted([(tf, td) for tf in range(4) for td in range(4)], key=lambda x: (max(x), x)):
            mf[h].append(f'{MF16} {vr(acc3(tf,td),4)}, {vr(F+4*tf,4)}, {vr(F+16+4*td,4)}, {vr(acc3(tf,td),4)}')
    c_loop(a, 32, 5, 32768, reads, mf, list(range(8, 13)), True, 8)
    c1 = -2.0 * 0.7978845608028654 * 1.4426950408889634
    a.e(f'v_mov_b32 v16, {f32(c1)}', f'v_mov_b32 v17, {f32(c1 * 0.044715)}')
    k = 0
    for td in range(4):
        for P in range(2):
            d = acc3(2 * P, td); T = 24 + 16 * (k & 1); k += 1
            O = 160 + 4 * k
            for e in range(0, 8, 2): a.e(f'v_pk_mul_f32 {vr(T+e,2)}, {vr(d+e,2)}, {vr(d+e,2)}')
            for e in range(0, 8, 2): a.e(f'v_pk_fma_f32 {vr(T+e,2)}, {vr(T+e,2)}, v[16:17], v[16:17] op_sel:[0,1,0] op_sel_hi:[1,1,0]')
            for e in range(0, 8, 2): a.e(f'v_pk_mul_f32 {vr(T+e,2)}, {vr(T+e,2)}, {vr(d+e,2)}')
            for e in range(8): a.e(f'v_exp_f32 v{T+e}, v{T+e}')
            for e in range(0, 8, 2): a.e(f'v_pk_add_f32 {vr(T+e,2)}, {vr(T+e,2)}, 1.0 op_sel_hi:[1,0]')
            for e in range(8): a.e(f'v_rcp_f32 v{T+e}, v{T+e}')
            for e in range(0, 8, 2): a.e(f'v_pk_mul_f32 {vr(T+e,2)}, {vr(T+e,2)}, {vr(d+e,2)}')
            for e in range(4): a.e(f'v_cvt_pk_bf16_f32 v{O+e}, v{T+2*e}, v{T+2*e+1}')
            a.e(f'v_permlane16_swap_b32 v{O}, v{O+2}', f'v_permlane16_swap_b32 v{O+1}, v{O+3}')
            a.e(f'buffer_store_dwordx4 {vr(O,4)}, v{152+(td&1)}, {S4(SRD_D)}, s{S_G0+(td>>1)} offen offset:{2048*P} {SC}')
    a.e('C_k3skip:'); a.flush_hist()

    def acc4(aa, n): return ACC + 8 * n + 4 * aa
    tiles(a, 8, 2)
    a.e(f's_lshl_b32 s{S_T0}, s{S_TJ}, 6', f'v_add_u32 v13, s{S_T0}, v4', 'v_lshlrev_b32 v12, 11, v13', 'v_lshl_add_u32 v12, v5, 4, v12',
        f's_lshl_b32 s{S_T0}, s{S_TI}, 8', f's_lshl_b32 s{S_T1}, s{S_WAVE}, 6', f's_add_u32 s{S_T0}, s{S_T0}, s{S_T1}',
        f'v_add_u32 v12, s{S_T0}, v12', 'v_lshlrev_b32 v13, 1, v13', 'v_lshlrev_b32 v14, 4, v0',
        f's_lshl_b32 s{S_BA}, s{S_TI}, 2', f's_add_u32 s{S_BA}, s{S_BA}, s{S_WAVE}', f's_mul_i32 s{S_BA}, s{S_BA}, {56*4096}',
        's_mov_b32 s45, 32768', 's_mov_b32 s46, 65536', 's_mov_b32 s47, 98304')
    so = ['0', 's45', 's46', 's47']
    srd(a, SRD_A, P_WL, U_OFF, UB)
    srd(a, SRD_C, P_WL, X1_OFF, XB)
    srd(a, SRD_B, P_B2, 0, 4096)
    for n in range(4): a.e(f'buffer_load_ushort v{RES+16+2*n}, v13, {S4(SRD_B)}, 0 offen offset:{32*n}')
    tr128_addr(a, [8, 9, 10, 11], K4_BASE, 16, 17)
    direct_setup(a, 56)
    poll_setup(a, SRD_E, 15, 2, 0, [f's_lshl_b32 s{S_T0}, s{S_TI}, 5'], 28)
    a.e('s_waitcnt vmcnt(0)', 's_barrier', *stamp(10))
    if PF2:
        a.e('s_cmp_lt_u32 s2, 224', 's_cbranch_scc1 C_nopf', f's_cmp_lg_u32 s{S_VAR}, 0', 's_cbranch_scc1 C_nopf')
        srd(a, SRD_D, P_W2, 0, 3584 * 2048 * 2)
        a.e(f's_sub_u32 s{S_T0}, s2, 224', f's_lshl_b32 s{S_T0}, s{S_T0}, 2', f's_add_u32 s{S_T0}, s{S_T0}, s{S_WAVE}', f's_lshl_b32 s{S_T0}, s{S_T0}, 13', 'v_lshlrev_b32 v17, 7, v0')
        for j in range(14):
            a.e(f'buffer_load_dword v18, v17, {S4(SRD_D)}, s{S_T0} offen', f's_add_u32 s{S_T0}, s{S_T0}, {128*8192}', *(['s_waitcnt vmcnt(1)'] if j else []))
        a.e('C_nopf:')
    poll(a, SRD_E, 15, 16)
    a.e(*stamp(11))
    for n in range(4): a.e(f'buffer_load_dwordx4 {vr(RES+4*n,4)}, v12, {S4(SRD_C)}, {so[n]} offen {LDF}')
    sel(a, SRD_E, P_WS, X2_OFF, P_OUT, 0, XB)
    srd(a, SRD_B, P_WS, LSTR + RS_OFF, 8 * 2048 * 8)
    def init4(out):
        a.e(f's_waitcnt vmcnt({out})')
        for n in range(4):
            a.e(f'v_lshlrev_b32 v{RES+16+2*n}, 16, v{RES+16+2*n}')
            a.e(*unpack4(RES + 4 * n, RES + 4 * n + 1, acc4(0, n)), *unpack4(RES + 4 * n + 2, RES + 4 * n + 3, acc4(1, n)))
            for e in range(0, 8, 2): a.e(f'v_pk_add_f32 {vr(acc4(0,n)+e,2)}, {vr(acc4(0,n)+e,2)}, {vr(RES+16+2*n,2)} op_sel_hi:[1,0]')
    mf4 = lambda h, b: [f'{MF16} {vr(acc4(aa,n),4)}, {vr(b+4*aa,4)}, {vr(16+16*h+4*n,4)}, {vr(acc4(aa,n),4)}' for n in range(4) for aa in range(2)]
    c_direct(a, 56, K4_NS, 8192, w_reads([8, 9, 10, 11]), mf4, [8, 9, 10, 11], DR, D, 14, init4, 12)
    for n in range(4):
        for e in range(4): a.e(f'v_cvt_pk_bf16_f32 v{RES+4*n+e}, v{acc4(0,n)+2*e}, v{acc4(0,n)+2*e+1}')
        a.e(f'buffer_store_dwordx4 {vr(RES+4*n,4)}, v12, {S4(SRD_E)}, {so[n]} offen {SC}')
    a.e(f's_cmp_lg_u32 s{S_VAR}, 0', 's_cbranch_scc1 C_end')
    for n in range(4): a.e(*unpack4(RES + 4 * n, RES + 4 * n + 1, acc4(0, n)), *unpack4(RES + 4 * n + 2, RES + 4 * n + 3, acc4(1, n)))
    for n in range(4):
        d = acc4(0, n); T = 16 + 4 * n
        a.e(f'v_pk_add_f32 {vr(T,2)}, {vr(d,2)}, {vr(d+2,2)}', f'v_pk_mul_f32 {vr(T+2,2)}, {vr(d,2)}, {vr(d,2)}', f'v_pk_fma_f32 {vr(T+2,2)}, {vr(d+2,2)}, {vr(d+2,2)}, {vr(T+2,2)}')
        for e in (4, 6): a.e(f'v_pk_add_f32 {vr(T,2)}, {vr(T,2)}, {vr(d+e,2)}', f'v_pk_fma_f32 {vr(T+2,2)}, {vr(d+e,2)}, {vr(d+e,2)}, {vr(T+2,2)}')
        a.e(f'v_add_f32 v{32+n}, v{T}, v{T+1}', f'v_add_f32 v{36+n}, v{T+2}, v{T+3}')
    for b in (32, 36): a.e(f'v_permlane16_swap_b32 v{b}, v{b+1}', f'v_permlane16_swap_b32 v{b+2}, v{b+3}')
    for b in (32, 36): a.e(f'v_add_f32 v{b}, v{b}, v{b+1}', f'v_add_f32 v{b+2}, v{b+2}, v{b+3}')
    a.e('v_permlane32_swap_b32 v32, v34', 'v_permlane32_swap_b32 v36, v38', 'v_add_f32 v40, v32, v34', 'v_add_f32 v41, v36, v38',
        'v_lshlrev_b32 v42, 3, v0', f's_lshl_b32 s{S_T0}, s{S_WAVE}, 9', f's_add_u32 s{S_T0}, s{S_T0}, {K4_SCR}', f'v_add_u32 v43, s{S_T0}, v42',
        'ds_write_b64 v43, v[40:41]', 's_waitcnt lgkmcnt(0)', 's_barrier',
        f's_cmp_lg_u32 s{S_WAVE}, 0', 's_cbranch_scc1 C_nost',
        'ds_read_b64 v[44:45], v43 offset:512', 'ds_read_b64 v[46:47], v43 offset:1024', 'ds_read_b64 v[48:49], v43 offset:1536',
        f's_lshl_b32 s{S_T0}, s{S_TI}, 14', f's_lshl_b32 s{S_T1}, s{S_TJ}, 9', f's_add_u32 s{S_T0}, s{S_T0}, s{S_T1}', 's_waitcnt lgkmcnt(0)',
        'v_pk_add_f32 v[40:41], v[40:41], v[44:45]', 'v_pk_add_f32 v[46:47], v[46:47], v[48:49]', 'v_pk_add_f32 v[40:41], v[40:41], v[46:47]',
        f'buffer_store_dwordx2 v[40:41], v42, {S4(SRD_B)}, s{S_T0} offen {SC}', 'C_nost:', 's_nop 1')
    k1_setup_c()
    a.e('s_waitcnt vmcnt(0)', 's_barrier', *stamp(14))
    a.e(f's_mov_b32 s{S_VAR}, 1', f's_add_u32 s{P_WL}, s{P_WS}, {LSTR}', f's_addc_u32 s{P_WL+1}, s{P_WS+1}, 0', 's_branch C_top')
    a.e('C_end:'); dump(a)
    a.e('s_endpgm')

    gx = dict(sg=S_G0, dmas=[(8 + i, 1024 * i, 'A', None) for i in range(4)])
    gw = [dict(sg=S_G0 + 2 + m, dmas=[(13 + 2 * m, 0, 'B', None), (14 + 2 * m, 1024, 'B', None)]) for m in range(3)]
    gh = dict(sg=S_G0 + 1, dmas=[(12, 0, 'A', 's[52:53]')])
    def k1_setup_l(layer):
        tiles(a, 8, 1)
        a.e(f's_mov_b32 s{S_T2}, s{S_LWV}')
        dma_w128(a, [13, 14], 6144, swz128(a), 16, 2, 3, 4)
        a.e('v_add_u32 v15, 2048, v13', 'v_add_u32 v16, 2048, v14', 'v_add_u32 v17, 4096, v13', 'v_add_u32 v18, 4096, v14',
            f's_lshl_b32 s{S_G0+2}, s{S_T2}, 11', f's_add_u32 s{S_G0+2}, s{S_G0+2}, {XT}', f's_add_u32 s{S_G0+3}, s{S_G0+2}, 8192', f's_add_u32 s{S_G0+4}, s{S_G0+2}, 16384',
            f's_lshl_b32 s{S_BB}, s{S_TJ}, 7')
        if layer == 0: a.e('s_waitcnt lgkmcnt(0)')
        srd(a, SRD_B, P_WQKV, 0, 1024 * 3072 * 2)
        pre_w(a, 16, 3, 2, ST1, 0, 64 * 6144, gw)
        def xaddr(v, comp):
            a.e('v_lshrrev_b32 v2, 3, v0', f'v_add_u32 v2, s{S_T0}, v2', 'v_bfe_u32 v3, v2, 1, 3', 'v_and_b32 v4, 7, v0', 'v_xor_b32 v3, v3, v4', 'v_lshlrev_b32 v3, 4, v3',
                f'v_add_u32 v2, s{S_T1}, v2', 'v_max_i32 v2, 0, v2', 'v_lshlrev_b32 v2, 11, v2', f'v_add_u32 v{v}, v2, v3')
            if comp: a.e(f'v_subrev_u32 v{v}, {comp}, v{v}')
        a.e(f's_lshl_b32 s{S_T1}, s{S_TI}, 7', f's_sub_u32 s{S_T1}, s{S_T1}, 16')
        for i in range(2):
            a.e(f's_lshl_b32 s{S_T0}, s{S_T2}, 5', f's_add_u32 s{S_T0}, s{S_T0}, {16+8*i}')
            xaddr(8 + i, 1024 * i)
            a.e(f'v_add_u32 v{10+i}, {16*2048-2048}, v{8+i}')
        a.e(f's_lshl_b32 s{S_T0}, s{S_T2}, 3'); xaddr(12, 0)
        a.e(f's_lshl_b32 s{S_G0}, s{S_T2}, 12', f's_add_u32 s{S_G0}, s{S_G0}, 2048', f's_lshl_b32 s{S_G0+1}, s{S_T2}, 10', f's_mov_b32 s{S_BA}, 0',
            f's_cmp_eq_u32 s{S_T2}, 0', 's_cselect_b32 s52, 0xffffff00, -1', 's_mov_b32 s53, -1')
        a.e('v_mov_b32 v20, 0x3f803f80', 'v_mov_b32 v21, v20', 'v_mov_b32 v22, v20', 'v_mov_b32 v23, v20', 'v_lshlrev_b32 v24, 4, v0', f'v_add_u32 v25, {2*ST1}, v24',
            's_mov_b64 exec, 0xff', 'ds_write_b128 v24, v[20:23]', f'ds_write_b128 v24, v[20:23] offset:{ST1}', 'ds_write_b128 v25, v[20:23]', 's_mov_b64 exec, -1')
        if layer == 0: srd(a, SRD_A, P_X, 0, XB)
        else: srd(a, SRD_A, P_WS, X2_OFF, XB)
        srd(a, SRD_D, P_WS, layer * LSTR + RS_OFF, 2048 * 8 if SINGLE and layer == 0 else 8 * 2048 * 8)
        a.e(f's_lshl_b32 s{S_T0}, s{S_T2}, 6', f'v_add_u32 v26, s{S_T0}, v0', 'v_min_u32 v26, 143, v26', f'v_add_u32 v27, s{S_T1}, v26', 'v_max_i32 v27, 0, v27',
            'v_lshlrev_b32 v27, 3, v27', 'v_lshlrev_b32 v26, 3, v26', f'v_add_u32 v26, {SL}, v26', 's_waitcnt lgkmcnt(0)')
    a.e('L_start:'); a.flush_hist()
    a.e(f's_sub_u32 s{S_LWV}, s{S_WAVE}, 4', 'v_and_b32 v134, 3, v0', 'v_lshlrev_b32 v134, 6, v134')
    k1_setup_l(0)
    a.e(f's_mov_b32 s{P_WL}, s{P_WS}', f's_mov_b32 s{P_WL+1}, s{P_WS+1}')
    a.e('L_top:'); a.flush_hist()
    flag_idx(a, 0, S_TI, 16, S_TJ)
    srd(a, SRD_E, P_W1, 0, 2048 * 3584 * 2)
    a.e(f's_lshl_b32 s54, s2, 2', f's_add_u32 s54, s54, s{S_LWV}', f's_mul_i32 s54, s54, {NPF*128}', f's_add_u32 s54, s54, {W1_K0}')
    gl = f'global_load_dword v29, v134, s[{P_DB}:{P_DB+1}] {SC}'
    def h_gate(n):
        if SINGLE: a.e(gl)
    def h_fetch(n):
        l = lab('st')
        if SINGLE:
            a.e(f's_cmp_lg_u32 s{S_VAR}, 0', f's_cbranch_scc1 {l}g', f's_waitcnt vmcnt({n})', 's_mov_b32 s61, 0')
            a.loop([f'{l}p:', 'v_cmp_gt_u32 vcc, 64, v29', 's_add_u32 s61, s61, 1', f's_cmp_gt_u32 s61, {SPIN}', f's_cbranch_scc1 {l}g', f's_cbranch_vccz {l}g', gl, 's_waitcnt vmcnt(0)', f's_branch {l}p'])
            a.e(f'{l}g:')
        for p in range(8):
            if p: a.e(f's_mov_b32 s{S_T0}, {p*16384}')
            a.e(f'buffer_load_dwordx2 {vr(30+2*p,2)}, v27, {S4(SRD_D)}, {"0" if p == 0 else f"s{S_T0}"} offen {LDF}')
    def h_fin(n):
        a.e(f's_waitcnt vmcnt({n})', 'v_pk_add_f32 v[30:31], v[30:31], v[32:33]', 'v_pk_add_f32 v[34:35], v[34:35], v[36:37]', 'v_pk_add_f32 v[38:39], v[38:39], v[40:41]',
            'v_pk_add_f32 v[42:43], v[42:43], v[44:45]', 'v_pk_add_f32 v[30:31], v[30:31], v[34:35]', 'v_pk_add_f32 v[38:39], v[38:39], v[42:43]',
            'v_pk_add_f32 v[30:31], v[30:31], v[38:39]')
        stats_finish(a, 30, 31, 32, False)
        a.e('ds_write_b64 v26, v[30:31]')
    HK = (h_gate, h_fetch, h_fin)
    a.e(f's_cmp_ge_u32 s{S_LWV}, 2', 's_cbranch_scc1 L_k1B')
    l_loop(a, 16, 3, 2, ST1, 0, 128, 64 * 6144, [gh, gx], gw, tail=1, hooks=HK)
    a.e('s_branch L_k1t', 'L_k1B:'); a.flush_hist()
    l_loop(a, 16, 3, 2, ST1, 0, 128, 64 * 6144, [gx], gw, tail=1, hooks=HK)
    a.e('L_k1t:'); a.flush_hist()
    a.e(f's_mov_b32 s{S_T2}, s{S_LWV}')
    dma_w128(a, [130, 131], 2048, swz128(a), 16, 2, 3, 4)
    srd(a, SRD_B, P_WO, 0, 1024 * 1024 * 2)
    a.e(*INITK, f's_lshl_b32 s{S_G0+8}, s{S_LWV}, 11')
    def wo(t0, t1):
        for t in range(t0, t1):
            a.e(*next_k(16), f's_lshl_b32 s{S_OB}, s{S_K}, 17', f's_add_u32 s{S_OB}, s{S_OB}, s{S_BB}', f's_add_u32 m0, s{S_G0+8}, {WO_SLOTS[t]}',
                f'buffer_load_dwordx4 v130, {S4(SRD_B)}, s{S_OB} offen lds', f'buffer_load_dwordx4 v131, {S4(SRD_B)}, s{S_OB} offen offset:1024 lds')
    wo(0, 4)
    def pf3(j):
        if PF3 > j: a.e(f's_add_u32 s{S_T0}, s54, {j*8*MB}', f'buffer_load_dword v223, v132, {S4(SRD_E)}, s{S_T0} offen')
    if PF3:
        a.e(f's_cmp_eq_u32 s{S_VAR}, 0', f's_cselect_b32 s{SRD_E+2}, s{SRD_E+2}, 0', 's_lshl_b32 s54, s2, 2', f's_add_u32 s54, s54, s{S_LWV}', 's_lshl_b32 s54, s54, 13',
            f's_add_u32 s54, s54, {W1_K0}', 'v_lshlrev_b32 v132, 7, v0')
    pf3(0)
    x = 1 if PF3 else 0
    if PFT:
        srd(a, SRD_C, P_W2, 0, 3584 * 2048 * 2)
        a.e(f's_cmp_eq_u32 s{S_VAR}, 0', f's_cselect_b32 s{SRD_E+2}, s{SRD_E+2}, 0', f's_cselect_b32 s{SRD_C+2}, s{SRD_C+2}, 0',
            's_lshr_b32 s54, s2, 3', 's_lshl_b32 s54, s54, 2', f's_add_u32 s54, s54, s{S_LWV}', 's_lshl_b32 s54, s54, 18', 'v_lshlrev_b32 v132, 12, v0', 'v_add_u32 v132, s54, v132',
            f'v_subrev_u32 v133, {16*MB}, v132', f'buffer_load_dword v223, v132, {S4(SRD_E)}, 0 offen', f'buffer_load_dword v222, v133, {S4(SRD_C)}, 0 offen')
        x += 2
    a.e(f's_waitcnt vmcnt({8+x})', 's_barrier')
    wo(4, 7)
    lane_fields(a)
    a.e('s_waitcnt lgkmcnt(0)', 's_barrier')
    pf3(1)
    wo(7, 12)
    a.e('s_branch attn')
    a.e('L_k1done:'); a.flush_hist()
    a.e('s_waitcnt vmcnt(0)', 's_barrier')
    publish(a, 2)
    wo(12, 16)
    flag_idx(a, 1, S_TJ, 16, S_TI)
    a.e('s_waitcnt vmcnt(0)', 's_barrier')
    g4 = [dict(sg=S_G0 + 1, dmas=[(9, 0, 'B', None), (10, 1024, 'B', None)])]
    def k4_setup_l():
        tiles(a, 8, 2)
        a.e(f's_mov_b32 s{S_T2}, s{S_LWV}', f's_lshl_b32 s{S_G0+1}, s{S_T2}, 11')
        dma_w128(a, [9, 10], 4096, swz128(a), 16, 2, 3, 4)
        a.e(f's_lshl_b32 s{S_BB}, s{S_TJ}, 7')
        srd(a, SRD_B, P_W2, 0, 3584 * 2048 * 2)
    a.e('s_cmp_ge_u32 s2, 224', 's_cbranch_scc1 L_k3skip')
    tiles(a, 7, 2)
    a.e(f's_lshl_b32 s{S_G0}, s{S_LWV}, 12', f's_add_u32 s{S_G0+1}, s{S_G0}, 16384', 'v_lshlrev_b32 v8, 4, v0', f'v_add_u32 v13, {65536-2048}, v8',
        'v_lshrrev_b32 v2, 4, v0', 'v_lshlrev_b32 v3, 1, v2', 'v_and_b32 v4, 15, v0', 'v_xor_b32 v3, v3, v4', 'v_lshlrev_b32 v3, 4, v3',
        f's_lshl_b32 s{S_T0}, s{S_LWV}, 4', f'v_add_u32 v2, s{S_T0}, v2', f's_mov_b32 s{S_T0}, 7168', f'v_mul_lo_u32 v2, v2, s{S_T0}',
        'v_add_u32 v9, v2, v3', 'v_xor_b32 v3, 128, v3', 'v_add_u32 v11, v2, v3',
        f'v_add_u32 v10, {4*7168-1024}, v9', f'v_add_u32 v12, {3*(4*7168-1024)}, v11', f'v_add_u32 v11, {2*(4*7168-1024)}, v11',
        f's_lshl_b32 s{S_BA}, s{S_TI}, 2', f's_add_u32 s{S_BA}, s{S_BA}, s{S_LWV}', f's_lshl_b32 s{S_BA}, s{S_BA}, 17', f's_lshl_b32 s{S_BB}, s{S_TJ}, 8')
    srd(a, SRD_A, P_WL, H_OFF, XB)
    srd(a, SRD_B, P_W1, 0, 2048 * 3584 * 2)
    g3a = [dict(sg=S_G0, dmas=[(8 if i < 2 else 13, 1024 * i, 'A', None) for i in range(4)])]
    g3w = [dict(sg=S_G0 + 1, dmas=[(9 + i, 1024 * i, 'B', None) for i in range(4)])]
    poll_setup(a, SRD_C, 14, 1, 0, [f's_lshl_b32 s{S_T0}, s{S_TI}, 5'], 32)
    a.e('s_barrier')
    if not LATEW: pre_w(a, 32, 5, 3, 32768, 0, 64 * 7168, g3w)
    a.e('s_barrier')
    publish(a, 2)
    if LATEW: pre_w(a, 32, 5, 3, 32768, 0, 64 * 7168, g3w)
    flag_idx(a, 2, S_TI, 32, S_TJ)
    poll(a, SRD_C, 14, 15)
    l_loop(a, 32, 5, 3, 32768, 0, 2048, 64 * 7168, g3a, g3w)
    k4_setup_l()
    a.e('s_branch L_k4', 'L_k3skip:'); a.flush_hist()
    k4_setup_l()
    a.e('s_barrier')
    a.e('L_k4:'); a.flush_hist()
    pre_w(a, 56, K4_NS, K4_AH, 8192, K4_BASE, 64 * 4096, g4)
    a.e('s_barrier')
    publish(a, 2)
    flag_idx(a, 3, S_TJ, 8, S_TI)
    l_loop(a, 56, K4_NS, K4_AH, 8192, K4_BASE, 0, 64 * 4096, [], g4)
    a.e(f's_cmp_lg_u32 s{S_VAR}, 0', 's_cbranch_scc1 L_end')
    k1_setup_l(1)
    poll_setup(a, SRD_C, 28, 3, 0, [f's_lshl_b32 s{S_T0}, s{S_TI}, 4', f's_sub_u32 s{S_T0}, s{S_T0}, 8'], 24)
    a.e('s_barrier', 's_barrier')
    publish(a, 2)
    poll(a, SRD_C, 28, 29)
    a.e(f's_mov_b32 s{S_VAR}, 1', f's_add_u32 s{P_WL}, s{P_WS}, {LSTR}', f's_addc_u32 s{P_WL+1}, s{P_WS+1}, 0', 's_branch L_top')
    a.e('L_end:', f'{kn}_end:', 's_endpgm')

def dump(a):
    if not PROF: return
    a.e('s_waitcnt vmcnt(0)', *stamp(14), f's_cmp_lg_u32 s{S_WAVE}, 0', 's_cbranch_scc1 nodump', 's_lshl_b32 s58, s2, 8', f's_add_u32 s58, s58, {PR_OFF}',
        'v_lshlrev_b32 v251, 2, v0', 'v_add_u32 v251, s58, v251', f'global_store_dword v251, v{PV}, s[{P_WS}:{P_WS+1}]', 'nodump:')

def gen_k0(a):
    a.e('.p2align 8', 'k0_kernel:', 's_cmp_ge_u32 s2, 256', 's_cbranch_scc1 k0_end',
        's_load_dwordx16 s[64:79], s[0:1], 0', 's_load_dwordx2 s[84:85], s[0:1], 80',
        'v_lshrrev_b32 v1, 6, v0', 'v_lshlrev_b32 v20, 4, v0', 'v_and_b32 v0, 63, v0', f'v_readfirstlane_b32 s{S_WAVE}, v1',
        's_lshl_b32 s30, s2, 3', f's_add_u32 s30, s30, s{S_WAVE}',
        's_lshl_b32 s31, s30, 11', 'v_lshlrev_b32 v2, 5, v0',
        's_lshl_b32 s32, s2, 2', f's_and_b32 s33, s{S_WAVE}, 3', 's_add_u32 s32, s32, s33', 's_lshl_b32 s32, s32, 13', 'v_lshlrev_b32 v3, 7, v0', 'v_add_u32 v3, s32, v3',
        f'v_subrev_u32 v4, {1024*3072*2}, v3', 's_waitcnt lgkmcnt(0)')
    srd(a, SRD_A, P_X, 0, XB)
    a.e(f'buffer_load_dwordx4 v[8:11], v2, {S4(SRD_A)}, s31 offen', f'buffer_load_dwordx4 v[12:15], v2, {S4(SRD_A)}, s31 offen offset:16')
    KW = int(env('K0WARM', '1'))
    srd(a, SRD_B, P_WQKV, 0, 1024 * 3072 * 2 * KW)
    srd(a, SRD_C, P_WO, 0, 1024 * 1024 * 2 * KW)
    srd(a, SRD_E, P_W1, 0, W1_K0)
    a.e(f's_sub_u32 s33, s{S_WAVE}, 4', 's_lshl_b32 s33, s33, 8', 's_add_u32 s33, s33, s2', 's_lshl_b32 s33, s33, 13', 'v_lshlrev_b32 v7, 7, v0',
        f's_cmp_ge_u32 s{S_WAVE}, 4', 's_cbranch_scc1 k0_nw', f'buffer_load_dword v5, v3, {S4(SRD_B)}, 0 offen', f'buffer_load_dword v6, v4, {S4(SRD_C)}, 0 offen', 's_branch k0_nx',
        'k0_nw:', f'buffer_load_dword v5, v7, {S4(SRD_E)}, s33 offen', 'k0_nx:')
    if CODEPF:
        a.e(f's_cmp_lg_u32 s{S_WAVE}, 7', 's_cbranch_scc1 k0_nc', 's_getpc_b64 s[40:41]', 'k0_pc:', 's_add_u32 s40, s40, mega_kernel-k0_pc', 's_addc_u32 s41, s41, 0',
            's_lshr_b32 s42, s2, 3', 's_lshl_b32 s42, s42, 11', 'v_and_b32 v25, 15, v0', 'v_lshlrev_b32 v25, 7, v25', 'v_add_u32 v25, s42, v25',
            'v_min_u32 v25, mega_end-mega_kernel, v25', 'global_load_dword v26, v25, s[40:41]', 'k0_nc:')
    srd(a, SRD_D, P_WS, 0, 64 * MB)
    a.e(f's_cmp_eq_u32 s{S_WAVE}, 0', 's_cselect_b32 s33, 0, -1', 'v_mov_b32 v16, s33', 'v_mov_b32 v17, s33', 'v_mov_b32 v18, s33', 'v_mov_b32 v19, s33',
        f's_mov_b32 s34, {ST_OFF}', f's_cselect_b32 s34, {FL_OFF}, s34', f's_cmp_eq_u32 s{S_WAVE}, 2', f's_cselect_b32 s34, {LSTR + ST_OFF}, s34', 's_lshl_b32 s35, s2, 10', 's_add_u32 s34, s34, s35',
        'v_lshlrev_b32 v20, 4, v0', f's_cmp_ge_u32 s{S_WAVE}, 3', 's_cbranch_scc1 k0_nr', f'buffer_store_dwordx4 v[16:19], v20, {S4(SRD_D)}, s34 offen', 'k0_nr:')
    a.e('v_mov_b32 v22, 0', 'v_mov_b32 v23, 0', 'v_mov_b32 v21, 0x3f803f80', 'v_lshrrev_b32 v24, 3, v0', 'v_lshlrev_b32 v24, 14, v24', 's_lshl_b32 s36, s30, 3', f's_add_u32 s36, s36, {RS_OFF}',
        's_waitcnt vmcnt(0)')
    for e in range(8): a.e(f'v_dot2c_f32_bf16 v22, v21, v{8+e}', f'v_dot2c_f32_bf16 v23, v{8+e}, v{8+e}')
    for ctl in ('quad_perm:[1,0,3,2]', 'quad_perm:[2,3,0,1]', 'row_half_mirror'):
        a.e(f'v_add_f32_dpp v22, v22, v22 {ctl} row_mask:0xf bank_mask:0xf', f'v_add_f32_dpp v23, v23, v23 {ctl} row_mask:0xf bank_mask:0xf')
    a.e('s_mov_b32 exec_lo, 0x01010101', 's_mov_b32 exec_hi, 0x01010101', f'buffer_store_dwordx2 v[22:23], v24, {S4(SRD_D)}, s36 offen', 'k0_end:', 's_endpgm')

def main(out):
    a = Asm()
    if not SINGLE: gen_k0(a); a.flush_hist()
    gen_mega(a)
    info = {} if SINGLE else {'k0_kernel': (32, 0)}
    info[MEGA] = (256 if PROF else 224, 163840)
    ref = open(os.path.join(os.path.dirname(os.path.abspath(__file__)), '..', NAME + '.s.ref')).read().splitlines()
    hdr = [l for l in ref if l.startswith(';') and '@launch' not in l and 'Override launch' not in l and 'grid=ceil' not in l]
    if SINGLE: hdr += ['; @launch grid=(256,1,1) block=(512,1,1) lds=163840']
    else: hdr += [f'; @launch kernel={n} grid=(256,1,1) block=(512,1,1) lds={v[1]}' for n, v in info.items()]
    s = '\n'.join(hdr) + '\n; generated by gen/gen2.py\n.amdgcn_target "amdgcn-amd-amdhsa--gfx950"\n.text\n'
    if SINGLE: s += f'.globl {MEGA}\n.type {MEGA},@function\n'
    s += a.text() + '.section .rodata,"a"\n'
    for n, (vg, _) in info.items():
        s += f'''.p2align 6
.amdhsa_kernel {n}
  .amdhsa_next_free_vgpr {vg}
  .amdhsa_next_free_sgpr 102
  .amdhsa_accum_offset {vg}
  .amdhsa_group_segment_fixed_size 0
  .amdhsa_kernarg_size 88
  .amdhsa_user_sgpr_count 2
  .amdhsa_user_sgpr_kernarg_segment_ptr 1
  .amdhsa_system_sgpr_workgroup_id_x 1
.end_amdhsa_kernel
'''
    open(out, 'w').write(s)

if __name__ == '__main__':
    main(sys.argv[1])
```

```python
import sys, os, struct
sys.path.insert(0, os.path.dirname(os.path.abspath(__file__)))
from asmlib import *
import gen as G
from gen import (NAME, MB, XB, UB, f32, env, S4, srd, next_k, adv_s, sched, bundle, spread, lane_fields, tr128_addr, swz128, unpack4,
                 dma_w128, stats_finish, MF16, S_VAR, S_WAVE, S_LI, S_LJ, S_PHI, SRD_A, SRD_B, SRD_C, SRD_D, SRD_E, S_TI, S_TJ,
                 S_P, S_W, S_T0, S_K, S_BA, S_BB, S_OA, S_OB, S_LW, S_CNT, S_T1, S_T2, S_DELTA, S_CUR, S_G0,
                 P_X, P_WQKV, P_WO, P_W1, P_B1, P_W2, P_B2, P_OUT, P_WS)

LSTR = 32 * MB
O_OFF, X1_OFF, H_OFF, U_OFF, ST_OFF, RS_OFF = 0, 4 * MB, 8 * MB, 12 * MB, 20 * MB, 21 * MB
X2_OFF, FL_OFF, PR_OFF = 24 * MB, 28 * MB, 64 * MB
P_WL = 82
S_LWV, S_FLG = 57, 56
SC = 'sc0 sc1'
LDF = env('LDF', 'sc1')
PROF = env('PROF') == '1'
PV = 255
SINGLE = env('SINGLE', '1') == '1'
MEGA = NAME + '_kernel' if SINGLE else 'mega_kernel'
P_DB = 62
SPIN = 100000

def stamp(k):
    if not PROF: return []
    return ['s_memrealtime s[58:59]', 's_memtime s[100:101]', 's_waitcnt lgkmcnt(0)', f's_lshl_b32 s60, s{S_VAR}, 4', f's_add_u32 m0, s60, {k+1}', 's_nop 0', f'v_writelane_b32 v{PV}, s58, m0',
            's_add_u32 m0, m0, 32', 's_nop 0', f'v_writelane_b32 v{PV}, s100, m0']
G.stamp = lambda idx=None: []
G.cstamp = lambda idx: []

def tiles(a, LN, xshift):
    a.e(f's_lshr_b32 s{S_T0}, s2, 3')
    if LN == 8: a.e(f's_lshr_b32 s{S_LI}, s{S_T0}, 3', f's_and_b32 s{S_LJ}, s{S_T0}, 7')
    else: a.e(f's_mul_i32 s{S_LI}, s{S_T0}, {65536 // LN + 1}', f's_lshr_b32 s{S_LI}, s{S_LI}, 16', f's_mul_i32 s{S_LJ}, s{S_LI}, {LN}', f's_sub_u32 s{S_LJ}, s{S_T0}, s{S_LJ}')
    a.e(f's_lshl_b32 s{S_PHI}, s{S_LI}, 1', f's_add_u32 s{S_PHI}, s{S_PHI}, s{S_LJ}', f's_and_b32 s{S_PHI}, s{S_PHI}, 7',
        f's_and_b32 s{S_T0}, s2, 7', f's_lshr_b32 s{S_TI}, s{S_T0}, {xshift}', f's_lshl_b32 s{S_TI}, s{S_TI}, 2', f's_add_u32 s{S_TI}, s{S_TI}, s{S_LI}',
        f's_and_b32 s{S_TJ}, s{S_T0}, {(1 << xshift) - 1}', f's_mul_i32 s{S_TJ}, s{S_TJ}, {LN}', f's_add_u32 s{S_TJ}, s{S_TJ}, s{S_LJ}', *INITK)
INITK = [f's_mov_b32 s{S_P}, 7', f's_mov_b32 s{S_W}, -1']

def flag_idx(a, ph, hi, mul, lo):
    a.e(f's_lshl_b32 s{S_FLG}, s{S_VAR}, 10', f's_mul_i32 s{S_T0}, s{hi}, {mul}', f's_add_u32 s{S_FLG}, s{S_FLG}, s{S_T0}', f's_add_u32 s{S_FLG}, s{S_FLG}, s{lo}',
        f's_add_u32 s{S_FLG}, s{S_FLG}, {ph*256}', f's_lshl_b32 s{S_FLG}, s{S_FLG}, 7')

_n = [0]
def lab(p): _n[0] += 1; return f'{p}{_n[0]}'

def publish_pre(a):
    srd(a, SRD_E, P_WS, FL_OFF, 8 * 256 * 128)
    a.e('v_mov_b32 v136, 0', 'v_mov_b32 v137, 1', f's_cmp_eq_u32 s{S_LWV}, 0', f's_cselect_b32 s{SRD_E+2}, s{SRD_E+2}, 0')

def publish(a, vt=None):
    a.e('s_mov_b64 exec, 1', f'buffer_store_dword v137, v136, {S4(SRD_E)}, s{S_FLG} offen {SC}', 's_mov_b64 exec, -1')

def poll_setup(a, sr_, va, ph, dl, base_lines, n):
    srd(a, sr_, P_WS, FL_OFF, 8 * 256 * 128)
    a.e(*base_lines, f'v_min_u32 v{va}, {n-1}, v0', f'v_add_u32 v{va}, s{S_T0}, v{va}', f'v_max_i32 v{va}, 0, v{va}', f'v_lshlrev_b32 v{va}, 7, v{va}',
        f's_lshl_b32 s55, s{S_VAR}, 17', f's_add_u32 s55, s55, {(dl * 4 + ph) * 32768}')

def poll(a, sr_, va, vt):
    l = lab('poll')
    a.e(f's_mov_b32 s{S_CNT}, 0')
    a.loop([f'{l}:', f'buffer_load_dword v{vt}, v{va}, {S4(sr_)}, s55 offen {SC}', 's_waitcnt vmcnt(0)', f'v_cmp_eq_u32 vcc, 0, v{vt}',
            f's_add_u32 s{S_CNT}, s{S_CNT}, 1', f's_cmp_gt_u32 s{S_CNT}, {SPIN}', f's_cbranch_scc1 {l}d', f's_cbranch_vccnz {l}'])
    a.e(f'{l}d:')

def dma_groups(groups, lw_s):
    L = []
    for g in groups:
        L.append(f's_add_u32 m0, s{lw_s}, s{g["sg"]}')
        for (v, imm, st, ex) in g['dmas']:
            srdn, so, fl = (SRD_A, S_OA, LDF) if st == 'A' else (SRD_B, S_OB, '')
            if ex: L.append(f's_mov_b64 exec, {ex}')
            L.append(f'buffer_load_dwordx4 v{v}, {S4(srdn)}, s{so} offen offset:{imm} {fl} lds')
            if ex: L.append('s_mov_b64 exec, -1')
    return L

def issue(NK, NS, stage, base, stepA, stepB, gA, gW):
    L = next_k(NK)
    if gA: L += [f's_mul_i32 s{S_OA}, s{S_K}, {stepA}', f's_add_u32 s{S_OA}, s{S_OA}, s{S_BA}']
    if gW: L += [f's_mul_i32 s{S_OB}, s{S_K}, {stepB}', f's_add_u32 s{S_OB}, s{S_OB}, s{S_BB}']
    L += dma_groups(gA + gW, S_LW)
    L += [f's_add_u32 s{S_LW}, s{S_LW}, {stage}', f's_cmp_eq_u32 s{S_LW}, {base + NS*stage}', f's_cselect_b32 s{S_LW}, {base}, s{S_LW}']
    return L

def pre_w(a, NK, NS, AH, stage, base, stepB, gW):
    a.e(*INITK, f's_mov_b32 s{S_LW}, {base}')
    for s in range(AH): a.e(*issue(NK, NS, stage, base, 0, stepB, [], gW))

def l_loop(a, NK, NS, AH, stage, base, stepA, stepB, gA, gW, tail=0, hooks=()):
    nA = sum(len(g['dmas']) for g in gA); n = nA + sum(len(g['dmas']) for g in gW)
    iss = lambda: issue(NK, NS, stage, base, stepA, stepB, gA, gW)
    t0 = 0
    if gA:
        a.e(*INITK, f's_mov_b32 s{S_LW}, {base}')
        for s in range(AH): a.e(*issue(NK, NS, stage, base, stepA, stepB, gA, []))
        for t in range(AH - 1):
            a.e(f's_waitcnt vmcnt({(AH - 1 - t) * nA + t * n})', 's_barrier', *iss())
        t0 = AH - 1
    l = lab('ll')
    a.e(f's_mov_b32 s{S_CNT}, {NK - AH - t0 - len(hooks)}')
    a.loop([f'{l}:', f's_waitcnt vmcnt({(AH-1)*n})', 's_barrier'] + iss() + [f's_sub_u32 s{S_CNT}, s{S_CNT}, 1', f's_cmp_lg_u32 s{S_CNT}, 0', f's_cbranch_scc1 {l}'])
    for h in hooks:
        a.e(f's_waitcnt vmcnt({(AH-1)*n})', 's_barrier', *iss()); h(n)
    for j in range(AH - tail):
        a.e(f's_waitcnt vmcnt({(AH-1-j)*n + (8 if hooks else 0)})', 's_barrier')

def c_loop(a, NK, NS, stage, reads, mfmas, addr_regs, late, st0, peel=None, extra0=(), fin=None):
    adv = adv_s(NS, stage)
    advv = [f'v_add_u32 v{r}, s{S_DELTA}, v{r}' for r in addr_regs]
    a.e(f's_mov_b32 s{S_CUR}, 0', f's_mov_b32 s{S_CNT}, {NK - 1 - (1 if peel else 0)}', 's_barrier', *stamp(st0))
    a.e(*reads[0]); a.e(*adv)
    q0 = [Ins(x).wr for x in reads[0]]
    def it(pre=(), post=()):
        q = list(q0)
        L = sched(mfmas[0], bundle(reads[1], advv), q, 1)
        if not late: L.append('s_waitcnt lgkmcnt(0)'); q.clear()
        L += list(pre) + ['s_barrier'] + list(post) + sched(mfmas[1], spread(reads[0], adv), q, 1)
        assert q == q0
        return L
    if peel: a.e(*it(*peel))
    l = lab('cl')
    a.loop([f'{l}:'] + it() + [f's_sub_u32 s{S_CNT}, s{S_CNT}, 1', f's_cmp_lg_u32 s{S_CNT}, 0', f's_cbranch_scc1 {l}'])
    q = list(q0)
    a.e(*sched(mfmas[0], reads[1] + list(extra0), q, 1))
    if fin: a.e('s_waitcnt lgkmcnt(0)', *stamp(st0 + 1)); fin(mfmas[1])
    else: a.e(*sched(mfmas[1], [], q)); a.e('s_waitcnt lgkmcnt(0)', *stamp(st0 + 1))

S_LM, S_B0, S_B1 = 48, 49, 50
def c_direct(a, NK, NS, stage, reads, mf, addr_regs, DR, D, vaddr, init, st0, slots=None):
    R = NK // 8
    advv = lambda src: [f'v_add_u32 v{r}, {src}, v{r}' for r in addr_regs]
    def nk(t):
        p = t % 8
        L = []
        if p == 0 and t != 0: L += [f's_mov_b32 s{S_B0}, s{S_B1}', f's_add_u32 s{S_B1}, s{S_B1}, 32768', f's_cmp_eq_u32 s{S_B1}, s{S_T2}', f's_cselect_b32 s{S_B1}, s{S_BA}, s{S_B1}']
        return L + [f's_bitcmp1_b32 s{S_LM}, {p}', f's_cselect_b32 s{S_OA}, s{S_B1}, s{S_B0}', f's_add_u32 s{S_OA}, s{S_OA}, {p*4096}']
    ld = lambda slot, i: f'buffer_load_dwordx4 {vr(DR+16*slot+4*i,4)}, v{vaddr}, {S4(SRD_A)}, s{S_OA} offen offset:{1024*i} {LDF}'
    adv = [] if slots else adv_s(NS, stage)
    vq = []
    for sl in range(D):
        a.e(*nk(sl))
        for i in range(4 if sl < D - 1 else 2):
            a.e(ld(sl, i)); vq.append(Ins(ld(sl, i)).wr)
        if sl == 1: init(8)
    a.e(f's_mov_b32 s{S_CUR}, 0', f's_mov_b32 s{S_CNT}, {R - 1}', 's_barrier', *stamp(st0))
    a.e(*reads[0]); a.e(*adv)
    q0 = [Ins(x).wr for x in reads[0]]
    def mix(items, loads, pos):
        items = [list(x) for x in items]
        for l, p in zip(loads, pos): items[p] = items[p] + [l]
        return items
    def step(t, vq, generic):
        slot = t % D
        q = list(q0)
        final = not generic and t == NK - 1
        l0 = [ld((slot - 1) % D, 2), ld((slot - 1) % D, 3)] if generic or t - 1 + D < NK else []
        av = [] if final else advv(f's{S_DELTA}' if not slots else (slots[t + 1] - slots[t]) & 0xffffffff)
        L = sched(mf(0, DR + 16 * slot), mix(bundle(reads[1], av), l0, (2, 6)), q, 1, vq=vq)
        if final: return L + sched(mf(1, DR + 16 * slot + 8), [], q, 1, vq=vq)
        more = generic or t + D < NK
        it = [[r] for r in reads[0]]
        sc = (nk(t + D) if more else []) + adv
        for i, x in enumerate(sc): it[min(i // 2, len(it) - 1)].append(x)
        l1 = [ld(slot, 0), ld(slot, 1)] if more else []
        return L + ([] if slots else ['s_barrier']) + sched(mf(1, DR + 16 * slot + 8), mix(it, l1, (4, 7)), q, 1, vq=vq)
    if slots:
        for t in range(NK): a.e(*step(t, vq, False))
    else:
        v1 = list(vq); l = lab('cd')
        body = [f'{l}:']
        for t in range(8, 16): body += step(t, v1, True)
        assert v1 == vq
        a.loop(body + [f's_sub_u32 s{S_CNT}, s{S_CNT}, 1', f's_cmp_lg_u32 s{S_CNT}, 0', f's_cbranch_scc1 {l}'])
        for t in range(NK - 8, NK): a.e(*step(t, vq, False))
    a.e('s_waitcnt lgkmcnt(0)', *stamp(st0 + 1))

def direct_setup(a, NK):
    a.e(f's_lshl_b32 s{S_LM}, 0x303, s{S_PHI}', f's_lshr_b32 s{S_LM}, s{S_LM}, 8', f's_mov_b32 s{S_B0}, s{S_BA}', f's_add_u32 s{S_B1}, s{S_BA}, 32768',
        f's_add_u32 s{S_T2}, s{S_BA}, {NK*4096}')

def w_reads(regs):
    return [[f'ds_read_b64_tr_b16 {vr(16+16*h+4*n+2*q,2)}, v{regs[n]} offset:{h*4096+q*512}' for n in range(4) for q in range(2)] for h in range(2)]

def sel(a, d, ptr0, off0, ptr1, off1, nbytes): G.srd_sel(a, d, ptr0, off0, ptr1, off1, nbytes)

XT = 18432; ST1 = XT + 24576; SL = 3 * ST1; QKV = ST1; PITCH = 400; PB = 72 * PITCH
WO_SLOTS = [131072 + 8192 * i for i in range(4)] + [100608 + 8192 * i for i in range(3)] + [8192 * i for i in range(5)] + [QKV + 8192 * i for i in range(4)]
K4_BASE, K4_NS, K4_AH = 98304, 8, 6
K4_SCR = 90112
D = 4; DR = 120
PF1 = int(env('PF1', '0'), 0); CPRIO = int(env('CPRIO', '0'))
NPF = int(env('NPF', '0')); K0W = int(env('K0W', '0')); W1_K0 = K0W * 256 * 64 * 128
WARM0 = int(env('WARM0', '1')); PFT = int(env('PFT', '0')); PF3 = int(env('PF3', '0')); CODEPF = env('CODEPF', '0') == '1'; PF2 = env('PF2', '1') == '1'; LATEW = env('LATEW', '1') == '1'

def gen_mega(a):
    kn = 'mega'
    a.e('.p2align 8', f'{MEGA}:', 's_cmp_ge_u32 s2, 256', f's_cbranch_scc1 {kn}_end',
        's_load_dwordx16 s[64:79], s[0:1], 0', 's_load_dwordx2 s[80:81], s[0:1], 64', 's_load_dwordx2 s[84:85], s[0:1], 80', f's_load_dwordx2 s[{P_DB}:{P_DB+1}], s[0:1], 72',
        'v_lshrrev_b32 v1, 6, v0', 'v_and_b32 v0, 63, v0', f'v_readfirstlane_b32 s{S_WAVE}, v1', f's_mov_b32 s{S_VAR}, 0')
    if PROF: a.e(f'v_mov_b32 v{PV}, 0', *stamp(-1))
    a.e('v_mov_b32 v130, 0', 'v_mov_b32 v131, 0', 'v_mov_b32 v220, 0', 'v_mov_b32 v134, 0', f's_cmp_ge_u32 s{S_WAVE}, 4', f's_cbranch_scc1 L_start')

    ACC1 = 112
    def acc1(m, rt): return ACC1 + 36 * m + 4 * rt
    def k1_setup_c():
        tiles(a, 8, 1)
        lane_fields(a)
        tr128_addr(a, [8], XT, 21, 22)
        a.e(f's_lshl_b32 s{S_T0}, s{S_WAVE}, 5', f'v_xor_b32 v8, s{S_T0}, v8',
            'v_lshrrev_b32 v21, 1, v4', 'v_xor_b32 v21, v21, v5', 'v_lshlrev_b32 v21, 4, v21', 'v_lshlrev_b32 v22, 7, v4', 'v_add_u32 v9, v21, v22', 'v_xor_b32 v10, 64, v9',
            'v_and_b32 v21, 1, v4', f'v_mul_u32_u24 v21, {PB}, v21', 'v_lshrrev_b32 v22, 1, v4', f'v_mul_u32_u24 v22, {PITCH}, v22',
            'v_lshlrev_b32 v23, 3, v5', 'v_add3_u32 v11, v21, v22, v23', f's_add_u32 s{S_T0}, s{S_T0}, {QKV}',
            f'v_add_u32 v11, s{S_T0}, v11', 'v_lshlrev_b32 v12, 3, v4', f'v_add_u32 v12, {SL}, v12')
        for r in range(ACC1, ACC1 + 108, 2): a.e(f'v_mov_b64 {vr(r,2)}, 0')
    if CPRIO: a.e(f's_setprio {CPRIO}')
    if SINGLE:
        a.e(f's_lshl_b32 s{S_T0}, s2, 3', f's_lshl_b32 s{S_T1}, s{S_WAVE}, 1', f's_add_u32 s{S_T0}, s{S_T0}, s{S_T1}',
            'v_lshrrev_b32 v16, 5, v0', f'v_add_u32 v16, s{S_T0}, v16', 'v_lshlrev_b32 v17, 11, v16', 'v_and_b32 v18, 31, v0', 'v_lshl_add_u32 v17, v18, 4, v17',
            'v_lshlrev_b32 v16, 3, v16', f'v_add_u32 v16, {RS_OFF}, v16',
            f's_cmp_eq_u32 s{S_WAVE}, 0', 's_cselect_b32 s44, 0, -1', 'v_mov_b32 v24, s44', 'v_mov_b32 v25, s44', 'v_mov_b32 v26, s44', 'v_mov_b32 v27, s44',
            'v_lshrrev_b32 v19, 3, v0', 'v_lshlrev_b32 v19, 15, v19', 'v_and_b32 v20, 7, v0', 'v_lshl_add_u32 v19, v20, 4, v19', 'v_lshlrev_b32 v20, 4, v0',
            's_cselect_b64 vcc, -1, 0', 's_lshl_b32 s45, s2, 7', f's_add_u32 s45, s45, {FL_OFF}', 's_lshl_b32 s46, s2, 10', f's_add_u32 s46, s46, {ST_OFF}',
            f's_cmp_eq_u32 s{S_WAVE}, 0', 's_cselect_b32 s45, s45, s46', f's_add_u32 s46, s46, {LSTR}', f's_cmp_eq_u32 s{S_WAVE}, 2', 's_cselect_b32 s45, s46, s45',
            'v_cndmask_b32 v19, v20, v19, vcc', 's_waitcnt lgkmcnt(0)')
        srd(a, SRD_A, P_X, 0, XB)
        for c in range(4): a.e(f'buffer_load_dwordx4 {vr(32+4*c,4)}, v17, {S4(SRD_A)}, 0 offen offset:{512*c}')
        if WARM0:
            srd(a, SRD_D, P_WQKV, 0, 1024 * 3072 * 2)
            srd(a, SRD_E, P_WO, 0, 1024 * 1024 * 2)
            a.e(f's_lshl_b32 s47, s{S_WAVE}, 8', 's_add_u32 s47, s47, s2', 's_lshl_b32 s47, s47, 13', 'v_lshlrev_b32 v21, 7, v0', 'v_add_u32 v21, s47, v21', f'v_subrev_u32 v22, {1024*3072*2}, v21',
                f'buffer_load_dword v222, v21, {S4(SRD_D)}, 0 offen', f'buffer_load_dword v223, v22, {S4(SRD_E)}, 0 offen')
        srd(a, SRD_C, P_WS, 0, 64 * MB)
        srd(a, SRD_B, P_WS, 0, 0)
        a.e(f's_cmp_eq_u32 s{S_WAVE}, 3', 's_cbranch_scc1 C_nors', f'buffer_store_dwordx4 v[24:27], v19, {S4(SRD_C)}, s45 offen {SC}', 'C_nors:')
    k1_setup_c()
    a.e('s_waitcnt lgkmcnt(0)', f's_mov_b32 s{P_WL}, s{P_WS}', f's_mov_b32 s{P_WL+1}, s{P_WS+1}')
    if SINGLE:
        a.e('v_mov_b32 v28, 0', 'v_mov_b32 v29, 0', 'v_mov_b32 v31, 0x3f803f80', 's_and_b32 s44, s2, 3', 's_lshl_b32 s44, s44, 6', 'v_mov_b32 v220, s44', 'v_mov_b32 v221, 1', f's_cmp_eq_u32 s{S_WAVE}, 3', 's_cbranch_scc0 C_w1', f's_waitcnt vmcnt({2*WARM0})', 'C_w1:', f's_waitcnt vmcnt({1+2*WARM0})')
        for e in range(16): a.e(f'v_dot2c_f32_bf16 v28, v31, v{32+e}', f'v_dot2c_f32_bf16 v29, v{32+e}, v{32+e}')
        for ctl in ('quad_perm:[1,0,3,2]', 'quad_perm:[2,3,0,1]', 'row_half_mirror', 'row_mirror'):
            a.e(f'v_add_f32_dpp v28, v28, v28 {ctl} row_mask:0xf bank_mask:0xf', f'v_add_f32_dpp v29, v29, v29 {ctl} row_mask:0xf bank_mask:0xf')
        a.e('v_mov_b32 v30, v28', 'v_mov_b32 v31, v29', 'v_permlane16_swap_b32 v28, v30', 'v_permlane16_swap_b32 v29, v31', 'v_add_f32 v28, v28, v30', 'v_add_f32 v29, v29, v31',
            's_mov_b32 exec_lo, 1', 's_mov_b32 exec_hi, 1', f'buffer_store_dwordx2 v[28:29], v16, {S4(SRD_C)}, 0 offen {SC}', 's_mov_b64 exec, -1')
    a.e('C_top:'); a.flush_hist()
    reads = [[], []]; mf = [[], []]
    for h in range(2):
        F = 16 + 48 * h
        ra = [[f'ds_read_b64_tr_b16 {vr(F+4*m,2)}, v8 offset:{m*8192+h*4096}', f'ds_read_b64_tr_b16 {vr(F+4*m+2,2)}, v8 offset:{m*8192+h*4096+512}'] for m in range(3)]
        rb = [f'ds_read_b128 {vr(F+12+4*rt,4)}, v{9+h} offset:{rt*2048}' for rt in range(9)]
        reads[h] = ra[0] + [rb[0]] + ra[1] + ra[2] + rb[1:]
        mf[h] = [f'{MF16} {vr(acc1(m,rt),4)}, {vr(F+4*m,4)}, {vr(F+12+4*rt,4)}, {vr(acc1(m,rt),4)}' for rt in range(9) for m in range(3)]
    peel = None
    if SINGLE:
        a.e(f's_or_b32 s51, s{S_VAR}, s{S_WAVE}')
        peel = (['s_waitcnt vmcnt(0)'], ['s_cmp_lg_u32 s51, 0', 's_cbranch_scc1 C_nogate', 's_mov_b64 exec, 1', f'global_atomic_add v220, v221, s[{P_DB}:{P_DB+1}] sc1', 's_mov_b64 exec, -1', 'C_nogate:'])
    STR, CW = 224, 242
    def fold(rt, o):
        ms = [m for m in range(3) if not (m == 0 and rt == 0)]
        st = vr(STR + 2 * rt, 2); L = []
        for m in ms: L += [f'v_pk_fma_f32 {vr(acc1(m,rt)+e,2)}, {vr(CW+4*m+e,2)}, {st}, {vr(acc1(m,rt)+e,2)} op_sel_hi:[1,0,1] neg_lo:[0,1,0] neg_hi:[0,1,0]' for e in (0, 2)]
        for m in ms: L += [f'v_pk_mul_f32 {vr(acc1(m,rt)+e,2)}, {vr(acc1(m,rt)+e,2)}, {st} op_sel:[0,1] op_sel_hi:[1,1]' for e in (0, 2)]
        for i, m in enumerate(ms):
            d = acc1(m, rt); r = o + 2 * i
            L += [f'v_cvt_pk_bf16_f32 v{r}, v{d}, v{d+1}', f'v_cvt_pk_bf16_f32 v{r+1}, v{d+2}, v{d+3}', f'ds_write_b64 v11, {vr(r,2)} offset:{rt*8*PITCH+m*128}']
        return L
    def fin1(mfs):
        work = [f'v_mov_b32_dpp v{CW+4*m+r}, v{acc1(m,0)+r} row_newbcast:0 row_mask:0xf bank_mask:0xf' for m in range(3) for r in range(4)]
        ready = [len(work)]
        for rt in range(9): work += fold(rt, 16 + 6 * (rt % 8)); ready.append(len(work))
        done = 0
        for i, m in enumerate(mfs):
            a.e(m)
            rt = i // 3 - 1
            lim = ready[rt + 1] if rt >= 0 else 0
            n = min(lim - done, 7)
            if n > 0: a.e(*work[done:done + n]); done += n
        a.e('s_barrier')
        a.e(*work[done:])
    c_loop(a, 16, 3, ST1, reads, mf, [8, 9, 10], False, 0, peel, [f'ds_read_b64 {vr(STR+2*rt,2)}, v12 offset:{rt*128}' for rt in range(9)], fin1)
    a.e('attn:'); a.flush_hist()
    MK = 86
    srd(a, SRD_D, P_WL, O_OFF, XB)
    a.e(f's_lshr_b32 s{S_T1}, s{S_WAVE}, 1', f's_and_b32 s{S_T2}, s{S_WAVE}, 1',
        f's_mul_i32 s{S_T0}, s{S_T2}, {PB}', f's_add_u32 s{S_T0}, s{S_T0}, {QKV}', f's_lshl_b32 s{S_G0+5}, s{S_T1}, 4')
    a.e(f'v_add_u32 v16, s{S_G0+5}, v4', 'v_lshlrev_b32 v17, 4, v5', f'v_add_u32 v17, s{S_T0}, v17',
        f'v_mul_u32_u24 v18, {PITCH}, v16', 'v_add_u32 v8, v18, v17', f'v_add_u32 v10, {8*PITCH}, v8', 'v_add_u32 v8, 128, v8',
        'v_add_u32 v16, 16, v16', 'v_min_u32 v16, 71, v16', f'v_mul_u32_u24 v18, {PITCH}, v16', 'v_add3_u32 v9, v18, v17, 64', 'v_add_u32 v9, 64, v9')
    a.e('v_lshl_add_u32 v16, v5, 2, v6', f'v_add_u32 v16, s{S_G0+5}, v16', 'v_lshlrev_b32 v17, 4, v7', f'v_add_u32 v17, s{S_T0}, v17', 'v_add_u32 v17, 256, v17',
        f'v_mul_u32_u24 v18, {PITCH}, v16', 'v_add_u32 v14, v18, v17',
        'v_add_u32 v16, 16, v16', 'v_min_u32 v16, 71, v16', f'v_mul_u32_u24 v18, {PITCH}, v16', 'v_add_u32 v15, v18, v17')
    a.e('v_lshlrev_b32 v13, 4, v0', f's_lshl_b32 s{S_G0+6}, s{S_TI}, 2', f's_add_u32 s{S_G0+6}, s{S_G0+6}, s{S_T1}', f's_lshl_b32 s{S_G0+6}, s{S_G0+6}, 16',
        f's_lshl_b32 s{S_G0+7}, s{S_TJ}, 12', f's_add_u32 s{S_G0+6}, s{S_G0+6}, s{S_G0+7}', f's_lshl_b32 s{S_G0+7}, s{S_T2}, 10', f's_add_u32 s{S_G0+6}, s{S_G0+6}, s{S_G0+7}')
    a.e('v_lshlrev_b32 v16, 2, v5', 'v_sub_u32 v16, v16, v4', f's_or_b32 s{S_G0+7}, s{S_TI}, s{S_T1}', f's_cmp_eq_u32 s{S_G0+7}, 0', f's_cselect_b32 s{S_G0+7}, 0, -1')
    for k in range(8):
        a.e(f'v_add_u32 v17, {16 * (k >> 2) + (k & 3) - 1}, v16', f'v_cmp_gt_u32 s[{MK+2*k}:{MK+1+2*k}], 8, v17')
    for k in range(4): a.e(f's_and_b32 s{MK+2*k}, s{MK+2*k}, s{S_G0+7}')
    cs = (32 ** -0.5) * 1.4426950408889634
    a.e(f'v_mov_b32 v18, {f32(cs)}', 'v_mov_b32 v19, 0xff800000')
    a.e('s_waitcnt lgkmcnt(0)', 's_barrier')
    B = [32, 80]
    for hd in range(2):
        b = B[hd]; o = 64 * hd
        a.e(f'ds_read_b128 {vr(b,4)}, v10 offset:{o}', f'ds_read_b128 {vr(b+4,4)}, v8 offset:{o}', f'ds_read_b128 {vr(b+8,4)}, v9 offset:{o}')
    for hd in range(2):
        b = B[hd]; o = 64 * hd
        for dt in range(2): a.e(f'ds_read_b64_tr_b16 {vr(b+12+4*dt,2)}, v14 offset:{o+8*dt}', f'ds_read_b64_tr_b16 {vr(b+14+4*dt,2)}, v15 offset:{o+8*dt}')
    for hd in range(2):
        b = B[hd]
        a.e(f's_waitcnt lgkmcnt({11 - 3*hd})', f'{MF16} {vr(b+20,4)}, {vr(b+4,4)}, {vr(b,4)}, 0', f'{MF16} {vr(b+24,4)}, {vr(b+8,4)}, {vr(b,4)}, 0')
    def both(f):
        for x, y in zip(f(B[0]), f(B[1])): a.e(x, y)
    both(lambda b: [f'v_cndmask_b32 v{b+20+k}, v19, v{b+20+k}, s[{MK+2*k}:{MK+1+2*k}]' for k in range(8)])
    both(lambda b: [f'v_max3_f32 v{b+28}, v{b+20}, v{b+21}, v{b+22}', f'v_max3_f32 v{b+29}, v{b+23}, v{b+24}, v{b+25}',
                    f'v_max3_f32 v{b+28}, v{b+28}, v{b+26}, v{b+27}', f'v_max_f32 v{b+28}, v{b+28}, v{b+29}', f'v_mov_b32 v{b+29}, v{b+28}',
                    f'v_permlane16_swap_b32 v{b+28}, v{b+29}', f'v_max_f32 v{b+28}, v{b+28}, v{b+29}', f'v_mov_b32 v{b+29}, v{b+28}',
                    f'v_permlane32_swap_b32 v{b+28}, v{b+29}', f'v_max_f32 v{b+28}, v{b+28}, v{b+29}', f'v_mul_f32 v{b+28}, v18, v{b+28}'])
    both(lambda b: [f'v_fma_f32 v{b+20+k}, v{b+20+k}, v18, -v{b+28}' for k in range(8)])
    both(lambda b: [f'v_exp_f32 v{b+20+k}, v{b+20+k}' for k in range(8)])
    both(lambda b: [f'v_pk_add_f32 {vr(b+28,2)}, {vr(b+20,2)}, {vr(b+22,2)}', f'v_pk_add_f32 {vr(b+30,2)}, {vr(b+24,2)}, {vr(b+26,2)}',
                    f'v_pk_add_f32 {vr(b+28,2)}, {vr(b+28,2)}, {vr(b+30,2)}', f'v_add_f32 v{b+28}, v{b+28}, v{b+29}', f'v_mov_b32 v{b+29}, v{b+28}',
                    f'v_permlane16_swap_b32 v{b+28}, v{b+29}', f'v_add_f32 v{b+28}, v{b+28}, v{b+29}', f'v_mov_b32 v{b+29}, v{b+28}',
                    f'v_permlane32_swap_b32 v{b+28}, v{b+29}', f'v_add_f32 v{b+28}, v{b+28}, v{b+29}', f'v_rcp_f32 v{b+28}, v{b+28}'])
    both(lambda b: [f'v_pk_mul_f32 {vr(b+20+e,2)}, {vr(b+20+e,2)}, {vr(b+28,2)} op_sel_hi:[1,0]' for e in range(0, 8, 2)])
    both(lambda b: [f'v_cvt_pk_bf16_f32 v{b+32+e}, v{b+20+2*e}, v{b+21+2*e}' for e in range(4)])
    a.e('s_waitcnt lgkmcnt(0)')
    both(lambda b: [f'{MF16} {vr(b+36+4*dt,4)}, {vr(b+12+4*dt,4)}, {vr(b+32,4)}, 0' for dt in range(2)])
    both(lambda b: [f'v_cvt_pk_bf16_f32 v{b+e}, v{b+36+2*e}, v{b+37+2*e}' for e in range(4)])
    for hd in range(2): a.e(f'buffer_store_dwordx4 {vr(B[hd],4)}, v13, {S4(SRD_D)}, s{S_G0+6} offen offset:{2048*hd} {SC}')
    a.e(f's_cmp_ge_u32 s{S_WAVE}, 4', 's_cbranch_scc1 L_k1done')

    ACC = 48; RES = 96
    def acc2(t, b): return ACC + 16 * b + 4 * t
    a.e(f's_lshl_b32 s{S_T0}, s{S_TI}, 2', f's_add_u32 s{S_T0}, s{S_T0}, s{S_WAVE}', f's_lshl_b32 s{S_BA}, s{S_T0}, 16', f's_lshl_b32 s{S_T1}, s{S_T0}, 5',
        'v_lshlrev_b32 v13, 1, v4', f'v_add_u32 v13, s{S_T1}, v13',
        'v_lshlrev_b32 v12, 11, v13', 'v_lshl_add_u32 v12, v3, 4, v12', f's_lshl_b32 s{S_T0}, s{S_TJ}, 7', f'v_add_u32 v12, s{S_T0}, v12', 'v_lshlrev_b32 v14, 4, v0')
    srd(a, SRD_A, P_WL, O_OFF, XB)
    sel(a, SRD_C, P_X, 0, P_WS, X2_OFF, XB)
    srd(a, SRD_B, P_WL, ST_OFF, 16 * 2048 * 8)
    tr128_addr(a, [8, 9, 10, 11], WO_SLOTS[0], 16, 17)
    a.e('v_add_u32 v16, v13, v2', 'v_lshlrev_b32 v16, 3, v16', f's_lshl_b32 s{S_T0}, s{S_TJ}, 14', f'v_add_u32 v112, s{S_T0}, v16',
        'v_lshrrev_b32 v17, 5, v0', 'v_lshlrev_b32 v17, 17, v17', 'v_add_u32 v113, v16, v17')
    a.e(f's_lshl_b32 s{S_T0}, s{S_WAVE}, 12', 'v_lshlrev_b32 v16, 8, v4', 'v_lshl_add_u32 v16, v5, 3, v16', f'v_add_u32 v16, s{S_T0}, v16',
        'v_and_b32 v17, 1, v4', 'v_bfe_u32 v18, v4, 2, 1', 'v_lshl_or_b32 v17, v18, 1, v17', 'v_lshl_add_u32 v114, v17, 5, v16',
        f's_lshl_b32 s{S_G0}, s{S_TJ}, 8', f's_lshl_b32 s{S_T1}, s{S_TI}, 2', f's_add_u32 s{S_G0}, s{S_G0}, s{S_T1}', f's_add_u32 s{S_G0}, s{S_G0}, s{S_WAVE}', f's_lshl_b32 s{S_G0}, s{S_G0}, 10')
    tr128_addr(a, [115], 0, 16, 17)
    a.e(f'v_add_u32 v115, s{S_T0}, v115')
    for t in range(1, 4): a.e(f's_add_u32 s{S_G0+t}, s{S_G0}, {t*65536}')
    for p in range(1, 8): a.e(f's_mov_b32 s{86+p}, {p*16384}')
    direct_setup(a, 16)
    poll_setup(a, SRD_E, 119, 0, 0, [f's_lshl_b32 s{S_T0}, s{S_TI}, 4'], 16)
    a.e('s_waitcnt vmcnt(0)', 's_barrier', *stamp(2))
    poll(a, SRD_E, 119, 16)
    a.e(*stamp(3))
    for b in range(2):
        for P in range(2): a.e(f'buffer_load_dwordx4 {vr(RES+8*b+4*P,4)}, v12, {S4(SRD_C)}, 0 offen offset:{b*2048+P*64} {LDF}')
    def init2(out):
        a.e(f's_waitcnt vmcnt({out})')
        for b in range(2):
            for P in range(2):
                r = RES + 8 * b + 4 * P
                a.e(f'v_permlane16_swap_b32 v{r}, v{r+2}', f'v_permlane16_swap_b32 v{r+1}, v{r+3}')
        for b in range(2):
            for P in range(2):
                r = RES + 8 * b + 4 * P
                a.e(*unpack4(r, r + 1, acc2(2 * P, b)), *unpack4(r + 2, r + 3, acc2(2 * P + 1, b)))
    mf2 = lambda h, bb: [f'{MF16} {vr(acc2(t,b),4)}, {vr(16+16*h+4*t,4)}, {vr(bb+4*b,4)}, {vr(acc2(t,b),4)}' for t in range(4) for b in range(2)]
    c_direct(a, 16, 0, 0, w_reads([8, 9, 10, 11]), mf2, [8, 9, 10, 11], DR, D, 14, init2, 4, slots=WO_SLOTS)
    a.e('s_barrier')
    srd(a, SRD_D, P_WL, X1_OFF, XB)
    srd(a, SRD_E, P_WL, H_OFF, XB)
    for b in range(2):
        d = acc2(0, b); T = 16 + 4 * b
        a.e(f'v_pk_add_f32 {vr(T,2)}, {vr(d,2)}, {vr(d+2,2)}', f'v_pk_mul_f32 {vr(T+2,2)}, {vr(d,2)}, {vr(d,2)}', f'v_pk_fma_f32 {vr(T+2,2)}, {vr(d+2,2)}, {vr(d+2,2)}, {vr(T+2,2)}')
        for e in range(4, 16, 2):
            a.e(f'v_pk_add_f32 {vr(T,2)}, {vr(T,2)}, {vr(d+e,2)}', f'v_pk_fma_f32 {vr(T+2,2)}, {vr(d+e,2)}, {vr(d+e,2)}, {vr(T+2,2)}')
        a.e(f'v_add_f32 v{24+b}, v{T}, v{T+1}', f'v_add_f32 v{26+b}, v{T+2}, v{T+3}')
    a.e('v_permlane16_swap_b32 v24, v25', 'v_permlane16_swap_b32 v26, v27', 'v_add_f32 v28, v24, v25', 'v_add_f32 v29, v26, v27',
        'v_mov_b32 v30, v28', 'v_mov_b32 v31, v29', 'v_permlane32_swap_b32 v28, v30', 'v_permlane32_swap_b32 v29, v31',
        'v_add_f32 v28, v28, v30', 'v_add_f32 v29, v29, v31', 'v_and_b32 v29, 0x7fffffff, v29',
        's_mov_b32 exec_hi, 0', f'buffer_store_dwordx2 v[28:29], v112, {S4(SRD_B)}, 0 offen {SC}', 's_mov_b64 exec, -1')
    for b in range(2):
        for t in range(4):
            r = RES + 8 * b + 2 * t; d = acc2(t, b)
            a.e(f'v_cvt_pk_bf16_f32 v{r}, v{d}, v{d+1}', f'v_cvt_pk_bf16_f32 v{r+1}, v{d+2}, v{d+3}')
    for b in range(2):
        for P in range(2):
            r = RES + 8 * b + 4 * P
            a.e(f'v_permlane16_swap_b32 v{r}, v{r+2}', f'v_permlane16_swap_b32 v{r+1}, v{r+3}')
    for t in range(1, 4): a.e(f'v_xor_b32 v{115+t}, {t << 5}, v115', f'v_xor_b32 v{120+t}, {t << 5}, v114')
    a.e('v_mov_b32 v120, v114', f's_mov_b32 s{S_CNT}, 0')
    body = ['k2_poll:'] + [f'buffer_load_dwordx2 {vr(32+2*p,2)}, v113, {S4(SRD_B)}, {"0" if p == 0 else f"s{86+p}"} offen {SC}' for p in range(8)]
    body += ['s_waitcnt vmcnt(0)', 'v_min3_i32 v16, v33, v35, v37', 'v_min3_i32 v17, v39, v41, v43', 'v_min3_i32 v16, v16, v45, v47',
             'v_min_i32 v16, v16, v17', 'v_cmp_gt_i32 vcc, 0, v16', f's_add_u32 s{S_CNT}, s{S_CNT}, 1', f's_cmp_gt_u32 s{S_CNT}, {SPIN}',
             's_cbranch_scc1 k2_pdone', 's_cbranch_vccnz k2_poll']
    a.loop(body)
    a.e('k2_pdone:', *stamp(6))
    for b in range(2):
        for P in range(2): a.e(f'buffer_store_dwordx4 {vr(RES+8*b+4*P,4)}, v12, {S4(SRD_D)}, 0 offen offset:{b*2048+P*64} {SC}')
    a.e('v_pk_add_f32 v[32:33], v[32:33], v[34:35]', 'v_pk_add_f32 v[36:37], v[36:37], v[38:39]', 'v_pk_add_f32 v[40:41], v[40:41], v[42:43]',
        'v_pk_add_f32 v[44:45], v[44:45], v[46:47]', 'v_pk_add_f32 v[32:33], v[32:33], v[36:37]', 'v_pk_add_f32 v[40:41], v[40:41], v[44:45]',
        'v_pk_add_f32 v[32:33], v[32:33], v[40:41]', 'v_mov_b32 v34, v32', 'v_mov_b32 v35, v33',
        'v_permlane32_swap_b32 v32, v34', 'v_permlane32_swap_b32 v33, v35', 'v_add_f32 v32, v32, v34', 'v_add_f32 v33, v33, v35')
    stats_finish(a, 32, 33, 36, True)
    a.e('v_mov_b32 v34, v32', 'v_mov_b32 v35, v33', 'v_permlane16_swap_b32 v32, v34', 'v_permlane16_swap_b32 v33, v35')
    for b in range(2):
        st = vr(32 + 2 * b, 2); d = acc2(0, b); o = 160 + 8 * b
        for e in range(0, 16, 2): a.e(f'v_pk_add_f32 {vr(d+e,2)}, {vr(d+e,2)}, {st} op_sel_hi:[1,0] neg_lo:[0,1] neg_hi:[0,1]')
        for e in range(0, 16, 2): a.e(f'v_pk_mul_f32 {vr(d+e,2)}, {vr(d+e,2)}, {st} op_sel:[0,1] op_sel_hi:[1,1]')
        for t in range(4):
            a.e(f'v_cvt_pk_bf16_f32 v{o+2*t}, v{d+4*t}, v{d+4*t+1}', f'v_cvt_pk_bf16_f32 v{o+2*t+1}, v{d+4*t+2}, v{d+4*t+3}',
                f'ds_write_b64 v{120+t}, {vr(o+2*t,2)} offset:{128*b}')
    a.e('s_waitcnt lgkmcnt(0)')
    for t in range(4): a.e(f'ds_read_b64_tr_b16 {vr(176+4*t,2)}, v{115+t}', f'ds_read_b64_tr_b16 {vr(178+4*t,2)}, v{115+t} offset:512')
    for t in range(4): a.e(f's_waitcnt lgkmcnt({6-2*t})', f'buffer_store_dwordx4 {vr(176+4*t,4)}, v14, {S4(SRD_E)}, s{S_G0+t} offen {SC}')
    a.e('s_cmp_ge_u32 s2, 224', 's_cbranch_scc1 C_k3skip')

    ACC3 = 80
    def acc3(tf, td): return ACC3 + 16 * td + 4 * tf
    tiles(a, 7, 2)
    a.e(f's_and_b32 s{S_G0+2}, s{S_WAVE}, 1', f's_lshr_b32 s{S_T2}, s{S_WAVE}, 1',
        f's_lshl_b32 s{S_T0}, s{S_TJ}, 8', f's_lshl_b32 s{S_G0}, s{S_G0+2}, 7', f's_add_u32 s{S_T0}, s{S_T0}, s{S_G0}',
        'v_lshlrev_b32 v16, 3, v5', f'v_add_u32 v16, s{S_T0}, v16')
    srd(a, SRD_C, P_B1, 0, 3584 * 2)
    for tf in range(4): a.e(f'buffer_load_dwordx2 {vr(144+2*tf,2)}, v16, {S4(SRD_C)}, 0 offen offset:{32*tf}')
    srd(a, SRD_D, P_WL, U_OFF, UB)
    a.e('v_lshl_add_u32 v17, v5, 3, v6', 'v_lshlrev_b32 v17, 8, v17', 'v_lshl_add_u32 v17, v7, 3, v17', 'v_lshl_or_b32 v18, v2, 2, v6', 'v_lshl_add_u32 v17, v18, 5, v17',
        f's_lshl_b32 s{S_T0}, s{S_G0+2}, 7', f's_add_u32 s{S_T0}, s{S_T0}, 16384', f'v_xor_b32 v18, s{S_T0}, v17', f's_lshl_b32 s{S_T0}, s{S_T2}, 13', f'v_add_u32 v12, s{S_T0}, v14')
    for t in range(4): a.e(f'v_xor_b32 v{8+t}, {t << 5}, v18')
    a.e('v_bfe_u32 v17, v4, 2, 1', 'v_lshlrev_b32 v17, 10, v17', 'v_lshl_add_u32 v17, v3, 8, v17', 'v_lshrrev_b32 v18, 3, v4', 'v_lshl_add_u32 v17, v18, 6, v17',
        'v_lshl_add_u32 v152, v7, 4, v17', 'v_add_u32 v153, 128, v152',
        f's_lshl_b32 s{S_T0}, s{S_TI}, 1', f's_add_u32 s{S_T0}, s{S_T0}, s{S_T2}', f's_mul_i32 s{S_T0}, s{S_T0}, 224',
        f's_lshl_b32 s{S_G0}, s{S_TJ}, 2', f's_add_u32 s{S_T0}, s{S_T0}, s{S_G0}', f's_lshl_b32 s{S_G0}, s{S_G0+2}, 1', f's_add_u32 s{S_T0}, s{S_T0}, s{S_G0}',
        f's_lshl_b32 s{S_G0}, s{S_T0}, 11', f's_add_u32 s{S_G0+1}, s{S_G0}, {112*2048}')
    a.e('s_waitcnt vmcnt(0)', 's_barrier', *stamp(7))
    for tf in range(4):
        a.e(*unpack4(144 + 2 * tf, 145 + 2 * tf, acc3(tf, 0)))
        for td in range(1, 4): a.e(f'v_mov_b64 {vr(acc3(tf,td),2)}, {vr(acc3(tf,0),2)}', f'v_mov_b64 {vr(acc3(tf,td)+2,2)}, {vr(acc3(tf,0)+2,2)}')
    reads = [[], []]; mf = [[], []]
    for h in range(2):
        F = 16 + 32 * h
        rd = lambda dst, av: [f'ds_read_b64_tr_b16 {vr(dst,2)}, v{av} offset:{h*8192}', f'ds_read_b64_tr_b16 {vr(dst+2,2)}, v{av} offset:{h*8192+1024}']
        for t in range(4): reads[h] += rd(F + 4 * t, 8 + t) + [f'ds_read_b128 {vr(F+16+4*t,4)}, v12 offset:{(2*t+h)*1024}']
        for tf, td in sorted([(tf, td) for tf in range(4) for td in range(4)], key=lambda x: (max(x), x)):
            mf[h].append(f'{MF16} {vr(acc3(tf,td),4)}, {vr(F+4*tf,4)}, {vr(F+16+4*td,4)}, {vr(acc3(tf,td),4)}')
    c_loop(a, 32, 5, 32768, reads, mf, list(range(8, 13)), True, 8)
    c1 = -2.0 * 0.7978845608028654 * 1.4426950408889634
    a.e(f'v_mov_b32 v16, {f32(c1)}', f'v_mov_b32 v17, {f32(c1 * 0.044715)}')
    k = 0
    for td in range(4):
        for P in range(2):
            d = acc3(2 * P, td); T = 24 + 16 * (k & 1); k += 1
            O = 160 + 4 * k
            for e in range(0, 8, 2): a.e(f'v_pk_mul_f32 {vr(T+e,2)}, {vr(d+e,2)}, {vr(d+e,2)}')
            for e in range(0, 8, 2): a.e(f'v_pk_fma_f32 {vr(T+e,2)}, {vr(T+e,2)}, v[16:17], v[16:17] op_sel:[0,1,0] op_sel_hi:[1,1,0]')
            for e in range(0, 8, 2): a.e(f'v_pk_mul_f32 {vr(T+e,2)}, {vr(T+e,2)}, {vr(d+e,2)}')
            for e in range(8): a.e(f'v_exp_f32 v{T+e}, v{T+e}')
            for e in range(0, 8, 2): a.e(f'v_pk_add_f32 {vr(T+e,2)}, {vr(T+e,2)}, 1.0 op_sel_hi:[1,0]')
            for e in range(8): a.e(f'v_rcp_f32 v{T+e}, v{T+e}')
            for e in range(0, 8, 2): a.e(f'v_pk_mul_f32 {vr(T+e,2)}, {vr(T+e,2)}, {vr(d+e,2)}')
            for e in range(4): a.e(f'v_cvt_pk_bf16_f32 v{O+e}, v{T+2*e}, v{T+2*e+1}')
            a.e(f'v_permlane16_swap_b32 v{O}, v{O+2}', f'v_permlane16_swap_b32 v{O+1}, v{O+3}')
            a.e(f'buffer_store_dwordx4 {vr(O,4)}, v{152+(td&1)}, {S4(SRD_D)}, s{S_G0+(td>>1)} offen offset:{2048*P} {SC}')
    a.e('C_k3skip:'); a.flush_hist()

    def acc4(aa, n): return ACC + 8 * n + 4 * aa
    tiles(a, 8, 2)
    a.e(f's_lshl_b32 s{S_T0}, s{S_TJ}, 6', f'v_add_u32 v13, s{S_T0}, v4', 'v_lshlrev_b32 v12, 11, v13', 'v_lshl_add_u32 v12, v5, 4, v12',
        f's_lshl_b32 s{S_T0}, s{S_TI}, 8', f's_lshl_b32 s{S_T1}, s{S_WAVE}, 6', f's_add_u32 s{S_T0}, s{S_T0}, s{S_T1}',
        f'v_add_u32 v12, s{S_T0}, v12', 'v_lshlrev_b32 v13, 1, v13', 'v_lshlrev_b32 v14, 4, v0',
        f's_lshl_b32 s{S_BA}, s{S_TI}, 2', f's_add_u32 s{S_BA}, s{S_BA}, s{S_WAVE}', f's_mul_i32 s{S_BA}, s{S_BA}, {56*4096}',
        's_mov_b32 s45, 32768', 's_mov_b32 s46, 65536', 's_mov_b32 s47, 98304')
    so = ['0', 's45', 's46', 's47']
    srd(a, SRD_A, P_WL, U_OFF, UB)
    srd(a, SRD_C, P_WL, X1_OFF, XB)
    srd(a, SRD_B, P_B2, 0, 4096)
    for n in range(4): a.e(f'buffer_load_ushort v{RES+16+2*n}, v13, {S4(SRD_B)}, 0 offen offset:{32*n}')
    tr128_addr(a, [8, 9, 10, 11], K4_BASE, 16, 17)
    direct_setup(a, 56)
    a.e('v_lshlrev_b32 v222, 3, v0', f's_lshl_b32 s{S_T0}, s{S_WAVE}, 9', f's_add_u32 s{S_T0}, s{S_T0}, {K4_SCR}', f'v_add_u32 v223, s{S_T0}, v222')
    poll_setup(a, SRD_E, 15, 2, 0, [f's_lshl_b32 s{S_T0}, s{S_TI}, 5'], 28)
    a.e('s_waitcnt vmcnt(0)', 's_barrier', *stamp(10))
    if PF2:
        a.e('s_cmp_lt_u32 s2, 224', 's_cbranch_scc1 C_nopf', f's_cmp_lg_u32 s{S_VAR}, 0', 's_cbranch_scc1 C_nopf')
        srd(a, SRD_D, P_W2, 0, 3584 * 2048 * 2)
        a.e(f's_sub_u32 s{S_T0}, s2, 224', f's_lshl_b32 s{S_T0}, s{S_T0}, 2', f's_add_u32 s{S_T0}, s{S_T0}, s{S_WAVE}', f's_lshl_b32 s{S_T0}, s{S_T0}, 13', 'v_lshlrev_b32 v17, 7, v0')
        for j in range(14):
            a.e(f'buffer_load_dword v18, v17, {S4(SRD_D)}, s{S_T0} offen', f's_add_u32 s{S_T0}, s{S_T0}, {128*8192}', *(['s_waitcnt vmcnt(1)'] if j else []))
        a.e('C_nopf:')
    poll(a, SRD_E, 15, 16)
    a.e(*stamp(11))
    for n in range(4): a.e(f'buffer_load_dwordx4 {vr(RES+4*n,4)}, v12, {S4(SRD_C)}, {so[n]} offen {LDF}')
    sel(a, SRD_E, P_WS, X2_OFF, P_OUT, 0, XB)
    srd(a, SRD_B, P_WS, LSTR + RS_OFF, 8 * 2048 * 8)
    def init4(out):
        a.e(f's_waitcnt vmcnt({out})')
        for n in range(4):
            a.e(f'v_lshlrev_b32 v{RES+16+2*n}, 16, v{RES+16+2*n}')
            a.e(*unpack4(RES + 4 * n, RES + 4 * n + 1, acc4(0, n)), *unpack4(RES + 4 * n + 2, RES + 4 * n + 3, acc4(1, n)))
            for e in range(0, 8, 2): a.e(f'v_pk_add_f32 {vr(acc4(0,n)+e,2)}, {vr(acc4(0,n)+e,2)}, {vr(RES+16+2*n,2)} op_sel_hi:[1,0]')
    mf4 = lambda h, b: [f'{MF16} {vr(acc4(aa,n),4)}, {vr(b+4*aa,4)}, {vr(16+16*h+4*n,4)}, {vr(acc4(aa,n),4)}' for n in range(4) for aa in range(2)]
    c_direct(a, 56, K4_NS, 8192, w_reads([8, 9, 10, 11]), mf4, [8, 9, 10, 11], DR, D, 14, init4, 12)
    def st4():
        for n in range(4):
            for e in range(4): a.e(f'v_cvt_pk_bf16_f32 v{RES+4*n+e}, v{acc4(0,n)+2*e}, v{acc4(0,n)+2*e+1}')
            a.e(f'buffer_store_dwordx4 {vr(RES+4*n,4)}, v12, {S4(SRD_E)}, {so[n]} offen {SC}')
    a.e(f's_cmp_eq_u32 s{S_VAR}, 0', 's_cbranch_scc1 C_st')
    st4()
    a.e('s_branch C_end', 'C_st:', 's_nop 7')
    for n in range(4):
        d = acc4(0, n); T = 16 + 4 * n
        a.e(f'v_pk_add_f32 {vr(T,2)}, {vr(d,2)}, {vr(d+2,2)}', f'v_pk_mul_f32 {vr(T+2,2)}, {vr(d,2)}, {vr(d,2)}', f'v_pk_fma_f32 {vr(T+2,2)}, {vr(d+2,2)}, {vr(d+2,2)}, {vr(T+2,2)}')
        for e in (4, 6): a.e(f'v_pk_add_f32 {vr(T,2)}, {vr(T,2)}, {vr(d+e,2)}', f'v_pk_fma_f32 {vr(T+2,2)}, {vr(d+e,2)}, {vr(d+e,2)}, {vr(T+2,2)}')
        a.e(f'v_add_f32 v{32+n}, v{T}, v{T+1}', f'v_add_f32 v{36+n}, v{T+2}, v{T+3}')
    for b in (32, 36): a.e(f'v_permlane16_swap_b32 v{b}, v{b+1}', f'v_permlane16_swap_b32 v{b+2}, v{b+3}')
    for b in (32, 36): a.e(f'v_add_f32 v{b}, v{b}, v{b+1}', f'v_add_f32 v{b+2}, v{b+2}, v{b+3}')
    a.e('v_permlane32_swap_b32 v32, v34', 'v_permlane32_swap_b32 v36, v38', 'v_add_f32 v40, v32, v34', 'v_add_f32 v41, v36, v38',
        'ds_write_b64 v223, v[40:41]')
    st4()
    a.e('s_waitcnt lgkmcnt(0)', 's_barrier',
        f's_cmp_lg_u32 s{S_WAVE}, 0', 's_cbranch_scc1 C_nost',
        'ds_read_b64 v[44:45], v223 offset:512', 'ds_read_b64 v[46:47], v223 offset:1024', 'ds_read_b64 v[18:19], v223 offset:1536',
        f's_lshl_b32 s{S_T0}, s{S_TI}, 14', f's_lshl_b32 s{S_T1}, s{S_TJ}, 9', f's_add_u32 s{S_T0}, s{S_T0}, s{S_T1}', 's_waitcnt lgkmcnt(0)',
        'v_pk_add_f32 v[40:41], v[40:41], v[44:45]', 'v_pk_add_f32 v[46:47], v[46:47], v[18:19]', 'v_pk_add_f32 v[40:41], v[40:41], v[46:47]',
        f'buffer_store_dwordx2 v[40:41], v222, {S4(SRD_B)}, s{S_T0} offen {SC}', 'C_nost:', 's_nop 1')
    k1_setup_c()
    a.e('s_waitcnt vmcnt(0)', 's_barrier', *stamp(14))
    a.e(f's_mov_b32 s{S_VAR}, 1', f's_add_u32 s{P_WL}, s{P_WS}, {LSTR}', f's_addc_u32 s{P_WL+1}, s{P_WS+1}, 0', 's_branch C_top')
    a.e('C_end:'); dump(a)
    a.e('s_endpgm')

    gx = dict(sg=S_G0, dmas=[(8 + i, 1024 * i, 'A', None) for i in range(4)])
    gw = [dict(sg=S_G0 + 2 + m, dmas=[(13 + 2 * m, 0, 'B', None), (14 + 2 * m, 1024, 'B', None)]) for m in range(3)]
    gh = dict(sg=S_G0 + 1, dmas=[(12, 0, 'A', 's[52:53]')])
    def k1_setup_l(layer):
        tiles(a, 8, 1)
        a.e(f's_mov_b32 s{S_T2}, s{S_LWV}')
        dma_w128(a, [13, 14], 6144, swz128(a), 16, 2, 3, 4)
        a.e('v_add_u32 v15, 2048, v13', 'v_add_u32 v16, 2048, v14', 'v_add_u32 v17, 4096, v13', 'v_add_u32 v18, 4096, v14',
            f's_lshl_b32 s{S_G0+2}, s{S_T2}, 11', f's_add_u32 s{S_G0+2}, s{S_G0+2}, {XT}', f's_add_u32 s{S_G0+3}, s{S_G0+2}, 8192', f's_add_u32 s{S_G0+4}, s{S_G0+2}, 16384',
            f's_lshl_b32 s{S_BB}, s{S_TJ}, 7')
        if layer == 0: a.e('s_waitcnt lgkmcnt(0)')
        srd(a, SRD_B, P_WQKV, 0, 1024 * 3072 * 2)
        pre_w(a, 16, 3, 2, ST1, 0, 64 * 6144, gw)
        def xaddr(v, comp):
            a.e('v_lshrrev_b32 v2, 3, v0', f'v_add_u32 v2, s{S_T0}, v2', 'v_bfe_u32 v3, v2, 1, 3', 'v_and_b32 v4, 7, v0', 'v_xor_b32 v3, v3, v4', 'v_lshlrev_b32 v3, 4, v3',
                f'v_add_u32 v2, s{S_T1}, v2', 'v_max_i32 v2, 0, v2', 'v_lshlrev_b32 v2, 11, v2', f'v_add_u32 v{v}, v2, v3')
            if comp: a.e(f'v_subrev_u32 v{v}, {comp}, v{v}')
        a.e(f's_lshl_b32 s{S_T1}, s{S_TI}, 7', f's_sub_u32 s{S_T1}, s{S_T1}, 16')
        for i in range(2):
            a.e(f's_lshl_b32 s{S_T0}, s{S_T2}, 5', f's_add_u32 s{S_T0}, s{S_T0}, {16+8*i}')
            xaddr(8 + i, 1024 * i)
            a.e(f'v_add_u32 v{10+i}, {16*2048-2048}, v{8+i}')
        a.e(f's_lshl_b32 s{S_T0}, s{S_T2}, 3'); xaddr(12, 0)
        a.e(f's_lshl_b32 s{S_G0}, s{S_T2}, 12', f's_add_u32 s{S_G0}, s{S_G0}, 2048', f's_lshl_b32 s{S_G0+1}, s{S_T2}, 10', f's_mov_b32 s{S_BA}, 0',
            f's_cmp_eq_u32 s{S_T2}, 0', 's_cselect_b32 s52, 0xffffff00, -1', 's_mov_b32 s53, -1')
        a.e('v_mov_b32 v20, 0x3f803f80', 'v_mov_b32 v21, v20', 'v_mov_b32 v22, v20', 'v_mov_b32 v23, v20', 'v_lshlrev_b32 v24, 4, v0', f'v_add_u32 v25, {2*ST1}, v24',
            's_mov_b64 exec, 0xff', 'ds_write_b128 v24, v[20:23]', f'ds_write_b128 v24, v[20:23] offset:{ST1}', 'ds_write_b128 v25, v[20:23]', 's_mov_b64 exec, -1')
        if layer == 0: srd(a, SRD_A, P_X, 0, XB)
        else: srd(a, SRD_A, P_WS, X2_OFF, XB)
        srd(a, SRD_D, P_WS, layer * LSTR + RS_OFF, 2048 * 8 if SINGLE and layer == 0 else 8 * 2048 * 8)
        a.e(f's_lshl_b32 s{S_T0}, s{S_T2}, 6', f'v_add_u32 v26, s{S_T0}, v0', 'v_min_u32 v26, 143, v26', f'v_add_u32 v27, s{S_T1}, v26', 'v_max_i32 v27, 0, v27',
            'v_lshlrev_b32 v27, 3, v27', 'v_lshlrev_b32 v26, 3, v26', f'v_add_u32 v26, {SL}, v26', 's_waitcnt lgkmcnt(0)')
    a.e('L_start:'); a.flush_hist()
    a.e(f's_sub_u32 s{S_LWV}, s{S_WAVE}, 4', 'v_and_b32 v134, 3, v0', 'v_lshlrev_b32 v134, 6, v134')
    k1_setup_l(0)
    a.e(f's_mov_b32 s{P_WL}, s{P_WS}', f's_mov_b32 s{P_WL+1}, s{P_WS+1}')
    a.e('L_top:'); a.flush_hist()
    flag_idx(a, 0, S_TI, 16, S_TJ)
    srd(a, SRD_E, P_W1, 0, 2048 * 3584 * 2)
    a.e(f's_lshl_b32 s54, s2, 2', f's_add_u32 s54, s54, s{S_LWV}', f's_mul_i32 s54, s54, {NPF*128}', f's_add_u32 s54, s54, {W1_K0}')
    gl = f'global_load_dword v29, v134, s[{P_DB}:{P_DB+1}] {SC}'
    def h_gate(n):
        if SINGLE: a.e(gl)
    def h_fetch(n):
        l = lab('st')
        if SINGLE:
            a.e(f's_cmp_lg_u32 s{S_VAR}, 0', f's_cbranch_scc1 {l}g', f's_waitcnt vmcnt({n})', 's_mov_b32 s61, 0')
            a.loop([f'{l}p:', 'v_cmp_gt_u32 vcc, 64, v29', 's_add_u32 s61, s61, 1', f's_cmp_gt_u32 s61, {SPIN}', f's_cbranch_scc1 {l}g', f's_cbranch_vccz {l}g', gl, 's_waitcnt vmcnt(0)', f's_branch {l}p'])
            a.e(f'{l}g:')
        for p in range(8):
            if p: a.e(f's_mov_b32 s{S_T0}, {p*16384}')
            a.e(f'buffer_load_dwordx2 {vr(30+2*p,2)}, v27, {S4(SRD_D)}, {"0" if p == 0 else f"s{S_T0}"} offen {LDF}')
    def h_fin(n):
        a.e(f's_waitcnt vmcnt({n})', 'v_pk_add_f32 v[30:31], v[30:31], v[32:33]', 'v_pk_add_f32 v[34:35], v[34:35], v[36:37]', 'v_pk_add_f32 v[38:39], v[38:39], v[40:41]',
            'v_pk_add_f32 v[42:43], v[42:43], v[44:45]', 'v_pk_add_f32 v[30:31], v[30:31], v[34:35]', 'v_pk_add_f32 v[38:39], v[38:39], v[42:43]',
            'v_pk_add_f32 v[30:31], v[30:31], v[38:39]')
        stats_finish(a, 30, 31, 32, False)
        a.e('ds_write_b64 v26, v[30:31]', 's_waitcnt lgkmcnt(0)')
    HK = (h_gate, h_fetch)
    a.e(f's_cmp_ge_u32 s{S_LWV}, 2', 's_cbranch_scc1 L_k1B')
    l_loop(a, 16, 3, 2, ST1, 0, 128, 64 * 6144, [gh, gx], gw, tail=1, hooks=HK)
    a.e('s_branch L_k1t', 'L_k1B:'); a.flush_hist()
    l_loop(a, 16, 3, 2, ST1, 0, 128, 64 * 6144, [gx], gw, tail=1, hooks=HK)
    a.e('L_k1t:'); a.flush_hist()
    h_fin(0)
    a.e(f's_mov_b32 s{S_T2}, s{S_LWV}')
    dma_w128(a, [130, 131], 2048, swz128(a), 16, 2, 3, 4)
    srd(a, SRD_B, P_WO, 0, 1024 * 1024 * 2)
    a.e(*INITK, f's_lshl_b32 s{S_G0+8}, s{S_LWV}, 11')
    def wo(t0, t1):
        for t in range(t0, t1):
            a.e(*next_k(16), f's_lshl_b32 s{S_OB}, s{S_K}, 17', f's_add_u32 s{S_OB}, s{S_OB}, s{S_BB}', f's_add_u32 m0, s{S_G0+8}, {WO_SLOTS[t]}',
                f'buffer_load_dwordx4 v130, {S4(SRD_B)}, s{S_OB} offen lds', f'buffer_load_dwordx4 v131, {S4(SRD_B)}, s{S_OB} offen offset:1024 lds')
    wo(0, 4)
    def pf3(j):
        if PF3 > j: a.e(f's_add_u32 s{S_T0}, s54, {j*8*MB}', f'buffer_load_dword v223, v132, {S4(SRD_E)}, s{S_T0} offen')
    if PF3:
        a.e(f's_cmp_eq_u32 s{S_VAR}, 0', f's_cselect_b32 s{SRD_E+2}, s{SRD_E+2}, 0', 's_lshl_b32 s54, s2, 2', f's_add_u32 s54, s54, s{S_LWV}', 's_lshl_b32 s54, s54, 13',
            f's_add_u32 s54, s54, {W1_K0}', 'v_lshlrev_b32 v132, 7, v0')
    pf3(0)
    x = 1 if PF3 else 0
    if PFT:
        srd(a, SRD_C, P_W2, 0, 3584 * 2048 * 2)
        a.e(f's_cmp_eq_u32 s{S_VAR}, 0', f's_cselect_b32 s{SRD_E+2}, s{SRD_E+2}, 0', f's_cselect_b32 s{SRD_C+2}, s{SRD_C+2}, 0',
            's_lshr_b32 s54, s2, 3', 's_lshl_b32 s54, s54, 2', f's_add_u32 s54, s54, s{S_LWV}', 's_lshl_b32 s54, s54, 18', 'v_lshlrev_b32 v132, 12, v0', 'v_add_u32 v132, s54, v132',
            f'v_subrev_u32 v133, {16*MB}, v132', f'buffer_load_dword v223, v132, {S4(SRD_E)}, 0 offen', f'buffer_load_dword v222, v133, {S4(SRD_C)}, 0 offen')
        x += 2
    a.e(f's_waitcnt vmcnt({8+x})', 's_barrier')
    wo(4, 7)
    lane_fields(a)
    a.e('s_waitcnt lgkmcnt(0)', 's_barrier')
    pf3(1)
    wo(7, 12)
    a.e('s_branch attn')
    a.e('L_k1done:'); a.flush_hist()
    publish_pre(a)
    a.e('s_waitcnt vmcnt(0)', 's_barrier')
    publish(a, 2)
    wo(12, 16)
    flag_idx(a, 1, S_TJ, 16, S_TI)
    a.e('s_waitcnt vmcnt(0)', 's_barrier')
    g4 = [dict(sg=S_G0 + 1, dmas=[(9, 0, 'B', None), (10, 1024, 'B', None)])]
    def k4_setup_l():
        tiles(a, 8, 2)
        a.e(f's_mov_b32 s{S_T2}, s{S_LWV}', f's_lshl_b32 s{S_G0+1}, s{S_T2}, 11')
        dma_w128(a, [9, 10], 4096, swz128(a), 16, 2, 3, 4)
        a.e(f's_lshl_b32 s{S_BB}, s{S_TJ}, 7')
        srd(a, SRD_B, P_W2, 0, 3584 * 2048 * 2)
    a.e('s_cmp_ge_u32 s2, 224', 's_cbranch_scc1 L_k3skip')
    tiles(a, 7, 2)
    a.e(f's_lshl_b32 s{S_G0}, s{S_LWV}, 12', f's_add_u32 s{S_G0+1}, s{S_G0}, 16384', 'v_lshlrev_b32 v8, 4, v0', f'v_add_u32 v13, {65536-2048}, v8',
        'v_lshrrev_b32 v2, 4, v0', 'v_lshlrev_b32 v3, 1, v2', 'v_and_b32 v4, 15, v0', 'v_xor_b32 v3, v3, v4', 'v_lshlrev_b32 v3, 4, v3',
        f's_lshl_b32 s{S_T0}, s{S_LWV}, 4', f'v_add_u32 v2, s{S_T0}, v2', f's_mov_b32 s{S_T0}, 7168', f'v_mul_lo_u32 v2, v2, s{S_T0}',
        'v_add_u32 v9, v2, v3', 'v_xor_b32 v3, 128, v3', 'v_add_u32 v11, v2, v3',
        f'v_add_u32 v10, {4*7168-1024}, v9', f'v_add_u32 v12, {3*(4*7168-1024)}, v11', f'v_add_u32 v11, {2*(4*7168-1024)}, v11',
        f's_lshl_b32 s{S_BA}, s{S_TI}, 2', f's_add_u32 s{S_BA}, s{S_BA}, s{S_LWV}', f's_lshl_b32 s{S_BA}, s{S_BA}, 17', f's_lshl_b32 s{S_BB}, s{S_TJ}, 8')
    srd(a, SRD_A, P_WL, H_OFF, XB)
    srd(a, SRD_B, P_W1, 0, 2048 * 3584 * 2)
    g3a = [dict(sg=S_G0, dmas=[(8 if i < 2 else 13, 1024 * i, 'A', None) for i in range(4)])]
    g3w = [dict(sg=S_G0 + 1, dmas=[(9 + i, 1024 * i, 'B', None) for i in range(4)])]
    poll_setup(a, SRD_C, 14, 1, 0, [f's_lshl_b32 s{S_T0}, s{S_TI}, 5'], 32)
    a.e('s_barrier')
    if not LATEW: pre_w(a, 32, 5, 3, 32768, 0, 64 * 7168, g3w)
    a.e('s_barrier')
    publish(a, 2)
    if LATEW: pre_w(a, 32, 5, 3, 32768, 0, 64 * 7168, g3w)
    flag_idx(a, 2, S_TI, 32, S_TJ)
    poll(a, SRD_C, 14, 15)
    l_loop(a, 32, 5, 3, 32768, 0, 2048, 64 * 7168, g3a, g3w)
    k4_setup_l()
    a.e('s_branch L_k4', 'L_k3skip:'); a.flush_hist()
    k4_setup_l()
    a.e('s_barrier')
    a.e('L_k4:'); a.flush_hist()
    pre_w(a, 56, K4_NS, K4_AH, 8192, K4_BASE, 64 * 4096, g4)
    a.e('s_barrier')
    publish(a, 2)
    flag_idx(a, 3, S_TJ, 8, S_TI)
    l_loop(a, 56, K4_NS, K4_AH, 8192, K4_BASE, 0, 64 * 4096, [], g4)
    a.e(f's_cmp_lg_u32 s{S_VAR}, 0', 's_cbranch_scc1 L_end')
    k1_setup_l(1)
    poll_setup(a, SRD_C, 28, 3, 0, [f's_lshl_b32 s{S_T0}, s{S_TI}, 4', f's_sub_u32 s{S_T0}, s{S_T0}, 8'], 24)
    a.e('s_barrier', 's_barrier')
    publish(a, 2)
    poll(a, SRD_C, 28, 29)
    a.e(f's_mov_b32 s{S_VAR}, 1', f's_add_u32 s{P_WL}, s{P_WS}, {LSTR}', f's_addc_u32 s{P_WL+1}, s{P_WS+1}, 0', 's_branch L_top')
    a.e('L_end:', f'{kn}_end:', 's_endpgm')

def dump(a):
    if not PROF: return
    a.e('s_waitcnt vmcnt(0)', *stamp(14), f's_cmp_lg_u32 s{S_WAVE}, 0', 's_cbranch_scc1 nodump', 's_lshl_b32 s58, s2, 8', f's_add_u32 s58, s58, {PR_OFF}',
        'v_lshlrev_b32 v254, 2, v0', 'v_add_u32 v254, s58, v254', f'global_store_dword v254, v{PV}, s[{P_WS}:{P_WS+1}]', 'nodump:')

def gen_k0(a):
    a.e('.p2align 8', 'k0_kernel:', 's_cmp_ge_u32 s2, 256', 's_cbranch_scc1 k0_end',
        's_load_dwordx16 s[64:79], s[0:1], 0', 's_load_dwordx2 s[84:85], s[0:1], 80',
        'v_lshrrev_b32 v1, 6, v0', 'v_lshlrev_b32 v20, 4, v0', 'v_and_b32 v0, 63, v0', f'v_readfirstlane_b32 s{S_WAVE}, v1',
        's_lshl_b32 s30, s2, 3', f's_add_u32 s30, s30, s{S_WAVE}',
        's_lshl_b32 s31, s30, 11', 'v_lshlrev_b32 v2, 5, v0',
        's_lshl_b32 s32, s2, 2', f's_and_b32 s33, s{S_WAVE}, 3', 's_add_u32 s32, s32, s33', 's_lshl_b32 s32, s32, 13', 'v_lshlrev_b32 v3, 7, v0', 'v_add_u32 v3, s32, v3',
        f'v_subrev_u32 v4, {1024*3072*2}, v3', 's_waitcnt lgkmcnt(0)')
    srd(a, SRD_A, P_X, 0, XB)
    a.e(f'buffer_load_dwordx4 v[8:11], v2, {S4(SRD_A)}, s31 offen', f'buffer_load_dwordx4 v[12:15], v2, {S4(SRD_A)}, s31 offen offset:16')
    KW = int(env('K0WARM', '1'))
    srd(a, SRD_B, P_WQKV, 0, 1024 * 3072 * 2 * KW)
    srd(a, SRD_C, P_WO, 0, 1024 * 1024 * 2 * KW)
    srd(a, SRD_E, P_W1, 0, W1_K0)
    a.e(f's_sub_u32 s33, s{S_WAVE}, 4', 's_lshl_b32 s33, s33, 8', 's_add_u32 s33, s33, s2', 's_lshl_b32 s33, s33, 13', 'v_lshlrev_b32 v7, 7, v0',
        f's_cmp_ge_u32 s{S_WAVE}, 4', 's_cbranch_scc1 k0_nw', f'buffer_load_dword v5, v3, {S4(SRD_B)}, 0 offen', f'buffer_load_dword v6, v4, {S4(SRD_C)}, 0 offen', 's_branch k0_nx',
        'k0_nw:', f'buffer_load_dword v5, v7, {S4(SRD_E)}, s33 offen', 'k0_nx:')
    if CODEPF:
        a.e(f's_cmp_lg_u32 s{S_WAVE}, 7', 's_cbranch_scc1 k0_nc', 's_getpc_b64 s[40:41]', 'k0_pc:', 's_add_u32 s40, s40, mega_kernel-k0_pc', 's_addc_u32 s41, s41, 0',
            's_lshr_b32 s42, s2, 3', 's_lshl_b32 s42, s42, 11', 'v_and_b32 v25, 15, v0', 'v_lshlrev_b32 v25, 7, v25', 'v_add_u32 v25, s42, v25',
            'v_min_u32 v25, mega_end-mega_kernel, v25', 'global_load_dword v26, v25, s[40:41]', 'k0_nc:')
    srd(a, SRD_D, P_WS, 0, 64 * MB)
    a.e(f's_cmp_eq_u32 s{S_WAVE}, 0', 's_cselect_b32 s33, 0, -1', 'v_mov_b32 v16, s33', 'v_mov_b32 v17, s33', 'v_mov_b32 v18, s33', 'v_mov_b32 v19, s33',
        f's_mov_b32 s34, {ST_OFF}', f's_cselect_b32 s34, {FL_OFF}, s34', f's_cmp_eq_u32 s{S_WAVE}, 2', f's_cselect_b32 s34, {LSTR + ST_OFF}, s34', 's_lshl_b32 s35, s2, 10', 's_add_u32 s34, s34, s35',
        'v_lshlrev_b32 v20, 4, v0', f's_cmp_ge_u32 s{S_WAVE}, 3', 's_cbranch_scc1 k0_nr', f'buffer_store_dwordx4 v[16:19], v20, {S4(SRD_D)}, s34 offen', 'k0_nr:')
    a.e('v_mov_b32 v22, 0', 'v_mov_b32 v23, 0', 'v_mov_b32 v21, 0x3f803f80', 'v_lshrrev_b32 v24, 3, v0', 'v_lshlrev_b32 v24, 14, v24', 's_lshl_b32 s36, s30, 3', f's_add_u32 s36, s36, {RS_OFF}',
        's_waitcnt vmcnt(0)')
    for e in range(8): a.e(f'v_dot2c_f32_bf16 v22, v21, v{8+e}', f'v_dot2c_f32_bf16 v23, v{8+e}, v{8+e}')
    for ctl in ('quad_perm:[1,0,3,2]', 'quad_perm:[2,3,0,1]', 'row_half_mirror'):
        a.e(f'v_add_f32_dpp v22, v22, v22 {ctl} row_mask:0xf bank_mask:0xf', f'v_add_f32_dpp v23, v23, v23 {ctl} row_mask:0xf bank_mask:0xf')
    a.e('s_mov_b32 exec_lo, 0x01010101', 's_mov_b32 exec_hi, 0x01010101', f'buffer_store_dwordx2 v[22:23], v24, {S4(SRD_D)}, s36 offen', 'k0_end:', 's_endpgm')

def main(out):
    a = Asm()
    if not SINGLE: gen_k0(a); a.flush_hist()
    gen_mega(a)
    info = {} if SINGLE else {'k0_kernel': (32, 0)}
    info[MEGA] = (256, 163840)
    ref = open(os.path.join(os.path.dirname(os.path.abspath(__file__)), '..', NAME + '.s.ref')).read().splitlines()
    hdr = [l for l in ref if l.startswith(';') and '@launch' not in l and 'Override launch' not in l and 'grid=ceil' not in l]
    if SINGLE: hdr += ['; @launch grid=(256,1,1) block=(512,1,1) lds=163840']
    else: hdr += [f'; @launch kernel={n} grid=(256,1,1) block=(512,1,1) lds={v[1]}' for n, v in info.items()]
    s = '\n'.join(hdr) + '\n; generated by gen/gen2.py\n.amdgcn_target "amdgcn-amd-amdhsa--gfx950"\n.text\n'
    if SINGLE: s += f'.globl {MEGA}\n.type {MEGA},@function\n'
    s += a.text() + '.section .rodata,"a"\n'
    for n, (vg, _) in info.items():
        s += f'''.p2align 6
.amdhsa_kernel {n}
  .amdhsa_next_free_vgpr {vg}
  .amdhsa_next_free_sgpr 102
  .amdhsa_accum_offset {vg}
  .amdhsa_group_segment_fixed_size 0
  .amdhsa_kernarg_size 88
  .amdhsa_user_sgpr_count 2
  .amdhsa_user_sgpr_kernarg_segment_ptr 1
  .amdhsa_system_sgpr_workgroup_id_x 1
.end_amdhsa_kernel
'''
    open(out, 'w').write(s)

if __name__ == '__main__':
    main(sys.argv[1])
```

```python
import sys, os, struct
sys.path.insert(0, os.path.dirname(os.path.abspath(__file__)))
from asmlib import *
import gen as G
from gen import (NAME, MB, XB, UB, f32, env, S4, srd, next_k, adv_s, sched, bundle, spread, lane_fields, tr128_addr, swz128, unpack4,
                 dma_w128, stats_finish, MF16, S_VAR, S_WAVE, S_LI, S_LJ, S_PHI, SRD_A, SRD_B, SRD_C, SRD_D, SRD_E, S_TI, S_TJ,
                 S_P, S_W, S_T0, S_K, S_BA, S_BB, S_OA, S_OB, S_LW, S_CNT, S_T1, S_T2, S_DELTA, S_CUR, S_G0,
                 P_X, P_WQKV, P_WO, P_W1, P_B1, P_W2, P_B2, P_OUT, P_WS)

LSTR = 32 * MB
O_OFF, X1_OFF, H_OFF, U_OFF, ST_OFF, RS_OFF = 0, 4 * MB, 8 * MB, 12 * MB, 20 * MB, 21 * MB
X2_OFF, FL_OFF, PR_OFF = 24 * MB, 28 * MB, 64 * MB
P_WL = 82
S_LWV, S_FLG = 57, 56
SC = 'sc0 sc1'
LDF = env('LDF', 'sc1')
PROF = env('PROF') == '1'
PV = 255
SINGLE = env('SINGLE', '1') == '1'
MEGA = NAME + '_kernel' if SINGLE else 'mega_kernel'
P_DB = 62
SPIN = 100000

def stamp(k):
    if not PROF: return []
    return ['s_memrealtime s[58:59]', 's_memtime s[100:101]', 's_waitcnt lgkmcnt(0)', f's_lshl_b32 s60, s{S_VAR}, 4', f's_add_u32 m0, s60, {k+1}', 's_nop 0', f'v_writelane_b32 v{PV}, s58, m0',
            's_add_u32 m0, m0, 32', 's_nop 0', f'v_writelane_b32 v{PV}, s100, m0']
G.stamp = lambda idx=None: []
G.cstamp = lambda idx: []

def tiles(a, LN, xshift):
    a.e(f's_lshr_b32 s{S_T0}, s2, 3')
    if LN == 8: a.e(f's_lshr_b32 s{S_LI}, s{S_T0}, 3', f's_and_b32 s{S_LJ}, s{S_T0}, 7')
    else: a.e(f's_mul_i32 s{S_LI}, s{S_T0}, {65536 // LN + 1}', f's_lshr_b32 s{S_LI}, s{S_LI}, 16', f's_mul_i32 s{S_LJ}, s{S_LI}, {LN}', f's_sub_u32 s{S_LJ}, s{S_T0}, s{S_LJ}')
    a.e(f's_lshl_b32 s{S_PHI}, s{S_LI}, 1', f's_add_u32 s{S_PHI}, s{S_PHI}, s{S_LJ}', f's_and_b32 s{S_PHI}, s{S_PHI}, 7',
        f's_and_b32 s{S_T0}, s2, 7', f's_lshr_b32 s{S_TI}, s{S_T0}, {xshift}', f's_lshl_b32 s{S_TI}, s{S_TI}, 2', f's_add_u32 s{S_TI}, s{S_TI}, s{S_LI}',
        f's_and_b32 s{S_TJ}, s{S_T0}, {(1 << xshift) - 1}', f's_mul_i32 s{S_TJ}, s{S_TJ}, {LN}', f's_add_u32 s{S_TJ}, s{S_TJ}, s{S_LJ}', *INITK)
INITK = [f's_mov_b32 s{S_P}, 7', f's_mov_b32 s{S_W}, -1']

def flag_idx(a, ph, hi, mul, lo):
    a.e(f's_lshl_b32 s{S_FLG}, s{S_VAR}, 10', f's_mul_i32 s{S_T0}, s{hi}, {mul}', f's_add_u32 s{S_FLG}, s{S_FLG}, s{S_T0}', f's_add_u32 s{S_FLG}, s{S_FLG}, s{lo}',
        f's_add_u32 s{S_FLG}, s{S_FLG}, {ph*256}', f's_lshl_b32 s{S_FLG}, s{S_FLG}, 7')

_n = [0]
def lab(p): _n[0] += 1; return f'{p}{_n[0]}'

def publish_pre(a):
    srd(a, SRD_E, P_WS, FL_OFF, 8 * 256 * 128)
    a.e('v_mov_b32 v136, 0', 'v_mov_b32 v137, 1', f's_cmp_eq_u32 s{S_LWV}, 0', f's_cselect_b32 s{SRD_E+2}, s{SRD_E+2}, 0')

def publish(a, vt=None):
    a.e('s_mov_b64 exec, 1', f'buffer_store_dword v137, v136, {S4(SRD_E)}, s{S_FLG} offen {SC}', 's_mov_b64 exec, -1')

def poll_setup(a, sr_, va, ph, dl, base_lines, n):
    srd(a, sr_, P_WS, FL_OFF, 8 * 256 * 128)
    a.e(*base_lines, f'v_min_u32 v{va}, {n-1}, v0', f'v_add_u32 v{va}, s{S_T0}, v{va}', f'v_max_i32 v{va}, 0, v{va}', f'v_lshlrev_b32 v{va}, 7, v{va}',
        f's_lshl_b32 s55, s{S_VAR}, 17', f's_add_u32 s55, s55, {(dl * 4 + ph) * 32768}')

def poll(a, sr_, va, vt):
    l = lab('poll')
    a.e(f's_mov_b32 s{S_CNT}, 0')
    a.loop([f'{l}:', f'buffer_load_dword v{vt}, v{va}, {S4(sr_)}, s55 offen {SC}', 's_waitcnt vmcnt(0)', f'v_cmp_eq_u32 vcc, 0, v{vt}',
            f's_add_u32 s{S_CNT}, s{S_CNT}, 1', f's_cmp_gt_u32 s{S_CNT}, {SPIN}', f's_cbranch_scc1 {l}d', f's_cbranch_vccnz {l}'])
    a.e(f'{l}d:')

def dma_groups(groups, lw_s):
    L = []
    for g in groups:
        L.append(f's_add_u32 m0, s{lw_s}, s{g["sg"]}')
        for (v, imm, st, ex) in g['dmas']:
            srdn, so, fl = (SRD_A, S_OA, LDF) if st == 'A' else (SRD_B, S_OB, '')
            if ex: L.append(f's_mov_b64 exec, {ex}')
            L.append(f'buffer_load_dwordx4 v{v}, {S4(srdn)}, s{so} offen offset:{imm} {fl} lds')
            if ex: L.append('s_mov_b64 exec, -1')
    return L

def issue(NK, NS, stage, base, stepA, stepB, gA, gW):
    L = next_k(NK)
    if gA: L += [f's_mul_i32 s{S_OA}, s{S_K}, {stepA}', f's_add_u32 s{S_OA}, s{S_OA}, s{S_BA}']
    if gW: L += [f's_mul_i32 s{S_OB}, s{S_K}, {stepB}', f's_add_u32 s{S_OB}, s{S_OB}, s{S_BB}']
    L += dma_groups(gA + gW, S_LW)
    L += [f's_add_u32 s{S_LW}, s{S_LW}, {stage}', f's_cmp_eq_u32 s{S_LW}, {base + NS*stage}', f's_cselect_b32 s{S_LW}, {base}, s{S_LW}']
    return L

def pre_w(a, NK, NS, AH, stage, base, stepB, gW):
    a.e(*INITK, f's_mov_b32 s{S_LW}, {base}')
    for s in range(AH): a.e(*issue(NK, NS, stage, base, 0, stepB, [], gW))

def l_loop(a, NK, NS, AH, stage, base, stepA, stepB, gA, gW, tail=0, hooks=()):
    nA = sum(len(g['dmas']) for g in gA); n = nA + sum(len(g['dmas']) for g in gW)
    iss = lambda: issue(NK, NS, stage, base, stepA, stepB, gA, gW)
    t0 = 0
    if gA:
        a.e(*INITK, f's_mov_b32 s{S_LW}, {base}')
        for s in range(AH): a.e(*issue(NK, NS, stage, base, stepA, stepB, gA, []))
        for t in range(AH - 1):
            a.e(f's_waitcnt vmcnt({(AH - 1 - t) * nA + t * n})', 's_barrier', *iss())
        t0 = AH - 1
    l = lab('ll')
    a.e(f's_mov_b32 s{S_CNT}, {NK - AH - t0 - len(hooks)}')
    a.loop([f'{l}:', f's_waitcnt vmcnt({(AH-1)*n})', 's_barrier'] + iss() + [f's_sub_u32 s{S_CNT}, s{S_CNT}, 1', f's_cmp_lg_u32 s{S_CNT}, 0', f's_cbranch_scc1 {l}'])
    for h in hooks:
        a.e(f's_waitcnt vmcnt({(AH-1)*n})', 's_barrier', *iss()); h(n)
    for j in range(AH - tail):
        a.e(f's_waitcnt vmcnt({(AH-1-j)*n + (8 if hooks else 0)})', 's_barrier')

def c_loop(a, NK, NS, stage, reads, mfmas, addr_regs, late, st0, peel=None, extra0=(), fin=None):
    adv = adv_s(NS, stage)
    advv = [f'v_add_u32 v{r}, s{S_DELTA}, v{r}' for r in addr_regs]
    a.e(f's_mov_b32 s{S_CUR}, 0', f's_mov_b32 s{S_CNT}, {NK - 1 - (1 if peel else 0)}', 's_barrier', *stamp(st0))
    a.e(*reads[0]); a.e(*adv)
    q0 = [Ins(x).wr for x in reads[0]]
    def it(pre=(), post=()):
        q = list(q0)
        L = sched(mfmas[0], bundle(reads[1], advv), q, 1)
        if not late: L.append('s_waitcnt lgkmcnt(0)'); q.clear()
        L += list(pre) + ['s_barrier'] + list(post) + sched(mfmas[1], spread(reads[0], adv), q, 1)
        assert q == q0
        return L
    if peel: a.e(*it(*peel))
    l = lab('cl')
    a.loop([f'{l}:'] + it() + [f's_sub_u32 s{S_CNT}, s{S_CNT}, 1', f's_cmp_lg_u32 s{S_CNT}, 0', f's_cbranch_scc1 {l}'])
    q = list(q0)
    a.e(*sched(mfmas[0], reads[1] + list(extra0), q, 1))
    if fin: a.e('s_waitcnt lgkmcnt(0)', *stamp(st0 + 1)); fin(mfmas[1])
    else: a.e(*sched(mfmas[1], [], q)); a.e('s_waitcnt lgkmcnt(0)', *stamp(st0 + 1))

S_LM, S_B0, S_B1 = 48, 49, 50
def c_direct(a, NK, NS, stage, reads, mf, addr_regs, DR, D, vaddr, init, st0, slots=None):
    R = NK // 8
    advv = lambda src: [f'v_add_u32 v{r}, {src}, v{r}' for r in addr_regs]
    def nk(t):
        p = t % 8
        L = []
        if p == 0 and t != 0: L += [f's_mov_b32 s{S_B0}, s{S_B1}', f's_add_u32 s{S_B1}, s{S_B1}, 32768', f's_cmp_eq_u32 s{S_B1}, s{S_T2}', f's_cselect_b32 s{S_B1}, s{S_BA}, s{S_B1}']
        return L + [f's_bitcmp1_b32 s{S_LM}, {p}', f's_cselect_b32 s{S_OA}, s{S_B1}, s{S_B0}', f's_add_u32 s{S_OA}, s{S_OA}, {p*4096}']
    ld = lambda slot, i: f'buffer_load_dwordx4 {vr(DR+16*slot+4*i,4)}, v{vaddr}, {S4(SRD_A)}, s{S_OA} offen offset:{1024*i} {LDF}'
    adv = [] if slots else adv_s(NS, stage)
    vq = []
    for sl in range(D):
        a.e(*nk(sl))
        for i in range(4 if sl < D - 1 else 2):
            a.e(ld(sl, i)); vq.append(Ins(ld(sl, i)).wr)
        if sl == 1: init(8)
    a.e(f's_mov_b32 s{S_CUR}, 0', f's_mov_b32 s{S_CNT}, {R - 1}', 's_barrier', *stamp(st0))
    a.e(*reads[0]); a.e(*adv)
    q0 = [Ins(x).wr for x in reads[0]]
    def mix(items, loads, pos):
        items = [list(x) for x in items]
        for l, p in zip(loads, pos): items[p] = items[p] + [l]
        return items
    def step(t, vq, generic):
        slot = t % D
        q = list(q0)
        final = not generic and t == NK - 1
        l0 = [ld((slot - 1) % D, 2), ld((slot - 1) % D, 3)] if generic or t - 1 + D < NK else []
        av = [] if final else advv(f's{S_DELTA}' if not slots else (slots[t + 1] - slots[t]) & 0xffffffff)
        L = sched(mf(0, DR + 16 * slot), mix(bundle(reads[1], av), l0, (2, 6)), q, 1, vq=vq)
        if final: return L + sched(mf(1, DR + 16 * slot + 8), [], q, 1, vq=vq)
        more = generic or t + D < NK
        it = [[r] for r in reads[0]]
        sc = (nk(t + D) if more else []) + adv
        for i, x in enumerate(sc): it[min(i // 2, len(it) - 1)].append(x)
        l1 = [ld(slot, 0), ld(slot, 1)] if more else []
        return L + ([] if slots else ['s_barrier']) + sched(mf(1, DR + 16 * slot + 8), mix(it, l1, (4, 7)), q, 1, vq=vq)
    if slots:
        for t in range(NK): a.e(*step(t, vq, False))
    else:
        v1 = list(vq); l = lab('cd')
        body = [f'{l}:']
        for t in range(8, 16): body += step(t, v1, True)
        assert v1 == vq
        a.loop(body + [f's_sub_u32 s{S_CNT}, s{S_CNT}, 1', f's_cmp_lg_u32 s{S_CNT}, 0', f's_cbranch_scc1 {l}'])
        for t in range(NK - 8, NK): a.e(*step(t, vq, False))
    a.e('s_waitcnt lgkmcnt(0)', *stamp(st0 + 1))

def direct_setup(a, NK):
    a.e(f's_lshl_b32 s{S_LM}, 0x303, s{S_PHI}', f's_lshr_b32 s{S_LM}, s{S_LM}, 8', f's_mov_b32 s{S_B0}, s{S_BA}', f's_add_u32 s{S_B1}, s{S_BA}, 32768',
        f's_add_u32 s{S_T2}, s{S_BA}, {NK*4096}')

def w_reads(regs):
    return [[f'ds_read_b64_tr_b16 {vr(16+16*h+4*n+2*q,2)}, v{regs[n]} offset:{h*4096+q*512}' for n in range(4) for q in range(2)] for h in range(2)]

def sel(a, d, ptr0, off0, ptr1, off1, nbytes): G.srd_sel(a, d, ptr0, off0, ptr1, off1, nbytes)

XT = 18432; ST1 = XT + 24576; SL = 3 * ST1; QKV = ST1; PITCH = 400; PB = 72 * PITCH
WO_SLOTS = [131072 + 8192 * i for i in range(4)] + [100608 + 8192 * i for i in range(3)] + [8192 * i for i in range(5)] + [QKV + 8192 * i for i in range(4)]
K4_BASE, K4_NS, K4_AH = 98304, 8, 6
K4_SCR = 90112
D = 4; DR = 120
PF1 = int(env('PF1', '0'), 0); CPRIO = int(env('CPRIO', '0'))
NPF = int(env('NPF', '0')); K0W = int(env('K0W', '0')); W1_K0 = K0W * 256 * 64 * 128
REUSE = int(env('REUSE', '0')); WARM0 = int(env('WARM0', '1')); PFT = int(env('PFT', '0')); PF3 = int(env('PF3', '0')); CODEPF = env('CODEPF', '0') == '1'; PF2 = env('PF2', '1') == '1'; LATEW = env('LATEW', '1') == '1'

def gen_mega(a):
    kn = 'mega'
    a.e('.p2align 8', f'{MEGA}:', 's_cmp_ge_u32 s2, 256', f's_cbranch_scc1 {kn}_end',
        's_load_dwordx16 s[64:79], s[0:1], 0', 's_load_dwordx2 s[80:81], s[0:1], 64', 's_load_dwordx2 s[84:85], s[0:1], 80', f's_load_dwordx2 s[{P_DB}:{P_DB+1}], s[0:1], 72',
        'v_lshrrev_b32 v1, 6, v0', 'v_and_b32 v0, 63, v0', f'v_readfirstlane_b32 s{S_WAVE}, v1', f's_mov_b32 s{S_VAR}, 0')
    if PROF: a.e(f'v_mov_b32 v{PV}, 0', *stamp(-1))
    a.e('v_mov_b32 v130, 0', 'v_mov_b32 v131, 0', 'v_mov_b32 v220, 0', 'v_mov_b32 v134, 0', f's_cmp_ge_u32 s{S_WAVE}, 4', f's_cbranch_scc1 L_start')

    ACC1 = 112
    def acc1(m, rt): return ACC1 + 36 * m + 4 * rt
    def k1_setup_c():
        tiles(a, 8, 1)
        lane_fields(a)
        tr128_addr(a, [8], XT, 21, 22)
        a.e(f's_lshl_b32 s{S_T0}, s{S_WAVE}, 5', f'v_xor_b32 v8, s{S_T0}, v8',
            'v_lshrrev_b32 v21, 1, v4', 'v_xor_b32 v21, v21, v5', 'v_lshlrev_b32 v21, 4, v21', 'v_lshlrev_b32 v22, 7, v4', 'v_add_u32 v9, v21, v22', 'v_xor_b32 v10, 64, v9',
            'v_and_b32 v21, 1, v4', f'v_mul_u32_u24 v21, {PB}, v21', 'v_lshrrev_b32 v22, 1, v4', f'v_mul_u32_u24 v22, {PITCH}, v22',
            'v_lshlrev_b32 v23, 3, v5', 'v_add3_u32 v11, v21, v22, v23', f's_add_u32 s{S_T0}, s{S_T0}, {QKV}',
            f'v_add_u32 v11, s{S_T0}, v11', 'v_lshlrev_b32 v12, 3, v4', f'v_add_u32 v12, {SL}, v12')
        for r in range(ACC1, ACC1 + 108, 2): a.e(f'v_mov_b64 {vr(r,2)}, 0')
    if CPRIO: a.e(f's_setprio {CPRIO}')
    if SINGLE:
        a.e(f's_lshl_b32 s{S_T0}, s2, 3', f's_lshl_b32 s{S_T1}, s{S_WAVE}, 1', f's_add_u32 s{S_T0}, s{S_T0}, s{S_T1}',
            'v_lshrrev_b32 v16, 5, v0', f'v_add_u32 v16, s{S_T0}, v16', 'v_lshlrev_b32 v17, 11, v16', 'v_and_b32 v18, 31, v0', 'v_lshl_add_u32 v17, v18, 4, v17',
            'v_lshlrev_b32 v16, 3, v16', f'v_add_u32 v16, {RS_OFF}, v16',
            f's_cmp_eq_u32 s{S_WAVE}, 0', 's_cselect_b32 s44, 0, -1', 'v_mov_b32 v24, s44', 'v_mov_b32 v25, s44', 'v_mov_b32 v26, s44', 'v_mov_b32 v27, s44',
            'v_lshrrev_b32 v19, 3, v0', 'v_lshlrev_b32 v19, 15, v19', 'v_and_b32 v20, 7, v0', 'v_lshl_add_u32 v19, v20, 4, v19', 'v_lshlrev_b32 v20, 4, v0',
            's_cselect_b64 vcc, -1, 0', 's_lshl_b32 s45, s2, 7', f's_add_u32 s45, s45, {FL_OFF}', 's_lshl_b32 s46, s2, 10', f's_add_u32 s46, s46, {ST_OFF}',
            f's_cmp_eq_u32 s{S_WAVE}, 0', 's_cselect_b32 s45, s45, s46', f's_add_u32 s46, s46, {LSTR}', f's_cmp_eq_u32 s{S_WAVE}, 2', 's_cselect_b32 s45, s46, s45',
            'v_cndmask_b32 v19, v20, v19, vcc', 's_waitcnt lgkmcnt(0)')
        srd(a, SRD_A, P_X, 0, XB)
        for c in range(4): a.e(f'buffer_load_dwordx4 {vr(32+4*c,4)}, v17, {S4(SRD_A)}, 0 offen offset:{512*c}')
        if WARM0:
            srd(a, SRD_D, P_WQKV, 0, 1024 * 3072 * 2)
            srd(a, SRD_E, P_WO, 0, 1024 * 1024 * 2)
            a.e(f's_lshl_b32 s47, s{S_WAVE}, 8', 's_add_u32 s47, s47, s2', 's_lshl_b32 s47, s47, 13', 'v_lshlrev_b32 v21, 7, v0', 'v_add_u32 v21, s47, v21', f'v_subrev_u32 v22, {1024*3072*2}, v21',
                f'buffer_load_dword v222, v21, {S4(SRD_D)}, 0 offen', f'buffer_load_dword v223, v22, {S4(SRD_E)}, 0 offen')
        srd(a, SRD_C, P_WS, 0, 64 * MB)
        srd(a, SRD_B, P_WS, 0, 0)
        a.e(f's_cmp_eq_u32 s{S_WAVE}, 3', 's_cbranch_scc1 C_nors', f'buffer_store_dwordx4 v[24:27], v19, {S4(SRD_C)}, s45 offen {SC}', 'C_nors:')
    k1_setup_c()
    a.e('s_waitcnt lgkmcnt(0)', f's_mov_b32 s{P_WL}, s{P_WS}', f's_mov_b32 s{P_WL+1}, s{P_WS+1}')
    if SINGLE:
        a.e('v_mov_b32 v28, 0', 'v_mov_b32 v29, 0', 'v_mov_b32 v31, 0x3f803f80', 's_and_b32 s44, s2, 3', 's_lshl_b32 s44, s44, 6', 'v_mov_b32 v220, s44', 'v_mov_b32 v221, 1', f's_cmp_eq_u32 s{S_WAVE}, 3', 's_cbranch_scc0 C_w1', f's_waitcnt vmcnt({2*WARM0})', 'C_w1:', f's_waitcnt vmcnt({1+2*WARM0})')
        for e in range(16): a.e(f'v_dot2c_f32_bf16 v28, v31, v{32+e}', f'v_dot2c_f32_bf16 v29, v{32+e}, v{32+e}')
        for ctl in ('quad_perm:[1,0,3,2]', 'quad_perm:[2,3,0,1]', 'row_half_mirror', 'row_mirror'):
            a.e(f'v_add_f32_dpp v28, v28, v28 {ctl} row_mask:0xf bank_mask:0xf', f'v_add_f32_dpp v29, v29, v29 {ctl} row_mask:0xf bank_mask:0xf')
        a.e('v_mov_b32 v30, v28', 'v_mov_b32 v31, v29', 'v_permlane16_swap_b32 v28, v30', 'v_permlane16_swap_b32 v29, v31', 'v_add_f32 v28, v28, v30', 'v_add_f32 v29, v29, v31',
            's_mov_b32 exec_lo, 1', 's_mov_b32 exec_hi, 1', f'buffer_store_dwordx2 v[28:29], v16, {S4(SRD_C)}, 0 offen {SC}', 's_mov_b64 exec, -1')
    a.e('C_top:'); a.flush_hist()
    reads = [[], []]; mf = [[], []]
    for h in range(2):
        F = 16 + 48 * h
        ra = [[f'ds_read_b64_tr_b16 {vr(F+4*m,2)}, v8 offset:{m*8192+h*4096}', f'ds_read_b64_tr_b16 {vr(F+4*m+2,2)}, v8 offset:{m*8192+h*4096+512}'] for m in range(3)]
        rb = [f'ds_read_b128 {vr(F+12+4*rt,4)}, v{9+h} offset:{rt*2048}' for rt in range(9)]
        reads[h] = ra[0] + [rb[0]] + ra[1] + ra[2] + rb[1:]
        mf[h] = [f'{MF16} {vr(acc1(m,rt),4)}, {vr(F+4*m,4)}, {vr(F+12+4*rt,4)}, {vr(acc1(m,rt),4)}' for rt in range(9) for m in range(3)]
    peel = None
    if SINGLE:
        a.e(f's_or_b32 s51, s{S_VAR}, s{S_WAVE}')
        peel = (['s_waitcnt vmcnt(0)'], ['s_cmp_lg_u32 s51, 0', 's_cbranch_scc1 C_nogate', 's_mov_b64 exec, 1', f'global_atomic_add v220, v221, s[{P_DB}:{P_DB+1}] sc1', 's_mov_b64 exec, -1', 'C_nogate:'])
    STR, CW = 224, 242
    def fold(rt, o):
        ms = [m for m in range(3) if not (m == 0 and rt == 0)]
        st = vr(STR + 2 * rt, 2); L = []
        for m in ms: L += [f'v_pk_fma_f32 {vr(acc1(m,rt)+e,2)}, {vr(CW+4*m+e,2)}, {st}, {vr(acc1(m,rt)+e,2)} op_sel_hi:[1,0,1] neg_lo:[0,1,0] neg_hi:[0,1,0]' for e in (0, 2)]
        for m in ms: L += [f'v_pk_mul_f32 {vr(acc1(m,rt)+e,2)}, {vr(acc1(m,rt)+e,2)}, {st} op_sel:[0,1] op_sel_hi:[1,1]' for e in (0, 2)]
        for i, m in enumerate(ms):
            d = acc1(m, rt); r = o + 2 * i
            L += [f'v_cvt_pk_bf16_f32 v{r}, v{d}, v{d+1}', f'v_cvt_pk_bf16_f32 v{r+1}, v{d+2}, v{d+3}', f'ds_write_b64 v11, {vr(r,2)} offset:{rt*8*PITCH+m*128}']
        return L
    def fin1(mfs):
        work = [f'v_mov_b32_dpp v{CW+4*m+r}, v{acc1(m,0)+r} row_newbcast:0 row_mask:0xf bank_mask:0xf' for m in range(3) for r in range(4)]
        ready = [len(work)]
        for rt in range(9): work += fold(rt, 16 + 6 * (rt % 8)); ready.append(len(work))
        done = 0
        for i, m in enumerate(mfs):
            a.e(m)
            rt = i // 3 - 1
            lim = ready[rt + 1] if rt >= 0 else 0
            n = min(lim - done, 7)
            if n > 0: a.e(*work[done:done + n]); done += n
        a.e('s_barrier')
        a.e(*work[done:])
    c_loop(a, 16, 3, ST1, reads, mf, [8, 9, 10], False, 0, peel, [f'ds_read_b64 {vr(STR+2*rt,2)}, v12 offset:{rt*128}' for rt in range(9)], fin1)
    a.e('attn:'); a.flush_hist()
    MK = 86
    srd(a, SRD_D, P_WL, O_OFF, XB)
    a.e(f's_lshr_b32 s{S_T1}, s{S_WAVE}, 1', f's_and_b32 s{S_T2}, s{S_WAVE}, 1',
        f's_mul_i32 s{S_T0}, s{S_T2}, {PB}', f's_add_u32 s{S_T0}, s{S_T0}, {QKV}', f's_lshl_b32 s{S_G0+5}, s{S_T1}, 4')
    a.e(f'v_add_u32 v16, s{S_G0+5}, v4', 'v_lshlrev_b32 v17, 4, v5', f'v_add_u32 v17, s{S_T0}, v17',
        f'v_mul_u32_u24 v18, {PITCH}, v16', 'v_add_u32 v8, v18, v17', f'v_add_u32 v10, {8*PITCH}, v8', 'v_add_u32 v8, 128, v8',
        'v_add_u32 v16, 16, v16', 'v_min_u32 v16, 71, v16', f'v_mul_u32_u24 v18, {PITCH}, v16', 'v_add3_u32 v9, v18, v17, 64', 'v_add_u32 v9, 64, v9')
    a.e('v_lshl_add_u32 v16, v5, 2, v6', f'v_add_u32 v16, s{S_G0+5}, v16', 'v_lshlrev_b32 v17, 4, v7', f'v_add_u32 v17, s{S_T0}, v17', 'v_add_u32 v17, 256, v17',
        f'v_mul_u32_u24 v18, {PITCH}, v16', 'v_add_u32 v14, v18, v17',
        'v_add_u32 v16, 16, v16', 'v_min_u32 v16, 71, v16', f'v_mul_u32_u24 v18, {PITCH}, v16', 'v_add_u32 v15, v18, v17')
    a.e('v_lshlrev_b32 v13, 4, v0', f's_lshl_b32 s{S_G0+6}, s{S_TI}, 2', f's_add_u32 s{S_G0+6}, s{S_G0+6}, s{S_T1}', f's_lshl_b32 s{S_G0+6}, s{S_G0+6}, 16',
        f's_lshl_b32 s{S_G0+7}, s{S_TJ}, 12', f's_add_u32 s{S_G0+6}, s{S_G0+6}, s{S_G0+7}', f's_lshl_b32 s{S_G0+7}, s{S_T2}, 10', f's_add_u32 s{S_G0+6}, s{S_G0+6}, s{S_G0+7}')
    a.e('v_lshlrev_b32 v16, 2, v5', 'v_sub_u32 v16, v16, v4', f's_or_b32 s{S_G0+7}, s{S_TI}, s{S_T1}', f's_cmp_eq_u32 s{S_G0+7}, 0', f's_cselect_b32 s{S_G0+7}, 0, -1')
    for k in range(8):
        a.e(f'v_add_u32 v17, {16 * (k >> 2) + (k & 3) - 1}, v16', f'v_cmp_gt_u32 s[{MK+2*k}:{MK+1+2*k}], 8, v17')
    for k in range(4): a.e(f's_and_b32 s{MK+2*k}, s{MK+2*k}, s{S_G0+7}')
    cs = (32 ** -0.5) * 1.4426950408889634
    a.e(f'v_mov_b32 v18, {f32(cs)}', 'v_mov_b32 v19, 0xff800000')
    a.e('s_waitcnt lgkmcnt(0)', 's_barrier')
    B = [32, 80]
    for hd in range(2):
        b = B[hd]; o = 64 * hd
        a.e(f'ds_read_b128 {vr(b,4)}, v10 offset:{o}', f'ds_read_b128 {vr(b+4,4)}, v8 offset:{o}', f'ds_read_b128 {vr(b+8,4)}, v9 offset:{o}')
    for hd in range(2):
        b = B[hd]; o = 64 * hd
        for dt in range(2): a.e(f'ds_read_b64_tr_b16 {vr(b+12+4*dt,2)}, v14 offset:{o+8*dt}', f'ds_read_b64_tr_b16 {vr(b+14+4*dt,2)}, v15 offset:{o+8*dt}')
    for hd in range(2):
        b = B[hd]
        a.e(f's_waitcnt lgkmcnt({11 - 3*hd})', f'{MF16} {vr(b+20,4)}, {vr(b+4,4)}, {vr(b,4)}, 0', f'{MF16} {vr(b+24,4)}, {vr(b+8,4)}, {vr(b,4)}, 0')
    def both(f):
        for x, y in zip(f(B[0]), f(B[1])): a.e(x, y)
    both(lambda b: [f'v_cndmask_b32 v{b+20+k}, v19, v{b+20+k}, s[{MK+2*k}:{MK+1+2*k}]' for k in range(8)])
    both(lambda b: [f'v_max3_f32 v{b+28}, v{b+20}, v{b+21}, v{b+22}', f'v_max3_f32 v{b+29}, v{b+23}, v{b+24}, v{b+25}',
                    f'v_max3_f32 v{b+28}, v{b+28}, v{b+26}, v{b+27}', f'v_max_f32 v{b+28}, v{b+28}, v{b+29}', f'v_mov_b32 v{b+29}, v{b+28}',
                    f'v_permlane16_swap_b32 v{b+28}, v{b+29}', f'v_max_f32 v{b+28}, v{b+28}, v{b+29}', f'v_mov_b32 v{b+29}, v{b+28}',
                    f'v_permlane32_swap_b32 v{b+28}, v{b+29}', f'v_max_f32 v{b+28}, v{b+28}, v{b+29}', f'v_mul_f32 v{b+28}, v18, v{b+28}'])
    both(lambda b: [f'v_fma_f32 v{b+20+k}, v{b+20+k}, v18, -v{b+28}' for k in range(8)])
    both(lambda b: [f'v_exp_f32 v{b+20+k}, v{b+20+k}' for k in range(8)])
    both(lambda b: [f'v_pk_add_f32 {vr(b+28,2)}, {vr(b+20,2)}, {vr(b+22,2)}', f'v_pk_add_f32 {vr(b+30,2)}, {vr(b+24,2)}, {vr(b+26,2)}',
                    f'v_pk_add_f32 {vr(b+28,2)}, {vr(b+28,2)}, {vr(b+30,2)}', f'v_add_f32 v{b+28}, v{b+28}, v{b+29}', f'v_mov_b32 v{b+29}, v{b+28}',
                    f'v_permlane16_swap_b32 v{b+28}, v{b+29}', f'v_add_f32 v{b+28}, v{b+28}, v{b+29}', f'v_mov_b32 v{b+29}, v{b+28}',
                    f'v_permlane32_swap_b32 v{b+28}, v{b+29}', f'v_add_f32 v{b+28}, v{b+28}, v{b+29}', f'v_rcp_f32 v{b+28}, v{b+28}'])
    both(lambda b: [f'v_pk_mul_f32 {vr(b+20+e,2)}, {vr(b+20+e,2)}, {vr(b+28,2)} op_sel_hi:[1,0]' for e in range(0, 8, 2)])
    both(lambda b: [f'v_cvt_pk_bf16_f32 v{b+32+e}, v{b+20+2*e}, v{b+21+2*e}' for e in range(4)])
    a.e('s_waitcnt lgkmcnt(0)')
    both(lambda b: [f'{MF16} {vr(b+36+4*dt,4)}, {vr(b+12+4*dt,4)}, {vr(b+32,4)}, 0' for dt in range(2)])
    both(lambda b: [f'v_cvt_pk_bf16_f32 v{b+e}, v{b+36+2*e}, v{b+37+2*e}' for e in range(4)])
    for hd in range(2): a.e(f'buffer_store_dwordx4 {vr(B[hd],4)}, v13, {S4(SRD_D)}, s{S_G0+6} offen offset:{2048*hd} {SC}')
    a.e(f's_cmp_ge_u32 s{S_WAVE}, 4', 's_cbranch_scc1 L_k1done')

    ACC = 48; RES = 96
    def acc2(t, b): return ACC + 16 * b + 4 * t
    a.e(f's_lshl_b32 s{S_T0}, s{S_TI}, 2', f's_add_u32 s{S_T0}, s{S_T0}, s{S_WAVE}', f's_lshl_b32 s{S_BA}, s{S_T0}, 16', f's_lshl_b32 s{S_T1}, s{S_T0}, 5',
        'v_lshlrev_b32 v13, 1, v4', f'v_add_u32 v13, s{S_T1}, v13',
        'v_lshlrev_b32 v12, 11, v13', 'v_lshl_add_u32 v12, v3, 4, v12', f's_lshl_b32 s{S_T0}, s{S_TJ}, 7', f'v_add_u32 v12, s{S_T0}, v12', 'v_lshlrev_b32 v14, 4, v0')
    srd(a, SRD_A, P_WL, O_OFF, XB)
    sel(a, SRD_C, P_X, 0, P_WS, X2_OFF, XB)
    sel(a, SRD_B, P_WS, 0, P_WS, LSTR, 0); a.e(f's_add_u32 s{SRD_B}, s{SRD_B}, {ST_OFF}', f's_addc_u32 s{SRD_B+1}, s{SRD_B+1}, 0', f's_mov_b32 s{SRD_B+2}, {16*2048*8}')
    tr128_addr(a, [8, 9, 10, 11], WO_SLOTS[0], 16, 17)
    a.e('v_add_u32 v16, v13, v2', 'v_lshlrev_b32 v16, 3, v16', f's_lshl_b32 s{S_T0}, s{S_TJ}, 14', f'v_add_u32 v112, s{S_T0}, v16',
        'v_lshrrev_b32 v17, 5, v0', 'v_lshlrev_b32 v17, 17, v17', 'v_add_u32 v113, v16, v17')
    a.e(f's_lshl_b32 s{S_T0}, s{S_WAVE}, 12', 'v_lshlrev_b32 v16, 8, v4', 'v_lshl_add_u32 v16, v5, 3, v16', f'v_add_u32 v16, s{S_T0}, v16',
        'v_and_b32 v17, 1, v4', 'v_bfe_u32 v18, v4, 2, 1', 'v_lshl_or_b32 v17, v18, 1, v17', 'v_lshl_add_u32 v114, v17, 5, v16',
        f's_lshl_b32 s{S_G0}, s{S_TJ}, 8', f's_lshl_b32 s{S_T1}, s{S_TI}, 2', f's_add_u32 s{S_G0}, s{S_G0}, s{S_T1}', f's_add_u32 s{S_G0}, s{S_G0}, s{S_WAVE}', f's_lshl_b32 s{S_G0}, s{S_G0}, 10')
    tr128_addr(a, [115], 0, 16, 17)
    a.e(f'v_add_u32 v115, s{S_T0}, v115')
    for t in range(1, 4): a.e(f's_add_u32 s{S_G0+t}, s{S_G0}, {t*65536}')
    for p in range(1, 8): a.e(f's_mov_b32 s{86+p}, {p*16384}')
    direct_setup(a, 16)
    poll_setup(a, SRD_E, 119, 0, 0, [f's_lshl_b32 s{S_T0}, s{S_TI}, 4'], 16)
    a.e('s_waitcnt vmcnt(0)', 's_barrier', *stamp(2))
    poll(a, SRD_E, 119, 16)
    a.e(*stamp(3))
    for b in range(2):
        for P in range(2): a.e(f'buffer_load_dwordx4 {vr(RES+8*b+4*P,4)}, v12, {S4(SRD_C)}, 0 offen offset:{b*2048+P*64} {LDF}')
    def init2(out):
        a.e(f's_waitcnt vmcnt({out})')
        for b in range(2):
            for P in range(2):
                r = RES + 8 * b + 4 * P
                a.e(f'v_permlane16_swap_b32 v{r}, v{r+2}', f'v_permlane16_swap_b32 v{r+1}, v{r+3}')
        for b in range(2):
            for P in range(2):
                r = RES + 8 * b + 4 * P
                a.e(*unpack4(r, r + 1, acc2(2 * P, b)), *unpack4(r + 2, r + 3, acc2(2 * P + 1, b)))
    mf2 = lambda h, bb: [f'{MF16} {vr(acc2(t,b),4)}, {vr(16+16*h+4*t,4)}, {vr(bb+4*b,4)}, {vr(acc2(t,b),4)}' for t in range(4) for b in range(2)]
    c_direct(a, 16, 0, 0, w_reads([8, 9, 10, 11]), mf2, [8, 9, 10, 11], DR, D, 14, init2, 4, slots=WO_SLOTS)
    a.e('s_barrier')
    srd(a, SRD_D, P_WL, X1_OFF, XB)
    srd(a, SRD_E, P_WL, H_OFF, XB)
    for b in range(2):
        d = acc2(0, b); T = 16 + 4 * b
        a.e(f'v_pk_add_f32 {vr(T,2)}, {vr(d,2)}, {vr(d+2,2)}', f'v_pk_mul_f32 {vr(T+2,2)}, {vr(d,2)}, {vr(d,2)}', f'v_pk_fma_f32 {vr(T+2,2)}, {vr(d+2,2)}, {vr(d+2,2)}, {vr(T+2,2)}')
        for e in range(4, 16, 2):
            a.e(f'v_pk_add_f32 {vr(T,2)}, {vr(T,2)}, {vr(d+e,2)}', f'v_pk_fma_f32 {vr(T+2,2)}, {vr(d+e,2)}, {vr(d+e,2)}, {vr(T+2,2)}')
        a.e(f'v_add_f32 v{24+b}, v{T}, v{T+1}', f'v_add_f32 v{26+b}, v{T+2}, v{T+3}')
    a.e('v_permlane16_swap_b32 v24, v25', 'v_permlane16_swap_b32 v26, v27', 'v_add_f32 v28, v24, v25', 'v_add_f32 v29, v26, v27',
        'v_mov_b32 v30, v28', 'v_mov_b32 v31, v29', 'v_permlane32_swap_b32 v28, v30', 'v_permlane32_swap_b32 v29, v31',
        'v_add_f32 v28, v28, v30', 'v_add_f32 v29, v29, v31', 'v_and_b32 v29, 0x7fffffff, v29',
        's_mov_b32 exec_hi, 0', f'buffer_store_dwordx2 v[28:29], v112, {S4(SRD_B)}, 0 offen {SC}', 's_mov_b64 exec, -1')
    for b in range(2):
        for t in range(4):
            r = RES + 8 * b + 2 * t; d = acc2(t, b)
            a.e(f'v_cvt_pk_bf16_f32 v{r}, v{d}, v{d+1}', f'v_cvt_pk_bf16_f32 v{r+1}, v{d+2}, v{d+3}')
    for b in range(2):
        for P in range(2):
            r = RES + 8 * b + 4 * P
            a.e(f'v_permlane16_swap_b32 v{r}, v{r+2}', f'v_permlane16_swap_b32 v{r+1}, v{r+3}')
    for t in range(1, 4): a.e(f'v_xor_b32 v{115+t}, {t << 5}, v115', f'v_xor_b32 v{120+t}, {t << 5}, v114')
    a.e('v_mov_b32 v120, v114', f's_mov_b32 s{S_CNT}, 0')
    body = ['k2_poll:'] + [f'buffer_load_dwordx2 {vr(32+2*p,2)}, v113, {S4(SRD_B)}, {"0" if p == 0 else f"s{86+p}"} offen {SC}' for p in range(8)]
    body += ['s_waitcnt vmcnt(0)', 'v_min3_i32 v16, v33, v35, v37', 'v_min3_i32 v17, v39, v41, v43', 'v_min3_i32 v16, v16, v45, v47',
             'v_min_i32 v16, v16, v17', 'v_cmp_gt_i32 vcc, 0, v16', f's_add_u32 s{S_CNT}, s{S_CNT}, 1', f's_cmp_gt_u32 s{S_CNT}, {SPIN}',
             's_cbranch_scc1 k2_pdone', 's_cbranch_vccnz k2_poll']
    a.loop(body)
    a.e('k2_pdone:', *stamp(6))
    for b in range(2):
        for P in range(2): a.e(f'buffer_store_dwordx4 {vr(RES+8*b+4*P,4)}, v12, {S4(SRD_D)}, 0 offen offset:{b*2048+P*64} {SC}')
    a.e('v_pk_add_f32 v[32:33], v[32:33], v[34:35]', 'v_pk_add_f32 v[36:37], v[36:37], v[38:39]', 'v_pk_add_f32 v[40:41], v[40:41], v[42:43]',
        'v_pk_add_f32 v[44:45], v[44:45], v[46:47]', 'v_pk_add_f32 v[32:33], v[32:33], v[36:37]', 'v_pk_add_f32 v[40:41], v[40:41], v[44:45]',
        'v_pk_add_f32 v[32:33], v[32:33], v[40:41]', 'v_mov_b32 v34, v32', 'v_mov_b32 v35, v33',
        'v_permlane32_swap_b32 v32, v34', 'v_permlane32_swap_b32 v33, v35', 'v_add_f32 v32, v32, v34', 'v_add_f32 v33, v33, v35')
    stats_finish(a, 32, 33, 36, True)
    a.e('v_mov_b32 v34, v32', 'v_mov_b32 v35, v33', 'v_permlane16_swap_b32 v32, v34', 'v_permlane16_swap_b32 v33, v35')
    for b in range(2):
        st = vr(32 + 2 * b, 2); d = acc2(0, b); o = 160 + 8 * b
        for e in range(0, 16, 2): a.e(f'v_pk_add_f32 {vr(d+e,2)}, {vr(d+e,2)}, {st} op_sel_hi:[1,0] neg_lo:[0,1] neg_hi:[0,1]')
        for e in range(0, 16, 2): a.e(f'v_pk_mul_f32 {vr(d+e,2)}, {vr(d+e,2)}, {st} op_sel:[0,1] op_sel_hi:[1,1]')
        for t in range(4):
            a.e(f'v_cvt_pk_bf16_f32 v{o+2*t}, v{d+4*t}, v{d+4*t+1}', f'v_cvt_pk_bf16_f32 v{o+2*t+1}, v{d+4*t+2}, v{d+4*t+3}',
                f'ds_write_b64 v{120+t}, {vr(o+2*t,2)} offset:{128*b}')
    a.e('s_waitcnt lgkmcnt(0)')
    for t in range(4): a.e(f'ds_read_b64_tr_b16 {vr(176+4*t,2)}, v{115+t}', f'ds_read_b64_tr_b16 {vr(178+4*t,2)}, v{115+t} offset:512')
    for t in range(4): a.e(f's_waitcnt lgkmcnt({6-2*t})', f'buffer_store_dwordx4 {vr(176+4*t,4)}, v14, {S4(SRD_E)}, s{S_G0+t} offen {SC}')
    a.e('s_cmp_ge_u32 s2, 224', 's_cbranch_scc1 C_k3skip')

    ACC3 = 80
    def acc3(tf, td): return ACC3 + 16 * td + 4 * tf
    tiles(a, 7, 2)
    a.e(f's_and_b32 s{S_G0+2}, s{S_WAVE}, 1', f's_lshr_b32 s{S_T2}, s{S_WAVE}, 1',
        f's_lshl_b32 s{S_T0}, s{S_TJ}, 8', f's_lshl_b32 s{S_G0}, s{S_G0+2}, 7', f's_add_u32 s{S_T0}, s{S_T0}, s{S_G0}',
        'v_lshlrev_b32 v16, 3, v5', f'v_add_u32 v16, s{S_T0}, v16')
    srd(a, SRD_C, P_B1, 0, 3584 * 2)
    for tf in range(4): a.e(f'buffer_load_dwordx2 {vr(144+2*tf,2)}, v16, {S4(SRD_C)}, 0 offen offset:{32*tf}')
    srd(a, SRD_D, P_WL, U_OFF, UB)
    a.e('v_lshl_add_u32 v17, v5, 3, v6', 'v_lshlrev_b32 v17, 8, v17', 'v_lshl_add_u32 v17, v7, 3, v17', 'v_lshl_or_b32 v18, v2, 2, v6', 'v_lshl_add_u32 v17, v18, 5, v17',
        f's_lshl_b32 s{S_T0}, s{S_G0+2}, 7', f's_add_u32 s{S_T0}, s{S_T0}, 16384', f'v_xor_b32 v18, s{S_T0}, v17', f's_lshl_b32 s{S_T0}, s{S_T2}, 13', f'v_add_u32 v12, s{S_T0}, v14')
    for t in range(4): a.e(f'v_xor_b32 v{8+t}, {t << 5}, v18')
    a.e('v_bfe_u32 v17, v4, 2, 1', 'v_lshlrev_b32 v17, 10, v17', 'v_lshl_add_u32 v17, v3, 8, v17', 'v_lshrrev_b32 v18, 3, v4', 'v_lshl_add_u32 v17, v18, 6, v17',
        'v_lshl_add_u32 v152, v7, 4, v17', 'v_add_u32 v153, 128, v152',
        f's_lshl_b32 s{S_T0}, s{S_TI}, 1', f's_add_u32 s{S_T0}, s{S_T0}, s{S_T2}', f's_mul_i32 s{S_T0}, s{S_T0}, 224',
        f's_lshl_b32 s{S_G0}, s{S_TJ}, 2', f's_add_u32 s{S_T0}, s{S_T0}, s{S_G0}', f's_lshl_b32 s{S_G0}, s{S_G0+2}, 1', f's_add_u32 s{S_T0}, s{S_T0}, s{S_G0}',
        f's_lshl_b32 s{S_G0}, s{S_T0}, 11', f's_add_u32 s{S_G0+1}, s{S_G0}, {112*2048}')
    a.e('s_waitcnt vmcnt(0)', 's_barrier', *stamp(7))
    for tf in range(4):
        a.e(*unpack4(144 + 2 * tf, 145 + 2 * tf, acc3(tf, 0)))
        for td in range(1, 4): a.e(f'v_mov_b64 {vr(acc3(tf,td),2)}, {vr(acc3(tf,0),2)}', f'v_mov_b64 {vr(acc3(tf,td)+2,2)}, {vr(acc3(tf,0)+2,2)}')
    reads = [[], []]; mf = [[], []]
    for h in range(2):
        F = 16 + 32 * h
        rd = lambda dst, av: [f'ds_read_b64_tr_b16 {vr(dst,2)}, v{av} offset:{h*8192}', f'ds_read_b64_tr_b16 {vr(dst+2,2)}, v{av} offset:{h*8192+1024}']
        for t in range(4): reads[h] += rd(F + 4 * t, 8 + t) + [f'ds_read_b128 {vr(F+16+4*t,4)}, v12 offset:{(2*t+h)*1024}']
        for tf, td in sorted([(tf, td) for tf in range(4) for td in range(4)], key=lambda x: (max(x), x)):
            mf[h].append(f'{MF16} {vr(acc3(tf,td),4)}, {vr(F+4*tf,4)}, {vr(F+16+4*td,4)}, {vr(acc3(tf,td),4)}')
    c_loop(a, 32, 5, 32768, reads, mf, list(range(8, 13)), True, 8)
    c1 = -2.0 * 0.7978845608028654 * 1.4426950408889634
    a.e(f'v_mov_b32 v16, {f32(c1)}', f'v_mov_b32 v17, {f32(c1 * 0.044715)}')
    k = 0
    for td in range(4):
        for P in range(2):
            d = acc3(2 * P, td); T = 24 + 16 * (k & 1); k += 1
            O = 160 + 4 * k
            for e in range(0, 8, 2): a.e(f'v_pk_mul_f32 {vr(T+e,2)}, {vr(d+e,2)}, {vr(d+e,2)}')
            for e in range(0, 8, 2): a.e(f'v_pk_fma_f32 {vr(T+e,2)}, {vr(T+e,2)}, v[16:17], v[16:17] op_sel:[0,1,0] op_sel_hi:[1,1,0]')
            for e in range(0, 8, 2): a.e(f'v_pk_mul_f32 {vr(T+e,2)}, {vr(T+e,2)}, {vr(d+e,2)}')
            for e in range(8): a.e(f'v_exp_f32 v{T+e}, v{T+e}')
            for e in range(0, 8, 2): a.e(f'v_pk_add_f32 {vr(T+e,2)}, {vr(T+e,2)}, 1.0 op_sel_hi:[1,0]')
            for e in range(8): a.e(f'v_rcp_f32 v{T+e}, v{T+e}')
            for e in range(0, 8, 2): a.e(f'v_pk_mul_f32 {vr(T+e,2)}, {vr(T+e,2)}, {vr(d+e,2)}')
            for e in range(4): a.e(f'v_cvt_pk_bf16_f32 v{O+e}, v{T+2*e}, v{T+2*e+1}')
            a.e(f'v_permlane16_swap_b32 v{O}, v{O+2}', f'v_permlane16_swap_b32 v{O+1}, v{O+3}')
            a.e(f'buffer_store_dwordx4 {vr(O,4)}, v{152+(td&1)}, {S4(SRD_D)}, s{S_G0+(td>>1)} offen offset:{2048*P} {SC}')
    a.e('C_k3skip:'); a.flush_hist()

    def acc4(aa, n): return ACC + 8 * n + 4 * aa
    tiles(a, 8, 2)
    a.e(f's_lshl_b32 s{S_T0}, s{S_TJ}, 6', f'v_add_u32 v13, s{S_T0}, v4', 'v_lshlrev_b32 v12, 11, v13', 'v_lshl_add_u32 v12, v5, 4, v12',
        f's_lshl_b32 s{S_T0}, s{S_TI}, 8', f's_lshl_b32 s{S_T1}, s{S_WAVE}, 6', f's_add_u32 s{S_T0}, s{S_T0}, s{S_T1}',
        f'v_add_u32 v12, s{S_T0}, v12', 'v_lshlrev_b32 v13, 1, v13', 'v_lshlrev_b32 v14, 4, v0',
        f's_lshl_b32 s{S_BA}, s{S_TI}, 2', f's_add_u32 s{S_BA}, s{S_BA}, s{S_WAVE}', f's_mul_i32 s{S_BA}, s{S_BA}, {56*4096}',
        's_mov_b32 s45, 32768', 's_mov_b32 s46, 65536', 's_mov_b32 s47, 98304')
    so = ['0', 's45', 's46', 's47']
    srd(a, SRD_A, P_WL, U_OFF, UB)
    srd(a, SRD_C, P_WL, X1_OFF, XB)
    srd(a, SRD_B, P_B2, 0, 4096)
    for n in range(4): a.e(f'buffer_load_ushort v{RES+16+2*n}, v13, {S4(SRD_B)}, 0 offen offset:{32*n}')
    tr128_addr(a, [8, 9, 10, 11], K4_BASE, 16, 17)
    direct_setup(a, 56)
    a.e('v_lshlrev_b32 v222, 3, v0', f's_lshl_b32 s{S_T0}, s{S_WAVE}, 9', f's_add_u32 s{S_T0}, s{S_T0}, {K4_SCR}', f'v_add_u32 v223, s{S_T0}, v222')
    poll_setup(a, SRD_E, 15, 2, 0, [f's_lshl_b32 s{S_T0}, s{S_TI}, 5'], 28)
    a.e('s_waitcnt vmcnt(0)', 's_barrier', *stamp(10))
    if PF2:
        a.e('s_cmp_lt_u32 s2, 224', 's_cbranch_scc1 C_nopf', f's_cmp_lg_u32 s{S_VAR}, 0', 's_cbranch_scc1 C_nopf')
        srd(a, SRD_D, P_W2, 0, 3584 * 2048 * 2)
        a.e(f's_sub_u32 s{S_T0}, s2, 224', f's_lshl_b32 s{S_T0}, s{S_T0}, 2', f's_add_u32 s{S_T0}, s{S_T0}, s{S_WAVE}', f's_lshl_b32 s{S_T0}, s{S_T0}, 13', 'v_lshlrev_b32 v17, 7, v0')
        for j in range(14):
            a.e(f'buffer_load_dword v18, v17, {S4(SRD_D)}, s{S_T0} offen', f's_add_u32 s{S_T0}, s{S_T0}, {128*8192}', *(['s_waitcnt vmcnt(1)'] if j else []))
        a.e('C_nopf:')
    poll(a, SRD_E, 15, 16)
    a.e(*stamp(11))
    for n in range(4): a.e(f'buffer_load_dwordx4 {vr(RES+4*n,4)}, v12, {S4(SRD_C)}, {so[n]} offen {LDF}')
    sel(a, SRD_E, P_WS, X2_OFF, P_OUT, 0, XB)
    srd(a, SRD_B, P_WS, LSTR + RS_OFF, 8 * 2048 * 8)
    def init4(out):
        a.e(f's_waitcnt vmcnt({out})')
        for n in range(4):
            a.e(f'v_lshlrev_b32 v{RES+16+2*n}, 16, v{RES+16+2*n}')
            a.e(*unpack4(RES + 4 * n, RES + 4 * n + 1, acc4(0, n)), *unpack4(RES + 4 * n + 2, RES + 4 * n + 3, acc4(1, n)))
            for e in range(0, 8, 2): a.e(f'v_pk_add_f32 {vr(acc4(0,n)+e,2)}, {vr(acc4(0,n)+e,2)}, {vr(RES+16+2*n,2)} op_sel_hi:[1,0]')
    mf4 = lambda h, b: [f'{MF16} {vr(acc4(aa,n),4)}, {vr(b+4*aa,4)}, {vr(16+16*h+4*n,4)}, {vr(acc4(aa,n),4)}' for n in range(4) for aa in range(2)]
    c_direct(a, 56, K4_NS, 8192, w_reads([8, 9, 10, 11]), mf4, [8, 9, 10, 11], DR, D, 14, init4, 12)
    def st4():
        for n in range(4):
            for e in range(4): a.e(f'v_cvt_pk_bf16_f32 v{RES+4*n+e}, v{acc4(0,n)+2*e}, v{acc4(0,n)+2*e+1}')
            a.e(f'buffer_store_dwordx4 {vr(RES+4*n,4)}, v12, {S4(SRD_E)}, {so[n]} offen {SC}')
    a.e(f's_cmp_eq_u32 s{S_VAR}, 0', 's_cbranch_scc1 C_st')
    st4()
    a.e('s_branch C_end', 'C_st:', 's_nop 7')
    for n in range(4):
        d = acc4(0, n); T = 16 + 4 * n
        a.e(f'v_pk_add_f32 {vr(T,2)}, {vr(d,2)}, {vr(d+2,2)}', f'v_pk_mul_f32 {vr(T+2,2)}, {vr(d,2)}, {vr(d,2)}', f'v_pk_fma_f32 {vr(T+2,2)}, {vr(d+2,2)}, {vr(d+2,2)}, {vr(T+2,2)}')
        for e in (4, 6): a.e(f'v_pk_add_f32 {vr(T,2)}, {vr(T,2)}, {vr(d+e,2)}', f'v_pk_fma_f32 {vr(T+2,2)}, {vr(d+e,2)}, {vr(d+e,2)}, {vr(T+2,2)}')
        a.e(f'v_add_f32 v{32+n}, v{T}, v{T+1}', f'v_add_f32 v{36+n}, v{T+2}, v{T+3}')
    for b in (32, 36): a.e(f'v_permlane16_swap_b32 v{b}, v{b+1}', f'v_permlane16_swap_b32 v{b+2}, v{b+3}')
    for b in (32, 36): a.e(f'v_add_f32 v{b}, v{b}, v{b+1}', f'v_add_f32 v{b+2}, v{b+2}, v{b+3}')
    a.e('v_permlane32_swap_b32 v32, v34', 'v_permlane32_swap_b32 v36, v38', 'v_add_f32 v40, v32, v34', 'v_add_f32 v41, v36, v38',
        'ds_write_b64 v223, v[40:41]')
    st4()
    a.e('s_waitcnt lgkmcnt(0)', 's_barrier',
        f's_cmp_lg_u32 s{S_WAVE}, 0', 's_cbranch_scc1 C_nost',
        'ds_read_b64 v[44:45], v223 offset:512', 'ds_read_b64 v[46:47], v223 offset:1024', 'ds_read_b64 v[18:19], v223 offset:1536',
        f's_lshl_b32 s{S_T0}, s{S_TI}, 14', f's_lshl_b32 s{S_T1}, s{S_TJ}, 9', f's_add_u32 s{S_T0}, s{S_T0}, s{S_T1}', 's_waitcnt lgkmcnt(0)',
        'v_pk_add_f32 v[40:41], v[40:41], v[44:45]', 'v_pk_add_f32 v[46:47], v[46:47], v[18:19]', 'v_pk_add_f32 v[40:41], v[40:41], v[46:47]',
        f'buffer_store_dwordx2 v[40:41], v222, {S4(SRD_B)}, s{S_T0} offen {SC}', 'C_nost:', 's_nop 1')
    k1_setup_c()
    a.e('s_waitcnt vmcnt(0)', 's_barrier', *stamp(14))
    a.e(f's_mov_b32 s{S_VAR}, 1', f's_add_u32 s{P_WL}, s{P_WS}, {0 if REUSE else LSTR}', f's_addc_u32 s{P_WL+1}, s{P_WS+1}, 0', 's_branch C_top')
    a.e('C_end:'); dump(a)
    a.e('s_endpgm')

    gx = dict(sg=S_G0, dmas=[(8 + i, 1024 * i, 'A', None) for i in range(4)])
    gw = [dict(sg=S_G0 + 2 + m, dmas=[(13 + 2 * m, 0, 'B', None), (14 + 2 * m, 1024, 'B', None)]) for m in range(3)]
    gh = dict(sg=S_G0 + 1, dmas=[(12, 0, 'A', 's[52:53]')])
    def k1_setup_l(layer):
        tiles(a, 8, 1)
        a.e(f's_mov_b32 s{S_T2}, s{S_LWV}')
        dma_w128(a, [13, 14], 6144, swz128(a), 16, 2, 3, 4)
        a.e('v_add_u32 v15, 2048, v13', 'v_add_u32 v16, 2048, v14', 'v_add_u32 v17, 4096, v13', 'v_add_u32 v18, 4096, v14',
            f's_lshl_b32 s{S_G0+2}, s{S_T2}, 11', f's_add_u32 s{S_G0+2}, s{S_G0+2}, {XT}', f's_add_u32 s{S_G0+3}, s{S_G0+2}, 8192', f's_add_u32 s{S_G0+4}, s{S_G0+2}, 16384',
            f's_lshl_b32 s{S_BB}, s{S_TJ}, 7')
        if layer == 0: a.e('s_waitcnt lgkmcnt(0)')
        srd(a, SRD_B, P_WQKV, 0, 1024 * 3072 * 2)
        pre_w(a, 16, 3, 2, ST1, 0, 64 * 6144, gw)
        def xaddr(v, comp):
            a.e('v_lshrrev_b32 v2, 3, v0', f'v_add_u32 v2, s{S_T0}, v2', 'v_bfe_u32 v3, v2, 1, 3', 'v_and_b32 v4, 7, v0', 'v_xor_b32 v3, v3, v4', 'v_lshlrev_b32 v3, 4, v3',
                f'v_add_u32 v2, s{S_T1}, v2', 'v_max_i32 v2, 0, v2', 'v_lshlrev_b32 v2, 11, v2', f'v_add_u32 v{v}, v2, v3')
            if comp: a.e(f'v_subrev_u32 v{v}, {comp}, v{v}')
        a.e(f's_lshl_b32 s{S_T1}, s{S_TI}, 7', f's_sub_u32 s{S_T1}, s{S_T1}, 16')
        for i in range(2):
            a.e(f's_lshl_b32 s{S_T0}, s{S_T2}, 5', f's_add_u32 s{S_T0}, s{S_T0}, {16+8*i}')
            xaddr(8 + i, 1024 * i)
            a.e(f'v_add_u32 v{10+i}, {16*2048-2048}, v{8+i}')
        a.e(f's_lshl_b32 s{S_T0}, s{S_T2}, 3'); xaddr(12, 0)
        a.e(f's_lshl_b32 s{S_G0}, s{S_T2}, 12', f's_add_u32 s{S_G0}, s{S_G0}, 2048', f's_lshl_b32 s{S_G0+1}, s{S_T2}, 10', f's_mov_b32 s{S_BA}, 0',
            f's_cmp_eq_u32 s{S_T2}, 0', 's_cselect_b32 s52, 0xffffff00, -1', 's_mov_b32 s53, -1')
        a.e('v_mov_b32 v20, 0x3f803f80', 'v_mov_b32 v21, v20', 'v_mov_b32 v22, v20', 'v_mov_b32 v23, v20', 'v_lshlrev_b32 v24, 4, v0', f'v_add_u32 v25, {2*ST1}, v24',
            's_mov_b64 exec, 0xff', 'ds_write_b128 v24, v[20:23]', f'ds_write_b128 v24, v[20:23] offset:{ST1}', 'ds_write_b128 v25, v[20:23]', 's_mov_b64 exec, -1')
        if layer == 0: srd(a, SRD_A, P_X, 0, XB)
        else: srd(a, SRD_A, P_WS, X2_OFF, XB)
        srd(a, SRD_D, P_WS, layer * LSTR + RS_OFF, 2048 * 8 if SINGLE and layer == 0 else 8 * 2048 * 8)
        a.e(f's_lshl_b32 s{S_T0}, s{S_T2}, 6', f'v_add_u32 v26, s{S_T0}, v0', 'v_min_u32 v26, 143, v26', f'v_add_u32 v27, s{S_T1}, v26', 'v_max_i32 v27, 0, v27',
            'v_lshlrev_b32 v27, 3, v27', 'v_lshlrev_b32 v26, 3, v26', f'v_add_u32 v26, {SL}, v26', 's_waitcnt lgkmcnt(0)')
    a.e('L_start:'); a.flush_hist()
    a.e(f's_sub_u32 s{S_LWV}, s{S_WAVE}, 4', 'v_and_b32 v134, 3, v0', 'v_lshlrev_b32 v134, 6, v134')
    k1_setup_l(0)
    a.e(f's_mov_b32 s{P_WL}, s{P_WS}', f's_mov_b32 s{P_WL+1}, s{P_WS+1}')
    a.e('L_top:'); a.flush_hist()
    flag_idx(a, 0, S_TI, 16, S_TJ)
    srd(a, SRD_E, P_W1, 0, 2048 * 3584 * 2)
    a.e(f's_lshl_b32 s54, s2, 2', f's_add_u32 s54, s54, s{S_LWV}', f's_mul_i32 s54, s54, {NPF*128}', f's_add_u32 s54, s54, {W1_K0}')
    gl = f'global_load_dword v29, v134, s[{P_DB}:{P_DB+1}] {SC}'
    def h_gate(n):
        if SINGLE: a.e(gl)
    def h_fetch(n):
        l = lab('st')
        if SINGLE:
            a.e(f's_cmp_lg_u32 s{S_VAR}, 0', f's_cbranch_scc1 {l}g', f's_waitcnt vmcnt({n})', 's_mov_b32 s61, 0')
            a.loop([f'{l}p:', 'v_cmp_gt_u32 vcc, 64, v29', 's_add_u32 s61, s61, 1', f's_cmp_gt_u32 s61, {SPIN}', f's_cbranch_scc1 {l}g', f's_cbranch_vccz {l}g', gl, 's_waitcnt vmcnt(0)', f's_branch {l}p'])
            a.e(f'{l}g:')
        for p in range(8):
            if p: a.e(f's_mov_b32 s{S_T0}, {p*16384}')
            a.e(f'buffer_load_dwordx2 {vr(30+2*p,2)}, v27, {S4(SRD_D)}, {"0" if p == 0 else f"s{S_T0}"} offen {LDF}')
    def h_fin(n):
        a.e(f's_waitcnt vmcnt({n})', 'v_pk_add_f32 v[30:31], v[30:31], v[32:33]', 'v_pk_add_f32 v[34:35], v[34:35], v[36:37]', 'v_pk_add_f32 v[38:39], v[38:39], v[40:41]',
            'v_pk_add_f32 v[42:43], v[42:43], v[44:45]', 'v_pk_add_f32 v[30:31], v[30:31], v[34:35]', 'v_pk_add_f32 v[38:39], v[38:39], v[42:43]',
            'v_pk_add_f32 v[30:31], v[30:31], v[38:39]')
        stats_finish(a, 30, 31, 32, False)
        a.e('ds_write_b64 v26, v[30:31]', 's_waitcnt lgkmcnt(0)')
    HK = (h_gate, h_fetch)
    a.e(f's_cmp_ge_u32 s{S_LWV}, 2', 's_cbranch_scc1 L_k1B')
    l_loop(a, 16, 3, 2, ST1, 0, 128, 64 * 6144, [gh, gx], gw, tail=1, hooks=HK)
    a.e('s_branch L_k1t', 'L_k1B:'); a.flush_hist()
    l_loop(a, 16, 3, 2, ST1, 0, 128, 64 * 6144, [gx], gw, tail=1, hooks=HK)
    a.e('L_k1t:'); a.flush_hist()
    h_fin(0)
    a.e(f's_mov_b32 s{S_T2}, s{S_LWV}')
    dma_w128(a, [130, 131], 2048, swz128(a), 16, 2, 3, 4)
    srd(a, SRD_B, P_WO, 0, 1024 * 1024 * 2)
    a.e(*INITK, f's_lshl_b32 s{S_G0+8}, s{S_LWV}, 11')
    def wo(t0, t1):
        for t in range(t0, t1):
            a.e(*next_k(16), f's_lshl_b32 s{S_OB}, s{S_K}, 17', f's_add_u32 s{S_OB}, s{S_OB}, s{S_BB}', f's_add_u32 m0, s{S_G0+8}, {WO_SLOTS[t]}',
                f'buffer_load_dwordx4 v130, {S4(SRD_B)}, s{S_OB} offen lds', f'buffer_load_dwordx4 v131, {S4(SRD_B)}, s{S_OB} offen offset:1024 lds')
    wo(0, 4)
    def pf3(j):
        if PF3 > j: a.e(f's_add_u32 s{S_T0}, s54, {j*8*MB}', f'buffer_load_dword v223, v132, {S4(SRD_E)}, s{S_T0} offen')
    if PF3:
        a.e(f's_cmp_eq_u32 s{S_VAR}, 0', f's_cselect_b32 s{SRD_E+2}, s{SRD_E+2}, 0', 's_lshl_b32 s54, s2, 2', f's_add_u32 s54, s54, s{S_LWV}', 's_lshl_b32 s54, s54, 13',
            f's_add_u32 s54, s54, {W1_K0}', 'v_lshlrev_b32 v132, 7, v0')
    pf3(0)
    x = 1 if PF3 else 0
    if PFT:
        srd(a, SRD_C, P_W2, 0, 3584 * 2048 * 2)
        a.e(f's_cmp_eq_u32 s{S_VAR}, 0', f's_cselect_b32 s{SRD_E+2}, s{SRD_E+2}, 0', f's_cselect_b32 s{SRD_C+2}, s{SRD_C+2}, 0',
            's_lshr_b32 s54, s2, 3', 's_lshl_b32 s54, s54, 2', f's_add_u32 s54, s54, s{S_LWV}', 's_lshl_b32 s54, s54, 18', 'v_lshlrev_b32 v132, 12, v0', 'v_add_u32 v132, s54, v132',
            f'v_subrev_u32 v133, {16*MB}, v132', f'buffer_load_dword v223, v132, {S4(SRD_E)}, 0 offen', f'buffer_load_dword v222, v133, {S4(SRD_C)}, 0 offen')
        x += 2
    a.e(f's_waitcnt vmcnt({8+x})', 's_barrier')
    wo(4, 7)
    lane_fields(a)
    a.e('s_waitcnt lgkmcnt(0)', 's_barrier')
    pf3(1)
    wo(7, 12)
    a.e('s_branch attn')
    a.e('L_k1done:'); a.flush_hist()
    publish_pre(a)
    a.e('s_waitcnt vmcnt(0)', 's_barrier')
    publish(a, 2)
    wo(12, 16)
    flag_idx(a, 1, S_TJ, 16, S_TI)
    a.e('s_waitcnt vmcnt(0)', 's_barrier')
    g4 = [dict(sg=S_G0 + 1, dmas=[(9, 0, 'B', None), (10, 1024, 'B', None)])]
    def k4_setup_l():
        tiles(a, 8, 2)
        a.e(f's_mov_b32 s{S_T2}, s{S_LWV}', f's_lshl_b32 s{S_G0+1}, s{S_T2}, 11')
        dma_w128(a, [9, 10], 4096, swz128(a), 16, 2, 3, 4)
        a.e(f's_lshl_b32 s{S_BB}, s{S_TJ}, 7')
        srd(a, SRD_B, P_W2, 0, 3584 * 2048 * 2)
    a.e('s_cmp_ge_u32 s2, 224', 's_cbranch_scc1 L_k3skip')
    tiles(a, 7, 2)
    a.e(f's_lshl_b32 s{S_G0}, s{S_LWV}, 12', f's_add_u32 s{S_G0+1}, s{S_G0}, 16384', 'v_lshlrev_b32 v8, 4, v0', f'v_add_u32 v13, {65536-2048}, v8',
        'v_lshrrev_b32 v2, 4, v0', 'v_lshlrev_b32 v3, 1, v2', 'v_and_b32 v4, 15, v0', 'v_xor_b32 v3, v3, v4', 'v_lshlrev_b32 v3, 4, v3',
        f's_lshl_b32 s{S_T0}, s{S_LWV}, 4', f'v_add_u32 v2, s{S_T0}, v2', f's_mov_b32 s{S_T0}, 7168', f'v_mul_lo_u32 v2, v2, s{S_T0}',
        'v_add_u32 v9, v2, v3', 'v_xor_b32 v3, 128, v3', 'v_add_u32 v11, v2, v3',
        f'v_add_u32 v10, {4*7168-1024}, v9', f'v_add_u32 v12, {3*(4*7168-1024)}, v11', f'v_add_u32 v11, {2*(4*7168-1024)}, v11',
        f's_lshl_b32 s{S_BA}, s{S_TI}, 2', f's_add_u32 s{S_BA}, s{S_BA}, s{S_LWV}', f's_lshl_b32 s{S_BA}, s{S_BA}, 17', f's_lshl_b32 s{S_BB}, s{S_TJ}, 8')
    srd(a, SRD_A, P_WL, H_OFF, XB)
    srd(a, SRD_B, P_W1, 0, 2048 * 3584 * 2)
    g3a = [dict(sg=S_G0, dmas=[(8 if i < 2 else 13, 1024 * i, 'A', None) for i in range(4)])]
    g3w = [dict(sg=S_G0 + 1, dmas=[(9 + i, 1024 * i, 'B', None) for i in range(4)])]
    poll_setup(a, SRD_C, 14, 1, 0, [f's_lshl_b32 s{S_T0}, s{S_TI}, 5'], 32)
    a.e('s_barrier')
    if not LATEW: pre_w(a, 32, 5, 3, 32768, 0, 64 * 7168, g3w)
    a.e('s_barrier')
    publish(a, 2)
    if LATEW: pre_w(a, 32, 5, 3, 32768, 0, 64 * 7168, g3w)
    flag_idx(a, 2, S_TI, 32, S_TJ)
    poll(a, SRD_C, 14, 15)
    l_loop(a, 32, 5, 3, 32768, 0, 2048, 64 * 7168, g3a, g3w)
    k4_setup_l()
    a.e('s_branch L_k4', 'L_k3skip:'); a.flush_hist()
    k4_setup_l()
    a.e('s_barrier')
    a.e('L_k4:'); a.flush_hist()
    pre_w(a, 56, K4_NS, K4_AH, 8192, K4_BASE, 64 * 4096, g4)
    a.e('s_barrier')
    publish(a, 2)
    flag_idx(a, 3, S_TJ, 8, S_TI)
    l_loop(a, 56, K4_NS, K4_AH, 8192, K4_BASE, 0, 64 * 4096, [], g4)
    a.e(f's_cmp_lg_u32 s{S_VAR}, 0', 's_cbranch_scc1 L_end')
    k1_setup_l(1)
    poll_setup(a, SRD_C, 28, 3, 0, [f's_lshl_b32 s{S_T0}, s{S_TI}, 4', f's_sub_u32 s{S_T0}, s{S_T0}, 8'], 24)
    a.e('s_barrier', 's_barrier')
    publish(a, 2)
    poll(a, SRD_C, 28, 29)
    a.e(f's_mov_b32 s{S_VAR}, 1', f's_add_u32 s{P_WL}, s{P_WS}, {0 if REUSE else LSTR}', f's_addc_u32 s{P_WL+1}, s{P_WS+1}, 0', 's_branch L_top')
    a.e('L_end:', f'{kn}_end:', 's_endpgm')

def dump(a):
    if not PROF: return
    a.e('s_waitcnt vmcnt(0)', *stamp(14), f's_cmp_lg_u32 s{S_WAVE}, 0', 's_cbranch_scc1 nodump', 's_lshl_b32 s58, s2, 8', f's_add_u32 s58, s58, {PR_OFF}',
        'v_lshlrev_b32 v254, 2, v0', 'v_add_u32 v254, s58, v254', f'global_store_dword v254, v{PV}, s[{P_WS}:{P_WS+1}]', 'nodump:')

def gen_k0(a):
    a.e('.p2align 8', 'k0_kernel:', 's_cmp_ge_u32 s2, 256', 's_cbranch_scc1 k0_end',
        's_load_dwordx16 s[64:79], s[0:1], 0', 's_load_dwordx2 s[84:85], s[0:1], 80',
        'v_lshrrev_b32 v1, 6, v0', 'v_lshlrev_b32 v20, 4, v0', 'v_and_b32 v0, 63, v0', f'v_readfirstlane_b32 s{S_WAVE}, v1',
        's_lshl_b32 s30, s2, 3', f's_add_u32 s30, s30, s{S_WAVE}',
        's_lshl_b32 s31, s30, 11', 'v_lshlrev_b32 v2, 5, v0',
        's_lshl_b32 s32, s2, 2', f's_and_b32 s33, s{S_WAVE}, 3', 's_add_u32 s32, s32, s33', 's_lshl_b32 s32, s32, 13', 'v_lshlrev_b32 v3, 7, v0', 'v_add_u32 v3, s32, v3',
        f'v_subrev_u32 v4, {1024*3072*2}, v3', 's_waitcnt lgkmcnt(0)')
    srd(a, SRD_A, P_X, 0, XB)
    a.e(f'buffer_load_dwordx4 v[8:11], v2, {S4(SRD_A)}, s31 offen', f'buffer_load_dwordx4 v[12:15], v2, {S4(SRD_A)}, s31 offen offset:16')
    KW = int(env('K0WARM', '1'))
    srd(a, SRD_B, P_WQKV, 0, 1024 * 3072 * 2 * KW)
    srd(a, SRD_C, P_WO, 0, 1024 * 1024 * 2 * KW)
    srd(a, SRD_E, P_W1, 0, W1_K0)
    a.e(f's_sub_u32 s33, s{S_WAVE}, 4', 's_lshl_b32 s33, s33, 8', 's_add_u32 s33, s33, s2', 's_lshl_b32 s33, s33, 13', 'v_lshlrev_b32 v7, 7, v0',
        f's_cmp_ge_u32 s{S_WAVE}, 4', 's_cbranch_scc1 k0_nw', f'buffer_load_dword v5, v3, {S4(SRD_B)}, 0 offen', f'buffer_load_dword v6, v4, {S4(SRD_C)}, 0 offen', 's_branch k0_nx',
        'k0_nw:', f'buffer_load_dword v5, v7, {S4(SRD_E)}, s33 offen', 'k0_nx:')
    if CODEPF:
        a.e(f's_cmp_lg_u32 s{S_WAVE}, 7', 's_cbranch_scc1 k0_nc', 's_getpc_b64 s[40:41]', 'k0_pc:', 's_add_u32 s40, s40, mega_kernel-k0_pc', 's_addc_u32 s41, s41, 0',
            's_lshr_b32 s42, s2, 3', 's_lshl_b32 s42, s42, 11', 'v_and_b32 v25, 15, v0', 'v_lshlrev_b32 v25, 7, v25', 'v_add_u32 v25, s42, v25',
            'v_min_u32 v25, mega_end-mega_kernel, v25', 'global_load_dword v26, v25, s[40:41]', 'k0_nc:')
    srd(a, SRD_D, P_WS, 0, 64 * MB)
    a.e(f's_cmp_eq_u32 s{S_WAVE}, 0', 's_cselect_b32 s33, 0, -1', 'v_mov_b32 v16, s33', 'v_mov_b32 v17, s33', 'v_mov_b32 v18, s33', 'v_mov_b32 v19, s33',
        f's_mov_b32 s34, {ST_OFF}', f's_cselect_b32 s34, {FL_OFF}, s34', f's_cmp_eq_u32 s{S_WAVE}, 2', f's_cselect_b32 s34, {LSTR + ST_OFF}, s34', 's_lshl_b32 s35, s2, 10', 's_add_u32 s34, s34, s35',
        'v_lshlrev_b32 v20, 4, v0', f's_cmp_ge_u32 s{S_WAVE}, 3', 's_cbranch_scc1 k0_nr', f'buffer_store_dwordx4 v[16:19], v20, {S4(SRD_D)}, s34 offen', 'k0_nr:')
    a.e('v_mov_b32 v22, 0', 'v_mov_b32 v23, 0', 'v_mov_b32 v21, 0x3f803f80', 'v_lshrrev_b32 v24, 3, v0', 'v_lshlrev_b32 v24, 14, v24', 's_lshl_b32 s36, s30, 3', f's_add_u32 s36, s36, {RS_OFF}',
        's_waitcnt vmcnt(0)')
    for e in range(8): a.e(f'v_dot2c_f32_bf16 v22, v21, v{8+e}', f'v_dot2c_f32_bf16 v23, v{8+e}, v{8+e}')
    for ctl in ('quad_perm:[1,0,3,2]', 'quad_perm:[2,3,0,1]', 'row_half_mirror'):
        a.e(f'v_add_f32_dpp v22, v22, v22 {ctl} row_mask:0xf bank_mask:0xf', f'v_add_f32_dpp v23, v23, v23 {ctl} row_mask:0xf bank_mask:0xf')
    a.e('s_mov_b32 exec_lo, 0x01010101', 's_mov_b32 exec_hi, 0x01010101', f'buffer_store_dwordx2 v[22:23], v24, {S4(SRD_D)}, s36 offen', 'k0_end:', 's_endpgm')

def main(out):
    a = Asm()
    if not SINGLE: gen_k0(a); a.flush_hist()
    gen_mega(a)
    info = {} if SINGLE else {'k0_kernel': (32, 0)}
    info[MEGA] = (256, 163840)
    ref = open(os.path.join(os.path.dirname(os.path.abspath(__file__)), '..', NAME + '.s.ref')).read().splitlines()
    hdr = [l for l in ref if l.startswith(';') and '@launch' not in l and 'Override launch' not in l and 'grid=ceil' not in l]
    if SINGLE: hdr += ['; @launch grid=(256,1,1) block=(512,1,1) lds=163840']
    else: hdr += [f'; @launch kernel={n} grid=(256,1,1) block=(512,1,1) lds={v[1]}' for n, v in info.items()]
    s = '\n'.join(hdr) + '\n; generated by gen/gen2.py\n.amdgcn_target "amdgcn-amd-amdhsa--gfx950"\n.text\n'
    if SINGLE: s += f'.globl {MEGA}\n.type {MEGA},@function\n'
    s += a.text() + '.section .rodata,"a"\n'
    for n, (vg, _) in info.items():
        s += f'''.p2align 6
.amdhsa_kernel {n}
  .amdhsa_next_free_vgpr {vg}
  .amdhsa_next_free_sgpr 102
  .amdhsa_accum_offset {vg}
  .amdhsa_group_segment_fixed_size 0
  .amdhsa_kernarg_size 88
  .amdhsa_user_sgpr_count 2
  .amdhsa_user_sgpr_kernarg_segment_ptr 1
  .amdhsa_system_sgpr_workgroup_id_x 1
.end_amdhsa_kernel
'''
    open(out, 'w').write(s)

if __name__ == '__main__':
    main(sys.argv[1])
```

```python
import sys, os, struct
sys.path.insert(0, os.path.dirname(os.path.abspath(__file__)))
from asmlib import *
import gen as G
from gen import (NAME, MB, XB, UB, f32, env, S4, srd, next_k, adv_s, sched, bundle, spread, lane_fields, tr128_addr, swz128, unpack4,
                 dma_w128, stats_finish, MF16, S_VAR, S_WAVE, S_LI, S_LJ, S_PHI, SRD_A, SRD_B, SRD_C, SRD_D, SRD_E, S_TI, S_TJ,
                 S_P, S_W, S_T0, S_K, S_BA, S_BB, S_OA, S_OB, S_LW, S_CNT, S_T1, S_T2, S_DELTA, S_CUR, S_G0,
                 P_X, P_WQKV, P_WO, P_W1, P_B1, P_W2, P_B2, P_OUT, P_WS)

LSTR = 32 * MB
O_OFF, X1_OFF, H_OFF, U_OFF, ST_OFF, RS_OFF = 0, 4 * MB, 8 * MB, 12 * MB, 20 * MB, 21 * MB
X2_OFF, FL_OFF, PR_OFF = 24 * MB, 28 * MB, 64 * MB
P_WL = 82
S_LWV, S_FLG = 57, 56
SC = 'sc0 sc1'
LDF = env('LDF', 'sc1')
PROF = env('PROF') == '1'
PV = 255
SINGLE = env('SINGLE', '1') == '1'
MEGA = NAME + '_kernel' if SINGLE else 'mega_kernel'
P_DB = 62
SPIN = 100000
ONEP = int(env('ONEP', '1')); PS0 = int(env('PS0', '8')); PS1 = int(env('PS1', '0')); PP = int(env('PP', '1')); PSL = int(env('PSL', '4'))

def stamp(k):
    if not PROF: return []
    return ['s_memrealtime s[58:59]', 's_memtime s[100:101]', 's_waitcnt lgkmcnt(0)', f's_lshl_b32 s60, s{S_VAR}, 4', f's_add_u32 m0, s60, {k+1}', 's_nop 0', f'v_writelane_b32 v{PV}, s58, m0',
            's_add_u32 m0, m0, 32', 's_nop 0', f'v_writelane_b32 v{PV}, s100, m0']
G.stamp = lambda idx=None: []
G.cstamp = lambda idx: []

def tiles(a, LN, xshift):
    a.e(f's_lshr_b32 s{S_T0}, s2, 3')
    if LN == 8: a.e(f's_lshr_b32 s{S_LI}, s{S_T0}, 3', f's_and_b32 s{S_LJ}, s{S_T0}, 7')
    else: a.e(f's_mul_i32 s{S_LI}, s{S_T0}, {65536 // LN + 1}', f's_lshr_b32 s{S_LI}, s{S_LI}, 16', f's_mul_i32 s{S_LJ}, s{S_LI}, {LN}', f's_sub_u32 s{S_LJ}, s{S_T0}, s{S_LJ}')
    a.e(f's_lshl_b32 s{S_PHI}, s{S_LI}, 1', f's_add_u32 s{S_PHI}, s{S_PHI}, s{S_LJ}', f's_and_b32 s{S_PHI}, s{S_PHI}, 7',
        f's_and_b32 s{S_T0}, s2, 7', f's_lshr_b32 s{S_TI}, s{S_T0}, {xshift}', f's_lshl_b32 s{S_TI}, s{S_TI}, 2', f's_add_u32 s{S_TI}, s{S_TI}, s{S_LI}',
        f's_and_b32 s{S_TJ}, s{S_T0}, {(1 << xshift) - 1}')
    if (TJS >> {(8, 1): 0, (7, 2): 1, (8, 2): 2}[(LN, xshift)]) & 1: a.e(f's_lshl_b32 s{S_T0}, s{S_LJ}, {xshift}', f's_add_u32 s{S_TJ}, s{S_TJ}, s{S_T0}', *INITK)
    else: a.e(f's_mul_i32 s{S_TJ}, s{S_TJ}, {LN}', f's_add_u32 s{S_TJ}, s{S_TJ}, s{S_LJ}', *INITK)
TJS = int(env('TJS', '0'))
INITK = [f's_mov_b32 s{S_P}, 7', f's_mov_b32 s{S_W}, -1']

def flag_idx(a, ph, hi, mul, lo):
    a.e(f's_lshl_b32 s{S_FLG}, s{S_VAR}, 10', f's_mul_i32 s{S_T0}, s{hi}, {mul}', f's_add_u32 s{S_FLG}, s{S_FLG}, s{S_T0}', f's_add_u32 s{S_FLG}, s{S_FLG}, s{lo}',
        f's_add_u32 s{S_FLG}, s{S_FLG}, {ph*256}', f's_lshl_b32 s{S_FLG}, s{S_FLG}, 7')

_n = [0]
def lab(p): _n[0] += 1; return f'{p}{_n[0]}'

def publish_pre(a):
    srd(a, SRD_E, P_WS, FL_OFF, 8 * 256 * 128)
    a.e('v_mov_b32 v136, 0', 'v_mov_b32 v137, 1', f's_cmp_eq_u32 s{S_LWV}, 0', f's_cselect_b32 s{SRD_E+2}, s{SRD_E+2}, 0')

def publish(a, vt=None):
    a.e('s_mov_b64 exec, 1', f'buffer_store_dword v137, v136, {S4(SRD_E)}, s{S_FLG} offen {SC}', 's_mov_b64 exec, -1')

def poll_setup(a, sr_, va, ph, dl, base_lines, n):
    srd(a, sr_, P_WS, FL_OFF, 8 * 256 * 128)
    a.e(*base_lines, f'v_min_u32 v{va}, {n-1}, v0', f'v_add_u32 v{va}, s{S_T0}, v{va}', f'v_max_i32 v{va}, 0, v{va}', f'v_lshlrev_b32 v{va}, 7, v{va}',
        f's_lshl_b32 s55, s{S_VAR}, 17', f's_add_u32 s55, s55, {(dl * 4 + ph) * 32768}')

def poll(a, sr_, va, vt):
    l = lab('poll')
    ld = lambda v: f'buffer_load_dword v{v}, v{va}, {S4(sr_)}, s55 offen {SC}'
    a.e(f's_mov_b32 s{S_CNT}, 0')
    if ONEP: a.e(f's_and_b32 s{S_T0}, s{S_WAVE}, 3', f's_cmp_lg_u32 s{S_T0}, 0', f's_cbranch_scc1 {l}d')
    if PS0: a.e(f's_sleep {PS0}')
    if PP <= 1:
        a.loop([f'{l}:'] + ([f's_sleep {PS1}'] if PS1 else []) + [ld(vt), 's_waitcnt vmcnt(0)', f'v_cmp_eq_u32 vcc, 0, v{vt}',
                f's_add_u32 s{S_CNT}, s{S_CNT}, 1', f's_cmp_gt_u32 s{S_CNT}, {SPIN}', f's_cbranch_scc1 {l}d', f's_cbranch_vccnz {l}'])
    else:
        R = [214 + i for i in range(PP)]
        for i in range(PP - 1): a.e(ld(R[i]), f's_sleep {PSL}')
        body = [f'{l}:']
        for i in range(PP):
            body += [ld(R[(i + PP - 1) % PP]), f's_waitcnt vmcnt({PP-1})', f'v_cmp_eq_u32 vcc, 0, v{R[i]}', f's_cbranch_vccz {l}d']
        a.loop(body + [f's_add_u32 s{S_CNT}, s{S_CNT}, 1', f's_cmp_le_u32 s{S_CNT}, {SPIN}', f's_cbranch_scc1 {l}'])
    a.e(f'{l}d:')
    if ONEP: a.e('s_barrier')

def dma_groups(groups, lw_s):
    L = []
    for g in groups:
        L.append(f's_add_u32 m0, s{lw_s}, s{g["sg"]}')
        for (v, imm, st, ex) in g['dmas']:
            srdn, so, fl = (SRD_A, S_OA, LDF) if st == 'A' else (SRD_B, S_OB, '')
            if ex: L.append(f's_mov_b64 exec, {ex}')
            L.append(f'buffer_load_dwordx4 v{v}, {S4(srdn)}, s{so} offen offset:{imm} {fl} lds')
            if ex: L.append('s_mov_b64 exec, -1')
    return L

def issue(NK, NS, stage, base, stepA, stepB, gA, gW):
    L = next_k(NK)
    if gA: L += [f's_mul_i32 s{S_OA}, s{S_K}, {stepA}', f's_add_u32 s{S_OA}, s{S_OA}, s{S_BA}']
    if gW: L += [f's_mul_i32 s{S_OB}, s{S_K}, {stepB}', f's_add_u32 s{S_OB}, s{S_OB}, s{S_BB}']
    L += dma_groups(gA + gW, S_LW)
    L += [f's_add_u32 s{S_LW}, s{S_LW}, {stage}', f's_cmp_eq_u32 s{S_LW}, {base + NS*stage}', f's_cselect_b32 s{S_LW}, {base}, s{S_LW}']
    return L

def pre_w(a, NK, NS, AH, stage, base, stepB, gW):
    a.e(*INITK, f's_mov_b32 s{S_LW}, {base}')
    for s in range(AH): a.e(*issue(NK, NS, stage, base, 0, stepB, [], gW))

def l_loop(a, NK, NS, AH, stage, base, stepA, stepB, gA, gW, tail=0, hooks=(), early=(), st=False):
    nA = sum(len(g['dmas']) for g in gA); n = nA + sum(len(g['dmas']) for g in gW)
    lst = ['s_memrealtime s[58:59]', 's_waitcnt lgkmcnt(0)', 's_mov_b32 m0, s60', 's_add_u32 s60, s60, 1', 'v_writelane_b32 v255, s58, m0'] if st and PROF else []
    if lst: a.e(f's_lshl_b32 s60, s{S_VAR}, 5')
    iss = lambda: lst + issue(NK, NS, stage, base, stepA, stepB, gA, gW)
    t0 = 0
    if gA:
        a.e(*INITK, f's_mov_b32 s{S_LW}, {base}')
        for s in range(AH): a.e(*issue(NK, NS, stage, base, stepA, stepB, gA, []))
        if early: early[0](n)
        for t in range(AH - 1):
            a.e(f's_waitcnt vmcnt({(AH - 1 - t) * nA + t * n})', 's_barrier', *iss())
        t0 = AH - 1
        for h in early[1:2]: h(n)
        for h in early[2:]:
            a.e(f's_waitcnt vmcnt({(AH-1)*n})', 's_barrier', *iss()); h(n); t0 += 1
    l = lab('ll')
    a.e(f's_mov_b32 s{S_CNT}, {NK - AH - t0 - len(hooks)}')
    a.loop([f'{l}:', f's_waitcnt vmcnt({(AH-1)*n})', 's_barrier'] + iss() + [f's_sub_u32 s{S_CNT}, s{S_CNT}, 1', f's_cmp_lg_u32 s{S_CNT}, 0', f's_cbranch_scc1 {l}'])
    for h in hooks:
        a.e(f's_waitcnt vmcnt({(AH-1)*n})', 's_barrier', *iss()); h(n)
    for j in range(AH - tail):
        a.e(f's_waitcnt vmcnt({(AH-1-j)*n + (8 if hooks else 0)})', 's_barrier')

def c_loop(a, NK, NS, stage, reads, mfmas, addr_regs, late, st0, peel=None, extra0=(), fin=None):
    adv = adv_s(NS, stage)
    advv = [f'v_add_u32 v{r}, s{S_DELTA}, v{r}' for r in addr_regs]
    a.e(f's_mov_b32 s{S_CUR}, 0', f's_mov_b32 s{S_CNT}, {NK - 1 - len(peel or [])}', 's_barrier', *stamp(st0))
    a.e(*reads[0]); a.e(*adv)
    q0 = [Ins(x).wr for x in reads[0]]
    def it(pre=(), post=()):
        q = list(q0)
        L = sched(mfmas[0], bundle(reads[1], advv), q, 1)
        if not late: L.append('s_waitcnt lgkmcnt(0)'); q.clear()
        L += list(pre) + ['s_barrier'] + list(post) + sched(mfmas[1], spread(reads[0], adv), q, 1)
        assert q == q0
        return L
    for p in peel or []: a.e(*it(*p))
    l = lab('cl')
    a.loop([f'{l}:'] + it() + [f's_sub_u32 s{S_CNT}, s{S_CNT}, 1', f's_cmp_lg_u32 s{S_CNT}, 0', f's_cbranch_scc1 {l}'])
    q = list(q0)
    a.e(*sched(mfmas[0], reads[1] + list(extra0), q, 1))
    if fin: a.e('s_waitcnt lgkmcnt(0)', *stamp(st0 + 1)); fin(mfmas[1])
    else: a.e(*sched(mfmas[1], [], q)); a.e('s_waitcnt lgkmcnt(0)', *stamp(st0 + 1))

S_LM, S_B0, S_B1 = 48, 49, 50
def c_direct(a, NK, NS, stage, reads, mf, addr_regs, DR, D, vaddr, init, st0, slots=None):
    R = NK // 8
    advv = lambda src: [f'v_add_u32 v{r}, {src}, v{r}' for r in addr_regs]
    def nk(t):
        p = t % 8
        L = []
        if p == 0 and t != 0: L += [f's_mov_b32 s{S_B0}, s{S_B1}', f's_add_u32 s{S_B1}, s{S_B1}, 32768', f's_cmp_eq_u32 s{S_B1}, s{S_T2}', f's_cselect_b32 s{S_B1}, s{S_BA}, s{S_B1}']
        return L + [f's_bitcmp1_b32 s{S_LM}, {p}', f's_cselect_b32 s{S_OA}, s{S_B1}, s{S_B0}', f's_add_u32 s{S_OA}, s{S_OA}, {p*4096}']
    ld = lambda slot, i: f'buffer_load_dwordx4 {vr(DR+16*slot+4*i,4)}, v{vaddr}, {S4(SRD_A)}, s{S_OA} offen offset:{1024*i} {LDF}'
    adv = [] if slots else adv_s(NS, stage)
    vq = []
    for sl in range(D):
        a.e(*nk(sl))
        for i in range(4 if sl < D - 1 else 2):
            a.e(ld(sl, i)); vq.append(Ins(ld(sl, i)).wr)
        if sl == 1: init(8)
    a.e(f's_mov_b32 s{S_CUR}, 0', f's_mov_b32 s{S_CNT}, {R - 1}', 's_barrier', *stamp(st0))
    a.e(*reads[0]); a.e(*adv)
    q0 = [Ins(x).wr for x in reads[0]]
    def mix(items, loads, pos):
        items = [list(x) for x in items]
        for l, p in zip(loads, pos): items[p] = items[p] + [l]
        return items
    def step(t, vq, generic):
        slot = t % D
        q = list(q0)
        final = not generic and t == NK - 1
        l0 = [ld((slot - 1) % D, 2), ld((slot - 1) % D, 3)] if generic or t - 1 + D < NK else []
        av = [] if final else advv(f's{S_DELTA}' if not slots else (slots[t + 1] - slots[t]) & 0xffffffff)
        L = sched(mf(0, DR + 16 * slot), mix(bundle(reads[1], av), l0, (2, 6)), q, 1, vq=vq)
        if final: return L + sched(mf(1, DR + 16 * slot + 8), [], q, 1, vq=vq)
        more = generic or t + D < NK
        it = [[r] for r in reads[0]]
        sc = (nk(t + D) if more else []) + adv
        for i, x in enumerate(sc): it[min(i // 2, len(it) - 1)].append(x)
        l1 = [ld(slot, 0), ld(slot, 1)] if more else []
        return L + ([] if slots else ['s_barrier']) + sched(mf(1, DR + 16 * slot + 8), mix(it, l1, (4, 7)), q, 1, vq=vq)
    if slots:
        for t in range(NK): a.e(*step(t, vq, False))
    else:
        v1 = list(vq); l = lab('cd')
        body = [f'{l}:']
        for t in range(8, 16): body += step(t, v1, True)
        assert v1 == vq
        a.loop(body + [f's_sub_u32 s{S_CNT}, s{S_CNT}, 1', f's_cmp_lg_u32 s{S_CNT}, 0', f's_cbranch_scc1 {l}'])
        for t in range(NK - 8, NK): a.e(*step(t, vq, False))
    a.e('s_waitcnt lgkmcnt(0)', *stamp(st0 + 1))

def direct_setup(a, NK):
    a.e(f's_lshl_b32 s{S_LM}, 0x303, s{S_PHI}', f's_lshr_b32 s{S_LM}, s{S_LM}, 8', f's_mov_b32 s{S_B0}, s{S_BA}', f's_add_u32 s{S_B1}, s{S_BA}, 32768',
        f's_add_u32 s{S_T2}, s{S_BA}, {NK*4096}')

def w_reads(regs):
    return [[f'ds_read_b64_tr_b16 {vr(16+16*h+4*n+2*q,2)}, v{regs[n]} offset:{h*4096+q*512}' for n in range(4) for q in range(2)] for h in range(2)]

def sel(a, d, ptr0, off0, ptr1, off1, nbytes): G.srd_sel(a, d, ptr0, off0, ptr1, off1, nbytes)

XT = 18432; ST1 = XT + 24576; SL = 3 * ST1; QKV = ST1; PITCH = 400; PB = 72 * PITCH
WO_SLOTS = [131072 + 8192 * i for i in range(4)] + [100608 + 8192 * i for i in range(3)] + [8192 * i for i in range(5)] + [QKV + 8192 * i for i in range(4)]
K4_BASE, K4_NS, K4_AH = 98304, 8, 6
K4_SCR = 90112
D = 4; DR = 120
PF1 = int(env('PF1', '0'), 0); CPRIO = int(env('CPRIO', '0'))
NPF = int(env('NPF', '0')); K0W = int(env('K0W', '0')); W1_K0 = K0W * 256 * 64 * 128
REUSE = int(env('REUSE', '0')); WARM0 = int(env('WARM0', '1')); PF4 = int(env('PF4', '1')); PFT = int(env('PFT', '0')); PF3 = int(env('PF3', '0')); CODEPF = env('CODEPF', '0') == '1'; PF2 = env('PF2', '1') == '1'; LATEW = env('LATEW', '1') == '1'

def gen_mega(a):
    kn = 'mega'
    a.e('.p2align 8', f'{MEGA}:', 's_cmp_ge_u32 s2, 256', f's_cbranch_scc1 {kn}_end',
        's_load_dwordx16 s[64:79], s[0:1], 0', 's_load_dwordx2 s[80:81], s[0:1], 64', 's_load_dwordx2 s[84:85], s[0:1], 80', f's_load_dwordx2 s[{P_DB}:{P_DB+1}], s[0:1], 72',
        'v_lshrrev_b32 v1, 6, v0', 'v_and_b32 v0, 63, v0', f'v_readfirstlane_b32 s{S_WAVE}, v1', f's_mov_b32 s{S_VAR}, 0')
    if PROF: a.e(f'v_mov_b32 v{PV}, 0', *stamp(-1))
    a.e('v_mov_b32 v130, 0', 'v_mov_b32 v131, 0', 'v_mov_b32 v220, 0', 'v_mov_b32 v134, 0', f's_cmp_ge_u32 s{S_WAVE}, 4', f's_cbranch_scc1 L_start')

    ACC1 = 112
    def acc1(m, rt): return ACC1 + 36 * m + 4 * rt
    def k1_setup_c():
        tiles(a, 8, 1)
        lane_fields(a)
        tr128_addr(a, [8], XT, 21, 22)
        a.e(f's_lshl_b32 s{S_T0}, s{S_WAVE}, 5', f'v_xor_b32 v8, s{S_T0}, v8',
            'v_lshrrev_b32 v21, 1, v4', 'v_xor_b32 v21, v21, v5', 'v_lshlrev_b32 v21, 4, v21', 'v_lshlrev_b32 v22, 7, v4', 'v_add_u32 v9, v21, v22', 'v_xor_b32 v10, 64, v9',
            'v_and_b32 v21, 1, v4', f'v_mul_u32_u24 v21, {PB}, v21', 'v_lshrrev_b32 v22, 1, v4', f'v_mul_u32_u24 v22, {PITCH}, v22',
            'v_lshlrev_b32 v23, 3, v5', 'v_add3_u32 v11, v21, v22, v23', f's_add_u32 s{S_T0}, s{S_T0}, {QKV}',
            f'v_add_u32 v11, s{S_T0}, v11', 'v_lshlrev_b32 v12, 3, v4', f'v_add_u32 v12, {SL}, v12')
        for r in range(ACC1, ACC1 + 108, 2): a.e(f'v_mov_b64 {vr(r,2)}, 0')
    if CPRIO: a.e(f's_setprio {CPRIO}')
    k1_setup_c()
    a.e('s_waitcnt lgkmcnt(0)', f's_mov_b32 s{P_WL}, s{P_WS}', f's_mov_b32 s{P_WL+1}, s{P_WS+1}')
    srd(a, SRD_B, P_WS, 0, 0)
    srd(a, SRD_D, P_WQKV, 0, 1024 * 3072 * 2 * WARM0)
    a.e(f's_cmp_eq_u32 s{S_WAVE}, 3', f's_cselect_b32 s{SRD_D}, s{P_WO}, s{SRD_D}', f's_cselect_b32 s{SRD_D+1}, s{P_WO+1}, s{SRD_D+1}', f's_cselect_b32 s{SRD_D+2}, {2*MB*WARM0}, s{SRD_D+2}',
        f's_cselect_b32 s47, 0, s{S_WAVE}', 's_lshl_b32 s47, s47, 8', 's_add_u32 s47, s47, s2', 's_lshl_b32 s47, s47, 13', 'v_lshlrev_b32 v13, 7, v0', 's_barrier')
    warm = f'buffer_load_dword v222, v13, {S4(SRD_D)}, s47 offen'
    def warm_if(w, l): return [f's_cmp_lg_u32 s51, {w}', f's_cbranch_scc1 {l}', warm, f'{l}:']
    a.e(f's_mov_b32 s51, s{S_WAVE}', *warm_if(0, 'C_wm0'))
    a.e('C_top:'); a.flush_hist()
    reads = [[], []]; mf = [[], []]
    for h in range(2):
        F = 16 + 48 * h
        ra = [[f'ds_read_b64_tr_b16 {vr(F+4*m,2)}, v8 offset:{m*8192+h*4096}', f'ds_read_b64_tr_b16 {vr(F+4*m+2,2)}, v8 offset:{m*8192+h*4096+512}'] for m in range(3)]
        rb = [f'ds_read_b128 {vr(F+12+4*rt,4)}, v{9+h} offset:{rt*2048}' for rt in range(9)]
        reads[h] = ra[0] + [rb[0]] + ra[1] + ra[2] + rb[1:]
        mf[h] = [f'{MF16} {vr(acc1(m,rt),4)}, {vr(F+4*m,4)}, {vr(F+12+4*rt,4)}, {vr(acc1(m,rt),4)}' for rt in range(9) for m in range(3)]
    peel = [([], warm_if(1, 'C_wm1')), ([], warm_if(2, 'C_wm2')), ([], warm_if(3, 'C_wm3'))]
    STR, CW = 224, 242
    def fold(rt, o):
        ms = [m for m in range(3) if not (m == 0 and rt == 0)]
        st = vr(STR + 2 * rt, 2); L = []
        for m in ms: L += [f'v_pk_fma_f32 {vr(acc1(m,rt)+e,2)}, {vr(CW+4*m+e,2)}, {st}, {vr(acc1(m,rt)+e,2)} op_sel_hi:[1,0,1] neg_lo:[0,1,0] neg_hi:[0,1,0]' for e in (0, 2)]
        for m in ms: L += [f'v_pk_mul_f32 {vr(acc1(m,rt)+e,2)}, {vr(acc1(m,rt)+e,2)}, {st} op_sel:[0,1] op_sel_hi:[1,1]' for e in (0, 2)]
        for i, m in enumerate(ms):
            d = acc1(m, rt); r = o + 2 * i
            L += [f'v_cvt_pk_bf16_f32 v{r}, v{d}, v{d+1}', f'v_cvt_pk_bf16_f32 v{r+1}, v{d+2}, v{d+3}', f'ds_write_b64 v11, {vr(r,2)} offset:{rt*8*PITCH+m*128}']
        return L
    def fin1(mfs):
        work = [f'v_mov_b32_dpp v{CW+4*m+r}, v{acc1(m,0)+r} row_newbcast:0 row_mask:0xf bank_mask:0xf' for m in range(3) for r in range(4)]
        ready = [len(work)]
        for rt in range(9): work += fold(rt, 16 + 6 * (rt % 8)); ready.append(len(work))
        done = 0
        for i, m in enumerate(mfs):
            a.e(m)
            rt = i // 3 - 1
            lim = ready[rt + 1] if rt >= 0 else 0
            n = min(lim - done, 7)
            if n > 0: a.e(*work[done:done + n]); done += n
        a.e('s_barrier')
        a.e(*work[done:])
    c_loop(a, 16, 3, ST1, reads, mf, [8, 9, 10], False, 0, peel, [f'ds_read_b64 {vr(STR+2*rt,2)}, v12 offset:{rt*128}' for rt in range(9)], fin1)
    a.e('attn:'); a.flush_hist()
    MK = 86
    srd(a, SRD_D, P_WL, O_OFF, XB)
    a.e(f's_lshr_b32 s{S_T1}, s{S_WAVE}, 1', f's_and_b32 s{S_T2}, s{S_WAVE}, 1',
        f's_mul_i32 s{S_T0}, s{S_T2}, {PB}', f's_add_u32 s{S_T0}, s{S_T0}, {QKV}', f's_lshl_b32 s{S_G0+5}, s{S_T1}, 4')
    a.e(f'v_add_u32 v16, s{S_G0+5}, v4', 'v_lshlrev_b32 v17, 4, v5', f'v_add_u32 v17, s{S_T0}, v17',
        f'v_mul_u32_u24 v18, {PITCH}, v16', 'v_add_u32 v8, v18, v17', f'v_add_u32 v10, {8*PITCH}, v8', 'v_add_u32 v8, 128, v8',
        'v_add_u32 v16, 16, v16', 'v_min_u32 v16, 71, v16', f'v_mul_u32_u24 v18, {PITCH}, v16', 'v_add3_u32 v9, v18, v17, 64', 'v_add_u32 v9, 64, v9')
    a.e('v_lshl_add_u32 v16, v5, 2, v6', f'v_add_u32 v16, s{S_G0+5}, v16', 'v_lshlrev_b32 v17, 4, v7', f'v_add_u32 v17, s{S_T0}, v17', 'v_add_u32 v17, 256, v17',
        f'v_mul_u32_u24 v18, {PITCH}, v16', 'v_add_u32 v14, v18, v17',
        'v_add_u32 v16, 16, v16', 'v_min_u32 v16, 71, v16', f'v_mul_u32_u24 v18, {PITCH}, v16', 'v_add_u32 v15, v18, v17')
    a.e('v_lshlrev_b32 v13, 4, v0', f's_lshl_b32 s{S_G0+6}, s{S_TI}, 2', f's_add_u32 s{S_G0+6}, s{S_G0+6}, s{S_T1}', f's_lshl_b32 s{S_G0+6}, s{S_G0+6}, 16',
        f's_lshl_b32 s{S_G0+7}, s{S_TJ}, 12', f's_add_u32 s{S_G0+6}, s{S_G0+6}, s{S_G0+7}', f's_lshl_b32 s{S_G0+7}, s{S_T2}, 10', f's_add_u32 s{S_G0+6}, s{S_G0+6}, s{S_G0+7}')
    a.e('v_lshlrev_b32 v16, 2, v5', 'v_sub_u32 v16, v16, v4', f's_or_b32 s{S_G0+7}, s{S_TI}, s{S_T1}', f's_cmp_eq_u32 s{S_G0+7}, 0', f's_cselect_b32 s{S_G0+7}, 0, -1')
    for k in range(8):
        a.e(f'v_add_u32 v17, {16 * (k >> 2) + (k & 3) - 1}, v16', f'v_cmp_gt_u32 s[{MK+2*k}:{MK+1+2*k}], 8, v17')
    for k in range(4): a.e(f's_and_b32 s{MK+2*k}, s{MK+2*k}, s{S_G0+7}')
    cs = (32 ** -0.5) * 1.4426950408889634
    a.e(f'v_mov_b32 v18, {f32(cs)}', 'v_mov_b32 v19, 0xff800000')
    a.e('s_waitcnt lgkmcnt(0)', 's_barrier')
    B = [32, 80]
    for hd in range(2):
        b = B[hd]; o = 64 * hd
        a.e(f'ds_read_b128 {vr(b,4)}, v10 offset:{o}', f'ds_read_b128 {vr(b+4,4)}, v8 offset:{o}', f'ds_read_b128 {vr(b+8,4)}, v9 offset:{o}')
    for hd in range(2):
        b = B[hd]; o = 64 * hd
        for dt in range(2): a.e(f'ds_read_b64_tr_b16 {vr(b+12+4*dt,2)}, v14 offset:{o+8*dt}', f'ds_read_b64_tr_b16 {vr(b+14+4*dt,2)}, v15 offset:{o+8*dt}')
    for hd in range(2):
        b = B[hd]
        a.e(f's_waitcnt lgkmcnt({11 - 3*hd})', f'{MF16} {vr(b+20,4)}, {vr(b+4,4)}, {vr(b,4)}, 0', f'{MF16} {vr(b+24,4)}, {vr(b+8,4)}, {vr(b,4)}, 0')
    def both(f):
        for x, y in zip(f(B[0]), f(B[1])): a.e(x, y)
    both(lambda b: [f'v_cndmask_b32 v{b+20+k}, v19, v{b+20+k}, s[{MK+2*k}:{MK+1+2*k}]' for k in range(8)])
    both(lambda b: [f'v_max3_f32 v{b+28}, v{b+20}, v{b+21}, v{b+22}', f'v_max3_f32 v{b+29}, v{b+23}, v{b+24}, v{b+25}',
                    f'v_max3_f32 v{b+28}, v{b+28}, v{b+26}, v{b+27}', f'v_max_f32 v{b+28}, v{b+28}, v{b+29}', f'v_mov_b32 v{b+29}, v{b+28}',
                    f'v_permlane16_swap_b32 v{b+28}, v{b+29}', f'v_max_f32 v{b+28}, v{b+28}, v{b+29}', f'v_mov_b32 v{b+29}, v{b+28}',
                    f'v_permlane32_swap_b32 v{b+28}, v{b+29}', f'v_max_f32 v{b+28}, v{b+28}, v{b+29}', f'v_mul_f32 v{b+28}, v18, v{b+28}'])
    both(lambda b: [f'v_fma_f32 v{b+20+k}, v{b+20+k}, v18, -v{b+28}' for k in range(8)])
    both(lambda b: [f'v_exp_f32 v{b+20+k}, v{b+20+k}' for k in range(8)])
    both(lambda b: [f'v_pk_add_f32 {vr(b+28,2)}, {vr(b+20,2)}, {vr(b+22,2)}', f'v_pk_add_f32 {vr(b+30,2)}, {vr(b+24,2)}, {vr(b+26,2)}',
                    f'v_pk_add_f32 {vr(b+28,2)}, {vr(b+28,2)}, {vr(b+30,2)}', f'v_add_f32 v{b+28}, v{b+28}, v{b+29}', f'v_mov_b32 v{b+29}, v{b+28}',
                    f'v_permlane16_swap_b32 v{b+28}, v{b+29}', f'v_add_f32 v{b+28}, v{b+28}, v{b+29}', f'v_mov_b32 v{b+29}, v{b+28}',
                    f'v_permlane32_swap_b32 v{b+28}, v{b+29}', f'v_add_f32 v{b+28}, v{b+28}, v{b+29}', f'v_rcp_f32 v{b+28}, v{b+28}'])
    both(lambda b: [f'v_pk_mul_f32 {vr(b+20+e,2)}, {vr(b+20+e,2)}, {vr(b+28,2)} op_sel_hi:[1,0]' for e in range(0, 8, 2)])
    both(lambda b: [f'v_cvt_pk_bf16_f32 v{b+32+e}, v{b+20+2*e}, v{b+21+2*e}' for e in range(4)])
    a.e('s_waitcnt lgkmcnt(0)')
    both(lambda b: [f'{MF16} {vr(b+36+4*dt,4)}, {vr(b+12+4*dt,4)}, {vr(b+32,4)}, 0' for dt in range(2)])
    both(lambda b: [f'v_cvt_pk_bf16_f32 v{b+e}, v{b+36+2*e}, v{b+37+2*e}' for e in range(4)])
    for hd in range(2): a.e(f'buffer_store_dwordx4 {vr(B[hd],4)}, v13, {S4(SRD_D)}, s{S_G0+6} offen offset:{2048*hd} {SC}')
    a.e(f's_cmp_ge_u32 s{S_WAVE}, 4', 's_cbranch_scc1 L_k1done')

    ACC = 48; RES = 96
    def acc2(t, b): return ACC + 16 * b + 4 * t
    a.e(f's_lshl_b32 s{S_T0}, s{S_TI}, 2', f's_add_u32 s{S_T0}, s{S_T0}, s{S_WAVE}', f's_lshl_b32 s{S_BA}, s{S_T0}, 16', f's_lshl_b32 s{S_T1}, s{S_T0}, 5',
        'v_lshlrev_b32 v13, 1, v4', f'v_add_u32 v13, s{S_T1}, v13',
        'v_lshlrev_b32 v12, 11, v13', 'v_lshl_add_u32 v12, v3, 4, v12', f's_lshl_b32 s{S_T0}, s{S_TJ}, 7', f'v_add_u32 v12, s{S_T0}, v12', 'v_lshlrev_b32 v14, 4, v0')
    srd(a, SRD_A, P_WL, O_OFF, XB)
    sel(a, SRD_C, P_X, 0, P_WS, X2_OFF, XB)
    sel(a, SRD_B, P_WS, 0, P_WS, LSTR, 0); a.e(f's_add_u32 s{SRD_B}, s{SRD_B}, {ST_OFF}', f's_addc_u32 s{SRD_B+1}, s{SRD_B+1}, 0', f's_mov_b32 s{SRD_B+2}, {16*2048*8}')
    tr128_addr(a, [8, 9, 10, 11], WO_SLOTS[0], 16, 17)
    a.e('v_add_u32 v16, v13, v2', 'v_lshlrev_b32 v16, 3, v16', f's_lshl_b32 s{S_T0}, s{S_TJ}, 14', f'v_add_u32 v112, s{S_T0}, v16',
        'v_lshrrev_b32 v17, 5, v0', 'v_lshlrev_b32 v17, 17, v17', 'v_add_u32 v113, v16, v17')
    a.e(f's_lshl_b32 s{S_T0}, s{S_WAVE}, 12', 'v_lshlrev_b32 v16, 8, v4', 'v_lshl_add_u32 v16, v5, 3, v16', f'v_add_u32 v16, s{S_T0}, v16',
        'v_and_b32 v17, 1, v4', 'v_bfe_u32 v18, v4, 2, 1', 'v_lshl_or_b32 v17, v18, 1, v17', 'v_lshl_add_u32 v114, v17, 5, v16',
        f's_lshl_b32 s{S_G0}, s{S_TJ}, 8', f's_lshl_b32 s{S_T1}, s{S_TI}, 2', f's_add_u32 s{S_G0}, s{S_G0}, s{S_T1}', f's_add_u32 s{S_G0}, s{S_G0}, s{S_WAVE}', f's_lshl_b32 s{S_G0}, s{S_G0}, 10')
    tr128_addr(a, [115], 0, 16, 17)
    a.e(f'v_add_u32 v115, s{S_T0}, v115')
    for t in range(1, 4): a.e(f's_add_u32 s{S_G0+t}, s{S_G0}, {t*65536}')
    for p in range(1, 8): a.e(f's_mov_b32 s{86+p}, {p*16384}')
    direct_setup(a, 16)
    poll_setup(a, SRD_E, 119, 0, 0, [f's_lshl_b32 s{S_T0}, s{S_TI}, 4'], 16)
    a.e('s_waitcnt vmcnt(0)', 's_barrier', *stamp(2))
    poll(a, SRD_E, 119, 16)
    a.e(*stamp(3))
    for b in range(2):
        for P in range(2): a.e(f'buffer_load_dwordx4 {vr(RES+8*b+4*P,4)}, v12, {S4(SRD_C)}, 0 offen offset:{b*2048+P*64} {LDF}')
    def init2(out):
        a.e(f's_waitcnt vmcnt({out})')
        for b in range(2):
            for P in range(2):
                r = RES + 8 * b + 4 * P
                a.e(f'v_permlane16_swap_b32 v{r}, v{r+2}', f'v_permlane16_swap_b32 v{r+1}, v{r+3}')
        for b in range(2):
            for P in range(2):
                r = RES + 8 * b + 4 * P
                a.e(*unpack4(r, r + 1, acc2(2 * P, b)), *unpack4(r + 2, r + 3, acc2(2 * P + 1, b)))
    mf2 = lambda h, bb: [f'{MF16} {vr(acc2(t,b),4)}, {vr(16+16*h+4*t,4)}, {vr(bb+4*b,4)}, {vr(acc2(t,b),4)}' for t in range(4) for b in range(2)]
    c_direct(a, 16, 0, 0, w_reads([8, 9, 10, 11]), mf2, [8, 9, 10, 11], DR, D, 14, init2, 4, slots=WO_SLOTS)
    a.e('s_barrier')
    srd(a, SRD_D, P_WL, X1_OFF, XB)
    srd(a, SRD_E, P_WL, H_OFF, XB)
    for b in range(2):
        d = acc2(0, b); T = 16 + 4 * b
        a.e(f'v_pk_add_f32 {vr(T,2)}, {vr(d,2)}, {vr(d+2,2)}', f'v_pk_mul_f32 {vr(T+2,2)}, {vr(d,2)}, {vr(d,2)}', f'v_pk_fma_f32 {vr(T+2,2)}, {vr(d+2,2)}, {vr(d+2,2)}, {vr(T+2,2)}')
        for e in range(4, 16, 2):
            a.e(f'v_pk_add_f32 {vr(T,2)}, {vr(T,2)}, {vr(d+e,2)}', f'v_pk_fma_f32 {vr(T+2,2)}, {vr(d+e,2)}, {vr(d+e,2)}, {vr(T+2,2)}')
        a.e(f'v_add_f32 v{24+b}, v{T}, v{T+1}', f'v_add_f32 v{26+b}, v{T+2}, v{T+3}')
    a.e('v_permlane16_swap_b32 v24, v25', 'v_permlane16_swap_b32 v26, v27', 'v_add_f32 v28, v24, v25', 'v_add_f32 v29, v26, v27',
        'v_mov_b32 v30, v28', 'v_mov_b32 v31, v29', 'v_permlane32_swap_b32 v28, v30', 'v_permlane32_swap_b32 v29, v31',
        'v_add_f32 v28, v28, v30', 'v_add_f32 v29, v29, v31', 'v_and_b32 v29, 0x7fffffff, v29',
        's_mov_b32 exec_hi, 0', f'buffer_store_dwordx2 v[28:29], v112, {S4(SRD_B)}, 0 offen {SC}', 's_mov_b64 exec, -1')
    for b in range(2):
        for t in range(4):
            r = RES + 8 * b + 2 * t; d = acc2(t, b)
            a.e(f'v_cvt_pk_bf16_f32 v{r}, v{d}, v{d+1}', f'v_cvt_pk_bf16_f32 v{r+1}, v{d+2}, v{d+3}')
    for b in range(2):
        for P in range(2):
            r = RES + 8 * b + 4 * P
            a.e(f'v_permlane16_swap_b32 v{r}, v{r+2}', f'v_permlane16_swap_b32 v{r+1}, v{r+3}')
    for t in range(1, 4): a.e(f'v_xor_b32 v{115+t}, {t << 5}, v115', f'v_xor_b32 v{120+t}, {t << 5}, v114')
    a.e('v_mov_b32 v120, v114', f's_mov_b32 s{S_CNT}, 0')
    body = ['k2_poll:'] + [f'buffer_load_dwordx2 {vr(32+2*p,2)}, v113, {S4(SRD_B)}, {"0" if p == 0 else f"s{86+p}"} offen {SC}' for p in range(8)]
    body += ['s_waitcnt vmcnt(0)', 'v_min3_i32 v16, v33, v35, v37', 'v_min3_i32 v17, v39, v41, v43', 'v_min3_i32 v16, v16, v45, v47',
             'v_min_i32 v16, v16, v17', 'v_cmp_gt_i32 vcc, 0, v16', f's_add_u32 s{S_CNT}, s{S_CNT}, 1', f's_cmp_gt_u32 s{S_CNT}, {SPIN}',
             's_cbranch_scc1 k2_pdone', 's_cbranch_vccnz k2_poll']
    a.loop(body)
    a.e('k2_pdone:', *stamp(6))
    for b in range(2):
        for P in range(2): a.e(f'buffer_store_dwordx4 {vr(RES+8*b+4*P,4)}, v12, {S4(SRD_D)}, 0 offen offset:{b*2048+P*64} {SC}')
    a.e('v_pk_add_f32 v[32:33], v[32:33], v[34:35]', 'v_pk_add_f32 v[36:37], v[36:37], v[38:39]', 'v_pk_add_f32 v[40:41], v[40:41], v[42:43]',
        'v_pk_add_f32 v[44:45], v[44:45], v[46:47]', 'v_pk_add_f32 v[32:33], v[32:33], v[36:37]', 'v_pk_add_f32 v[40:41], v[40:41], v[44:45]',
        'v_pk_add_f32 v[32:33], v[32:33], v[40:41]', 'v_mov_b32 v34, v32', 'v_mov_b32 v35, v33',
        'v_permlane32_swap_b32 v32, v34', 'v_permlane32_swap_b32 v33, v35', 'v_add_f32 v32, v32, v34', 'v_add_f32 v33, v33, v35')
    stats_finish(a, 32, 33, 36, True)
    a.e('v_mov_b32 v34, v32', 'v_mov_b32 v35, v33', 'v_permlane16_swap_b32 v32, v34', 'v_permlane16_swap_b32 v33, v35')
    for b in range(2):
        st = vr(32 + 2 * b, 2); d = acc2(0, b); o = 160 + 8 * b
        for e in range(0, 16, 2): a.e(f'v_pk_add_f32 {vr(d+e,2)}, {vr(d+e,2)}, {st} op_sel_hi:[1,0] neg_lo:[0,1] neg_hi:[0,1]')
        for e in range(0, 16, 2): a.e(f'v_pk_mul_f32 {vr(d+e,2)}, {vr(d+e,2)}, {st} op_sel:[0,1] op_sel_hi:[1,1]')
        for t in range(4):
            a.e(f'v_cvt_pk_bf16_f32 v{o+2*t}, v{d+4*t}, v{d+4*t+1}', f'v_cvt_pk_bf16_f32 v{o+2*t+1}, v{d+4*t+2}, v{d+4*t+3}',
                f'ds_write_b64 v{120+t}, {vr(o+2*t,2)} offset:{128*b}')
    a.e('s_waitcnt lgkmcnt(0)')
    for t in range(4): a.e(f'ds_read_b64_tr_b16 {vr(176+4*t,2)}, v{115+t}', f'ds_read_b64_tr_b16 {vr(178+4*t,2)}, v{115+t} offset:512')
    for t in range(4): a.e(f's_waitcnt lgkmcnt({6-2*t})', f'buffer_store_dwordx4 {vr(176+4*t,4)}, v14, {S4(SRD_E)}, s{S_G0+t} offen {SC}')
    a.e('s_cmp_ge_u32 s2, 224', 's_cbranch_scc1 C_k3skip')

    ACC3 = 80
    def acc3(tf, td): return ACC3 + 16 * td + 4 * tf
    tiles(a, 7, 2)
    a.e(f's_and_b32 s{S_G0+2}, s{S_WAVE}, 1', f's_lshr_b32 s{S_T2}, s{S_WAVE}, 1',
        f's_lshl_b32 s{S_T0}, s{S_TJ}, 8', f's_lshl_b32 s{S_G0}, s{S_G0+2}, 7', f's_add_u32 s{S_T0}, s{S_T0}, s{S_G0}',
        'v_lshlrev_b32 v16, 3, v5', f'v_add_u32 v16, s{S_T0}, v16')
    srd(a, SRD_C, P_B1, 0, 3584 * 2)
    for tf in range(4): a.e(f'buffer_load_dwordx2 {vr(144+2*tf,2)}, v16, {S4(SRD_C)}, 0 offen offset:{32*tf}')
    srd(a, SRD_D, P_WL, U_OFF, UB)
    a.e('v_lshl_add_u32 v17, v5, 3, v6', 'v_lshlrev_b32 v17, 8, v17', 'v_lshl_add_u32 v17, v7, 3, v17', 'v_lshl_or_b32 v18, v2, 2, v6', 'v_lshl_add_u32 v17, v18, 5, v17',
        f's_lshl_b32 s{S_T0}, s{S_G0+2}, 7', f's_add_u32 s{S_T0}, s{S_T0}, 16384', f'v_xor_b32 v18, s{S_T0}, v17', f's_lshl_b32 s{S_T0}, s{S_T2}, 13', f'v_add_u32 v12, s{S_T0}, v14')
    for t in range(4): a.e(f'v_xor_b32 v{8+t}, {t << 5}, v18')
    a.e('v_bfe_u32 v17, v4, 2, 1', 'v_lshlrev_b32 v17, 10, v17', 'v_lshl_add_u32 v17, v3, 8, v17', 'v_lshrrev_b32 v18, 3, v4', 'v_lshl_add_u32 v17, v18, 6, v17',
        'v_lshl_add_u32 v152, v7, 4, v17', 'v_add_u32 v153, 128, v152',
        f's_lshl_b32 s{S_T0}, s{S_TI}, 1', f's_add_u32 s{S_T0}, s{S_T0}, s{S_T2}', f's_mul_i32 s{S_T0}, s{S_T0}, 224',
        f's_lshl_b32 s{S_G0}, s{S_TJ}, 2', f's_add_u32 s{S_T0}, s{S_T0}, s{S_G0}', f's_lshl_b32 s{S_G0}, s{S_G0+2}, 1', f's_add_u32 s{S_T0}, s{S_T0}, s{S_G0}',
        f's_lshl_b32 s{S_G0}, s{S_T0}, 11', f's_add_u32 s{S_G0+1}, s{S_G0}, {112*2048}')
    a.e('s_waitcnt vmcnt(0)', 's_barrier', *stamp(7))
    for tf in range(4):
        a.e(*unpack4(144 + 2 * tf, 145 + 2 * tf, acc3(tf, 0)))
        for td in range(1, 4): a.e(f'v_mov_b64 {vr(acc3(tf,td),2)}, {vr(acc3(tf,0),2)}', f'v_mov_b64 {vr(acc3(tf,td)+2,2)}, {vr(acc3(tf,0)+2,2)}')
    reads = [[], []]; mf = [[], []]
    for h in range(2):
        F = 16 + 32 * h
        rd = lambda dst, av: [f'ds_read_b64_tr_b16 {vr(dst,2)}, v{av} offset:{h*8192}', f'ds_read_b64_tr_b16 {vr(dst+2,2)}, v{av} offset:{h*8192+1024}']
        for t in range(4): reads[h] += rd(F + 4 * t, 8 + t) + [f'ds_read_b128 {vr(F+16+4*t,4)}, v12 offset:{(2*t+h)*1024}']
        for tf, td in sorted([(tf, td) for tf in range(4) for td in range(4)], key=lambda x: (max(x), x)):
            mf[h].append(f'{MF16} {vr(acc3(tf,td),4)}, {vr(F+4*tf,4)}, {vr(F+16+4*td,4)}, {vr(acc3(tf,td),4)}')
    if ONEP: a.e('s_barrier')
    c_loop(a, 32, 5, 32768, reads, mf, list(range(8, 13)), True, 8)
    c1 = -2.0 * 0.7978845608028654 * 1.4426950408889634
    a.e(f'v_mov_b32 v16, {f32(c1)}', f'v_mov_b32 v17, {f32(c1 * 0.044715)}')
    k = 0
    for td in range(4):
        for P in range(2):
            d = acc3(2 * P, td); T = 24 + 16 * (k & 1); k += 1
            O = 160 + 4 * k
            for e in range(0, 8, 2): a.e(f'v_pk_mul_f32 {vr(T+e,2)}, {vr(d+e,2)}, {vr(d+e,2)}')
            for e in range(0, 8, 2): a.e(f'v_pk_fma_f32 {vr(T+e,2)}, {vr(T+e,2)}, v[16:17], v[16:17] op_sel:[0,1,0] op_sel_hi:[1,1,0]')
            for e in range(0, 8, 2): a.e(f'v_pk_mul_f32 {vr(T+e,2)}, {vr(T+e,2)}, {vr(d+e,2)}')
            for e in range(8): a.e(f'v_exp_f32 v{T+e}, v{T+e}')
            for e in range(0, 8, 2): a.e(f'v_pk_add_f32 {vr(T+e,2)}, {vr(T+e,2)}, 1.0 op_sel_hi:[1,0]')
            for e in range(8): a.e(f'v_rcp_f32 v{T+e}, v{T+e}')
            for e in range(0, 8, 2): a.e(f'v_pk_mul_f32 {vr(T+e,2)}, {vr(T+e,2)}, {vr(d+e,2)}')
            for e in range(4): a.e(f'v_cvt_pk_bf16_f32 v{O+e}, v{T+2*e}, v{T+2*e+1}')
            a.e(f'v_permlane16_swap_b32 v{O}, v{O+2}', f'v_permlane16_swap_b32 v{O+1}, v{O+3}')
            a.e(f'buffer_store_dwordx4 {vr(O,4)}, v{152+(td&1)}, {S4(SRD_D)}, s{S_G0+(td>>1)} offen offset:{2048*P} {SC}')
    a.e('C_k3skip:'); a.flush_hist()

    def acc4(aa, n): return ACC + 8 * n + 4 * aa
    tiles(a, 8, 2)
    a.e(f's_lshl_b32 s{S_T0}, s{S_TJ}, 6', f'v_add_u32 v13, s{S_T0}, v4', 'v_lshlrev_b32 v12, 11, v13', 'v_lshl_add_u32 v12, v5, 4, v12',
        f's_lshl_b32 s{S_T0}, s{S_TI}, 8', f's_lshl_b32 s{S_T1}, s{S_WAVE}, 6', f's_add_u32 s{S_T0}, s{S_T0}, s{S_T1}',
        f'v_add_u32 v12, s{S_T0}, v12', 'v_lshlrev_b32 v13, 1, v13', 'v_lshlrev_b32 v14, 4, v0',
        f's_lshl_b32 s{S_BA}, s{S_TI}, 2', f's_add_u32 s{S_BA}, s{S_BA}, s{S_WAVE}', f's_mul_i32 s{S_BA}, s{S_BA}, {56*4096}',
        's_mov_b32 s45, 32768', 's_mov_b32 s46, 65536', 's_mov_b32 s47, 98304')
    so = ['0', 's45', 's46', 's47']
    srd(a, SRD_A, P_WL, U_OFF, UB)
    srd(a, SRD_C, P_WL, X1_OFF, XB)
    srd(a, SRD_B, P_B2, 0, 4096)
    for n in range(4): a.e(f'buffer_load_ushort v{RES+16+2*n}, v13, {S4(SRD_B)}, 0 offen offset:{32*n}')
    tr128_addr(a, [8, 9, 10, 11], K4_BASE, 16, 17)
    direct_setup(a, 56)
    a.e('v_lshlrev_b32 v222, 3, v0', f's_lshl_b32 s{S_T0}, s{S_WAVE}, 9', f's_add_u32 s{S_T0}, s{S_T0}, {K4_SCR}', f'v_add_u32 v223, s{S_T0}, v222')
    poll_setup(a, SRD_E, 15, 2, 0, [f's_lshl_b32 s{S_T0}, s{S_TI}, 5'], 28)
    a.e('s_waitcnt vmcnt(0)', 's_barrier', *stamp(10))
    if PF2:
        a.e('s_cmp_lt_u32 s2, 224', 's_cbranch_scc1 C_nopf', f's_cmp_lg_u32 s{S_VAR}, 0', 's_cbranch_scc1 C_nopf')
        srd(a, SRD_D, P_W2, 0, 3584 * 2048 * 2)
        a.e(f's_sub_u32 s{S_T0}, s2, 224', f's_lshl_b32 s{S_T0}, s{S_T0}, 2', f's_add_u32 s{S_T0}, s{S_T0}, s{S_WAVE}', f's_lshl_b32 s{S_T0}, s{S_T0}, 13', 'v_lshlrev_b32 v17, 7, v0')
        for j in range(14):
            a.e(f'buffer_load_dword v18, v17, {S4(SRD_D)}, s{S_T0} offen', f's_add_u32 s{S_T0}, s{S_T0}, {128*8192}', *(['s_waitcnt vmcnt(1)'] if j else []))
        a.e('C_nopf:')
    poll(a, SRD_E, 15, 16)
    a.e(*stamp(11))
    for n in range(4): a.e(f'buffer_load_dwordx4 {vr(RES+4*n,4)}, v12, {S4(SRD_C)}, {so[n]} offen {LDF}')
    sel(a, SRD_E, P_WS, X2_OFF, P_OUT, 0, XB)
    srd(a, SRD_B, P_WS, LSTR + RS_OFF, 8 * 2048 * 8)
    def init4(out):
        a.e(f's_waitcnt vmcnt({out})')
        for n in range(4):
            a.e(f'v_lshlrev_b32 v{RES+16+2*n}, 16, v{RES+16+2*n}')
            a.e(*unpack4(RES + 4 * n, RES + 4 * n + 1, acc4(0, n)), *unpack4(RES + 4 * n + 2, RES + 4 * n + 3, acc4(1, n)))
            for e in range(0, 8, 2): a.e(f'v_pk_add_f32 {vr(acc4(0,n)+e,2)}, {vr(acc4(0,n)+e,2)}, {vr(RES+16+2*n,2)} op_sel_hi:[1,0]')
    mf4 = lambda h, b: [f'{MF16} {vr(acc4(aa,n),4)}, {vr(b+4*aa,4)}, {vr(16+16*h+4*n,4)}, {vr(acc4(aa,n),4)}' for n in range(4) for aa in range(2)]
    c_direct(a, 56, K4_NS, 8192, w_reads([8, 9, 10, 11]), mf4, [8, 9, 10, 11], DR, D, 14, init4, 12)
    def st4():
        for n in range(4):
            for e in range(4): a.e(f'v_cvt_pk_bf16_f32 v{RES+4*n+e}, v{acc4(0,n)+2*e}, v{acc4(0,n)+2*e+1}')
            a.e(f'buffer_store_dwordx4 {vr(RES+4*n,4)}, v12, {S4(SRD_E)}, {so[n]} offen {SC}')
    a.e(f's_cmp_eq_u32 s{S_VAR}, 0', 's_cbranch_scc1 C_st')
    st4()
    a.e('s_branch C_end', 'C_st:', 's_nop 7')
    for n in range(4):
        d = acc4(0, n); T = 16 + 4 * n
        a.e(f'v_pk_add_f32 {vr(T,2)}, {vr(d,2)}, {vr(d+2,2)}', f'v_pk_mul_f32 {vr(T+2,2)}, {vr(d,2)}, {vr(d,2)}', f'v_pk_fma_f32 {vr(T+2,2)}, {vr(d+2,2)}, {vr(d+2,2)}, {vr(T+2,2)}')
        for e in (4, 6): a.e(f'v_pk_add_f32 {vr(T,2)}, {vr(T,2)}, {vr(d+e,2)}', f'v_pk_fma_f32 {vr(T+2,2)}, {vr(d+e,2)}, {vr(d+e,2)}, {vr(T+2,2)}')
        a.e(f'v_add_f32 v{32+n}, v{T}, v{T+1}', f'v_add_f32 v{36+n}, v{T+2}, v{T+3}')
    for b in (32, 36): a.e(f'v_permlane16_swap_b32 v{b}, v{b+1}', f'v_permlane16_swap_b32 v{b+2}, v{b+3}')
    for b in (32, 36): a.e(f'v_add_f32 v{b}, v{b}, v{b+1}', f'v_add_f32 v{b+2}, v{b+2}, v{b+3}')
    a.e('v_permlane32_swap_b32 v32, v34', 'v_permlane32_swap_b32 v36, v38', 'v_add_f32 v40, v32, v34', 'v_add_f32 v41, v36, v38',
        'ds_write_b64 v223, v[40:41]')
    st4()
    a.e('s_waitcnt lgkmcnt(0)', 's_barrier',
        f's_cmp_lg_u32 s{S_WAVE}, 0', 's_cbranch_scc1 C_nost',
        'ds_read_b64 v[44:45], v223 offset:512', 'ds_read_b64 v[46:47], v223 offset:1024', 'ds_read_b64 v[18:19], v223 offset:1536',
        f's_lshl_b32 s{S_T0}, s{S_TI}, 14', f's_lshl_b32 s{S_T1}, s{S_TJ}, 9', f's_add_u32 s{S_T0}, s{S_T0}, s{S_T1}', 's_waitcnt lgkmcnt(0)',
        'v_pk_add_f32 v[40:41], v[40:41], v[44:45]', 'v_pk_add_f32 v[46:47], v[46:47], v[18:19]', 'v_pk_add_f32 v[40:41], v[40:41], v[46:47]',
        f'buffer_store_dwordx2 v[40:41], v222, {S4(SRD_B)}, s{S_T0} offen {SC}', 'C_nost:', 's_nop 1')
    k1_setup_c()
    a.e('s_waitcnt vmcnt(0)', 's_barrier', *stamp(14))
    if ONEP: a.e('s_barrier')
    a.e(f's_mov_b32 s{S_VAR}, 1', 's_mov_b32 s51, 9', f's_add_u32 s{P_WL}, s{P_WS}, {0 if REUSE else LSTR}', f's_addc_u32 s{P_WL+1}, s{P_WS+1}, 0', 's_branch C_top')
    a.e('C_end:'); dump(a)
    a.e('s_endpgm')

    gx = dict(sg=S_G0, dmas=[(8 + i, 1024 * i, 'A', None) for i in range(4)])
    gw = [dict(sg=S_G0 + 2 + m, dmas=[(13 + 2 * m, 0, 'B', None), (14 + 2 * m, 1024, 'B', None)]) for m in range(3)]
    gh = dict(sg=S_G0 + 1, dmas=[(12, 0, 'A', 's[52:53]')])
    def k1_setup_l(layer):
        tiles(a, 8, 1)
        a.e(f's_mov_b32 s{S_T2}, s{S_LWV}')
        dma_w128(a, [13, 14], 6144, swz128(a), 16, 2, 3, 4)
        a.e('v_add_u32 v15, 2048, v13', 'v_add_u32 v16, 2048, v14', 'v_add_u32 v17, 4096, v13', 'v_add_u32 v18, 4096, v14',
            f's_lshl_b32 s{S_G0+2}, s{S_T2}, 11', f's_add_u32 s{S_G0+2}, s{S_G0+2}, {XT}', f's_add_u32 s{S_G0+3}, s{S_G0+2}, 8192', f's_add_u32 s{S_G0+4}, s{S_G0+2}, 16384',
            f's_lshl_b32 s{S_BB}, s{S_TJ}, 7')
        if layer == 0: a.e('s_waitcnt lgkmcnt(0)')
        srd(a, SRD_B, P_WQKV, 0, 1024 * 3072 * 2)
        pre_w(a, 16, 3, 2, ST1, 0, 64 * 6144, gw)
        def xaddr(v, comp):
            a.e('v_lshrrev_b32 v2, 3, v0', f'v_add_u32 v2, s{S_T0}, v2', 'v_bfe_u32 v3, v2, 1, 3', 'v_and_b32 v4, 7, v0', 'v_xor_b32 v3, v3, v4', 'v_lshlrev_b32 v3, 4, v3',
                f'v_add_u32 v2, s{S_T1}, v2', 'v_max_i32 v2, 0, v2', 'v_lshlrev_b32 v2, 11, v2', f'v_add_u32 v{v}, v2, v3')
            if comp: a.e(f'v_subrev_u32 v{v}, {comp}, v{v}')
        a.e(f's_lshl_b32 s{S_T1}, s{S_TI}, 7', f's_sub_u32 s{S_T1}, s{S_T1}, 16')
        for i in range(2):
            a.e(f's_lshl_b32 s{S_T0}, s{S_T2}, 5', f's_add_u32 s{S_T0}, s{S_T0}, {16+8*i}')
            xaddr(8 + i, 1024 * i)
            a.e(f'v_add_u32 v{10+i}, {16*2048-2048}, v{8+i}')
        a.e(f's_lshl_b32 s{S_T0}, s{S_T2}, 3'); xaddr(12, 0)
        a.e(f's_lshl_b32 s{S_G0}, s{S_T2}, 12', f's_add_u32 s{S_G0}, s{S_G0}, 2048', f's_lshl_b32 s{S_G0+1}, s{S_T2}, 10', f's_mov_b32 s{S_BA}, 0',
            f's_cmp_eq_u32 s{S_T2}, 0', 's_cselect_b32 s52, 0xffffff00, -1', 's_mov_b32 s53, -1')
        a.e('v_mov_b32 v20, 0x3f803f80', 'v_mov_b32 v21, v20', 'v_mov_b32 v22, v20', 'v_mov_b32 v23, v20', 'v_lshlrev_b32 v24, 4, v0', f'v_add_u32 v25, {2*ST1}, v24',
            's_mov_b64 exec, 0xff', 'ds_write_b128 v24, v[20:23]', f'ds_write_b128 v24, v[20:23] offset:{ST1}', 'ds_write_b128 v25, v[20:23]', 's_mov_b64 exec, -1')
        if layer == 0: srd(a, SRD_A, P_X, 0, XB)
        else: srd(a, SRD_A, P_WS, X2_OFF, XB)
        srd(a, SRD_D, P_WS, layer * LSTR + RS_OFF, 2048 * 8 if SINGLE and layer == 0 else 8 * 2048 * 8)
        a.e(f's_lshl_b32 s{S_T0}, s{S_T2}, 6', f'v_add_u32 v26, s{S_T0}, v0', 'v_min_u32 v26, 143, v26', f'v_add_u32 v27, s{S_T1}, v26', 'v_max_i32 v27, 0, v27',
            'v_lshlrev_b32 v27, 3, v27', 'v_lshlrev_b32 v26, 3, v26', f'v_add_u32 v26, {SL}, v26', 's_waitcnt lgkmcnt(0)')
    a.e('L_start:'); a.flush_hist()
    a.e(f's_sub_u32 s{S_LWV}, s{S_WAVE}, 4', 'v_and_b32 v134, 3, v0', 'v_lshlrev_b32 v134, 6, v134')
    k1_setup_l(0)
    a.e(f's_mov_b32 s{P_WL}, s{P_WS}', f's_mov_b32 s{P_WL+1}, s{P_WS+1}')
    srd(a, SRD_C, P_WS, 0, 64 * MB)
    a.e(f's_lshl_b32 s{S_T0}, s2, 3', f's_lshl_b32 s{S_T1}, s{S_LWV}, 1', f's_add_u32 s{S_T0}, s{S_T0}, s{S_T1}',
        'v_lshrrev_b32 v72, 5, v0', f'v_add_u32 v72, s{S_T0}, v72', 'v_lshlrev_b32 v46, 11, v72', 'v_and_b32 v2, 31, v0', 'v_lshl_add_u32 v46, v2, 4, v46',
        'v_lshlrev_b32 v72, 3, v72', f'v_add_u32 v72, {RS_OFF}, v72',
        f's_cmp_eq_u32 s{S_LWV}, 0', 's_cselect_b32 s58, 0, -1', 'v_mov_b32 v64, s58', 'v_mov_b32 v65, s58', 'v_mov_b32 v66, s58', 'v_mov_b32 v67, s58',
        'v_lshrrev_b32 v2, 3, v0', 'v_lshlrev_b32 v2, 15, v2', 'v_and_b32 v3, 7, v0', 'v_lshl_add_u32 v2, v3, 4, v2', 'v_lshlrev_b32 v3, 4, v0',
        's_cselect_b64 vcc, -1, 0', 's_lshl_b32 s58, s2, 7', f's_add_u32 s58, s58, {FL_OFF}', 's_lshl_b32 s59, s2, 10', f's_add_u32 s59, s59, {ST_OFF}',
        f's_cmp_eq_u32 s{S_LWV}, 0', 's_cselect_b32 s58, s58, s59', f's_add_u32 s59, s59, {LSTR}', f's_cmp_eq_u32 s{S_LWV}, 2', 's_cselect_b32 s58, s59, s58',
        f's_cmp_eq_u32 s{S_LWV}, 3', f's_cselect_b32 s58, {128*MB}, s58',
        'v_cndmask_b32 v47, v3, v2, vcc', 's_and_b32 s59, s2, 3', 's_lshl_b32 s59, s59, 6', 'v_mov_b32 v73, s59', 'v_mov_b32 v74, 1')
    a.e('L_top:'); a.flush_hist()
    flag_idx(a, 0, S_TI, 16, S_TJ)
    srd(a, SRD_E, P_W1, 0, 2048 * 3584 * 2)
    a.e(f's_lshl_b32 s54, s2, 2', f's_add_u32 s54, s54, s{S_LWV}', f's_mul_i32 s54, s54, {NPF*128}', f's_add_u32 s54, s54, {W1_K0}')
    gl = f'global_load_dword v29, v134, s[{P_DB}:{P_DB+1}] {SC}'
    def h_gate(n):
        if SINGLE: a.e(gl)
    def h_fetch(n):
        l = lab('st')
        if SINGLE:
            a.e(f's_cmp_lg_u32 s{S_VAR}, 0', f's_cbranch_scc1 {l}g', f's_waitcnt vmcnt({n})', 's_mov_b32 s61, 0')
            a.loop([f'{l}p:', 'v_cmp_gt_u32 vcc, 64, v29', 's_add_u32 s61, s61, 1', f's_cmp_gt_u32 s61, {SPIN}', f's_cbranch_scc1 {l}g', f's_cbranch_vccz {l}g', gl, 's_waitcnt vmcnt(0)', f's_branch {l}p'])
            a.e(f'{l}g:')
        for p in range(8):
            if p: a.e(f's_mov_b32 s{S_T0}, {p*16384}')
            a.e(f'buffer_load_dwordx2 {vr(30+2*p,2)}, v27, {S4(SRD_D)}, {"0" if p == 0 else f"s{S_T0}"} offen {LDF}')
    def h_fin(n):
        a.e(f's_waitcnt vmcnt({n})', 'v_pk_add_f32 v[30:31], v[30:31], v[32:33]', 'v_pk_add_f32 v[34:35], v[34:35], v[36:37]', 'v_pk_add_f32 v[38:39], v[38:39], v[40:41]',
            'v_pk_add_f32 v[42:43], v[42:43], v[44:45]', 'v_pk_add_f32 v[30:31], v[30:31], v[34:35]', 'v_pk_add_f32 v[38:39], v[38:39], v[42:43]',
            'v_pk_add_f32 v[30:31], v[30:31], v[38:39]')
        stats_finish(a, 30, 31, 32, False)
        a.e('ds_write_b64 v26, v[30:31]', 's_waitcnt lgkmcnt(0)')
    HK = (h_gate, h_fetch)
    def only0(f):
        def g(n):
            l = lab('e'); a.e(f's_cmp_lg_u32 s{S_VAR}, 0', f's_cbranch_scc1 {l}'); f(n); a.e(f'{l}:', 's_nop 1')
        return g
    def e_load(n):
        for c in range(4): a.e(f'buffer_load_dwordx4 {vr(48+4*c,4)}, v46, {S4(SRD_A)}, 0 offen offset:{512*c}')
        a.e(f'buffer_store_dwordx4 v[64:67], v47, {S4(SRD_C)}, s58 offen {SC}', 's_barrier')
    def e_stat(n):
        a.e('v_mov_b32 v68, 0', 'v_mov_b32 v69, 0', 'v_mov_b32 v70, 0x3f803f80', f's_waitcnt vmcnt({n+1})')
        for e in range(16): a.e(f'v_dot2c_f32_bf16 v68, v70, v{48+e}', f'v_dot2c_f32_bf16 v69, v{48+e}, v{48+e}')
        for ctl in ('quad_perm:[1,0,3,2]', 'quad_perm:[2,3,0,1]', 'row_half_mirror', 'row_mirror'):
            a.e(f'v_add_f32_dpp v68, v68, v68 {ctl} row_mask:0xf bank_mask:0xf', f'v_add_f32_dpp v69, v69, v69 {ctl} row_mask:0xf bank_mask:0xf')
        a.e('v_mov_b32 v70, v68', 'v_mov_b32 v71, v69', 'v_permlane16_swap_b32 v68, v70', 'v_permlane16_swap_b32 v69, v71', 'v_add_f32 v68, v68, v70', 'v_add_f32 v69, v69, v71',
            's_mov_b32 exec_lo, 1', 's_mov_b32 exec_hi, 1', f'buffer_store_dwordx2 v[68:69], v72, {S4(SRD_C)}, 0 offen {SC}', 's_mov_b64 exec, -1')
    def e_gate(n):
        l = lab('g'); a.e(f's_cmp_lg_u32 s{S_LWV}, 0', f's_cbranch_scc1 {l}', 's_mov_b64 exec, 1', f'global_atomic_add v73, v74, s[{P_DB}:{P_DB+1}] sc1', 's_mov_b64 exec, -1', f'{l}:')
    EH = (only0(e_load), only0(e_stat), lambda n: None, only0(e_gate))
    a.e(f's_cmp_ge_u32 s{S_LWV}, 2', 's_cbranch_scc1 L_k1B')
    l_loop(a, 16, 3, 2, ST1, 0, 128, 64 * 6144, [gh, gx], gw, tail=1, hooks=HK, early=EH)
    a.e('s_branch L_k1t', 'L_k1B:'); a.flush_hist()
    l_loop(a, 16, 3, 2, ST1, 0, 128, 64 * 6144, [gx], gw, tail=1, hooks=HK, early=EH)
    a.e('L_k1t:'); a.flush_hist()
    h_fin(0)
    a.e(f's_mov_b32 s{S_T2}, s{S_LWV}')
    dma_w128(a, [130, 131], 2048, swz128(a), 16, 2, 3, 4)
    srd(a, SRD_B, P_WO, 0, 1024 * 1024 * 2)
    a.e(*INITK, f's_lshl_b32 s{S_G0+8}, s{S_LWV}, 11')
    def wo(t0, t1):
        for t in range(t0, t1):
            a.e(*next_k(16), f's_lshl_b32 s{S_OB}, s{S_K}, 17', f's_add_u32 s{S_OB}, s{S_OB}, s{S_BB}', f's_add_u32 m0, s{S_G0+8}, {WO_SLOTS[t]}',
                f'buffer_load_dwordx4 v130, {S4(SRD_B)}, s{S_OB} offen lds', f'buffer_load_dwordx4 v131, {S4(SRD_B)}, s{S_OB} offen offset:1024 lds')
    wo(0, 4)
    def pf3(j):
        if PF3 > j: a.e(f's_add_u32 s{S_T0}, s54, {j*8*MB}', f'buffer_load_dword v223, v132, {S4(SRD_E)}, s{S_T0} offen')
    if PF3:
        a.e(f's_cmp_eq_u32 s{S_VAR}, 0', f's_cselect_b32 s{SRD_E+2}, s{SRD_E+2}, 0', 's_lshl_b32 s54, s2, 2', f's_add_u32 s54, s54, s{S_LWV}', 's_lshl_b32 s54, s54, 13',
            f's_add_u32 s54, s54, {W1_K0}', 'v_lshlrev_b32 v132, 7, v0')
    pf3(0)
    x = 1 if PF3 else 0
    if PFT:
        srd(a, SRD_C, P_W2, 0, 3584 * 2048 * 2)
        a.e(f's_cmp_eq_u32 s{S_VAR}, 0', f's_cselect_b32 s{SRD_E+2}, s{SRD_E+2}, 0', f's_cselect_b32 s{SRD_C+2}, s{SRD_C+2}, 0',
            's_lshr_b32 s54, s2, 3', 's_lshl_b32 s54, s54, 2', f's_add_u32 s54, s54, s{S_LWV}', 's_lshl_b32 s54, s54, 18', 'v_lshlrev_b32 v132, 12, v0', 'v_add_u32 v132, s54, v132',
            f'v_subrev_u32 v133, {16*MB}, v132', f'buffer_load_dword v223, v132, {S4(SRD_E)}, 0 offen', f'buffer_load_dword v222, v133, {S4(SRD_C)}, 0 offen')
        x += 2
    a.e(f's_waitcnt vmcnt({8+x})', 's_barrier')
    wo(4, 7)
    lane_fields(a)
    a.e('s_waitcnt lgkmcnt(0)', 's_barrier')
    pf3(1)
    wo(7, 12)
    a.e('s_branch attn')
    a.e('L_k1done:'); a.flush_hist()
    publish_pre(a)
    a.e('s_waitcnt vmcnt(0)', 's_barrier')
    publish(a, 2)
    wo(12, 16)
    flag_idx(a, 1, S_TJ, 16, S_TI)
    if ONEP: a.e('s_barrier')
    a.e('s_waitcnt vmcnt(0)', 's_barrier')
    g4 = [dict(sg=S_G0 + 1, dmas=[(9, 0, 'B', None), (10, 1024, 'B', None)])]
    def k4_setup_l():
        tiles(a, 8, 2)
        a.e(f's_mov_b32 s{S_T2}, s{S_LWV}', f's_lshl_b32 s{S_G0+1}, s{S_T2}, 11')
        dma_w128(a, [9, 10], 4096, swz128(a), 16, 2, 3, 4)
        a.e(f's_lshl_b32 s{S_BB}, s{S_TJ}, 7')
        srd(a, SRD_B, P_W2, 0, 3584 * 2048 * 2)
    a.e('s_cmp_ge_u32 s2, 224', 's_cbranch_scc1 L_k3skip')
    tiles(a, 7, 2)
    a.e(f's_lshl_b32 s{S_G0}, s{S_LWV}, 12', f's_add_u32 s{S_G0+1}, s{S_G0}, 16384', 'v_lshlrev_b32 v8, 4, v0', f'v_add_u32 v13, {65536-2048}, v8',
        'v_lshrrev_b32 v2, 4, v0', 'v_lshlrev_b32 v3, 1, v2', 'v_and_b32 v4, 15, v0', 'v_xor_b32 v3, v3, v4', 'v_lshlrev_b32 v3, 4, v3',
        f's_lshl_b32 s{S_T0}, s{S_LWV}, 4', f'v_add_u32 v2, s{S_T0}, v2', f's_mov_b32 s{S_T0}, 7168', f'v_mul_lo_u32 v2, v2, s{S_T0}',
        'v_add_u32 v9, v2, v3', 'v_xor_b32 v3, 128, v3', 'v_add_u32 v11, v2, v3',
        f'v_add_u32 v10, {4*7168-1024}, v9', f'v_add_u32 v12, {3*(4*7168-1024)}, v11', f'v_add_u32 v11, {2*(4*7168-1024)}, v11',
        f's_lshl_b32 s{S_BA}, s{S_TI}, 2', f's_add_u32 s{S_BA}, s{S_BA}, s{S_LWV}', f's_lshl_b32 s{S_BA}, s{S_BA}, 17', f's_lshl_b32 s{S_BB}, s{S_TJ}, 8')
    srd(a, SRD_A, P_WL, H_OFF, XB)
    srd(a, SRD_B, P_W1, 0, 2048 * 3584 * 2)
    g3a = [dict(sg=S_G0, dmas=[(8 if i < 2 else 13, 1024 * i, 'A', None) for i in range(4)])]
    g3w = [dict(sg=S_G0 + 1, dmas=[(9 + i, 1024 * i, 'B', None) for i in range(4)])]
    poll_setup(a, SRD_C, 14, 1, 0, [f's_lshl_b32 s{S_T0}, s{S_TI}, 5'], 32)
    for j in range(PF4):
        a.e(f's_lshr_b32 s{S_T0}, s2, 3', f's_add_u32 s{S_T0}, s{S_T0}, {28*j}', f's_lshl_b32 s{S_T0}, s{S_T0}, 2', f's_add_u32 s{S_T0}, s{S_T0}, s{S_LWV}', f's_lshl_b32 s{S_T0}, s{S_T0}, 6',
            f'v_add_u32 v2, s{S_T0}, v0', 'v_mul_u32_u24 v3, 74899, v2', 'v_lshrrev_b32 v3, 20, v3', 'v_mul_u32_u24 v4, 14, v3', 'v_sub_u32 v4, v2, v4',
            'v_add_u32 v3, 192, v3', 'v_mul_u32_u24 v3, 7168, v3', 'v_lshl_add_u32 v3, v4, 7, v3', f's_and_b32 s{S_T0}, s2, 3', f's_mul_i32 s{S_T0}, s{S_T0}, 1792', f's_lshl_b32 s{S_T1}, s{S_VAR}, 30', f's_add_u32 s{S_T0}, s{S_T0}, s{S_T1}', f'v_add_u32 v{16+j}, s{S_T0}, v3')
    a.e('s_barrier')
    if not LATEW: pre_w(a, 32, 5, 3, 32768, 0, 64 * 7168, g3w)
    a.e('s_barrier')
    publish(a, 2)
    if LATEW: pre_w(a, 32, 5, 3, 32768, 0, 64 * 7168, g3w)
    for j in range(PF4): a.e(f'buffer_load_dword v223, v{16+j}, {S4(SRD_B)}, 0 offen')
    flag_idx(a, 2, S_TI, 32, S_TJ)
    poll(a, SRD_C, 14, 15)
    l_loop(a, 32, 5, 3, 32768, 0, 2048, 64 * 7168, g3a, g3w, st=True)
    k4_setup_l()
    a.e('s_branch L_k4', 'L_k3skip:'); a.flush_hist()
    k4_setup_l()
    a.e('s_barrier')
    a.e('L_k4:'); a.flush_hist()
    pre_w(a, 56, K4_NS, K4_AH, 8192, K4_BASE, 64 * 4096, g4)
    a.e('s_barrier')
    publish(a, 2)
    flag_idx(a, 3, S_TJ, 8, S_TI)
    if ONEP: a.e('s_barrier')
    l_loop(a, 56, K4_NS, K4_AH, 8192, K4_BASE, 0, 64 * 4096, [], g4)
    a.e(f's_cmp_lg_u32 s{S_VAR}, 0', 's_cbranch_scc1 L_end')
    k1_setup_l(1)
    poll_setup(a, SRD_C, 28, 3, 0, [f's_lshl_b32 s{S_T0}, s{S_TI}, 4', f's_sub_u32 s{S_T0}, s{S_T0}, 8'], 24)
    a.e('s_barrier', 's_barrier')
    publish(a, 2)
    poll(a, SRD_C, 28, 29)
    a.e(f's_mov_b32 s{S_VAR}, 1', f's_add_u32 s{P_WL}, s{P_WS}, {0 if REUSE else LSTR}', f's_addc_u32 s{P_WL+1}, s{P_WS+1}, 0', 's_branch L_top')
    a.e('L_end:')
    if PROF: a.e(f's_cmp_lg_u32 s{S_LWV}, 0', f's_cbranch_scc1 {kn}_end', 's_lshl_b32 s58, s2, 8', f's_add_u32 s58, s58, {PR_OFF + MB}', 'v_lshlrev_b32 v254, 2, v0', 'v_add_u32 v254, s58, v254', f'global_store_dword v254, v255, s[{P_WS}:{P_WS+1}]')
    a.e(f'{kn}_end:', 's_endpgm')

def dump(a):
    if not PROF: return
    a.e('s_waitcnt vmcnt(0)', *stamp(14), f's_cmp_lg_u32 s{S_WAVE}, 0', 's_cbranch_scc1 nodump', 's_lshl_b32 s58, s2, 8', f's_add_u32 s58, s58, {PR_OFF}',
        'v_lshlrev_b32 v254, 2, v0', 'v_add_u32 v254, s58, v254', f'global_store_dword v254, v{PV}, s[{P_WS}:{P_WS+1}]', 'nodump:')

def gen_k0(a):
    a.e('.p2align 8', 'k0_kernel:', 's_cmp_ge_u32 s2, 256', 's_cbranch_scc1 k0_end',
        's_load_dwordx16 s[64:79], s[0:1], 0', 's_load_dwordx2 s[84:85], s[0:1], 80',
        'v_lshrrev_b32 v1, 6, v0', 'v_lshlrev_b32 v20, 4, v0', 'v_and_b32 v0, 63, v0', f'v_readfirstlane_b32 s{S_WAVE}, v1',
        's_lshl_b32 s30, s2, 3', f's_add_u32 s30, s30, s{S_WAVE}',
        's_lshl_b32 s31, s30, 11', 'v_lshlrev_b32 v2, 5, v0',
        's_lshl_b32 s32, s2, 2', f's_and_b32 s33, s{S_WAVE}, 3', 's_add_u32 s32, s32, s33', 's_lshl_b32 s32, s32, 13', 'v_lshlrev_b32 v3, 7, v0', 'v_add_u32 v3, s32, v3',
        f'v_subrev_u32 v4, {1024*3072*2}, v3', 's_waitcnt lgkmcnt(0)')
    srd(a, SRD_A, P_X, 0, XB)
    a.e(f'buffer_load_dwordx4 v[8:11], v2, {S4(SRD_A)}, s31 offen', f'buffer_load_dwordx4 v[12:15], v2, {S4(SRD_A)}, s31 offen offset:16')
    KW = int(env('K0WARM', '1'))
    srd(a, SRD_B, P_WQKV, 0, 1024 * 3072 * 2 * KW)
    srd(a, SRD_C, P_WO, 0, 1024 * 1024 * 2 * KW)
    srd(a, SRD_E, P_W1, 0, W1_K0)
    a.e(f's_sub_u32 s33, s{S_WAVE}, 4', 's_lshl_b32 s33, s33, 8', 's_add_u32 s33, s33, s2', 's_lshl_b32 s33, s33, 13', 'v_lshlrev_b32 v7, 7, v0',
        f's_cmp_ge_u32 s{S_WAVE}, 4', 's_cbranch_scc1 k0_nw', f'buffer_load_dword v5, v3, {S4(SRD_B)}, 0 offen', f'buffer_load_dword v6, v4, {S4(SRD_C)}, 0 offen', 's_branch k0_nx',
        'k0_nw:', f'buffer_load_dword v5, v7, {S4(SRD_E)}, s33 offen', 'k0_nx:')
    if CODEPF:
        a.e(f's_cmp_lg_u32 s{S_WAVE}, 7', 's_cbranch_scc1 k0_nc', 's_getpc_b64 s[40:41]', 'k0_pc:', 's_add_u32 s40, s40, mega_kernel-k0_pc', 's_addc_u32 s41, s41, 0',
            's_lshr_b32 s42, s2, 3', 's_lshl_b32 s42, s42, 11', 'v_and_b32 v25, 15, v0', 'v_lshlrev_b32 v25, 7, v25', 'v_add_u32 v25, s42, v25',
            'v_min_u32 v25, mega_end-mega_kernel, v25', 'global_load_dword v26, v25, s[40:41]', 'k0_nc:')
    srd(a, SRD_D, P_WS, 0, 64 * MB)
    a.e(f's_cmp_eq_u32 s{S_WAVE}, 0', 's_cselect_b32 s33, 0, -1', 'v_mov_b32 v16, s33', 'v_mov_b32 v17, s33', 'v_mov_b32 v18, s33', 'v_mov_b32 v19, s33',
        f's_mov_b32 s34, {ST_OFF}', f's_cselect_b32 s34, {FL_OFF}, s34', f's_cmp_eq_u32 s{S_WAVE}, 2', f's_cselect_b32 s34, {LSTR + ST_OFF}, s34', 's_lshl_b32 s35, s2, 10', 's_add_u32 s34, s34, s35',
        'v_lshlrev_b32 v20, 4, v0', f's_cmp_ge_u32 s{S_WAVE}, 3', 's_cbranch_scc1 k0_nr', f'buffer_store_dwordx4 v[16:19], v20, {S4(SRD_D)}, s34 offen', 'k0_nr:')
    a.e('v_mov_b32 v22, 0', 'v_mov_b32 v23, 0', 'v_mov_b32 v21, 0x3f803f80', 'v_lshrrev_b32 v24, 3, v0', 'v_lshlrev_b32 v24, 14, v24', 's_lshl_b32 s36, s30, 3', f's_add_u32 s36, s36, {RS_OFF}',
        's_waitcnt vmcnt(0)')
    for e in range(8): a.e(f'v_dot2c_f32_bf16 v22, v21, v{8+e}', f'v_dot2c_f32_bf16 v23, v{8+e}, v{8+e}')
    for ctl in ('quad_perm:[1,0,3,2]', 'quad_perm:[2,3,0,1]', 'row_half_mirror'):
        a.e(f'v_add_f32_dpp v22, v22, v22 {ctl} row_mask:0xf bank_mask:0xf', f'v_add_f32_dpp v23, v23, v23 {ctl} row_mask:0xf bank_mask:0xf')
    a.e('s_mov_b32 exec_lo, 0x01010101', 's_mov_b32 exec_hi, 0x01010101', f'buffer_store_dwordx2 v[22:23], v24, {S4(SRD_D)}, s36 offen', 'k0_end:', 's_endpgm')

def main(out):
    a = Asm()
    if not SINGLE: gen_k0(a); a.flush_hist()
    gen_mega(a)
    info = {} if SINGLE else {'k0_kernel': (32, 0)}
    info[MEGA] = (256, 163840)
    ref = open(os.path.join(os.path.dirname(os.path.abspath(__file__)), '..', NAME + '.s.ref')).read().splitlines()
    hdr = [l for l in ref if l.startswith(';') and '@launch' not in l and 'Override launch' not in l and 'grid=ceil' not in l]
    if SINGLE: hdr += ['; @launch grid=(256,1,1) block=(512,1,1) lds=163840']
    else: hdr += [f'; @launch kernel={n} grid=(256,1,1) block=(512,1,1) lds={v[1]}' for n, v in info.items()]
    s = '\n'.join(hdr) + '\n; generated by gen/gen2.py\n.amdgcn_target "amdgcn-amd-amdhsa--gfx950"\n.text\n'
    if SINGLE: s += f'.globl {MEGA}\n.type {MEGA},@function\n'
    s += a.text() + '.section .rodata,"a"\n'
    for n, (vg, _) in info.items():
        s += f'''.p2align 6
.amdhsa_kernel {n}
  .amdhsa_next_free_vgpr {vg}
  .amdhsa_next_free_sgpr 102
  .amdhsa_accum_offset {vg}
  .amdhsa_group_segment_fixed_size 0
  .amdhsa_kernarg_size 88
  .amdhsa_user_sgpr_count 2
  .amdhsa_user_sgpr_kernarg_segment_ptr 1
  .amdhsa_system_sgpr_workgroup_id_x 1
.end_amdhsa_kernel
'''
    open(out, 'w').write(s)

if __name__ == '__main__':
    main(sys.argv[1])
```

```python
import sys, os, struct
sys.path.insert(0, os.path.dirname(os.path.abspath(__file__)))
from asmlib import *
import gen as G
from gen import (NAME, MB, XB, UB, f32, env, S4, srd, next_k, adv_s, sched, bundle, spread, lane_fields, tr128_addr, swz128, unpack4,
                 dma_w128, stats_finish, MF16, S_VAR, S_WAVE, S_LI, S_LJ, S_PHI, SRD_A, SRD_B, SRD_C, SRD_D, SRD_E, S_TI, S_TJ,
                 S_P, S_W, S_T0, S_K, S_BA, S_BB, S_OA, S_OB, S_LW, S_CNT, S_T1, S_T2, S_DELTA, S_CUR, S_G0,
                 P_X, P_WQKV, P_WO, P_W1, P_B1, P_W2, P_B2, P_OUT, P_WS)

LSTR = 32 * MB
O_OFF, X1_OFF, H_OFF, U_OFF, ST_OFF, RS_OFF = 0, 4 * MB, 8 * MB, 12 * MB, 20 * MB, 21 * MB
X2_OFF, FL_OFF, PR_OFF = 24 * MB, 28 * MB, 64 * MB
P_WL = 82
S_LWV, S_FLG = 57, 56
SC = 'sc0 sc1'
LDF = env('LDF', 'sc1')
PROF = env('PROF') == '1'
PV = 255
SINGLE = env('SINGLE', '1') == '1'
MEGA = NAME + '_kernel' if SINGLE else 'mega_kernel'
P_DB = 62
SPIN = 100000
EXP = env('EXP', '')
SNAKE = int(env('SNAKE', '1'))
ONEP = int(env('ONEP', '1')); PS0 = int(env('PS0', '8')); PS1 = int(env('PS1', '0')); PP = int(env('PP', '1')); PSL = int(env('PSL', '4'))

def stamp(k):
    if not PROF: return []
    return ['s_memrealtime s[58:59]', 's_memtime s[100:101]', 's_waitcnt lgkmcnt(0)', f's_lshl_b32 s60, s{S_VAR}, 4', f's_add_u32 m0, s60, {k+1}', 's_nop 0', f'v_writelane_b32 v{PV}, s58, m0',
            's_add_u32 m0, m0, 32', 's_nop 0', f'v_writelane_b32 v{PV}, s100, m0']
G.stamp = lambda idx=None: []
G.cstamp = lambda idx: []

def lstamp(k): return ['s_memrealtime s[98:99]', 's_waitcnt lgkmcnt(0)', f'v_writelane_b32 v255, s98, {k}'] if PROF else []

def tiles(a, LN, xshift):
    a.e(f's_lshr_b32 s{S_T0}, s2, 3')
    if LN == 8: a.e(f's_lshr_b32 s{S_LI}, s{S_T0}, 3', f's_and_b32 s{S_LJ}, s{S_T0}, 7')
    else: a.e(f's_mul_i32 s{S_LI}, s{S_T0}, {65536 // LN + 1}', f's_lshr_b32 s{S_LI}, s{S_LI}, 16', f's_mul_i32 s{S_LJ}, s{S_LI}, {LN}', f's_sub_u32 s{S_LJ}, s{S_T0}, s{S_LJ}')
    a.e(f's_lshl_b32 s{S_PHI}, s{S_LI}, 1', f's_add_u32 s{S_PHI}, s{S_PHI}, s{S_LJ}', f's_and_b32 s{S_PHI}, s{S_PHI}, 7',
        f's_and_b32 s{S_T0}, s2, 7', f's_lshr_b32 s{S_TI}, s{S_T0}, {xshift}', f's_lshl_b32 s{S_TI}, s{S_TI}, 2', f's_add_u32 s{S_TI}, s{S_TI}, s{S_LI}',
        f's_and_b32 s{S_TJ}, s{S_T0}, {(1 << xshift) - 1}')
    if (TJS >> {(8, 1): 0, (7, 2): 1, (8, 2): 2}[(LN, xshift)]) & 1: a.e(f's_lshl_b32 s{S_T0}, s{S_LJ}, {xshift}', f's_add_u32 s{S_TJ}, s{S_TJ}, s{S_T0}', *INITK)
    else: a.e(f's_mul_i32 s{S_TJ}, s{S_TJ}, {LN}', f's_add_u32 s{S_TJ}, s{S_TJ}, s{S_LJ}', *INITK)
TJS = int(env('TJS', '0'))
INITK = [f's_mov_b32 s{S_P}, 7', f's_mov_b32 s{S_W}, -1']

def flag_idx(a, ph, hi, mul, lo):
    a.e(f's_lshl_b32 s{S_FLG}, s{S_VAR}, 10', f's_mul_i32 s{S_T0}, s{hi}, {mul}', f's_add_u32 s{S_FLG}, s{S_FLG}, s{S_T0}', f's_add_u32 s{S_FLG}, s{S_FLG}, s{lo}',
        f's_add_u32 s{S_FLG}, s{S_FLG}, {ph*256}', f's_lshl_b32 s{S_FLG}, s{S_FLG}, 7')

_n = [0]
def lab(p): _n[0] += 1; return f'{p}{_n[0]}'

def publish_pre(a):
    srd(a, SRD_E, P_WS, FL_OFF, 8 * 256 * 128)
    a.e('v_mov_b32 v136, 0', 'v_mov_b32 v137, 1', f's_cmp_eq_u32 s{S_LWV}, 0', f's_cselect_b32 s{SRD_E+2}, s{SRD_E+2}, 0')

def publish(a, vt=None):
    a.e('s_mov_b64 exec, 1', f'buffer_store_dword v137, v136, {S4(SRD_E)}, s{S_FLG} offen {SC}', 's_mov_b64 exec, -1')

def poll_setup(a, sr_, va, ph, dl, base_lines, n):
    srd(a, sr_, P_WS, FL_OFF, 8 * 256 * 128)
    a.e(*base_lines, f'v_min_u32 v{va}, {n-1}, v0', f'v_add_u32 v{va}, s{S_T0}, v{va}', f'v_max_i32 v{va}, 0, v{va}', f'v_lshlrev_b32 v{va}, 7, v{va}',
        f's_lshl_b32 s55, s{S_VAR}, 17', f's_add_u32 s55, s55, {(dl * 4 + ph) * 32768}')

def poll(a, sr_, va, vt):
    l = lab('poll')
    ld = lambda v: f'buffer_load_dword v{v}, v{va}, {S4(sr_)}, s55 offen {SC}'
    a.e(f's_mov_b32 s{S_CNT}, 0')
    if ONEP: a.e(f's_and_b32 s{S_T0}, s{S_WAVE}, 3', f's_cmp_lg_u32 s{S_T0}, 0', f's_cbranch_scc1 {l}d')
    if PS0: a.e(f's_sleep {PS0}')
    if PP <= 1:
        a.loop([f'{l}:'] + ([f's_sleep {PS1}'] if PS1 else []) + [ld(vt), 's_waitcnt vmcnt(0)', f'v_cmp_eq_u32 vcc, 0, v{vt}',
                f's_add_u32 s{S_CNT}, s{S_CNT}, 1', f's_cmp_gt_u32 s{S_CNT}, {SPIN}', f's_cbranch_scc1 {l}d', f's_cbranch_vccnz {l}'])
    else:
        R = [214 + i for i in range(PP)]
        for i in range(PP - 1): a.e(ld(R[i]), f's_sleep {PSL}')
        body = [f'{l}:']
        for i in range(PP):
            body += [ld(R[(i + PP - 1) % PP]), f's_waitcnt vmcnt({PP-1})', f'v_cmp_eq_u32 vcc, 0, v{R[i]}', f's_cbranch_vccz {l}d']
        a.loop(body + [f's_add_u32 s{S_CNT}, s{S_CNT}, 1', f's_cmp_le_u32 s{S_CNT}, {SPIN}', f's_cbranch_scc1 {l}'])
    a.e(f'{l}d:')
    if ONEP: a.e('s_barrier')

def dma_groups(groups, lw_s):
    L = []
    for g in groups:
        L.append(f's_add_u32 m0, s{lw_s}, s{g["sg"]}')
        for (v, imm, st, ex) in g['dmas']:
            srdn, so, fl = (SRD_A, S_OA, LDF) if st == 'A' else (SRD_B, S_OB, '')
            if ex: L.append(f's_mov_b64 exec, {ex}')
            L.append(f'buffer_load_dwordx4 v{v}, {S4(srdn)}, s{so} offen offset:{imm} {fl} lds')
            if ex: L.append('s_mov_b64 exec, -1')
    return L

def issue(NK, NS, stage, base, stepA, stepB, gA, gW):
    L = next_k(NK)
    if gA: L += [f's_mul_i32 s{S_OA}, s{S_K}, {stepA}', f's_add_u32 s{S_OA}, s{S_OA}, s{S_BA}']
    if gW: L += [f's_mul_i32 s{S_OB}, s{S_K}, {stepB}', f's_add_u32 s{S_OB}, s{S_OB}, s{S_BB}']
    if not (EXP == 'nodma' and NK in (16, 32)): L += dma_groups(gA + gW, S_LW)
    L += [f's_add_u32 s{S_LW}, s{S_LW}, {stage}', f's_cmp_eq_u32 s{S_LW}, {base + NS*stage}', f's_cselect_b32 s{S_LW}, {base}, s{S_LW}']
    return L

def pre_w(a, NK, NS, AH, stage, base, stepB, gW):
    a.e(*INITK, f's_mov_b32 s{S_LW}, {base}')
    for s in range(AH): a.e(*issue(NK, NS, stage, base, 0, stepB, [], gW))

def l_loop(a, NK, NS, AH, stage, base, stepA, stepB, gA, gW, tail=0, hooks=(), early=(), st=False):
    nA = sum(len(g['dmas']) for g in gA); n = nA + sum(len(g['dmas']) for g in gW)
    lst = ['s_memrealtime s[58:59]', 's_waitcnt lgkmcnt(0)', 's_mov_b32 m0, s60', 's_add_u32 s60, s60, 1', 'v_writelane_b32 v255, s58, m0'] if st and PROF else []
    if lst: a.e(f's_lshl_b32 s60, s{S_VAR}, 5')
    iss = lambda: lst + issue(NK, NS, stage, base, stepA, stepB, gA, gW)
    t0 = 0
    if gA:
        a.e(*INITK, f's_mov_b32 s{S_LW}, {base}')
        for s in range(AH): a.e(*issue(NK, NS, stage, base, stepA, stepB, gA, []))
        for t in range(AH - 1):
            a.e(f's_waitcnt vmcnt({(AH - 1 - t) * nA + t * n})', 's_barrier', *iss())
        t0 = AH - 1
        if early: a.e(f'{early[0]}:', 's_nop 1')
        for h in early[1:]:
            a.e(f's_waitcnt vmcnt({(AH-1)*n})', 's_barrier', *iss()); h(n); t0 += 1
    l = lab('ll')
    a.e(f's_mov_b32 s{S_CNT}, {NK - AH - t0 - len(hooks)}')
    a.loop([f'{l}:', f's_waitcnt vmcnt({(AH-1)*n})', 's_barrier'] + iss() + [f's_sub_u32 s{S_CNT}, s{S_CNT}, 1', f's_cmp_lg_u32 s{S_CNT}, 0', f's_cbranch_scc1 {l}'])
    for h in hooks:
        a.e(f's_waitcnt vmcnt({(AH-1)*n})', 's_barrier', *iss()); h(n)
    for j in range(AH - tail):
        a.e(f's_waitcnt vmcnt({(AH-1-j)*n + (8 if hooks else 0)})', 's_barrier')

def c_loop(a, NK, NS, stage, reads, mfmas, addr_regs, late, st0, peel=None, extra0=(), fin=None):
    if EXP == 'noread': reads = [reads[0][:1], reads[1][:1]]
    if EXP == 'rp2': RP = 2
    adv = adv_s(NS, stage)
    advv = [f'v_add_u32 v{r}, s{S_DELTA}, v{r}' for r in addr_regs]
    a.e(f's_mov_b32 s{S_CUR}, 0', f's_mov_b32 s{S_CNT}, {NK - 1 - len(peel or [])}', 's_barrier', *stamp(st0))
    a.e(*reads[0]); a.e(*adv)
    q0 = [Ins(x).wr for x in reads[0]]
    def it(pre=(), post=()):
        q = list(q0)
        L = sched(mfmas[0], bundle(reads[1], advv), q, 1)
        if not late: L.append('s_waitcnt lgkmcnt(0)'); q.clear()
        L += list(pre) + ['s_barrier'] + list(post) + sched(mfmas[1], spread(reads[0], adv), q, 1)
        assert q == q0
        return L
    for p in peel or []: a.e(*it(*p))
    l = lab('cl')
    a.loop([f'{l}:'] + it() + [f's_sub_u32 s{S_CNT}, s{S_CNT}, 1', f's_cmp_lg_u32 s{S_CNT}, 0', f's_cbranch_scc1 {l}'])
    q = list(q0)
    a.e(*sched(mfmas[0], reads[1] + list(extra0), q, 1))
    if fin: a.e('s_waitcnt lgkmcnt(0)', *stamp(st0 + 1)); fin(mfmas[1])
    else: a.e(*sched(mfmas[1], [], q)); a.e('s_waitcnt lgkmcnt(0)', *stamp(st0 + 1))

S_LM, S_B0, S_B1 = 48, 49, 50
def c_direct(a, NK, NS, stage, reads, mf, addr_regs, DR, D, vaddr, init, st0, slots=None):
    R = NK // 8
    advv = lambda src: [f'v_add_u32 v{r}, {src}, v{r}' for r in addr_regs]
    def nk(t):
        p = t % 8
        L = []
        if p == 0 and t != 0: L += [f's_mov_b32 s{S_B0}, s{S_B1}', f's_add_u32 s{S_B1}, s{S_B1}, 32768', f's_cmp_eq_u32 s{S_B1}, s{S_T2}', f's_cselect_b32 s{S_B1}, s{S_BA}, s{S_B1}']
        return L + [f's_bitcmp1_b32 s{S_LM}, {p}', f's_cselect_b32 s{S_OA}, s{S_B1}, s{S_B0}', f's_add_u32 s{S_OA}, s{S_OA}, {p*4096}']
    ld = lambda slot, i: f'buffer_load_dwordx4 {vr(DR+16*slot+4*i,4)}, v{vaddr}, {S4(SRD_A)}, s{S_OA} offen offset:{1024*i} {LDF}'
    adv = [] if slots else adv_s(NS, stage)
    vq = []
    for sl in range(D):
        a.e(*nk(sl))
        for i in range(4 if sl < D - 1 else 2):
            a.e(ld(sl, i)); vq.append(Ins(ld(sl, i)).wr)
        if sl == 1: init(8)
    a.e(f's_mov_b32 s{S_CUR}, 0', f's_mov_b32 s{S_CNT}, {R - 1}', 's_barrier', *stamp(st0))
    a.e(*reads[0]); a.e(*adv)
    q0 = [Ins(x).wr for x in reads[0]]
    def mix(items, loads, pos):
        items = [list(x) for x in items]
        for l, p in zip(loads, pos): items[p] = items[p] + [l]
        return items
    def step(t, vq, generic):
        slot = t % D
        q = list(q0)
        final = not generic and t == NK - 1
        l0 = [ld((slot - 1) % D, 2), ld((slot - 1) % D, 3)] if generic or t - 1 + D < NK else []
        av = [] if final else advv(f's{S_DELTA}' if not slots else (slots[t + 1] - slots[t]) & 0xffffffff)
        L = sched(mf(0, DR + 16 * slot), mix(bundle(reads[1], av), l0, (2, 6)), q, 1, vq=vq)
        if final: return L + sched(mf(1, DR + 16 * slot + 8), [], q, 1, vq=vq)
        more = generic or t + D < NK
        it = [[r] for r in reads[0]]
        sc = (nk(t + D) if more else []) + adv
        for i, x in enumerate(sc): it[min(i // 2, len(it) - 1)].append(x)
        l1 = [ld(slot, 0), ld(slot, 1)] if more else []
        return L + ([] if slots else ['s_barrier']) + sched(mf(1, DR + 16 * slot + 8), mix(it, l1, (4, 7)), q, 1, vq=vq)
    if slots:
        for t in range(NK): a.e(*step(t, vq, False))
    else:
        v1 = list(vq); l = lab('cd')
        body = [f'{l}:']
        for t in range(8, 16): body += step(t, v1, True)
        assert v1 == vq
        a.loop(body + [f's_sub_u32 s{S_CNT}, s{S_CNT}, 1', f's_cmp_lg_u32 s{S_CNT}, 0', f's_cbranch_scc1 {l}'])
        for t in range(NK - 8, NK): a.e(*step(t, vq, False))
    a.e('s_waitcnt lgkmcnt(0)', *stamp(st0 + 1))

def direct_setup(a, NK):
    a.e(f's_lshl_b32 s{S_LM}, 0x303, s{S_PHI}', f's_lshr_b32 s{S_LM}, s{S_LM}, 8', f's_mov_b32 s{S_B0}, s{S_BA}', f's_add_u32 s{S_B1}, s{S_BA}, 32768',
        f's_add_u32 s{S_T2}, s{S_BA}, {NK*4096}')

def w_reads(regs):
    return [[f'ds_read_b64_tr_b16 {vr(16+16*h+4*n+2*q,2)}, v{regs[n]} offset:{h*4096+q*512}' for n in range(4) for q in range(2)] for h in range(2)]

def sel(a, d, ptr0, off0, ptr1, off1, nbytes): G.srd_sel(a, d, ptr0, off0, ptr1, off1, nbytes)

XT = 18432; ST1 = XT + 24576; SL = 3 * ST1; QKV = ST1; PITCH = 400; PB = 72 * PITCH
WO_SLOTS = [131072 + 8192 * i for i in range(4)] + [100608 + 8192 * i for i in range(3)] + [8192 * i for i in range(5)] + [QKV + 8192 * i for i in range(4)]
K4_BASE, K4_NS, K4_AH = 98304, 8, 6
K4_SCR = 90112
D = 4; DR = 120
PF1 = int(env('PF1', '0'), 0); CPRIO = int(env('CPRIO', '0'))
NPF = int(env('NPF', '0')); K0W = int(env('K0W', '0')); W1_K0 = K0W * 256 * 64 * 128
REUSE = int(env('REUSE', '0')); WARM0 = int(env('WARM0', '1')); PF4 = int(env('PF4', '1')); PFT = int(env('PFT', '0')); PF3 = int(env('PF3', '0')); CODEPF = env('CODEPF', '0') == '1'; PF2 = env('PF2', '1') == '1'; LATEW = env('LATEW', '1') == '1'

def gen_mega(a):
    kn = 'mega'
    a.e('.p2align 8', f'{MEGA}:', 's_cmp_ge_u32 s2, 256', f's_cbranch_scc1 {kn}_end',
        's_load_dwordx16 s[64:79], s[0:1], 0', 's_load_dwordx2 s[80:81], s[0:1], 64', 's_load_dwordx2 s[84:85], s[0:1], 80', f's_load_dwordx2 s[{P_DB}:{P_DB+1}], s[0:1], 72',
        'v_lshrrev_b32 v1, 6, v0', 'v_and_b32 v0, 63, v0', f'v_readfirstlane_b32 s{S_WAVE}, v1', f's_mov_b32 s{S_VAR}, 0')
    if PROF: a.e(f'v_mov_b32 v{PV}, 0', *stamp(-1))
    a.e('v_mov_b32 v130, 0', 'v_mov_b32 v131, 0', 'v_mov_b32 v220, 0', 'v_mov_b32 v134, 0', f's_cmp_ge_u32 s{S_WAVE}, 4', f's_cbranch_scc1 L_start')

    ACC1 = 112
    def acc1(m, rt): return ACC1 + 36 * m + 4 * rt
    def k1_setup_c():
        tiles(a, 8, 1)
        lane_fields(a)
        tr128_addr(a, [8], XT, 21, 22)
        a.e(f's_lshl_b32 s{S_T0}, s{S_WAVE}, 5', f'v_xor_b32 v8, s{S_T0}, v8',
            'v_lshrrev_b32 v21, 1, v4', 'v_xor_b32 v21, v21, v5', 'v_lshlrev_b32 v21, 4, v21', 'v_lshlrev_b32 v22, 7, v4', 'v_add_u32 v9, v21, v22', 'v_xor_b32 v10, 64, v9',
            'v_and_b32 v21, 1, v4', f'v_mul_u32_u24 v21, {PB}, v21', 'v_lshrrev_b32 v22, 1, v4', f'v_mul_u32_u24 v22, {PITCH}, v22',
            'v_lshlrev_b32 v23, 3, v5', 'v_add3_u32 v11, v21, v22, v23', f's_add_u32 s{S_T0}, s{S_T0}, {QKV}',
            f'v_add_u32 v11, s{S_T0}, v11', 'v_lshlrev_b32 v12, 3, v4', f'v_add_u32 v12, {SL}, v12')
        for r in range(ACC1, ACC1 + 108, 2): a.e(f'v_mov_b64 {vr(r,2)}, 0')
    if CPRIO: a.e(f's_setprio {CPRIO}')
    k1_setup_c()
    a.e('s_waitcnt lgkmcnt(0)', f's_mov_b32 s{P_WL}, s{P_WS}', f's_mov_b32 s{P_WL+1}, s{P_WS+1}')
    srd(a, SRD_B, P_WS, 0, 0)
    srd(a, SRD_D, P_WQKV, 0, 1024 * 3072 * 2 * WARM0)
    a.e(f's_cmp_eq_u32 s{S_WAVE}, 3', f's_cselect_b32 s{SRD_D}, s{P_WO}, s{SRD_D}', f's_cselect_b32 s{SRD_D+1}, s{P_WO+1}, s{SRD_D+1}', f's_cselect_b32 s{SRD_D+2}, {2*MB*WARM0}, s{SRD_D+2}',
        f's_cselect_b32 s47, 0, s{S_WAVE}', 's_lshl_b32 s47, s47, 8', 's_add_u32 s47, s47, s2', 's_lshl_b32 s47, s47, 13', 'v_lshlrev_b32 v13, 7, v0', 's_barrier')
    warm = f'buffer_load_dword v222, v13, {S4(SRD_D)}, s47 offen'
    def warm_if(w, l): return [f's_cmp_lg_u32 s51, {w}', f's_cbranch_scc1 {l}', warm, f'{l}:']
    a.e(f's_mov_b32 s51, s{S_WAVE}', *warm_if(0, 'C_wm0'))
    a.e('C_top:'); a.flush_hist()
    reads = [[], []]; mf = [[], []]
    for h in range(2):
        F = 16 + 48 * h
        ra = [[f'ds_read_b64_tr_b16 {vr(F+4*m,2)}, v8 offset:{m*8192+h*4096}', f'ds_read_b64_tr_b16 {vr(F+4*m+2,2)}, v8 offset:{m*8192+h*4096+512}'] for m in range(3)]
        rb = [f'ds_read_b128 {vr(F+12+4*rt,4)}, v{9+h} offset:{rt*2048}' for rt in range(9)]
        reads[h] = ra[0] + [rb[0]] + ra[1] + ra[2] + rb[1:]
        mf[h] = [f'{MF16} {vr(acc1(m,rt),4)}, {vr(F+4*m,4)}, {vr(F+12+4*rt,4)}, {vr(acc1(m,rt),4)}' for rt in range(9) for m in (range(3) if rt % 2 == 0 or not SNAKE else range(2, -1, -1))]
    peel = [([], warm_if(1, 'C_wm1')), ([], warm_if(2, 'C_wm2')), ([], warm_if(3, 'C_wm3'))]
    STR, CW = 224, 242
    def fold(rt, o):
        ms = [m for m in range(3) if not (m == 0 and rt == 0)]
        st = vr(STR + 2 * rt, 2); L = []
        for m in ms: L += [f'v_pk_fma_f32 {vr(acc1(m,rt)+e,2)}, {vr(CW+4*m+e,2)}, {st}, {vr(acc1(m,rt)+e,2)} op_sel_hi:[1,0,1] neg_lo:[0,1,0] neg_hi:[0,1,0]' for e in (0, 2)]
        for m in ms: L += [f'v_pk_mul_f32 {vr(acc1(m,rt)+e,2)}, {vr(acc1(m,rt)+e,2)}, {st} op_sel:[0,1] op_sel_hi:[1,1]' for e in (0, 2)]
        for i, m in enumerate(ms):
            d = acc1(m, rt); r = o + 2 * i
            L += [f'v_cvt_pk_bf16_f32 v{r}, v{d}, v{d+1}', f'v_cvt_pk_bf16_f32 v{r+1}, v{d+2}, v{d+3}', f'ds_write_b64 v11, {vr(r,2)} offset:{rt*8*PITCH+m*128}']
        return L
    def fin1(mfs):
        work = [f'v_mov_b32_dpp v{CW+4*m+r}, v{acc1(m,0)+r} row_newbcast:0 row_mask:0xf bank_mask:0xf' for m in range(3) for r in range(4)]
        ready = [len(work)]
        for rt in range(9): work += fold(rt, 16 + 6 * (rt % 8)); ready.append(len(work))
        done = 0
        for i, m in enumerate(mfs):
            a.e(m)
            rt = i // 3 - 1
            lim = ready[rt + 1] if rt >= 0 else 0
            n = min(lim - done, 7)
            if n > 0: a.e(*work[done:done + n]); done += n
        a.e('s_barrier')
        a.e(*work[done:])
    c_loop(a, 16, 3, ST1, reads, mf, [8, 9, 10], False, 0, peel, [f'ds_read_b64 {vr(STR+2*rt,2)}, v12 offset:{rt*128}' for rt in range(9)], fin1)
    a.e('attn:'); a.flush_hist()
    MK = 86
    srd(a, SRD_D, P_WL, O_OFF, XB)
    a.e(f's_lshr_b32 s{S_T1}, s{S_WAVE}, 1', f's_and_b32 s{S_T2}, s{S_WAVE}, 1',
        f's_mul_i32 s{S_T0}, s{S_T2}, {PB}', f's_add_u32 s{S_T0}, s{S_T0}, {QKV}', f's_lshl_b32 s{S_G0+5}, s{S_T1}, 4')
    a.e(f'v_add_u32 v16, s{S_G0+5}, v4', 'v_lshlrev_b32 v17, 4, v5', f'v_add_u32 v17, s{S_T0}, v17',
        f'v_mul_u32_u24 v18, {PITCH}, v16', 'v_add_u32 v8, v18, v17', f'v_add_u32 v10, {8*PITCH}, v8', 'v_add_u32 v8, 128, v8',
        'v_add_u32 v16, 16, v16', 'v_min_u32 v16, 71, v16', f'v_mul_u32_u24 v18, {PITCH}, v16', 'v_add3_u32 v9, v18, v17, 64', 'v_add_u32 v9, 64, v9')
    a.e('v_lshl_add_u32 v16, v5, 2, v6', f'v_add_u32 v16, s{S_G0+5}, v16', 'v_lshlrev_b32 v17, 4, v7', f'v_add_u32 v17, s{S_T0}, v17', 'v_add_u32 v17, 256, v17',
        f'v_mul_u32_u24 v18, {PITCH}, v16', 'v_add_u32 v14, v18, v17',
        'v_add_u32 v16, 16, v16', 'v_min_u32 v16, 71, v16', f'v_mul_u32_u24 v18, {PITCH}, v16', 'v_add_u32 v15, v18, v17')
    a.e('v_lshlrev_b32 v13, 4, v0', f's_lshl_b32 s{S_G0+6}, s{S_TI}, 2', f's_add_u32 s{S_G0+6}, s{S_G0+6}, s{S_T1}', f's_lshl_b32 s{S_G0+6}, s{S_G0+6}, 16',
        f's_lshl_b32 s{S_G0+7}, s{S_TJ}, 12', f's_add_u32 s{S_G0+6}, s{S_G0+6}, s{S_G0+7}', f's_lshl_b32 s{S_G0+7}, s{S_T2}, 10', f's_add_u32 s{S_G0+6}, s{S_G0+6}, s{S_G0+7}')
    a.e('v_lshlrev_b32 v16, 2, v5', 'v_sub_u32 v16, v16, v4', f's_or_b32 s{S_G0+7}, s{S_TI}, s{S_T1}', f's_cmp_eq_u32 s{S_G0+7}, 0', f's_cselect_b32 s{S_G0+7}, 0, -1')
    for k in range(8):
        a.e(f'v_add_u32 v17, {16 * (k >> 2) + (k & 3) - 1}, v16', f'v_cmp_gt_u32 s[{MK+2*k}:{MK+1+2*k}], 8, v17')
    for k in range(4): a.e(f's_and_b32 s{MK+2*k}, s{MK+2*k}, s{S_G0+7}')
    cs = (32 ** -0.5) * 1.4426950408889634
    a.e(f'v_mov_b32 v18, {f32(cs)}', 'v_mov_b32 v19, 0xff800000')
    a.e('s_waitcnt lgkmcnt(0)', 's_barrier')
    B = [32, 80]
    for hd in range(2):
        b = B[hd]; o = 64 * hd
        a.e(f'ds_read_b128 {vr(b,4)}, v10 offset:{o}', f'ds_read_b128 {vr(b+4,4)}, v8 offset:{o}', f'ds_read_b128 {vr(b+8,4)}, v9 offset:{o}')
    for hd in range(2):
        b = B[hd]; o = 64 * hd
        for dt in range(2): a.e(f'ds_read_b64_tr_b16 {vr(b+12+4*dt,2)}, v14 offset:{o+8*dt}', f'ds_read_b64_tr_b16 {vr(b+14+4*dt,2)}, v15 offset:{o+8*dt}')
    for hd in range(2):
        b = B[hd]
        a.e(f's_waitcnt lgkmcnt({11 - 3*hd})', f'{MF16} {vr(b+20,4)}, {vr(b+4,4)}, {vr(b,4)}, 0', f'{MF16} {vr(b+24,4)}, {vr(b+8,4)}, {vr(b,4)}, 0')
    def both(f):
        for x, y in zip(f(B[0]), f(B[1])): a.e(x, y)
    both(lambda b: [f'v_cndmask_b32 v{b+20+k}, v19, v{b+20+k}, s[{MK+2*k}:{MK+1+2*k}]' for k in range(8)])
    both(lambda b: [f'v_max3_f32 v{b+28}, v{b+20}, v{b+21}, v{b+22}', f'v_max3_f32 v{b+29}, v{b+23}, v{b+24}, v{b+25}',
                    f'v_max3_f32 v{b+28}, v{b+28}, v{b+26}, v{b+27}', f'v_max_f32 v{b+28}, v{b+28}, v{b+29}', f'v_mov_b32 v{b+29}, v{b+28}',
                    f'v_permlane16_swap_b32 v{b+28}, v{b+29}', f'v_max_f32 v{b+28}, v{b+28}, v{b+29}', f'v_mov_b32 v{b+29}, v{b+28}',
                    f'v_permlane32_swap_b32 v{b+28}, v{b+29}', f'v_max_f32 v{b+28}, v{b+28}, v{b+29}', f'v_mul_f32 v{b+28}, v18, v{b+28}'])
    both(lambda b: [f'v_fma_f32 v{b+20+k}, v{b+20+k}, v18, -v{b+28}' for k in range(8)])
    both(lambda b: [f'v_exp_f32 v{b+20+k}, v{b+20+k}' for k in range(8)])
    both(lambda b: [f'v_pk_add_f32 {vr(b+28,2)}, {vr(b+20,2)}, {vr(b+22,2)}', f'v_pk_add_f32 {vr(b+30,2)}, {vr(b+24,2)}, {vr(b+26,2)}',
                    f'v_pk_add_f32 {vr(b+28,2)}, {vr(b+28,2)}, {vr(b+30,2)}', f'v_add_f32 v{b+28}, v{b+28}, v{b+29}', f'v_mov_b32 v{b+29}, v{b+28}',
                    f'v_permlane16_swap_b32 v{b+28}, v{b+29}', f'v_add_f32 v{b+28}, v{b+28}, v{b+29}', f'v_mov_b32 v{b+29}, v{b+28}',
                    f'v_permlane32_swap_b32 v{b+28}, v{b+29}', f'v_add_f32 v{b+28}, v{b+28}, v{b+29}', f'v_rcp_f32 v{b+28}, v{b+28}'])
    both(lambda b: [f'v_pk_mul_f32 {vr(b+20+e,2)}, {vr(b+20+e,2)}, {vr(b+28,2)} op_sel_hi:[1,0]' for e in range(0, 8, 2)])
    both(lambda b: [f'v_cvt_pk_bf16_f32 v{b+32+e}, v{b+20+2*e}, v{b+21+2*e}' for e in range(4)])
    a.e('s_waitcnt lgkmcnt(0)')
    both(lambda b: [f'{MF16} {vr(b+36+4*dt,4)}, {vr(b+12+4*dt,4)}, {vr(b+32,4)}, 0' for dt in range(2)])
    both(lambda b: [f'v_cvt_pk_bf16_f32 v{b+e}, v{b+36+2*e}, v{b+37+2*e}' for e in range(4)])
    for hd in range(2): a.e(f'buffer_store_dwordx4 {vr(B[hd],4)}, v13, {S4(SRD_D)}, s{S_G0+6} offen offset:{2048*hd} {SC}')
    a.e(f's_cmp_ge_u32 s{S_WAVE}, 4', 's_cbranch_scc1 L_k1done')

    ACC = 48; RES = 96
    def acc2(t, b): return ACC + 16 * b + 4 * t
    a.e(f's_lshl_b32 s{S_T0}, s{S_TI}, 2', f's_add_u32 s{S_T0}, s{S_T0}, s{S_WAVE}', f's_lshl_b32 s{S_BA}, s{S_T0}, 16', f's_lshl_b32 s{S_T1}, s{S_T0}, 5',
        'v_lshlrev_b32 v13, 1, v4', f'v_add_u32 v13, s{S_T1}, v13',
        'v_lshlrev_b32 v12, 11, v13', 'v_lshl_add_u32 v12, v3, 4, v12', f's_lshl_b32 s{S_T0}, s{S_TJ}, 7', f'v_add_u32 v12, s{S_T0}, v12', 'v_lshlrev_b32 v14, 4, v0')
    srd(a, SRD_A, P_WL, O_OFF, XB)
    sel(a, SRD_C, P_X, 0, P_WS, X2_OFF, XB)
    sel(a, SRD_B, P_WS, 0, P_WS, LSTR, 0); a.e(f's_add_u32 s{SRD_B}, s{SRD_B}, {ST_OFF}', f's_addc_u32 s{SRD_B+1}, s{SRD_B+1}, 0', f's_mov_b32 s{SRD_B+2}, {16*2048*8}')
    tr128_addr(a, [8, 9, 10, 11], WO_SLOTS[0], 16, 17)
    a.e('v_add_u32 v16, v13, v2', 'v_lshlrev_b32 v16, 3, v16', f's_lshl_b32 s{S_T0}, s{S_TJ}, 14', f'v_add_u32 v112, s{S_T0}, v16',
        'v_lshrrev_b32 v17, 5, v0', 'v_lshlrev_b32 v17, 17, v17', 'v_add_u32 v113, v16, v17')
    a.e(f's_lshl_b32 s{S_T0}, s{S_WAVE}, 12', 'v_lshlrev_b32 v16, 8, v4', 'v_lshl_add_u32 v16, v5, 3, v16', f'v_add_u32 v16, s{S_T0}, v16',
        'v_and_b32 v17, 1, v4', 'v_bfe_u32 v18, v4, 2, 1', 'v_lshl_or_b32 v17, v18, 1, v17', 'v_lshl_add_u32 v114, v17, 5, v16',
        f's_lshl_b32 s{S_G0}, s{S_TJ}, 8', f's_lshl_b32 s{S_T1}, s{S_TI}, 2', f's_add_u32 s{S_G0}, s{S_G0}, s{S_T1}', f's_add_u32 s{S_G0}, s{S_G0}, s{S_WAVE}', f's_lshl_b32 s{S_G0}, s{S_G0}, 10')
    tr128_addr(a, [115], 0, 16, 17)
    a.e(f'v_add_u32 v115, s{S_T0}, v115')
    for t in range(1, 4): a.e(f's_add_u32 s{S_G0+t}, s{S_G0}, {t*65536}')
    for p in range(1, 8): a.e(f's_mov_b32 s{86+p}, {p*16384}')
    direct_setup(a, 16)
    poll_setup(a, SRD_E, 119, 0, 0, [f's_lshl_b32 s{S_T0}, s{S_TI}, 4'], 16)
    a.e('s_waitcnt vmcnt(0)', 's_barrier', *stamp(2))
    poll(a, SRD_E, 119, 16)
    a.e(*stamp(3))
    for b in range(2):
        for P in range(2): a.e(f'buffer_load_dwordx4 {vr(RES+8*b+4*P,4)}, v12, {S4(SRD_C)}, 0 offen offset:{b*2048+P*64} {LDF}')
    def init2(out):
        a.e(f's_waitcnt vmcnt({out})')
        for b in range(2):
            for P in range(2):
                r = RES + 8 * b + 4 * P
                a.e(f'v_permlane16_swap_b32 v{r}, v{r+2}', f'v_permlane16_swap_b32 v{r+1}, v{r+3}')
        for b in range(2):
            for P in range(2):
                r = RES + 8 * b + 4 * P
                a.e(*unpack4(r, r + 1, acc2(2 * P, b)), *unpack4(r + 2, r + 3, acc2(2 * P + 1, b)))
    mf2 = lambda h, bb: [f'{MF16} {vr(acc2(t,b),4)}, {vr(16+16*h+4*t,4)}, {vr(bb+4*b,4)}, {vr(acc2(t,b),4)}' for t in range(4) for b in ((0, 1) if t % 2 == 0 or not SNAKE else (1, 0))]
    c_direct(a, 16, 0, 0, w_reads([8, 9, 10, 11]), mf2, [8, 9, 10, 11], DR, D, 14, init2, 4, slots=WO_SLOTS)
    a.e('s_barrier')
    srd(a, SRD_D, P_WL, X1_OFF, XB)
    srd(a, SRD_E, P_WL, H_OFF, XB)
    for b in range(2):
        d = acc2(0, b); T = 16 + 4 * b
        a.e(f'v_pk_add_f32 {vr(T,2)}, {vr(d,2)}, {vr(d+2,2)}', f'v_pk_mul_f32 {vr(T+2,2)}, {vr(d,2)}, {vr(d,2)}', f'v_pk_fma_f32 {vr(T+2,2)}, {vr(d+2,2)}, {vr(d+2,2)}, {vr(T+2,2)}')
        for e in range(4, 16, 2):
            a.e(f'v_pk_add_f32 {vr(T,2)}, {vr(T,2)}, {vr(d+e,2)}', f'v_pk_fma_f32 {vr(T+2,2)}, {vr(d+e,2)}, {vr(d+e,2)}, {vr(T+2,2)}')
        a.e(f'v_add_f32 v{24+b}, v{T}, v{T+1}', f'v_add_f32 v{26+b}, v{T+2}, v{T+3}')
    a.e('v_permlane16_swap_b32 v24, v25', 'v_permlane16_swap_b32 v26, v27', 'v_add_f32 v28, v24, v25', 'v_add_f32 v29, v26, v27',
        'v_mov_b32 v30, v28', 'v_mov_b32 v31, v29', 'v_permlane32_swap_b32 v28, v30', 'v_permlane32_swap_b32 v29, v31',
        'v_add_f32 v28, v28, v30', 'v_add_f32 v29, v29, v31', 'v_and_b32 v29, 0x7fffffff, v29',
        's_mov_b32 exec_hi, 0', f'buffer_store_dwordx2 v[28:29], v112, {S4(SRD_B)}, 0 offen {SC}', 's_mov_b64 exec, -1')
    for b in range(2):
        for t in range(4):
            r = RES + 8 * b + 2 * t; d = acc2(t, b)
            a.e(f'v_cvt_pk_bf16_f32 v{r}, v{d}, v{d+1}', f'v_cvt_pk_bf16_f32 v{r+1}, v{d+2}, v{d+3}')
    for b in range(2):
        for P in range(2):
            r = RES + 8 * b + 4 * P
            a.e(f'v_permlane16_swap_b32 v{r}, v{r+2}', f'v_permlane16_swap_b32 v{r+1}, v{r+3}')
    for t in range(1, 4): a.e(f'v_xor_b32 v{115+t}, {t << 5}, v115', f'v_xor_b32 v{120+t}, {t << 5}, v114')
    a.e('v_mov_b32 v120, v114', f's_mov_b32 s{S_CNT}, 0')
    body = ['k2_poll:'] + [f'buffer_load_dwordx2 {vr(32+2*p,2)}, v113, {S4(SRD_B)}, {"0" if p == 0 else f"s{86+p}"} offen {SC}' for p in range(8)]
    body += ['s_waitcnt vmcnt(0)', 'v_min3_i32 v16, v33, v35, v37', 'v_min3_i32 v17, v39, v41, v43', 'v_min3_i32 v16, v16, v45, v47',
             'v_min_i32 v16, v16, v17', 'v_cmp_gt_i32 vcc, 0, v16', f's_add_u32 s{S_CNT}, s{S_CNT}, 1', f's_cmp_gt_u32 s{S_CNT}, {SPIN}',
             's_cbranch_scc1 k2_pdone', 's_cbranch_vccnz k2_poll']
    a.loop(body)
    a.e('k2_pdone:', *stamp(6))
    for b in range(2):
        for P in range(2): a.e(f'buffer_store_dwordx4 {vr(RES+8*b+4*P,4)}, v12, {S4(SRD_D)}, 0 offen offset:{b*2048+P*64} {SC}')
    a.e('v_pk_add_f32 v[32:33], v[32:33], v[34:35]', 'v_pk_add_f32 v[36:37], v[36:37], v[38:39]', 'v_pk_add_f32 v[40:41], v[40:41], v[42:43]',
        'v_pk_add_f32 v[44:45], v[44:45], v[46:47]', 'v_pk_add_f32 v[32:33], v[32:33], v[36:37]', 'v_pk_add_f32 v[40:41], v[40:41], v[44:45]',
        'v_pk_add_f32 v[32:33], v[32:33], v[40:41]', 'v_mov_b32 v34, v32', 'v_mov_b32 v35, v33',
        'v_permlane32_swap_b32 v32, v34', 'v_permlane32_swap_b32 v33, v35', 'v_add_f32 v32, v32, v34', 'v_add_f32 v33, v33, v35')
    stats_finish(a, 32, 33, 36, True)
    a.e('v_mov_b32 v34, v32', 'v_mov_b32 v35, v33', 'v_permlane16_swap_b32 v32, v34', 'v_permlane16_swap_b32 v33, v35')
    for b in range(2):
        st = vr(32 + 2 * b, 2); d = acc2(0, b); o = 160 + 8 * b
        for e in range(0, 16, 2): a.e(f'v_pk_add_f32 {vr(d+e,2)}, {vr(d+e,2)}, {st} op_sel_hi:[1,0] neg_lo:[0,1] neg_hi:[0,1]')
        for e in range(0, 16, 2): a.e(f'v_pk_mul_f32 {vr(d+e,2)}, {vr(d+e,2)}, {st} op_sel:[0,1] op_sel_hi:[1,1]')
        for t in range(4):
            a.e(f'v_cvt_pk_bf16_f32 v{o+2*t}, v{d+4*t}, v{d+4*t+1}', f'v_cvt_pk_bf16_f32 v{o+2*t+1}, v{d+4*t+2}, v{d+4*t+3}',
                f'ds_write_b64 v{120+t}, {vr(o+2*t,2)} offset:{128*b}')
    a.e('s_waitcnt lgkmcnt(0)')
    for t in range(4): a.e(f'ds_read_b64_tr_b16 {vr(176+4*t,2)}, v{115+t}', f'ds_read_b64_tr_b16 {vr(178+4*t,2)}, v{115+t} offset:512')
    for t in range(4): a.e(f's_waitcnt lgkmcnt({6-2*t})', f'buffer_store_dwordx4 {vr(176+4*t,4)}, v14, {S4(SRD_E)}, s{S_G0+t} offen {SC}')
    a.e('s_cmp_ge_u32 s2, 224', 's_cbranch_scc1 C_k3skip')

    ACC3 = 80
    def acc3(tf, td): return ACC3 + 16 * td + 4 * tf
    tiles(a, 7, 2)
    a.e(f's_and_b32 s{S_G0+2}, s{S_WAVE}, 1', f's_lshr_b32 s{S_T2}, s{S_WAVE}, 1',
        f's_lshl_b32 s{S_T0}, s{S_TJ}, 8', f's_lshl_b32 s{S_G0}, s{S_G0+2}, 7', f's_add_u32 s{S_T0}, s{S_T0}, s{S_G0}',
        'v_lshlrev_b32 v16, 3, v5', f'v_add_u32 v16, s{S_T0}, v16')
    srd(a, SRD_C, P_B1, 0, 3584 * 2)
    for tf in range(4): a.e(f'buffer_load_dwordx2 {vr(144+2*tf,2)}, v16, {S4(SRD_C)}, 0 offen offset:{32*tf}')
    srd(a, SRD_D, P_WL, U_OFF, UB)
    a.e('v_lshl_add_u32 v17, v5, 3, v6', 'v_lshlrev_b32 v17, 8, v17', 'v_lshl_add_u32 v17, v7, 3, v17', 'v_lshl_or_b32 v18, v2, 2, v6', 'v_lshl_add_u32 v17, v18, 5, v17',
        f's_lshl_b32 s{S_T0}, s{S_G0+2}, 7', f's_add_u32 s{S_T0}, s{S_T0}, 16384', f'v_xor_b32 v18, s{S_T0}, v17', f's_lshl_b32 s{S_T0}, s{S_T2}, 13', f'v_add_u32 v12, s{S_T0}, v14')
    for t in range(4): a.e(f'v_xor_b32 v{8+t}, {t << 5}, v18')
    a.e('v_bfe_u32 v17, v4, 2, 1', 'v_lshlrev_b32 v17, 10, v17', 'v_lshl_add_u32 v17, v3, 8, v17', 'v_lshrrev_b32 v18, 3, v4', 'v_lshl_add_u32 v17, v18, 6, v17',
        'v_lshl_add_u32 v152, v7, 4, v17', 'v_add_u32 v153, 128, v152',
        f's_lshl_b32 s{S_T0}, s{S_TI}, 1', f's_add_u32 s{S_T0}, s{S_T0}, s{S_T2}', f's_mul_i32 s{S_T0}, s{S_T0}, 224',
        f's_lshl_b32 s{S_G0}, s{S_TJ}, 2', f's_add_u32 s{S_T0}, s{S_T0}, s{S_G0}', f's_lshl_b32 s{S_G0}, s{S_G0+2}, 1', f's_add_u32 s{S_T0}, s{S_T0}, s{S_G0}',
        f's_lshl_b32 s{S_G0}, s{S_T0}, 11', f's_add_u32 s{S_G0+1}, s{S_G0}, {112*2048}')
    a.e('s_waitcnt vmcnt(0)', 's_barrier', *stamp(7))
    for tf in range(4):
        a.e(*unpack4(144 + 2 * tf, 145 + 2 * tf, acc3(tf, 0)))
        for td in range(1, 4): a.e(f'v_mov_b64 {vr(acc3(tf,td),2)}, {vr(acc3(tf,0),2)}', f'v_mov_b64 {vr(acc3(tf,td)+2,2)}, {vr(acc3(tf,0)+2,2)}')
    reads = [[], []]; mf = [[], []]
    for h in range(2):
        F = 16 + 32 * h
        rd = lambda dst, av: [f'ds_read_b64_tr_b16 {vr(dst,2)}, v{av} offset:{h*8192}', f'ds_read_b64_tr_b16 {vr(dst+2,2)}, v{av} offset:{h*8192+1024}']
        ra = [rd(F + 4 * t, 8 + t) for t in range(4)]
        rb = [[f'ds_read_b128 {vr(F+16+4*t,4)}, v12 offset:{(2*t+h)*1024}'] for t in range(4)]
        if SNAKE:
            reads[h] = ra[0] + rb[0] + rb[1] + ra[1] + ra[2] + rb[2] + rb[3] + ra[3]
            order = [(0,0),(0,1),(1,1),(1,0),(2,0),(2,1),(2,2),(1,2),(0,2),(0,3),(1,3),(2,3),(3,3),(3,2),(3,1),(3,0)]
        else:
            for t in range(4): reads[h] += ra[t] + rb[t]
            order = sorted([(tf, td) for tf in range(4) for td in range(4)], key=lambda x: (max(x), x))
        for tf, td in order:
            mf[h].append(f'{MF16} {vr(acc3(tf,td),4)}, {vr(F+4*tf,4)}, {vr(F+16+4*td,4)}, {vr(acc3(tf,td),4)}')
    if ONEP: a.e('s_barrier')
    c_loop(a, 32, 5, 32768, reads, mf, list(range(8, 13)), True, 8)
    c1 = -2.0 * 0.7978845608028654 * 1.4426950408889634
    a.e(f'v_mov_b32 v16, {f32(c1)}', f'v_mov_b32 v17, {f32(c1 * 0.044715)}')
    k = 0
    for td in range(4):
        for P in range(2):
            d = acc3(2 * P, td); T = 24 + 16 * (k & 1); k += 1
            O = 160 + 4 * k
            for e in range(0, 8, 2): a.e(f'v_pk_mul_f32 {vr(T+e,2)}, {vr(d+e,2)}, {vr(d+e,2)}')
            for e in range(0, 8, 2): a.e(f'v_pk_fma_f32 {vr(T+e,2)}, {vr(T+e,2)}, v[16:17], v[16:17] op_sel:[0,1,0] op_sel_hi:[1,1,0]')
            for e in range(0, 8, 2): a.e(f'v_pk_mul_f32 {vr(T+e,2)}, {vr(T+e,2)}, {vr(d+e,2)}')
            for e in range(8): a.e(f'v_exp_f32 v{T+e}, v{T+e}')
            for e in range(0, 8, 2): a.e(f'v_pk_add_f32 {vr(T+e,2)}, {vr(T+e,2)}, 1.0 op_sel_hi:[1,0]')
            for e in range(8): a.e(f'v_rcp_f32 v{T+e}, v{T+e}')
            for e in range(0, 8, 2): a.e(f'v_pk_mul_f32 {vr(T+e,2)}, {vr(T+e,2)}, {vr(d+e,2)}')
            for e in range(4): a.e(f'v_cvt_pk_bf16_f32 v{O+e}, v{T+2*e}, v{T+2*e+1}')
            a.e(f'v_permlane16_swap_b32 v{O}, v{O+2}', f'v_permlane16_swap_b32 v{O+1}, v{O+3}')
            a.e(f'buffer_store_dwordx4 {vr(O,4)}, v{152+(td&1)}, {S4(SRD_D)}, s{S_G0+(td>>1)} offen offset:{2048*P} {SC}')
    a.e('C_k3skip:'); a.flush_hist()

    def acc4(aa, n): return ACC + 8 * n + 4 * aa
    tiles(a, 8, 2)
    a.e(f's_lshl_b32 s{S_T0}, s{S_TJ}, 6', f'v_add_u32 v13, s{S_T0}, v4', 'v_lshlrev_b32 v12, 11, v13', 'v_lshl_add_u32 v12, v5, 4, v12',
        f's_lshl_b32 s{S_T0}, s{S_TI}, 8', f's_lshl_b32 s{S_T1}, s{S_WAVE}, 6', f's_add_u32 s{S_T0}, s{S_T0}, s{S_T1}',
        f'v_add_u32 v12, s{S_T0}, v12', 'v_lshlrev_b32 v13, 1, v13', 'v_lshlrev_b32 v14, 4, v0',
        f's_lshl_b32 s{S_BA}, s{S_TI}, 2', f's_add_u32 s{S_BA}, s{S_BA}, s{S_WAVE}', f's_mul_i32 s{S_BA}, s{S_BA}, {56*4096}',
        's_mov_b32 s45, 32768', 's_mov_b32 s46, 65536', 's_mov_b32 s47, 98304')
    so = ['0', 's45', 's46', 's47']
    srd(a, SRD_A, P_WL, U_OFF, UB)
    srd(a, SRD_C, P_WL, X1_OFF, XB)
    srd(a, SRD_B, P_B2, 0, 4096)
    for n in range(4): a.e(f'buffer_load_ushort v{RES+16+2*n}, v13, {S4(SRD_B)}, 0 offen offset:{32*n}')
    tr128_addr(a, [8, 9, 10, 11], K4_BASE, 16, 17)
    direct_setup(a, 56)
    a.e('v_lshlrev_b32 v222, 3, v0', f's_lshl_b32 s{S_T0}, s{S_WAVE}, 9', f's_add_u32 s{S_T0}, s{S_T0}, {K4_SCR}', f'v_add_u32 v223, s{S_T0}, v222')
    poll_setup(a, SRD_E, 15, 2, 0, [f's_lshl_b32 s{S_T0}, s{S_TI}, 5'], 28)
    a.e('s_waitcnt vmcnt(0)', 's_barrier', *stamp(10))
    if PF2:
        a.e('s_cmp_lt_u32 s2, 224', 's_cbranch_scc1 C_nopf', f's_cmp_lg_u32 s{S_VAR}, 0', 's_cbranch_scc1 C_nopf')
        srd(a, SRD_D, P_W2, 0, 3584 * 2048 * 2)
        a.e(f's_sub_u32 s{S_T0}, s2, 224', f's_lshl_b32 s{S_T0}, s{S_T0}, 2', f's_add_u32 s{S_T0}, s{S_T0}, s{S_WAVE}', f's_lshl_b32 s{S_T0}, s{S_T0}, 13', 'v_lshlrev_b32 v17, 7, v0')
        for j in range(14):
            a.e(f'buffer_load_dword v18, v17, {S4(SRD_D)}, s{S_T0} offen', f's_add_u32 s{S_T0}, s{S_T0}, {128*8192}', *(['s_waitcnt vmcnt(1)'] if j else []))
        a.e('C_nopf:')
    poll(a, SRD_E, 15, 16)
    a.e(*stamp(11))
    for n in range(4): a.e(f'buffer_load_dwordx4 {vr(RES+4*n,4)}, v12, {S4(SRD_C)}, {so[n]} offen {LDF}')
    sel(a, SRD_E, P_WS, X2_OFF, P_OUT, 0, XB)
    srd(a, SRD_B, P_WS, LSTR + RS_OFF, 8 * 2048 * 8)
    def init4(out):
        a.e(f's_waitcnt vmcnt({out})')
        for n in range(4):
            a.e(f'v_lshlrev_b32 v{RES+16+2*n}, 16, v{RES+16+2*n}')
            a.e(*unpack4(RES + 4 * n, RES + 4 * n + 1, acc4(0, n)), *unpack4(RES + 4 * n + 2, RES + 4 * n + 3, acc4(1, n)))
            for e in range(0, 8, 2): a.e(f'v_pk_add_f32 {vr(acc4(0,n)+e,2)}, {vr(acc4(0,n)+e,2)}, {vr(RES+16+2*n,2)} op_sel_hi:[1,0]')
    mf4 = lambda h, b: [f'{MF16} {vr(acc4(aa,n),4)}, {vr(b+4*aa,4)}, {vr(16+16*h+4*n,4)}, {vr(acc4(aa,n),4)}' for n in range(4) for aa in ((0, 1) if n % 2 == 0 or not SNAKE else (1, 0))]
    c_direct(a, 56, K4_NS, 8192, w_reads([8, 9, 10, 11]), mf4, [8, 9, 10, 11], DR, D, 14, init4, 12)
    def st4():
        for n in range(4):
            for e in range(4): a.e(f'v_cvt_pk_bf16_f32 v{RES+4*n+e}, v{acc4(0,n)+2*e}, v{acc4(0,n)+2*e+1}')
            a.e(f'buffer_store_dwordx4 {vr(RES+4*n,4)}, v12, {S4(SRD_E)}, {so[n]} offen {SC}')
    a.e(f's_cmp_eq_u32 s{S_VAR}, 0', 's_cbranch_scc1 C_st')
    st4()
    a.e('s_branch C_end', 'C_st:', 's_nop 7')
    for n in range(4):
        d = acc4(0, n); T = 16 + 4 * n
        a.e(f'v_pk_add_f32 {vr(T,2)}, {vr(d,2)}, {vr(d+2,2)}', f'v_pk_mul_f32 {vr(T+2,2)}, {vr(d,2)}, {vr(d,2)}', f'v_pk_fma_f32 {vr(T+2,2)}, {vr(d+2,2)}, {vr(d+2,2)}, {vr(T+2,2)}')
        for e in (4, 6): a.e(f'v_pk_add_f32 {vr(T,2)}, {vr(T,2)}, {vr(d+e,2)}', f'v_pk_fma_f32 {vr(T+2,2)}, {vr(d+e,2)}, {vr(d+e,2)}, {vr(T+2,2)}')
        a.e(f'v_add_f32 v{32+n}, v{T}, v{T+1}', f'v_add_f32 v{36+n}, v{T+2}, v{T+3}')
    for b in (32, 36): a.e(f'v_permlane16_swap_b32 v{b}, v{b+1}', f'v_permlane16_swap_b32 v{b+2}, v{b+3}')
    for b in (32, 36): a.e(f'v_add_f32 v{b}, v{b}, v{b+1}', f'v_add_f32 v{b+2}, v{b+2}, v{b+3}')
    a.e('v_permlane32_swap_b32 v32, v34', 'v_permlane32_swap_b32 v36, v38', 'v_add_f32 v40, v32, v34', 'v_add_f32 v41, v36, v38',
        'ds_write_b64 v223, v[40:41]')
    st4()
    a.e('s_waitcnt lgkmcnt(0)', 's_barrier',
        f's_cmp_lg_u32 s{S_WAVE}, 0', 's_cbranch_scc1 C_nost',
        'ds_read_b64 v[44:45], v223 offset:512', 'ds_read_b64 v[46:47], v223 offset:1024', 'ds_read_b64 v[18:19], v223 offset:1536',
        f's_lshl_b32 s{S_T0}, s{S_TI}, 14', f's_lshl_b32 s{S_T1}, s{S_TJ}, 9', f's_add_u32 s{S_T0}, s{S_T0}, s{S_T1}', 's_waitcnt lgkmcnt(0)',
        'v_pk_add_f32 v[40:41], v[40:41], v[44:45]', 'v_pk_add_f32 v[46:47], v[46:47], v[18:19]', 'v_pk_add_f32 v[40:41], v[40:41], v[46:47]',
        f'buffer_store_dwordx2 v[40:41], v222, {S4(SRD_B)}, s{S_T0} offen {SC}', 'C_nost:', 's_nop 1')
    k1_setup_c()
    a.e('s_waitcnt vmcnt(0)', 's_barrier', *stamp(14))
    if ONEP: a.e('s_barrier')
    a.e(f's_mov_b32 s{S_VAR}, 1', 's_mov_b32 s51, 9', f's_add_u32 s{P_WL}, s{P_WS}, {0 if REUSE else LSTR}', f's_addc_u32 s{P_WL+1}, s{P_WS+1}, 0', 's_branch C_top')
    a.e('C_end:'); dump(a)
    a.e('s_endpgm')

    gx = dict(sg=S_G0, dmas=[(8 + i, 1024 * i, 'A', None) for i in range(4)])
    gw = [dict(sg=S_G0 + 2 + m, dmas=[(13 + 2 * m, 0, 'B', None), (14 + 2 * m, 1024, 'B', None)]) for m in range(3)]
    gh = dict(sg=S_G0 + 1, dmas=[(12, 0, 'A', 's[52:53]')])
    def k1_setup_l(layer):
        tiles(a, 8, 1)
        a.e(f's_mov_b32 s{S_T2}, s{S_LWV}')
        dma_w128(a, [13, 14], 6144, swz128(a), 16, 2, 3, 4)
        a.e('v_add_u32 v15, 2048, v13', 'v_add_u32 v16, 2048, v14', 'v_add_u32 v17, 4096, v13', 'v_add_u32 v18, 4096, v14',
            f's_lshl_b32 s{S_G0+2}, s{S_T2}, 11', f's_add_u32 s{S_G0+2}, s{S_G0+2}, {XT}', f's_add_u32 s{S_G0+3}, s{S_G0+2}, 8192', f's_add_u32 s{S_G0+4}, s{S_G0+2}, 16384',
            f's_lshl_b32 s{S_BB}, s{S_TJ}, 7')
        if layer == 1:
            srd(a, SRD_B, P_WQKV, 0, 1024 * 3072 * 2)
            pre_w(a, 16, 3, 2, ST1, 0, 64 * 6144, gw)
        def xaddr(v, comp):
            a.e('v_lshrrev_b32 v2, 3, v0', f'v_add_u32 v2, s{S_T0}, v2', 'v_bfe_u32 v3, v2, 1, 3', 'v_and_b32 v4, 7, v0', 'v_xor_b32 v3, v3, v4', 'v_lshlrev_b32 v3, 4, v3',
                f'v_add_u32 v2, s{S_T1}, v2', 'v_max_i32 v2, 0, v2', 'v_lshlrev_b32 v2, 11, v2', f'v_add_u32 v{v}, v2, v3')
            if comp: a.e(f'v_subrev_u32 v{v}, {comp}, v{v}')
        a.e(f's_lshl_b32 s{S_T1}, s{S_TI}, 7', f's_sub_u32 s{S_T1}, s{S_T1}, 16')
        for i in range(2):
            a.e(f's_lshl_b32 s{S_T0}, s{S_T2}, 5', f's_add_u32 s{S_T0}, s{S_T0}, {16+8*i}')
            xaddr(8 + i, 1024 * i)
            a.e(f'v_add_u32 v{10+i}, {16*2048-2048}, v{8+i}')
        a.e(f's_lshl_b32 s{S_T0}, s{S_T2}, 3'); xaddr(12, 0)
        a.e(f's_lshl_b32 s{S_G0}, s{S_T2}, 12', f's_add_u32 s{S_G0}, s{S_G0}, 2048', f's_lshl_b32 s{S_G0+1}, s{S_T2}, 10', f's_mov_b32 s{S_BA}, 0',
            f's_cmp_eq_u32 s{S_T2}, 0', 's_cselect_b32 s52, 0xffffff00, -1', 's_mov_b32 s53, -1')
        a.e('v_mov_b32 v20, 0x3f803f80', 'v_mov_b32 v21, v20', 'v_mov_b32 v22, v20', 'v_mov_b32 v23, v20', 'v_lshlrev_b32 v24, 4, v0', f'v_add_u32 v25, {2*ST1}, v24',
            's_mov_b64 exec, 0xff', 'ds_write_b128 v24, v[20:23]', f'ds_write_b128 v24, v[20:23] offset:{ST1}', 'ds_write_b128 v25, v[20:23]', 's_mov_b64 exec, -1')
        a.e(f's_lshl_b32 s{S_T0}, s{S_T2}, 6', f'v_add_u32 v26, s{S_T0}, v0', 'v_min_u32 v26, 143, v26', f'v_add_u32 v27, s{S_T1}, v26', 'v_max_i32 v27, 0, v27',
            'v_lshlrev_b32 v27, 3, v27', 'v_lshlrev_b32 v26, 3, v26', f'v_add_u32 v26, {SL}, v26')
        if layer == 1:
            srd(a, SRD_A, P_WS, X2_OFF, XB)
            srd(a, SRD_D, P_WS, LSTR + RS_OFF, 8 * 2048 * 8)
            a.e('s_waitcnt lgkmcnt(0)')
    a.e('L_start:'); a.flush_hist()
    a.e(f's_sub_u32 s{S_LWV}, s{S_WAVE}, 4', 'v_and_b32 v134, 3, v0', 'v_lshlrev_b32 v134, 6, v134')
    k1_setup_l(0)
    a.e(f's_lshl_b32 s{S_T0}, s2, 3', f's_lshl_b32 s{S_T1}, s{S_LWV}, 1', f's_add_u32 s{S_T0}, s{S_T0}, s{S_T1}',
        'v_lshrrev_b32 v72, 5, v0', f'v_add_u32 v72, s{S_T0}, v72', 'v_lshlrev_b32 v46, 11, v72', 'v_and_b32 v2, 31, v0', 'v_lshl_add_u32 v46, v2, 4, v46',
        'v_lshlrev_b32 v72, 3, v72', f'v_add_u32 v72, {RS_OFF}, v72',
        f's_cmp_eq_u32 s{S_LWV}, 0', 's_cselect_b32 s58, 0, -1', 'v_mov_b32 v64, s58', 'v_mov_b32 v65, s58', 'v_mov_b32 v66, s58', 'v_mov_b32 v67, s58',
        'v_lshrrev_b32 v2, 3, v0', 'v_lshlrev_b32 v2, 15, v2', 'v_and_b32 v3, 7, v0', 'v_lshl_add_u32 v2, v3, 4, v2', 'v_lshlrev_b32 v3, 4, v0',
        's_cselect_b64 vcc, -1, 0', 's_lshl_b32 s58, s2, 7', f's_add_u32 s58, s58, {FL_OFF}', 's_lshl_b32 s59, s2, 10', f's_add_u32 s59, s59, {ST_OFF}',
        f's_cmp_eq_u32 s{S_LWV}, 0', 's_cselect_b32 s58, s58, s59', f's_add_u32 s59, s59, {LSTR}', f's_cmp_eq_u32 s{S_LWV}, 2', 's_cselect_b32 s58, s59, s58',
        f's_cmp_eq_u32 s{S_LWV}, 3', f's_cselect_b32 s58, {128*MB}, s58',
        'v_cndmask_b32 v47, v3, v2, vcc', 's_and_b32 s59, s2, 3', 's_lshl_b32 s59, s59, 6', 'v_mov_b32 v73, s59', 'v_mov_b32 v74, 1')
    flag_idx(a, 0, S_TI, 16, S_TJ)
    a.e(f's_mov_b32 s{S_LW}, 0', *lstamp(29), 's_waitcnt lgkmcnt(0)', *lstamp(61))
    srd(a, SRD_A, P_X, 0, XB)
    srd(a, SRD_B, P_WQKV, 0, 1024 * 3072 * 2)
    a.e('s_branch L_first')
    a.e('L_top:'); a.flush_hist()
    flag_idx(a, 0, S_TI, 16, S_TJ)
    srd(a, SRD_E, P_W1, 0, 2048 * 3584 * 2)
    a.e(f's_lshl_b32 s54, s2, 2', f's_add_u32 s54, s54, s{S_LWV}', f's_mul_i32 s54, s54, {NPF*128}', f's_add_u32 s54, s54, {W1_K0}')
    gl = f'global_load_dword v29, v134, s[{P_DB}:{P_DB+1}] {SC}'
    def h_gate(n):
        if SINGLE: a.e(gl)
    def h_fetch(n):
        l = lab('st')
        if SINGLE:
            a.e(f's_cmp_lg_u32 s{S_VAR}, 0', f's_cbranch_scc1 {l}g', f's_waitcnt vmcnt({n})', 's_mov_b32 s61, 0')
            a.loop([f'{l}p:', 'v_cmp_gt_u32 vcc, 64, v29', 's_add_u32 s61, s61, 1', f's_cmp_gt_u32 s61, {SPIN}', f's_cbranch_scc1 {l}g', f's_cbranch_vccz {l}g', gl, 's_waitcnt vmcnt(0)', f's_branch {l}p'])
            a.e(f'{l}g:')
        for p in range(8):
            if p: a.e(f's_mov_b32 s{S_T0}, {p*16384}')
            a.e(f'buffer_load_dwordx2 {vr(30+2*p,2)}, v27, {S4(SRD_D)}, {"0" if p == 0 else f"s{S_T0}"} offen {LDF}')
    def h_fin(n):
        a.e(f's_waitcnt vmcnt({n})', 'v_pk_add_f32 v[30:31], v[30:31], v[32:33]', 'v_pk_add_f32 v[34:35], v[34:35], v[36:37]', 'v_pk_add_f32 v[38:39], v[38:39], v[40:41]',
            'v_pk_add_f32 v[42:43], v[42:43], v[44:45]', 'v_pk_add_f32 v[30:31], v[30:31], v[34:35]', 'v_pk_add_f32 v[38:39], v[38:39], v[42:43]',
            'v_pk_add_f32 v[30:31], v[30:31], v[38:39]')
        stats_finish(a, 30, 31, 32, False)
        a.e('ds_write_b64 v26, v[30:31]', 's_waitcnt lgkmcnt(0)')
    HK = (h_gate, h_fetch)
    def only0(f):
        def g(n):
            l = lab('e'); a.e(f's_cmp_lg_u32 s{S_VAR}, 0', f's_cbranch_scc1 {l}'); f(n); a.e(f'{l}:', 's_nop 1')
        return g
    def e_load(n):
        a.e(*lstamp(63))
        for c in range(4): a.e(f'buffer_load_dwordx4 {vr(48+4*c,4)}, v46, {S4(SRD_A)}, 0 offen offset:{512*c}')
        a.e(f'buffer_store_dwordx4 v[64:67], v47, {S4(SRD_C)}, s58 offen {SC}', 's_barrier')
    def e_stat(n):
        a.e('v_mov_b32 v68, 0', 'v_mov_b32 v69, 0', 'v_mov_b32 v70, 0x3f803f80', f's_waitcnt vmcnt({n+1})')
        for e in range(16): a.e(f'v_dot2c_f32_bf16 v68, v70, v{48+e}', f'v_dot2c_f32_bf16 v69, v{48+e}, v{48+e}')
        for ctl in ('quad_perm:[1,0,3,2]', 'quad_perm:[2,3,0,1]', 'row_half_mirror', 'row_mirror'):
            a.e(f'v_add_f32_dpp v68, v68, v68 {ctl} row_mask:0xf bank_mask:0xf', f'v_add_f32_dpp v69, v69, v69 {ctl} row_mask:0xf bank_mask:0xf')
        a.e('v_mov_b32 v70, v68', 'v_mov_b32 v71, v69', 'v_permlane16_swap_b32 v68, v70', 'v_permlane16_swap_b32 v69, v71', 'v_add_f32 v68, v68, v70', 'v_add_f32 v69, v69, v71',
            's_mov_b32 exec_lo, 1', 's_mov_b32 exec_hi, 1', f'buffer_store_dwordx2 v[68:69], v72, {S4(SRD_C)}, 0 offen {SC}', 's_mov_b64 exec, -1')
    def e_gate(n):
        l = lab('g'); a.e(f's_cmp_lg_u32 s{S_LWV}, 0', f's_cbranch_scc1 {l}', 's_mov_b64 exec, 1', f'global_atomic_add v73, v74, s[{P_DB}:{P_DB+1}] sc1', 's_mov_b64 exec, -1', f'{l}:')
    a.e(f's_cmp_ge_u32 s{S_LWV}, 2', 's_cbranch_scc1 L_k1B')
    l_loop(a, 16, 3, 2, ST1, 0, 128, 64 * 6144, [gh, gx], gw, tail=1, hooks=HK, early=('L_jA', lambda n: None, only0(e_gate)))
    a.e('s_branch L_k1t', 'L_k1B:'); a.flush_hist()
    l_loop(a, 16, 3, 2, ST1, 0, 128, 64 * 6144, [gx], gw, tail=1, hooks=HK, early=('L_jB', lambda n: None, only0(e_gate)))
    a.e('s_branch L_k1t')
    a.e('L_first:'); a.flush_hist()
    a.e(f's_cmp_ge_u32 s{S_LWV}, 2', 's_cbranch_scc1 L_firstB')
    for gA, n, tag in (([gh, gx], 11, 'A'), ([gx], 10, 'B')):
        if tag == 'B': a.e('L_firstB:'); a.flush_hist()
        iss = lambda: issue(16, 3, ST1, 0, 128, 64 * 6144, gA, gw)
        a.e(*iss(), *lstamp(62))
        srd(a, SRD_C, P_WS, 0, 64 * MB)
        srd(a, SRD_D, P_WS, RS_OFF, 2048 * 8)
        a.e(f's_mov_b32 s{P_WL}, s{P_WS}', f's_mov_b32 s{P_WL+1}, s{P_WS+1}', *iss())
        e_load(n)
        a.e(f's_waitcnt vmcnt({n+5})', 's_barrier', *iss())
        e_stat(n)
        a.e(f's_branch L_j{tag}')
    a.e('L_k1t:'); a.flush_hist()
    h_fin(0)
    a.e(f's_mov_b32 s{S_T2}, s{S_LWV}')
    dma_w128(a, [130, 131], 2048, swz128(a), 16, 2, 3, 4)
    srd(a, SRD_B, P_WO, 0, 1024 * 1024 * 2)
    a.e(*INITK, f's_lshl_b32 s{S_G0+8}, s{S_LWV}, 11')
    def wo(t0, t1):
        for t in range(t0, t1):
            a.e(*next_k(16), f's_lshl_b32 s{S_OB}, s{S_K}, 17', f's_add_u32 s{S_OB}, s{S_OB}, s{S_BB}', f's_add_u32 m0, s{S_G0+8}, {WO_SLOTS[t]}',
                f'buffer_load_dwordx4 v130, {S4(SRD_B)}, s{S_OB} offen lds', f'buffer_load_dwordx4 v131, {S4(SRD_B)}, s{S_OB} offen offset:1024 lds')
    wo(0, 4)
    def pf3(j):
        if PF3 > j: a.e(f's_add_u32 s{S_T0}, s54, {j*8*MB}', f'buffer_load_dword v223, v132, {S4(SRD_E)}, s{S_T0} offen')
    if PF3:
        a.e(f's_cmp_eq_u32 s{S_VAR}, 0', f's_cselect_b32 s{SRD_E+2}, s{SRD_E+2}, 0', 's_lshl_b32 s54, s2, 2', f's_add_u32 s54, s54, s{S_LWV}', 's_lshl_b32 s54, s54, 13',
            f's_add_u32 s54, s54, {W1_K0}', 'v_lshlrev_b32 v132, 7, v0')
    pf3(0)
    x = 1 if PF3 else 0
    if PFT:
        srd(a, SRD_C, P_W2, 0, 3584 * 2048 * 2)
        a.e(f's_cmp_eq_u32 s{S_VAR}, 0', f's_cselect_b32 s{SRD_E+2}, s{SRD_E+2}, 0', f's_cselect_b32 s{SRD_C+2}, s{SRD_C+2}, 0',
            's_lshr_b32 s54, s2, 3', 's_lshl_b32 s54, s54, 2', f's_add_u32 s54, s54, s{S_LWV}', 's_lshl_b32 s54, s54, 18', 'v_lshlrev_b32 v132, 12, v0', 'v_add_u32 v132, s54, v132',
            f'v_subrev_u32 v133, {16*MB}, v132', f'buffer_load_dword v223, v132, {S4(SRD_E)}, 0 offen', f'buffer_load_dword v222, v133, {S4(SRD_C)}, 0 offen')
        x += 2
    a.e(f's_waitcnt vmcnt({8+x})', 's_barrier')
    wo(4, 7)
    lane_fields(a)
    a.e('s_waitcnt lgkmcnt(0)', 's_barrier')
    pf3(1)
    wo(7, 12)
    a.e('s_branch attn')
    a.e('L_k1done:'); a.flush_hist()
    publish_pre(a)
    a.e('s_waitcnt vmcnt(0)', 's_barrier')
    publish(a, 2)
    wo(12, 16)
    flag_idx(a, 1, S_TJ, 16, S_TI)
    if ONEP: a.e('s_barrier')
    a.e('s_waitcnt vmcnt(0)', 's_barrier')
    g4 = [dict(sg=S_G0 + 1, dmas=[(9, 0, 'B', None), (10, 1024, 'B', None)])]
    def k4_setup_l():
        tiles(a, 8, 2)
        a.e(f's_mov_b32 s{S_T2}, s{S_LWV}', f's_lshl_b32 s{S_G0+1}, s{S_T2}, 11')
        dma_w128(a, [9, 10], 4096, swz128(a), 16, 2, 3, 4)
        a.e(f's_lshl_b32 s{S_BB}, s{S_TJ}, 7')
        srd(a, SRD_B, P_W2, 0, 3584 * 2048 * 2)
    a.e('s_cmp_ge_u32 s2, 224', 's_cbranch_scc1 L_k3skip')
    tiles(a, 7, 2)
    a.e(f's_lshl_b32 s{S_G0}, s{S_LWV}, 12', f's_add_u32 s{S_G0+1}, s{S_G0}, 16384', 'v_lshlrev_b32 v8, 4, v0', f'v_add_u32 v13, {65536-2048}, v8',
        'v_lshrrev_b32 v2, 4, v0', 'v_lshlrev_b32 v3, 1, v2', 'v_and_b32 v4, 15, v0', 'v_xor_b32 v3, v3, v4', 'v_lshlrev_b32 v3, 4, v3',
        f's_lshl_b32 s{S_T0}, s{S_LWV}, 4', f'v_add_u32 v2, s{S_T0}, v2', f's_mov_b32 s{S_T0}, 7168', f'v_mul_lo_u32 v2, v2, s{S_T0}',
        'v_add_u32 v9, v2, v3', 'v_xor_b32 v3, 128, v3', 'v_add_u32 v11, v2, v3',
        f'v_add_u32 v10, {4*7168-1024}, v9', f'v_add_u32 v12, {3*(4*7168-1024)}, v11', f'v_add_u32 v11, {2*(4*7168-1024)}, v11',
        f's_lshl_b32 s{S_BA}, s{S_TI}, 2', f's_add_u32 s{S_BA}, s{S_BA}, s{S_LWV}', f's_lshl_b32 s{S_BA}, s{S_BA}, 17', f's_lshl_b32 s{S_BB}, s{S_TJ}, 8')
    srd(a, SRD_A, P_WL, H_OFF, XB)
    srd(a, SRD_B, P_W1, 0, 2048 * 3584 * 2)
    g3a = [dict(sg=S_G0, dmas=[(8 if i < 2 else 13, 1024 * i, 'A', None) for i in range(4)])]
    g3w = [dict(sg=S_G0 + 1, dmas=[(9 + i, 1024 * i, 'B', None) for i in range(4)])]
    poll_setup(a, SRD_C, 14, 1, 0, [f's_lshl_b32 s{S_T0}, s{S_TI}, 5'], 32)
    for j in range(PF4):
        a.e(f's_lshr_b32 s{S_T0}, s2, 3', f's_add_u32 s{S_T0}, s{S_T0}, {28*j}', f's_lshl_b32 s{S_T0}, s{S_T0}, 2', f's_add_u32 s{S_T0}, s{S_T0}, s{S_LWV}', f's_lshl_b32 s{S_T0}, s{S_T0}, 6',
            f'v_add_u32 v2, s{S_T0}, v0', 'v_mul_u32_u24 v3, 74899, v2', 'v_lshrrev_b32 v3, 20, v3', 'v_mul_u32_u24 v4, 14, v3', 'v_sub_u32 v4, v2, v4',
            'v_add_u32 v3, 192, v3', 'v_mul_u32_u24 v3, 7168, v3', 'v_lshl_add_u32 v3, v4, 7, v3', f's_and_b32 s{S_T0}, s2, 3', f's_mul_i32 s{S_T0}, s{S_T0}, 1792', f's_lshl_b32 s{S_T1}, s{S_VAR}, 30', f's_add_u32 s{S_T0}, s{S_T0}, s{S_T1}', f'v_add_u32 v{16+j}, s{S_T0}, v3')
    a.e('s_barrier')
    if not LATEW: pre_w(a, 32, 5, 3, 32768, 0, 64 * 7168, g3w)
    a.e('s_barrier')
    publish(a, 2)
    if LATEW: pre_w(a, 32, 5, 3, 32768, 0, 64 * 7168, g3w)
    for j in range(PF4): a.e(f'buffer_load_dword v223, v{16+j}, {S4(SRD_B)}, 0 offen')
    flag_idx(a, 2, S_TI, 32, S_TJ)
    poll(a, SRD_C, 14, 15)
    l_loop(a, 32, 5, 3, 32768, 0, 2048, 64 * 7168, g3a, g3w, st=True)
    k4_setup_l()
    a.e('s_branch L_k4', 'L_k3skip:'); a.flush_hist()
    k4_setup_l()
    a.e('s_barrier')
    a.e('L_k4:'); a.flush_hist()
    pre_w(a, 56, K4_NS, K4_AH, 8192, K4_BASE, 64 * 4096, g4)
    a.e('s_barrier')
    publish(a, 2)
    flag_idx(a, 3, S_TJ, 8, S_TI)
    if ONEP: a.e('s_barrier')
    l_loop(a, 56, K4_NS, K4_AH, 8192, K4_BASE, 0, 64 * 4096, [], g4)
    a.e(f's_cmp_lg_u32 s{S_VAR}, 0', 's_cbranch_scc1 L_end')
    k1_setup_l(1)
    poll_setup(a, SRD_C, 28, 3, 0, [f's_lshl_b32 s{S_T0}, s{S_TI}, 4', f's_sub_u32 s{S_T0}, s{S_T0}, 8'], 24)
    a.e('s_barrier', 's_barrier')
    publish(a, 2)
    poll(a, SRD_C, 28, 29)
    a.e(f's_mov_b32 s{S_VAR}, 1', f's_add_u32 s{P_WL}, s{P_WS}, {0 if REUSE else LSTR}', f's_addc_u32 s{P_WL+1}, s{P_WS+1}, 0', 's_branch L_top')
    a.e('L_end:')
    if PROF: a.e(f's_cmp_lg_u32 s{S_LWV}, 0', f's_cbranch_scc1 {kn}_end', 's_lshl_b32 s58, s2, 8', f's_add_u32 s58, s58, {PR_OFF + MB}', 'v_lshlrev_b32 v254, 2, v0', 'v_add_u32 v254, s58, v254', f'global_store_dword v254, v255, s[{P_WS}:{P_WS+1}]')
    a.e(f'{kn}_end:', 's_endpgm')

def dump(a):
    if not PROF: return
    a.e('s_waitcnt vmcnt(0)', *stamp(14), f's_cmp_lg_u32 s{S_WAVE}, 0', 's_cbranch_scc1 nodump', 's_lshl_b32 s58, s2, 8', f's_add_u32 s58, s58, {PR_OFF}',
        'v_lshlrev_b32 v254, 2, v0', 'v_add_u32 v254, s58, v254', f'global_store_dword v254, v{PV}, s[{P_WS}:{P_WS+1}]', 'nodump:')

def gen_k0(a):
    a.e('.p2align 8', 'k0_kernel:', 's_cmp_ge_u32 s2, 256', 's_cbranch_scc1 k0_end',
        's_load_dwordx16 s[64:79], s[0:1], 0', 's_load_dwordx2 s[84:85], s[0:1], 80',
        'v_lshrrev_b32 v1, 6, v0', 'v_lshlrev_b32 v20, 4, v0', 'v_and_b32 v0, 63, v0', f'v_readfirstlane_b32 s{S_WAVE}, v1',
        's_lshl_b32 s30, s2, 3', f's_add_u32 s30, s30, s{S_WAVE}',
        's_lshl_b32 s31, s30, 11', 'v_lshlrev_b32 v2, 5, v0',
        's_lshl_b32 s32, s2, 2', f's_and_b32 s33, s{S_WAVE}, 3', 's_add_u32 s32, s32, s33', 's_lshl_b32 s32, s32, 13', 'v_lshlrev_b32 v3, 7, v0', 'v_add_u32 v3, s32, v3',
        f'v_subrev_u32 v4, {1024*3072*2}, v3', 's_waitcnt lgkmcnt(0)')
    srd(a, SRD_A, P_X, 0, XB)
    a.e(f'buffer_load_dwordx4 v[8:11], v2, {S4(SRD_A)}, s31 offen', f'buffer_load_dwordx4 v[12:15], v2, {S4(SRD_A)}, s31 offen offset:16')
    KW = int(env('K0WARM', '1'))
    srd(a, SRD_B, P_WQKV, 0, 1024 * 3072 * 2 * KW)
    srd(a, SRD_C, P_WO, 0, 1024 * 1024 * 2 * KW)
    srd(a, SRD_E, P_W1, 0, W1_K0)
    a.e(f's_sub_u32 s33, s{S_WAVE}, 4', 's_lshl_b32 s33, s33, 8', 's_add_u32 s33, s33, s2', 's_lshl_b32 s33, s33, 13', 'v_lshlrev_b32 v7, 7, v0',
        f's_cmp_ge_u32 s{S_WAVE}, 4', 's_cbranch_scc1 k0_nw', f'buffer_load_dword v5, v3, {S4(SRD_B)}, 0 offen', f'buffer_load_dword v6, v4, {S4(SRD_C)}, 0 offen', 's_branch k0_nx',
        'k0_nw:', f'buffer_load_dword v5, v7, {S4(SRD_E)}, s33 offen', 'k0_nx:')
    if CODEPF:
        a.e(f's_cmp_lg_u32 s{S_WAVE}, 7', 's_cbranch_scc1 k0_nc', 's_getpc_b64 s[40:41]', 'k0_pc:', 's_add_u32 s40, s40, mega_kernel-k0_pc', 's_addc_u32 s41, s41, 0',
            's_lshr_b32 s42, s2, 3', 's_lshl_b32 s42, s42, 11', 'v_and_b32 v25, 15, v0', 'v_lshlrev_b32 v25, 7, v25', 'v_add_u32 v25, s42, v25',
            'v_min_u32 v25, mega_end-mega_kernel, v25', 'global_load_dword v26, v25, s[40:41]', 'k0_nc:')
    srd(a, SRD_D, P_WS, 0, 64 * MB)
    a.e(f's_cmp_eq_u32 s{S_WAVE}, 0', 's_cselect_b32 s33, 0, -1', 'v_mov_b32 v16, s33', 'v_mov_b32 v17, s33', 'v_mov_b32 v18, s33', 'v_mov_b32 v19, s33',
        f's_mov_b32 s34, {ST_OFF}', f's_cselect_b32 s34, {FL_OFF}, s34', f's_cmp_eq_u32 s{S_WAVE}, 2', f's_cselect_b32 s34, {LSTR + ST_OFF}, s34', 's_lshl_b32 s35, s2, 10', 's_add_u32 s34, s34, s35',
        'v_lshlrev_b32 v20, 4, v0', f's_cmp_ge_u32 s{S_WAVE}, 3', 's_cbranch_scc1 k0_nr', f'buffer_store_dwordx4 v[16:19], v20, {S4(SRD_D)}, s34 offen', 'k0_nr:')
    a.e('v_mov_b32 v22, 0', 'v_mov_b32 v23, 0', 'v_mov_b32 v21, 0x3f803f80', 'v_lshrrev_b32 v24, 3, v0', 'v_lshlrev_b32 v24, 14, v24', 's_lshl_b32 s36, s30, 3', f's_add_u32 s36, s36, {RS_OFF}',
        's_waitcnt vmcnt(0)')
    for e in range(8): a.e(f'v_dot2c_f32_bf16 v22, v21, v{8+e}', f'v_dot2c_f32_bf16 v23, v{8+e}, v{8+e}')
    for ctl in ('quad_perm:[1,0,3,2]', 'quad_perm:[2,3,0,1]', 'row_half_mirror'):
        a.e(f'v_add_f32_dpp v22, v22, v22 {ctl} row_mask:0xf bank_mask:0xf', f'v_add_f32_dpp v23, v23, v23 {ctl} row_mask:0xf bank_mask:0xf')
    a.e('s_mov_b32 exec_lo, 0x01010101', 's_mov_b32 exec_hi, 0x01010101', f'buffer_store_dwordx2 v[22:23], v24, {S4(SRD_D)}, s36 offen', 'k0_end:', 's_endpgm')

def main(out):
    a = Asm()
    if not SINGLE: gen_k0(a); a.flush_hist()
    gen_mega(a)
    info = {} if SINGLE else {'k0_kernel': (32, 0)}
    info[MEGA] = (256, 163840)
    ref = open(os.path.join(os.path.dirname(os.path.abspath(__file__)), '..', NAME + '.s.ref')).read().splitlines()
    hdr = [l for l in ref if l.startswith(';') and '@launch' not in l and 'Override launch' not in l and 'grid=ceil' not in l]
    if SINGLE: hdr += ['; @launch grid=(256,1,1) block=(512,1,1) lds=163840']
    else: hdr += [f'; @launch kernel={n} grid=(256,1,1) block=(512,1,1) lds={v[1]}' for n, v in info.items()]
    s = '\n'.join(hdr) + '\n; generated by gen/gen2.py\n.amdgcn_target "amdgcn-amd-amdhsa--gfx950"\n.text\n'
    if SINGLE: s += f'.globl {MEGA}\n.type {MEGA},@function\n'
    s += a.text() + '.section .rodata,"a"\n'
    for n, (vg, _) in info.items():
        s += f'''.p2align 6
.amdhsa_kernel {n}
  .amdhsa_next_free_vgpr {vg}
  .amdhsa_next_free_sgpr 102
  .amdhsa_accum_offset {vg}
  .amdhsa_group_segment_fixed_size 0
  .amdhsa_kernarg_size 88
  .amdhsa_user_sgpr_count 2
  .amdhsa_user_sgpr_kernarg_segment_ptr 1
  .amdhsa_system_sgpr_workgroup_id_x 1
.end_amdhsa_kernel
'''
    open(out, 'w').write(s)

if __name__ == '__main__':
    main(sys.argv[1])
```

```python
import sys, os, struct
sys.path.insert(0, os.path.dirname(os.path.abspath(__file__)))
from asmlib import *
import gen as G
from gen import (NAME, MB, XB, UB, f32, env, S4, srd, next_k, adv_s, sched, bundle, spread, lane_fields, tr128_addr, swz128, unpack4,
                 dma_w128, stats_finish, MF16, S_VAR, S_WAVE, S_LI, S_LJ, S_PHI, SRD_A, SRD_B, SRD_C, SRD_D, SRD_E, S_TI, S_TJ,
                 S_P, S_W, S_T0, S_K, S_BA, S_BB, S_OA, S_OB, S_LW, S_CNT, S_T1, S_T2, S_DELTA, S_CUR, S_G0,
                 P_X, P_WQKV, P_WO, P_W1, P_B1, P_W2, P_B2, P_OUT, P_WS)

LSTR = 32 * MB
O_OFF, X1_OFF, H_OFF, U_OFF, ST_OFF, RS_OFF = 0, 4 * MB, 8 * MB, 12 * MB, 20 * MB, 21 * MB
X2_OFF, FL_OFF, PR_OFF = 24 * MB, 28 * MB, 64 * MB
P_WL = 82
S_LWV, S_FLG = 57, 56
SC = 'sc0 sc1'
LDF = env('LDF', 'sc1')
PROF = env('PROF') == '1'
PV = 255
SINGLE = env('SINGLE', '1') == '1'
MEGA = NAME + '_kernel' if SINGLE else 'mega_kernel'
P_DB = 62
SPIN = 1000000
EXP = env('EXP', '')
SNAKE = int(env('SNAKE', '1'))
ONEP = int(env('ONEP', '1')); PS0 = int(env('PS0', '8')); PS1 = int(env('PS1', '0')); PP = int(env('PP', '1')); PSL = int(env('PSL', '4'))

def stamp(k):
    if not PROF: return []
    return ['s_memrealtime s[58:59]', 's_memtime s[56:57]', 's_waitcnt lgkmcnt(0)', f's_lshl_b32 s60, s{S_VAR}, 4', f's_add_u32 m0, s60, {k+1}', 's_nop 0', f'v_writelane_b32 v{PV}, s58, m0',
            's_add_u32 m0, m0, 32', 's_nop 0', f'v_writelane_b32 v{PV}, s56, m0']
G.stamp = lambda idx=None: []
G.cstamp = lambda idx: []

def lstamp(k): return ['s_memrealtime s[60:61]', 's_waitcnt lgkmcnt(0)', f'v_writelane_b32 v255, s60, {k}'] if PROF else []

def tiles(a, LN, xshift):
    a.e(f's_lshr_b32 s{S_T0}, s2, 3')
    if LN == 8: a.e(f's_lshr_b32 s{S_LI}, s{S_T0}, 3', f's_and_b32 s{S_LJ}, s{S_T0}, 7')
    else: a.e(f's_mul_i32 s{S_LI}, s{S_T0}, {65536 // LN + 1}', f's_lshr_b32 s{S_LI}, s{S_LI}, 16', f's_mul_i32 s{S_LJ}, s{S_LI}, {LN}', f's_sub_u32 s{S_LJ}, s{S_T0}, s{S_LJ}')
    a.e(f's_lshl_b32 s{S_PHI}, s{S_LI}, 1', f's_add_u32 s{S_PHI}, s{S_PHI}, s{S_LJ}', f's_and_b32 s{S_PHI}, s{S_PHI}, 7',
        f's_and_b32 s{S_T0}, s2, 7', f's_lshr_b32 s{S_TI}, s{S_T0}, {xshift}', f's_lshl_b32 s{S_TI}, s{S_TI}, 2', f's_add_u32 s{S_TI}, s{S_TI}, s{S_LI}',
        f's_and_b32 s{S_TJ}, s{S_T0}, {(1 << xshift) - 1}')
    if (TJS >> {(8, 1): 0, (7, 2): 1, (8, 2): 2}[(LN, xshift)]) & 1: a.e(f's_lshl_b32 s{S_T0}, s{S_LJ}, {xshift}', f's_add_u32 s{S_TJ}, s{S_TJ}, s{S_T0}', *INITK)
    else: a.e(f's_mul_i32 s{S_TJ}, s{S_TJ}, {LN}', f's_add_u32 s{S_TJ}, s{S_TJ}, s{S_LJ}', *INITK)
TJS = int(env('TJS', '0'))
INITK = [f's_mov_b32 s{S_P}, 7', f's_mov_b32 s{S_W}, -1']

def flag_idx(a, ph, hi, mul, lo):
    a.e(f's_lshl_b32 s{S_FLG}, s{S_VAR}, 10', f's_mul_i32 s{S_T0}, s{hi}, {mul}', f's_add_u32 s{S_FLG}, s{S_FLG}, s{S_T0}', f's_add_u32 s{S_FLG}, s{S_FLG}, s{lo}',
        f's_add_u32 s{S_FLG}, s{S_FLG}, {ph*256}', f's_lshl_b32 s{S_FLG}, s{S_FLG}, 7')

_n = [0]
def lab(p): _n[0] += 1; return f'{p}{_n[0]}'

def publish_pre(a):
    srd(a, SRD_E, P_WS, FL_OFF, 8 * 256 * 128)
    a.e('v_mov_b32 v136, 0', 'v_mov_b32 v137, 1', f's_cmp_eq_u32 s{S_LWV}, 0', f's_cselect_b32 s{SRD_E+2}, s{SRD_E+2}, 0')

def publish(a, vt=None):
    a.e('s_mov_b64 exec, 1', f'buffer_store_dword v137, v136, {S4(SRD_E)}, s{S_FLG} offen {SC}', 's_mov_b64 exec, -1')

def poll_setup(a, sr_, va, ph, dl, base_lines, n):
    srd(a, sr_, P_WS, FL_OFF, 8 * 256 * 128)
    a.e(*base_lines, f'v_min_u32 v{va}, {n-1}, v0', f'v_add_u32 v{va}, s{S_T0}, v{va}', f'v_max_i32 v{va}, 0, v{va}', f'v_lshlrev_b32 v{va}, 7, v{va}',
        f's_lshl_b32 s55, s{S_VAR}, 17', f's_add_u32 s55, s55, {(dl * 4 + ph) * 32768}')

def poll(a, sr_, va, vt, sleep=True):
    l = lab('poll')
    ld = lambda v: f'buffer_load_dword v{v}, v{va}, {S4(sr_)}, s55 offen {SC}'
    a.e(f's_mov_b32 s{S_CNT}, 0')
    if ONEP: a.e(f's_and_b32 s{S_T0}, s{S_WAVE}, 3', f's_cmp_lg_u32 s{S_T0}, 0', f's_cbranch_scc1 {l}d')
    if PS0: a.e(f's_sleep {PS0 if sleep else PS0 // 2}')
    if PP <= 1:
        a.loop([f'{l}:'] + ([f's_sleep {PS1}'] if PS1 else []) + [ld(vt), 's_waitcnt vmcnt(0)', f'v_cmp_eq_u32 vcc, 0, v{vt}',
                f's_add_u32 s{S_CNT}, s{S_CNT}, 1', f's_cmp_gt_u32 s{S_CNT}, {SPIN}', f's_cbranch_scc1 {l}d', f's_cbranch_vccnz {l}'])
    else:
        R = [214 + i for i in range(PP)]
        for i in range(PP - 1): a.e(ld(R[i]), f's_sleep {PSL}')
        body = [f'{l}:']
        for i in range(PP):
            body += [ld(R[(i + PP - 1) % PP]), f's_waitcnt vmcnt({PP-1})', f'v_cmp_eq_u32 vcc, 0, v{R[i]}', f's_cbranch_vccz {l}d']
        a.loop(body + [f's_add_u32 s{S_CNT}, s{S_CNT}, 1', f's_cmp_le_u32 s{S_CNT}, {SPIN}', f's_cbranch_scc1 {l}'])
    a.e(f'{l}d:')
    if ONEP: a.e('s_barrier')

def dma_groups(groups, lw_s):
    L = []
    for g in groups:
        L.append(f's_add_u32 m0, s{lw_s}, s{g["sg"]}')
        for (v, imm, st, ex) in g['dmas']:
            srdn, so, fl = (SRD_A, S_OA, LDF) if st == 'A' else (SRD_B, S_OB, '')
            if ex: L.append(f's_mov_b64 exec, {ex}')
            L.append(f'buffer_load_dwordx4 v{v}, {S4(srdn)}, s{so} offen offset:{imm} {fl} lds')
            if ex: L.append('s_mov_b64 exec, -1')
    return L

def issue(NK, NS, stage, base, stepA, stepB, gA, gW):
    L = next_k(NK)
    if gA: L += [f's_mul_i32 s{S_OA}, s{S_K}, {stepA}', f's_add_u32 s{S_OA}, s{S_OA}, s{S_BA}']
    if gW: L += [f's_mul_i32 s{S_OB}, s{S_K}, {stepB}', f's_add_u32 s{S_OB}, s{S_OB}, s{S_BB}']
    if not (EXP == 'nodma' and NK in (16, 32)): L += dma_groups(gA + gW, S_LW)
    L += [f's_add_u32 s{S_LW}, s{S_LW}, {stage}', f's_cmp_eq_u32 s{S_LW}, {base + NS*stage}', f's_cselect_b32 s{S_LW}, {base}, s{S_LW}']
    return L

def pre_w(a, NK, NS, AH, stage, base, stepB, gW):
    a.e(*INITK, f's_mov_b32 s{S_LW}, {base}')
    for s in range(AH): a.e(*issue(NK, NS, stage, base, 0, stepB, [], gW))

def l_loop(a, NK, NS, AH, stage, base, stepA, stepB, gA, gW, tail=0, hooks=(), early=(), st=False):
    nA = sum(len(g['dmas']) for g in gA); n = nA + sum(len(g['dmas']) for g in gW)
    lst = ['s_memrealtime s[58:59]', 's_waitcnt lgkmcnt(0)', 's_mov_b32 m0, s60', 's_add_u32 s60, s60, 1', 'v_writelane_b32 v255, s58, m0'] if st and PROF else []
    if lst: a.e(f's_lshl_b32 s60, s{S_VAR}, 5')
    iss = lambda: lst + issue(NK, NS, stage, base, stepA, stepB, gA, gW)
    t0 = 0
    if gA:
        a.e(*INITK, f's_mov_b32 s{S_LW}, {base}')
        for s in range(AH): a.e(*issue(NK, NS, stage, base, stepA, stepB, gA, []))
        for t in range(AH - 1):
            a.e(f's_waitcnt vmcnt({(AH - 1 - t) * nA + t * n})', 's_barrier', *iss())
        t0 = AH - 1
        if early: a.e(f'{early[0]}:', 's_nop 1')
        for h in early[1:]:
            a.e(f's_waitcnt vmcnt({(AH-1)*n})', 's_barrier', *iss()); h(n); t0 += 1
    l = lab('ll')
    a.e(f's_mov_b32 s{S_CNT}, {NK - AH - t0 - len(hooks)}')
    a.loop([f'{l}:', f's_waitcnt vmcnt({(AH-1)*n})', 's_barrier'] + iss() + [f's_sub_u32 s{S_CNT}, s{S_CNT}, 1', f's_cmp_lg_u32 s{S_CNT}, 0', f's_cbranch_scc1 {l}'])
    for h in hooks:
        a.e(f's_waitcnt vmcnt({(AH-1)*n})', 's_barrier', *iss()); h(n)
    for j in range(AH - tail):
        a.e(f's_waitcnt vmcnt({(AH-1-j)*n + (8 if hooks else 0)})', 's_barrier')

def c_loop(a, NK, NS, stage, reads, mfmas, addr_regs, late, st0, peel=None, extra0=(), fin=None):
    if EXP == 'noread': reads = [reads[0][:1], reads[1][:1]]
    if EXP == 'rp2': RP = 2
    adv = adv_s(NS, stage)
    advv = [f'v_add_u32 v{r}, s{S_DELTA}, v{r}' for r in addr_regs]
    a.e(f's_mov_b32 s{S_CUR}, 0', f's_mov_b32 s{S_CNT}, {NK - 1 - len(peel or [])}', 's_barrier', *stamp(st0))
    a.e(*reads[0]); a.e(*adv)
    q0 = [Ins(x).wr for x in reads[0]]
    def it(pre=(), post=()):
        q = list(q0)
        L = sched(mfmas[0], bundle(reads[1], advv), q, 1)
        if not late: L.append('s_waitcnt lgkmcnt(0)'); q.clear()
        L += list(pre) + ['s_barrier'] + list(post) + sched(mfmas[1], spread(reads[0], adv), q, 1)
        assert q == q0
        return L
    for p in peel or []: a.e(*it(*p))
    l = lab('cl')
    a.loop([f'{l}:'] + it() + [f's_sub_u32 s{S_CNT}, s{S_CNT}, 1', f's_cmp_lg_u32 s{S_CNT}, 0', f's_cbranch_scc1 {l}'])
    q = list(q0)
    a.e(*sched(mfmas[0], reads[1] + list(extra0), q, 1))
    if fin: a.e('s_waitcnt lgkmcnt(0)', *stamp(st0 + 1)); fin(mfmas[1])
    else: a.e(*sched(mfmas[1], [], q)); a.e('s_waitcnt lgkmcnt(0)', *stamp(st0 + 1))

S_LM, S_B0, S_B1 = 48, 49, 50
def c_direct(a, NK, NS, stage, reads, mf, addr_regs, DR, D, vaddr, init, st0, slots=None):
    R = NK // 8
    advv = lambda src: [f'v_add_u32 v{r}, {src}, v{r}' for r in addr_regs]
    def nk(t):
        p = t % 8
        L = []
        if p == 0 and t != 0: L += [f's_mov_b32 s{S_B0}, s{S_B1}', f's_add_u32 s{S_B1}, s{S_B1}, 32768', f's_cmp_eq_u32 s{S_B1}, s{S_T2}', f's_cselect_b32 s{S_B1}, s{S_BA}, s{S_B1}']
        return L + [f's_bitcmp1_b32 s{S_LM}, {p}', f's_cselect_b32 s{S_OA}, s{S_B1}, s{S_B0}', f's_add_u32 s{S_OA}, s{S_OA}, {p*4096}']
    ld = lambda slot, i: f'buffer_load_dwordx4 {vr(DR+16*slot+4*i,4)}, v{vaddr}, {S4(SRD_A)}, s{S_OA} offen offset:{1024*i} {LDF}'
    adv = [] if slots else adv_s(NS, stage)
    vq = []
    for sl in range(D):
        a.e(*nk(sl))
        for i in range(4 if sl < D - 1 else 2):
            a.e(ld(sl, i)); vq.append(Ins(ld(sl, i)).wr)
    init(4 * D - 2)
    a.e(f's_mov_b32 s{S_CUR}, 0', f's_mov_b32 s{S_CNT}, {R - 1}', 's_barrier', *stamp(st0))
    a.e(*reads[0]); a.e(*adv)
    q0 = [Ins(x).wr for x in reads[0]]
    def mix(items, loads, pos):
        items = [list(x) for x in items]
        for l, p in zip(loads, pos): items[p] = items[p] + [l]
        return items
    def step(t, vq, generic):
        slot = t % D
        q = list(q0)
        final = not generic and t == NK - 1
        l0 = [ld((slot - 1) % D, 2), ld((slot - 1) % D, 3)] if generic or t - 1 + D < NK else []
        av = [] if final else advv(f's{S_DELTA}' if not slots else (slots[t + 1] - slots[t]) & 0xffffffff)
        L = sched(mf(0, DR + 16 * slot), mix(bundle(reads[1], av), l0, (2, 6)), q, 1, vq=vq)
        if final: return L + sched(mf(1, DR + 16 * slot + 8), [], q, 1, vq=vq)
        more = generic or t + D < NK
        it = [[r] for r in reads[0]]
        sc = (nk(t + D) if more else []) + adv
        for i, x in enumerate(sc): it[min(i // 2, len(it) - 1)].append(x)
        l1 = [ld(slot, 0), ld(slot, 1)] if more else []
        return L + ([] if slots else ['s_barrier']) + sched(mf(1, DR + 16 * slot + 8), mix(it, l1, (4, 7)), q, 1, vq=vq)
    if slots:
        for t in range(NK): a.e(*step(t, vq, False))
    else:
        v1 = list(vq); l = lab('cd')
        body = [f'{l}:']
        for t in range(8, 16): body += step(t, v1, True)
        assert v1 == vq
        a.loop(body + [f's_sub_u32 s{S_CNT}, s{S_CNT}, 1', f's_cmp_lg_u32 s{S_CNT}, 0', f's_cbranch_scc1 {l}'])
        for t in range(NK - 8, NK): a.e(*step(t, vq, False))
    a.e('s_waitcnt lgkmcnt(0)', *stamp(st0 + 1))

def direct_setup(a, NK):
    a.e(f's_lshl_b32 s{S_LM}, 0x303, s{S_PHI}', f's_lshr_b32 s{S_LM}, s{S_LM}, 8', f's_mov_b32 s{S_B0}, s{S_BA}', f's_add_u32 s{S_B1}, s{S_BA}, 32768',
        f's_add_u32 s{S_T2}, s{S_BA}, {NK*4096}')

def w_reads(regs):
    return [[f'ds_read_b64_tr_b16 {vr(16+16*h+4*n+2*q,2)}, v{regs[n]} offset:{h*4096+q*512}' for n in range(4) for q in range(2)] for h in range(2)]

def sel(a, d, ptr0, off0, ptr1, off1, nbytes): G.srd_sel(a, d, ptr0, off0, ptr1, off1, nbytes)

XT = 18432; ST1 = XT + 24576; SL = 3 * ST1; QKV = ST1; PITCH = 400; PB = 72 * PITCH
WO_SLOTS = [131072 + 8192 * i for i in range(4)] + [100608 + 8192 * i for i in range(3)] + [8192 * i for i in range(5)] + [QKV + 8192 * i for i in range(4)]
K4_BASE, K4_NS, K4_AH = 98304, 8, 6
K4_SCR = 90112
D = 4; DR = 120
PF1 = int(env('PF1', '0'), 0); CPRIO = int(env('CPRIO', '0'))
NPF = int(env('NPF', '0')); K0W = int(env('K0W', '0')); W1_K0 = K0W * 256 * 64 * 128
REUSE = int(env('REUSE', '0')); WARM0 = int(env('WARM0', '1')); PF2N = int(env('PF2N', '14')); PF2D = int(env('PF2D', '1')); PF2S = int(env('PF2S', '0')); PF4 = int(env('PF4', '1')); PFT = int(env('PFT', '0')); PF3 = int(env('PF3', '0')); CODEPF = env('CODEPF', '0') == '1'; PF2 = env('PF2', '1') == '1'; LATEW = env('LATEW', '1') == '1'

def gen_mega(a):
    kn = 'mega'
    a.e('.p2align 8', f'{MEGA}:', 's_cmp_ge_u32 s2, 256', f's_cbranch_scc1 {kn}_end',
        's_load_dwordx16 s[64:79], s[0:1], 0', 's_load_dwordx2 s[80:81], s[0:1], 64', 's_load_dwordx2 s[84:85], s[0:1], 80', f's_load_dwordx2 s[{P_DB}:{P_DB+1}], s[0:1], 72',
        'v_lshrrev_b32 v1, 6, v0', 'v_and_b32 v0, 63, v0', f'v_readfirstlane_b32 s{S_WAVE}, v1', f's_mov_b32 s{S_VAR}, 0')
    if PROF: a.e(f'v_mov_b32 v{PV}, 0', *stamp(-1))
    a.e('v_mov_b32 v130, 0', 'v_mov_b32 v131, 0', 'v_mov_b32 v134, 0', f's_cmp_ge_u32 s{S_WAVE}, 4', f's_cbranch_scc1 L_start')

    ACC1 = 112
    def acc1(m, rt): return ACC1 + 36 * m + 4 * rt
    MK = 86; AK0, AK1, AQ, AV0, AV1, AO = 220, 221, 223, 222, 254, 1
    def attn_static():
        a.e(f's_lshr_b32 s{S_T1}, s{S_WAVE}, 1', f's_and_b32 s{S_T2}, s{S_WAVE}, 1',
            f's_mul_i32 s{S_T0}, s{S_T2}, {PB}', f's_add_u32 s{S_T0}, s{S_T0}, {QKV}', f's_lshl_b32 s{S_G0+5}, s{S_T1}, 4')
        a.e(f'v_add_u32 v76, s{S_G0+5}, v4', 'v_lshlrev_b32 v77, 4, v5', f'v_add_u32 v77, s{S_T0}, v77',
            f'v_mul_u32_u24 v78, {PITCH}, v76', f'v_add_u32 v{AK0}, v78, v77', f'v_add_u32 v{AQ}, {8*PITCH}, v{AK0}', f'v_add_u32 v{AK0}, 128, v{AK0}',
            'v_add_u32 v76, 16, v76', 'v_min_u32 v76, 71, v76', f'v_mul_u32_u24 v78, {PITCH}, v76', f'v_add3_u32 v{AK1}, v78, v77, 64', f'v_add_u32 v{AK1}, 64, v{AK1}')
        a.e('v_lshl_add_u32 v76, v5, 2, v6', f'v_add_u32 v76, s{S_G0+5}, v76', 'v_lshlrev_b32 v77, 4, v7', f'v_add_u32 v77, s{S_T0}, v77', 'v_add_u32 v77, 256, v77',
            f'v_mul_u32_u24 v78, {PITCH}, v76', f'v_add_u32 v{AV0}, v78, v77',
            'v_add_u32 v76, 16, v76', 'v_min_u32 v76, 71, v76', f'v_mul_u32_u24 v78, {PITCH}, v76', f'v_add_u32 v{AV1}, v78, v77')
        a.e(f's_lshl_b32 s{S_G0+6}, s{S_TI}, 2', f's_add_u32 s{S_G0+6}, s{S_G0+6}, s{S_T1}', f's_lshl_b32 s{S_G0+6}, s{S_G0+6}, 16',
            f's_lshl_b32 s{S_G0+7}, s{S_TJ}, 12', f's_add_u32 s{S_G0+6}, s{S_G0+6}, s{S_G0+7}', f's_lshl_b32 s{S_G0+7}, s{S_T2}, 10', f's_add_u32 s{S_G0+6}, s{S_G0+6}, s{S_G0+7}',
            f'v_lshlrev_b32 v{AO}, 4, v0', f'v_add_u32 v{AO}, s{S_G0+6}, v{AO}')
        a.e('v_lshlrev_b32 v76, 2, v5', 'v_sub_u32 v76, v76, v4', f's_or_b32 s{S_G0+7}, s{S_TI}, s{S_T1}', f's_cmp_eq_u32 s{S_G0+7}, 0', f's_cselect_b32 s{S_G0+7}, 0, -1')
        for k in range(8):
            a.e(f'v_add_u32 v77, {16 * (k >> 2) + (k & 3) - 1}, v76', f'v_cmp_gt_u32 s[{MK+2*k}:{MK+1+2*k}], 8, v77')
        for k in range(4): a.e(f's_and_b32 s{MK+2*k}, s{MK+2*k}, s{S_G0+7}')
    def k1_setup_c():
        tiles(a, 8, 1)
        lane_fields(a)
        tr128_addr(a, [8], XT, 21, 22)
        a.e(f's_lshl_b32 s{S_T0}, s{S_WAVE}, 5', f'v_xor_b32 v8, s{S_T0}, v8',
            'v_lshrrev_b32 v21, 1, v4', 'v_xor_b32 v21, v21, v5', 'v_lshlrev_b32 v21, 4, v21', 'v_lshlrev_b32 v22, 7, v4', 'v_add_u32 v9, v21, v22', 'v_xor_b32 v10, 64, v9',
            'v_and_b32 v21, 1, v4', f'v_mul_u32_u24 v21, {PB}, v21', 'v_lshrrev_b32 v22, 1, v4', f'v_mul_u32_u24 v22, {PITCH}, v22',
            'v_lshlrev_b32 v23, 3, v5', 'v_add3_u32 v11, v21, v22, v23', f's_add_u32 s{S_T0}, s{S_T0}, {QKV}',
            f'v_add_u32 v11, s{S_T0}, v11', 'v_lshlrev_b32 v12, 3, v4', f'v_add_u32 v12, {SL}, v12')
        for r in range(ACC1, ACC1 + 108, 2): a.e(f'v_mov_b64 {vr(r,2)}, 0')
    if CPRIO: a.e(f's_setprio {CPRIO}')
    k1_setup_c()
    attn_static()
    a.e('s_waitcnt lgkmcnt(0)', f's_mov_b32 s{P_WL}, s{P_WS}', f's_mov_b32 s{P_WL+1}, s{P_WS+1}')
    srd(a, SRD_B, P_WS, 0, 0)
    srd(a, SRD_D, P_WQKV, 0, 1024 * 3072 * 2 * WARM0)
    a.e(f's_cmp_eq_u32 s{S_WAVE}, 3', f's_cselect_b32 s{SRD_D}, s{P_WO}, s{SRD_D}', f's_cselect_b32 s{SRD_D+1}, s{P_WO+1}, s{SRD_D+1}', f's_cselect_b32 s{SRD_D+2}, {2*MB*WARM0}, s{SRD_D+2}',
        f's_cselect_b32 s47, 0, s{S_WAVE}', 's_lshl_b32 s47, s47, 8', 's_add_u32 s47, s47, s2', 's_lshl_b32 s47, s47, 13', 'v_lshlrev_b32 v13, 7, v0', 's_barrier')
    warm = f'buffer_load_dword v15, v13, {S4(SRD_D)}, s47 offen'
    def warm_if(w, l): return [f's_cmp_lg_u32 s51, {w}', f's_cbranch_scc1 {l}', warm, f'{l}:']
    a.e(f's_mov_b32 s51, s{S_WAVE}', *warm_if(0, 'C_wm0'))
    if CODEPF:
        a.e(f's_cmp_lg_u32 s{S_WAVE}, 3', 's_cbranch_scc1 C_nc', 's_getpc_b64 s[44:45]', 'C_pc:', 's_lshr_b32 s46, s2, 3', 's_lshl_b32 s46, s46, 11', 'v_and_b32 v16, 15, v0',
            'v_lshlrev_b32 v16, 7, v16', 'v_add_u32 v16, s46, v16', 'v_min_u32 v16, mega_end-C_pc, v16', 'global_load_dword v15, v16, s[44:45]', 'C_nc:')
    a.e('C_top:'); a.flush_hist()
    reads = [[], []]; mf = [[], []]
    for h in range(2):
        F = 16 + 48 * h
        ra = [[f'ds_read_b64_tr_b16 {vr(F+4*m,2)}, v8 offset:{m*8192+h*4096}', f'ds_read_b64_tr_b16 {vr(F+4*m+2,2)}, v8 offset:{m*8192+h*4096+512}'] for m in range(3)]
        rb = [f'ds_read_b128 {vr(F+12+4*rt,4)}, v{9+h} offset:{rt*2048}' for rt in range(9)]
        reads[h] = ra[0] + [rb[0]] + ra[1] + ra[2] + rb[1:]
        mf[h] = [f'{MF16} {vr(acc1(m,rt),4)}, {vr(F+4*m,4)}, {vr(F+12+4*rt,4)}, {vr(acc1(m,rt),4)}' for rt in range(9) for m in (range(3) if rt % 2 == 0 or not SNAKE else range(2, -1, -1))]
    peel = [([], warm_if(1, 'C_wm1')), ([], warm_if(2, 'C_wm2')), ([], warm_if(3, 'C_wm3'))]
    STR, CW = 224, 242
    def fold(rt, o):
        ms = [m for m in range(3) if not (m == 0 and rt == 0)]
        st = vr(STR + 2 * rt, 2); L = []
        for m in ms: L += [f'v_pk_fma_f32 {vr(acc1(m,rt)+e,2)}, {vr(CW+4*m+e,2)}, {st}, {vr(acc1(m,rt)+e,2)} op_sel_hi:[1,0,1] neg_lo:[0,1,0] neg_hi:[0,1,0]' for e in (0, 2)]
        for m in ms: L += [f'v_pk_mul_f32 {vr(acc1(m,rt)+e,2)}, {vr(acc1(m,rt)+e,2)}, {st} op_sel:[0,1] op_sel_hi:[1,1]' for e in (0, 2)]
        for i, m in enumerate(ms):
            d = acc1(m, rt); r = o + 2 * i
            L += [f'v_cvt_pk_bf16_f32 v{r}, v{d}, v{d+1}', f'v_cvt_pk_bf16_f32 v{r+1}, v{d+2}, v{d+3}', f'ds_write_b64 v11, {vr(r,2)} offset:{rt*8*PITCH+m*128}']
        return L
    def fin1(mfs):
        work = [f'v_mov_b32_dpp v{CW+4*m+r}, v{acc1(m,0)+r} row_newbcast:0 row_mask:0xf bank_mask:0xf' for m in range(3) for r in range(4)]
        ready = [len(work)]
        for rt in range(9): work += fold(rt, 16 + 6 * (rt % 8)); ready.append(len(work))
        done = 0
        for i, m in enumerate(mfs):
            a.e(m)
            rt = i // 3 - 1
            lim = ready[rt + 1] if rt >= 0 else 0
            n = min(lim - done, 7)
            if n > 0: a.e(*work[done:done + n]); done += n
        a.e('s_barrier')
        a.e(*work[done:])
    c_loop(a, 16, 3, ST1, reads, mf, [8, 9, 10], False, 0, peel, [f'ds_read_b64 {vr(STR+2*rt,2)}, v12 offset:{rt*128}' for rt in range(9)], fin1)
    a.e('attn:'); a.flush_hist()
    cs = (32 ** -0.5) * 1.4426950408889634
    a.e(f'v_mov_b32 v18, {f32(cs)}', 'v_mov_b32 v19, 0xff800000')
    srd(a, SRD_D, P_WL, O_OFF, XB)
    a.e('s_waitcnt lgkmcnt(0)', 's_barrier')
    B = [32, 80]
    for hd in range(2):
        b = B[hd]; o = 64 * hd
        a.e(f'ds_read_b128 {vr(b,4)}, v{AQ} offset:{o}', f'ds_read_b128 {vr(b+4,4)}, v{AK0} offset:{o}', f'ds_read_b128 {vr(b+8,4)}, v{AK1} offset:{o}')
    for hd in range(2):
        b = B[hd]; o = 64 * hd
        for dt in range(2): a.e(f'ds_read_b64_tr_b16 {vr(b+12+4*dt,2)}, v{AV0} offset:{o+8*dt}', f'ds_read_b64_tr_b16 {vr(b+14+4*dt,2)}, v{AV1} offset:{o+8*dt}')
    for hd in range(2):
        b = B[hd]
        a.e(f's_waitcnt lgkmcnt({11 - 3*hd})', f'{MF16} {vr(b+20,4)}, {vr(b+4,4)}, {vr(b,4)}, 0', f'{MF16} {vr(b+24,4)}, {vr(b+8,4)}, {vr(b,4)}, 0')
    def both(f):
        for x, y in zip(f(B[0]), f(B[1])): a.e(x, y)
    both(lambda b: [f'v_cndmask_b32 v{b+20+k}, v19, v{b+20+k}, s[{MK+2*k}:{MK+1+2*k}]' for k in range(8)])
    both(lambda b: [f'v_max3_f32 v{b+28}, v{b+20}, v{b+21}, v{b+22}', f'v_max3_f32 v{b+29}, v{b+23}, v{b+24}, v{b+25}',
                    f'v_max3_f32 v{b+28}, v{b+28}, v{b+26}, v{b+27}', f'v_max_f32 v{b+28}, v{b+28}, v{b+29}', f'v_mov_b32 v{b+29}, v{b+28}',
                    f'v_permlane16_swap_b32 v{b+28}, v{b+29}', f'v_max_f32 v{b+28}, v{b+28}, v{b+29}', f'v_mov_b32 v{b+29}, v{b+28}',
                    f'v_permlane32_swap_b32 v{b+28}, v{b+29}', f'v_max_f32 v{b+28}, v{b+28}, v{b+29}', f'v_mul_f32 v{b+28}, v18, v{b+28}'])
    both(lambda b: [f'v_fma_f32 v{b+20+k}, v{b+20+k}, v18, -v{b+28}' for k in range(8)])
    both(lambda b: [f'v_exp_f32 v{b+20+k}, v{b+20+k}' for k in range(8)])
    both(lambda b: [f'v_pk_add_f32 {vr(b+28,2)}, {vr(b+20,2)}, {vr(b+22,2)}', f'v_pk_add_f32 {vr(b+30,2)}, {vr(b+24,2)}, {vr(b+26,2)}',
                    f'v_pk_add_f32 {vr(b+28,2)}, {vr(b+28,2)}, {vr(b+30,2)}', f'v_add_f32 v{b+28}, v{b+28}, v{b+29}', f'v_mov_b32 v{b+29}, v{b+28}',
                    f'v_permlane16_swap_b32 v{b+28}, v{b+29}', f'v_add_f32 v{b+28}, v{b+28}, v{b+29}', f'v_mov_b32 v{b+29}, v{b+28}',
                    f'v_permlane32_swap_b32 v{b+28}, v{b+29}', f'v_add_f32 v{b+28}, v{b+28}, v{b+29}', f'v_rcp_f32 v{b+28}, v{b+28}'])
    both(lambda b: [f'v_pk_mul_f32 {vr(b+20+e,2)}, {vr(b+20+e,2)}, {vr(b+28,2)} op_sel_hi:[1,0]' for e in range(0, 8, 2)])
    both(lambda b: [f'v_cvt_pk_bf16_f32 v{b+32+e}, v{b+20+2*e}, v{b+21+2*e}' for e in range(4)])
    a.e('s_waitcnt lgkmcnt(0)')
    both(lambda b: [f'{MF16} {vr(b+36+4*dt,4)}, {vr(b+12+4*dt,4)}, {vr(b+32,4)}, 0' for dt in range(2)])
    both(lambda b: [f'v_cvt_pk_bf16_f32 v{b+e}, v{b+36+2*e}, v{b+37+2*e}' for e in range(4)])
    for hd in range(2): a.e(f'buffer_store_dwordx4 {vr(B[hd],4)}, v{AO}, {S4(SRD_D)}, 0 offen offset:{2048*hd} {SC}')
    a.e(f's_cmp_ge_u32 s{S_WAVE}, 4', 's_cbranch_scc1 L_k1done')

    ACC = 48; RES = 96
    def acc2(t, b): return ACC + 16 * b + 4 * t
    a.e(f's_lshl_b32 s{S_T0}, s{S_TI}, 2', f's_add_u32 s{S_T0}, s{S_T0}, s{S_WAVE}', f's_lshl_b32 s{S_BA}, s{S_T0}, 16', f's_lshl_b32 s{S_T1}, s{S_T0}, 5',
        'v_lshlrev_b32 v13, 1, v4', f'v_add_u32 v13, s{S_T1}, v13',
        'v_lshlrev_b32 v12, 11, v13', 'v_lshl_add_u32 v12, v3, 4, v12', f's_lshl_b32 s{S_T0}, s{S_TJ}, 7', f'v_add_u32 v12, s{S_T0}, v12', 'v_lshlrev_b32 v14, 4, v0')
    srd(a, SRD_A, P_WL, O_OFF, XB)
    sel(a, SRD_C, P_X, 0, P_WS, X2_OFF, XB)
    sel(a, SRD_B, P_WS, 0, P_WS, LSTR, 0); a.e(f's_add_u32 s{SRD_B}, s{SRD_B}, {ST_OFF}', f's_addc_u32 s{SRD_B+1}, s{SRD_B+1}, 0', f's_mov_b32 s{SRD_B+2}, {16*2048*8}')
    tr128_addr(a, [8, 9, 10, 11], WO_SLOTS[0], 16, 17)
    a.e('v_add_u32 v16, v13, v2', 'v_lshlrev_b32 v16, 3, v16', f's_lshl_b32 s{S_T0}, s{S_TJ}, 14', f'v_add_u32 v112, s{S_T0}, v16',
        'v_lshrrev_b32 v17, 5, v0', 'v_lshlrev_b32 v17, 17, v17', 'v_add_u32 v113, v16, v17')
    a.e(f's_lshl_b32 s{S_T0}, s{S_WAVE}, 12', 'v_lshlrev_b32 v16, 8, v4', 'v_lshl_add_u32 v16, v5, 3, v16', f'v_add_u32 v16, s{S_T0}, v16',
        'v_and_b32 v17, 1, v4', 'v_bfe_u32 v18, v4, 2, 1', 'v_lshl_or_b32 v17, v18, 1, v17', 'v_lshl_add_u32 v114, v17, 5, v16',
        f's_lshl_b32 s{S_G0}, s{S_TJ}, 8', f's_lshl_b32 s{S_T1}, s{S_TI}, 2', f's_add_u32 s{S_G0}, s{S_G0}, s{S_T1}', f's_add_u32 s{S_G0}, s{S_G0}, s{S_WAVE}', f's_lshl_b32 s{S_G0}, s{S_G0}, 10')
    tr128_addr(a, [115], 0, 16, 17)
    a.e(f'v_add_u32 v115, s{S_T0}, v115')
    for t in range(1, 4): a.e(f's_add_u32 s{S_G0+t}, s{S_G0}, {t*65536}')
    for p in range(1, 8): a.e(f'v_add_u32 v{183+p}, {p*16384}, v113')
    direct_setup(a, 16)
    poll_setup(a, SRD_E, 119, 0, 0, [f's_lshl_b32 s{S_T0}, s{S_TI}, 4'], 16)
    a.e('s_waitcnt vmcnt(0)', 's_barrier', *stamp(2))
    for b in range(2):
        for P in range(2): a.e(f'buffer_load_dwordx4 {vr(RES+8*b+4*P,4)}, v12, {S4(SRD_C)}, 0 offen offset:{b*2048+P*64} {LDF}')
    poll(a, SRD_E, 119, 16)
    a.e(*stamp(3))
    def init2(out):
        a.e(f's_waitcnt vmcnt({out})')
        for b in range(2):
            for P in range(2):
                r = RES + 8 * b + 4 * P
                a.e(f'v_permlane16_swap_b32 v{r}, v{r+2}', f'v_permlane16_swap_b32 v{r+1}, v{r+3}')
        for b in range(2):
            for P in range(2):
                r = RES + 8 * b + 4 * P
                a.e(*unpack4(r, r + 1, acc2(2 * P, b)), *unpack4(r + 2, r + 3, acc2(2 * P + 1, b)))
    mf2 = lambda h, bb: [f'{MF16} {vr(acc2(t,b),4)}, {vr(16+16*h+4*t,4)}, {vr(bb+4*b,4)}, {vr(acc2(t,b),4)}' for t in range(4) for b in ((0, 1) if t % 2 == 0 or not SNAKE else (1, 0))]
    c_direct(a, 16, 0, 0, w_reads([8, 9, 10, 11]), mf2, [8, 9, 10, 11], DR, D, 14, init2, 4, slots=WO_SLOTS)
    a.e('s_barrier')
    srd(a, SRD_D, P_WL, X1_OFF, XB)
    srd(a, SRD_E, P_WL, H_OFF, XB)
    for b in range(2):
        d = acc2(0, b); T = 16 + 4 * b
        a.e(f'v_pk_add_f32 {vr(T,2)}, {vr(d,2)}, {vr(d+2,2)}', f'v_pk_mul_f32 {vr(T+2,2)}, {vr(d,2)}, {vr(d,2)}', f'v_pk_fma_f32 {vr(T+2,2)}, {vr(d+2,2)}, {vr(d+2,2)}, {vr(T+2,2)}')
        for e in range(4, 16, 2):
            a.e(f'v_pk_add_f32 {vr(T,2)}, {vr(T,2)}, {vr(d+e,2)}', f'v_pk_fma_f32 {vr(T+2,2)}, {vr(d+e,2)}, {vr(d+e,2)}, {vr(T+2,2)}')
        a.e(f'v_add_f32 v{24+b}, v{T}, v{T+1}', f'v_add_f32 v{26+b}, v{T+2}, v{T+3}')
    a.e('v_permlane16_swap_b32 v24, v25', 'v_permlane16_swap_b32 v26, v27', 'v_add_f32 v28, v24, v25', 'v_add_f32 v29, v26, v27',
        'v_mov_b32 v30, v28', 'v_mov_b32 v31, v29', 'v_permlane32_swap_b32 v28, v30', 'v_permlane32_swap_b32 v29, v31',
        'v_add_f32 v28, v28, v30', 'v_add_f32 v29, v29, v31', 'v_and_b32 v29, 0x7fffffff, v29',
        's_mov_b32 exec_hi, 0', f'buffer_store_dwordx2 v[28:29], v112, {S4(SRD_B)}, 0 offen {SC}', 's_mov_b64 exec, -1')
    for b in range(2):
        for t in range(4):
            r = RES + 8 * b + 2 * t; d = acc2(t, b)
            a.e(f'v_cvt_pk_bf16_f32 v{r}, v{d}, v{d+1}', f'v_cvt_pk_bf16_f32 v{r+1}, v{d+2}, v{d+3}')
    for b in range(2):
        for P in range(2):
            r = RES + 8 * b + 4 * P
            a.e(f'v_permlane16_swap_b32 v{r}, v{r+2}', f'v_permlane16_swap_b32 v{r+1}, v{r+3}')
    for t in range(1, 4): a.e(f'v_xor_b32 v{115+t}, {t << 5}, v115', f'v_xor_b32 v{120+t}, {t << 5}, v114')
    a.e('v_mov_b32 v120, v114', f's_mov_b32 s{S_CNT}, 0')
    body = ['k2_poll:'] + [f'buffer_load_dwordx2 {vr(32+2*p,2)}, v{113 if p == 0 else 183+p}, {S4(SRD_B)}, 0 offen {SC}' for p in range(8)]
    body += ['s_waitcnt vmcnt(0)', 'v_min3_i32 v16, v33, v35, v37', 'v_min3_i32 v17, v39, v41, v43', 'v_min3_i32 v16, v16, v45, v47',
             'v_min_i32 v16, v16, v17', 'v_cmp_gt_i32 vcc, 0, v16', f's_add_u32 s{S_CNT}, s{S_CNT}, 1', f's_cmp_gt_u32 s{S_CNT}, {SPIN}',
             's_cbranch_scc1 k2_pdone', 's_cbranch_vccnz k2_poll']
    a.loop(body)
    a.e('k2_pdone:', *stamp(6))
    for b in range(2):
        for P in range(2): a.e(f'buffer_store_dwordx4 {vr(RES+8*b+4*P,4)}, v12, {S4(SRD_D)}, 0 offen offset:{b*2048+P*64} {SC}')
    a.e('v_pk_add_f32 v[32:33], v[32:33], v[34:35]', 'v_pk_add_f32 v[36:37], v[36:37], v[38:39]', 'v_pk_add_f32 v[40:41], v[40:41], v[42:43]',
        'v_pk_add_f32 v[44:45], v[44:45], v[46:47]', 'v_pk_add_f32 v[32:33], v[32:33], v[36:37]', 'v_pk_add_f32 v[40:41], v[40:41], v[44:45]',
        'v_pk_add_f32 v[32:33], v[32:33], v[40:41]', 'v_mov_b32 v34, v32', 'v_mov_b32 v35, v33',
        'v_permlane32_swap_b32 v32, v34', 'v_permlane32_swap_b32 v33, v35', 'v_add_f32 v32, v32, v34', 'v_add_f32 v33, v33, v35')
    stats_finish(a, 32, 33, 36, True)
    a.e('v_mov_b32 v34, v32', 'v_mov_b32 v35, v33', 'v_permlane16_swap_b32 v32, v34', 'v_permlane16_swap_b32 v33, v35')
    for b in range(2):
        st = vr(32 + 2 * b, 2); d = acc2(0, b); o = 160 + 8 * b
        for e in range(0, 16, 2): a.e(f'v_pk_add_f32 {vr(d+e,2)}, {vr(d+e,2)}, {st} op_sel_hi:[1,0] neg_lo:[0,1] neg_hi:[0,1]')
        for e in range(0, 16, 2): a.e(f'v_pk_mul_f32 {vr(d+e,2)}, {vr(d+e,2)}, {st} op_sel:[0,1] op_sel_hi:[1,1]')
        for t in range(4):
            a.e(f'v_cvt_pk_bf16_f32 v{o+2*t}, v{d+4*t}, v{d+4*t+1}', f'v_cvt_pk_bf16_f32 v{o+2*t+1}, v{d+4*t+2}, v{d+4*t+3}',
                f'ds_write_b64 v{120+t}, {vr(o+2*t,2)} offset:{128*b}')
    a.e('s_waitcnt lgkmcnt(0)')
    for t in range(4): a.e(f'ds_read_b64_tr_b16 {vr(176+4*t,2)}, v{115+t}', f'ds_read_b64_tr_b16 {vr(178+4*t,2)}, v{115+t} offset:512')
    for t in range(4): a.e(f's_waitcnt lgkmcnt({6-2*t})', f'buffer_store_dwordx4 {vr(176+4*t,4)}, v14, {S4(SRD_E)}, s{S_G0+t} offen {SC}')
    a.e('s_cmp_ge_u32 s2, 224', 's_cbranch_scc1 C_k3skip')

    ACC3 = 80
    def acc3(tf, td): return ACC3 + 16 * td + 4 * tf
    tiles(a, 7, 2)
    a.e(f's_and_b32 s{S_G0+2}, s{S_WAVE}, 1', f's_lshr_b32 s{S_T2}, s{S_WAVE}, 1',
        f's_lshl_b32 s{S_T0}, s{S_TJ}, 8', f's_lshl_b32 s{S_G0}, s{S_G0+2}, 7', f's_add_u32 s{S_T0}, s{S_T0}, s{S_G0}',
        'v_lshlrev_b32 v16, 3, v5', f'v_add_u32 v16, s{S_T0}, v16')
    srd(a, SRD_C, P_B1, 0, 3584 * 2)
    for tf in range(4): a.e(f'buffer_load_dwordx2 {vr(144+2*tf,2)}, v16, {S4(SRD_C)}, 0 offen offset:{32*tf}')
    srd(a, SRD_D, P_WL, U_OFF, UB)
    a.e('v_lshl_add_u32 v17, v5, 3, v6', 'v_lshlrev_b32 v17, 8, v17', 'v_lshl_add_u32 v17, v7, 3, v17', 'v_lshl_or_b32 v18, v2, 2, v6', 'v_lshl_add_u32 v17, v18, 5, v17',
        f's_lshl_b32 s{S_T0}, s{S_G0+2}, 7', f's_add_u32 s{S_T0}, s{S_T0}, 16384', f'v_xor_b32 v18, s{S_T0}, v17', f's_lshl_b32 s{S_T0}, s{S_T2}, 13', f'v_add_u32 v12, s{S_T0}, v14')
    for t in range(4): a.e(f'v_xor_b32 v{8+t}, {t << 5}, v18')
    a.e('v_bfe_u32 v17, v4, 2, 1', 'v_lshlrev_b32 v17, 10, v17', 'v_lshl_add_u32 v17, v3, 8, v17', 'v_lshrrev_b32 v18, 3, v4', 'v_lshl_add_u32 v17, v18, 6, v17',
        'v_lshl_add_u32 v152, v7, 4, v17', 'v_add_u32 v153, 128, v152',
        f's_lshl_b32 s{S_T0}, s{S_TI}, 1', f's_add_u32 s{S_T0}, s{S_T0}, s{S_T2}', f's_mul_i32 s{S_T0}, s{S_T0}, 224',
        f's_lshl_b32 s{S_G0}, s{S_TJ}, 2', f's_add_u32 s{S_T0}, s{S_T0}, s{S_G0}', f's_lshl_b32 s{S_G0}, s{S_G0+2}, 1', f's_add_u32 s{S_T0}, s{S_T0}, s{S_G0}',
        f's_lshl_b32 s{S_G0}, s{S_T0}, 11', f's_add_u32 s{S_G0+1}, s{S_G0}, {112*2048}')
    a.e('s_waitcnt vmcnt(0)', 's_barrier', *stamp(7))
    for tf in range(4):
        a.e(*unpack4(144 + 2 * tf, 145 + 2 * tf, acc3(tf, 0)))
        for td in range(1, 4): a.e(f'v_mov_b64 {vr(acc3(tf,td),2)}, {vr(acc3(tf,0),2)}', f'v_mov_b64 {vr(acc3(tf,td)+2,2)}, {vr(acc3(tf,0)+2,2)}')
    reads = [[], []]; mf = [[], []]
    for h in range(2):
        F = 16 + 32 * h
        rd = lambda dst, av: [f'ds_read_b64_tr_b16 {vr(dst,2)}, v{av} offset:{h*8192}', f'ds_read_b64_tr_b16 {vr(dst+2,2)}, v{av} offset:{h*8192+1024}']
        ra = [rd(F + 4 * t, 8 + t) for t in range(4)]
        rb = [[f'ds_read_b128 {vr(F+16+4*t,4)}, v12 offset:{(2*t+h)*1024}'] for t in range(4)]
        if SNAKE:
            reads[h] = ra[0] + rb[0] + rb[1] + ra[1] + ra[2] + rb[2] + rb[3] + ra[3]
            order = [(0,0),(0,1),(1,1),(1,0),(2,0),(2,1),(2,2),(1,2),(0,2),(0,3),(1,3),(2,3),(3,3),(3,2),(3,1),(3,0)]
        else:
            for t in range(4): reads[h] += ra[t] + rb[t]
            order = sorted([(tf, td) for tf in range(4) for td in range(4)], key=lambda x: (max(x), x))
        for tf, td in order:
            mf[h].append(f'{MF16} {vr(acc3(tf,td),4)}, {vr(F+4*tf,4)}, {vr(F+16+4*td,4)}, {vr(acc3(tf,td),4)}')
    if ONEP: a.e('s_barrier')
    c_loop(a, 32, 5, 32768, reads, mf, list(range(8, 13)), True, 8)
    c1 = -2.0 * 0.7978845608028654 * 1.4426950408889634
    a.e(f'v_mov_b32 v16, {f32(c1)}', f'v_mov_b32 v17, {f32(c1 * 0.044715)}')
    k = 0
    for td in range(4):
        for P in range(2):
            d = acc3(2 * P, td); T = 24 + 16 * (k & 1); k += 1
            O = 160 + 4 * k
            for e in range(0, 8, 2): a.e(f'v_pk_mul_f32 {vr(T+e,2)}, {vr(d+e,2)}, {vr(d+e,2)}')
            for e in range(0, 8, 2): a.e(f'v_pk_fma_f32 {vr(T+e,2)}, {vr(T+e,2)}, v[16:17], v[16:17] op_sel:[0,1,0] op_sel_hi:[1,1,0]')
            for e in range(0, 8, 2): a.e(f'v_pk_mul_f32 {vr(T+e,2)}, {vr(T+e,2)}, {vr(d+e,2)}')
            for e in range(8): a.e(f'v_exp_f32 v{T+e}, v{T+e}')
            for e in range(0, 8, 2): a.e(f'v_pk_add_f32 {vr(T+e,2)}, {vr(T+e,2)}, 1.0 op_sel_hi:[1,0]')
            for e in range(8): a.e(f'v_rcp_f32 v{T+e}, v{T+e}')
            for e in range(0, 8, 2): a.e(f'v_pk_mul_f32 {vr(T+e,2)}, {vr(T+e,2)}, {vr(d+e,2)}')
            for e in range(4): a.e(f'v_cvt_pk_bf16_f32 v{O+e}, v{T+2*e}, v{T+2*e+1}')
            a.e(f'v_permlane16_swap_b32 v{O}, v{O+2}', f'v_permlane16_swap_b32 v{O+1}, v{O+3}')
            a.e(f'buffer_store_dwordx4 {vr(O,4)}, v{152+(td&1)}, {S4(SRD_D)}, s{S_G0+(td>>1)} offen offset:{2048*P} {SC}')
    a.e('C_k3skip:'); a.flush_hist()

    def acc4(aa, n): return ACC + 8 * n + 4 * aa
    tiles(a, 8, 2)
    a.e(f's_lshl_b32 s{S_T0}, s{S_TJ}, 6', f'v_add_u32 v13, s{S_T0}, v4', 'v_lshlrev_b32 v12, 11, v13', 'v_lshl_add_u32 v12, v5, 4, v12',
        f's_lshl_b32 s{S_T0}, s{S_TI}, 8', f's_lshl_b32 s{S_T1}, s{S_WAVE}, 6', f's_add_u32 s{S_T0}, s{S_T0}, s{S_T1}',
        f'v_add_u32 v12, s{S_T0}, v12', 'v_lshlrev_b32 v13, 1, v13', 'v_lshlrev_b32 v14, 4, v0',
        f's_lshl_b32 s{S_BA}, s{S_TI}, 2', f's_add_u32 s{S_BA}, s{S_BA}, s{S_WAVE}', f's_mul_i32 s{S_BA}, s{S_BA}, {56*4096}',
        's_mov_b32 s45, 32768', 's_mov_b32 s46, 65536', 's_mov_b32 s47, 98304')
    so = ['0', 's45', 's46', 's47']
    srd(a, SRD_A, P_WL, U_OFF, UB)
    srd(a, SRD_C, P_WL, X1_OFF, XB)
    srd(a, SRD_B, P_B2, 0, 4096)
    for n in range(4): a.e(f'buffer_load_ushort v{RES+16+2*n}, v13, {S4(SRD_B)}, 0 offen offset:{32*n}')
    tr128_addr(a, [8, 9, 10, 11], K4_BASE, 16, 17)
    direct_setup(a, 56)
    a.e('v_lshlrev_b32 v184, 3, v0', f's_lshl_b32 s{S_T0}, s{S_WAVE}, 9', f's_add_u32 s{S_T0}, s{S_T0}, {K4_SCR}', f'v_add_u32 v185, s{S_T0}, v184')
    poll_setup(a, SRD_E, 15, 2, 0, [f's_lshl_b32 s{S_T0}, s{S_TI}, 5'], 28)
    a.e('s_waitcnt vmcnt(0)', 's_barrier', *stamp(10))
    if PF2:
        a.e('s_cmp_lt_u32 s2, 224', 's_cbranch_scc1 C_nopf', f's_cmp_lg_u32 s{S_VAR}, 0', 's_cbranch_scc1 C_nopf')
        srd(a, SRD_D, P_W2, 0, 3584 * 2048 * 2)
        a.e(f's_sub_u32 s{S_T0}, s2, 224', f's_lshl_b32 s{S_T0}, s{S_T0}, 2', f's_add_u32 s{S_T0}, s{S_T0}, s{S_WAVE}', f's_lshl_b32 s{S_T0}, s{S_T0}, 13', 'v_lshlrev_b32 v17, 7, v0')
        for j in range(PF2D): a.e('s_sleep 127')
        for j in range(PF2N):
            if PF2S: a.e(f's_sleep {PF2S}')
            a.e(f'buffer_load_dword v18, v17, {S4(SRD_D)}, s{S_T0} offen', f's_add_u32 s{S_T0}, s{S_T0}, {128*8192}', *(['s_waitcnt vmcnt(1)'] if j else []))
        a.e('C_nopf:')
    poll(a, SRD_E, 15, 16)
    a.e(*stamp(11))
    for n in range(4): a.e(f'buffer_load_dwordx4 {vr(RES+4*n,4)}, v12, {S4(SRD_C)}, {so[n]} offen {LDF}')
    sel(a, SRD_E, P_WS, X2_OFF, P_OUT, 0, XB)
    srd(a, SRD_B, P_WS, LSTR + RS_OFF, 8 * 2048 * 8)
    def init4(out):
        a.e(f's_waitcnt vmcnt({out})')
        for n in range(4):
            a.e(f'v_lshlrev_b32 v{RES+16+2*n}, 16, v{RES+16+2*n}')
            a.e(*unpack4(RES + 4 * n, RES + 4 * n + 1, acc4(0, n)), *unpack4(RES + 4 * n + 2, RES + 4 * n + 3, acc4(1, n)))
            for e in range(0, 8, 2): a.e(f'v_pk_add_f32 {vr(acc4(0,n)+e,2)}, {vr(acc4(0,n)+e,2)}, {vr(RES+16+2*n,2)} op_sel_hi:[1,0]')
    mf4 = lambda h, b: [f'{MF16} {vr(acc4(aa,n),4)}, {vr(b+4*aa,4)}, {vr(16+16*h+4*n,4)}, {vr(acc4(aa,n),4)}' for n in range(4) for aa in ((0, 1) if n % 2 == 0 or not SNAKE else (1, 0))]
    c_direct(a, 56, K4_NS, 8192, w_reads([8, 9, 10, 11]), mf4, [8, 9, 10, 11], DR, D, 14, init4, 12)
    def st4():
        for n in range(4):
            for e in range(4): a.e(f'v_cvt_pk_bf16_f32 v{RES+4*n+e}, v{acc4(0,n)+2*e}, v{acc4(0,n)+2*e+1}')
            a.e(f'buffer_store_dwordx4 {vr(RES+4*n,4)}, v12, {S4(SRD_E)}, {so[n]} offen {SC}')
    a.e(f's_cmp_eq_u32 s{S_VAR}, 0', 's_cbranch_scc1 C_st')
    st4()
    a.e('s_branch C_end', 'C_st:', 's_nop 7')
    for n in range(4):
        d = acc4(0, n); T = 16 + 4 * n
        a.e(f'v_pk_add_f32 {vr(T,2)}, {vr(d,2)}, {vr(d+2,2)}', f'v_pk_mul_f32 {vr(T+2,2)}, {vr(d,2)}, {vr(d,2)}', f'v_pk_fma_f32 {vr(T+2,2)}, {vr(d+2,2)}, {vr(d+2,2)}, {vr(T+2,2)}')
        for e in (4, 6): a.e(f'v_pk_add_f32 {vr(T,2)}, {vr(T,2)}, {vr(d+e,2)}', f'v_pk_fma_f32 {vr(T+2,2)}, {vr(d+e,2)}, {vr(d+e,2)}, {vr(T+2,2)}')
        a.e(f'v_add_f32 v{32+n}, v{T}, v{T+1}', f'v_add_f32 v{36+n}, v{T+2}, v{T+3}')
    for b in (32, 36): a.e(f'v_permlane16_swap_b32 v{b}, v{b+1}', f'v_permlane16_swap_b32 v{b+2}, v{b+3}')
    for b in (32, 36): a.e(f'v_add_f32 v{b}, v{b}, v{b+1}', f'v_add_f32 v{b+2}, v{b+2}, v{b+3}')
    a.e('v_permlane32_swap_b32 v32, v34', 'v_permlane32_swap_b32 v36, v38', 'v_add_f32 v40, v32, v34', 'v_add_f32 v41, v36, v38',
        'ds_write_b64 v185, v[40:41]', f's_lshl_b32 s{S_T0}, s{S_TI}, 14', f's_lshl_b32 s{S_T1}, s{S_TJ}, 9', f's_add_u32 s{S_T0}, s{S_T0}, s{S_T1}',
        's_waitcnt lgkmcnt(0)', 's_barrier',
        f's_cmp_lg_u32 s{S_WAVE}, 0', 's_cbranch_scc1 C_nost',
        'ds_read_b64 v[44:45], v185 offset:512', 'ds_read_b64 v[46:47], v185 offset:1024', 'ds_read_b64 v[18:19], v185 offset:1536', 's_waitcnt lgkmcnt(0)',
        'v_pk_add_f32 v[40:41], v[40:41], v[44:45]', 'v_pk_add_f32 v[46:47], v[46:47], v[18:19]', 'v_pk_add_f32 v[40:41], v[40:41], v[46:47]',
        f'buffer_store_dwordx2 v[40:41], v184, {S4(SRD_B)}, s{S_T0} offen {SC}', 'C_nost:', 's_nop 1')
    st4()
    k1_setup_c()
    a.e('s_waitcnt vmcnt(0)', 's_barrier', *stamp(14))
    if ONEP: a.e('s_barrier')
    a.e(f's_mov_b32 s{S_VAR}, 1', 's_mov_b32 s51, 9', f's_add_u32 s{P_WL}, s{P_WS}, {0 if REUSE else LSTR}', f's_addc_u32 s{P_WL+1}, s{P_WS+1}, 0', 's_branch C_top')
    a.e('C_end:'); dump(a)
    a.e('s_endpgm')

    gx = dict(sg=S_G0, dmas=[(8 + i, 1024 * i, 'A', None) for i in range(4)])
    gw = [dict(sg=S_G0 + 2 + m, dmas=[(13 + 2 * m, 0, 'B', None), (14 + 2 * m, 1024, 'B', None)]) for m in range(3)]
    gh = dict(sg=S_G0 + 1, dmas=[(12, 0, 'A', 's[52:53]')])
    def k1_setup_l(layer):
        tiles(a, 8, 1)
        a.e(f's_mov_b32 s{S_T2}, s{S_LWV}')
        dma_w128(a, [13, 14], 6144, swz128(a), 16, 2, 3, 4)
        a.e('v_add_u32 v15, 2048, v13', 'v_add_u32 v16, 2048, v14', 'v_add_u32 v17, 4096, v13', 'v_add_u32 v18, 4096, v14',
            f's_lshl_b32 s{S_G0+2}, s{S_T2}, 11', f's_add_u32 s{S_G0+2}, s{S_G0+2}, {XT}', f's_add_u32 s{S_G0+3}, s{S_G0+2}, 8192', f's_add_u32 s{S_G0+4}, s{S_G0+2}, 16384',
            f's_lshl_b32 s{S_BB}, s{S_TJ}, 7')
        if layer == 1:
            srd(a, SRD_B, P_WQKV, 0, 1024 * 3072 * 2)
            pre_w(a, 16, 3, 2, ST1, 0, 64 * 6144, gw)
        def xaddr(v, comp):
            a.e('v_lshrrev_b32 v2, 3, v0', f'v_add_u32 v2, s{S_T0}, v2', 'v_bfe_u32 v3, v2, 1, 3', 'v_and_b32 v4, 7, v0', 'v_xor_b32 v3, v3, v4', 'v_lshlrev_b32 v3, 4, v3',
                f'v_add_u32 v2, s{S_T1}, v2', 'v_max_i32 v2, 0, v2', 'v_lshlrev_b32 v2, 11, v2', f'v_add_u32 v{v}, v2, v3')
            if comp: a.e(f'v_subrev_u32 v{v}, {comp}, v{v}')
        a.e(f's_lshl_b32 s{S_T1}, s{S_TI}, 7', f's_sub_u32 s{S_T1}, s{S_T1}, 16')
        for i in range(2):
            a.e(f's_lshl_b32 s{S_T0}, s{S_T2}, 5', f's_add_u32 s{S_T0}, s{S_T0}, {16+8*i}')
            xaddr(8 + i, 1024 * i)
            a.e(f'v_add_u32 v{10+i}, {16*2048-2048}, v{8+i}')
        a.e(f's_lshl_b32 s{S_T0}, s{S_T2}, 3'); xaddr(12, 0)
        a.e(f's_lshl_b32 s{S_G0}, s{S_T2}, 12', f's_add_u32 s{S_G0}, s{S_G0}, 2048', f's_lshl_b32 s{S_G0+1}, s{S_T2}, 10', f's_mov_b32 s{S_BA}, 0',
            f's_cmp_eq_u32 s{S_T2}, 0', 's_cselect_b32 s52, 0xffffff00, -1', 's_mov_b32 s53, -1')
        a.e('v_mov_b32 v20, 0x3f803f80', 'v_mov_b32 v21, v20', 'v_mov_b32 v22, v20', 'v_mov_b32 v23, v20', 'v_lshlrev_b32 v24, 4, v0', f'v_add_u32 v25, {2*ST1}, v24',
            's_mov_b64 exec, 0xff', 'ds_write_b128 v24, v[20:23]', f'ds_write_b128 v24, v[20:23] offset:{ST1}', 'ds_write_b128 v25, v[20:23]', 's_mov_b64 exec, -1')
        a.e(f's_lshl_b32 s{S_T0}, s{S_T2}, 6', f'v_add_u32 v26, s{S_T0}, v0', 'v_min_u32 v26, 143, v26', f'v_add_u32 v27, s{S_T1}, v26', 'v_max_i32 v27, 0, v27',
            'v_lshlrev_b32 v27, 3, v27', 'v_lshlrev_b32 v26, 3, v26', f'v_add_u32 v26, {SL}, v26')
        if layer == 1:
            srd(a, SRD_A, P_WS, X2_OFF, XB)
            srd(a, SRD_D, P_WS, LSTR + RS_OFF, 8 * 2048 * 8)
            a.e('s_waitcnt lgkmcnt(0)')
    a.e('L_start:'); a.flush_hist()
    a.e(f's_sub_u32 s{S_LWV}, s{S_WAVE}, 4', 'v_and_b32 v134, 3, v0', 'v_lshlrev_b32 v134, 6, v134')
    k1_setup_l(0)
    a.e(f's_lshl_b32 s{S_T0}, s2, 3', f's_lshl_b32 s{S_T1}, s{S_LWV}, 1', f's_add_u32 s{S_T0}, s{S_T0}, s{S_T1}',
        'v_lshrrev_b32 v72, 5, v0', f'v_add_u32 v72, s{S_T0}, v72', 'v_lshlrev_b32 v46, 11, v72', 'v_and_b32 v2, 31, v0', 'v_lshl_add_u32 v46, v2, 4, v46',
        'v_lshlrev_b32 v72, 3, v72', f'v_add_u32 v72, {RS_OFF}, v72',
        f's_cmp_eq_u32 s{S_LWV}, 0', 's_cselect_b32 s58, 0, -1', 'v_mov_b32 v64, s58', 'v_mov_b32 v65, s58', 'v_mov_b32 v66, s58', 'v_mov_b32 v67, s58',
        'v_lshrrev_b32 v2, 3, v0', 'v_lshlrev_b32 v2, 15, v2', 'v_and_b32 v3, 7, v0', 'v_lshl_add_u32 v2, v3, 4, v2', 'v_lshlrev_b32 v3, 4, v0',
        's_cselect_b64 vcc, -1, 0', 's_lshl_b32 s58, s2, 7', f's_add_u32 s58, s58, {FL_OFF}', 's_lshl_b32 s59, s2, 10', f's_add_u32 s59, s59, {ST_OFF}',
        f's_cmp_eq_u32 s{S_LWV}, 0', 's_cselect_b32 s58, s58, s59', f's_add_u32 s59, s59, {LSTR}', f's_cmp_eq_u32 s{S_LWV}, 2', 's_cselect_b32 s58, s59, s58',
        f's_cmp_eq_u32 s{S_LWV}, 3', f's_cselect_b32 s58, {128*MB}, s58',
        'v_cndmask_b32 v47, v3, v2, vcc', 's_and_b32 s59, s2, 3', 's_lshl_b32 s59, s59, 6', 'v_mov_b32 v73, s59', 'v_mov_b32 v74, 1')
    flag_idx(a, 0, S_TI, 16, S_TJ)
    a.e(f's_mov_b32 s{S_LW}, 0', *lstamp(29), 's_waitcnt lgkmcnt(0)', *lstamp(61))
    srd(a, SRD_A, P_X, 0, XB)
    srd(a, SRD_B, P_WQKV, 0, 1024 * 3072 * 2)
    a.e('s_branch L_first')
    a.e('L_top:'); a.flush_hist()
    flag_idx(a, 0, S_TI, 16, S_TJ)
    srd(a, SRD_E, P_W1, 0, 2048 * 3584 * 2)
    a.e(f's_lshl_b32 s54, s2, 2', f's_add_u32 s54, s54, s{S_LWV}', f's_mul_i32 s54, s54, {NPF*128}', f's_add_u32 s54, s54, {W1_K0}')
    gl = f'global_load_dword v29, v134, s[{P_DB}:{P_DB+1}] {SC}'
    def h_gate(n):
        if SINGLE: a.e(gl)
    def h_fetch(n):
        l = lab('st')
        if SINGLE:
            a.e(f's_cmp_lg_u32 s{S_VAR}, 0', f's_cbranch_scc1 {l}g', f's_waitcnt vmcnt({n})', 's_mov_b32 s61, 0')
            a.loop([f'{l}p:', 'v_cmp_gt_u32 vcc, 64, v29', 's_add_u32 s61, s61, 1', f's_cmp_gt_u32 s61, {SPIN}', f's_cbranch_scc1 {l}g', f's_cbranch_vccz {l}g', gl, 's_waitcnt vmcnt(0)', f's_branch {l}p'])
            a.e(f'{l}g:')
        for p in range(8):
            if p: a.e(f's_mov_b32 s{S_T0}, {p*16384}')
            a.e(f'buffer_load_dwordx2 {vr(30+2*p,2)}, v27, {S4(SRD_D)}, {"0" if p == 0 else f"s{S_T0}"} offen {LDF}')
    def h_fin(n):
        a.e(f's_waitcnt vmcnt({n})', 'v_pk_add_f32 v[30:31], v[30:31], v[32:33]', 'v_pk_add_f32 v[34:35], v[34:35], v[36:37]', 'v_pk_add_f32 v[38:39], v[38:39], v[40:41]',
            'v_pk_add_f32 v[42:43], v[42:43], v[44:45]', 'v_pk_add_f32 v[30:31], v[30:31], v[34:35]', 'v_pk_add_f32 v[38:39], v[38:39], v[42:43]',
            'v_pk_add_f32 v[30:31], v[30:31], v[38:39]')
        stats_finish(a, 30, 31, 32, False)
        a.e('ds_write_b64 v26, v[30:31]', 's_waitcnt lgkmcnt(0)')
    HK = (h_gate, h_fetch)
    def only0(f):
        def g(n):
            l = lab('e'); a.e(f's_cmp_lg_u32 s{S_VAR}, 0', f's_cbranch_scc1 {l}'); f(n); a.e(f'{l}:', 's_nop 1')
        return g
    def e_load(n):
        a.e(*lstamp(63))
        for c in range(4): a.e(f'buffer_load_dwordx4 {vr(48+4*c,4)}, v46, {S4(SRD_A)}, 0 offen offset:{512*c}')
        a.e(f'buffer_store_dwordx4 v[64:67], v47, {S4(SRD_C)}, s58 offen {SC}', 's_barrier')
    def e_stat(n):
        a.e('v_mov_b32 v68, 0', 'v_mov_b32 v69, 0', 'v_mov_b32 v70, 0x3f803f80', f's_waitcnt vmcnt({n+1})')
        for e in range(16): a.e(f'v_dot2c_f32_bf16 v68, v70, v{48+e}', f'v_dot2c_f32_bf16 v69, v{48+e}, v{48+e}')
        for ctl in ('quad_perm:[1,0,3,2]', 'quad_perm:[2,3,0,1]', 'row_half_mirror', 'row_mirror'):
            a.e(f'v_add_f32_dpp v68, v68, v68 {ctl} row_mask:0xf bank_mask:0xf', f'v_add_f32_dpp v69, v69, v69 {ctl} row_mask:0xf bank_mask:0xf')
        a.e('v_mov_b32 v70, v68', 'v_mov_b32 v71, v69', 'v_permlane16_swap_b32 v68, v70', 'v_permlane16_swap_b32 v69, v71', 'v_add_f32 v68, v68, v70', 'v_add_f32 v69, v69, v71',
            's_mov_b32 exec_lo, 1', 's_mov_b32 exec_hi, 1', f'buffer_store_dwordx2 v[68:69], v72, {S4(SRD_C)}, 0 offen {SC}', 's_mov_b64 exec, -1')
    def e_gate(n):
        l = lab('g'); a.e(f's_cmp_lg_u32 s{S_LWV}, 0', f's_cbranch_scc1 {l}', 's_mov_b64 exec, 1', f'global_atomic_add v73, v74, s[{P_DB}:{P_DB+1}] sc1', 's_mov_b64 exec, -1', f'{l}:')
    a.e(f's_cmp_ge_u32 s{S_LWV}, 2', 's_cbranch_scc1 L_k1B')
    l_loop(a, 16, 3, 2, ST1, 0, 128, 64 * 6144, [gh, gx], gw, tail=1, hooks=HK, early=('L_jA', lambda n: None, only0(e_gate)))
    a.e('s_branch L_k1t', 'L_k1B:'); a.flush_hist()
    l_loop(a, 16, 3, 2, ST1, 0, 128, 64 * 6144, [gx], gw, tail=1, hooks=HK, early=('L_jB', lambda n: None, only0(e_gate)))
    a.e('s_branch L_k1t')
    a.e('L_first:'); a.flush_hist()
    a.e(f's_cmp_ge_u32 s{S_LWV}, 2', 's_cbranch_scc1 L_firstB')
    for gA, n, tag in (([gh, gx], 11, 'A'), ([gx], 10, 'B')):
        if tag == 'B': a.e('L_firstB:'); a.flush_hist()
        iss = lambda: issue(16, 3, ST1, 0, 128, 64 * 6144, gA, gw)
        a.e(*iss(), *lstamp(62))
        srd(a, SRD_C, P_WS, 0, 64 * MB)
        srd(a, SRD_D, P_WS, RS_OFF, 2048 * 8)
        a.e(f's_mov_b32 s{P_WL}, s{P_WS}', f's_mov_b32 s{P_WL+1}, s{P_WS+1}', *iss())
        e_load(n)
        a.e(f's_waitcnt vmcnt({n+5})', 's_barrier', *iss())
        e_stat(n)
        a.e(f's_branch L_j{tag}')
    a.e('L_k1t:'); a.flush_hist()
    h_fin(0)
    a.e(f's_mov_b32 s{S_T2}, s{S_LWV}')
    dma_w128(a, [130, 131], 2048, swz128(a), 16, 2, 3, 4)
    srd(a, SRD_B, P_WO, 0, 1024 * 1024 * 2)
    a.e(*INITK, f's_lshl_b32 s{S_G0+8}, s{S_LWV}, 11')
    def wo(t0, t1):
        for t in range(t0, t1):
            a.e(*next_k(16), f's_lshl_b32 s{S_OB}, s{S_K}, 17', f's_add_u32 s{S_OB}, s{S_OB}, s{S_BB}', f's_add_u32 m0, s{S_G0+8}, {WO_SLOTS[t]}',
                f'buffer_load_dwordx4 v130, {S4(SRD_B)}, s{S_OB} offen lds', f'buffer_load_dwordx4 v131, {S4(SRD_B)}, s{S_OB} offen offset:1024 lds')
    wo(0, 4)
    def pf3(j):
        if PF3 > j: a.e(f's_add_u32 s{S_T0}, s54, {j*8*MB}', f'buffer_load_dword v135, v132, {S4(SRD_E)}, s{S_T0} offen')
    if PF3:
        a.e(f's_cmp_eq_u32 s{S_VAR}, 0', f's_cselect_b32 s{SRD_E+2}, s{SRD_E+2}, 0', 's_lshl_b32 s54, s2, 2', f's_add_u32 s54, s54, s{S_LWV}', 's_lshl_b32 s54, s54, 13',
            f's_add_u32 s54, s54, {W1_K0}', 'v_lshlrev_b32 v132, 7, v0')
    pf3(0)
    x = 1 if PF3 else 0
    if PFT:
        srd(a, SRD_C, P_W2, 0, 3584 * 2048 * 2)
        a.e(f's_cmp_eq_u32 s{S_VAR}, 0', f's_cselect_b32 s{SRD_E+2}, s{SRD_E+2}, 0', f's_cselect_b32 s{SRD_C+2}, s{SRD_C+2}, 0',
            's_lshr_b32 s54, s2, 3', 's_lshl_b32 s54, s54, 2', f's_add_u32 s54, s54, s{S_LWV}', 's_lshl_b32 s54, s54, 18', 'v_lshlrev_b32 v132, 12, v0', 'v_add_u32 v132, s54, v132',
            f'v_subrev_u32 v133, {16*MB}, v132', f'buffer_load_dword v135, v132, {S4(SRD_E)}, 0 offen', f'buffer_load_dword v135, v133, {S4(SRD_C)}, 0 offen')
        x += 2
    a.e(f's_waitcnt vmcnt({8+x})', 's_barrier')
    wo(4, 7)
    only0(lambda n: (lane_fields(a), attn_static()))(0)
    a.e('s_waitcnt lgkmcnt(0)', 's_barrier')
    pf3(1)
    wo(7, 12)
    a.e('s_branch attn')
    a.e('L_k1done:'); a.flush_hist()
    publish_pre(a)
    a.e('s_waitcnt vmcnt(0)', 's_barrier')
    publish(a, 2)
    wo(12, 16)
    flag_idx(a, 1, S_TJ, 16, S_TI)
    if ONEP: a.e('s_barrier')
    a.e('s_waitcnt vmcnt(0)', 's_barrier')
    g4 = [dict(sg=S_G0 + 1, dmas=[(9, 0, 'B', None), (10, 1024, 'B', None)])]
    def k4_setup_l():
        tiles(a, 8, 2)
        a.e(f's_mov_b32 s{S_T2}, s{S_LWV}', f's_lshl_b32 s{S_G0+1}, s{S_T2}, 11')
        dma_w128(a, [9, 10], 4096, swz128(a), 16, 2, 3, 4)
        a.e(f's_lshl_b32 s{S_BB}, s{S_TJ}, 7')
        srd(a, SRD_B, P_W2, 0, 3584 * 2048 * 2)
    a.e('s_cmp_ge_u32 s2, 224', 's_cbranch_scc1 L_k3skip')
    tiles(a, 7, 2)
    a.e(f's_lshl_b32 s{S_G0}, s{S_LWV}, 12', f's_add_u32 s{S_G0+1}, s{S_G0}, 16384', 'v_lshlrev_b32 v8, 4, v0', f'v_add_u32 v13, {65536-2048}, v8',
        'v_lshrrev_b32 v2, 4, v0', 'v_lshlrev_b32 v3, 1, v2', 'v_and_b32 v4, 15, v0', 'v_xor_b32 v3, v3, v4', 'v_lshlrev_b32 v3, 4, v3',
        f's_lshl_b32 s{S_T0}, s{S_LWV}, 4', f'v_add_u32 v2, s{S_T0}, v2', f's_mov_b32 s{S_T0}, 7168', f'v_mul_lo_u32 v2, v2, s{S_T0}',
        'v_add_u32 v9, v2, v3', 'v_xor_b32 v3, 128, v3', 'v_add_u32 v11, v2, v3',
        f'v_add_u32 v10, {4*7168-1024}, v9', f'v_add_u32 v12, {3*(4*7168-1024)}, v11', f'v_add_u32 v11, {2*(4*7168-1024)}, v11',
        f's_lshl_b32 s{S_BA}, s{S_TI}, 2', f's_add_u32 s{S_BA}, s{S_BA}, s{S_LWV}', f's_lshl_b32 s{S_BA}, s{S_BA}, 17', f's_lshl_b32 s{S_BB}, s{S_TJ}, 8')
    srd(a, SRD_A, P_WL, H_OFF, XB)
    srd(a, SRD_B, P_W1, 0, 2048 * 3584 * 2)
    g3a = [dict(sg=S_G0, dmas=[(8 if i < 2 else 13, 1024 * i, 'A', None) for i in range(4)])]
    g3w = [dict(sg=S_G0 + 1, dmas=[(9 + i, 1024 * i, 'B', None) for i in range(4)])]
    poll_setup(a, SRD_C, 14, 1, 0, [f's_lshl_b32 s{S_T0}, s{S_TI}, 5'], 32)
    for j in range(PF4):
        a.e(f's_lshr_b32 s{S_T0}, s2, 3', f's_add_u32 s{S_T0}, s{S_T0}, {28*j}', f's_lshl_b32 s{S_T0}, s{S_T0}, 2', f's_add_u32 s{S_T0}, s{S_T0}, s{S_LWV}', f's_lshl_b32 s{S_T0}, s{S_T0}, 6',
            f'v_add_u32 v2, s{S_T0}, v0', 'v_mul_u32_u24 v3, 74899, v2', 'v_lshrrev_b32 v3, 20, v3', 'v_mul_u32_u24 v4, 14, v3', 'v_sub_u32 v4, v2, v4',
            'v_add_u32 v3, 192, v3', 'v_mul_u32_u24 v3, 7168, v3', 'v_lshl_add_u32 v3, v4, 7, v3', f's_and_b32 s{S_T0}, s2, 3', f's_mul_i32 s{S_T0}, s{S_T0}, 1792', f's_lshl_b32 s{S_T1}, s{S_VAR}, 30', f's_add_u32 s{S_T0}, s{S_T0}, s{S_T1}', f'v_add_u32 v{16+j}, s{S_T0}, v3')
    a.e('s_barrier')
    if not LATEW: pre_w(a, 32, 5, 3, 32768, 0, 64 * 7168, g3w)
    a.e('s_barrier')
    publish(a, 2)
    if LATEW: pre_w(a, 32, 5, 3, 32768, 0, 64 * 7168, g3w)
    for j in range(PF4): a.e(f'buffer_load_dword v135, v{16+j}, {S4(SRD_B)}, 0 offen')
    flag_idx(a, 2, S_TI, 32, S_TJ)
    poll(a, SRD_C, 14, 15)
    l_loop(a, 32, 5, 3, 32768, 0, 2048, 64 * 7168, g3a, g3w, st=True)
    k4_setup_l()
    a.e('s_branch L_k4', 'L_k3skip:'); a.flush_hist()
    k4_setup_l()
    a.e('s_barrier')
    a.e('L_k4:'); a.flush_hist()
    pre_w(a, 56, K4_NS, K4_AH, 8192, K4_BASE, 64 * 4096, g4)
    a.e('s_barrier')
    publish(a, 2)
    flag_idx(a, 3, S_TJ, 8, S_TI)
    if ONEP: a.e('s_barrier')
    l_loop(a, 56, K4_NS, K4_AH, 8192, K4_BASE, 0, 64 * 4096, [], g4)
    a.e(f's_cmp_lg_u32 s{S_VAR}, 0', 's_cbranch_scc1 L_end')
    k1_setup_l(1)
    poll_setup(a, SRD_C, 28, 3, 0, [f's_lshl_b32 s{S_T0}, s{S_TI}, 4', f's_sub_u32 s{S_T0}, s{S_T0}, 8'], 24)
    a.e('s_barrier', 's_barrier')
    publish(a, 2)
    poll(a, SRD_C, 28, 29)
    a.e(f's_mov_b32 s{S_VAR}, 1', f's_add_u32 s{P_WL}, s{P_WS}, {0 if REUSE else LSTR}', f's_addc_u32 s{P_WL+1}, s{P_WS+1}, 0', 's_branch L_top')
    a.e('L_end:')
    if PROF: a.e(f's_cmp_lg_u32 s{S_LWV}, 0', f's_cbranch_scc1 {kn}_end', 's_lshl_b32 s58, s2, 8', f's_add_u32 s58, s58, {PR_OFF + MB}', 'v_lshlrev_b32 v254, 2, v0', 'v_add_u32 v254, s58, v254', f'global_store_dword v254, v255, s[{P_WS}:{P_WS+1}]')
    a.e(f'{kn}_end:', 's_endpgm')

def dump(a):
    if not PROF: return
    a.e('s_waitcnt vmcnt(0)', *stamp(14), f's_cmp_lg_u32 s{S_WAVE}, 0', 's_cbranch_scc1 nodump', 's_lshl_b32 s58, s2, 8', f's_add_u32 s58, s58, {PR_OFF}',
        'v_lshlrev_b32 v254, 2, v0', 'v_add_u32 v254, s58, v254', f'global_store_dword v254, v{PV}, s[{P_WS}:{P_WS+1}]', 'nodump:')

def gen_k0(a):
    a.e('.p2align 8', 'k0_kernel:', 's_cmp_ge_u32 s2, 256', 's_cbranch_scc1 k0_end',
        's_load_dwordx16 s[64:79], s[0:1], 0', 's_load_dwordx2 s[84:85], s[0:1], 80',
        'v_lshrrev_b32 v1, 6, v0', 'v_lshlrev_b32 v20, 4, v0', 'v_and_b32 v0, 63, v0', f'v_readfirstlane_b32 s{S_WAVE}, v1',
        's_lshl_b32 s30, s2, 3', f's_add_u32 s30, s30, s{S_WAVE}',
        's_lshl_b32 s31, s30, 11', 'v_lshlrev_b32 v2, 5, v0',
        's_lshl_b32 s32, s2, 2', f's_and_b32 s33, s{S_WAVE}, 3', 's_add_u32 s32, s32, s33', 's_lshl_b32 s32, s32, 13', 'v_lshlrev_b32 v3, 7, v0', 'v_add_u32 v3, s32, v3',
        f'v_subrev_u32 v4, {1024*3072*2}, v3', 's_waitcnt lgkmcnt(0)')
    srd(a, SRD_A, P_X, 0, XB)
    a.e(f'buffer_load_dwordx4 v[8:11], v2, {S4(SRD_A)}, s31 offen', f'buffer_load_dwordx4 v[12:15], v2, {S4(SRD_A)}, s31 offen offset:16')
    KW = int(env('K0WARM', '1'))
    srd(a, SRD_B, P_WQKV, 0, 1024 * 3072 * 2 * KW)
    srd(a, SRD_C, P_WO, 0, 1024 * 1024 * 2 * KW)
    srd(a, SRD_E, P_W1, 0, W1_K0)
    a.e(f's_sub_u32 s33, s{S_WAVE}, 4', 's_lshl_b32 s33, s33, 8', 's_add_u32 s33, s33, s2', 's_lshl_b32 s33, s33, 13', 'v_lshlrev_b32 v7, 7, v0',
        f's_cmp_ge_u32 s{S_WAVE}, 4', 's_cbranch_scc1 k0_nw', f'buffer_load_dword v5, v3, {S4(SRD_B)}, 0 offen', f'buffer_load_dword v6, v4, {S4(SRD_C)}, 0 offen', 's_branch k0_nx',
        'k0_nw:', f'buffer_load_dword v5, v7, {S4(SRD_E)}, s33 offen', 'k0_nx:')
    if CODEPF:
        a.e(f's_cmp_lg_u32 s{S_WAVE}, 7', 's_cbranch_scc1 k0_nc', 's_getpc_b64 s[40:41]', 'k0_pc:', 's_add_u32 s40, s40, mega_kernel-k0_pc', 's_addc_u32 s41, s41, 0',
            's_lshr_b32 s42, s2, 3', 's_lshl_b32 s42, s42, 11', 'v_and_b32 v25, 15, v0', 'v_lshlrev_b32 v25, 7, v25', 'v_add_u32 v25, s42, v25',
            'v_min_u32 v25, mega_end-mega_kernel, v25', 'global_load_dword v26, v25, s[40:41]', 'k0_nc:')
    srd(a, SRD_D, P_WS, 0, 64 * MB)
    a.e(f's_cmp_eq_u32 s{S_WAVE}, 0', 's_cselect_b32 s33, 0, -1', 'v_mov_b32 v16, s33', 'v_mov_b32 v17, s33', 'v_mov_b32 v18, s33', 'v_mov_b32 v19, s33',
        f's_mov_b32 s34, {ST_OFF}', f's_cselect_b32 s34, {FL_OFF}, s34', f's_cmp_eq_u32 s{S_WAVE}, 2', f's_cselect_b32 s34, {LSTR + ST_OFF}, s34', 's_lshl_b32 s35, s2, 10', 's_add_u32 s34, s34, s35',
        'v_lshlrev_b32 v20, 4, v0', f's_cmp_ge_u32 s{S_WAVE}, 3', 's_cbranch_scc1 k0_nr', f'buffer_store_dwordx4 v[16:19], v20, {S4(SRD_D)}, s34 offen', 'k0_nr:')
    a.e('v_mov_b32 v22, 0', 'v_mov_b32 v23, 0', 'v_mov_b32 v21, 0x3f803f80', 'v_lshrrev_b32 v24, 3, v0', 'v_lshlrev_b32 v24, 14, v24', 's_lshl_b32 s36, s30, 3', f's_add_u32 s36, s36, {RS_OFF}',
        's_waitcnt vmcnt(0)')
    for e in range(8): a.e(f'v_dot2c_f32_bf16 v22, v21, v{8+e}', f'v_dot2c_f32_bf16 v23, v{8+e}, v{8+e}')
    for ctl in ('quad_perm:[1,0,3,2]', 'quad_perm:[2,3,0,1]', 'row_half_mirror'):
        a.e(f'v_add_f32_dpp v22, v22, v22 {ctl} row_mask:0xf bank_mask:0xf', f'v_add_f32_dpp v23, v23, v23 {ctl} row_mask:0xf bank_mask:0xf')
    a.e('s_mov_b32 exec_lo, 0x01010101', 's_mov_b32 exec_hi, 0x01010101', f'buffer_store_dwordx2 v[22:23], v24, {S4(SRD_D)}, s36 offen', 'k0_end:', 's_endpgm')

def main(out):
    a = Asm()
    if not SINGLE: gen_k0(a); a.flush_hist()
    gen_mega(a)
    info = {} if SINGLE else {'k0_kernel': (32, 0)}
    info[MEGA] = (256, 163840)
    ref = open(os.path.join(os.path.dirname(os.path.abspath(__file__)), '..', NAME + '.s.ref')).read().splitlines()
    hdr = [l for l in ref if l.startswith(';') and '@launch' not in l and 'Override launch' not in l and 'grid=ceil' not in l]
    if SINGLE: hdr += ['; @launch grid=(256,1,1) block=(512,1,1) lds=163840']
    else: hdr += [f'; @launch kernel={n} grid=(256,1,1) block=(512,1,1) lds={v[1]}' for n, v in info.items()]
    s = '\n'.join(hdr) + '\n; generated by gen/gen2.py\n.amdgcn_target "amdgcn-amd-amdhsa--gfx950"\n.text\n'
    if SINGLE: s += f'.globl {MEGA}\n.type {MEGA},@function\n'
    s += a.text() + '.section .rodata,"a"\n'
    for n, (vg, _) in info.items():
        s += f'''.p2align 6
.amdhsa_kernel {n}
  .amdhsa_next_free_vgpr {vg}
  .amdhsa_next_free_sgpr 102
  .amdhsa_accum_offset {vg}
  .amdhsa_group_segment_fixed_size 0
  .amdhsa_kernarg_size 88
  .amdhsa_user_sgpr_count 2
  .amdhsa_user_sgpr_kernarg_segment_ptr 1
  .amdhsa_system_sgpr_workgroup_id_x 1
.end_amdhsa_kernel
'''
    open(out, 'w').write(s)

if __name__ == '__main__':
    main(sys.argv[1])
```

```python
import sys, os, struct
sys.path.insert(0, os.path.dirname(os.path.abspath(__file__)))
from asmlib import *

NAME = 'interleave_layers__sliding_local_dilated__mixer_token_mlp__prompt'
MB = 1 << 20
O_OFF, X1_OFF, H_OFF, U_OFF, X2_OFF, ST_OFF, RS_OFF = 0, 4 * MB, 8 * MB, 12 * MB, 20 * MB, 24 * MB, 25 * MB
XB = 2048 * 1024 * 2
UB = 1024 * 3584 * 2
EPS = 1e-5
def f32(x): return '0x%08x' % struct.unpack('<I', struct.pack('<f', x))[0]
def env(k, d='0'): return os.environ.get(k, d)

S_VAR, S_WAVE, S_LI, S_LJ, S_PHI = 3, 4, 5, 6, 7
SRD_A, SRD_B, SRD_C, SRD_D, SRD_E = 8, 12, 16, 20, 24
S_TI, S_TJ = 28, 29
S_P, S_W, S_T0, S_K, S_BA, S_BB, S_OA, S_OB, S_LW, S_CNT, S_T1, S_T2, S_DELTA, S_CUR = 30, 31, 32, 33, 34, 35, 36, 37, 38, 39, 40, 41, 42, 43
S_G0 = 44
P_X, P_WQKV, P_WO, P_BX, P_W1, P_B1, P_W2, P_B2 = 64, 66, 68, 70, 72, 74, 76, 78
P_OUT, P_DBG, P_WS = 80, 82, 84
MF16 = 'v_mfma_f32_16x16x32_bf16'

_lab = [0]
PROF = env('PROF') == '1'
NOREAD = env('NOREAD') == '1'; NODMA = env('NODMA') == '1'; NOMFMA = env('NOMFMA') == '1'
PV = 250
def stamp(idx=None):
    if not PROF: return []
    L = ['s_memrealtime s[88:89]', 's_waitcnt lgkmcnt(0)']
    if idx is None: L = ['s_memtime s[92:93]'] + L + ['s_mov_b32 m0, s90', 's_add_u32 s90, s90, 1', f'v_writelane_b32 v{PV}, s88, m0', f'v_writelane_b32 v{PV-1}, s92, m0']
    else: L += [f'v_writelane_b32 v{PV}, s88, {idx}']
    return L
def cstamp(idx):
    return ['s_memtime s[88:89]', 's_waitcnt lgkmcnt(0)', f'v_writelane_b32 v{PV}, s88, {idx}'] if PROF else []
def stamp_init(): return ['s_mov_b32 s90, 1', f'v_mov_b32 v{PV}, 0'] + stamp(0) if PROF else []
def stamp_dump(a, kid):
    if not PROF: return
    a.e('s_waitcnt vmcnt(0)'); a.e(*stamp(63))
    _lab[0] += 1
    a.e(f's_and_b32 s88, s{S_WAVE}, 3', 's_cmp_lg_u32 s88, 0', f's_cbranch_scc1 pd{_lab[0]}')
    a.e(f's_add_u32 s88, s{S_VAR}, {kid*2}', 's_lshl_b32 s88, s88, 8', 's_add_u32 s88, s88, s2', 's_lshl_b32 s88, s88, 9',
        f's_lshl_b32 s89, s{S_WAVE}, 6', 's_add_u32 s88, s88, s89', f's_add_u32 s88, s88, {32*MB}',
        'v_mbcnt_lo_u32_b32 v251, -1, 0', 'v_mbcnt_hi_u32_b32 v251, -1, v251', 'v_lshlrev_b32 v251, 2, v251', 'v_add_u32 v251, s88, v251',
        f'global_store_dword v251, v{PV}, s[{P_WS}:{P_WS+1}]', f'v_add_u32 v251, {MB}, v251', f'global_store_dword v251, v{PV-1}, s[{P_WS}:{P_WS+1}]', f'pd{_lab[0]}:')

def S4(d): return f's[{d}:{d+3}]'

def srd(a, d, ptr, off, nbytes):
    if off: a.e(f's_add_u32 s{d}, s{ptr}, {off}', f's_addc_u32 s{d+1}, s{ptr+1}, 0')
    else: a.e(f's_mov_b32 s{d}, s{ptr}', f's_mov_b32 s{d+1}, s{ptr+1}')
    a.e(f's_mov_b32 s{d+2}, {nbytes}', f's_mov_b32 s{d+3}, 0x20000')

def srd_sel(a, d, ptr0, off0, ptr1, off1, nbytes):
    assert not (off0 and off1)
    a.e(f's_cmp_eq_u32 s{S_VAR}, 0',
        f's_cselect_b32 s{d}, s{ptr0}, s{ptr1}', f's_cselect_b32 s{d+1}, s{ptr0+1}, s{ptr1+1}',
        f's_cselect_b32 s{d+2}, {off0}, {off1}',
        f's_add_u32 s{d}, s{d}, s{d+2}', f's_addc_u32 s{d+1}, s{d+1}, 0',
        f's_mov_b32 s{d+2}, {nbytes}', f's_mov_b32 s{d+3}, 0x20000')

def entry(a, kn, two):
    if two:
        a.e('.p2align 8', f'{kn}a_kernel:', f's_mov_b32 s{S_VAR}, 0', f's_branch {kn}_body', '.p2align 8', f'{kn}b_kernel:', f's_mov_b32 s{S_VAR}, 1', f'{kn}_body:')
    else:
        a.e('.p2align 8', f'{kn}_kernel:', f's_mov_b32 s{S_VAR}, 0')

def prologue(a, kn, nwg, LN, xshift):
    a.e(f's_cmp_ge_u32 s2, {nwg}', f's_cbranch_scc1 {kn}_end',
        's_load_dwordx16 s[64:79], s[0:1], 0', 's_load_dwordx4 s[80:83], s[0:1], 64', 's_load_dwordx2 s[84:85], s[0:1], 80',
        'v_lshrrev_b32 v1, 6, v0', 'v_and_b32 v0, 63, v0', f'v_readfirstlane_b32 s{S_WAVE}, v1',
        f's_lshr_b32 s{S_T0}, s2, 3')
    if LN == 8:
        a.e(f's_lshr_b32 s{S_LI}, s{S_T0}, 3', f's_and_b32 s{S_LJ}, s{S_T0}, 7')
    else:
        a.e(f's_mul_i32 s{S_LI}, s{S_T0}, {65536 // LN + 1}', f's_lshr_b32 s{S_LI}, s{S_LI}, 16',
            f's_mul_i32 s{S_LJ}, s{S_LI}, {LN}', f's_sub_u32 s{S_LJ}, s{S_T0}, s{S_LJ}')
    a.e(f's_lshl_b32 s{S_PHI}, s{S_LI}, 1', f's_add_u32 s{S_PHI}, s{S_PHI}, s{S_LJ}', f's_and_b32 s{S_PHI}, s{S_PHI}, 7',
        f's_and_b32 s{S_T0}, s2, 7', f's_lshr_b32 s{S_TI}, s{S_T0}, {xshift}', f's_lshl_b32 s{S_TI}, s{S_TI}, 2',
        f's_add_u32 s{S_TI}, s{S_TI}, s{S_LI}',
        f's_and_b32 s{S_TJ}, s{S_T0}, {(1 << xshift) - 1}', f's_mul_i32 s{S_TJ}, s{S_TJ}, {LN}', f's_add_u32 s{S_TJ}, s{S_TJ}, s{S_LJ}',
        f's_mov_b32 s{S_P}, 7', f's_mov_b32 s{S_W}, -1',
        *stamp_init(), f's_cmp_ge_u32 s{S_WAVE}, 4', f's_cbranch_scc1 {kn}_loader')

def next_k(NK):
    R = NK // 8
    return [f's_add_u32 s{S_P}, s{S_P}, 1', f's_and_b32 s{S_P}, s{S_P}, 7', f's_cselect_b32 s{S_T0}, 0, 1',
            f's_add_u32 s{S_W}, s{S_W}, s{S_T0}',
            f's_sub_u32 s{S_T0}, s{S_P}, s{S_PHI}', f's_and_b32 s{S_T0}, s{S_T0}, 7', f's_cmp_lt_u32 s{S_T0}, 2',
            f's_cselect_b32 s{S_T0}, 1, 0', f's_add_u32 s{S_T0}, s{S_T0}, s{S_W}', f's_cmp_ge_u32 s{S_T0}, {R}',
            f's_cselect_b32 s{S_T0}, 0, s{S_T0}',
            f's_lshl_b32 s{S_K}, s{S_T0}, 3', f's_add_u32 s{S_K}, s{S_K}, s{S_P}']

def loader_issue(NK, NS, stage, stepA, stepB, groups):
    L = next_k(NK)
    if stepA: L += [f's_mul_i32 s{S_OA}, s{S_K}, {stepA}', f's_add_u32 s{S_OA}, s{S_OA}, s{S_BA}']
    L += [f's_mul_i32 s{S_OB}, s{S_K}, {stepB}', f's_add_u32 s{S_OB}, s{S_OB}, s{S_BB}']
    for g in groups:
        L.append(f's_add_u32 m0, s{S_LW}, s{g["sg"]}')
        for (v, imm, st, ex) in g['dmas']:
            srdn, so = (SRD_A, S_OA) if st == 'A' else (SRD_B, S_OB)
            if ex: L.append(f's_mov_b64 exec, {ex}')
            if not NODMA: L.append(f'buffer_load_dwordx4 v{v}, {S4(srdn)}, s{so} offen offset:{imm} lds')
            if ex: L.append('s_mov_b64 exec, -1')
    L += [f's_add_u32 s{S_LW}, s{S_LW}, {stage}', f's_cmp_eq_u32 s{S_LW}, {NS*stage}', f's_cselect_b32 s{S_LW}, 0, s{S_LW}']
    return L

def loader_main(a, kn, NK, NS, stage, stepA, stepB, groups, tag='', first=2, per_step=None, late=False, tail=0):
    n = sum(len(g['dmas']) for g in groups)
    AH = NS - 2 if late else NS - 1
    iss = lambda: loader_issue(NK, NS, stage, stepA, stepB, groups)
    ps = per_step or (lambda: [])
    a.e(f's_mov_b32 s{S_LW}, 0')
    issued = min(first, AH)
    for s in range(issued): a.e(*iss())
    t = 0
    while issued < t + AH:
        a.e(f's_waitcnt vmcnt({(issued - t - 1) * n})', 's_barrier', *stamp())
        k = min(issued + 2, t + AH + 1) - issued
        for _ in range(k): a.e(*iss())
        a.e(*ps())
        issued += k; t += 1
    a.e(f's_mov_b32 s{S_CNT}, {NK - AH - t}')
    body = [f'{kn}{tag}_lloop:', f's_waitcnt vmcnt({(AH-1)*n})', 's_barrier'] + stamp() + iss() + ps()
    body += [f's_sub_u32 s{S_CNT}, s{S_CNT}, 1', f's_cmp_lg_u32 s{S_CNT}, 0', f's_cbranch_scc1 {kn}{tag}_lloop']
    a.loop(body)
    for j in range(AH - tail):
        a.e(f's_waitcnt vmcnt({(AH-1-j)*n})', 's_barrier', *stamp(), *ps())

def adv_s(NS, stage):
    return [f's_add_u32 s{S_T1}, s{S_CUR}, {stage}', f's_cmp_eq_u32 s{S_T1}, {NS*stage}', f's_cselect_b32 s{S_T1}, 0, s{S_T1}',
            f's_sub_u32 s{S_DELTA}, s{S_T1}, s{S_CUR}', f's_mov_b32 s{S_CUR}, s{S_T1}']

def bundle(reads, advv):
    out = [[r] for r in reads]
    for x in advv:
        reg = Ins(x).wr
        idx = [i for i, r in enumerate(reads) if Ins(r).rd & reg]
        out[idx[-1] if idx else -1].append(x)
    return out

def sched(mfmas, fill, queue, per=1, start=0, vq=None):
    out = []; f = list(fill)
    def put(x):
        for y in (x if isinstance(x, list) else [x]):
            out.append(y)
            if y.startswith('ds_read'): queue.append(Ins(y).wr)
            if y.startswith('buffer_load') and vq is not None: vq.append(Ins(y).wr)
    for i, m in enumerate(mfmas):
        rd = Ins(m).srcab
        w = []
        for q, nm, cap in ((vq or [], 'vmcnt', 62), (queue, 'lgkmcnt', 14)):
            last = max([k for k, x in enumerate(q) if x & rd], default=-1)
            if last >= 0:
                n = min(len(q) - 1 - last, cap)
                w.append(f'{nm}({n})')
                del q[:len(q) - n]
        if w: out.append('s_waitcnt ' + ' '.join(w))
        out.append(m)
        for _ in range(per if i >= start else 0):
            if f: put(f.pop(0))
    for x in f: put(x)
    return out

def consumer_direct(a, kn, NK, NS, stage, reads, mf, addr_regs, DR, D, vaddr, init):
    adv = adv_s(NS, stage)
    if NOREAD: reads = [['s_nop 0'], ['s_nop 0']]
    if NOMFMA: mf = lambda h, b: ['s_nop 0']
    advv = [f'v_add_u32 v{r}, s{S_DELTA}, v{r}' for r in addr_regs]
    nk = next_k(NK) + [f's_lshl_b32 s{S_OA}, s{S_K}, 12', f's_add_u32 s{S_OA}, s{S_OA}, s{S_BA}']
    ld = lambda slot, i: 's_nop 0' if NODMA else f'buffer_load_dwordx4 {vr(DR+16*slot+4*i,4)}, v{vaddr}, {S4(SRD_A)}, s{S_OA} offen offset:{1024*i}'
    vq = []
    for sl in range(D):
        a.e(*nk)
        for i in range(4 if sl < D - 1 else 2):
            a.e(ld(sl, i)); vq.append(Ins(ld(sl, i)).wr)
        if sl == 1: init(8)
    assert NK % D == 0
    a.e(f's_mov_b32 s{S_CUR}, 0', f's_mov_b32 s{S_CNT}, {NK // D - 1}', *stamp(1), 's_barrier', *stamp(2), *cstamp(58))
    a.e(*reads[0]); a.e(*adv)
    q0 = [Ins(x).wr for x in reads[0] if x.startswith('ds_read')]
    def mix(items, loads, pos):
        items = [list(x) for x in items]
        for l, p in zip(loads, pos):
            while len(items) <= p: items.append([])
            items[p] = items[p] + (l if isinstance(l, list) else [l])
        return items
    def step(slot, t, vq):
        q = list(q0)
        final = t == NK - 1
        prev = (slot - 1) % D
        l0 = [ld(prev, 2), ld(prev, 3)] if t is None or t - 1 + D < NK else []
        L = sched(mf(0, DR + 16 * slot), mix(bundle(reads[1], [] if final else advv), l0, (1, 5)), q, 1, vq=vq)
        if final: return L + sched(mf(1, DR + 16 * slot + 8), [], q, 1, vq=vq)
        more = t is None or t + D < NK
        sc = adv + (nk if more else [])
        it = [[r] for r in reads[0]]
        for i, x in enumerate(sc): it[min(i // 3, len(it) - 1)].append(x)
        l1 = [ld(slot, 0), ld(slot, 1)] if more else []
        return L + ['s_barrier'] + sched(mf(1, DR + 16 * slot + 8), mix(it, l1, (6, 7)), q, 1, vq=vq)
    v1 = list(vq)
    body = [f'{kn}_cloop:']
    for sl in range(D): body += step(sl, None, v1)
    assert NODMA or NOMFMA or v1 == vq
    body += [f's_sub_u32 s{S_CNT}, s{S_CNT}, 1', f's_cmp_lg_u32 s{S_CNT}, 0', f's_cbranch_scc1 {kn}_cloop']
    a.loop(body)
    for sl in range(D): a.e(*step(sl, NK - D + sl, vq))
    a.e('s_waitcnt lgkmcnt(0)', *stamp(60), *cstamp(59))

def spread(reads, extra):
    out = [[r] for r in reads]
    for i, x in enumerate(extra): out[min(i, len(out) - 1)].append(x)
    return out

def consumer_main(a, kn, NK, NS, stage, reads, mfmas, addr_regs, rper=1, late=False, peel=None):
    adv = adv_s(NS, stage)
    if NOREAD: reads = [['s_nop 0'], ['s_nop 0']]
    if NOMFMA: mfmas = [['s_nop 0'], ['s_nop 0']]
    advv = [f'v_add_u32 v{r}, s{S_DELTA}, v{r}' for r in addr_regs]
    a.e(f's_mov_b32 s{S_CUR}, 0', f's_mov_b32 s{S_CNT}, {NK - 1}', *stamp(1), 's_barrier', *stamp(2), *cstamp(58))
    a.e(*reads[0]); a.e(*adv)
    q0 = [Ins(x).wr for x in reads[0] if x.startswith('ds_read')]
    def iteration(pre=(), post=()):
        q = list(q0)
        L = sched(mfmas[0], bundle(reads[1], advv), q, rper)
        if not late: L.append('s_waitcnt lgkmcnt(0)'); q.clear()
        L += list(pre) + ['s_barrier'] + list(post) + sched(mfmas[1], spread(reads[0], adv), q, rper)
        assert NOREAD or NOMFMA or q == q0
        return L
    if peel:
        a.e(*iteration(*peel)); a.e(f's_sub_u32 s{S_CNT}, s{S_CNT}, 1')
    body = [f'{kn}_cloop:'] + iteration()
    body += [f's_sub_u32 s{S_CNT}, s{S_CNT}, 1', f's_cmp_lg_u32 s{S_CNT}, 0', f's_cbranch_scc1 {kn}_cloop']
    a.loop(body)
    q = list(q0)
    a.e(*sched(mfmas[0], reads[1], q, rper))
    a.e(*sched(mfmas[1], [], q)); a.e('s_waitcnt lgkmcnt(0)', *stamp(60), *cstamp(59))

def lane_fields(a):
    a.e('v_and_b32 v4, 15, v0', 'v_lshrrev_b32 v5, 4, v0', 'v_lshrrev_b32 v6, 2, v4', 'v_and_b32 v7, 3, v0',
        'v_lshrrev_b32 v3, 5, v0', 'v_and_b32 v2, 1, v5', 'v_lshl_or_b32 v3, v2, 1, v3')

def tr128_addr(a, regs, base, t0, t1):
    a.e(f'v_lshl_add_u32 v{t0}, v5, 3, v6', f'v_lshlrev_b32 v{t0}, 7, v{t0}', f'v_lshl_add_u32 v{t0}, v7, 3, v{t0}',
        f'v_lshrrev_b32 v{t1}, 1, v6', f'v_lshl_or_b32 v{t1}, v2, 1, v{t1}', f'v_lshl_add_u32 v{t0}, v{t1}, 5, v{t0}')
    if base: a.e(f'v_add_u32 v{t0}, {base}, v{t0}')
    for n, r in enumerate(regs): a.e(f'v_xor_b32 v{r}, {n << 5}, v{t0}')

def swz128(a):
    return lambda d, row, t: a.e(f'v_bfe_u32 v{d}, v{row}, 1, 1', f'v_bfe_u32 v{t}, v{row}, 3, 1', f'v_lshl_or_b32 v{d}, v{t}, 1, v{d}', f'v_lshlrev_b32 v{d}, 1, v{d}')

def unpack4(lo, hi, dst):
    return [f'v_lshlrev_b32 v{dst}, 16, v{lo}', f'v_and_b32 v{dst+1}, 0xffff0000, v{lo}', f'v_lshlrev_b32 v{dst+2}, 16, v{hi}', f'v_and_b32 v{dst+3}, 0xffff0000, v{hi}']

def bf16r(a, v):
    a.e(f'v_cvt_pk_bf16_f32 v{v}, v{v}, v{v}', f'v_lshlrev_b32 v{v}, 16, v{v}')

def dma_w128(a, vregs, pitch, swz_bits, rows_per_wave, t0, t1, t2):
    for i, v in enumerate(vregs):
        a.e(f's_mul_i32 s{S_T0}, s{S_T2}, {rows_per_wave}', f's_add_u32 s{S_T0}, s{S_T0}, {8*i}',
            f'v_lshrrev_b32 v{t0}, 3, v0', f'v_add_u32 v{t0}, s{S_T0}, v{t0}')
        swz_bits(t1, t0, t2)
        a.e(f'v_and_b32 v{t2}, 7, v0', f'v_xor_b32 v{t1}, v{t1}, v{t2}', f'v_lshlrev_b32 v{t1}, 4, v{t1}',
            f's_mov_b32 s{S_T0}, {pitch}', f'v_mul_lo_u32 v{t0}, v{t0}, s{S_T0}', f'v_add_u32 v{v}, v{t0}, v{t1}')
        if i: a.e(f'v_subrev_u32 v{v}, {1024*i}, v{v}')

def stats_finish(a, S, Q, T, double):
    a.e(f'v_mul_f32 v{S}, {f32(1/1024)}, v{S}', f'v_mul_f32 v{Q}, {f32(1/1024)}, v{Q}',
        f'v_fma_f32 v{Q}, -v{S}, v{S}, v{Q}', f'v_max_f32 v{Q}, 0, v{Q}', f'v_mov_b32 v{T}, v{Q}')
    bf16r(a, T)
    a.e(f'v_add_f32 v{T}, {f32(EPS)}, v{T}'); bf16r(a, T)
    a.e(f'v_sqrt_f32 v{T}, v{T}'); bf16r(a, T)
    a.e(f'v_rcp_f32 v{T}, v{T}')
    if not double:
        bf16r(a, S)
        a.e(f'v_mov_b32 v{Q}, v{T}')
    else:
        a.e(f'v_mul_f32 v{Q}, v{Q}, v{T}', f'v_mul_f32 v{Q}, v{Q}, v{T}')
        bf16r(a, Q)
        a.e(f'v_add_f32 v{Q}, {f32(EPS)}, v{Q}'); bf16r(a, Q)
        a.e(f'v_sqrt_f32 v{Q}, v{Q}'); bf16r(a, Q)
        a.e(f'v_rcp_f32 v{Q}, v{Q}', f'v_mul_f32 v{Q}, v{Q}, v{T}')

DIRECT = env('DIRECT', '1') == '1'
DD = int(env('DD', '4'))
def loader24(a, kn, NK, NS, aoff, abytes, ptr, pitch, wbytes):
    a.e(f'{kn}_loader:'); a.flush_hist()
    a.e(f's_sub_u32 s{S_T2}, s{S_WAVE}, 4', f's_lshl_b32 s{S_G0}, s{S_T2}, 12', f's_lshl_b32 s{S_G0+1}, s{S_T2}, 11', f's_add_u32 s{S_G0+1}, s{S_G0+1}, 16384',
        'v_lshlrev_b32 v8, 4, v0', f's_lshl_b32 s{S_BA}, s{S_TI}, 2', f's_add_u32 s{S_BA}, s{S_BA}, s{S_T2}', f's_mul_i32 s{S_BA}, s{S_BA}, {NK*4096}')
    dma_w128(a, [9, 10], pitch, swz128(a), 16, 2, 3, 4)
    a.e(f's_lshl_b32 s{S_BB}, s{S_TJ}, 7', 's_waitcnt lgkmcnt(0)')
    srd(a, SRD_A, P_WS, aoff, abytes)
    srd(a, SRD_B, ptr, 0, wbytes)
    groups = [dict(sg=S_G0, dmas=[(8, 1024 * i, 'A', None) for i in range(4)]),
              dict(sg=S_G0 + 1, dmas=[(9, 0, 'B', None), (10, 1024, 'B', None)])]
    if DIRECT:
        a.e(f's_sub_u32 s{S_G0+1}, s{S_G0+1}, 16384')
        loader_main(a, kn, NK, NS, 8192, 0, 64 * pitch, groups[1:], late=True)
    else:
        loader_main(a, kn, NK, NS, 24576, 4096, 64 * pitch, groups, late=True)

def reads24(regs, va):
    R = []
    for h in range(2):
        F = 16 + 24 * h
        w = [[f'ds_read_b64_tr_b16 {vr(F+4*n+2*q,2)}, v{regs[n]} offset:{h*4096+q*512}' for q in range(2)] for n in range(4)]
        d = [f'ds_read_b128 {vr(F+16+4*i,4)}, v{va} offset:{(2*h+i)*1024}' for i in range(2)]
        R.append(w[0] + w[1] + w[2] + w[3] if DIRECT else [d[0]] + w[0] + [d[1]] + w[1] + w[2] + w[3])
    return R

def gen_k4(a):
    kn = 'k4'; NK, NS, stage = 56, int(env('NS4', '6')), (8192 if DIRECT else 24576)
    entry(a, kn, True)
    prologue(a, kn, 256, 8, 2)
    lane_fields(a)
    ACC = 64; RES = 96
    def acc(aa, n): return ACC + 8 * n + 4 * aa
    a.e(f's_lshl_b32 s{S_T0}, s{S_TJ}, 6', f'v_add_u32 v13, s{S_T0}, v4', 'v_lshlrev_b32 v12, 11, v13', 'v_lshl_add_u32 v12, v5, 4, v12',
        f's_lshl_b32 s{S_T0}, s{S_TI}, 8', f's_lshl_b32 s{S_T1}, s{S_WAVE}, 6', f's_add_u32 s{S_T0}, s{S_T0}, s{S_T1}',
        f'v_add_u32 v12, s{S_T0}, v12', 'v_lshlrev_b32 v13, 1, v13', 'v_lshlrev_b32 v14, 4, v0',
        *([f's_lshl_b32 s{S_BA}, s{S_TI}, 2', f's_add_u32 s{S_BA}, s{S_BA}, s{S_WAVE}', f's_mul_i32 s{S_BA}, s{S_BA}, {NK*4096}'] if DIRECT else
          [f's_lshl_b32 s{S_T0}, s{S_WAVE}, 12', f'v_add_u32 v14, s{S_T0}, v14']),
        's_mov_b32 s45, 32768', 's_mov_b32 s46, 65536', 's_mov_b32 s47, 98304')
    so = ['0', 's45', 's46', 's47']
    a.e('s_waitcnt lgkmcnt(0)')
    srd(a, SRD_C, P_WS, X1_OFF, XB)
    srd(a, SRD_D, P_B2, 0, 4096)
    for n in range(4):
        a.e(f'buffer_load_dwordx4 {vr(RES+4*n,4)}, v12, {S4(SRD_C)}, {so[n]} offen')
        a.e(f'buffer_load_ushort v{RES+16+2*n}, v13, {S4(SRD_D)}, 0 offen offset:{32*n}')
    srd_sel(a, SRD_E, P_WS, X2_OFF, P_OUT, 0, XB)
    srd(a, SRD_B, P_WS, RS_OFF, 8 * 2048 * 8)
    tr128_addr(a, [8, 9, 10, 11], stage - 8192, 16, 17)
    def init(outstanding):
        a.e(f's_waitcnt vmcnt({outstanding})')
        for n in range(4):
            a.e(f'v_lshlrev_b32 v{RES+16+2*n}, 16, v{RES+16+2*n}')
            a.e(*unpack4(RES + 4 * n, RES + 4 * n + 1, acc(0, n)), *unpack4(RES + 4 * n + 2, RES + 4 * n + 3, acc(1, n)))
            for e in range(0, 8, 2):
                a.e(f'v_pk_add_f32 {vr(acc(0,n)+e,2)}, {vr(acc(0,n)+e,2)}, {vr(RES+16+2*n,2)} op_sel_hi:[1,0]')
    mf = lambda h, b: [f'{MF16} {vr(acc(aa,n),4)}, {vr(b+4*aa,4)}, {vr(16+24*h+4*n,4)}, {vr(acc(aa,n),4)}' for n in range(4) for aa in range(2)]
    if DIRECT:
        srd(a, SRD_A, P_WS, U_OFF, UB)
        consumer_direct(a, kn, NK, NS, stage, reads24([8, 9, 10, 11], 14), mf, [8, 9, 10, 11], 120, DD, 14, init)
    else:
        init(0)
        consumer_main(a, kn, NK, NS, stage, reads24([8, 9, 10, 11], 14), [mf(0, 32), mf(1, 56)], [8, 9, 10, 11, 14], rper=2, late=True)
    for n in range(4):
        for e in range(4):
            a.e(f'v_cvt_pk_bf16_f32 v{RES+4*n+e}, v{acc(0,n)+2*e}, v{acc(0,n)+2*e+1}')
        a.e(f'buffer_store_dwordx4 {vr(RES+4*n,4)}, v12, {S4(SRD_E)}, {so[n]} offen')
    PL = NS * stage
    a.e(f's_cmp_lg_u32 s{S_VAR}, 0', f's_cbranch_scc1 {kn}_nost')
    for n in range(4):
        a.e(*unpack4(RES + 4 * n, RES + 4 * n + 1, acc(0, n)), *unpack4(RES + 4 * n + 2, RES + 4 * n + 3, acc(1, n)))
    for n in range(4):
        d = acc(0, n); T = 16 + 4 * n
        a.e(f'v_pk_add_f32 {vr(T,2)}, {vr(d,2)}, {vr(d+2,2)}', f'v_pk_mul_f32 {vr(T+2,2)}, {vr(d,2)}, {vr(d,2)}',
            f'v_pk_fma_f32 {vr(T+2,2)}, {vr(d+2,2)}, {vr(d+2,2)}, {vr(T+2,2)}')
        for e in (4, 6):
            a.e(f'v_pk_add_f32 {vr(T,2)}, {vr(T,2)}, {vr(d+e,2)}', f'v_pk_fma_f32 {vr(T+2,2)}, {vr(d+e,2)}, {vr(d+e,2)}, {vr(T+2,2)}')
        a.e(f'v_add_f32 v{32+n}, v{T}, v{T+1}', f'v_add_f32 v{36+n}, v{T+2}, v{T+3}')
    for b in (32, 36):
        a.e(f'v_permlane16_swap_b32 v{b}, v{b+1}', f'v_permlane16_swap_b32 v{b+2}, v{b+3}')
    for b in (32, 36):
        a.e(f'v_add_f32 v{b}, v{b}, v{b+1}', f'v_add_f32 v{b+2}, v{b+2}, v{b+3}')
    a.e('v_permlane32_swap_b32 v32, v34', 'v_permlane32_swap_b32 v36, v38', 'v_add_f32 v40, v32, v34', 'v_add_f32 v41, v36, v38',
        'v_lshlrev_b32 v42, 3, v0', f's_lshl_b32 s{S_T0}, s{S_WAVE}, 9', f's_add_u32 s{S_T0}, s{S_T0}, {PL}', f'v_add_u32 v43, s{S_T0}, v42',
        'ds_write_b64 v43, v[40:41]', 's_waitcnt lgkmcnt(0)', 's_barrier', f's_cmp_lg_u32 s{S_WAVE}, 0', f's_cbranch_scc1 {kn}_nost',
        f'v_add_u32 v43, {PL}, v42', 'ds_read_b64 v[44:45], v43 offset:512', 'ds_read_b64 v[46:47], v43 offset:1024', 'ds_read_b64 v[48:49], v43 offset:1536',
        f's_lshl_b32 s{S_T0}, s{S_TI}, 14', f's_lshl_b32 s{S_T1}, s{S_TJ}, 9', f's_add_u32 s{S_T0}, s{S_T0}, s{S_T1}', 's_waitcnt lgkmcnt(0)',
        'v_pk_add_f32 v[40:41], v[40:41], v[44:45]', 'v_pk_add_f32 v[46:47], v[46:47], v[48:49]', 'v_pk_add_f32 v[40:41], v[40:41], v[46:47]',
        f'buffer_store_dwordx2 v[40:41], v42, {S4(SRD_B)}, s{S_T0} offen', f'{kn}_nost:')
    stamp_dump(a, 3)
    a.e('s_endpgm')
    loader24(a, kn, NK, NS, U_OFF, UB, P_W2, 4096, 3584 * 2048 * 2)
    stamp_dump(a, 3)
    a.e(f'{kn}_end:', 's_endpgm')
    return dict(lds=PL + 2048, grid=256, names=['k4a_kernel', 'k4b_kernel'], vgpr=120 + 16 * DD)

def gen_k2(a):
    kn = 'k2'; NK, NS, stage = 16, int(env('NS4', '6')), (8192 if DIRECT else 24576)
    entry(a, kn, True)
    prologue(a, kn, 256, 8, 1)
    lane_fields(a)
    ACC = 64; RES = 96
    def acc(t, b): return ACC + 16 * b + 4 * t
    a.e(f's_lshl_b32 s{S_T0}, s{S_TI}, 2', f's_add_u32 s{S_T0}, s{S_T0}, s{S_WAVE}',
        f's_lshl_b32 s{S_T1}, s{S_T0}, 5',
        'v_lshlrev_b32 v13, 1, v4', f'v_add_u32 v13, s{S_T1}, v13',
        'v_lshlrev_b32 v12, 11, v13', 'v_lshl_add_u32 v12, v3, 4, v12', f's_lshl_b32 s{S_T0}, s{S_TJ}, 7', f'v_add_u32 v12, s{S_T0}, v12',
        'v_lshlrev_b32 v14, 4, v0',
        *([f's_lshl_b32 s{S_BA}, s{S_TI}, 2', f's_add_u32 s{S_BA}, s{S_BA}, s{S_WAVE}', f's_mul_i32 s{S_BA}, s{S_BA}, {NK*4096}'] if DIRECT else
          [f's_lshl_b32 s{S_T0}, s{S_WAVE}, 12', f'v_add_u32 v14, s{S_T0}, v14']))
    a.e('s_waitcnt lgkmcnt(0)')
    srd_sel(a, SRD_C, P_X, 0, P_WS, X2_OFF, XB)
    for b in range(2):
        for P in range(2):
            a.e(f'buffer_load_dwordx4 {vr(RES+8*b+4*P,4)}, v12, {S4(SRD_C)}, 0 offen offset:{b*2048+P*64}')
    srd(a, SRD_D, P_WS, X1_OFF, XB)
    srd(a, SRD_E, P_WS, H_OFF, XB)
    srd(a, SRD_B, P_WS, ST_OFF, 16 * 2048 * 8)
    tr128_addr(a, [8, 9, 10, 11], stage - 8192, 16, 17)
    a.e('v_add_u32 v16, v13, v2', 'v_lshlrev_b32 v16, 3, v16', f's_lshl_b32 s{S_T0}, s{S_TJ}, 14', f'v_add_u32 v112, s{S_T0}, v16',
        'v_lshrrev_b32 v17, 5, v0', 'v_lshlrev_b32 v17, 17, v17', 'v_add_u32 v113, v16, v17')
    a.e(f's_and_b32 s{S_T0}, s{S_WAVE}, 1', f's_lshl_b32 s{S_T0}, s{S_T0}, 5', 'v_lshlrev_b32 v16, 1, v4', f'v_add_u32 v16, s{S_T0}, v16',
        f's_and_b32 s{S_T0}, s{S_TJ}, 1', f's_lshl_b32 s{S_T0}, s{S_T0}, 3', f'v_add_u32 v17, s{S_T0}, v3')
    for b in range(2):
        a.e(f'v_add_u32 v18, {b}, v16', 'v_and_b32 v19, 3, v18', 'v_bfe_u32 v20, v18, 3, 1', 'v_lshl_or_b32 v19, v20, 2, v19', 'v_lshlrev_b32 v19, 1, v19',
            'v_xor_b32 v19, v19, v17', 'v_lshlrev_b32 v19, 4, v19', f'v_lshl_add_u32 v{114+b}, v18, 8, v19', f'v_xor_b32 v{116+b}, 64, v{114+b}')
    a.e(f's_lshr_b32 s{S_T0}, s{S_TJ}, 1', f's_lshl_b32 s{S_T0}, s{S_T0}, 5', f's_lshl_b32 s{S_T1}, s{S_TI}, 1', f's_add_u32 s{S_T0}, s{S_T0}, s{S_T1}',
        f's_lshr_b32 s{S_T1}, s{S_WAVE}, 1', f's_add_u32 s{S_T0}, s{S_T0}, s{S_T1}', f's_lshl_b32 s{S_G0}, s{S_T0}, 14')
    for p in range(1, 8): a.e(f's_mov_b32 s{52+p}, {p*16384}')
    def init(outstanding):
        a.e(f's_waitcnt vmcnt({outstanding})')
        for b in range(2):
            for P in range(2):
                r = RES + 8 * b + 4 * P
                a.e(f'v_permlane16_swap_b32 v{r}, v{r+2}', f'v_permlane16_swap_b32 v{r+1}, v{r+3}')
        for b in range(2):
            for P in range(2):
                r = RES + 8 * b + 4 * P
                a.e(*unpack4(r, r + 1, acc(2 * P, b)), *unpack4(r + 2, r + 3, acc(2 * P + 1, b)))
    mf = lambda h, bb: [f'{MF16} {vr(acc(t,b),4)}, {vr(16+24*h+4*t,4)}, {vr(bb+4*b,4)}, {vr(acc(t,b),4)}' for t in range(4) for b in range(2)]
    if DIRECT:
        srd(a, SRD_A, P_WS, O_OFF, XB)
        consumer_direct(a, kn, NK, NS, stage, reads24([8, 9, 10, 11], 14), mf, [8, 9, 10, 11], 120, DD, 14, init)
    else:
        init(0)
        consumer_main(a, kn, NK, NS, stage, reads24([8, 9, 10, 11], 14), [mf(0, 32), mf(1, 56)], [8, 9, 10, 11, 14], rper=2, late=True)
    for b in range(2):
        for t in range(4):
            r = RES + 8 * b + 2 * t; d = acc(t, b)
            a.e(f'v_cvt_pk_bf16_f32 v{r}, v{d}, v{d+1}', f'v_cvt_pk_bf16_f32 v{r+1}, v{d+2}, v{d+3}')
    for b in range(2):
        for t in range(4):
            r = RES + 8 * b + 2 * t
            a.e(*unpack4(r, r + 1, acc(t, b)))
    for b in range(2):
        d = acc(0, b); T = 16 + 4 * b
        a.e(f'v_pk_add_f32 {vr(T,2)}, {vr(d,2)}, {vr(d+2,2)}', f'v_pk_mul_f32 {vr(T+2,2)}, {vr(d,2)}, {vr(d,2)}',
            f'v_pk_fma_f32 {vr(T+2,2)}, {vr(d+2,2)}, {vr(d+2,2)}, {vr(T+2,2)}')
        for e in range(4, 16, 2):
            a.e(f'v_pk_add_f32 {vr(T,2)}, {vr(T,2)}, {vr(d+e,2)}', f'v_pk_fma_f32 {vr(T+2,2)}, {vr(d+e,2)}, {vr(d+e,2)}, {vr(T+2,2)}')
        a.e(f'v_add_f32 v{24+b}, v{T}, v{T+1}', f'v_add_f32 v{26+b}, v{T+2}, v{T+3}')
    a.e('v_permlane16_swap_b32 v24, v25', 'v_permlane16_swap_b32 v26, v27', 'v_add_f32 v28, v24, v25', 'v_add_f32 v29, v26, v27',
        'v_mov_b32 v30, v28', 'v_mov_b32 v31, v29', 'v_permlane32_swap_b32 v28, v30', 'v_permlane32_swap_b32 v29, v31',
        'v_add_f32 v28, v28, v30', 'v_add_f32 v29, v29, v31', 'v_and_b32 v29, 0x7fffffff, v29',
        's_mov_b32 exec_hi, 0', f'buffer_store_dwordx2 v[28:29], v112, {S4(SRD_B)}, 0 offen sc0 sc1', 's_mov_b64 exec, -1')
    for b in range(2):
        for P in range(2):
            r = RES + 8 * b + 4 * P
            a.e(f'v_permlane16_swap_b32 v{r}, v{r+2}', f'v_permlane16_swap_b32 v{r+1}, v{r+3}')
            a.e(f'buffer_store_dwordx4 {vr(r,4)}, v12, {S4(SRD_D)}, 0 offen offset:{b*2048+P*64}')
    a.e(*stamp(61))
    a.e(f's_mov_b32 s{S_CNT}, 0')
    body = [f'{kn}_poll:']
    for p in range(8):
        body.append(f'buffer_load_dwordx2 {vr(32+2*p,2)}, v113, {S4(SRD_B)}, {"0" if p == 0 else f"s{52+p}"} offen sc0 sc1')
    body += ['s_waitcnt vmcnt(0)', 'v_min3_i32 v48, v33, v35, v37', 'v_min3_i32 v49, v39, v41, v43', 'v_min3_i32 v48, v48, v45, v47',
             'v_min_i32 v48, v48, v49', 'v_cmp_gt_i32 vcc, 0, v48', f's_add_u32 s{S_CNT}, s{S_CNT}, 1', f's_cmp_gt_u32 s{S_CNT}, 200000',
             f's_cbranch_scc1 {kn}_pdone', f's_cbranch_vccz {kn}_pdone', f's_sleep {env("PSLEEP", "4")}', f's_branch {kn}_poll']
    a.loop(body)
    a.e(f'{kn}_pdone:', *stamp(62))
    a.e('v_pk_add_f32 v[32:33], v[32:33], v[34:35]', 'v_pk_add_f32 v[36:37], v[36:37], v[38:39]', 'v_pk_add_f32 v[40:41], v[40:41], v[42:43]',
        'v_pk_add_f32 v[44:45], v[44:45], v[46:47]', 'v_pk_add_f32 v[32:33], v[32:33], v[36:37]', 'v_pk_add_f32 v[40:41], v[40:41], v[44:45]',
        'v_pk_add_f32 v[32:33], v[32:33], v[40:41]', 'v_mov_b32 v34, v32', 'v_mov_b32 v35, v33',
        'v_permlane32_swap_b32 v32, v34', 'v_permlane32_swap_b32 v33, v35', 'v_add_f32 v32, v32, v34', 'v_add_f32 v33, v33, v35')
    stats_finish(a, 32, 33, 36, True)
    a.e('v_mov_b32 v34, v32', 'v_mov_b32 v35, v33', 'v_permlane16_swap_b32 v32, v34', 'v_permlane16_swap_b32 v33, v35')
    for b in range(2):
        st = vr(32 + 2 * b, 2)
        for P in range(2):
            d = acc(2 * P, b); o = 40 + 8 * b + 4 * P
            for e in range(0, 8, 2):
                a.e(f'v_pk_add_f32 {vr(d+e,2)}, {vr(d+e,2)}, {st} op_sel_hi:[1,0] neg_lo:[0,1] neg_hi:[0,1]')
            for e in range(0, 8, 2):
                a.e(f'v_pk_mul_f32 {vr(d+e,2)}, {vr(d+e,2)}, {st} op_sel:[0,1] op_sel_hi:[1,1]')
            for e in range(4):
                a.e(f'v_cvt_pk_bf16_f32 v{o+e}, v{d+2*e}, v{d+2*e+1}')
            a.e(f'v_permlane16_swap_b32 v{o}, v{o+2}', f'v_permlane16_swap_b32 v{o+1}, v{o+3}')
            a.e(f'buffer_store_dwordx4 {vr(o,4)}, v{114+2*P+b}, {S4(SRD_E)}, s{S_G0} offen')
    stamp_dump(a, 1)
    a.e('s_endpgm')
    loader24(a, kn, NK, NS, O_OFF, XB, P_WO, 2048, 1024 * 1024 * 2)
    stamp_dump(a, 1)
    a.e(f'{kn}_end:', 's_endpgm')
    return dict(lds=NS * stage, grid=256, names=['k2a_kernel', 'k2b_kernel'], vgpr=120 + 16 * DD)

def gen_k3(a):
    kn = 'k3'; NK, NS, stage = 32, 5, 32768
    entry(a, kn, False)
    prologue(a, kn, 224, 7, 2)
    lane_fields(a)
    ACC = 80
    def acc(tf, td): return ACC + 16 * td + 4 * tf
    a.e(f's_and_b32 s{S_T1}, s{S_WAVE}, 1', f's_lshr_b32 s{S_T2}, s{S_WAVE}, 1')
    a.e(f's_lshl_b32 s{S_T0}, s{S_TJ}, 8', f's_lshl_b32 s{S_G0}, s{S_T1}, 7', f's_add_u32 s{S_T0}, s{S_T0}, s{S_G0}',
        'v_lshlrev_b32 v16, 3, v5', f'v_add_u32 v16, s{S_T0}, v16')
    a.e('s_waitcnt lgkmcnt(0)')
    srd(a, SRD_C, P_B1, 0, 3584 * 2)
    for tf in range(4):
        a.e(f'buffer_load_dwordx2 {vr(144+2*tf,2)}, v16, {S4(SRD_C)}, 0 offen offset:{32*tf}')
    srd(a, SRD_E, P_WS, U_OFF, UB)
    a.e('v_lshl_add_u32 v17, v5, 3, v6', 'v_lshlrev_b32 v17, 8, v17', 'v_lshl_add_u32 v17, v7, 3, v17',
        'v_lshl_or_b32 v18, v2, 2, v6', 'v_lshl_add_u32 v17, v18, 5, v17',
        f's_lshl_b32 s{S_T0}, s{S_T1}, 7', f's_add_u32 s{S_T0}, s{S_T0}, 16384', f'v_xor_b32 v18, s{S_T0}, v17',
        f's_lshl_b32 s{S_T0}, s{S_T2}, 7', f'v_xor_b32 v19, s{S_T0}, v17')
    for t in range(4):
        a.e(f'v_xor_b32 v{8+t}, {t << 5}, v18', f'v_xor_b32 v{12+t}, {t << 5}, v19')
    a.e('v_bfe_u32 v17, v4, 2, 1', 'v_lshlrev_b32 v17, 10, v17', 'v_lshl_add_u32 v17, v3, 8, v17', 'v_lshrrev_b32 v18, 3, v4', 'v_lshl_add_u32 v17, v18, 6, v17',
        'v_lshl_add_u32 v152, v7, 4, v17',
        f's_lshl_b32 s{S_T0}, s{S_TI}, 1', f's_add_u32 s{S_T0}, s{S_T0}, s{S_T2}', f's_mul_i32 s{S_T0}, s{S_T0}, 224',
        f's_lshl_b32 s{S_G0}, s{S_TJ}, 2', f's_add_u32 s{S_T0}, s{S_T0}, s{S_G0}', f's_lshl_b32 s{S_G0}, s{S_T1}, 1', f's_add_u32 s{S_T0}, s{S_T0}, s{S_G0}',
        f's_lshl_b32 s{S_G0}, s{S_T0}, 11', f's_add_u32 s{S_G0+1}, s{S_G0}, {112*2048}')
    a.e('s_waitcnt vmcnt(0)')
    for tf in range(4):
        a.e(*unpack4(144 + 2 * tf, 145 + 2 * tf, acc(tf, 0)))
        for td in range(1, 4):
            a.e(f'v_pk_mul_f32 {vr(acc(tf,td),2)}, {vr(acc(tf,0),2)}, 1.0 op_sel_hi:[1,0]', f'v_pk_mul_f32 {vr(acc(tf,td)+2,2)}, {vr(acc(tf,0)+2,2)}, 1.0 op_sel_hi:[1,0]')
    reads = [[], []]; mf = [[], []]
    for h in range(2):
        F = 16 + 32 * h
        rd = lambda dst, av: [f'ds_read_b64_tr_b16 {vr(dst,2)}, v{av} offset:{h*8192}', f'ds_read_b64_tr_b16 {vr(dst+2,2)}, v{av} offset:{h*8192+1024}']
        for t in range(4): reads[h] += rd(F + 4 * t, 8 + t) + rd(F + 16 + 4 * t, 12 + t)
        order = sorted([(tf, td) for tf in range(4) for td in range(4)], key=lambda x: (max(x), x))
        for tf, td in order:
            mf[h].append(f'{MF16} {vr(acc(tf,td),4)}, {vr(F+4*tf,4)}, {vr(F+16+4*td,4)}, {vr(acc(tf,td),4)}')
    consumer_main(a, kn, NK, NS, stage, reads, mf, list(range(8, 16)), rper=int(env('RP3', '1')), late=True)
    c1 = -2.0 * 0.7978845608028654 * 1.4426950408889634
    a.e(f'v_mov_b32 v16, {f32(c1)}', f'v_mov_b32 v17, {f32(c1 * 0.044715)}', 'v_add_u32 v153, 128, v152')
    k = 0
    for td in range(4):
        for P in range(2):
            d = acc(2 * P, td); T = 24 + 16 * (k & 1); k += 1
            for e in range(0, 8, 2): a.e(f'v_pk_mul_f32 {vr(T+e,2)}, {vr(d+e,2)}, {vr(d+e,2)}')
            for e in range(0, 8, 2): a.e(f'v_pk_fma_f32 {vr(T+e,2)}, {vr(T+e,2)}, v[16:17], v[16:17] op_sel:[0,1,0] op_sel_hi:[1,1,0]')
            for e in range(0, 8, 2): a.e(f'v_pk_mul_f32 {vr(T+e,2)}, {vr(T+e,2)}, {vr(d+e,2)}')
            for e in range(8): a.e(f'v_exp_f32 v{T+e}, v{T+e}')
            for e in range(0, 8, 2): a.e(f'v_pk_add_f32 {vr(T+e,2)}, {vr(T+e,2)}, 1.0 op_sel_hi:[1,0]')
            for e in range(8): a.e(f'v_rcp_f32 v{T+e}, v{T+e}')
            for e in range(0, 8, 2): a.e(f'v_pk_mul_f32 {vr(T+e,2)}, {vr(T+e,2)}, {vr(d+e,2)}')
            for e in range(4): a.e(f'v_cvt_pk_bf16_f32 v{T+8+e}, v{T+2*e}, v{T+2*e+1}')
            a.e(f'v_permlane16_swap_b32 v{T+8}, v{T+10}', f'v_permlane16_swap_b32 v{T+9}, v{T+11}')
            a.e(f'buffer_store_dwordx4 {vr(T+8,4)}, v{152+(td&1)}, {S4(SRD_E)}, s{S_G0+(td>>1)} offen offset:{2048*P}')
    stamp_dump(a, 2)
    a.e('s_endpgm')
    a.e(f'{kn}_loader:'); a.flush_hist()
    a.e(f's_sub_u32 s{S_T2}, s{S_WAVE}, 4', f's_lshl_b32 s{S_G0}, s{S_T2}, 12', f's_add_u32 s{S_G0+1}, s{S_G0}, 16384',
        'v_lshlrev_b32 v8, 4, v0', f'v_add_u32 v8, s{S_G0}, v8')
    a.e('v_lshrrev_b32 v2, 4, v0', 'v_lshlrev_b32 v3, 1, v2', 'v_and_b32 v4, 15, v0', 'v_xor_b32 v3, v3, v4', 'v_lshlrev_b32 v3, 4, v3',
        f's_lshl_b32 s{S_T0}, s{S_T2}, 4', f'v_add_u32 v2, s{S_T0}, v2', f's_mov_b32 s{S_T0}, 7168', f'v_mul_lo_u32 v2, v2, s{S_T0}',
        'v_add_u32 v9, v2, v3', 'v_xor_b32 v3, 128, v3', 'v_add_u32 v11, v2, v3',
        f'v_add_u32 v10, {4*7168-1024}, v9', f'v_add_u32 v12, {3*(4*7168-1024)}, v11', f'v_add_u32 v11, {2*(4*7168-1024)}, v11',
        f's_mul_i32 s{S_BA}, s{S_TI}, {32*16384}', f's_lshl_b32 s{S_BB}, s{S_TJ}, 8', 's_waitcnt lgkmcnt(0)')
    srd(a, SRD_A, P_WS, H_OFF, XB)
    srd(a, SRD_B, P_W1, 0, 2048 * 3584 * 2)
    groups = [dict(sg=S_G0, dmas=[(8, 1024 * i, 'A', None) for i in range(4)]),
              dict(sg=S_G0 + 1, dmas=[(9 + i, 1024 * i, 'B', None) for i in range(4)])]
    loader_main(a, kn, NK, NS, stage, 16384, 64 * 7168, groups, late=True)
    stamp_dump(a, 2)
    a.e(f'{kn}_end:', 's_endpgm')
    return dict(lds=NS * stage, grid=224, names=['k3_kernel'], vgpr=160)

def gen_k1(a):
    kn = 'k1'; NK, NS = 16, 3
    XT = 18432; stage = XT + 24576
    SL = NS * stage
    QKV = stage
    PITCH = 400; PB = 72 * PITCH
    entry(a, kn, True)
    prologue(a, kn, 256, 8, 1)
    lane_fields(a)
    ACC = 112
    def acc(m, rt): return ACC + 36 * m + 4 * rt
    a.e(f's_lshl_b32 s{S_T0}, s2, 3', f's_lshl_b32 s{S_T1}, s{S_WAVE}, 1', f's_add_u32 s{S_T0}, s{S_T0}, s{S_T1}',
        'v_lshrrev_b32 v16, 5, v0', f'v_add_u32 v16, s{S_T0}, v16', 'v_lshlrev_b32 v17, 11, v16', 'v_and_b32 v18, 31, v0', 'v_lshl_add_u32 v17, v18, 4, v17',
        'v_lshlrev_b32 v16, 3, v16')
    a.e('s_waitcnt lgkmcnt(0)')
    srd(a, SRD_A, P_X, 0, XB)
    a.e(f's_cmp_lg_u32 s{S_VAR}, 0', f's_cbranch_scc1 {kn}_nst0')
    for c in range(4):
        a.e(f'buffer_load_dwordx4 {vr(32+4*c,4)}, v17, {S4(SRD_A)}, 0 offen offset:{512*c}')
    a.e(f'{kn}_nst0:')
    srd(a, SRD_C, P_WS, ST_OFF, 16 * 2048 * 8)
    srd(a, SRD_D, P_WS, RS_OFF, 8 * 2048 * 8)
    tr128_addr(a, [8], XT, 21, 22)
    a.e(f's_lshl_b32 s{S_T0}, s{S_WAVE}, 5', f'v_xor_b32 v8, s{S_T0}, v8')
    a.e('v_lshrrev_b32 v21, 1, v4', 'v_xor_b32 v21, v21, v5', 'v_lshlrev_b32 v21, 4, v21', 'v_lshlrev_b32 v22, 7, v4', 'v_add_u32 v9, v21, v22',
        'v_xor_b32 v10, 64, v9')
    a.e('v_and_b32 v21, 1, v4', f'v_mul_u32_u24 v21, {PB}, v21', 'v_lshrrev_b32 v22, 1, v4', f'v_mul_u32_u24 v22, {PITCH}, v22',
        'v_lshlrev_b32 v23, 3, v5', 'v_add3_u32 v11, v21, v22, v23', f's_add_u32 s{S_T0}, s{S_T0}, {QKV}',
        f'v_add_u32 v11, s{S_T0}, v11', 'v_lshlrev_b32 v12, 3, v4', f'v_add_u32 v12, {SL}, v12')
    for r in range(ACC, ACC + 108, 2):
        a.e(f'v_pk_mul_f32 {vr(r,2)}, 0, 0 op_sel_hi:[0,0]' if False else f'v_mov_b64 {vr(r,2)}, 0')
    a.e('v_mov_b32 v24, -1', 'v_lshlrev_b32 v25, 2, v0', f's_lshl_b32 s{S_T0}, s2, 10', f's_lshl_b32 s{S_T1}, s{S_WAVE}, 8', f's_add_u32 s{S_G0+6}, s{S_T0}, s{S_T1}',
        'v_mov_b32 v220, v24', 'v_mov_b32 v221, v25')
    a.e(f's_lshr_b32 s{S_T0}, s2, 4', f's_lshl_b32 s{S_T0}, s{S_T0}, 4', f'v_mov_b32 v222, s{S_T0}', 'v_mov_b32 v223, 1',
        f's_or_b32 s{S_G0+7}, s{S_VAR}, s{S_WAVE}',
        f's_cmp_lg_u32 s{S_VAR}, 0', f's_cbranch_scc1 {kn}_nst1', 'v_mov_b32 v28, 0', 'v_mov_b32 v29, 0', 'v_mov_b32 v27, 0x3f803f80')
    for c in range(4):
        a.e(f's_waitcnt vmcnt({3-c})')
        for e in range(4):
            a.e(f'v_dot2c_f32_bf16 v28, v27, v{32+4*c+e}', f'v_dot2c_f32_bf16 v29, v{32+4*c+e}, v{32+4*c+e}')
    for ctl in ('quad_perm:[1,0,3,2]', 'quad_perm:[2,3,0,1]', 'row_half_mirror', 'row_mirror'):
        a.e(f'v_add_f32_dpp v28, v28, v28 {ctl} row_mask:0xf bank_mask:0xf', f'v_add_f32_dpp v29, v29, v29 {ctl} row_mask:0xf bank_mask:0xf')
    a.e('v_mov_b32 v30, v28', 'v_mov_b32 v31, v29', 'v_permlane16_swap_b32 v28, v30', 'v_permlane16_swap_b32 v29, v31', 'v_add_f32 v28, v28, v30', 'v_add_f32 v29, v29, v31',
        's_mov_b32 exec_lo, 1', 's_mov_b32 exec_hi, 1', f'buffer_store_dwordx2 v[28:29], v16, {S4(SRD_D)}, 0 offen sc0 sc1', 's_mov_b64 exec, -1', f'{kn}_nst1:', 's_nop 1')
    peel = (['s_waitcnt vmcnt(0)'],
            [f's_cmp_lg_u32 s{S_G0+7}, 0', f's_cbranch_scc1 {kn}_nat', 's_mov_b64 exec, 1', f'global_atomic_add v222, v223, s[{P_DBG}:{P_DBG+1}] sc1', 's_mov_b64 exec, -1', f'{kn}_nat:'])
    reads = [[], []]; mf = [[], []]
    for h in range(2):
        F = 16 + 48 * h
        ra = [[f'ds_read_b64_tr_b16 {vr(F+4*m,2)}, v8 offset:{m*8192+h*4096}', f'ds_read_b64_tr_b16 {vr(F+4*m+2,2)}, v8 offset:{m*8192+h*4096+512}'] for m in range(3)]
        rb = [f'ds_read_b128 {vr(F+12+4*rt,4)}, v{9+h} offset:{rt*2048}' for rt in range(9)]
        reads[h] = ra[0] + [rb[0]] + ra[1] + ra[2] + rb[1:]
        for rt in range(9):
            for m in range(3):
                mf[h].append(f'{MF16} {vr(acc(m,rt),4)}, {vr(F+4*m,4)}, {vr(F+12+4*rt,4)}, {vr(acc(m,rt),4)}')
    consumer_main(a, kn, NK, NS, stage, reads, mf, [8, 9, 10], rper=1, peel=peel)
    a.e(f'buffer_store_dword v220, v221, {S4(SRD_C)}, s{S_G0+6} offen sc0 sc1')
    a.e('s_barrier', *stamp(61))
    for rt in range(9):
        a.e(f'ds_read_b64 {vr(32+2*rt,2)}, v12 offset:{rt*128}')
    for m in range(3):
        for r in range(4):
            a.e(f'v_mov_b32_dpp v{16+4*m+r}, v{acc(m,0)+r} row_newbcast:0 row_mask:0xf bank_mask:0xf')
    a.e('s_waitcnt lgkmcnt(0)')
    k = 0
    for rt in range(9):
        ms = [m for m in range(3) if not (m == 0 and rt == 0)]
        st = vr(32 + 2 * rt, 2)
        for m in ms:
            for e in (0, 2):
                a.e(f'v_pk_fma_f32 {vr(acc(m,rt)+e,2)}, {vr(16+4*m+e,2)}, {st}, {vr(acc(m,rt)+e,2)} op_sel_hi:[1,0,1] neg_lo:[0,1,0] neg_hi:[0,1,0]')
        for m in ms:
            for e in (0, 2):
                a.e(f'v_pk_mul_f32 {vr(acc(m,rt)+e,2)}, {vr(acc(m,rt)+e,2)}, {st} op_sel:[0,1] op_sel_hi:[1,1]')
        for m in ms:
            d = acc(m, rt); o = 52 + 2 * (k & 7); k += 1
            a.e(f'v_cvt_pk_bf16_f32 v{o}, v{d}, v{d+1}', f'v_cvt_pk_bf16_f32 v{o+1}, v{d+2}, v{d+3}',
                f'ds_write_b64 v11, {vr(o,2)} offset:{rt*8*PITCH+m*128}')
    a.e(f's_branch {kn}_attn')
    a.e(f'{kn}_loader:'); a.flush_hist()
    a.e(f's_sub_u32 s{S_T2}, s{S_WAVE}, 4')
    def xaddr(v, rowbase_s, comp):
        a.e('v_lshrrev_b32 v2, 3, v0', f'v_add_u32 v2, s{rowbase_s}, v2',
            'v_bfe_u32 v3, v2, 1, 3', 'v_and_b32 v4, 7, v0', 'v_xor_b32 v3, v3, v4', 'v_lshlrev_b32 v3, 4, v3',
            f'v_add_u32 v2, s{S_T1}, v2', 'v_max_i32 v2, 0, v2', 'v_lshlrev_b32 v2, 11, v2', f'v_add_u32 v{v}, v2, v3')
        if comp: a.e(f'v_subrev_u32 v{v}, {comp}, v{v}')
    a.e(f's_lshl_b32 s{S_T1}, s{S_TI}, 7', f's_sub_u32 s{S_T1}, s{S_T1}, 16')
    for i in range(2):
        a.e(f's_lshl_b32 s{S_T0}, s{S_T2}, 5', f's_add_u32 s{S_T0}, s{S_T0}, {16+8*i}')
        xaddr(8 + i, S_T0, 1024 * i)
        a.e(f'v_add_u32 v{10+i}, {16*2048-2048}, v{8+i}')
    a.e(f's_lshl_b32 s{S_T0}, s{S_T2}, 3'); xaddr(12, S_T0, 0)
    dma_w128(a, [13, 14], 6144, swz128(a), 16, 2, 3, 4)
    a.e('v_add_u32 v15, 2048, v13', 'v_add_u32 v16, 2048, v14', 'v_add_u32 v17, 4096, v13', 'v_add_u32 v18, 4096, v14')
    a.e(f's_lshl_b32 s{S_G0}, s{S_T2}, 12', f's_add_u32 s{S_G0}, s{S_G0}, 2048', f's_lshl_b32 s{S_G0+1}, s{S_T2}, 10',
        f's_lshl_b32 s{S_G0+2}, s{S_T2}, 11', f's_add_u32 s{S_G0+2}, s{S_G0+2}, {XT}', f's_add_u32 s{S_G0+3}, s{S_G0+2}, 8192', f's_add_u32 s{S_G0+4}, s{S_G0+2}, 16384',
        f's_mov_b32 s{S_BA}, 0', f's_lshl_b32 s{S_BB}, s{S_TJ}, 7',
        f's_cmp_eq_u32 s{S_T2}, 0', 's_cselect_b32 s52, 0xffffff00, -1', 's_mov_b32 s53, -1')
    a.e('v_mov_b32 v20, 0x3f803f80', 'v_mov_b32 v21, v20', 'v_mov_b32 v22, v20', 'v_mov_b32 v23, v20', 'v_lshlrev_b32 v24, 4, v0', f'v_add_u32 v25, {2*stage}, v24',
        's_mov_b64 exec, 0xff', 'ds_write_b128 v24, v[20:23]', f'ds_write_b128 v24, v[20:23] offset:{stage}', 'ds_write_b128 v25, v[20:23]', 's_mov_b64 exec, -1')
    a.e('s_waitcnt lgkmcnt(0)')
    srd_sel(a, SRD_A, P_X, 0, P_WS, X2_OFF, XB)
    srd(a, SRD_B, P_WQKV, 0, 1024 * 3072 * 2)
    srd(a, SRD_D, P_WS, RS_OFF, 8 * 2048 * 8)
    a.e(f's_lshl_b32 s{S_T0}, s{S_T2}, 6', f'v_add_u32 v26, s{S_T0}, v0', 'v_min_u32 v26, 143, v26', f'v_add_u32 v27, s{S_T1}, v26', 'v_max_i32 v27, 0, v27',
        'v_lshlrev_b32 v27, 3, v27', 'v_lshlrev_b32 v26, 3, v26', f'v_add_u32 v26, {SL}, v26',
        'v_and_b32 v28, 1, v0', f's_sub_u32 s{S_T0}, s{S_TI}, 1', f'v_add_u32 v28, s{S_T0}, v28', 'v_max_i32 v28, 0, v28', 'v_lshlrev_b32 v28, 4, v28')
    for p in range(1, 8): a.e(f's_mov_b32 s{54+p}, {p*16384}')
    gx = dict(sg=S_G0, dmas=[(8 + i, 1024 * i, 'A', None) for i in range(4)])
    gw = [dict(sg=S_G0 + 2 + m, dmas=[(13 + 2 * m, 0, 'B', None), (14 + 2 * m, 1024, 'B', None)]) for m in range(3)]
    gh = dict(sg=S_G0 + 1, dmas=[(12, 0, 'A', 's[52:53]')])
    a.e(f's_cmp_ge_u32 s{S_T2}, 2', f's_cbranch_scc1 {kn}_ldB')
    loader_main(a, kn, NK, NS, stage, 128, 64 * 6144, [gh, gx] + gw, tag='A', tail=1)
    a.e(f's_branch {kn}_ldone', f'{kn}_ldB:'); a.flush_hist()
    loader_main(a, kn, NK, NS, stage, 128, 64 * 6144, [gx] + gw, tag='B', tail=1)
    a.e(f'{kn}_ldone:'); a.flush_hist()
    a.e(f's_cmp_lg_u32 s{S_VAR}, 0', f's_cbranch_scc1 {kn}_fetb', f's_mov_b32 s{S_CNT}, 0')
    a.loop([f'{kn}_poll:', f'global_load_dword v29, v28, s[{P_DBG}:{P_DBG+1}] sc0 sc1', 's_waitcnt vmcnt(0)', 'v_cmp_gt_u32 vcc, 16, v29',
            f's_add_u32 s{S_CNT}, s{S_CNT}, 1', f's_cmp_gt_u32 s{S_CNT}, 200000', f's_cbranch_scc1 {kn}_pdone', f's_cbranch_vccz {kn}_pdone', 's_sleep 4', f's_branch {kn}_poll'])
    a.e(f'{kn}_pdone:', f'buffer_load_dwordx2 v[30:31], v27, {S4(SRD_D)}, 0 offen sc0 sc1', 's_barrier', *stamp(), 's_waitcnt vmcnt(0)', f's_branch {kn}_fin', f'{kn}_fetb:')
    for p in range(8):
        a.e(f'buffer_load_dwordx2 {vr(30+2*p,2)}, v27, {S4(SRD_D)}, {"0" if p == 0 else f"s{54+p}"} offen')
    a.e('s_waitcnt vmcnt(8)', 's_barrier', *stamp(), 's_waitcnt vmcnt(0)')
    a.e('v_pk_add_f32 v[30:31], v[30:31], v[32:33]', 'v_pk_add_f32 v[34:35], v[34:35], v[36:37]', 'v_pk_add_f32 v[38:39], v[38:39], v[40:41]',
        'v_pk_add_f32 v[42:43], v[42:43], v[44:45]', 'v_pk_add_f32 v[30:31], v[30:31], v[34:35]', 'v_pk_add_f32 v[38:39], v[38:39], v[42:43]',
        'v_pk_add_f32 v[30:31], v[30:31], v[38:39]', f'{kn}_fin:', 's_nop 1')
    stats_finish(a, 30, 31, 32, False)
    a.e('ds_write_b64 v26, v[30:31]')
    lane_fields(a)
    a.e('s_waitcnt lgkmcnt(0)', 's_barrier')
    a.e(f'{kn}_attn:'); a.flush_hist()
    srd(a, SRD_D, P_WS, O_OFF, XB)
    a.e(f's_lshr_b32 s{S_T1}, s{S_WAVE}, 1', f's_and_b32 s{S_T2}, s{S_WAVE}, 1',
        f's_mul_i32 s{S_T0}, s{S_T2}, {PB}', f's_add_u32 s{S_T0}, s{S_T0}, {QKV}', f's_lshl_b32 s{S_G0}, s{S_T1}, 4')
    a.e(f'v_add_u32 v16, s{S_G0}, v4', 'v_lshlrev_b32 v17, 4, v5', f'v_add_u32 v17, s{S_T0}, v17',
        f'v_mul_u32_u24 v18, {PITCH}, v16', 'v_add_u32 v8, v18, v17', f'v_add_u32 v10, {8*PITCH}, v8', 'v_add_u32 v8, 128, v8',
        'v_add_u32 v16, 16, v16', 'v_min_u32 v16, 71, v16', f'v_mul_u32_u24 v18, {PITCH}, v16', 'v_add3_u32 v9, v18, v17, 64', 'v_add_u32 v9, 64, v9')
    a.e('v_lshl_add_u32 v16, v5, 2, v6', f'v_add_u32 v16, s{S_G0}, v16', 'v_lshlrev_b32 v17, 4, v7', f'v_add_u32 v17, s{S_T0}, v17', 'v_add_u32 v17, 256, v17',
        f'v_mul_u32_u24 v18, {PITCH}, v16', 'v_add_u32 v14, v18, v17',
        'v_add_u32 v16, 16, v16', 'v_min_u32 v16, 71, v16', f'v_mul_u32_u24 v18, {PITCH}, v16', 'v_add_u32 v15, v18, v17')
    a.e('v_lshlrev_b32 v13, 4, v0', f's_lshl_b32 s{S_G0+2}, s{S_TI}, 2', f's_add_u32 s{S_G0+2}, s{S_G0+2}, s{S_T1}', f's_lshl_b32 s{S_G0+2}, s{S_G0+2}, 16',
        f's_lshl_b32 s{S_G0+1}, s{S_TJ}, 12', f's_add_u32 s{S_G0+2}, s{S_G0+2}, s{S_G0+1}', f's_lshl_b32 s{S_G0+1}, s{S_T2}, 10', f's_add_u32 s{S_G0+2}, s{S_G0+2}, s{S_G0+1}')
    a.e('v_lshlrev_b32 v16, 2, v5', 'v_sub_u32 v16, v16, v4', f's_or_b32 s{S_G0+3}, s{S_TI}, s{S_T1}', f's_cmp_eq_u32 s{S_G0+3}, 0',
        f's_cselect_b32 s{S_G0+4}, 0, -1')
    for k in range(8):
        i0 = 16 * (k >> 2) + (k & 3) - 1
        a.e(f'v_add_u32 v17, {i0}, v16', f'v_cmp_gt_u32 s[{52+2*k}:{53+2*k}], 8, v17')
    for k in range(4):
        a.e(f's_and_b32 s{52+2*k}, s{52+2*k}, s{S_G0+4}')
    cs = (32 ** -0.5) * 1.4426950408889634
    a.e(f'v_mov_b32 v6, {f32(cs)}', 'v_mov_b32 v7, 0xff800000')
    a.e('s_waitcnt lgkmcnt(0)', 's_barrier', *stamp(62))
    B = [32, 80]
    for hd in range(2):
        b = B[hd]; o = 64 * hd
        a.e(f'ds_read_b128 {vr(b,4)}, v10 offset:{o}', f'ds_read_b128 {vr(b+4,4)}, v8 offset:{o}', f'ds_read_b128 {vr(b+8,4)}, v9 offset:{o}')
    for hd in range(2):
        b = B[hd]; o = 64 * hd
        for dt in range(2):
            a.e(f'ds_read_b64_tr_b16 {vr(b+12+4*dt,2)}, v14 offset:{o+8*dt}', f'ds_read_b64_tr_b16 {vr(b+14+4*dt,2)}, v15 offset:{o+8*dt}')
    for hd in range(2):
        b = B[hd]
        a.e(f's_waitcnt lgkmcnt({11 - 3*hd})')
        a.e(f'{MF16} {vr(b+20,4)}, {vr(b+4,4)}, {vr(b,4)}, 0', f'{MF16} {vr(b+24,4)}, {vr(b+8,4)}, {vr(b,4)}, 0')
    def both(f):
        L = [f(B[0]), f(B[1])]
        for x, y in zip(*L): a.e(x, y)
    both(lambda b: [f'v_cndmask_b32 v{b+20+k}, v7, v{b+20+k}, s[{52+2*k}:{53+2*k}]' for k in range(8)])
    both(lambda b: [f'v_max3_f32 v{b+28}, v{b+20}, v{b+21}, v{b+22}', f'v_max3_f32 v{b+29}, v{b+23}, v{b+24}, v{b+25}',
                    f'v_max3_f32 v{b+28}, v{b+28}, v{b+26}, v{b+27}', f'v_max_f32 v{b+28}, v{b+28}, v{b+29}', f'v_mov_b32 v{b+29}, v{b+28}',
                    f'v_permlane16_swap_b32 v{b+28}, v{b+29}', f'v_max_f32 v{b+28}, v{b+28}, v{b+29}', f'v_mov_b32 v{b+29}, v{b+28}',
                    f'v_permlane32_swap_b32 v{b+28}, v{b+29}', f'v_max_f32 v{b+28}, v{b+28}, v{b+29}', f'v_mul_f32 v{b+28}, v6, v{b+28}'])
    both(lambda b: [f'v_fma_f32 v{b+20+k}, v{b+20+k}, v6, -v{b+28}' for k in range(8)])
    both(lambda b: [f'v_exp_f32 v{b+20+k}, v{b+20+k}' for k in range(8)])
    both(lambda b: [f'v_pk_add_f32 {vr(b+28,2)}, {vr(b+20,2)}, {vr(b+22,2)}', f'v_pk_add_f32 {vr(b+30,2)}, {vr(b+24,2)}, {vr(b+26,2)}',
                    f'v_pk_add_f32 {vr(b+28,2)}, {vr(b+28,2)}, {vr(b+30,2)}', f'v_add_f32 v{b+28}, v{b+28}, v{b+29}', f'v_mov_b32 v{b+29}, v{b+28}',
                    f'v_permlane16_swap_b32 v{b+28}, v{b+29}', f'v_add_f32 v{b+28}, v{b+28}, v{b+29}', f'v_mov_b32 v{b+29}, v{b+28}',
                    f'v_permlane32_swap_b32 v{b+28}, v{b+29}', f'v_add_f32 v{b+28}, v{b+28}, v{b+29}', f'v_rcp_f32 v{b+28}, v{b+28}'])
    both(lambda b: [f'v_pk_mul_f32 {vr(b+20+e,2)}, {vr(b+20+e,2)}, {vr(b+28,2)} op_sel_hi:[1,0]' for e in range(0, 8, 2)])
    both(lambda b: [f'v_cvt_pk_bf16_f32 v{b+32+e}, v{b+20+2*e}, v{b+21+2*e}' for e in range(4)])
    a.e('s_waitcnt lgkmcnt(0)')
    both(lambda b: [f'{MF16} {vr(b+36+4*dt,4)}, {vr(b+12+4*dt,4)}, {vr(b+32,4)}, 0' for dt in range(2)])
    both(lambda b: [f'v_cvt_pk_bf16_f32 v{b+e}, v{b+36+2*e}, v{b+37+2*e}' for e in range(4)])
    for hd in range(2):
        a.e(f'buffer_store_dwordx4 {vr(B[hd],4)}, v13, {S4(SRD_D)}, s{S_G0+2} offen offset:{2048*hd}')
    stamp_dump(a, 0)
    a.e(f'{kn}_end:', 's_endpgm')
    return dict(lds=SL + 1152, grid=256, names=['k1a_kernel', 'k1b_kernel'], vgpr=224)

def main(out):
    a = Asm()
    info = {}
    for g in (gen_k1, gen_k2, gen_k3, gen_k4):
        m = g(a)
        for n in m['names']: info[n] = m
        a.flush_hist()
    order = ['k1a_kernel', 'k2a_kernel', 'k3_kernel', 'k4a_kernel', 'k1b_kernel', 'k2b_kernel', 'k3_kernel', 'k4b_kernel']
    ref = open(os.path.join(os.path.dirname(os.path.abspath(__file__)), '..', NAME + '.s.ref')).read().splitlines()
    hdr = [l for l in ref if l.startswith(';') and '@launch' not in l and 'Override launch' not in l and 'grid=ceil' not in l]
    hdr += [f'; @launch kernel={n} grid=({info[n]["grid"]},1,1) block=(512,1,1) lds={info[n]["lds"]}' for n in order]
    s = '\n'.join(hdr) + '\n; generated by gen/gen.py\n.amdgcn_target "amdgcn-amd-amdhsa--gfx950"\n.text\n' + a.text()
    s += '.section .rodata,"a"\n'
    for n, m in info.items():
        s += f'''.p2align 6
.amdhsa_kernel {n}
  .amdhsa_next_free_vgpr {256 if PROF else m["vgpr"]}
  .amdhsa_next_free_sgpr 96
  .amdhsa_accum_offset {256 if PROF else m["vgpr"]}
  .amdhsa_group_segment_fixed_size 0
  .amdhsa_kernarg_size 88
  .amdhsa_user_sgpr_count 2
  .amdhsa_user_sgpr_kernarg_segment_ptr 1
  .amdhsa_system_sgpr_workgroup_id_x 1
.end_amdhsa_kernel
'''
    open(out, 'w').write(s)

if __name__ == '__main__':
    main(sys.argv[1] if len(sys.argv) > 1 else os.path.join(os.path.dirname(os.path.abspath(__file__)), '..', NAME + '.s'))
```

```python
import sys, os, struct
sys.path.insert(0, os.path.dirname(os.path.abspath(__file__)))
from asmlib import *
import gen as G
from gen import (NAME, MB, XB, UB, f32, env, S4, srd, next_k, adv_s, sched, bundle, spread, lane_fields, tr128_addr, swz128, unpack4,
                 dma_w128, stats_finish, MF16, S_VAR, S_WAVE, S_LI, S_LJ, S_PHI, SRD_A, SRD_B, SRD_C, SRD_D, SRD_E, S_TI, S_TJ,
                 S_P, S_W, S_T0, S_K, S_BA, S_BB, S_OA, S_OB, S_LW, S_CNT, S_T1, S_T2, S_DELTA, S_CUR, S_G0,
                 P_X, P_WQKV, P_WO, P_W1, P_B1, P_W2, P_B2, P_OUT, P_WS)

LSTR = 32 * MB
O_OFF, X1_OFF, H_OFF, U_OFF, ST_OFF, RS_OFF = 0, 4 * MB, 8 * MB, 12 * MB, 20 * MB, 21 * MB
X2_OFF, FL_OFF, PR_OFF = 24 * MB, 28 * MB, 64 * MB
P_WL = 82
S_LWV, S_FLG = 57, 56
SC = 'sc0 sc1'
LDF = env('LDF', 'sc1')
PROF = env('PROF') == '1'
PV = 255
SINGLE = env('SINGLE', '1') == '1'
MEGA = NAME + '_kernel' if SINGLE else 'mega_kernel'
P_DB = 62
SPIN = 1000000
EXP = env('EXP', '')
SNAKE = int(env('SNAKE', '1')); CWREUSE = int(env('CWREUSE', '1')); CHAIN = int(env('CHAIN', '1'))
ONEP = int(env('ONEP', '1')); PS0 = int(env('PS0', '8')); PS1 = int(env('PS1', '0')); PP = int(env('PP', '1')); PSL = int(env('PSL', '4'))

def stamp(k):
    if not PROF: return []
    return ['s_memrealtime s[58:59]', 's_memtime s[56:57]', 's_waitcnt lgkmcnt(0)', f's_lshl_b32 s60, s{S_VAR}, 4', f's_add_u32 m0, s60, {k+1}', 's_nop 0', f'v_writelane_b32 v{PV}, s58, m0',
            's_add_u32 m0, m0, 32', 's_nop 0', f'v_writelane_b32 v{PV}, s56, m0']
G.stamp = lambda idx=None: []
G.cstamp = lambda idx: []

def lstamp(k): return ['s_memrealtime s[60:61]', 's_waitcnt lgkmcnt(0)', f'v_writelane_b32 v255, s60, {k}'] if PROF else []

def tiles(a, LN, xshift):
    a.e(f's_lshr_b32 s{S_T0}, s2, 3')
    if LN == 8: a.e(f's_lshr_b32 s{S_LI}, s{S_T0}, 3', f's_and_b32 s{S_LJ}, s{S_T0}, 7')
    else: a.e(f's_mul_i32 s{S_LI}, s{S_T0}, {65536 // LN + 1}', f's_lshr_b32 s{S_LI}, s{S_LI}, 16', f's_mul_i32 s{S_LJ}, s{S_LI}, {LN}', f's_sub_u32 s{S_LJ}, s{S_T0}, s{S_LJ}')
    a.e(f's_lshl_b32 s{S_PHI}, s{S_LI}, 1', f's_add_u32 s{S_PHI}, s{S_PHI}, s{S_LJ}', f's_and_b32 s{S_PHI}, s{S_PHI}, 7',
        f's_and_b32 s{S_T0}, s2, 7', f's_lshr_b32 s{S_TI}, s{S_T0}, {xshift}', f's_lshl_b32 s{S_TI}, s{S_TI}, 2', f's_add_u32 s{S_TI}, s{S_TI}, s{S_LI}',
        f's_and_b32 s{S_TJ}, s{S_T0}, {(1 << xshift) - 1}')
    if (TJS >> {(8, 1): 0, (7, 2): 1, (8, 2): 2}[(LN, xshift)]) & 1: a.e(f's_lshl_b32 s{S_T0}, s{S_LJ}, {xshift}', f's_add_u32 s{S_TJ}, s{S_TJ}, s{S_T0}', *INITK)
    else: a.e(f's_mul_i32 s{S_TJ}, s{S_TJ}, {LN}', f's_add_u32 s{S_TJ}, s{S_TJ}, s{S_LJ}', *INITK)
TJS = int(env('TJS', '0'))
INITK = [f's_mov_b32 s{S_P}, 7', f's_mov_b32 s{S_W}, -1']

def flag_idx(a, ph, hi, mul, lo):
    a.e(f's_lshl_b32 s{S_FLG}, s{S_VAR}, 10', f's_mul_i32 s{S_T0}, s{hi}, {mul}', f's_add_u32 s{S_FLG}, s{S_FLG}, s{S_T0}', f's_add_u32 s{S_FLG}, s{S_FLG}, s{lo}',
        f's_add_u32 s{S_FLG}, s{S_FLG}, {ph*256}', f's_lshl_b32 s{S_FLG}, s{S_FLG}, 7')

_n = [0]
def lab(p): _n[0] += 1; return f'{p}{_n[0]}'

def publish_pre(a):
    srd(a, SRD_E, P_WS, FL_OFF, 8 * 256 * 128)
    a.e('v_mov_b32 v136, 0', 'v_mov_b32 v137, 1', f's_cmp_eq_u32 s{S_LWV}, 0', f's_cselect_b32 s{SRD_E+2}, s{SRD_E+2}, 0')

def publish(a, vt=None):
    a.e('s_mov_b64 exec, 1', f'buffer_store_dword v137, v136, {S4(SRD_E)}, s{S_FLG} offen {SC}', 's_mov_b64 exec, -1')

def poll_setup(a, sr_, va, ph, dl, base_lines, n):
    srd(a, sr_, P_WS, FL_OFF, 8 * 256 * 128)
    a.e(*base_lines, f'v_min_u32 v{va}, {n-1}, v0', f'v_add_u32 v{va}, s{S_T0}, v{va}', f'v_max_i32 v{va}, 0, v{va}', f'v_lshlrev_b32 v{va}, 7, v{va}',
        f's_lshl_b32 s55, s{S_VAR}, 17', f's_add_u32 s55, s55, {(dl * 4 + ph) * 32768}')

def poll(a, sr_, va, vt, sleep=True):
    l = lab('poll')
    ld = lambda v: f'buffer_load_dword v{v}, v{va}, {S4(sr_)}, s55 offen {SC}'
    a.e(f's_mov_b32 s{S_CNT}, 0')
    if ONEP: a.e(f's_and_b32 s{S_T0}, s{S_WAVE}, 3', f's_cmp_lg_u32 s{S_T0}, 0', f's_cbranch_scc1 {l}d')
    if PS0: a.e(f's_sleep {PS0 if sleep else PS0 // 2}')
    if PP <= 1:
        a.loop([f'{l}:'] + ([f's_sleep {PS1}'] if PS1 else []) + [ld(vt), 's_waitcnt vmcnt(0)', f'v_cmp_eq_u32 vcc, 0, v{vt}',
                f's_add_u32 s{S_CNT}, s{S_CNT}, 1', f's_cmp_gt_u32 s{S_CNT}, {SPIN}', f's_cbranch_scc1 {l}d', f's_cbranch_vccnz {l}'])
    else:
        R = [214 + i for i in range(PP)]
        for i in range(PP - 1): a.e(ld(R[i]), f's_sleep {PSL}')
        body = [f'{l}:']
        for i in range(PP):
            body += [ld(R[(i + PP - 1) % PP]), f's_waitcnt vmcnt({PP-1})', f'v_cmp_eq_u32 vcc, 0, v{R[i]}', f's_cbranch_vccz {l}d']
        a.loop(body + [f's_add_u32 s{S_CNT}, s{S_CNT}, 1', f's_cmp_le_u32 s{S_CNT}, {SPIN}', f's_cbranch_scc1 {l}'])
    a.e(f'{l}d:')
    if ONEP: a.e('s_barrier')

def dma_groups(groups, lw_s):
    L = []
    for g in groups:
        L.append(f's_add_u32 m0, s{lw_s}, s{g["sg"]}')
        for (v, imm, st, ex) in g['dmas']:
            srdn, so, fl = (SRD_A, S_OA, LDF) if st == 'A' else (SRD_B, S_OB, '')
            if ex: L.append(f's_mov_b64 exec, {ex}')
            L.append(f'buffer_load_dwordx4 v{v}, {S4(srdn)}, s{so} offen offset:{imm} {fl} lds')
            if ex: L.append('s_mov_b64 exec, -1')
    return L

def issue(NK, NS, stage, base, stepA, stepB, gA, gW):
    L = next_k(NK)
    if gA: L += [f's_mul_i32 s{S_OA}, s{S_K}, {stepA}', f's_add_u32 s{S_OA}, s{S_OA}, s{S_BA}']
    if gW: L += [f's_mul_i32 s{S_OB}, s{S_K}, {stepB}', f's_add_u32 s{S_OB}, s{S_OB}, s{S_BB}']
    if not (EXP == 'nodma' and NK in (16, 32)): L += dma_groups(gA + gW, S_LW)
    L += [f's_add_u32 s{S_LW}, s{S_LW}, {stage}', f's_cmp_eq_u32 s{S_LW}, {base + NS*stage}', f's_cselect_b32 s{S_LW}, {base}, s{S_LW}']
    return L

def pre_w(a, NK, NS, AH, stage, base, stepB, gW):
    a.e(*INITK, f's_mov_b32 s{S_LW}, {base}')
    for s in range(AH): a.e(*issue(NK, NS, stage, base, 0, stepB, [], gW))

def l_loop(a, NK, NS, AH, stage, base, stepA, stepB, gA, gW, tail=0, hooks=(), early=(), st=False):
    nA = sum(len(g['dmas']) for g in gA); n = nA + sum(len(g['dmas']) for g in gW)
    lst = ['s_memrealtime s[58:59]', 's_waitcnt lgkmcnt(0)', 's_mov_b32 m0, s60', 's_add_u32 s60, s60, 1', 'v_writelane_b32 v255, s58, m0'] if st and PROF else []
    if lst: a.e(f's_lshl_b32 s60, s{S_VAR}, 5')
    iss = lambda: lst + issue(NK, NS, stage, base, stepA, stepB, gA, gW)
    t0 = 0
    if gA:
        a.e(*INITK, f's_mov_b32 s{S_LW}, {base}')
        for s in range(AH): a.e(*issue(NK, NS, stage, base, stepA, stepB, gA, []))
        for t in range(AH - 1):
            a.e(f's_waitcnt vmcnt({(AH - 1 - t) * nA + t * n})', 's_barrier', *iss())
        t0 = AH - 1
        if early: a.e(f'{early[0]}:', 's_nop 1')
        for h in early[1:]:
            a.e(f's_waitcnt vmcnt({(AH-1)*n})', 's_barrier', *iss()); h(n); t0 += 1
    l = lab('ll')
    a.e(f's_mov_b32 s{S_CNT}, {NK - AH - t0 - len(hooks)}')
    a.loop([f'{l}:', f's_waitcnt vmcnt({(AH-1)*n})', 's_barrier'] + iss() + [f's_sub_u32 s{S_CNT}, s{S_CNT}, 1', f's_cmp_lg_u32 s{S_CNT}, 0', f's_cbranch_scc1 {l}'])
    for h in hooks:
        a.e(f's_waitcnt vmcnt({(AH-1)*n})', 's_barrier', *iss()); h(n)
    for j in range(AH - tail):
        a.e(f's_waitcnt vmcnt({(AH-1-j)*n + (8 if hooks else 0)})', 's_barrier')

def c_loop(a, NK, NS, stage, reads, mfmas, addr_regs, late, st0, peel=None, extra0=(), fin=None):
    if EXP == 'noread': reads = [reads[0][:1], reads[1][:1]]
    if EXP == 'rp2': RP = 2
    adv = adv_s(NS, stage)
    advv = [f'v_add_u32 v{r}, s{S_DELTA}, v{r}' for r in addr_regs]
    a.e(f's_mov_b32 s{S_CUR}, 0', f's_mov_b32 s{S_CNT}, {NK - 1 - len(peel or [])}', 's_barrier', *stamp(st0))
    a.e(*reads[0]); a.e(*adv)
    q0 = [Ins(x).wr for x in reads[0]]
    def it(pre=(), post=()):
        q = list(q0)
        L = sched(mfmas[0], bundle(reads[1], advv), q, 1)
        if not late: L.append('s_waitcnt lgkmcnt(0)'); q.clear()
        L += list(pre) + ['s_barrier'] + list(post) + sched(mfmas[1], spread(reads[0], adv), q, 1)
        assert q == q0[len(q0) - len(q):]
        return L
    for p in peel or []: a.e(*it(*p))
    l = lab('cl')
    a.loop([f'{l}:'] + it() + [f's_sub_u32 s{S_CNT}, s{S_CNT}, 1', f's_cmp_lg_u32 s{S_CNT}, 0', f's_cbranch_scc1 {l}'])
    q = list(q0)
    a.e(*sched(mfmas[0], reads[1] + list(extra0), q, 1))
    if fin: a.e('s_waitcnt lgkmcnt(0)', *stamp(st0 + 1)); fin(mfmas[1])
    else: a.e(*sched(mfmas[1], [], q)); a.e('s_waitcnt lgkmcnt(0)', *stamp(st0 + 1))

S_LM, S_B0, S_B1 = 48, 49, 50
def c_direct(a, NK, NS, stage, reads, mf, addr_regs, DR, D, vaddr, init, st0, slots=None):
    R = NK // 8
    advv = lambda src: [f'v_add_u32 v{r}, {src}, v{r}' for r in addr_regs]
    def nk(t):
        p = t % 8
        L = []
        if p == 0 and t != 0: L += [f's_mov_b32 s{S_B0}, s{S_B1}', f's_add_u32 s{S_B1}, s{S_B1}, 32768', f's_cmp_eq_u32 s{S_B1}, s{S_T2}', f's_cselect_b32 s{S_B1}, s{S_BA}, s{S_B1}']
        return L + [f's_bitcmp1_b32 s{S_LM}, {p}', f's_cselect_b32 s{S_OA}, s{S_B1}, s{S_B0}', f's_add_u32 s{S_OA}, s{S_OA}, {p*4096}']
    ld = lambda slot, i: f'buffer_load_dwordx4 {vr(DR+16*slot+4*i,4)}, v{vaddr}, {S4(SRD_A)}, s{S_OA} offen offset:{1024*i} {LDF}'
    adv = [] if slots else adv_s(NS, stage)
    vq = []
    for sl in range(D):
        a.e(*nk(sl))
        for i in range(4 if sl < D - 1 else 2):
            a.e(ld(sl, i)); vq.append(Ins(ld(sl, i)).wr)
    init(4 * D - 2)
    a.e(f's_mov_b32 s{S_CUR}, 0', f's_mov_b32 s{S_CNT}, {R - 1}', 's_barrier', *stamp(st0))
    a.e(*reads[0]); a.e(*adv)
    q0 = [Ins(x).wr for x in reads[0]]
    def mix(items, loads, pos):
        items = [list(x) for x in items]
        for l, p in zip(loads, pos): items[p] = items[p] + [l]
        return items
    def step(t, vq, generic):
        slot = t % D
        q = list(q0)
        final = not generic and t == NK - 1
        l0 = [ld((slot - 1) % D, 2), ld((slot - 1) % D, 3)] if generic or t - 1 + D < NK else []
        av = [] if final else advv(f's{S_DELTA}' if not slots else (slots[t + 1] - slots[t]) & 0xffffffff)
        L = sched(mf(0, DR + 16 * slot), mix(bundle(reads[1], av), l0, (2, 6)), q, 1, vq=vq)
        if final: return L + sched(mf(1, DR + 16 * slot + 8), [], q, 1, vq=vq)
        more = generic or t + D < NK
        it = [[r] for r in reads[0]]
        sc = (nk(t + D) if more else []) + adv
        for i, x in enumerate(sc): it[min(i // 2, len(it) - 1)].append(x)
        l1 = [ld(slot, 0), ld(slot, 1)] if more else []
        return L + ([] if slots else ['s_barrier']) + sched(mf(1, DR + 16 * slot + 8), mix(it, l1, (4, 7)), q, 1, vq=vq)
    if slots:
        for t in range(NK): a.e(*step(t, vq, False))
    else:
        v1 = list(vq); l = lab('cd')
        body = [f'{l}:']
        for t in range(8, 16): body += step(t, v1, True)
        assert v1 == vq
        a.loop(body + [f's_sub_u32 s{S_CNT}, s{S_CNT}, 1', f's_cmp_lg_u32 s{S_CNT}, 0', f's_cbranch_scc1 {l}'])
        for t in range(NK - 8, NK): a.e(*step(t, vq, False))
    a.e('s_waitcnt lgkmcnt(0)', *stamp(st0 + 1))

def by_first_use(reads, mfmas):
    key = lambda r: min(i for i, m in enumerate(mfmas) if Ins(m).srcab & Ins(r).wr)
    return sorted(reads, key=key)

def chain_order(tiles_):
    return [(t, h ^ (i & 1)) for i, t in enumerate(tiles_) for h in (0, 1)]

def c_full(a, NK, NS, stage, reads, mf, addr_regs, st0):
    adv = adv_s(NS, stage)
    advv = [f'v_add_u32 v{r}, s{S_DELTA}, v{r}' for r in addr_regs]
    rd = [by_first_use(reads(p), mf(p)) for p in range(2)]
    a.e(f's_mov_b32 s{S_CUR}, 0', f's_mov_b32 s{S_CNT}, {(NK - 2) // 2}', *adv, 's_barrier', *stamp(st0))
    a.e(*rd[0], *advv)
    def it(p, last=False):
        q = [Ins(x).wr for x in rd[p]]
        if last: return sched(mf(p), [], q)
        f = bundle(rd[1 - p], advv)
        for i, x in enumerate(adv): f[i // 2].append(x)
        first_adv = min(i for i, b in enumerate(f) if any(y in advv for y in b))
        assert first_adv > 2
        return ['s_barrier'] + sched(mf(p), f, q, 1)
    l = lab('cf')
    a.loop([f'{l}:'] + it(0) + it(1) + [f's_sub_u32 s{S_CNT}, s{S_CNT}, 1', f's_cmp_lg_u32 s{S_CNT}, 0', f's_cbranch_scc1 {l}'])
    a.e(*it(0)); a.e(*it(1, True)); a.e('s_waitcnt lgkmcnt(0)', *stamp(st0 + 1))

def c_direct2(a, NK, NS, stage, reads, mf, addr_regs, DR, D, vaddr, init, st0, slots=None):
    R = NK // 8
    advv = lambda src: [f'v_add_u32 v{r}, {src}, v{r}' for r in addr_regs]
    def nk(t):
        p = t % 8
        L = []
        if p == 0 and t != 0: L += [f's_mov_b32 s{S_B0}, s{S_B1}', f's_add_u32 s{S_B1}, s{S_B1}, 32768', f's_cmp_eq_u32 s{S_B1}, s{S_T2}', f's_cselect_b32 s{S_B1}, s{S_BA}, s{S_B1}']
        return L + [f's_bitcmp1_b32 s{S_LM}, {p}', f's_cselect_b32 s{S_OA}, s{S_B1}, s{S_B0}', f's_add_u32 s{S_OA}, s{S_OA}, {p*4096}']
    ld = lambda slot, i: f'buffer_load_dwordx4 {vr(DR+16*slot+4*i,4)}, v{vaddr}, {S4(SRD_A)}, s{S_OA} offen offset:{1024*i} {LDF}'
    LO = (0, 2, 3, 1)
    adv = [] if slots else adv_s(NS, stage)
    rd = [by_first_use(reads(p), mf(p, DR)) for p in range(2)]
    dl = lambda t: f's{S_DELTA}' if not slots else (slots[t + 1] - slots[t]) & 0xffffffff
    vq = []
    for sl in range(D - 1):
        a.e(*nk(sl))
        for i in LO: a.e(ld(sl, i)); vq.append(Ins(ld(sl, i)).wr)
    init(4 * (D - 1))
    a.e(f's_mov_b32 s{S_CUR}, 0', f's_mov_b32 s{S_CNT}, {R - 1}', *adv, 's_barrier', *stamp(st0))
    a.e(*rd[0], *advv(dl(0)))
    def step(t, vq, generic):
        slot = t % D; p = t & 1
        q = [Ins(x).wr for x in rd[p]]
        if not generic and t == NK - 1: return sched(mf(p, DR + 16 * slot), [], q, 1, vq=vq)
        more = generic or t + D - 1 < NK
        f = bundle(rd[1 - p], advv(dl(t + 1)) if generic or t + 2 < NK else [])
        for i, x in enumerate(adv + (nk(t + D - 1) if more else [])): f[i // 2].append(x)
        if more:
            for i, pos in zip(LO, (6, 9, 12, 15)): f[pos].append(ld((slot - 1) % D, i))
        return ([] if slots else ['s_barrier']) + sched(mf(p, DR + 16 * slot), f, q, 1, vq=vq)
    if slots:
        for t in range(NK): a.e(*step(t, vq, False))
    else:
        v1 = list(vq); l = lab('cd')
        body = [f'{l}:']
        for t in range(8, 16): body += step(t, v1, True)
        assert v1 == vq
        a.loop(body + [f's_sub_u32 s{S_CNT}, s{S_CNT}, 1', f's_cmp_lg_u32 s{S_CNT}, 0', f's_cbranch_scc1 {l}'])
        for t in range(NK - 8, NK): a.e(*step(t, vq, False))
    a.e('s_waitcnt lgkmcnt(0)', *stamp(st0 + 1))

FB = (16, 188)
def w_reads2(regs): return lambda p: [f'ds_read_b64_tr_b16 {vr(FB[p]+16*h+4*n+2*q,2)}, v{regs[n]} offset:{h*4096+q*512}' for n in range(4) for h in range(2) for q in range(2)]
SN8 = [(n, x) for n in range(4) for x in ((0, 1) if n % 2 == 0 else (1, 0))]

def direct_setup(a, NK):
    a.e(f's_lshl_b32 s{S_LM}, 0x303, s{S_PHI}', f's_lshr_b32 s{S_LM}, s{S_LM}, 8', f's_mov_b32 s{S_B0}, s{S_BA}', f's_add_u32 s{S_B1}, s{S_BA}, 32768',
        f's_add_u32 s{S_T2}, s{S_BA}, {NK*4096}')

def w_reads(regs):
    return [[f'ds_read_b64_tr_b16 {vr(16+16*h+4*n+2*q,2)}, v{regs[n]} offset:{h*4096+q*512}' for n in range(4) for q in range(2)] for h in range(2)]

def sel(a, d, ptr0, off0, ptr1, off1, nbytes): G.srd_sel(a, d, ptr0, off0, ptr1, off1, nbytes)

XT = 18432; ST1 = XT + 24576; SL = 3 * ST1; QKV = ST1; PITCH = 400; PB = 72 * PITCH
WO_SLOTS = [131072 + 8192 * i for i in range(4)] + [100608 + 8192 * i for i in range(3)] + [8192 * i for i in range(5)] + [QKV + 8192 * i for i in range(4)]
K4_BASE, K4_NS, K4_AH = 98304, 8, 6
K4_SCR = 90112
D = 4; DR = 120
PF1 = int(env('PF1', '0'), 0); CPRIO = int(env('CPRIO', '0'))
NPF = int(env('NPF', '0')); K0W = int(env('K0W', '0')); W1_K0 = K0W * 256 * 64 * 128
REUSE = int(env('REUSE', '0')); WARM0 = int(env('WARM0', '1')); PF2N = int(env('PF2N', '14')); PF2D = int(env('PF2D', '1')); PF2S = int(env('PF2S', '0')); PF4 = int(env('PF4', '1')); PFT = int(env('PFT', '0')); PF3 = int(env('PF3', '0')); CODEPF = env('CODEPF', '0') == '1'; PF2 = env('PF2', '1') == '1'; LATEW = env('LATEW', '1') == '1'

def gen_mega(a):
    kn = 'mega'
    a.e('.p2align 8', f'{MEGA}:', 's_cmp_ge_u32 s2, 256', f's_cbranch_scc1 {kn}_end',
        's_load_dwordx16 s[64:79], s[0:1], 0', 's_load_dwordx2 s[80:81], s[0:1], 64', 's_load_dwordx2 s[84:85], s[0:1], 80', f's_load_dwordx2 s[{P_DB}:{P_DB+1}], s[0:1], 72',
        'v_lshrrev_b32 v1, 6, v0', 'v_and_b32 v0, 63, v0', f'v_readfirstlane_b32 s{S_WAVE}, v1', f's_mov_b32 s{S_VAR}, 0')
    if PROF: a.e(f'v_mov_b32 v{PV}, 0', *stamp(-1))
    a.e('v_mov_b32 v130, 0', 'v_mov_b32 v131, 0', 'v_mov_b32 v134, 0', f's_cmp_ge_u32 s{S_WAVE}, 4', f's_cbranch_scc1 L_start')

    ACC1 = 112
    def acc1(m, rt): return ACC1 + 36 * m + 4 * rt
    MK = 86; AK0, AK1, AQ, AV0, AV1, AO = 220, 221, 223, 222, 254, 1
    def attn_static():
        a.e(f's_lshr_b32 s{S_T1}, s{S_WAVE}, 1', f's_and_b32 s{S_T2}, s{S_WAVE}, 1',
            f's_mul_i32 s{S_T0}, s{S_T2}, {PB}', f's_add_u32 s{S_T0}, s{S_T0}, {QKV}', f's_lshl_b32 s{S_G0+5}, s{S_T1}, 4')
        a.e(f'v_add_u32 v76, s{S_G0+5}, v4', 'v_lshlrev_b32 v77, 4, v5', f'v_add_u32 v77, s{S_T0}, v77',
            f'v_mul_u32_u24 v78, {PITCH}, v76', f'v_add_u32 v{AK0}, v78, v77', f'v_add_u32 v{AQ}, {8*PITCH}, v{AK0}', f'v_add_u32 v{AK0}, 128, v{AK0}',
            'v_add_u32 v76, 16, v76', 'v_min_u32 v76, 71, v76', f'v_mul_u32_u24 v78, {PITCH}, v76', f'v_add3_u32 v{AK1}, v78, v77, 64', f'v_add_u32 v{AK1}, 64, v{AK1}')
        a.e('v_lshl_add_u32 v76, v5, 2, v6', f'v_add_u32 v76, s{S_G0+5}, v76', 'v_lshlrev_b32 v77, 4, v7', f'v_add_u32 v77, s{S_T0}, v77', 'v_add_u32 v77, 256, v77',
            f'v_mul_u32_u24 v78, {PITCH}, v76', f'v_add_u32 v{AV0}, v78, v77',
            'v_add_u32 v76, 16, v76', 'v_min_u32 v76, 71, v76', f'v_mul_u32_u24 v78, {PITCH}, v76', f'v_add_u32 v{AV1}, v78, v77')
        a.e(f's_lshl_b32 s{S_G0+6}, s{S_TI}, 2', f's_add_u32 s{S_G0+6}, s{S_G0+6}, s{S_T1}', f's_lshl_b32 s{S_G0+6}, s{S_G0+6}, 16',
            f's_lshl_b32 s{S_G0+7}, s{S_TJ}, 12', f's_add_u32 s{S_G0+6}, s{S_G0+6}, s{S_G0+7}', f's_lshl_b32 s{S_G0+7}, s{S_T2}, 10', f's_add_u32 s{S_G0+6}, s{S_G0+6}, s{S_G0+7}',
            f'v_lshlrev_b32 v{AO}, 4, v0', f'v_add_u32 v{AO}, s{S_G0+6}, v{AO}')
        a.e('v_lshlrev_b32 v76, 2, v5', 'v_sub_u32 v76, v76, v4', f's_or_b32 s{S_G0+7}, s{S_TI}, s{S_T1}', f's_cmp_eq_u32 s{S_G0+7}, 0', f's_cselect_b32 s{S_G0+7}, 0, -1')
        for k in range(8):
            a.e(f'v_add_u32 v77, {16 * (k >> 2) + (k & 3) - 1}, v76', f'v_cmp_gt_u32 s[{MK+2*k}:{MK+1+2*k}], 8, v77')
        for k in range(4): a.e(f's_and_b32 s{MK+2*k}, s{MK+2*k}, s{S_G0+7}')
    def k1_setup_c():
        tiles(a, 8, 1)
        lane_fields(a)
        tr128_addr(a, [8], XT, 21, 22)
        a.e(f's_lshl_b32 s{S_T0}, s{S_WAVE}, 5', f'v_xor_b32 v8, s{S_T0}, v8',
            'v_lshrrev_b32 v21, 1, v4', 'v_xor_b32 v21, v21, v5', 'v_lshlrev_b32 v21, 4, v21', 'v_lshlrev_b32 v22, 7, v4', 'v_add_u32 v9, v21, v22', 'v_xor_b32 v10, 64, v9',
            'v_and_b32 v21, 1, v4', f'v_mul_u32_u24 v21, {PB}, v21', 'v_lshrrev_b32 v22, 1, v4', f'v_mul_u32_u24 v22, {PITCH}, v22',
            'v_lshlrev_b32 v23, 3, v5', 'v_add3_u32 v11, v21, v22, v23', f's_add_u32 s{S_T0}, s{S_T0}, {QKV}',
            f'v_add_u32 v11, s{S_T0}, v11', 'v_lshlrev_b32 v12, 3, v4', f'v_add_u32 v12, {SL}, v12')
        for r in range(ACC1, ACC1 + 108, 2): a.e(f'v_mov_b64 {vr(r,2)}, 0')
    if CPRIO: a.e(f's_setprio {CPRIO}')
    k1_setup_c()
    attn_static()
    a.e('s_waitcnt lgkmcnt(0)', f's_mov_b32 s{P_WL}, s{P_WS}', f's_mov_b32 s{P_WL+1}, s{P_WS+1}')
    srd(a, SRD_B, P_WS, 0, 0)
    srd(a, SRD_D, P_WQKV, 0, 1024 * 3072 * 2 * WARM0)
    a.e(f's_cmp_eq_u32 s{S_WAVE}, 3', f's_cselect_b32 s{SRD_D}, s{P_WO}, s{SRD_D}', f's_cselect_b32 s{SRD_D+1}, s{P_WO+1}, s{SRD_D+1}', f's_cselect_b32 s{SRD_D+2}, {2*MB*WARM0}, s{SRD_D+2}',
        f's_cselect_b32 s47, 0, s{S_WAVE}', 's_lshl_b32 s47, s47, 8', 's_add_u32 s47, s47, s2', 's_lshl_b32 s47, s47, 13', 'v_lshlrev_b32 v13, 7, v0', 's_barrier')
    warm = f'buffer_load_dword v15, v13, {S4(SRD_D)}, s47 offen'
    def warm_if(w, l): return [f's_cmp_lg_u32 s51, {w}', f's_cbranch_scc1 {l}', warm, f'{l}:']
    a.e(f's_mov_b32 s51, s{S_WAVE}', *warm_if(0, 'C_wm0'))
    if CODEPF:
        a.e(f's_cmp_lg_u32 s{S_WAVE}, 3', 's_cbranch_scc1 C_nc', 's_getpc_b64 s[44:45]', 'C_pc:', 's_lshr_b32 s46, s2, 3', 's_lshl_b32 s46, s46, 11', 'v_and_b32 v16, 15, v0',
            'v_lshlrev_b32 v16, 7, v16', 'v_add_u32 v16, s46, v16', 'v_min_u32 v16, mega_end-C_pc, v16', 'global_load_dword v15, v16, s[44:45]', 'C_nc:')
    a.e('C_top:'); a.flush_hist()
    reads = [[], []]; mf = [[], []]
    for h in range(2):
        F = 16 + 48 * h
        ra = [[f'ds_read_b64_tr_b16 {vr(F+4*m,2)}, v8 offset:{m*8192+h*4096}', f'ds_read_b64_tr_b16 {vr(F+4*m+2,2)}, v8 offset:{m*8192+h*4096+512}'] for m in range(3)]
        rb = [f'ds_read_b128 {vr(F+12+4*rt,4)}, v{9+h} offset:{rt*2048}' for rt in range(9)]
        reads[h] = ra[0] + [rb[0]] + ra[1] + ra[2] + rb[1:]
        mf[h] = [f'{MF16} {vr(acc1(m,rt),4)}, {vr(F+4*m,4)}, {vr(F+12+4*rt,4)}, {vr(acc1(m,rt),4)}' for rt in range(9) for m in (range(3) if rt % 2 == 0 or not SNAKE else range(2, -1, -1))]
    peel = [([], warm_if(1, 'C_wm1')), ([], warm_if(2, 'C_wm2')), ([], warm_if(3, 'C_wm3'))]
    STR, CW = 224, 242
    def fold(rt, o):
        ms = [m for m in range(3) if not (m == 0 and rt == 0)]
        st = vr(STR + 2 * rt, 2); L = []
        for m in ms: L += [f'v_pk_fma_f32 {vr(acc1(m,rt)+e,2)}, {vr(CW+4*m+e,2)}, {st}, {vr(acc1(m,rt)+e,2)} op_sel_hi:[1,0,1] neg_lo:[0,1,0] neg_hi:[0,1,0]' for e in (0, 2)]
        for m in ms: L += [f'v_pk_mul_f32 {vr(acc1(m,rt)+e,2)}, {vr(acc1(m,rt)+e,2)}, {st} op_sel:[0,1] op_sel_hi:[1,1]' for e in (0, 2)]
        for i, m in enumerate(ms):
            d = acc1(m, rt); r = o + 2 * i
            L += [f'v_cvt_pk_bf16_f32 v{r}, v{d}, v{d+1}', f'v_cvt_pk_bf16_f32 v{r+1}, v{d+2}, v{d+3}', f'ds_write_b64 v11, {vr(r,2)} offset:{rt*8*PITCH+m*128}']
        return L
    def fin1(mfs, m0):
        work = [f'v_mov_b32_dpp v{CW+4*m+r}, v{acc1(m,0)+r} row_newbcast:0 row_mask:0xf bank_mask:0xf' for m in range(m0, 3) for r in range(4)]
        ready = [len(work)]
        for rt in range(9): work += fold(rt, 16 + 6 * (rt % 8)); ready.append(len(work))
        done = 0
        for i, m in enumerate(mfs):
            a.e(m)
            rt = (i + m0) // 3 - 1
            lim = ready[rt + 1] if rt >= 0 else 0
            n = min(lim - done, 7)
            if n > 0: a.e(*work[done:done + n]); done += n
        a.e('s_barrier')
        a.e(*work[done:])
    sreads = [f'ds_read_b64 {vr(STR+2*rt,2)}, v12 offset:{rt*128}' for rt in range(9)]
    c_loop(a, 16, 3, ST1, reads, mf, [8, 9, 10], False, 0, peel, sreads, lambda mfs: fin1(mfs, 0))
    if CWREUSE:
        a.e('s_branch attn', 'C_top1:'); a.flush_hist()
        c_loop(a, 16, 3, ST1, reads, [x[1:] for x in mf], [8, 9, 10], False, 0, None, sreads, lambda mfs: fin1(mfs, 1))
    a.e('attn:'); a.flush_hist()
    cs = (32 ** -0.5) * 1.4426950408889634
    a.e(f'v_mov_b32 v18, {f32(cs)}', 'v_mov_b32 v19, 0xff800000')
    srd(a, SRD_D, P_WL, O_OFF, XB)
    a.e('s_waitcnt lgkmcnt(0)', 's_barrier')
    B = [32, 80]
    for hd in range(2):
        b = B[hd]; o = 64 * hd
        a.e(f'ds_read_b128 {vr(b,4)}, v{AQ} offset:{o}', f'ds_read_b128 {vr(b+4,4)}, v{AK0} offset:{o}', f'ds_read_b128 {vr(b+8,4)}, v{AK1} offset:{o}')
    for hd in range(2):
        b = B[hd]; o = 64 * hd
        for dt in range(2): a.e(f'ds_read_b64_tr_b16 {vr(b+12+4*dt,2)}, v{AV0} offset:{o+8*dt}', f'ds_read_b64_tr_b16 {vr(b+14+4*dt,2)}, v{AV1} offset:{o+8*dt}')
    for hd in range(2):
        b = B[hd]
        a.e(f's_waitcnt lgkmcnt({11 - 3*hd})', f'{MF16} {vr(b+20,4)}, {vr(b+4,4)}, {vr(b,4)}, 0', f'{MF16} {vr(b+24,4)}, {vr(b+8,4)}, {vr(b,4)}, 0')
    def both(f):
        for x, y in zip(f(B[0]), f(B[1])): a.e(x, y)
    both(lambda b: [f'v_cndmask_b32 v{b+20+k}, v19, v{b+20+k}, s[{MK+2*k}:{MK+1+2*k}]' for k in range(8)])
    both(lambda b: [f'v_max3_f32 v{b+28}, v{b+20}, v{b+21}, v{b+22}', f'v_max3_f32 v{b+29}, v{b+23}, v{b+24}, v{b+25}',
                    f'v_max3_f32 v{b+28}, v{b+28}, v{b+26}, v{b+27}', f'v_max_f32 v{b+28}, v{b+28}, v{b+29}', f'v_mov_b32 v{b+29}, v{b+28}',
                    f'v_permlane16_swap_b32 v{b+28}, v{b+29}', f'v_max_f32 v{b+28}, v{b+28}, v{b+29}', f'v_mov_b32 v{b+29}, v{b+28}',
                    f'v_permlane32_swap_b32 v{b+28}, v{b+29}', f'v_max_f32 v{b+28}, v{b+28}, v{b+29}', f'v_mul_f32 v{b+28}, v18, v{b+28}'])
    both(lambda b: [f'v_fma_f32 v{b+20+k}, v{b+20+k}, v18, -v{b+28}' for k in range(8)])
    both(lambda b: [f'v_exp_f32 v{b+20+k}, v{b+20+k}' for k in range(8)])
    both(lambda b: [f'v_pk_add_f32 {vr(b+28,2)}, {vr(b+20,2)}, {vr(b+22,2)}', f'v_pk_add_f32 {vr(b+30,2)}, {vr(b+24,2)}, {vr(b+26,2)}',
                    f'v_pk_add_f32 {vr(b+28,2)}, {vr(b+28,2)}, {vr(b+30,2)}', f'v_add_f32 v{b+28}, v{b+28}, v{b+29}', f'v_mov_b32 v{b+29}, v{b+28}',
                    f'v_permlane16_swap_b32 v{b+28}, v{b+29}', f'v_add_f32 v{b+28}, v{b+28}, v{b+29}', f'v_mov_b32 v{b+29}, v{b+28}',
                    f'v_permlane32_swap_b32 v{b+28}, v{b+29}', f'v_add_f32 v{b+28}, v{b+28}, v{b+29}', f'v_rcp_f32 v{b+28}, v{b+28}'])
    both(lambda b: [f'v_pk_mul_f32 {vr(b+20+e,2)}, {vr(b+20+e,2)}, {vr(b+28,2)} op_sel_hi:[1,0]' for e in range(0, 8, 2)])
    both(lambda b: [f'v_cvt_pk_bf16_f32 v{b+32+e}, v{b+20+2*e}, v{b+21+2*e}' for e in range(4)])
    a.e('s_waitcnt lgkmcnt(0)')
    both(lambda b: [f'{MF16} {vr(b+36+4*dt,4)}, {vr(b+12+4*dt,4)}, {vr(b+32,4)}, 0' for dt in range(2)])
    both(lambda b: [f'v_cvt_pk_bf16_f32 v{b+e}, v{b+36+2*e}, v{b+37+2*e}' for e in range(4)])
    for hd in range(2): a.e(f'buffer_store_dwordx4 {vr(B[hd],4)}, v{AO}, {S4(SRD_D)}, 0 offen offset:{2048*hd} {SC}')
    a.e(f's_cmp_ge_u32 s{S_WAVE}, 4', 's_cbranch_scc1 L_k1done')

    ACC = 48; RES = 96
    def acc2(t, b): return ACC + 16 * b + 4 * t
    a.e(f's_lshl_b32 s{S_T0}, s{S_TI}, 2', f's_add_u32 s{S_T0}, s{S_T0}, s{S_WAVE}', f's_lshl_b32 s{S_BA}, s{S_T0}, 16', f's_lshl_b32 s{S_T1}, s{S_T0}, 5',
        'v_lshlrev_b32 v13, 1, v4', f'v_add_u32 v13, s{S_T1}, v13',
        'v_lshlrev_b32 v12, 11, v13', 'v_lshl_add_u32 v12, v3, 4, v12', f's_lshl_b32 s{S_T0}, s{S_TJ}, 7', f'v_add_u32 v12, s{S_T0}, v12', 'v_lshlrev_b32 v14, 4, v0')
    srd(a, SRD_A, P_WL, O_OFF, XB)
    sel(a, SRD_C, P_X, 0, P_WS, X2_OFF, XB)
    sel(a, SRD_B, P_WS, 0, P_WS, LSTR, 0); a.e(f's_add_u32 s{SRD_B}, s{SRD_B}, {ST_OFF}', f's_addc_u32 s{SRD_B+1}, s{SRD_B+1}, 0', f's_mov_b32 s{SRD_B+2}, {16*2048*8}')
    tr128_addr(a, [8, 9, 10, 11], WO_SLOTS[0], 16, 17)
    a.e('v_add_u32 v16, v13, v2', 'v_lshlrev_b32 v16, 3, v16', f's_lshl_b32 s{S_T0}, s{S_TJ}, 14', f'v_add_u32 v112, s{S_T0}, v16',
        'v_lshrrev_b32 v17, 5, v0', 'v_lshlrev_b32 v17, 17, v17', 'v_add_u32 v113, v16, v17')
    a.e(f's_lshl_b32 s{S_T0}, s{S_WAVE}, 12', 'v_lshlrev_b32 v16, 8, v4', 'v_lshl_add_u32 v16, v5, 3, v16', f'v_add_u32 v16, s{S_T0}, v16',
        'v_and_b32 v17, 1, v4', 'v_bfe_u32 v18, v4, 2, 1', 'v_lshl_or_b32 v17, v18, 1, v17', 'v_lshl_add_u32 v114, v17, 5, v16',
        f's_lshl_b32 s{S_G0}, s{S_TJ}, 8', f's_lshl_b32 s{S_T1}, s{S_TI}, 2', f's_add_u32 s{S_G0}, s{S_G0}, s{S_T1}', f's_add_u32 s{S_G0}, s{S_G0}, s{S_WAVE}', f's_lshl_b32 s{S_G0}, s{S_G0}, 10')
    tr128_addr(a, [115], 0, 16, 17)
    a.e(f'v_add_u32 v115, s{S_T0}, v115')
    for t in range(1, 4): a.e(f's_add_u32 s{S_G0+t}, s{S_G0}, {t*65536}')
    for p in range(1, 8): a.e(f'v_add_u32 v{79+p}, {p*16384}, v113')
    direct_setup(a, 16)
    poll_setup(a, SRD_E, 119, 0, 0, [f's_lshl_b32 s{S_T0}, s{S_TI}, 4'], 16)
    a.e('s_waitcnt vmcnt(0)', 's_barrier', *stamp(2))
    for b in range(2):
        for P in range(2): a.e(f'buffer_load_dwordx4 {vr(RES+8*b+4*P,4)}, v12, {S4(SRD_C)}, 0 offen offset:{b*2048+P*64} {LDF}')
    poll(a, SRD_E, 119, 16)
    a.e(*stamp(3))
    def init2(out):
        a.e(f's_waitcnt vmcnt({out})')
        for b in range(2):
            for P in range(2):
                r = RES + 8 * b + 4 * P
                a.e(f'v_permlane16_swap_b32 v{r}, v{r+2}', f'v_permlane16_swap_b32 v{r+1}, v{r+3}')
        for b in range(2):
            for P in range(2):
                r = RES + 8 * b + 4 * P
                a.e(*unpack4(r, r + 1, acc2(2 * P, b)), *unpack4(r + 2, r + 3, acc2(2 * P + 1, b)))
    mf2 = lambda h, bb: [f'{MF16} {vr(acc2(t,b),4)}, {vr(16+16*h+4*t,4)}, {vr(bb+4*b,4)}, {vr(acc2(t,b),4)}' for t in range(4) for b in ((0, 1) if t % 2 == 0 or not SNAKE else (1, 0))]
    if CHAIN & 2:
        mc2 = lambda p, bb: [f'{MF16} {vr(acc2(t,b),4)}, {vr(FB[p]+16*h+4*t,4)}, {vr(bb+8*h+4*b,4)}, {vr(acc2(t,b),4)}' for (t, b), h in chain_order(SN8)]
        c_direct2(a, 16, 0, 0, w_reads2([8, 9, 10, 11]), mc2, [8, 9, 10, 11], DR, D, 14, init2, 4, slots=WO_SLOTS)
    else: c_direct(a, 16, 0, 0, w_reads([8, 9, 10, 11]), mf2, [8, 9, 10, 11], DR, D, 14, init2, 4, slots=WO_SLOTS)
    a.e('s_barrier')
    srd(a, SRD_D, P_WL, X1_OFF, XB)
    srd(a, SRD_E, P_WL, H_OFF, XB)
    for b in range(2):
        d = acc2(0, b); T = 16 + 4 * b
        a.e(f'v_pk_add_f32 {vr(T,2)}, {vr(d,2)}, {vr(d+2,2)}', f'v_pk_mul_f32 {vr(T+2,2)}, {vr(d,2)}, {vr(d,2)}', f'v_pk_fma_f32 {vr(T+2,2)}, {vr(d+2,2)}, {vr(d+2,2)}, {vr(T+2,2)}')
        for e in range(4, 16, 2):
            a.e(f'v_pk_add_f32 {vr(T,2)}, {vr(T,2)}, {vr(d+e,2)}', f'v_pk_fma_f32 {vr(T+2,2)}, {vr(d+e,2)}, {vr(d+e,2)}, {vr(T+2,2)}')
        a.e(f'v_add_f32 v{24+b}, v{T}, v{T+1}', f'v_add_f32 v{26+b}, v{T+2}, v{T+3}')
    a.e('v_permlane16_swap_b32 v24, v25', 'v_permlane16_swap_b32 v26, v27', 'v_add_f32 v28, v24, v25', 'v_add_f32 v29, v26, v27',
        'v_mov_b32 v30, v28', 'v_mov_b32 v31, v29', 'v_permlane32_swap_b32 v28, v30', 'v_permlane32_swap_b32 v29, v31',
        'v_add_f32 v28, v28, v30', 'v_add_f32 v29, v29, v31', 'v_and_b32 v29, 0x7fffffff, v29',
        's_mov_b32 exec_hi, 0', f'buffer_store_dwordx2 v[28:29], v112, {S4(SRD_B)}, 0 offen {SC}', 's_mov_b64 exec, -1')
    for b in range(2):
        for t in range(4):
            r = RES + 8 * b + 2 * t; d = acc2(t, b)
            a.e(f'v_cvt_pk_bf16_f32 v{r}, v{d}, v{d+1}', f'v_cvt_pk_bf16_f32 v{r+1}, v{d+2}, v{d+3}')
    for b in range(2):
        for P in range(2):
            r = RES + 8 * b + 4 * P
            a.e(f'v_permlane16_swap_b32 v{r}, v{r+2}', f'v_permlane16_swap_b32 v{r+1}, v{r+3}')
    for t in range(1, 4): a.e(f'v_xor_b32 v{115+t}, {t << 5}, v115', f'v_xor_b32 v{120+t}, {t << 5}, v114')
    a.e('v_mov_b32 v120, v114', f's_mov_b32 s{S_CNT}, 0')
    body = ['k2_poll:'] + [f'buffer_load_dwordx2 {vr(32+2*p,2)}, v{113 if p == 0 else 79+p}, {S4(SRD_B)}, 0 offen {SC}' for p in range(8)]
    body += ['s_waitcnt vmcnt(0)', 'v_min3_i32 v16, v33, v35, v37', 'v_min3_i32 v17, v39, v41, v43', 'v_min3_i32 v16, v16, v45, v47',
             'v_min_i32 v16, v16, v17', 'v_cmp_gt_i32 vcc, 0, v16', f's_add_u32 s{S_CNT}, s{S_CNT}, 1', f's_cmp_gt_u32 s{S_CNT}, {SPIN}',
             's_cbranch_scc1 k2_pdone', 's_cbranch_vccnz k2_poll']
    a.loop(body)
    a.e('k2_pdone:', *stamp(6))
    for b in range(2):
        for P in range(2): a.e(f'buffer_store_dwordx4 {vr(RES+8*b+4*P,4)}, v12, {S4(SRD_D)}, 0 offen offset:{b*2048+P*64} {SC}')
    a.e('v_pk_add_f32 v[32:33], v[32:33], v[34:35]', 'v_pk_add_f32 v[36:37], v[36:37], v[38:39]', 'v_pk_add_f32 v[40:41], v[40:41], v[42:43]',
        'v_pk_add_f32 v[44:45], v[44:45], v[46:47]', 'v_pk_add_f32 v[32:33], v[32:33], v[36:37]', 'v_pk_add_f32 v[40:41], v[40:41], v[44:45]',
        'v_pk_add_f32 v[32:33], v[32:33], v[40:41]', 'v_mov_b32 v34, v32', 'v_mov_b32 v35, v33',
        'v_permlane32_swap_b32 v32, v34', 'v_permlane32_swap_b32 v33, v35', 'v_add_f32 v32, v32, v34', 'v_add_f32 v33, v33, v35')
    stats_finish(a, 32, 33, 36, True)
    a.e('v_mov_b32 v34, v32', 'v_mov_b32 v35, v33', 'v_permlane16_swap_b32 v32, v34', 'v_permlane16_swap_b32 v33, v35')
    for b in range(2):
        st = vr(32 + 2 * b, 2); d = acc2(0, b); o = 160 + 8 * b
        for e in range(0, 16, 2): a.e(f'v_pk_add_f32 {vr(d+e,2)}, {vr(d+e,2)}, {st} op_sel_hi:[1,0] neg_lo:[0,1] neg_hi:[0,1]')
        for e in range(0, 16, 2): a.e(f'v_pk_mul_f32 {vr(d+e,2)}, {vr(d+e,2)}, {st} op_sel:[0,1] op_sel_hi:[1,1]')
        for t in range(4):
            a.e(f'v_cvt_pk_bf16_f32 v{o+2*t}, v{d+4*t}, v{d+4*t+1}', f'v_cvt_pk_bf16_f32 v{o+2*t+1}, v{d+4*t+2}, v{d+4*t+3}',
                f'ds_write_b64 v{120+t}, {vr(o+2*t,2)} offset:{128*b}')
    a.e('s_waitcnt lgkmcnt(0)')
    for t in range(4): a.e(f'ds_read_b64_tr_b16 {vr(176+4*t,2)}, v{115+t}', f'ds_read_b64_tr_b16 {vr(178+4*t,2)}, v{115+t} offset:512')
    for t in range(4): a.e(f's_waitcnt lgkmcnt({6-2*t})', f'buffer_store_dwordx4 {vr(176+4*t,4)}, v14, {S4(SRD_E)}, s{S_G0+t} offen {SC}')
    a.e('s_cmp_ge_u32 s2, 224', 's_cbranch_scc1 C_k3skip')

    ACC3 = 80
    def acc3(tf, td): return ACC3 + 16 * td + 4 * tf
    tiles(a, 7, 2)
    a.e(f's_and_b32 s{S_G0+2}, s{S_WAVE}, 1', f's_lshr_b32 s{S_T2}, s{S_WAVE}, 1',
        f's_lshl_b32 s{S_T0}, s{S_TJ}, 8', f's_lshl_b32 s{S_G0}, s{S_G0+2}, 7', f's_add_u32 s{S_T0}, s{S_T0}, s{S_G0}',
        'v_lshlrev_b32 v16, 3, v5', f'v_add_u32 v16, s{S_T0}, v16')
    srd(a, SRD_C, P_B1, 0, 3584 * 2)
    for tf in range(4): a.e(f'buffer_load_dwordx2 {vr(144+2*tf,2)}, v16, {S4(SRD_C)}, 0 offen offset:{32*tf}')
    srd(a, SRD_D, P_WL, U_OFF, UB)
    a.e('v_lshl_add_u32 v17, v5, 3, v6', 'v_lshlrev_b32 v17, 8, v17', 'v_lshl_add_u32 v17, v7, 3, v17', 'v_lshl_or_b32 v18, v2, 2, v6', 'v_lshl_add_u32 v17, v18, 5, v17',
        f's_lshl_b32 s{S_T0}, s{S_G0+2}, 7', f's_add_u32 s{S_T0}, s{S_T0}, 16384', f'v_xor_b32 v18, s{S_T0}, v17', f's_lshl_b32 s{S_T0}, s{S_T2}, 13', f'v_add_u32 v12, s{S_T0}, v14')
    for t in range(4): a.e(f'v_xor_b32 v{8+t}, {t << 5}, v18')
    a.e('v_bfe_u32 v17, v4, 2, 1', 'v_lshlrev_b32 v17, 10, v17', 'v_lshl_add_u32 v17, v3, 8, v17', 'v_lshrrev_b32 v18, 3, v4', 'v_lshl_add_u32 v17, v18, 6, v17',
        'v_lshl_add_u32 v152, v7, 4, v17', 'v_add_u32 v153, 128, v152',
        f's_lshl_b32 s{S_T0}, s{S_TI}, 1', f's_add_u32 s{S_T0}, s{S_T0}, s{S_T2}', f's_mul_i32 s{S_T0}, s{S_T0}, 224',
        f's_lshl_b32 s{S_G0}, s{S_TJ}, 2', f's_add_u32 s{S_T0}, s{S_T0}, s{S_G0}', f's_lshl_b32 s{S_G0}, s{S_G0+2}, 1', f's_add_u32 s{S_T0}, s{S_T0}, s{S_G0}',
        f's_lshl_b32 s{S_G0}, s{S_T0}, 11', f's_add_u32 s{S_G0+1}, s{S_G0}, {112*2048}')
    a.e('s_waitcnt vmcnt(0)', 's_barrier', *stamp(7))
    for tf in range(4):
        a.e(*unpack4(144 + 2 * tf, 145 + 2 * tf, acc3(tf, 0)))
        for td in range(1, 4): a.e(f'v_mov_b64 {vr(acc3(tf,td),2)}, {vr(acc3(tf,0),2)}', f'v_mov_b64 {vr(acc3(tf,td)+2,2)}, {vr(acc3(tf,0)+2,2)}')
    reads = [[], []]; mf = [[], []]
    for h in range(2):
        F = 16 + 32 * h
        rd = lambda dst, av: [f'ds_read_b64_tr_b16 {vr(dst,2)}, v{av} offset:{h*8192}', f'ds_read_b64_tr_b16 {vr(dst+2,2)}, v{av} offset:{h*8192+1024}']
        ra = [rd(F + 4 * t, 8 + t) for t in range(4)]
        rb = [[f'ds_read_b128 {vr(F+16+4*t,4)}, v12 offset:{(2*t+h)*1024}'] for t in range(4)]
        if SNAKE:
            reads[h] = ra[0] + rb[0] + rb[1] + ra[1] + ra[2] + rb[2] + rb[3] + ra[3]
            order = [(0,0),(0,1),(1,1),(1,0),(2,0),(2,1),(2,2),(1,2),(0,2),(0,3),(1,3),(2,3),(3,3),(3,2),(3,1),(3,0)]
        else:
            for t in range(4): reads[h] += ra[t] + rb[t]
            order = sorted([(tf, td) for tf in range(4) for td in range(4)], key=lambda x: (max(x), x))
        for tf, td in order:
            mf[h].append(f'{MF16} {vr(acc3(tf,td),4)}, {vr(F+4*tf,4)}, {vr(F+16+4*td,4)}, {vr(acc3(tf,td),4)}')
    if ONEP: a.e('s_barrier')
    if CHAIN & 1:
        F3 = (16, 156)
        r3 = lambda p: [f'ds_read_b64_tr_b16 {vr(F3[p]+32*h+4*t+2*q,2)}, v{8+t} offset:{h*8192+q*1024}' for t in range(4) for h in range(2) for q in range(2)] + \
                       [f'ds_read_b128 {vr(F3[p]+32*h+16+4*t,4)}, v12 offset:{(2*t+h)*1024}' for t in range(4) for h in range(2)]
        m3 = lambda p: [f'{MF16} {vr(acc3(tf,td),4)}, {vr(F3[p]+32*h+4*tf,4)}, {vr(F3[p]+32*h+16+4*td,4)}, {vr(acc3(tf,td),4)}' for (tf, td), h in chain_order(order)]
        c_full(a, 32, 5, 32768, r3, m3, list(range(8, 13)), 8)
    else: c_loop(a, 32, 5, 32768, reads, mf, list(range(8, 13)), True, 8)
    c1 = -2.0 * 0.7978845608028654 * 1.4426950408889634
    a.e(f'v_mov_b32 v16, {f32(c1)}', f'v_mov_b32 v17, {f32(c1 * 0.044715)}')
    k = 0
    for td in range(4):
        for P in range(2):
            d = acc3(2 * P, td); T = 24 + 16 * (k & 1); k += 1
            O = 160 + 4 * k
            for e in range(0, 8, 2): a.e(f'v_pk_mul_f32 {vr(T+e,2)}, {vr(d+e,2)}, {vr(d+e,2)}')
            for e in range(0, 8, 2): a.e(f'v_pk_fma_f32 {vr(T+e,2)}, {vr(T+e,2)}, v[16:17], v[16:17] op_sel:[0,1,0] op_sel_hi:[1,1,0]')
            for e in range(0, 8, 2): a.e(f'v_pk_mul_f32 {vr(T+e,2)}, {vr(T+e,2)}, {vr(d+e,2)}')
            for e in range(8): a.e(f'v_exp_f32 v{T+e}, v{T+e}')
            for e in range(0, 8, 2): a.e(f'v_pk_add_f32 {vr(T+e,2)}, {vr(T+e,2)}, 1.0 op_sel_hi:[1,0]')
            for e in range(8): a.e(f'v_rcp_f32 v{T+e}, v{T+e}')
            for e in range(0, 8, 2): a.e(f'v_pk_mul_f32 {vr(T+e,2)}, {vr(T+e,2)}, {vr(d+e,2)}')
            for e in range(4): a.e(f'v_cvt_pk_bf16_f32 v{O+e}, v{T+2*e}, v{T+2*e+1}')
            a.e(f'v_permlane16_swap_b32 v{O}, v{O+2}', f'v_permlane16_swap_b32 v{O+1}, v{O+3}')
            a.e(f'buffer_store_dwordx4 {vr(O,4)}, v{152+(td&1)}, {S4(SRD_D)}, s{S_G0+(td>>1)} offen offset:{2048*P} {SC}')
    a.e('C_k3skip:'); a.flush_hist()

    def acc4(aa, n): return ACC + 8 * n + 4 * aa
    tiles(a, 8, 2)
    a.e(f's_lshl_b32 s{S_T0}, s{S_TJ}, 6', f'v_add_u32 v13, s{S_T0}, v4', 'v_lshlrev_b32 v12, 11, v13', 'v_lshl_add_u32 v12, v5, 4, v12',
        f's_lshl_b32 s{S_T0}, s{S_TI}, 8', f's_lshl_b32 s{S_T1}, s{S_WAVE}, 6', f's_add_u32 s{S_T0}, s{S_T0}, s{S_T1}',
        f'v_add_u32 v12, s{S_T0}, v12', 'v_lshlrev_b32 v13, 1, v13', 'v_lshlrev_b32 v14, 4, v0',
        f's_lshl_b32 s{S_BA}, s{S_TI}, 2', f's_add_u32 s{S_BA}, s{S_BA}, s{S_WAVE}', f's_mul_i32 s{S_BA}, s{S_BA}, {56*4096}',
        's_mov_b32 s45, 32768', 's_mov_b32 s46, 65536', 's_mov_b32 s47, 98304')
    so = ['0', 's45', 's46', 's47']
    srd(a, SRD_A, P_WL, U_OFF, UB)
    srd(a, SRD_C, P_WL, X1_OFF, XB)
    srd(a, SRD_B, P_B2, 0, 4096)
    for n in range(4): a.e(f'buffer_load_ushort v{RES+16+2*n}, v13, {S4(SRD_B)}, 0 offen offset:{32*n}')
    tr128_addr(a, [8, 9, 10, 11], K4_BASE, 16, 17)
    direct_setup(a, 56)
    a.e('v_lshlrev_b32 v184, 3, v0', f's_lshl_b32 s{S_T0}, s{S_WAVE}, 9', f's_add_u32 s{S_T0}, s{S_T0}, {K4_SCR}', f'v_add_u32 v185, s{S_T0}, v184')
    poll_setup(a, SRD_E, 15, 2, 0, [f's_lshl_b32 s{S_T0}, s{S_TI}, 5'], 28)
    a.e('s_waitcnt vmcnt(0)', 's_barrier', *stamp(10))
    if PF2:
        a.e('s_cmp_lt_u32 s2, 224', 's_cbranch_scc1 C_nopf', f's_cmp_lg_u32 s{S_VAR}, 0', 's_cbranch_scc1 C_nopf')
        srd(a, SRD_D, P_W2, 0, 3584 * 2048 * 2)
        a.e(f's_sub_u32 s{S_T0}, s2, 224', f's_lshl_b32 s{S_T0}, s{S_T0}, 2', f's_add_u32 s{S_T0}, s{S_T0}, s{S_WAVE}', f's_lshl_b32 s{S_T0}, s{S_T0}, 13', 'v_lshlrev_b32 v17, 7, v0')
        for j in range(PF2D): a.e('s_sleep 127')
        for j in range(PF2N):
            if PF2S: a.e(f's_sleep {PF2S}')
            a.e(f'buffer_load_dword v18, v17, {S4(SRD_D)}, s{S_T0} offen', f's_add_u32 s{S_T0}, s{S_T0}, {128*8192}', *(['s_waitcnt vmcnt(1)'] if j else []))
        a.e('C_nopf:')
    poll(a, SRD_E, 15, 16)
    a.e(*stamp(11))
    for n in range(4): a.e(f'buffer_load_dwordx4 {vr(RES+4*n,4)}, v12, {S4(SRD_C)}, {so[n]} offen {LDF}')
    sel(a, SRD_E, P_WS, X2_OFF, P_OUT, 0, XB)
    srd(a, SRD_B, P_WS, LSTR + RS_OFF, 8 * 2048 * 8)
    def init4(out):
        a.e(f's_waitcnt vmcnt({out})')
        for n in range(4):
            a.e(f'v_lshlrev_b32 v{RES+16+2*n}, 16, v{RES+16+2*n}')
            a.e(*unpack4(RES + 4 * n, RES + 4 * n + 1, acc4(0, n)), *unpack4(RES + 4 * n + 2, RES + 4 * n + 3, acc4(1, n)))
            for e in range(0, 8, 2): a.e(f'v_pk_add_f32 {vr(acc4(0,n)+e,2)}, {vr(acc4(0,n)+e,2)}, {vr(RES+16+2*n,2)} op_sel_hi:[1,0]')
    mf4 = lambda h, b: [f'{MF16} {vr(acc4(aa,n),4)}, {vr(b+4*aa,4)}, {vr(16+16*h+4*n,4)}, {vr(acc4(aa,n),4)}' for n in range(4) for aa in ((0, 1) if n % 2 == 0 or not SNAKE else (1, 0))]
    if CHAIN & 4:
        mc4 = lambda p, bb: [f'{MF16} {vr(acc4(aa,n),4)}, {vr(bb+8*h+4*aa,4)}, {vr(FB[p]+16*h+4*n,4)}, {vr(acc4(aa,n),4)}' for (n, aa), h in chain_order(SN8)]
        c_direct2(a, 56, K4_NS, 8192, w_reads2([8, 9, 10, 11]), mc4, [8, 9, 10, 11], DR, D, 14, init4, 12)
    else: c_direct(a, 56, K4_NS, 8192, w_reads([8, 9, 10, 11]), mf4, [8, 9, 10, 11], DR, D, 14, init4, 12)
    def st4():
        for n in range(4):
            for e in range(4): a.e(f'v_cvt_pk_bf16_f32 v{RES+4*n+e}, v{acc4(0,n)+2*e}, v{acc4(0,n)+2*e+1}')
            a.e(f'buffer_store_dwordx4 {vr(RES+4*n,4)}, v12, {S4(SRD_E)}, {so[n]} offen {SC}')
    a.e(f's_cmp_eq_u32 s{S_VAR}, 0', 's_cbranch_scc1 C_st')
    st4()
    a.e('s_branch C_end', 'C_st:', 's_nop 7')
    for n in range(4):
        d = acc4(0, n); T = 16 + 4 * n
        a.e(f'v_pk_add_f32 {vr(T,2)}, {vr(d,2)}, {vr(d+2,2)}', f'v_pk_mul_f32 {vr(T+2,2)}, {vr(d,2)}, {vr(d,2)}', f'v_pk_fma_f32 {vr(T+2,2)}, {vr(d+2,2)}, {vr(d+2,2)}, {vr(T+2,2)}')
        for e in (4, 6): a.e(f'v_pk_add_f32 {vr(T,2)}, {vr(T,2)}, {vr(d+e,2)}', f'v_pk_fma_f32 {vr(T+2,2)}, {vr(d+e,2)}, {vr(d+e,2)}, {vr(T+2,2)}')
        a.e(f'v_add_f32 v{32+n}, v{T}, v{T+1}', f'v_add_f32 v{36+n}, v{T+2}, v{T+3}')
    for b in (32, 36): a.e(f'v_permlane16_swap_b32 v{b}, v{b+1}', f'v_permlane16_swap_b32 v{b+2}, v{b+3}')
    for b in (32, 36): a.e(f'v_add_f32 v{b}, v{b}, v{b+1}', f'v_add_f32 v{b+2}, v{b+2}, v{b+3}')
    a.e('v_permlane32_swap_b32 v32, v34', 'v_permlane32_swap_b32 v36, v38', 'v_add_f32 v40, v32, v34', 'v_add_f32 v41, v36, v38',
        'ds_write_b64 v185, v[40:41]', f's_lshl_b32 s{S_T0}, s{S_TI}, 14', f's_lshl_b32 s{S_T1}, s{S_TJ}, 9', f's_add_u32 s{S_T0}, s{S_T0}, s{S_T1}',
        's_waitcnt lgkmcnt(0)', 's_barrier',
        f's_cmp_lg_u32 s{S_WAVE}, 0', 's_cbranch_scc1 C_nost',
        'ds_read_b64 v[44:45], v185 offset:512', 'ds_read_b64 v[46:47], v185 offset:1024', 'ds_read_b64 v[18:19], v185 offset:1536', 's_waitcnt lgkmcnt(0)',
        'v_pk_add_f32 v[40:41], v[40:41], v[44:45]', 'v_pk_add_f32 v[46:47], v[46:47], v[18:19]', 'v_pk_add_f32 v[40:41], v[40:41], v[46:47]',
        f'buffer_store_dwordx2 v[40:41], v184, {S4(SRD_B)}, s{S_T0} offen {SC}', 'C_nost:', 's_nop 1')
    st4()
    k1_setup_c()
    a.e('s_waitcnt vmcnt(0)', 's_barrier', *stamp(14))
    if ONEP: a.e('s_barrier')
    a.e(f's_mov_b32 s{S_VAR}, 1', 's_mov_b32 s51, 9', f's_add_u32 s{P_WL}, s{P_WS}, {0 if REUSE else LSTR}', f's_addc_u32 s{P_WL+1}, s{P_WS+1}, 0', 's_branch C_top1' if CWREUSE else 's_branch C_top')
    a.e('C_end:'); dump(a)
    a.e('s_endpgm')

    gx = dict(sg=S_G0, dmas=[(8 + i, 1024 * i, 'A', None) for i in range(4)])
    gw = [dict(sg=S_G0 + 2 + m, dmas=[(13 + 2 * m, 0, 'B', None), (14 + 2 * m, 1024, 'B', None)]) for m in range(3)]
    gh = dict(sg=S_G0 + 1, dmas=[(12, 0, 'A', 's[52:53]')])
    def k1_setup_l(layer):
        tiles(a, 8, 1)
        a.e(f's_mov_b32 s{S_T2}, s{S_LWV}')
        dma_w128(a, [13, 14], 6144, swz128(a), 16, 2, 3, 4)
        a.e('v_add_u32 v15, 2048, v13', 'v_add_u32 v16, 2048, v14', 'v_add_u32 v17, 4096, v13', 'v_add_u32 v18, 4096, v14',
            f's_lshl_b32 s{S_G0+2}, s{S_T2}, 11', f's_add_u32 s{S_G0+2}, s{S_G0+2}, {XT}', f's_add_u32 s{S_G0+3}, s{S_G0+2}, 8192', f's_add_u32 s{S_G0+4}, s{S_G0+2}, 16384',
            f's_lshl_b32 s{S_BB}, s{S_TJ}, 7')
        if layer == 1:
            srd(a, SRD_B, P_WQKV, 0, 1024 * 3072 * 2)
            pre_w(a, 16, 3, 2, ST1, 0, 64 * 6144, gw)
        def xaddr(v, comp):
            a.e('v_lshrrev_b32 v2, 3, v0', f'v_add_u32 v2, s{S_T0}, v2', 'v_bfe_u32 v3, v2, 1, 3', 'v_and_b32 v4, 7, v0', 'v_xor_b32 v3, v3, v4', 'v_lshlrev_b32 v3, 4, v3',
                f'v_add_u32 v2, s{S_T1}, v2', 'v_max_i32 v2, 0, v2', 'v_lshlrev_b32 v2, 11, v2', f'v_add_u32 v{v}, v2, v3')
            if comp: a.e(f'v_subrev_u32 v{v}, {comp}, v{v}')
        a.e(f's_lshl_b32 s{S_T1}, s{S_TI}, 7', f's_sub_u32 s{S_T1}, s{S_T1}, 16')
        for i in range(2):
            a.e(f's_lshl_b32 s{S_T0}, s{S_T2}, 5', f's_add_u32 s{S_T0}, s{S_T0}, {16+8*i}')
            xaddr(8 + i, 1024 * i)
            a.e(f'v_add_u32 v{10+i}, {16*2048-2048}, v{8+i}')
        a.e(f's_lshl_b32 s{S_T0}, s{S_T2}, 3'); xaddr(12, 0)
        a.e(f's_lshl_b32 s{S_G0}, s{S_T2}, 12', f's_add_u32 s{S_G0}, s{S_G0}, 2048', f's_lshl_b32 s{S_G0+1}, s{S_T2}, 10', f's_mov_b32 s{S_BA}, 0',
            f's_cmp_eq_u32 s{S_T2}, 0', 's_cselect_b32 s52, 0xffffff00, -1', 's_mov_b32 s53, -1')
        a.e('v_mov_b32 v20, 0x3f803f80', 'v_mov_b32 v21, v20', 'v_mov_b32 v22, v20', 'v_mov_b32 v23, v20', 'v_lshlrev_b32 v24, 4, v0', f'v_add_u32 v25, {2*ST1}, v24',
            's_mov_b64 exec, 0xff', 'ds_write_b128 v24, v[20:23]', f'ds_write_b128 v24, v[20:23] offset:{ST1}', 'ds_write_b128 v25, v[20:23]', 's_mov_b64 exec, -1')
        a.e(f's_lshl_b32 s{S_T0}, s{S_T2}, 6', f'v_add_u32 v26, s{S_T0}, v0', 'v_min_u32 v26, 143, v26', f'v_add_u32 v27, s{S_T1}, v26', 'v_max_i32 v27, 0, v27',
            'v_lshlrev_b32 v27, 3, v27', 'v_lshlrev_b32 v26, 3, v26', f'v_add_u32 v26, {SL}, v26')
        if layer == 1:
            srd(a, SRD_A, P_WS, X2_OFF, XB)
            srd(a, SRD_D, P_WS, LSTR + RS_OFF, 8 * 2048 * 8)
            a.e('s_waitcnt lgkmcnt(0)')
    a.e('L_start:'); a.flush_hist()
    a.e(f's_sub_u32 s{S_LWV}, s{S_WAVE}, 4', 'v_and_b32 v134, 3, v0', 'v_lshlrev_b32 v134, 6, v134')
    k1_setup_l(0)
    a.e(f's_lshl_b32 s{S_T0}, s2, 3', f's_lshl_b32 s{S_T1}, s{S_LWV}, 1', f's_add_u32 s{S_T0}, s{S_T0}, s{S_T1}',
        'v_lshrrev_b32 v72, 5, v0', f'v_add_u32 v72, s{S_T0}, v72', 'v_lshlrev_b32 v46, 11, v72', 'v_and_b32 v2, 31, v0', 'v_lshl_add_u32 v46, v2, 4, v46',
        'v_lshlrev_b32 v72, 3, v72', f'v_add_u32 v72, {RS_OFF}, v72',
        f's_cmp_eq_u32 s{S_LWV}, 0', 's_cselect_b32 s58, 0, -1', 'v_mov_b32 v64, s58', 'v_mov_b32 v65, s58', 'v_mov_b32 v66, s58', 'v_mov_b32 v67, s58',
        'v_lshrrev_b32 v2, 3, v0', 'v_lshlrev_b32 v2, 15, v2', 'v_and_b32 v3, 7, v0', 'v_lshl_add_u32 v2, v3, 4, v2', 'v_lshlrev_b32 v3, 4, v0',
        's_cselect_b64 vcc, -1, 0', 's_lshl_b32 s58, s2, 7', f's_add_u32 s58, s58, {FL_OFF}', 's_lshl_b32 s59, s2, 10', f's_add_u32 s59, s59, {ST_OFF}',
        f's_cmp_eq_u32 s{S_LWV}, 0', 's_cselect_b32 s58, s58, s59', f's_add_u32 s59, s59, {LSTR}', f's_cmp_eq_u32 s{S_LWV}, 2', 's_cselect_b32 s58, s59, s58',
        f's_cmp_eq_u32 s{S_LWV}, 3', f's_cselect_b32 s58, {128*MB}, s58',
        'v_cndmask_b32 v47, v3, v2, vcc', 's_and_b32 s59, s2, 3', 's_lshl_b32 s59, s59, 6', 'v_mov_b32 v73, s59', 'v_mov_b32 v74, 1')
    flag_idx(a, 0, S_TI, 16, S_TJ)
    a.e(f's_mov_b32 s{S_LW}, 0', *lstamp(29), 's_waitcnt lgkmcnt(0)', *lstamp(61))
    srd(a, SRD_A, P_X, 0, XB)
    srd(a, SRD_B, P_WQKV, 0, 1024 * 3072 * 2)
    a.e('s_branch L_first')
    a.e('L_top:'); a.flush_hist()
    flag_idx(a, 0, S_TI, 16, S_TJ)
    srd(a, SRD_E, P_W1, 0, 2048 * 3584 * 2)
    a.e(f's_lshl_b32 s54, s2, 2', f's_add_u32 s54, s54, s{S_LWV}', f's_mul_i32 s54, s54, {NPF*128}', f's_add_u32 s54, s54, {W1_K0}')
    gl = f'global_load_dword v29, v134, s[{P_DB}:{P_DB+1}] {SC}'
    def h_gate(n):
        if SINGLE: a.e(gl)
    def h_fetch(n):
        l = lab('st')
        if SINGLE:
            a.e(f's_cmp_lg_u32 s{S_VAR}, 0', f's_cbranch_scc1 {l}g', f's_waitcnt vmcnt({n})', 's_mov_b32 s61, 0')
            a.loop([f'{l}p:', 'v_cmp_gt_u32 vcc, 64, v29', 's_add_u32 s61, s61, 1', f's_cmp_gt_u32 s61, {SPIN}', f's_cbranch_scc1 {l}g', f's_cbranch_vccz {l}g', gl, 's_waitcnt vmcnt(0)', f's_branch {l}p'])
            a.e(f'{l}g:')
        for p in range(8):
            if p: a.e(f's_mov_b32 s{S_T0}, {p*16384}')
            a.e(f'buffer_load_dwordx2 {vr(30+2*p,2)}, v27, {S4(SRD_D)}, {"0" if p == 0 else f"s{S_T0}"} offen {LDF}')
    def h_fin(n):
        a.e(f's_waitcnt vmcnt({n})', 'v_pk_add_f32 v[30:31], v[30:31], v[32:33]', 'v_pk_add_f32 v[34:35], v[34:35], v[36:37]', 'v_pk_add_f32 v[38:39], v[38:39], v[40:41]',
            'v_pk_add_f32 v[42:43], v[42:43], v[44:45]', 'v_pk_add_f32 v[30:31], v[30:31], v[34:35]', 'v_pk_add_f32 v[38:39], v[38:39], v[42:43]',
            'v_pk_add_f32 v[30:31], v[30:31], v[38:39]')
        stats_finish(a, 30, 31, 32, False)
        a.e('ds_write_b64 v26, v[30:31]', 's_waitcnt lgkmcnt(0)')
    HK = (h_gate, h_fetch)
    def only0(f):
        def g(n):
            l = lab('e'); a.e(f's_cmp_lg_u32 s{S_VAR}, 0', f's_cbranch_scc1 {l}'); f(n); a.e(f'{l}:', 's_nop 1')
        return g
    def e_load(n):
        a.e(*lstamp(63))
        for c in range(4): a.e(f'buffer_load_dwordx4 {vr(48+4*c,4)}, v46, {S4(SRD_A)}, 0 offen offset:{512*c}')
        a.e(f'buffer_store_dwordx4 v[64:67], v47, {S4(SRD_C)}, s58 offen {SC}', 's_barrier')
    def e_stat(n):
        a.e('v_mov_b32 v68, 0', 'v_mov_b32 v69, 0', 'v_mov_b32 v70, 0x3f803f80', f's_waitcnt vmcnt({n+1})')
        for e in range(16): a.e(f'v_dot2c_f32_bf16 v68, v70, v{48+e}', f'v_dot2c_f32_bf16 v69, v{48+e}, v{48+e}')
        for ctl in ('quad_perm:[1,0,3,2]', 'quad_perm:[2,3,0,1]', 'row_half_mirror', 'row_mirror'):
            a.e(f'v_add_f32_dpp v68, v68, v68 {ctl} row_mask:0xf bank_mask:0xf', f'v_add_f32_dpp v69, v69, v69 {ctl} row_mask:0xf bank_mask:0xf')
        a.e('v_mov_b32 v70, v68', 'v_mov_b32 v71, v69', 'v_permlane16_swap_b32 v68, v70', 'v_permlane16_swap_b32 v69, v71', 'v_add_f32 v68, v68, v70', 'v_add_f32 v69, v69, v71',
            's_mov_b32 exec_lo, 1', 's_mov_b32 exec_hi, 1', f'buffer_store_dwordx2 v[68:69], v72, {S4(SRD_C)}, 0 offen {SC}', 's_mov_b64 exec, -1')
    def e_gate(n):
        l = lab('g'); a.e(f's_cmp_lg_u32 s{S_LWV}, 0', f's_cbranch_scc1 {l}', 's_mov_b64 exec, 1', f'global_atomic_add v73, v74, s[{P_DB}:{P_DB+1}] sc1', 's_mov_b64 exec, -1', f'{l}:')
    a.e(f's_cmp_ge_u32 s{S_LWV}, 2', 's_cbranch_scc1 L_k1B')
    l_loop(a, 16, 3, 2, ST1, 0, 128, 64 * 6144, [gh, gx], gw, tail=1, hooks=HK, early=('L_jA', lambda n: None, only0(e_gate)), st=env('STK', '3') == '1')
    a.e('s_branch L_k1t', 'L_k1B:'); a.flush_hist()
    l_loop(a, 16, 3, 2, ST1, 0, 128, 64 * 6144, [gx], gw, tail=1, hooks=HK, early=('L_jB', lambda n: None, only0(e_gate)))
    a.e('s_branch L_k1t')
    a.e('L_first:'); a.flush_hist()
    a.e(f's_cmp_ge_u32 s{S_LWV}, 2', 's_cbranch_scc1 L_firstB')
    for gA, n, tag in (([gh, gx], 11, 'A'), ([gx], 10, 'B')):
        if tag == 'B': a.e('L_firstB:'); a.flush_hist()
        iss = lambda: issue(16, 3, ST1, 0, 128, 64 * 6144, gA, gw)
        a.e(*iss(), *lstamp(62))
        srd(a, SRD_C, P_WS, 0, 64 * MB)
        srd(a, SRD_D, P_WS, RS_OFF, 2048 * 8)
        a.e(f's_mov_b32 s{P_WL}, s{P_WS}', f's_mov_b32 s{P_WL+1}, s{P_WS+1}', *iss())
        e_load(n)
        a.e(f's_waitcnt vmcnt({n+5})', 's_barrier', *iss())
        e_stat(n)
        a.e(f's_branch L_j{tag}')
    a.e('L_k1t:'); a.flush_hist()
    h_fin(0)
    a.e(f's_mov_b32 s{S_T2}, s{S_LWV}')
    dma_w128(a, [130, 131], 2048, swz128(a), 16, 2, 3, 4)
    srd(a, SRD_B, P_WO, 0, 1024 * 1024 * 2)
    a.e(*INITK, f's_lshl_b32 s{S_G0+8}, s{S_LWV}, 11')
    def wo(t0, t1):
        for t in range(t0, t1):
            a.e(*next_k(16), f's_lshl_b32 s{S_OB}, s{S_K}, 17', f's_add_u32 s{S_OB}, s{S_OB}, s{S_BB}', f's_add_u32 m0, s{S_G0+8}, {WO_SLOTS[t]}',
                f'buffer_load_dwordx4 v130, {S4(SRD_B)}, s{S_OB} offen lds', f'buffer_load_dwordx4 v131, {S4(SRD_B)}, s{S_OB} offen offset:1024 lds')
    wo(0, 4)
    def pf3(j):
        if PF3 > j: a.e(f's_add_u32 s{S_T0}, s54, {j*8*MB}', f'buffer_load_dword v135, v132, {S4(SRD_E)}, s{S_T0} offen')
    if PF3:
        a.e(f's_cmp_eq_u32 s{S_VAR}, 0', f's_cselect_b32 s{SRD_E+2}, s{SRD_E+2}, 0', 's_lshl_b32 s54, s2, 2', f's_add_u32 s54, s54, s{S_LWV}', 's_lshl_b32 s54, s54, 13',
            f's_add_u32 s54, s54, {W1_K0}', 'v_lshlrev_b32 v132, 7, v0')
    pf3(0)
    x = 1 if PF3 else 0
    if PFT:
        srd(a, SRD_C, P_W2, 0, 3584 * 2048 * 2)
        a.e(f's_cmp_eq_u32 s{S_VAR}, 0', f's_cselect_b32 s{SRD_E+2}, s{SRD_E+2}, 0', f's_cselect_b32 s{SRD_C+2}, s{SRD_C+2}, 0',
            's_lshr_b32 s54, s2, 3', 's_lshl_b32 s54, s54, 2', f's_add_u32 s54, s54, s{S_LWV}', 's_lshl_b32 s54, s54, 18', 'v_lshlrev_b32 v132, 12, v0', 'v_add_u32 v132, s54, v132',
            f'v_subrev_u32 v133, {16*MB}, v132', f'buffer_load_dword v135, v132, {S4(SRD_E)}, 0 offen', f'buffer_load_dword v135, v133, {S4(SRD_C)}, 0 offen')
        x += 2
    a.e(f's_waitcnt vmcnt({8+x})', 's_barrier')
    wo(4, 7)
    only0(lambda n: (lane_fields(a), attn_static()))(0)
    a.e('s_waitcnt lgkmcnt(0)', 's_barrier')
    pf3(1)
    wo(7, 12)
    a.e('s_branch attn')
    a.e('L_k1done:'); a.flush_hist()
    publish_pre(a)
    a.e('s_waitcnt vmcnt(0)', 's_barrier')
    publish(a, 2)
    wo(12, 16)
    flag_idx(a, 1, S_TJ, 16, S_TI)
    if ONEP: a.e('s_barrier')
    a.e('s_waitcnt vmcnt(0)', 's_barrier')
    g4 = [dict(sg=S_G0 + 1, dmas=[(9, 0, 'B', None), (10, 1024, 'B', None)])]
    def k4_setup_l():
        tiles(a, 8, 2)
        a.e(f's_mov_b32 s{S_T2}, s{S_LWV}', f's_lshl_b32 s{S_G0+1}, s{S_T2}, 11')
        dma_w128(a, [9, 10], 4096, swz128(a), 16, 2, 3, 4)
        a.e(f's_lshl_b32 s{S_BB}, s{S_TJ}, 7')
        srd(a, SRD_B, P_W2, 0, 3584 * 2048 * 2)
    a.e('s_cmp_ge_u32 s2, 224', 's_cbranch_scc1 L_k3skip')
    tiles(a, 7, 2)
    a.e(f's_lshl_b32 s{S_G0}, s{S_LWV}, 12', f's_add_u32 s{S_G0+1}, s{S_G0}, 16384', 'v_lshlrev_b32 v8, 4, v0', f'v_add_u32 v13, {65536-2048}, v8',
        'v_lshrrev_b32 v2, 4, v0', 'v_lshlrev_b32 v3, 1, v2', 'v_and_b32 v4, 15, v0', 'v_xor_b32 v3, v3, v4', 'v_lshlrev_b32 v3, 4, v3',
        f's_lshl_b32 s{S_T0}, s{S_LWV}, 4', f'v_add_u32 v2, s{S_T0}, v2', f's_mov_b32 s{S_T0}, 7168', f'v_mul_lo_u32 v2, v2, s{S_T0}',
        'v_add_u32 v9, v2, v3', 'v_xor_b32 v3, 128, v3', 'v_add_u32 v11, v2, v3',
        f'v_add_u32 v10, {4*7168-1024}, v9', f'v_add_u32 v12, {3*(4*7168-1024)}, v11', f'v_add_u32 v11, {2*(4*7168-1024)}, v11',
        f's_lshl_b32 s{S_BA}, s{S_TI}, 2', f's_add_u32 s{S_BA}, s{S_BA}, s{S_LWV}', f's_lshl_b32 s{S_BA}, s{S_BA}, 17', f's_lshl_b32 s{S_BB}, s{S_TJ}, 8')
    srd(a, SRD_A, P_WL, H_OFF, XB)
    srd(a, SRD_B, P_W1, 0, 2048 * 3584 * 2)
    g3a = [dict(sg=S_G0, dmas=[(8 if i < 2 else 13, 1024 * i, 'A', None) for i in range(4)])]
    g3w = [dict(sg=S_G0 + 1, dmas=[(9 + i, 1024 * i, 'B', None) for i in range(4)])]
    poll_setup(a, SRD_C, 14, 1, 0, [f's_lshl_b32 s{S_T0}, s{S_TI}, 5'], 32)
    for j in range(PF4):
        a.e(f's_lshr_b32 s{S_T0}, s2, 3', f's_add_u32 s{S_T0}, s{S_T0}, {28*j}', f's_lshl_b32 s{S_T0}, s{S_T0}, 2', f's_add_u32 s{S_T0}, s{S_T0}, s{S_LWV}', f's_lshl_b32 s{S_T0}, s{S_T0}, 6',
            f'v_add_u32 v2, s{S_T0}, v0', 'v_mul_u32_u24 v3, 74899, v2', 'v_lshrrev_b32 v3, 20, v3', 'v_mul_u32_u24 v4, 14, v3', 'v_sub_u32 v4, v2, v4',
            'v_add_u32 v3, 192, v3', 'v_mul_u32_u24 v3, 7168, v3', 'v_lshl_add_u32 v3, v4, 7, v3', f's_and_b32 s{S_T0}, s2, 3', f's_mul_i32 s{S_T0}, s{S_T0}, 1792', f's_lshl_b32 s{S_T1}, s{S_VAR}, 30', f's_add_u32 s{S_T0}, s{S_T0}, s{S_T1}', f'v_add_u32 v{16+j}, s{S_T0}, v3')
    a.e('s_barrier')
    if not LATEW: pre_w(a, 32, 5, 3, 32768, 0, 64 * 7168, g3w)
    a.e('s_barrier')
    publish(a, 2)
    if LATEW: pre_w(a, 32, 5, 3, 32768, 0, 64 * 7168, g3w)
    for j in range(PF4): a.e(f'buffer_load_dword v135, v{16+j}, {S4(SRD_B)}, 0 offen')
    flag_idx(a, 2, S_TI, 32, S_TJ)
    poll(a, SRD_C, 14, 15)
    l_loop(a, 32, 5, 3, 32768, 0, 2048, 64 * 7168, g3a, g3w, st=env('STK', '3') == '3')
    k4_setup_l()
    a.e('s_branch L_k4', 'L_k3skip:'); a.flush_hist()
    k4_setup_l()
    a.e('s_barrier')
    a.e('L_k4:'); a.flush_hist()
    pre_w(a, 56, K4_NS, K4_AH, 8192, K4_BASE, 64 * 4096, g4)
    a.e('s_barrier')
    publish(a, 2)
    flag_idx(a, 3, S_TJ, 8, S_TI)
    if ONEP: a.e('s_barrier')
    l_loop(a, 56, K4_NS, K4_AH, 8192, K4_BASE, 0, 64 * 4096, [], g4)
    a.e(f's_cmp_lg_u32 s{S_VAR}, 0', 's_cbranch_scc1 L_end')
    k1_setup_l(1)
    poll_setup(a, SRD_C, 28, 3, 0, [f's_lshl_b32 s{S_T0}, s{S_TI}, 4', f's_sub_u32 s{S_T0}, s{S_T0}, 8'], 24)
    a.e('s_barrier', 's_barrier')
    publish(a, 2)
    poll(a, SRD_C, 28, 29)
    a.e(f's_mov_b32 s{S_VAR}, 1', f's_add_u32 s{P_WL}, s{P_WS}, {0 if REUSE else LSTR}', f's_addc_u32 s{P_WL+1}, s{P_WS+1}, 0', 's_branch L_top')
    a.e('L_end:')
    if PROF: a.e(f's_cmp_lg_u32 s{S_LWV}, 0', f's_cbranch_scc1 {kn}_end', 's_lshl_b32 s58, s2, 8', f's_add_u32 s58, s58, {PR_OFF + MB}', 'v_lshlrev_b32 v254, 2, v0', 'v_add_u32 v254, s58, v254', f'global_store_dword v254, v255, s[{P_WS}:{P_WS+1}]')
    a.e(f'{kn}_end:', 's_endpgm')

def dump(a):
    if not PROF: return
    a.e('s_waitcnt vmcnt(0)', *stamp(14), f's_cmp_lg_u32 s{S_WAVE}, 0', 's_cbranch_scc1 nodump', 's_lshl_b32 s58, s2, 8', f's_add_u32 s58, s58, {PR_OFF}',
        'v_lshlrev_b32 v254, 2, v0', 'v_add_u32 v254, s58, v254', f'global_store_dword v254, v{PV}, s[{P_WS}:{P_WS+1}]', 'nodump:')

def gen_k0(a):
    a.e('.p2align 8', 'k0_kernel:', 's_cmp_ge_u32 s2, 256', 's_cbranch_scc1 k0_end',
        's_load_dwordx16 s[64:79], s[0:1], 0', 's_load_dwordx2 s[84:85], s[0:1], 80',
        'v_lshrrev_b32 v1, 6, v0', 'v_lshlrev_b32 v20, 4, v0', 'v_and_b32 v0, 63, v0', f'v_readfirstlane_b32 s{S_WAVE}, v1',
        's_lshl_b32 s30, s2, 3', f's_add_u32 s30, s30, s{S_WAVE}',
        's_lshl_b32 s31, s30, 11', 'v_lshlrev_b32 v2, 5, v0',
        's_lshl_b32 s32, s2, 2', f's_and_b32 s33, s{S_WAVE}, 3', 's_add_u32 s32, s32, s33', 's_lshl_b32 s32, s32, 13', 'v_lshlrev_b32 v3, 7, v0', 'v_add_u32 v3, s32, v3',
        f'v_subrev_u32 v4, {1024*3072*2}, v3', 's_waitcnt lgkmcnt(0)')
    srd(a, SRD_A, P_X, 0, XB)
    a.e(f'buffer_load_dwordx4 v[8:11], v2, {S4(SRD_A)}, s31 offen', f'buffer_load_dwordx4 v[12:15], v2, {S4(SRD_A)}, s31 offen offset:16')
    KW = int(env('K0WARM', '1'))
    srd(a, SRD_B, P_WQKV, 0, 1024 * 3072 * 2 * KW)
    srd(a, SRD_C, P_WO, 0, 1024 * 1024 * 2 * KW)
    srd(a, SRD_E, P_W1, 0, W1_K0)
    a.e(f's_sub_u32 s33, s{S_WAVE}, 4', 's_lshl_b32 s33, s33, 8', 's_add_u32 s33, s33, s2', 's_lshl_b32 s33, s33, 13', 'v_lshlrev_b32 v7, 7, v0',
        f's_cmp_ge_u32 s{S_WAVE}, 4', 's_cbranch_scc1 k0_nw', f'buffer_load_dword v5, v3, {S4(SRD_B)}, 0 offen', f'buffer_load_dword v6, v4, {S4(SRD_C)}, 0 offen', 's_branch k0_nx',
        'k0_nw:', f'buffer_load_dword v5, v7, {S4(SRD_E)}, s33 offen', 'k0_nx:')
    if CODEPF:
        a.e(f's_cmp_lg_u32 s{S_WAVE}, 7', 's_cbranch_scc1 k0_nc', 's_getpc_b64 s[40:41]', 'k0_pc:', 's_add_u32 s40, s40, mega_kernel-k0_pc', 's_addc_u32 s41, s41, 0',
            's_lshr_b32 s42, s2, 3', 's_lshl_b32 s42, s42, 11', 'v_and_b32 v25, 15, v0', 'v_lshlrev_b32 v25, 7, v25', 'v_add_u32 v25, s42, v25',
            'v_min_u32 v25, mega_end-mega_kernel, v25', 'global_load_dword v26, v25, s[40:41]', 'k0_nc:')
    srd(a, SRD_D, P_WS, 0, 64 * MB)
    a.e(f's_cmp_eq_u32 s{S_WAVE}, 0', 's_cselect_b32 s33, 0, -1', 'v_mov_b32 v16, s33', 'v_mov_b32 v17, s33', 'v_mov_b32 v18, s33', 'v_mov_b32 v19, s33',
        f's_mov_b32 s34, {ST_OFF}', f's_cselect_b32 s34, {FL_OFF}, s34', f's_cmp_eq_u32 s{S_WAVE}, 2', f's_cselect_b32 s34, {LSTR + ST_OFF}, s34', 's_lshl_b32 s35, s2, 10', 's_add_u32 s34, s34, s35',
        'v_lshlrev_b32 v20, 4, v0', f's_cmp_ge_u32 s{S_WAVE}, 3', 's_cbranch_scc1 k0_nr', f'buffer_store_dwordx4 v[16:19], v20, {S4(SRD_D)}, s34 offen', 'k0_nr:')
    a.e('v_mov_b32 v22, 0', 'v_mov_b32 v23, 0', 'v_mov_b32 v21, 0x3f803f80', 'v_lshrrev_b32 v24, 3, v0', 'v_lshlrev_b32 v24, 14, v24', 's_lshl_b32 s36, s30, 3', f's_add_u32 s36, s36, {RS_OFF}',
        's_waitcnt vmcnt(0)')
    for e in range(8): a.e(f'v_dot2c_f32_bf16 v22, v21, v{8+e}', f'v_dot2c_f32_bf16 v23, v{8+e}, v{8+e}')
    for ctl in ('quad_perm:[1,0,3,2]', 'quad_perm:[2,3,0,1]', 'row_half_mirror'):
        a.e(f'v_add_f32_dpp v22, v22, v22 {ctl} row_mask:0xf bank_mask:0xf', f'v_add_f32_dpp v23, v23, v23 {ctl} row_mask:0xf bank_mask:0xf')
    a.e('s_mov_b32 exec_lo, 0x01010101', 's_mov_b32 exec_hi, 0x01010101', f'buffer_store_dwordx2 v[22:23], v24, {S4(SRD_D)}, s36 offen', 'k0_end:', 's_endpgm')

def main(out):
    a = Asm()
    if not SINGLE: gen_k0(a); a.flush_hist()
    gen_mega(a)
    info = {} if SINGLE else {'k0_kernel': (32, 0)}
    info[MEGA] = (256, 163840)
    ref = open(os.path.join(os.path.dirname(os.path.abspath(__file__)), '..', NAME + '.s.ref')).read().splitlines()
    hdr = [l for l in ref if l.startswith(';') and '@launch' not in l and 'Override launch' not in l and 'grid=ceil' not in l]
    if SINGLE: hdr += ['; @launch grid=(256,1,1) block=(512,1,1) lds=163840']
    else: hdr += [f'; @launch kernel={n} grid=(256,1,1) block=(512,1,1) lds={v[1]}' for n, v in info.items()]
    s = '\n'.join(hdr) + '\n; generated by gen/gen2.py\n.amdgcn_target "amdgcn-amd-amdhsa--gfx950"\n.text\n'
    if SINGLE: s += f'.globl {MEGA}\n.type {MEGA},@function\n'
    s += a.text() + '.section .rodata,"a"\n'
    for n, (vg, _) in info.items():
        s += f'''.p2align 6
.amdhsa_kernel {n}
  .amdhsa_next_free_vgpr {vg}
  .amdhsa_next_free_sgpr 102
  .amdhsa_accum_offset {vg}
  .amdhsa_group_segment_fixed_size 0
  .amdhsa_kernarg_size 88
  .amdhsa_user_sgpr_count 2
  .amdhsa_user_sgpr_kernarg_segment_ptr 1
  .amdhsa_system_sgpr_workgroup_id_x 1
.end_amdhsa_kernel
'''
    open(out, 'w').write(s)

if __name__ == '__main__':
    main(sys.argv[1])
```

```python
import sys, os, struct
sys.path.insert(0, os.path.dirname(os.path.abspath(__file__)))
from asmlib import *
import gen as G
from gen import (NAME, MB, XB, UB, f32, env, S4, srd, next_k, adv_s, sched, bundle, spread, lane_fields, tr128_addr, swz128, unpack4,
                 dma_w128, stats_finish, MF16, S_VAR, S_WAVE, S_LI, S_LJ, S_PHI, SRD_A, SRD_B, SRD_C, SRD_D, SRD_E, S_TI, S_TJ,
                 S_P, S_W, S_T0, S_K, S_BA, S_BB, S_OA, S_OB, S_LW, S_CNT, S_T1, S_T2, S_DELTA, S_CUR, S_G0,
                 P_X, P_WQKV, P_WO, P_W1, P_B1, P_W2, P_B2, P_OUT, P_WS)

LSTR = 48 * MB
O_OFF, X1_OFF, H_OFF, U_OFF, ST_OFF, RS_OFF = 0, 8 * MB, 16 * MB, 24 * MB, 40 * MB, 41 * MB
X2_OFF, FL_OFF, PR_OFF = 96 * MB, 104 * MB, 128 * MB
XP = 2 * XB; UP = 2 * UB
FSH = int(env('FSH', '7')); STS = int(env('STS', '0'))
P_WL = 82
S_LWV, S_FLG = 57, 56
SC = 'sc0 sc1'
LDF = env('LDF', 'sc1')
PROF = env('PROF') == '1'
PV = 255
SINGLE = env('SINGLE', '1') == '1'
MEGA = NAME + '_kernel' if SINGLE else 'mega_kernel'
P_DB = 62
SPIN = 1000000
EXP = env('EXP', '')
SNAKE = int(env('SNAKE', '1')); CWREUSE = int(env('CWREUSE', '1')); CHAIN = int(env('CHAIN', '1'))
ONEP = int(env('ONEP', '1')); PS0 = int(env('PS0', '8')); PS1 = int(env('PS1', '0')); PP = int(env('PP', '1')); PSL = int(env('PSL', '4'))

def stamp(k):
    if not PROF: return []
    return ['s_memrealtime s[58:59]', 's_memtime s[56:57]', 's_waitcnt lgkmcnt(0)', f's_lshl_b32 s60, s{S_VAR}, 4', f's_add_u32 m0, s60, {k+1}', 's_nop 0', f'v_writelane_b32 v{PV}, s58, m0',
            's_add_u32 m0, m0, 32', 's_nop 0', f'v_writelane_b32 v{PV}, s56, m0']
G.stamp = lambda idx=None: []
G.cstamp = lambda idx: []

def lstamp(k): return ['s_memrealtime s[60:61]', 's_waitcnt lgkmcnt(0)', f'v_writelane_b32 v255, s60, {k}'] if PROF else []

def tiles(a, LN, xshift):
    a.e(f's_lshr_b32 s{S_T0}, s2, 3')
    if LN == 8: a.e(f's_lshr_b32 s{S_LI}, s{S_T0}, 3', f's_and_b32 s{S_LJ}, s{S_T0}, 7')
    else: a.e(f's_mul_i32 s{S_LI}, s{S_T0}, {65536 // LN + 1}', f's_lshr_b32 s{S_LI}, s{S_LI}, 16', f's_mul_i32 s{S_LJ}, s{S_LI}, {LN}', f's_sub_u32 s{S_LJ}, s{S_T0}, s{S_LJ}')
    a.e(f's_lshl_b32 s{S_PHI}, s{S_LI}, 1', f's_add_u32 s{S_PHI}, s{S_PHI}, s{S_LJ}', f's_and_b32 s{S_PHI}, s{S_PHI}, 7',
        f's_and_b32 s{S_T0}, s2, 7', f's_lshr_b32 s{S_TI}, s{S_T0}, {xshift}', f's_lshl_b32 s{S_TI}, s{S_TI}, 2', f's_add_u32 s{S_TI}, s{S_TI}, s{S_LI}',
        f's_and_b32 s{S_TJ}, s{S_T0}, {(1 << xshift) - 1}')
    if (TJS >> {(8, 1): 0, (7, 2): 1, (8, 2): 2}[(LN, xshift)]) & 1: a.e(f's_lshl_b32 s{S_T0}, s{S_LJ}, {xshift}', f's_add_u32 s{S_TJ}, s{S_TJ}, s{S_T0}', *INITK)
    else: a.e(f's_mul_i32 s{S_TJ}, s{S_TJ}, {LN}', f's_add_u32 s{S_TJ}, s{S_TJ}, s{S_LJ}', *INITK)
TJS = int(env('TJS', '0'))
INITK = [f's_mov_b32 s{S_P}, 7', f's_mov_b32 s{S_W}, -1']

def flag_idx(a, ph, hi, mul, lo):
    a.e(f's_lshl_b32 s{S_FLG}, s{S_VAR}, 10', f's_mul_i32 s{S_T0}, s{hi}, {mul}', f's_add_u32 s{S_FLG}, s{S_FLG}, s{S_T0}', f's_add_u32 s{S_FLG}, s{S_FLG}, s{lo}',
        f's_add_u32 s{S_FLG}, s{S_FLG}, {ph*256}', f's_lshl_b32 s{S_FLG}, s{S_FLG}, {FSH}')

_n = [0]
def lab(p): _n[0] += 1; return f'{p}{_n[0]}'

def publish_pre(a):
    srd(a, SRD_E, P_WS, FL_OFF, 8 * 256 * 256)
    a.e('v_mov_b32 v136, 0', 'v_mov_b32 v137, 1', f's_cmp_eq_u32 s{S_LWV}, 0', f's_cselect_b32 s{SRD_E+2}, s{SRD_E+2}, 0')

def publish(a, vt=None):
    a.e('s_mov_b64 exec, 1', f'buffer_store_dword v137, v136, {S4(SRD_E)}, s{S_FLG} offen {SC}', 's_mov_b64 exec, -1')

def poll_setup(a, sr_, va, ph, dl, base_lines, n):
    srd(a, sr_, P_WS, FL_OFF, 8 * 256 * 256)
    a.e(*base_lines, f'v_min_u32 v{va}, {n-1}, v0', f'v_add_u32 v{va}, s{S_T0}, v{va}', f'v_max_i32 v{va}, 0, v{va}', f'v_lshlrev_b32 v{va}, {FSH}, v{va}',
        f's_lshl_b32 s55, s{S_VAR}, {10+FSH}', f's_add_u32 s55, s55, {(dl * 4 + ph) << (8 + FSH)}')

def poll(a, sr_, va, vt, sleep=True):
    l = lab('poll')
    ld = lambda v: f'buffer_load_dword v{v}, v{va}, {S4(sr_)}, s55 offen {SC}'
    a.e(f's_mov_b32 s{S_CNT}, 0')
    if ONEP: a.e(f's_and_b32 s{S_T0}, s{S_WAVE}, 3', f's_cmp_lg_u32 s{S_T0}, 0', f's_cbranch_scc1 {l}d')
    if PS0: a.e(f's_sleep {PS0 if sleep else PS0 // 2}')
    if PP <= 1:
        a.loop([f'{l}:'] + ([f's_sleep {PS1}'] if PS1 else []) + [ld(vt), 's_waitcnt vmcnt(0)', f'v_cmp_eq_u32 vcc, 0, v{vt}',
                f's_add_u32 s{S_CNT}, s{S_CNT}, 1', f's_cmp_gt_u32 s{S_CNT}, {SPIN}', f's_cbranch_scc1 {l}d', f's_cbranch_vccnz {l}'])
    else:
        R = [214 + i for i in range(PP)]
        for i in range(PP - 1): a.e(ld(R[i]), f's_sleep {PSL}')
        body = [f'{l}:']
        for i in range(PP):
            body += [ld(R[(i + PP - 1) % PP]), f's_waitcnt vmcnt({PP-1})', f'v_cmp_eq_u32 vcc, 0, v{R[i]}', f's_cbranch_vccz {l}d']
        a.loop(body + [f's_add_u32 s{S_CNT}, s{S_CNT}, 1', f's_cmp_le_u32 s{S_CNT}, {SPIN}', f's_cbranch_scc1 {l}'])
    a.e(f'{l}d:')
    if ONEP: a.e('s_barrier')

def dma_groups(groups, lw_s):
    L = []
    for g in groups:
        L.append(f's_add_u32 m0, s{lw_s}, s{g["sg"]}')
        for (v, imm, st, ex) in g['dmas']:
            srdn, so, fl = (SRD_A, S_OA, LDF) if st == 'A' else (SRD_B, S_OB, '')
            if ex: L.append(f's_mov_b64 exec, {ex}')
            L.append(f'buffer_load_dwordx4 v{v}, {S4(srdn)}, s{so} offen offset:{imm} {fl} lds')
            if ex: L.append('s_mov_b64 exec, -1')
    return L

def issue(NK, NS, stage, base, stepA, stepB, gA, gW):
    L = next_k(NK)
    if gA: L += [f's_mul_i32 s{S_OA}, s{S_K}, {stepA}', f's_add_u32 s{S_OA}, s{S_OA}, s{S_BA}']
    if gW: L += [f's_mul_i32 s{S_OB}, s{S_K}, {stepB}', f's_add_u32 s{S_OB}, s{S_OB}, s{S_BB}']
    if not (EXP == 'nodma' and NK in (16, 32)): L += dma_groups(gA + gW, S_LW)
    L += [f's_add_u32 s{S_LW}, s{S_LW}, {stage}', f's_cmp_eq_u32 s{S_LW}, {base + NS*stage}', f's_cselect_b32 s{S_LW}, {base}, s{S_LW}']
    return L

def pre_w(a, NK, NS, AH, stage, base, stepB, gW):
    a.e(*INITK, f's_mov_b32 s{S_LW}, {base}')
    for s in range(AH): a.e(*issue(NK, NS, stage, base, 0, stepB, [], gW))

def l_loop(a, NK, NS, AH, stage, base, stepA, stepB, gA, gW, tail=0, hooks=(), early=(), st=False):
    nA = sum(len(g['dmas']) for g in gA); n = nA + sum(len(g['dmas']) for g in gW)
    lst = ['s_memrealtime s[58:59]', 's_waitcnt lgkmcnt(0)', 's_mov_b32 m0, s60', 's_add_u32 s60, s60, 1', 'v_writelane_b32 v255, s58, m0'] if st and PROF else []
    if lst: a.e(f's_lshl_b32 s60, s{S_VAR}, 5')
    iss = lambda: lst + issue(NK, NS, stage, base, stepA, stepB, gA, gW)
    t0 = 0
    if gA:
        a.e(*INITK, f's_mov_b32 s{S_LW}, {base}')
        for s in range(AH): a.e(*issue(NK, NS, stage, base, stepA, stepB, gA, []))
        for t in range(AH - 1):
            a.e(f's_waitcnt vmcnt({(AH - 1 - t) * nA + t * n})', 's_barrier', *iss())
        t0 = AH - 1
        if early: a.e(f'{early[0]}:', 's_nop 1')
        for h in early[1:]:
            a.e(f's_waitcnt vmcnt({(AH-1)*n})', 's_barrier', *iss()); h(n); t0 += 1
    l = lab('ll')
    a.e(f's_mov_b32 s{S_CNT}, {NK - AH - t0 - len(hooks)}')
    a.loop([f'{l}:', f's_waitcnt vmcnt({(AH-1)*n})', 's_barrier'] + iss() + [f's_sub_u32 s{S_CNT}, s{S_CNT}, 1', f's_cmp_lg_u32 s{S_CNT}, 0', f's_cbranch_scc1 {l}'])
    for h in hooks:
        a.e(f's_waitcnt vmcnt({(AH-1)*n})', 's_barrier', *iss()); h(n)
    for j in range(AH - tail):
        a.e(f's_waitcnt vmcnt({(AH-1-j)*n + (8 if hooks else 0)})', 's_barrier')

def c_loop(a, NK, NS, stage, reads, mfmas, addr_regs, late, st0, peel=None, extra0=(), fin=None):
    if EXP == 'noread': reads = [reads[0][:1], reads[1][:1]]
    if EXP == 'rp2': RP = 2
    adv = adv_s(NS, stage)
    advv = [f'v_add_u32 v{r}, s{S_DELTA}, v{r}' for r in addr_regs]
    a.e(f's_mov_b32 s{S_CUR}, 0', f's_mov_b32 s{S_CNT}, {NK - 1 - len(peel or [])}', 's_barrier', *stamp(st0))
    a.e(*reads[0]); a.e(*adv)
    q0 = [Ins(x).wr for x in reads[0]]
    def it(pre=(), post=()):
        q = list(q0)
        L = sched(mfmas[0], bundle(reads[1], advv), q, 1)
        if not late: L.append('s_waitcnt lgkmcnt(0)'); q.clear()
        L += list(pre) + ['s_barrier'] + list(post) + sched(mfmas[1], spread(reads[0], adv), q, 1)
        assert q == q0[len(q0) - len(q):]
        return L
    for p in peel or []: a.e(*it(*p))
    l = lab('cl')
    a.loop([f'{l}:'] + it() + [f's_sub_u32 s{S_CNT}, s{S_CNT}, 1', f's_cmp_lg_u32 s{S_CNT}, 0', f's_cbranch_scc1 {l}'])
    q = list(q0)
    a.e(*sched(mfmas[0], reads[1] + list(extra0), q, 1))
    if fin: a.e('s_waitcnt lgkmcnt(0)', *stamp(st0 + 1)); fin(mfmas[1])
    else: a.e(*sched(mfmas[1], [], q)); a.e('s_waitcnt lgkmcnt(0)', *stamp(st0 + 1))

S_LM, S_B0, S_B1 = 48, 49, 50
def c_direct(a, NK, NS, stage, reads, mf, addr_regs, DR, D, vaddr, init, st0, slots=None):
    R = NK // 8
    advv = lambda src: [f'v_add_u32 v{r}, {src}, v{r}' for r in addr_regs]
    def nk(t):
        p = t % 8
        L = []
        if p == 0 and t != 0: L += [f's_mov_b32 s{S_B0}, s{S_B1}', f's_add_u32 s{S_B1}, s{S_B1}, 65536', f's_cmp_eq_u32 s{S_B1}, s{S_T2}', f's_cselect_b32 s{S_B1}, s{S_BA}, s{S_B1}']
        return L + [f's_bitcmp1_b32 s{S_LM}, {p}', f's_cselect_b32 s{S_OA}, s{S_B1}, s{S_B0}', f's_add_u32 s{S_OA}, s{S_OA}, {p*8192}']
    ld = lambda slot, i: f'buffer_load_dwordx4 {vr(DR+16*slot+4*i,4)}, v{88+i}, {S4(SRD_A)}, s{S_OA} offen {LDF}'
    adv = [] if slots else adv_s(NS, stage)
    vq = []
    for sl in range(D):
        a.e(*nk(sl))
        for i in range(4 if sl < D - 1 else 2):
            a.e(ld(sl, i)); vq.append(Ins(ld(sl, i)).wr)
    init(4 * D - 2)
    a.e(f's_mov_b32 s{S_CUR}, 0', f's_mov_b32 s{S_CNT}, {R - 1}', 's_barrier', *stamp(st0))
    a.e(*reads[0]); a.e(*adv)
    q0 = [Ins(x).wr for x in reads[0]]
    def mix(items, loads, pos):
        items = [list(x) for x in items]
        for l, p in zip(loads, pos): items[p] = items[p] + [l]
        return items
    def step(t, vq, generic):
        slot = t % D
        q = list(q0)
        final = not generic and t == NK - 1
        l0 = [ld((slot - 1) % D, 2), ld((slot - 1) % D, 3)] if generic or t - 1 + D < NK else []
        av = [] if final else advv(f's{S_DELTA}' if not slots else (slots[t + 1] - slots[t]) & 0xffffffff)
        L = sched(mf(0, DR + 16 * slot), mix(bundle(reads[1], av), l0, (2, 6)), q, 1, vq=vq)
        if final: return L + sched(mf(1, DR + 16 * slot + 8), [], q, 1, vq=vq)
        more = generic or t + D < NK
        it = [[r] for r in reads[0]]
        sc = (nk(t + D) if more else []) + adv
        for i, x in enumerate(sc): it[min(i // 2, len(it) - 1)].append(x)
        l1 = [ld(slot, 0), ld(slot, 1)] if more else []
        return L + ([] if slots else ['s_barrier']) + sched(mf(1, DR + 16 * slot + 8), mix(it, l1, (4, 7)), q, 1, vq=vq)
    if slots:
        for t in range(NK): a.e(*step(t, vq, False))
    else:
        v1 = list(vq); l = lab('cd')
        body = [f'{l}:']
        for t in range(8, 16): body += step(t, v1, True)
        assert v1 == vq
        a.loop(body + [f's_sub_u32 s{S_CNT}, s{S_CNT}, 1', f's_cmp_lg_u32 s{S_CNT}, 0', f's_cbranch_scc1 {l}'])
        for t in range(NK - 8, NK): a.e(*step(t, vq, False))
    a.e('s_waitcnt lgkmcnt(0)', *stamp(st0 + 1))

def by_first_use(reads, mfmas):
    key = lambda r: min(i for i, m in enumerate(mfmas) if Ins(m).srcab & Ins(r).wr)
    return sorted(reads, key=key)

def chain_order(tiles_):
    return [(t, h ^ (i & 1)) for i, t in enumerate(tiles_) for h in (0, 1)]

def c_full(a, NK, NS, stage, reads, mf, addr_regs, st0):
    adv = adv_s(NS, stage)
    advv = [f'v_add_u32 v{r}, s{S_DELTA}, v{r}' for r in addr_regs]
    rd = [by_first_use(reads(p), mf(p)) for p in range(2)]
    a.e(f's_mov_b32 s{S_CUR}, 0', f's_mov_b32 s{S_CNT}, {(NK - 2) // 2}', *adv, 's_barrier', *stamp(st0))
    a.e(*rd[0], *advv)
    def it(p, last=False):
        q = [Ins(x).wr for x in rd[p]]
        if last: return sched(mf(p), [], q)
        f = bundle(rd[1 - p], advv)
        for i, x in enumerate(adv): f[i // 2].append(x)
        first_adv = min(i for i, b in enumerate(f) if any(y in advv for y in b))
        assert first_adv > 2
        return ['s_barrier'] + sched(mf(p), f, q, 1)
    l = lab('cf')
    a.loop([f'{l}:'] + it(0) + it(1) + [f's_sub_u32 s{S_CNT}, s{S_CNT}, 1', f's_cmp_lg_u32 s{S_CNT}, 0', f's_cbranch_scc1 {l}'])
    a.e(*it(0)); a.e(*it(1, True)); a.e('s_waitcnt lgkmcnt(0)', *stamp(st0 + 1))

def c_direct2(a, NK, NS, stage, reads, mf, addr_regs, DR, D, vaddr, init, st0, slots=None):
    R = NK // 8
    advv = lambda src: [f'v_add_u32 v{r}, {src}, v{r}' for r in addr_regs]
    def nk(t):
        p = t % 8
        L = []
        if p == 0 and t != 0: L += [f's_mov_b32 s{S_B0}, s{S_B1}', f's_add_u32 s{S_B1}, s{S_B1}, 65536', f's_cmp_eq_u32 s{S_B1}, s{S_T2}', f's_cselect_b32 s{S_B1}, s{S_BA}, s{S_B1}']
        return L + [f's_bitcmp1_b32 s{S_LM}, {p}', f's_cselect_b32 s{S_OA}, s{S_B1}, s{S_B0}', f's_add_u32 s{S_OA}, s{S_OA}, {p*8192}']
    ld = lambda slot, i: f'buffer_load_dwordx4 {vr(DR+16*slot+4*i,4)}, v{88+i}, {S4(SRD_A)}, s{S_OA} offen {LDF}'
    LO = (0, 2, 3, 1)
    adv = [] if slots else adv_s(NS, stage)
    rd = [by_first_use(reads(p), mf(p, DR)) for p in range(2)]
    dl = lambda t: f's{S_DELTA}' if not slots else (slots[t + 1] - slots[t]) & 0xffffffff
    vq = []
    for sl in range(D - 1):
        a.e(*nk(sl))
        for i in LO: a.e(ld(sl, i)); vq.append(Ins(ld(sl, i)).wr)
    init(4 * (D - 1))
    a.e(f's_mov_b32 s{S_CUR}, 0', f's_mov_b32 s{S_CNT}, {R - 1}', *adv, 's_barrier', *stamp(st0))
    a.e(*rd[0], *advv(dl(0)))
    def step(t, vq, generic):
        slot = t % D; p = t & 1
        q = [Ins(x).wr for x in rd[p]]
        if not generic and t == NK - 1: return sched(mf(p, DR + 16 * slot), [], q, 1, vq=vq)
        more = generic or t + D - 1 < NK
        f = bundle(rd[1 - p], advv(dl(t + 1)) if generic or t + 2 < NK else [])
        for i, x in enumerate(adv + (nk(t + D - 1) if more else [])): f[i // 2].append(x)
        if more:
            for i, pos in zip(LO, (6, 9, 12, 15)): f[pos].append(ld((slot - 1) % D, i))
        return ([] if slots else ['s_barrier']) + sched(mf(p, DR + 16 * slot), f, q, 1, vq=vq)
    if slots:
        for t in range(NK): a.e(*step(t, vq, False))
    else:
        v1 = list(vq); l = lab('cd')
        body = [f'{l}:']
        for t in range(8, 16): body += step(t, v1, True)
        assert v1 == vq
        a.loop(body + [f's_sub_u32 s{S_CNT}, s{S_CNT}, 1', f's_cmp_lg_u32 s{S_CNT}, 0', f's_cbranch_scc1 {l}'])
        for t in range(NK - 8, NK): a.e(*step(t, vq, False))
    a.e('s_waitcnt lgkmcnt(0)', *stamp(st0 + 1))

FB = (16, 188)
def w_reads2(regs): return lambda p: [f'ds_read_b64_tr_b16 {vr(FB[p]+16*h+4*n+2*q,2)}, v{regs[n]} offset:{h*4096+q*512}' for n in range(4) for h in range(2) for q in range(2)]
SN8 = [(n, x) for n in range(4) for x in ((0, 1) if n % 2 == 0 else (1, 0))]

def lanemap(a, v, hi, lo, add=0):
    f = lambda x: f's{x[1]}' if isinstance(x, tuple) else str(x)
    a.e(f's_lshl_b32 s{S_T0}, {f(hi)}, 1', f's_add_u32 s{S_T0}, s{S_T0}, {f(lo)}', f's_cmp_eq_u32 s{S_T0}, 3', f's_addc_u32 s{S_T0}, s{S_T0}, 5', f's_lshl_b32 s{S_T0}, s{S_T0}, 7',
        's_mov_b32 vcc_lo, 0xff000000', 's_mov_b32 vcc_hi, 0', f'v_mov_b32 v{v}, s{S_T0}', f'v_cndmask_b32 v{v}, 0, v{v}, vcc', f'v_lshl_add_u32 v{v}, v0, 4, v{v}')
    if add: a.e(f'v_add_u32 v{v}, {add}, v{v}')

def direct_setup(a, NK):
    a.e(f's_lshl_b32 s{S_LM}, 0x303, s{S_PHI}', f's_lshr_b32 s{S_LM}, s{S_LM}, 8', f's_mov_b32 s{S_B0}, s{S_BA}', f's_add_u32 s{S_B1}, s{S_BA}, 65536',
        f's_add_u32 s{S_T2}, s{S_BA}, {NK*8192}', f's_and_b32 s{S_T1}, s{S_WAVE}, 1')
    for b in range(2):
        lanemap(a, 88 + b, ('s', S_T1), b, 2048 * b)
        a.e(f'v_add_u32 v{90+b}, 4096, v{88+b}')

def w_reads(regs):
    return [[f'ds_read_b64_tr_b16 {vr(16+16*h+4*n+2*q,2)}, v{regs[n]} offset:{h*4096+q*512}' for n in range(4) for q in range(2)] for h in range(2)]

def sel(a, d, ptr0, off0, ptr1, off1, nbytes): G.srd_sel(a, d, ptr0, off0, ptr1, off1, nbytes)

XT = 18432; ST1 = XT + 24576; SL = 3 * ST1; QKV = ST1; PITCH = 400; PB = 72 * PITCH
WO_SLOTS = [131072 + 8192 * i for i in range(4)] + [100608 + 8192 * i for i in range(3)] + [8192 * i for i in range(5)] + [QKV + 8192 * i for i in range(4)]
K4_BASE, K4_NS, K4_AH = 98304, 8, 6
K4_SCR = 90112
D = 4; DR = 120
PF1 = int(env('PF1', '0'), 0); CPRIO = int(env('CPRIO', '0'))
NPF = int(env('NPF', '0')); K0W = int(env('K0W', '0')); W1_K0 = K0W * 256 * 64 * 128
REUSE = int(env('REUSE', '0')); WARM0 = int(env('WARM0', '1')); PF2N = int(env('PF2N', '14')); PF2D = int(env('PF2D', '1')); PF2S = int(env('PF2S', '0')); PF5 = int(env('PF5', '3')); PF4 = int(env('PF4', '1')); PFT = int(env('PFT', '0')); PF3 = int(env('PF3', '0')); CODEPF = env('CODEPF', '0') == '1'; PF2 = env('PF2', '1') == '1'; LATEW = env('LATEW', '1') == '1'

def gen_mega(a):
    kn = 'mega'
    a.e('.p2align 8', f'{MEGA}:', 's_cmp_ge_u32 s2, 256', f's_cbranch_scc1 {kn}_end',
        's_load_dwordx16 s[64:79], s[0:1], 0', 's_load_dwordx2 s[80:81], s[0:1], 64', 's_load_dwordx2 s[84:85], s[0:1], 80', f's_load_dwordx2 s[{P_DB}:{P_DB+1}], s[0:1], 72',
        'v_lshrrev_b32 v1, 6, v0', 'v_and_b32 v0, 63, v0', f'v_readfirstlane_b32 s{S_WAVE}, v1', f's_mov_b32 s{S_VAR}, 0')
    if PROF: a.e(f'v_mov_b32 v{PV}, 0', *stamp(-1))
    a.e('v_mov_b32 v130, 0', 'v_mov_b32 v131, 0', 'v_mov_b32 v134, 0', f's_cmp_ge_u32 s{S_WAVE}, 4', f's_cbranch_scc1 L_start')

    ACC1 = 112
    def acc1(m, rt): return ACC1 + 36 * m + 4 * rt
    MK = 86; AK0, AK1, AQ, AV0, AV1, AO = 220, 221, 223, 222, 254, 1
    def attn_static():
        a.e(f's_lshr_b32 s{S_T1}, s{S_WAVE}, 1', f's_and_b32 s{S_T2}, s{S_WAVE}, 1',
            f's_mul_i32 s{S_T0}, s{S_T2}, {PB}', f's_add_u32 s{S_T0}, s{S_T0}, {QKV}', f's_lshl_b32 s{S_G0+5}, s{S_T1}, 4')
        a.e(f'v_add_u32 v76, s{S_G0+5}, v4', 'v_lshlrev_b32 v77, 4, v5', f'v_add_u32 v77, s{S_T0}, v77',
            f'v_mul_u32_u24 v78, {PITCH}, v76', f'v_add_u32 v{AK0}, v78, v77', f'v_add_u32 v{AQ}, {8*PITCH}, v{AK0}', f'v_add_u32 v{AK0}, 128, v{AK0}',
            'v_add_u32 v76, 16, v76', 'v_min_u32 v76, 71, v76', f'v_mul_u32_u24 v78, {PITCH}, v76', f'v_add3_u32 v{AK1}, v78, v77, 64', f'v_add_u32 v{AK1}, 64, v{AK1}')
        a.e('v_lshl_add_u32 v76, v5, 2, v6', f'v_add_u32 v76, s{S_G0+5}, v76', 'v_lshlrev_b32 v77, 4, v7', f'v_add_u32 v77, s{S_T0}, v77', 'v_add_u32 v77, 256, v77',
            f'v_mul_u32_u24 v78, {PITCH}, v76', f'v_add_u32 v{AV0}, v78, v77',
            'v_add_u32 v76, 16, v76', 'v_min_u32 v76, 71, v76', f'v_mul_u32_u24 v78, {PITCH}, v76', f'v_add_u32 v{AV1}, v78, v77')
        a.e(f's_lshl_b32 s{S_G0+6}, s{S_TI}, 2', f's_add_u32 s{S_G0+6}, s{S_G0+6}, s{S_T1}', f's_lshl_b32 s{S_G0+6}, s{S_G0+6}, 17',
            f's_lshl_b32 s{S_G0+7}, s{S_TJ}, 13', f's_add_u32 s{S_G0+6}, s{S_G0+6}, s{S_G0+7}', f's_lshl_b32 s{S_G0+7}, s{S_T2}, 11', f's_add_u32 s{S_G0+6}, s{S_G0+6}, s{S_G0+7}',
            f's_and_b32 s{S_G0+7}, s{S_T1}, 1')
        lanemap(a, AO, ('s', S_G0 + 7), ('s', S_T2))
        a.e(f'v_add_u32 v{AO}, s{S_G0+6}, v{AO}')
        a.e('v_lshlrev_b32 v76, 2, v5', 'v_sub_u32 v76, v76, v4', f's_or_b32 s{S_G0+7}, s{S_TI}, s{S_T1}', f's_cmp_eq_u32 s{S_G0+7}, 0', f's_cselect_b32 s{S_G0+7}, 0, -1')
        for k in range(8):
            a.e(f'v_add_u32 v77, {16 * (k >> 2) + (k & 3) - 1}, v76', f'v_cmp_gt_u32 s[{MK+2*k}:{MK+1+2*k}], 8, v77')
        for k in range(4): a.e(f's_and_b32 s{MK+2*k}, s{MK+2*k}, s{S_G0+7}')
    def k1_setup_c():
        tiles(a, 8, 1)
        lane_fields(a)
        tr128_addr(a, [8], XT, 21, 22)
        a.e(f's_lshl_b32 s{S_T0}, s{S_WAVE}, 5', f'v_xor_b32 v8, s{S_T0}, v8',
            'v_lshrrev_b32 v21, 1, v4', 'v_xor_b32 v21, v21, v5', 'v_lshlrev_b32 v21, 4, v21', 'v_lshlrev_b32 v22, 7, v4', 'v_add_u32 v9, v21, v22', 'v_xor_b32 v10, 64, v9',
            'v_and_b32 v21, 1, v4', f'v_mul_u32_u24 v21, {PB}, v21', 'v_lshrrev_b32 v22, 1, v4', f'v_mul_u32_u24 v22, {PITCH}, v22',
            'v_lshlrev_b32 v23, 3, v5', 'v_add3_u32 v11, v21, v22, v23', f's_add_u32 s{S_T0}, s{S_T0}, {QKV}',
            f'v_add_u32 v11, s{S_T0}, v11', 'v_lshlrev_b32 v12, 3, v4', f'v_add_u32 v12, {SL}, v12')
        for r in range(ACC1, ACC1 + 108, 2): a.e(f'v_mov_b64 {vr(r,2)}, 0')
    if CPRIO: a.e(f's_setprio {CPRIO}')
    k1_setup_c()
    attn_static()
    a.e('s_waitcnt lgkmcnt(0)', f's_mov_b32 s{P_WL}, s{P_WS}', f's_mov_b32 s{P_WL+1}, s{P_WS+1}')
    srd(a, SRD_B, P_WS, 0, 0)
    srd(a, SRD_D, P_WQKV, 0, 1024 * 3072 * 2 * WARM0)
    a.e(f's_cmp_eq_u32 s{S_WAVE}, 3', f's_cselect_b32 s{SRD_D}, s{P_WO}, s{SRD_D}', f's_cselect_b32 s{SRD_D+1}, s{P_WO+1}, s{SRD_D+1}', f's_cselect_b32 s{SRD_D+2}, {2*MB*WARM0}, s{SRD_D+2}',
        f's_cselect_b32 s47, 0, s{S_WAVE}', 's_lshl_b32 s47, s47, 8', 's_add_u32 s47, s47, s2', 's_lshl_b32 s47, s47, 13', 'v_lshlrev_b32 v13, 7, v0', 's_barrier')
    warm = f'buffer_load_dword v15, v13, {S4(SRD_D)}, s47 offen'
    def warm_if(w, l): return [f's_cmp_lg_u32 s51, {w}', f's_cbranch_scc1 {l}', warm, f'{l}:']
    a.e(f's_mov_b32 s51, s{S_WAVE}', *warm_if(0, 'C_wm0'))
    def slow_strip():
        if not PF5: return
        srd(a, SRD_C, P_WQKV, 0, 1024 * 3072 * 2)
        a.e(f's_lshr_b32 s{S_T0}, s2, 3', f's_lshl_b32 s{S_T0}, s{S_T0}, 1', f's_add_u32 s{S_T0}, s{S_T0}, s{S_WAVE}', f's_sub_u32 s{S_T0}, s{S_T0}, 1', f's_lshl_b32 s{S_T0}, s{S_T0}, 6',
            f'v_add_u32 v16, s{S_T0}, v0', 'v_mul_u32_u24 v17, 21846, v16', 'v_lshrrev_b32 v17, 16, v17', 'v_mul_u32_u24 v18, 3, v17', 'v_sub_u32 v18, v16, v18',
            'v_mul_u32_u24 v17, 6144, v17', 'v_lshl_add_u32 v14, v18, 11, v17', f's_and_b32 s{S_T0}, s2, 1', f's_lshl_b32 s{S_T0}, s{S_T0}, 10', f's_add_u32 s{S_T0}, s{S_T0}, 384',
            f's_sub_u32 s{S_T1}, s{S_WAVE}, 1', f's_cmp_lt_u32 s{S_T1}, 2', f's_cselect_b32 s{SRD_C+2}, s{SRD_C+2}, 0',
            f'buffer_load_dword v15, v14, {S4(SRD_C)}, s{S_T0} offen')
    if PF5 & 1: slow_strip()
    if CODEPF:
        a.e(f's_cmp_lg_u32 s{S_WAVE}, 3', 's_cbranch_scc1 C_nc', 's_getpc_b64 s[44:45]', 'C_pc:', 's_lshr_b32 s46, s2, 3', 's_lshl_b32 s46, s46, 11', 'v_and_b32 v16, 15, v0',
            'v_lshlrev_b32 v16, 7, v16', 'v_add_u32 v16, s46, v16', 'v_min_u32 v16, mega_end-C_pc, v16', 'global_load_dword v15, v16, s[44:45]', 'C_nc:')
    a.e('C_top:'); a.flush_hist()
    reads = [[], []]; mf = [[], []]
    for h in range(2):
        F = 16 + 48 * h
        ra = [[f'ds_read_b64_tr_b16 {vr(F+4*m,2)}, v8 offset:{m*8192+h*4096}', f'ds_read_b64_tr_b16 {vr(F+4*m+2,2)}, v8 offset:{m*8192+h*4096+512}'] for m in range(3)]
        rb = [f'ds_read_b128 {vr(F+12+4*rt,4)}, v{9+h} offset:{rt*2048}' for rt in range(9)]
        reads[h] = ra[0] + [rb[0]] + ra[1] + ra[2] + rb[1:]
        mf[h] = [f'{MF16} {vr(acc1(m,rt),4)}, {vr(F+4*m,4)}, {vr(F+12+4*rt,4)}, {vr(acc1(m,rt),4)}' for rt in range(9) for m in (range(3) if rt % 2 == 0 or not SNAKE else range(2, -1, -1))]
    peel = [([], warm_if(1, 'C_wm1')), ([], warm_if(2, 'C_wm2')), ([], warm_if(3, 'C_wm3'))]
    STR, CW = 224, 242
    def fold(rt, o):
        ms = [m for m in range(3) if not (m == 0 and rt == 0)]
        st = vr(STR + 2 * rt, 2); L = []
        for m in ms: L += [f'v_pk_fma_f32 {vr(acc1(m,rt)+e,2)}, {vr(CW+4*m+e,2)}, {st}, {vr(acc1(m,rt)+e,2)} op_sel_hi:[1,0,1] neg_lo:[0,1,0] neg_hi:[0,1,0]' for e in (0, 2)]
        for m in ms: L += [f'v_pk_mul_f32 {vr(acc1(m,rt)+e,2)}, {vr(acc1(m,rt)+e,2)}, {st} op_sel:[0,1] op_sel_hi:[1,1]' for e in (0, 2)]
        for i, m in enumerate(ms):
            d = acc1(m, rt); r = o + 2 * i
            L += [f'v_cvt_pk_bf16_f32 v{r}, v{d}, v{d+1}', f'v_cvt_pk_bf16_f32 v{r+1}, v{d+2}, v{d+3}', f'ds_write_b64 v11, {vr(r,2)} offset:{rt*8*PITCH+m*128}']
        return L
    def fin1(mfs, m0):
        work = [f'v_mov_b32_dpp v{CW+4*m+r}, v{acc1(m,0)+r} row_newbcast:0 row_mask:0xf bank_mask:0xf' for m in range(m0, 3) for r in range(4)]
        ready = [len(work)]
        for rt in range(9): work += fold(rt, 16 + 6 * (rt % 8)); ready.append(len(work))
        done = 0
        for i, m in enumerate(mfs):
            a.e(m)
            rt = (i + m0) // 3 - 1
            lim = ready[rt + 1] if rt >= 0 else 0
            n = min(lim - done, 7)
            if n > 0: a.e(*work[done:done + n]); done += n
        a.e('s_barrier')
        a.e(*work[done:])
    sreads = [f'ds_read_b64 {vr(STR+2*rt,2)}, v12 offset:{rt*128}' for rt in range(9)]
    c_loop(a, 16, 3, ST1, reads, mf, [8, 9, 10], False, 0, peel, sreads, lambda mfs: fin1(mfs, 0))
    if CWREUSE:
        a.e('s_branch attn', 'C_top1:'); a.flush_hist()
        c_loop(a, 16, 3, ST1, reads, [x[1:] for x in mf], [8, 9, 10], False, 0, None, sreads, lambda mfs: fin1(mfs, 1))
    a.e('attn:'); a.flush_hist()
    cs = (32 ** -0.5) * 1.4426950408889634
    a.e(f'v_mov_b32 v18, {f32(cs)}', 'v_mov_b32 v19, 0xff800000')
    srd(a, SRD_D, P_WL, O_OFF, XP)
    a.e('s_mov_b32 s49, 4096')
    a.e('s_waitcnt lgkmcnt(0)', 's_barrier')
    B = [32, 80]
    for hd in range(2):
        b = B[hd]; o = 64 * hd
        a.e(f'ds_read_b128 {vr(b,4)}, v{AQ} offset:{o}', f'ds_read_b128 {vr(b+4,4)}, v{AK0} offset:{o}', f'ds_read_b128 {vr(b+8,4)}, v{AK1} offset:{o}')
    for hd in range(2):
        b = B[hd]; o = 64 * hd
        for dt in range(2): a.e(f'ds_read_b64_tr_b16 {vr(b+12+4*dt,2)}, v{AV0} offset:{o+8*dt}', f'ds_read_b64_tr_b16 {vr(b+14+4*dt,2)}, v{AV1} offset:{o+8*dt}')
    for hd in range(2):
        b = B[hd]
        a.e(f's_waitcnt lgkmcnt({11 - 3*hd})', f'{MF16} {vr(b+20,4)}, {vr(b+4,4)}, {vr(b,4)}, 0', f'{MF16} {vr(b+24,4)}, {vr(b+8,4)}, {vr(b,4)}, 0')
    def both(f):
        for x, y in zip(f(B[0]), f(B[1])): a.e(x, y)
    both(lambda b: [f'v_cndmask_b32 v{b+20+k}, v19, v{b+20+k}, s[{MK+2*k}:{MK+1+2*k}]' for k in range(8)])
    both(lambda b: [f'v_max3_f32 v{b+28}, v{b+20}, v{b+21}, v{b+22}', f'v_max3_f32 v{b+29}, v{b+23}, v{b+24}, v{b+25}',
                    f'v_max3_f32 v{b+28}, v{b+28}, v{b+26}, v{b+27}', f'v_max_f32 v{b+28}, v{b+28}, v{b+29}', f'v_mov_b32 v{b+29}, v{b+28}',
                    f'v_permlane16_swap_b32 v{b+28}, v{b+29}', f'v_max_f32 v{b+28}, v{b+28}, v{b+29}', f'v_mov_b32 v{b+29}, v{b+28}',
                    f'v_permlane32_swap_b32 v{b+28}, v{b+29}', f'v_max_f32 v{b+28}, v{b+28}, v{b+29}', f'v_mul_f32 v{b+28}, v18, v{b+28}'])
    both(lambda b: [f'v_fma_f32 v{b+20+k}, v{b+20+k}, v18, -v{b+28}' for k in range(8)])
    both(lambda b: [f'v_exp_f32 v{b+20+k}, v{b+20+k}' for k in range(8)])
    both(lambda b: [f'v_pk_add_f32 {vr(b+28,2)}, {vr(b+20,2)}, {vr(b+22,2)}', f'v_pk_add_f32 {vr(b+30,2)}, {vr(b+24,2)}, {vr(b+26,2)}',
                    f'v_pk_add_f32 {vr(b+28,2)}, {vr(b+28,2)}, {vr(b+30,2)}', f'v_add_f32 v{b+28}, v{b+28}, v{b+29}', f'v_mov_b32 v{b+29}, v{b+28}',
                    f'v_permlane16_swap_b32 v{b+28}, v{b+29}', f'v_add_f32 v{b+28}, v{b+28}, v{b+29}', f'v_mov_b32 v{b+29}, v{b+28}',
                    f'v_permlane32_swap_b32 v{b+28}, v{b+29}', f'v_add_f32 v{b+28}, v{b+28}, v{b+29}', f'v_rcp_f32 v{b+28}, v{b+28}'])
    both(lambda b: [f'v_pk_mul_f32 {vr(b+20+e,2)}, {vr(b+20+e,2)}, {vr(b+28,2)} op_sel_hi:[1,0]' for e in range(0, 8, 2)])
    both(lambda b: [f'v_cvt_pk_bf16_f32 v{b+32+e}, v{b+20+2*e}, v{b+21+2*e}' for e in range(4)])
    a.e('s_waitcnt lgkmcnt(0)')
    both(lambda b: [f'{MF16} {vr(b+36+4*dt,4)}, {vr(b+12+4*dt,4)}, {vr(b+32,4)}, 0' for dt in range(2)])
    both(lambda b: [f'v_cvt_pk_bf16_f32 v{b+e}, v{b+36+2*e}, v{b+37+2*e}' for e in range(4)])
    for hd in range(2): a.e(f'buffer_store_dwordx4 {vr(B[hd],4)}, v{AO}, {S4(SRD_D)}, {"s49" if hd else "0"} offen {SC}')
    a.e(f's_cmp_ge_u32 s{S_WAVE}, 4', 's_cbranch_scc1 L_k1done')

    ACC = 48; RES = 96
    def acc2(t, b): return ACC + 16 * b + 4 * t
    a.e(f's_lshl_b32 s{S_T0}, s{S_TI}, 2', f's_add_u32 s{S_T0}, s{S_T0}, s{S_WAVE}', f's_lshl_b32 s{S_BA}, s{S_T0}, 17', f's_lshl_b32 s{S_T1}, s{S_T0}, 5', f's_lshl_b32 s52, s{S_T0}, {8+STS}',
        'v_lshlrev_b32 v13, 1, v4', f'v_add_u32 v13, s{S_T1}, v13',
        'v_lshlrev_b32 v12, 11, v13', 'v_lshl_add_u32 v12, v3, 4, v12', f's_lshl_b32 s{S_T0}, s{S_TJ}, 7', f'v_add_u32 v12, s{S_T0}, v12', 'v_lshlrev_b32 v14, 4, v0',
        'v_lshlrev_b32 v87, 8, v13', 'v_lshl_add_u32 v87, v3, 4, v87', f's_lshl_b32 s{S_T0}, s{S_TJ}, 19', f'v_add_u32 v87, s{S_T0}, v87')
    srd(a, SRD_A, P_WL, O_OFF, XP)
    sel(a, SRD_C, P_X, 0, P_WS, X2_OFF, XB)
    a.e(f's_lshl_b32 s{SRD_C+2}, s{SRD_C+2}, s{S_VAR}')
    sel(a, SRD_B, P_WS, 0, P_WS, LSTR, 0); a.e(f's_add_u32 s{SRD_B}, s{SRD_B}, {ST_OFF}', f's_addc_u32 s{SRD_B+1}, s{SRD_B+1}, 0', f's_mov_b32 s{SRD_B+2}, {16*32768}')
    tr128_addr(a, [8, 9, 10, 11], WO_SLOTS[0], 16, 17)
    a.e('v_lshl_add_u32 v16, v4, 1, v2', 'v_lshlrev_b32 v16, 3, v16', 'v_add_u32 v16, s52, v16', f's_lshl_b32 s{S_T0}, s{S_TJ}, {14+STS}', f'v_add_u32 v112, s{S_T0}, v16',
        'v_lshrrev_b32 v17, 5, v0', f'v_lshlrev_b32 v17, {17+STS}, v17', 'v_add_u32 v113, v16, v17')
    a.e(f's_lshl_b32 s{S_T0}, s{S_WAVE}, 12', 'v_lshlrev_b32 v16, 8, v4', 'v_lshl_add_u32 v16, v5, 3, v16', f'v_add_u32 v16, s{S_T0}, v16',
        'v_and_b32 v17, 1, v4', 'v_bfe_u32 v18, v4, 2, 1', 'v_lshl_or_b32 v17, v18, 1, v17', 'v_lshl_add_u32 v114, v17, 5, v16',
        f's_lshl_b32 s{S_G0}, s{S_TJ}, 8', f's_lshl_b32 s{S_T1}, s{S_TI}, 2', f's_add_u32 s{S_G0}, s{S_G0}, s{S_T1}', f's_add_u32 s{S_G0}, s{S_G0}, s{S_WAVE}', f's_lshl_b32 s{S_G0}, s{S_G0}, 11')
    tr128_addr(a, [115], 0, 16, 17)
    a.e(f'v_add_u32 v115, s{S_T0}, v115')
    for t in range(1, 4): a.e(f's_add_u32 s{S_G0+t}, s{S_G0}, {t*131072}')
    for p in range(1, 8): a.e(f'v_add_u32 v{79+p}, {p*16384 << STS}, v113')
    direct_setup(a, 16)
    for t in range(2): lanemap(a, 92 + t, ('s', S_T1), t)
    for i in range(4): lanemap(a, 192 + i, i >> 1, i & 1, 2048 * i)
    a.e(f's_lshl_b32 s53, s{S_TJ}, 13', f's_add_u32 s53, s53, s{S_BA}')
    poll_setup(a, SRD_E, 119, 0, 0, [f's_lshl_b32 s{S_T0}, s{S_TI}, 4'], 16)
    a.e('s_waitcnt vmcnt(0)', 's_barrier', *stamp(2))
    a.e(f's_cmp_lg_u32 s{S_VAR}, 0', 's_cbranch_scc1 C_r1')
    for b in range(2):
        for P in range(2): a.e(f'buffer_load_dwordx4 {vr(RES+8*b+4*P,4)}, v12, {S4(SRD_C)}, 0 offen offset:{b*2048+P*64}')
    a.e('s_branch C_r2', 'C_r1:')
    for b in range(2):
        for P in range(2): a.e(f'buffer_load_dwordx4 {vr(RES+8*b+4*P,4)}, v87, {S4(SRD_C)}, 0 offen offset:{b*256+P*64} {LDF}')
    a.e('C_r2:')
    poll(a, SRD_E, 119, 16)
    a.e(*stamp(3))
    def init2(out):
        a.e(f's_waitcnt vmcnt({out})')
        for b in range(2):
            for P in range(2):
                r = RES + 8 * b + 4 * P
                a.e(f'v_permlane16_swap_b32 v{r}, v{r+2}', f'v_permlane16_swap_b32 v{r+1}, v{r+3}')
        for b in range(2):
            for P in range(2):
                r = RES + 8 * b + 4 * P
                a.e(*unpack4(r, r + 1, acc2(2 * P, b)), *unpack4(r + 2, r + 3, acc2(2 * P + 1, b)))
    mf2 = lambda h, bb: [f'{MF16} {vr(acc2(t,b),4)}, {vr(16+16*h+4*t,4)}, {vr(bb+4*b,4)}, {vr(acc2(t,b),4)}' for t in range(4) for b in ((0, 1) if t % 2 == 0 or not SNAKE else (1, 0))]
    if CHAIN & 2:
        mc2 = lambda p, bb: [f'{MF16} {vr(acc2(t,b),4)}, {vr(FB[p]+16*h+4*t,4)}, {vr(bb+8*h+4*b,4)}, {vr(acc2(t,b),4)}' for (t, b), h in chain_order(SN8)]
        c_direct2(a, 16, 0, 0, w_reads2([8, 9, 10, 11]), mc2, [8, 9, 10, 11], DR, D, 14, init2, 4, slots=WO_SLOTS)
    else: c_direct(a, 16, 0, 0, w_reads([8, 9, 10, 11]), mf2, [8, 9, 10, 11], DR, D, 14, init2, 4, slots=WO_SLOTS)
    a.e('s_barrier')
    srd(a, SRD_D, P_WL, X1_OFF, XP)
    srd(a, SRD_E, P_WL, H_OFF, XP)
    for b in range(2):
        d = acc2(0, b); T = 16 + 4 * b
        a.e(f'v_pk_add_f32 {vr(T,2)}, {vr(d,2)}, {vr(d+2,2)}', f'v_pk_mul_f32 {vr(T+2,2)}, {vr(d,2)}, {vr(d,2)}', f'v_pk_fma_f32 {vr(T+2,2)}, {vr(d+2,2)}, {vr(d+2,2)}, {vr(T+2,2)}')
        for e in range(4, 16, 2):
            a.e(f'v_pk_add_f32 {vr(T,2)}, {vr(T,2)}, {vr(d+e,2)}', f'v_pk_fma_f32 {vr(T+2,2)}, {vr(d+e,2)}, {vr(d+e,2)}, {vr(T+2,2)}')
        a.e(f'v_add_f32 v{24+b}, v{T}, v{T+1}', f'v_add_f32 v{26+b}, v{T+2}, v{T+3}')
    a.e('v_permlane16_swap_b32 v24, v25', 'v_permlane16_swap_b32 v26, v27', 'v_add_f32 v28, v24, v25', 'v_add_f32 v29, v26, v27',
        'v_mov_b32 v30, v28', 'v_mov_b32 v31, v29', 'v_permlane32_swap_b32 v28, v30', 'v_permlane32_swap_b32 v29, v31',
        'v_add_f32 v28, v28, v30', 'v_add_f32 v29, v29, v31', 'v_and_b32 v29, 0x7fffffff, v29',
        's_mov_b32 exec_hi, 0', f'buffer_store_dwordx2 v[28:29], v112, {S4(SRD_B)}, 0 offen {SC}', 's_mov_b64 exec, -1')
    for b in range(2):
        for t in range(4):
            r = RES + 8 * b + 2 * t; d = acc2(t, b)
            a.e(f'v_cvt_pk_bf16_f32 v{r}, v{d}, v{d+1}', f'v_cvt_pk_bf16_f32 v{r+1}, v{d+2}, v{d+3}')
    for b in range(2):
        for P in range(2):
            r = RES + 8 * b + 4 * P
            a.e(f'v_permlane16_swap_b32 v{r}, v{r+2}', f'v_permlane16_swap_b32 v{r+1}, v{r+3}')
    for t in range(1, 4): a.e(f'v_xor_b32 v{115+t}, {t << 5}, v115', f'v_xor_b32 v{120+t}, {t << 5}, v114')
    a.e('v_mov_b32 v120, v114', f's_mov_b32 s{S_CNT}, 0')
    body = ['k2_poll:'] + [f'buffer_load_dwordx2 {vr(32+2*p,2)}, v{113 if p == 0 else 79+p}, {S4(SRD_B)}, 0 offen {SC}' for p in range(8)]
    body += ['s_waitcnt vmcnt(0)', 'v_min3_i32 v16, v33, v35, v37', 'v_min3_i32 v17, v39, v41, v43', 'v_min3_i32 v16, v16, v45, v47',
             'v_min_i32 v16, v16, v17', 'v_cmp_gt_i32 vcc, 0, v16', f's_add_u32 s{S_CNT}, s{S_CNT}, 1', f's_cmp_gt_u32 s{S_CNT}, {SPIN}',
             's_cbranch_scc1 k2_pdone', 's_cbranch_vccnz k2_poll']
    a.loop(body)
    a.e('k2_pdone:', *stamp(6))
    for b in range(2):
        for P in range(2): a.e(f'buffer_store_dwordx4 {vr(RES+8*b+4*P,4)}, v{192+2*P+b}, {S4(SRD_D)}, s53 offen {SC}')
    a.e('v_pk_add_f32 v[32:33], v[32:33], v[34:35]', 'v_pk_add_f32 v[36:37], v[36:37], v[38:39]', 'v_pk_add_f32 v[40:41], v[40:41], v[42:43]',
        'v_pk_add_f32 v[44:45], v[44:45], v[46:47]', 'v_pk_add_f32 v[32:33], v[32:33], v[36:37]', 'v_pk_add_f32 v[40:41], v[40:41], v[44:45]',
        'v_pk_add_f32 v[32:33], v[32:33], v[40:41]', 'v_mov_b32 v34, v32', 'v_mov_b32 v35, v33',
        'v_permlane32_swap_b32 v32, v34', 'v_permlane32_swap_b32 v33, v35', 'v_add_f32 v32, v32, v34', 'v_add_f32 v33, v33, v35')
    stats_finish(a, 32, 33, 36, True)
    a.e('v_mov_b32 v34, v32', 'v_mov_b32 v35, v33', 'v_permlane16_swap_b32 v32, v34', 'v_permlane16_swap_b32 v33, v35')
    for b in range(2):
        st = vr(32 + 2 * b, 2); d = acc2(0, b); o = 160 + 8 * b
        for e in range(0, 16, 2): a.e(f'v_pk_add_f32 {vr(d+e,2)}, {vr(d+e,2)}, {st} op_sel_hi:[1,0] neg_lo:[0,1] neg_hi:[0,1]')
        for e in range(0, 16, 2): a.e(f'v_pk_mul_f32 {vr(d+e,2)}, {vr(d+e,2)}, {st} op_sel:[0,1] op_sel_hi:[1,1]')
        for t in range(4):
            a.e(f'v_cvt_pk_bf16_f32 v{o+2*t}, v{d+4*t}, v{d+4*t+1}', f'v_cvt_pk_bf16_f32 v{o+2*t+1}, v{d+4*t+2}, v{d+4*t+3}',
                f'ds_write_b64 v{120+t}, {vr(o+2*t,2)} offset:{128*b}')
    a.e('s_waitcnt lgkmcnt(0)')
    for t in range(4): a.e(f'ds_read_b64_tr_b16 {vr(176+4*t,2)}, v{115+t}', f'ds_read_b64_tr_b16 {vr(178+4*t,2)}, v{115+t} offset:512')
    for t in range(4): a.e(f's_waitcnt lgkmcnt({6-2*t})', f'buffer_store_dwordx4 {vr(176+4*t,4)}, v{92+(t&1)}, {S4(SRD_E)}, s{S_G0+t} offen {SC}')
    a.e('s_cmp_ge_u32 s2, 224', 's_cbranch_scc1 C_k3skip')

    ACC3 = 80
    def acc3(tf, td): return ACC3 + 16 * td + 4 * tf
    tiles(a, 7, 2)
    a.e(f's_and_b32 s{S_G0+2}, s{S_WAVE}, 1', f's_lshr_b32 s{S_T2}, s{S_WAVE}, 1',
        f's_lshl_b32 s{S_T0}, s{S_TJ}, 8', f's_lshl_b32 s{S_G0}, s{S_G0+2}, 7', f's_add_u32 s{S_T0}, s{S_T0}, s{S_G0}',
        'v_lshlrev_b32 v16, 3, v5', f'v_add_u32 v16, s{S_T0}, v16')
    srd(a, SRD_C, P_B1, 0, 3584 * 2)
    a.e('v_mov_b32 v155, v16')
    srd(a, SRD_D, P_WL, U_OFF, UP)
    a.e('v_lshl_add_u32 v17, v5, 3, v6', 'v_lshlrev_b32 v17, 8, v17', 'v_lshl_add_u32 v17, v7, 3, v17', 'v_lshl_or_b32 v18, v2, 2, v6', 'v_lshl_add_u32 v17, v18, 5, v17',
        f's_lshl_b32 s{S_T0}, s{S_G0+2}, 7', f's_add_u32 s{S_T0}, s{S_T0}, 16384', f'v_xor_b32 v18, s{S_T0}, v17', f's_lshl_b32 s{S_T0}, s{S_T2}, 13', f'v_add_u32 v12, s{S_T0}, v14')
    for t in range(4): a.e(f'v_xor_b32 v{8+t}, {t << 5}, v18')
    a.e('v_bfe_u32 v19, v4, 2, 1', 'v_lshlrev_b32 v17, 11, v19', 'v_lshl_add_u32 v17, v3, 8, v17', 'v_lshrrev_b32 v18, 3, v4', 'v_lshl_add_u32 v17, v18, 6, v17',
        'v_lshl_add_u32 v152, v7, 4, v17', 'v_add_u32 v153, 128, v152', 'v_cmp_eq_u32 vcc, 1, v3', 'v_lshlrev_b32 v17, 7, v19', 'v_add_u32 v18, 640, v17', 'v_lshlrev_b32 v17, 8, v19', 'v_add_u32 v17, 896, v17',
        'v_cndmask_b32 v18, 0, v18, vcc', 'v_cndmask_b32 v17, 0, v17, vcc', 'v_add_u32 v154, v153, v17', 'v_add_u32 v153, v153, v18',
        f's_lshl_b32 s{S_T0}, s{S_TI}, 1', f's_add_u32 s{S_T0}, s{S_T0}, s{S_T2}', f's_mul_i32 s{S_T0}, s{S_T0}, 224',
        f's_lshl_b32 s{S_G0}, s{S_TJ}, 2', f's_add_u32 s{S_T0}, s{S_T0}, s{S_G0}', f's_lshl_b32 s{S_G0}, s{S_G0+2}, 1', f's_add_u32 s{S_T0}, s{S_T0}, s{S_G0}',
        f's_lshl_b32 s{S_G0}, s{S_T0}, 12', f's_add_u32 s{S_G0+1}, s{S_G0}, {112*4096}', f's_add_u32 s{S_G0+2}, s{S_G0}, 4096', f's_add_u32 s{S_G0+3}, s{S_G0+1}, 4096')
    a.e('s_waitcnt vmcnt(0)', 's_barrier', *stamp(7))
    for tf in range(4): a.e(f'buffer_load_dwordx2 {vr(144+2*tf,2)}, v155, {S4(SRD_C)}, 0 offen offset:{32*tf}')
    a.e('s_waitcnt vmcnt(0)')
    for tf in range(4):
        a.e(*unpack4(144 + 2 * tf, 145 + 2 * tf, acc3(tf, 0)))
        for td in range(1, 4): a.e(f'v_mov_b64 {vr(acc3(tf,td),2)}, {vr(acc3(tf,0),2)}', f'v_mov_b64 {vr(acc3(tf,td)+2,2)}, {vr(acc3(tf,0)+2,2)}')
    reads = [[], []]; mf = [[], []]
    for h in range(2):
        F = 16 + 32 * h
        rd = lambda dst, av: [f'ds_read_b64_tr_b16 {vr(dst,2)}, v{av} offset:{h*8192}', f'ds_read_b64_tr_b16 {vr(dst+2,2)}, v{av} offset:{h*8192+1024}']
        ra = [rd(F + 4 * t, 8 + t) for t in range(4)]
        rb = [[f'ds_read_b128 {vr(F+16+4*t,4)}, v12 offset:{(2*t+h)*1024}'] for t in range(4)]
        if SNAKE:
            reads[h] = ra[0] + rb[0] + rb[1] + ra[1] + ra[2] + rb[2] + rb[3] + ra[3]
            order = [(0,0),(0,1),(1,1),(1,0),(2,0),(2,1),(2,2),(1,2),(0,2),(0,3),(1,3),(2,3),(3,3),(3,2),(3,1),(3,0)]
        else:
            for t in range(4): reads[h] += ra[t] + rb[t]
            order = sorted([(tf, td) for tf in range(4) for td in range(4)], key=lambda x: (max(x), x))
        for tf, td in order:
            mf[h].append(f'{MF16} {vr(acc3(tf,td),4)}, {vr(F+4*tf,4)}, {vr(F+16+4*td,4)}, {vr(acc3(tf,td),4)}')
    if ONEP: a.e('s_barrier')
    if CHAIN & 1:
        F3 = (16, 156)
        r3 = lambda p: [f'ds_read_b64_tr_b16 {vr(F3[p]+32*h+4*t+2*q,2)}, v{8+t} offset:{h*8192+q*1024}' for t in range(4) for h in range(2) for q in range(2)] + \
                       [f'ds_read_b128 {vr(F3[p]+32*h+16+4*t,4)}, v12 offset:{(2*t+h)*1024}' for t in range(4) for h in range(2)]
        m3 = lambda p: [f'{MF16} {vr(acc3(tf,td),4)}, {vr(F3[p]+32*h+4*tf,4)}, {vr(F3[p]+32*h+16+4*td,4)}, {vr(acc3(tf,td),4)}' for (tf, td), h in chain_order(order)]
        c_full(a, 32, 5, 32768, r3, m3, list(range(8, 13)), 8)
    else: c_loop(a, 32, 5, 32768, reads, mf, list(range(8, 13)), True, 8)
    c1 = -2.0 * 0.7978845608028654 * 1.4426950408889634
    a.e(f'v_mov_b32 v16, {f32(c1)}', f'v_mov_b32 v17, {f32(c1 * 0.044715)}')
    k = 0
    for td in range(4):
        for P in range(2):
            d = acc3(2 * P, td); T = 24 + 16 * (k & 1); k += 1
            O = 160 + 4 * k
            for e in range(0, 8, 2): a.e(f'v_pk_mul_f32 {vr(T+e,2)}, {vr(d+e,2)}, {vr(d+e,2)}')
            for e in range(0, 8, 2): a.e(f'v_pk_fma_f32 {vr(T+e,2)}, {vr(T+e,2)}, v[16:17], v[16:17] op_sel:[0,1,0] op_sel_hi:[1,1,0]')
            for e in range(0, 8, 2): a.e(f'v_pk_mul_f32 {vr(T+e,2)}, {vr(T+e,2)}, {vr(d+e,2)}')
            for e in range(8): a.e(f'v_exp_f32 v{T+e}, v{T+e}')
            for e in range(0, 8, 2): a.e(f'v_pk_add_f32 {vr(T+e,2)}, {vr(T+e,2)}, 1.0 op_sel_hi:[1,0]')
            for e in range(8): a.e(f'v_rcp_f32 v{T+e}, v{T+e}')
            for e in range(0, 8, 2): a.e(f'v_pk_mul_f32 {vr(T+e,2)}, {vr(T+e,2)}, {vr(d+e,2)}')
            for e in range(4): a.e(f'v_cvt_pk_bf16_f32 v{O+e}, v{T+2*e}, v{T+2*e+1}')
            a.e(f'v_permlane16_swap_b32 v{O}, v{O+2}', f'v_permlane16_swap_b32 v{O+1}, v{O+3}')
            a.e(f'buffer_store_dwordx4 {vr(O,4)}, v{(152, 153, 152, 154)[td]}, {S4(SRD_D)}, s{S_G0+(td>>1)+2*P} offen {SC}')
    a.e('C_k3skip:'); a.flush_hist()

    def acc4(aa, n): return ACC + 8 * n + 4 * aa
    tiles(a, 8, 2)
    a.e(f's_lshl_b32 s{S_T0}, s{S_TJ}, 6', f'v_add_u32 v13, s{S_T0}, v4', 'v_lshlrev_b32 v13, 1, v13',
        f's_lshl_b32 s{S_T1}, s{S_WAVE}, 4', f's_add_u32 s{S_T0}, s{S_T0}, s{S_T1}', f'v_add_u32 v16, s{S_T0}, v5',
        'v_lshlrev_b32 v12, 11, v16', 'v_lshl_add_u32 v12, v4, 4, v12', f's_lshl_b32 s{S_T0}, s{S_TI}, 8', f'v_add_u32 v12, s{S_T0}, v12',
        'v_lshlrev_b32 v186, 8, v16', 'v_and_b32 v17, 7, v0', 'v_lshl_add_u32 v186, v17, 4, v186', 'v_lshrrev_b32 v17, 3, v4', 'v_lshl_add_u32 v186, v17, 19, v186',
        f's_lshl_b32 s{S_T0}, s{S_TI}, 20', f'v_add_u32 v186, s{S_T0}, v186',
        'v_mul_u32_u24 v189, 272, v4', 'v_lshl_add_u32 v189, v5, 4, v189', f's_lshl_b32 s{S_T0}, s{S_WAVE}, 6', f's_add_u32 s{S_T0}, s{S_T0}, 1024', f'v_add_u32 v189, s{S_T0}, v189',
        f'v_add_u32 v16, s{S_T1}, v5', 'v_mul_u32_u24 v190, 272, v16', 'v_lshl_add_u32 v190, v4, 4, v190', 'v_add_u32 v190, 1024, v190',
        f's_lshl_b32 s{S_BA}, s{S_TI}, 2', f's_add_u32 s{S_BA}, s{S_BA}, s{S_WAVE}', f's_mul_i32 s{S_BA}, s{S_BA}, {56*8192}',
        's_mov_b32 s45, 8192', 's_mov_b32 s46, 16384', 's_mov_b32 s47, 24576')
    so = ['0', 's45', 's46', 's47']
    sb = ['0', 's52', 's53', 's54']
    a.e('v_lshrrev_b32 v16, 1, v4', 'v_lshlrev_b32 v16, 4, v16', 'v_lshl_add_u32 v16, v3, 8, v16', 'v_and_b32 v17, 1, v4', 'v_lshl_add_u32 v187, v17, 11, v16',
        f's_and_b32 s{S_T0}, s{S_WAVE}, 1', f's_lshl_b32 s{S_T0}, s{S_T0}, 1', f'v_add_u32 v17, s{S_T0}, v17', 'v_cmp_eq_u32 vcc, 3, v17', 'v_addc_co_u32 v17, vcc, 5, v17, vcc',
        'v_lshlrev_b32 v17, 7, v17', 'v_cmp_eq_u32 vcc, 1, v3', 'v_add_u32 v188, 128, v187', 'v_cndmask_b32 v17, 0, v17, vcc', 'v_add_u32 v188, v188, v17',
        f's_lshl_b32 s44, s{S_TJ}, 6', f's_lshl_b32 s{S_T0}, s{S_TI}, 2', f's_add_u32 s44, s44, s{S_T0}', f's_add_u32 s44, s44, s{S_WAVE}', 's_lshl_b32 s44, s44, 12', 's_add_u32 s51, s44, 131072')
    srd(a, SRD_A, P_WL, U_OFF, UP)
    srd(a, SRD_C, P_WL, X1_OFF, XP)
    srd(a, SRD_B, P_B2, 0, 4096)
    tr128_addr(a, [8, 9, 10, 11], K4_BASE, 16, 17)
    direct_setup(a, 56)
    a.e('v_lshlrev_b32 v184, 3, v0', f's_lshl_b32 s{S_T0}, s{S_WAVE}, 9', f's_add_u32 s{S_T0}, s{S_T0}, {K4_SCR}', f'v_add_u32 v185, s{S_T0}, v184')
    poll_setup(a, SRD_E, 15, 2, 0, [f's_lshl_b32 s{S_T0}, s{S_TI}, 5'], 28)
    a.e('s_waitcnt vmcnt(0)', 's_barrier', *stamp(10))
    for n in range(4): a.e(f'buffer_load_ushort v{RES+16+2*n}, v13, {S4(SRD_B)}, 0 offen offset:{32*n}')
    if PF2:
        a.e('s_cmp_lt_u32 s2, 224', 's_cbranch_scc1 C_nopf', f's_cmp_lg_u32 s{S_VAR}, 0', 's_cbranch_scc1 C_nopf')
        srd(a, SRD_D, P_W2, 0, 3584 * 2048 * 2)
        a.e(f's_sub_u32 s{S_T0}, s2, 224', f's_lshl_b32 s{S_T0}, s{S_T0}, 2', f's_add_u32 s{S_T0}, s{S_T0}, s{S_WAVE}', f's_lshl_b32 s{S_T0}, s{S_T0}, 13', 'v_lshlrev_b32 v17, 7, v0')
        for j in range(PF2D): a.e('s_sleep 127')
        for j in range(PF2N):
            if PF2S: a.e(f's_sleep {PF2S}')
            a.e(f'buffer_load_dword v18, v17, {S4(SRD_D)}, s{S_T0} offen', f's_add_u32 s{S_T0}, s{S_T0}, {128*8192}', *(['s_waitcnt vmcnt(1)'] if j else []))
        a.e('C_nopf:')
    poll(a, SRD_E, 15, 16)
    a.e(*stamp(11))
    for n in range(4): a.e(f'buffer_load_dwordx4 {vr(RES+4*n,4)}, v{187+(n&1)}, {S4(SRD_C)}, s{51 if n >> 1 else 44} offen {LDF}')
    sel(a, SRD_E, P_WS, X2_OFF, P_OUT, 0, XP)
    a.e(f's_lshr_b32 s{SRD_E+2}, s{SRD_E+2}, s{S_VAR}')
    srd(a, SRD_B, P_WS, LSTR + RS_OFF, 8 * 32768)
    def init4(out):
        a.e(f's_waitcnt vmcnt({out})')
        for n in range(4):
            a.e(f'v_lshlrev_b32 v{RES+16+2*n}, 16, v{RES+16+2*n}')
            a.e(*unpack4(RES + 4 * n, RES + 4 * n + 1, acc4(0, n)), *unpack4(RES + 4 * n + 2, RES + 4 * n + 3, acc4(1, n)))
            for e in range(0, 8, 2): a.e(f'v_pk_add_f32 {vr(acc4(0,n)+e,2)}, {vr(acc4(0,n)+e,2)}, {vr(RES+16+2*n,2)} op_sel_hi:[1,0]')
    mf4 = lambda h, b: [f'{MF16} {vr(acc4(aa,n),4)}, {vr(b+4*aa,4)}, {vr(16+16*h+4*n,4)}, {vr(acc4(aa,n),4)}' for n in range(4) for aa in ((0, 1) if n % 2 == 0 or not SNAKE else (1, 0))]
    if CHAIN & 4:
        mc4 = lambda p, bb: [f'{MF16} {vr(acc4(aa,n),4)}, {vr(bb+8*h+4*aa,4)}, {vr(FB[p]+16*h+4*n,4)}, {vr(acc4(aa,n),4)}' for (n, aa), h in chain_order(SN8)]
        c_direct2(a, 56, K4_NS, 8192, w_reads2([8, 9, 10, 11]), mc4, [8, 9, 10, 11], DR, D, 14, init4, 12)
    else: c_direct(a, 56, K4_NS, 8192, w_reads([8, 9, 10, 11]), mf4, [8, 9, 10, 11], DR, D, 14, init4, 12)
    def st4a():
        for n in range(4):
            for e in range(4): a.e(f'v_cvt_pk_bf16_f32 v{RES+4*n+e}, v{acc4(0,n)+2*e}, v{acc4(0,n)+2*e+1}')
            a.e(f'ds_write_b128 v189, {vr(RES+4*n,4)} offset:{n*16*272}')
    def st4b(blk):
        for q in range(4): a.e(f'ds_read_b128 {vr(RES+4*q,4)}, v190 offset:{q*4*272}')
        for q in range(4):
            a.e(f's_waitcnt lgkmcnt({3-q})', f'buffer_store_dwordx4 {vr(RES+4*q,4)}, v186, {S4(SRD_E)}, 0 offen offset:{1024*q} {SC}' if blk else
                f'buffer_store_dwordx4 {vr(RES+4*q,4)}, v12, {S4(SRD_E)}, {so[q]} offen')
    a.e(f's_cmp_eq_u32 s{S_VAR}, 0', 's_cbranch_scc1 C_st')
    st4a()
    a.e('s_waitcnt lgkmcnt(0)', 's_barrier')
    st4b(False)
    a.e('s_branch C_end', 'C_st:', 's_nop 7')
    for n in range(4):
        d = acc4(0, n); T = 16 + 4 * n
        a.e(f'v_pk_add_f32 {vr(T,2)}, {vr(d,2)}, {vr(d+2,2)}', f'v_pk_mul_f32 {vr(T+2,2)}, {vr(d,2)}, {vr(d,2)}', f'v_pk_fma_f32 {vr(T+2,2)}, {vr(d+2,2)}, {vr(d+2,2)}, {vr(T+2,2)}')
        for e in (4, 6): a.e(f'v_pk_add_f32 {vr(T,2)}, {vr(T,2)}, {vr(d+e,2)}', f'v_pk_fma_f32 {vr(T+2,2)}, {vr(d+e,2)}, {vr(d+e,2)}, {vr(T+2,2)}')
        a.e(f'v_add_f32 v{32+n}, v{T}, v{T+1}', f'v_add_f32 v{36+n}, v{T+2}, v{T+3}')
    for b in (32, 36): a.e(f'v_permlane16_swap_b32 v{b}, v{b+1}', f'v_permlane16_swap_b32 v{b+2}, v{b+3}')
    for b in (32, 36): a.e(f'v_add_f32 v{b}, v{b}, v{b+1}', f'v_add_f32 v{b+2}, v{b+2}, v{b+3}')
    a.e('v_permlane32_swap_b32 v32, v34', 'v_permlane32_swap_b32 v36, v38', 'v_add_f32 v40, v32, v34', 'v_add_f32 v41, v36, v38',
        'ds_write_b64 v185, v[40:41]', f's_lshl_b32 s{S_T0}, s{S_TI}, 15', f's_lshl_b32 s{S_T1}, s{S_TJ}, 10', f's_add_u32 s{S_T0}, s{S_T0}, s{S_T1}', f's_add_u32 s{S_T0}, s{S_T0}, 512',
        )
    st4a()
    a.e('s_waitcnt lgkmcnt(0)', 's_barrier',
        f's_cmp_lg_u32 s{S_WAVE}, 0', 's_cbranch_scc1 C_nost',
        'ds_read_b64 v[44:45], v185 offset:512', 'ds_read_b64 v[46:47], v185 offset:1024', 'ds_read_b64 v[18:19], v185 offset:1536', 's_waitcnt lgkmcnt(0)',
        'v_pk_add_f32 v[40:41], v[40:41], v[44:45]', 'v_pk_add_f32 v[46:47], v[46:47], v[18:19]', 'v_pk_add_f32 v[40:41], v[40:41], v[46:47]',
        f'buffer_store_dwordx2 v[40:41], v184, {S4(SRD_B)}, s{S_T0} offen {SC}', 'C_nost:', 's_nop 1')
    st4b(True)
    k1_setup_c()
    a.e('s_waitcnt vmcnt(0)', 's_barrier', *stamp(14))
    if PF5 & 2: slow_strip()
    if ONEP: a.e('s_barrier')
    a.e(f's_mov_b32 s{S_VAR}, 1', 's_mov_b32 s51, 9', f's_add_u32 s{P_WL}, s{P_WS}, {0 if REUSE else LSTR}', f's_addc_u32 s{P_WL+1}, s{P_WS+1}, 0', 's_branch C_top1' if CWREUSE else 's_branch C_top')
    a.e('C_end:'); dump(a)
    a.e('s_endpgm')

    gx = dict(sg=S_G0, dmas=[(8 + i, 1024 * i, 'A', None) for i in range(4)])
    gw = [dict(sg=S_G0 + 2 + m, dmas=[(13 + 2 * m, 0, 'B', None), (14 + 2 * m, 1024, 'B', None)]) for m in range(3)]
    gh = dict(sg=S_G0 + 1, dmas=[(12, 0, 'A', 's[52:53]')])
    def k1_setup_l(layer):
        tiles(a, 8, 1)
        a.e(f's_mov_b32 s{S_T2}, s{S_LWV}')
        dma_w128(a, [13, 14], 6144, swz128(a), 16, 2, 3, 4)
        a.e('v_add_u32 v15, 2048, v13', 'v_add_u32 v16, 2048, v14', 'v_add_u32 v17, 4096, v13', 'v_add_u32 v18, 4096, v14',
            f's_lshl_b32 s{S_G0+2}, s{S_T2}, 11', f's_add_u32 s{S_G0+2}, s{S_G0+2}, {XT}', f's_add_u32 s{S_G0+3}, s{S_G0+2}, 8192', f's_add_u32 s{S_G0+4}, s{S_G0+2}, 16384',
            f's_lshl_b32 s{S_BB}, s{S_TJ}, 7')
        if layer == 1:
            srd(a, SRD_B, P_WQKV, 0, 1024 * 3072 * 2)
            pre_w(a, 16, 3, 2, ST1, 0, 64 * 6144, gw)
        def xaddr(v, comp):
            a.e('v_lshrrev_b32 v2, 3, v0', f'v_add_u32 v2, s{S_T0}, v2', 'v_bfe_u32 v3, v2, 1, 3', 'v_and_b32 v4, 7, v0', 'v_xor_b32 v3, v3, v4', 'v_lshlrev_b32 v3, 4, v3',
                f'v_add_u32 v2, s{S_T1}, v2', 'v_max_i32 v2, 0, v2', f'v_lshlrev_b32 v2, {8 if layer else 11}, v2', f'v_add_u32 v{v}, v2, v3')
            if comp: a.e(f'v_subrev_u32 v{v}, {comp}, v{v}')
        a.e(f's_lshl_b32 s{S_T1}, s{S_TI}, 7', f's_sub_u32 s{S_T1}, s{S_T1}, 16')
        for i in range(2):
            a.e(f's_lshl_b32 s{S_T0}, s{S_T2}, 5', f's_add_u32 s{S_T0}, s{S_T0}, {16+8*i}')
            xaddr(8 + i, 1024 * i)
            a.e(f'v_add_u32 v{10+i}, {16*(256 if layer else 2048)-2048}, v{8+i}')
        a.e(f's_lshl_b32 s{S_T0}, s{S_T2}, 3'); xaddr(12, 0)
        a.e(f's_lshl_b32 s{S_G0}, s{S_T2}, 12', f's_add_u32 s{S_G0}, s{S_G0}, 2048', f's_lshl_b32 s{S_G0+1}, s{S_T2}, 10', f's_mov_b32 s{S_BA}, 0', f's_mov_b32 s54, {524288 if layer else 128}',
            f's_cmp_eq_u32 s{S_T2}, 0', 's_cselect_b32 s52, 0xffffff00, -1', 's_mov_b32 s53, -1')
        a.e('v_mov_b32 v20, 0x3f803f80', 'v_mov_b32 v21, v20', 'v_mov_b32 v22, v20', 'v_mov_b32 v23, v20', 'v_lshlrev_b32 v24, 4, v0', f'v_add_u32 v25, {2*ST1}, v24',
            's_mov_b64 exec, 0xff', 'ds_write_b128 v24, v[20:23]', f'ds_write_b128 v24, v[20:23] offset:{ST1}', 'ds_write_b128 v25, v[20:23]', 's_mov_b64 exec, -1')
        a.e(f's_lshl_b32 s{S_T0}, s{S_T2}, 6', f'v_add_u32 v26, s{S_T0}, v0', 'v_min_u32 v26, 143, v26', f'v_add_u32 v27, s{S_T1}, v26', 'v_max_i32 v27, 0, v27',
            'v_lshrrev_b32 v2, 6, v27', 'v_and_b32 v27, 63, v27', 'v_lshlrev_b32 v27, 3, v27', 'v_lshl_add_u32 v27, v2, 10, v27', 'v_add_u32 v27, 512, v27', 'v_lshlrev_b32 v26, 3, v26', f'v_add_u32 v26, {SL}, v26')
        if layer == 1:
            srd(a, SRD_A, P_WS, X2_OFF, XP)
            srd(a, SRD_D, P_WS, LSTR + RS_OFF, 8 * 32768)
            a.e('s_waitcnt lgkmcnt(0)')
    a.e('L_start:'); a.flush_hist()
    a.e(f's_sub_u32 s{S_LWV}, s{S_WAVE}, 4', 'v_and_b32 v134, 3, v0', 'v_lshlrev_b32 v134, 6, v134')
    k1_setup_l(0)
    a.e(f's_lshl_b32 s{S_T0}, s2, 3', f's_lshl_b32 s{S_T1}, s{S_LWV}, 1', f's_add_u32 s{S_T0}, s{S_T0}, s{S_T1}',
        'v_lshrrev_b32 v72, 5, v0', f'v_add_u32 v72, s{S_T0}, v72', 'v_lshlrev_b32 v46, 11, v72', 'v_and_b32 v2, 31, v0', 'v_lshl_add_u32 v46, v2, 4, v46',
        'v_lshrrev_b32 v2, 6, v72', 'v_and_b32 v72, 63, v72', 'v_lshlrev_b32 v72, 3, v72', 'v_lshl_add_u32 v72, v2, 10, v72', f'v_add_u32 v72, {RS_OFF + 512}, v72',
        f's_cmp_eq_u32 s{S_LWV}, 0', 's_cselect_b32 s58, 0, -1', 'v_mov_b32 v64, s58', 'v_mov_b32 v65, s58', 'v_mov_b32 v66, s58', 'v_mov_b32 v67, s58',
        'v_lshrrev_b32 v2, 3, v0', f'v_lshlrev_b32 v2, {8+FSH}, v2', 'v_and_b32 v3, 7, v0', 'v_lshl_add_u32 v2, v3, 4, v2', 'v_lshrrev_b32 v4, 4, v0', 'v_and_b32 v3, 15, v0', 'v_lshlrev_b32 v3, 4, v3', f'v_lshl_add_u32 v3, v4, {8+STS}, v3',
        's_cselect_b64 vcc, -1, 0', f's_lshl_b32 s58, s2, {FSH}', f's_add_u32 s58, s58, {FL_OFF}', f's_lshl_b32 s59, s2, {10+STS}', f's_add_u32 s59, s59, {ST_OFF}',
        f's_cmp_eq_u32 s{S_LWV}, 0', 's_cselect_b32 s58, s58, s59', f's_add_u32 s59, s59, {LSTR}', f's_cmp_eq_u32 s{S_LWV}, 2', 's_cselect_b32 s58, s59, s58',
        f's_cmp_eq_u32 s{S_LWV}, 3', f's_cselect_b32 s58, {128*MB}, s58',
        'v_cndmask_b32 v47, v3, v2, vcc', 's_and_b32 s59, s2, 3', 's_lshl_b32 s59, s59, 6', 'v_mov_b32 v73, s59', 'v_mov_b32 v74, 1')
    flag_idx(a, 0, S_TI, 16, S_TJ)
    a.e(f's_mov_b32 s{S_LW}, 0', *lstamp(29), 's_waitcnt lgkmcnt(0)', *lstamp(61))
    srd(a, SRD_A, P_X, 0, XB)
    srd(a, SRD_B, P_WQKV, 0, 1024 * 3072 * 2)
    a.e('s_branch L_first')
    a.e('L_top:'); a.flush_hist()
    flag_idx(a, 0, S_TI, 16, S_TJ)
    srd(a, SRD_E, P_W1, 0, 2048 * 3584 * 2)
    gl = f'global_load_dword v29, v134, s[{P_DB}:{P_DB+1}] {SC}'
    def h_gate(n):
        if SINGLE: a.e(gl)
    def h_fetch(n):
        l = lab('st')
        if SINGLE:
            a.e(f's_cmp_lg_u32 s{S_VAR}, 0', f's_cbranch_scc1 {l}g', f's_waitcnt vmcnt({n})', 's_mov_b32 s61, 0')
            a.loop([f'{l}p:', 'v_cmp_gt_u32 vcc, 64, v29', 's_add_u32 s61, s61, 1', f's_cmp_gt_u32 s61, {SPIN}', f's_cbranch_scc1 {l}g', f's_cbranch_vccz {l}g', gl, 's_waitcnt vmcnt(0)', f's_branch {l}p'])
            a.e(f'{l}g:')
        for p in range(8):
            if p: a.e(f's_mov_b32 s{S_T0}, {p*32768}')
            a.e(f'buffer_load_dwordx2 {vr(30+2*p,2)}, v27, {S4(SRD_D)}, {"0" if p == 0 else f"s{S_T0}"} offen {LDF}')
    def h_fin(n):
        a.e(f's_waitcnt vmcnt({n})', 'v_pk_add_f32 v[30:31], v[30:31], v[32:33]', 'v_pk_add_f32 v[34:35], v[34:35], v[36:37]', 'v_pk_add_f32 v[38:39], v[38:39], v[40:41]',
            'v_pk_add_f32 v[42:43], v[42:43], v[44:45]', 'v_pk_add_f32 v[30:31], v[30:31], v[34:35]', 'v_pk_add_f32 v[38:39], v[38:39], v[42:43]',
            'v_pk_add_f32 v[30:31], v[30:31], v[38:39]')
        stats_finish(a, 30, 31, 32, False)
        a.e('ds_write_b64 v26, v[30:31]', 's_waitcnt lgkmcnt(0)')
    HK = (h_gate, h_fetch)
    def only0(f):
        def g(n):
            l = lab('e'); a.e(f's_cmp_lg_u32 s{S_VAR}, 0', f's_cbranch_scc1 {l}'); f(n); a.e(f'{l}:', 's_nop 1')
        return g
    def e_load(n):
        a.e(*lstamp(63))
        for c in range(4): a.e(f'buffer_load_dwordx4 {vr(48+4*c,4)}, v46, {S4(SRD_A)}, 0 offen offset:{512*c}')
        a.e(f'buffer_store_dwordx4 v[64:67], v47, {S4(SRD_C)}, s58 offen {SC}', 's_barrier')
    def e_stat(n):
        a.e('v_mov_b32 v68, 0', 'v_mov_b32 v69, 0', 'v_mov_b32 v70, 0x3f803f80', f's_waitcnt vmcnt({n+1})')
        for e in range(16): a.e(f'v_dot2c_f32_bf16 v68, v70, v{48+e}', f'v_dot2c_f32_bf16 v69, v{48+e}, v{48+e}')
        for ctl in ('quad_perm:[1,0,3,2]', 'quad_perm:[2,3,0,1]', 'row_half_mirror', 'row_mirror'):
            a.e(f'v_add_f32_dpp v68, v68, v68 {ctl} row_mask:0xf bank_mask:0xf', f'v_add_f32_dpp v69, v69, v69 {ctl} row_mask:0xf bank_mask:0xf')
        a.e('v_mov_b32 v70, v68', 'v_mov_b32 v71, v69', 'v_permlane16_swap_b32 v68, v70', 'v_permlane16_swap_b32 v69, v71', 'v_add_f32 v68, v68, v70', 'v_add_f32 v69, v69, v71',
            's_mov_b32 exec_lo, 1', 's_mov_b32 exec_hi, 1', f'buffer_store_dwordx2 v[68:69], v72, {S4(SRD_C)}, 0 offen {SC}', 's_mov_b64 exec, -1')
    def e_gate(n):
        l = lab('g'); a.e(f's_cmp_lg_u32 s{S_LWV}, 0', f's_cbranch_scc1 {l}', 's_mov_b64 exec, 1', f'global_atomic_add v73, v74, s[{P_DB}:{P_DB+1}] sc1', 's_mov_b64 exec, -1', f'{l}:')
    a.e(f's_cmp_ge_u32 s{S_LWV}, 2', 's_cbranch_scc1 L_k1B')
    l_loop(a, 16, 3, 2, ST1, 0, 's54', 64 * 6144, [gh, gx], gw, tail=1, hooks=HK, early=('L_jA', lambda n: None, only0(e_gate)), st=env('STK', '3') == '1')
    a.e('s_branch L_k1t', 'L_k1B:'); a.flush_hist()
    l_loop(a, 16, 3, 2, ST1, 0, 's54', 64 * 6144, [gx], gw, tail=1, hooks=HK, early=('L_jB', lambda n: None, only0(e_gate)))
    a.e('s_branch L_k1t')
    a.e('L_first:'); a.flush_hist()
    a.e(f's_cmp_ge_u32 s{S_LWV}, 2', 's_cbranch_scc1 L_firstB')
    for gA, n, tag in (([gh, gx], 11, 'A'), ([gx], 10, 'B')):
        if tag == 'B': a.e('L_firstB:'); a.flush_hist()
        iss = lambda: issue(16, 3, ST1, 0, 's54', 64 * 6144, gA, gw)
        a.e(*iss(), *lstamp(62))
        srd(a, SRD_C, P_WS, 0, 112 * MB)
        srd(a, SRD_D, P_WS, RS_OFF, 32768)
        a.e(f's_mov_b32 s{P_WL}, s{P_WS}', f's_mov_b32 s{P_WL+1}, s{P_WS+1}', *iss())
        e_load(n)
        a.e(f's_waitcnt vmcnt({n+5})', 's_barrier', *iss())
        e_stat(n)
        a.e(f's_branch L_j{tag}')
    a.e('L_k1t:'); a.flush_hist()
    h_fin(0)
    a.e(f's_mov_b32 s{S_T2}, s{S_LWV}')
    dma_w128(a, [130, 131], 2048, swz128(a), 16, 2, 3, 4)
    srd(a, SRD_B, P_WO, 0, 1024 * 1024 * 2)
    a.e(*INITK, f's_lshl_b32 s{S_G0+8}, s{S_LWV}, 11')
    def wo(t0, t1):
        for t in range(t0, t1):
            a.e(*next_k(16), f's_lshl_b32 s{S_OB}, s{S_K}, 17', f's_add_u32 s{S_OB}, s{S_OB}, s{S_BB}', f's_add_u32 m0, s{S_G0+8}, {WO_SLOTS[t]}',
                f'buffer_load_dwordx4 v130, {S4(SRD_B)}, s{S_OB} offen lds', f'buffer_load_dwordx4 v131, {S4(SRD_B)}, s{S_OB} offen offset:1024 lds')
    wo(0, 4)
    def pf3(j):
        if PF3 > j: a.e(f's_add_u32 s{S_T0}, s54, {j*8*MB}', f'buffer_load_dword v135, v132, {S4(SRD_E)}, s{S_T0} offen')
    if PF3:
        a.e(f's_cmp_eq_u32 s{S_VAR}, 0', f's_cselect_b32 s{SRD_E+2}, s{SRD_E+2}, 0', 's_lshl_b32 s54, s2, 2', f's_add_u32 s54, s54, s{S_LWV}', 's_lshl_b32 s54, s54, 13',
            f's_add_u32 s54, s54, {W1_K0}', 'v_lshlrev_b32 v132, 7, v0')
    pf3(0)
    x = 1 if PF3 else 0
    if PFT:
        srd(a, SRD_C, P_W2, 0, 3584 * 2048 * 2)
        a.e(f's_cmp_eq_u32 s{S_VAR}, 0', f's_cselect_b32 s{SRD_E+2}, s{SRD_E+2}, 0', f's_cselect_b32 s{SRD_C+2}, s{SRD_C+2}, 0',
            's_lshr_b32 s54, s2, 3', 's_lshl_b32 s54, s54, 2', f's_add_u32 s54, s54, s{S_LWV}', 's_lshl_b32 s54, s54, 18', 'v_lshlrev_b32 v132, 12, v0', 'v_add_u32 v132, s54, v132',
            f'v_subrev_u32 v133, {16*MB}, v132', f'buffer_load_dword v135, v132, {S4(SRD_E)}, 0 offen', f'buffer_load_dword v135, v133, {S4(SRD_C)}, 0 offen')
        x += 2
    a.e(f's_waitcnt vmcnt({8+x})', 's_barrier')
    wo(4, 7)
    only0(lambda n: (lane_fields(a), attn_static()))(0)
    a.e('s_waitcnt lgkmcnt(0)', 's_barrier')
    pf3(1)
    wo(7, 12)
    a.e('s_branch attn')
    a.e('L_k1done:'); a.flush_hist()
    publish_pre(a)
    a.e('s_waitcnt vmcnt(0)', 's_barrier')
    publish(a, 2)
    wo(12, 16)
    flag_idx(a, 1, S_TJ, 16, S_TI)
    if ONEP: a.e('s_barrier')
    a.e('s_waitcnt vmcnt(0)', 's_barrier')
    g4 = [dict(sg=S_G0 + 1, dmas=[(9, 0, 'B', None), (10, 1024, 'B', None)])]
    def k4_setup_l():
        tiles(a, 8, 2)
        a.e(f's_mov_b32 s{S_T2}, s{S_LWV}', f's_lshl_b32 s{S_G0+1}, s{S_T2}, 11')
        dma_w128(a, [9, 10], 4096, swz128(a), 16, 2, 3, 4)
        a.e(f's_lshl_b32 s{S_BB}, s{S_TJ}, 7')
        srd(a, SRD_B, P_W2, 0, 3584 * 2048 * 2)
    a.e('s_cmp_ge_u32 s2, 224', 's_cbranch_scc1 L_k3skip')
    tiles(a, 7, 2)
    a.e(f's_lshl_b32 s{S_G0}, s{S_LWV}, 12', f's_add_u32 s{S_G0+1}, s{S_G0}, 16384',
        'v_lshrrev_b32 v2, 4, v0', 'v_lshlrev_b32 v3, 1, v2', 'v_and_b32 v4, 15, v0', 'v_xor_b32 v3, v3, v4', 'v_lshlrev_b32 v3, 4, v3',
        f's_lshl_b32 s{S_T0}, s{S_LWV}, 4', f'v_add_u32 v2, s{S_T0}, v2', f's_mov_b32 s{S_T0}, 7168', f'v_mul_lo_u32 v2, v2, s{S_T0}',
        'v_add_u32 v9, v2, v3', 'v_xor_b32 v3, 128, v3', 'v_add_u32 v11, v2, v3',
        f'v_add_u32 v10, {4*7168-1024}, v9', f'v_add_u32 v12, {3*(4*7168-1024)}, v11', f'v_add_u32 v11, {2*(4*7168-1024)}, v11',
        f's_lshl_b32 s{S_BA}, s{S_TI}, 2', f's_add_u32 s{S_BA}, s{S_BA}, s{S_LWV}', f's_lshl_b32 s{S_BA}, s{S_BA}, 18', f's_lshl_b32 s{S_BB}, s{S_TJ}, 8')
    for i in range(4): lanemap(a, 20 + i, i & 1, i >> 1, (i & 1) * 2048 + (i >> 1) * 131072 - 1024 * i)
    srd(a, SRD_A, P_WL, H_OFF, XP)
    srd(a, SRD_B, P_W1, 0, 2048 * 3584 * 2)
    g3a = [dict(sg=S_G0, dmas=[(20 + i, 1024 * i, 'A', None) for i in range(4)])]
    g3w = [dict(sg=S_G0 + 1, dmas=[(9 + i, 1024 * i, 'B', None) for i in range(4)])]
    poll_setup(a, SRD_C, 14, 1, 0, [f's_lshl_b32 s{S_T0}, s{S_TI}, 5'], 32)
    for j in range(PF4):
        a.e(f's_lshr_b32 s{S_T0}, s2, 3', f's_add_u32 s{S_T0}, s{S_T0}, {28*j}', f's_lshl_b32 s{S_T0}, s{S_T0}, 2', f's_add_u32 s{S_T0}, s{S_T0}, s{S_LWV}', f's_lshl_b32 s{S_T0}, s{S_T0}, 6',
            f'v_add_u32 v2, s{S_T0}, v0', 'v_mul_u32_u24 v3, 74899, v2', 'v_lshrrev_b32 v3, 20, v3', 'v_mul_u32_u24 v4, 14, v3', 'v_sub_u32 v4, v2, v4',
            'v_add_u32 v3, 192, v3', 'v_mul_u32_u24 v3, 7168, v3', 'v_lshl_add_u32 v3, v4, 7, v3', f's_and_b32 s{S_T0}, s2, 3', f's_mul_i32 s{S_T0}, s{S_T0}, 1792', f's_lshl_b32 s{S_T1}, s{S_VAR}, 30', f's_add_u32 s{S_T0}, s{S_T0}, s{S_T1}', f'v_add_u32 v{16+j}, s{S_T0}, v3')
    a.e('s_barrier')
    if not LATEW: pre_w(a, 32, 5, 3, 32768, 0, 64 * 7168, g3w)
    a.e('s_barrier')
    publish(a, 2)
    if LATEW: pre_w(a, 32, 5, 3, 32768, 0, 64 * 7168, g3w)
    for j in range(PF4): a.e(f'buffer_load_dword v135, v{16+j}, {S4(SRD_B)}, 0 offen')
    flag_idx(a, 2, S_TI, 32, S_TJ)
    poll(a, SRD_C, 14, 15)
    l_loop(a, 32, 5, 3, 32768, 0, 4096, 64 * 7168, g3a, g3w, st=env('STK', '3') == '3')
    k4_setup_l()
    a.e('s_branch L_k4', 'L_k3skip:'); a.flush_hist()
    k4_setup_l()
    a.e('s_barrier')
    a.e('L_k4:'); a.flush_hist()
    pre_w(a, 56, K4_NS, K4_AH, 8192, K4_BASE, 64 * 4096, g4)
    a.e('s_barrier')
    publish(a, 2)
    flag_idx(a, 3, S_TJ, 8, S_TI)
    if ONEP: a.e('s_barrier')
    l_loop(a, 56, K4_NS, K4_AH, 8192, K4_BASE, 0, 64 * 4096, [], g4)
    a.e(f's_cmp_lg_u32 s{S_VAR}, 0', 's_cbranch_scc1 L_end')
    k1_setup_l(1)
    poll_setup(a, SRD_C, 28, 3, 0, [f's_lshl_b32 s{S_T0}, s{S_TI}, 4', f's_sub_u32 s{S_T0}, s{S_T0}, 8'], 24)
    a.e('s_barrier', 's_barrier')
    publish(a, 2)
    poll(a, SRD_C, 28, 29)
    a.e(f's_mov_b32 s{S_VAR}, 1', f's_add_u32 s{P_WL}, s{P_WS}, {0 if REUSE else LSTR}', f's_addc_u32 s{P_WL+1}, s{P_WS+1}, 0', 's_branch L_top')
    a.e('L_end:')
    if PROF: a.e(f's_cmp_lg_u32 s{S_LWV}, 0', f's_cbranch_scc1 {kn}_end', 's_lshl_b32 s58, s2, 8', f's_add_u32 s58, s58, {PR_OFF + MB}', 'v_lshlrev_b32 v254, 2, v0', 'v_add_u32 v254, s58, v254', f'global_store_dword v254, v255, s[{P_WS}:{P_WS+1}]')
    a.e(f'{kn}_end:', 's_endpgm')

def dump(a):
    if not PROF: return
    a.e('s_waitcnt vmcnt(0)', *stamp(14), f's_cmp_lg_u32 s{S_WAVE}, 0', 's_cbranch_scc1 nodump', 's_lshl_b32 s58, s2, 8', f's_add_u32 s58, s58, {PR_OFF}',
        'v_lshlrev_b32 v254, 2, v0', 'v_add_u32 v254, s58, v254', f'global_store_dword v254, v{PV}, s[{P_WS}:{P_WS+1}]', 'nodump:')

def gen_k0(a):
    a.e('.p2align 8', 'k0_kernel:', 's_cmp_ge_u32 s2, 256', 's_cbranch_scc1 k0_end',
        's_load_dwordx16 s[64:79], s[0:1], 0', 's_load_dwordx2 s[84:85], s[0:1], 80',
        'v_lshrrev_b32 v1, 6, v0', 'v_lshlrev_b32 v20, 4, v0', 'v_and_b32 v0, 63, v0', f'v_readfirstlane_b32 s{S_WAVE}, v1',
        's_lshl_b32 s30, s2, 3', f's_add_u32 s30, s30, s{S_WAVE}',
        's_lshl_b32 s31, s30, 11', 'v_lshlrev_b32 v2, 5, v0',
        's_lshl_b32 s32, s2, 2', f's_and_b32 s33, s{S_WAVE}, 3', 's_add_u32 s32, s32, s33', 's_lshl_b32 s32, s32, 13', 'v_lshlrev_b32 v3, 7, v0', 'v_add_u32 v3, s32, v3',
        f'v_subrev_u32 v4, {1024*3072*2}, v3', 's_waitcnt lgkmcnt(0)')
    srd(a, SRD_A, P_X, 0, XB)
    a.e(f'buffer_load_dwordx4 v[8:11], v2, {S4(SRD_A)}, s31 offen', f'buffer_load_dwordx4 v[12:15], v2, {S4(SRD_A)}, s31 offen offset:16')
    KW = int(env('K0WARM', '1'))
    srd(a, SRD_B, P_WQKV, 0, 1024 * 3072 * 2 * KW)
    srd(a, SRD_C, P_WO, 0, 1024 * 1024 * 2 * KW)
    srd(a, SRD_E, P_W1, 0, W1_K0)
    a.e(f's_sub_u32 s33, s{S_WAVE}, 4', 's_lshl_b32 s33, s33, 8', 's_add_u32 s33, s33, s2', 's_lshl_b32 s33, s33, 13', 'v_lshlrev_b32 v7, 7, v0',
        f's_cmp_ge_u32 s{S_WAVE}, 4', 's_cbranch_scc1 k0_nw', f'buffer_load_dword v5, v3, {S4(SRD_B)}, 0 offen', f'buffer_load_dword v6, v4, {S4(SRD_C)}, 0 offen', 's_branch k0_nx',
        'k0_nw:', f'buffer_load_dword v5, v7, {S4(SRD_E)}, s33 offen', 'k0_nx:')
    if CODEPF:
        a.e(f's_cmp_lg_u32 s{S_WAVE}, 7', 's_cbranch_scc1 k0_nc', 's_getpc_b64 s[40:41]', 'k0_pc:', 's_add_u32 s40, s40, mega_kernel-k0_pc', 's_addc_u32 s41, s41, 0',
            's_lshr_b32 s42, s2, 3', 's_lshl_b32 s42, s42, 11', 'v_and_b32 v25, 15, v0', 'v_lshlrev_b32 v25, 7, v25', 'v_add_u32 v25, s42, v25',
            'v_min_u32 v25, mega_end-mega_kernel, v25', 'global_load_dword v26, v25, s[40:41]', 'k0_nc:')
    srd(a, SRD_D, P_WS, 0, 64 * MB)
    a.e(f's_cmp_eq_u32 s{S_WAVE}, 0', 's_cselect_b32 s33, 0, -1', 'v_mov_b32 v16, s33', 'v_mov_b32 v17, s33', 'v_mov_b32 v18, s33', 'v_mov_b32 v19, s33',
        f's_mov_b32 s34, {ST_OFF}', f's_cselect_b32 s34, {FL_OFF}, s34', f's_cmp_eq_u32 s{S_WAVE}, 2', f's_cselect_b32 s34, {LSTR + ST_OFF}, s34', 's_lshl_b32 s35, s2, 10', 's_add_u32 s34, s34, s35',
        'v_lshlrev_b32 v20, 4, v0', f's_cmp_ge_u32 s{S_WAVE}, 3', 's_cbranch_scc1 k0_nr', f'buffer_store_dwordx4 v[16:19], v20, {S4(SRD_D)}, s34 offen', 'k0_nr:')
    a.e('v_mov_b32 v22, 0', 'v_mov_b32 v23, 0', 'v_mov_b32 v21, 0x3f803f80', 'v_lshrrev_b32 v24, 3, v0', 'v_lshlrev_b32 v24, 14, v24', 's_lshl_b32 s36, s30, 3', f's_add_u32 s36, s36, {RS_OFF}',
        's_waitcnt vmcnt(0)')
    for e in range(8): a.e(f'v_dot2c_f32_bf16 v22, v21, v{8+e}', f'v_dot2c_f32_bf16 v23, v{8+e}, v{8+e}')
    for ctl in ('quad_perm:[1,0,3,2]', 'quad_perm:[2,3,0,1]', 'row_half_mirror'):
        a.e(f'v_add_f32_dpp v22, v22, v22 {ctl} row_mask:0xf bank_mask:0xf', f'v_add_f32_dpp v23, v23, v23 {ctl} row_mask:0xf bank_mask:0xf')
    a.e('s_mov_b32 exec_lo, 0x01010101', 's_mov_b32 exec_hi, 0x01010101', f'buffer_store_dwordx2 v[22:23], v24, {S4(SRD_D)}, s36 offen', 'k0_end:', 's_endpgm')

def main(out):
    a = Asm()
    if not SINGLE: gen_k0(a); a.flush_hist()
    gen_mega(a)
    info = {} if SINGLE else {'k0_kernel': (32, 0)}
    info[MEGA] = (256, 163840)
    ref = open(os.path.join(os.path.dirname(os.path.abspath(__file__)), '..', NAME + '.s.ref')).read().splitlines()
    hdr = [l for l in ref if l.startswith(';') and '@launch' not in l and 'Override launch' not in l and 'grid=ceil' not in l]
    if SINGLE: hdr += ['; @launch grid=(256,1,1) block=(512,1,1) lds=163840']
    else: hdr += [f'; @launch kernel={n} grid=(256,1,1) block=(512,1,1) lds={v[1]}' for n, v in info.items()]
    s = '\n'.join(hdr) + '\n; generated by gen/gen2.py\n.amdgcn_target "amdgcn-amd-amdhsa--gfx950"\n.text\n'
    if SINGLE: s += f'.globl {MEGA}\n.type {MEGA},@function\n'
    s += a.text() + '.section .rodata,"a"\n'
    for n, (vg, _) in info.items():
        s += f'''.p2align 6
.amdhsa_kernel {n}
  .amdhsa_next_free_vgpr {vg}
  .amdhsa_next_free_sgpr 102
  .amdhsa_accum_offset {vg}
  .amdhsa_group_segment_fixed_size 0
  .amdhsa_kernarg_size 88
  .amdhsa_user_sgpr_count 2
  .amdhsa_user_sgpr_kernarg_segment_ptr 1
  .amdhsa_system_sgpr_workgroup_id_x 1
.end_amdhsa_kernel
'''
    open(out, 'w').write(s)

if __name__ == '__main__':
    main(sys.argv[1])
```

```python
import sys, os, struct
sys.path.insert(0, os.path.dirname(os.path.abspath(__file__)))
from asmlib import *
import gen as G
from gen import (NAME, MB, XB, UB, f32, env, S4, srd, next_k, adv_s, sched, bundle, spread, lane_fields, tr128_addr, swz128, unpack4,
                 dma_w128, stats_finish, MF16, S_VAR, S_WAVE, S_LI, S_LJ, S_PHI, SRD_A, SRD_B, SRD_C, SRD_D, SRD_E, S_TI, S_TJ,
                 S_P, S_W, S_T0, S_K, S_BA, S_BB, S_OA, S_OB, S_LW, S_CNT, S_T1, S_T2, S_DELTA, S_CUR, S_G0,
                 P_X, P_WQKV, P_WO, P_W1, P_B1, P_W2, P_B2, P_OUT, P_WS)

LSTR = 48 * MB
O_OFF, X1_OFF, H_OFF, U_OFF, ST_OFF, RS_OFF = 0, 8 * MB, 16 * MB, 24 * MB, 40 * MB, 41 * MB
X2_OFF, FL_OFF, PR_OFF = 96 * MB, 104 * MB, 128 * MB
XP = 2 * XB; UP = 2 * UB
FSH = int(env('FSH', '7')); STS = int(env('STS', '0'))
P_WL = 82
S_LWV, S_FLG = 57, 56
SC = 'sc0 sc1'
LDF = env('LDF', 'sc1')
PROF = env('PROF') == '1'
PV = 255
SINGLE = env('SINGLE', '1') == '1'
MEGA = NAME + '_kernel' if SINGLE else 'mega_kernel'
P_DB = 62
SPIN = 1000000
EXP = env('EXP', '')
SNAKE = int(env('SNAKE', '1')); CWREUSE = int(env('CWREUSE', '1')); CHAIN = int(env('CHAIN', '1'))
ONEP = int(env('ONEP', '1')); PS0 = int(env('PS0', '8')); PS1 = int(env('PS1', '0')); PP = int(env('PP', '1')); PSL = int(env('PSL', '4'))

def stamp(k):
    if not PROF: return []
    return ['s_memrealtime s[58:59]', 's_memtime s[56:57]', 's_waitcnt lgkmcnt(0)', f's_lshl_b32 s60, s{S_VAR}, 4', f's_add_u32 m0, s60, {k+1}', 's_nop 0', f'v_writelane_b32 v{PV}, s58, m0',
            's_add_u32 m0, m0, 32', 's_nop 0', f'v_writelane_b32 v{PV}, s56, m0']
G.stamp = lambda idx=None: []
G.cstamp = lambda idx: []

def lstamp(k): return ['s_memrealtime s[60:61]', 's_waitcnt lgkmcnt(0)', f'v_writelane_b32 v255, s60, {k}'] if PROF else []

def tiles(a, LN, xshift):
    a.e(f's_lshr_b32 s{S_T0}, s2, 3')
    if LN == 8: a.e(f's_lshr_b32 s{S_LI}, s{S_T0}, 3', f's_and_b32 s{S_LJ}, s{S_T0}, 7')
    else: a.e(f's_mul_i32 s{S_LI}, s{S_T0}, {65536 // LN + 1}', f's_lshr_b32 s{S_LI}, s{S_LI}, 16', f's_mul_i32 s{S_LJ}, s{S_LI}, {LN}', f's_sub_u32 s{S_LJ}, s{S_T0}, s{S_LJ}')
    a.e(f's_lshl_b32 s{S_PHI}, s{S_LI}, 1', f's_add_u32 s{S_PHI}, s{S_PHI}, s{S_LJ}', f's_and_b32 s{S_PHI}, s{S_PHI}, 7',
        f's_and_b32 s{S_T0}, s2, 7', f's_lshr_b32 s{S_TI}, s{S_T0}, {xshift}', f's_lshl_b32 s{S_TI}, s{S_TI}, 2', f's_add_u32 s{S_TI}, s{S_TI}, s{S_LI}',
        f's_and_b32 s{S_TJ}, s{S_T0}, {(1 << xshift) - 1}')
    if (TJS >> {(8, 1): 0, (7, 2): 1, (8, 2): 2}[(LN, xshift)]) & 1: a.e(f's_lshl_b32 s{S_T0}, s{S_LJ}, {xshift}', f's_add_u32 s{S_TJ}, s{S_TJ}, s{S_T0}', *INITK)
    else: a.e(f's_mul_i32 s{S_TJ}, s{S_TJ}, {LN}', f's_add_u32 s{S_TJ}, s{S_TJ}, s{S_LJ}', *INITK)
TJS = int(env('TJS', '0'))
INITK = [f's_mov_b32 s{S_P}, 7', f's_mov_b32 s{S_W}, -1']

def flag_idx(a, ph, hi, mul, lo):
    a.e(f's_lshl_b32 s{S_FLG}, s{S_VAR}, 10', f's_mul_i32 s{S_T0}, s{hi}, {mul}', f's_add_u32 s{S_FLG}, s{S_FLG}, s{S_T0}', f's_add_u32 s{S_FLG}, s{S_FLG}, s{lo}',
        f's_add_u32 s{S_FLG}, s{S_FLG}, {ph*256}', f's_lshl_b32 s{S_FLG}, s{S_FLG}, {FSH}')

_n = [0]
def lab(p): _n[0] += 1; return f'{p}{_n[0]}'

def publish_pre(a):
    srd(a, SRD_E, P_WS, FL_OFF, 8 * 256 * 256)
    a.e('v_mov_b32 v136, 0', 'v_mov_b32 v137, 1', f's_cmp_eq_u32 s{S_LWV}, 0', f's_cselect_b32 s{SRD_E+2}, s{SRD_E+2}, 0')

def publish(a, vt=None):
    a.e('s_mov_b64 exec, 1', f'buffer_store_dword v137, v136, {S4(SRD_E)}, s{S_FLG} offen {SC}', 's_mov_b64 exec, -1')

def poll_setup(a, sr_, va, ph, dl, base_lines, n):
    srd(a, sr_, P_WS, FL_OFF, 8 * 256 * 256)
    a.e(*base_lines, f'v_min_u32 v{va}, {n-1}, v0', f'v_add_u32 v{va}, s{S_T0}, v{va}', f'v_max_i32 v{va}, 0, v{va}', f'v_lshlrev_b32 v{va}, {FSH}, v{va}',
        f's_lshl_b32 s55, s{S_VAR}, {10+FSH}', f's_add_u32 s55, s55, {(dl * 4 + ph) << (8 + FSH)}')

def poll(a, sr_, va, vt, sleep=True):
    l = lab('poll')
    ld = lambda v: f'buffer_load_dword v{v}, v{va}, {S4(sr_)}, s55 offen {SC}'
    a.e(f's_mov_b32 s{S_CNT}, 0')
    if ONEP: a.e(f's_and_b32 s{S_T0}, s{S_WAVE}, 3', f's_cmp_lg_u32 s{S_T0}, 0', f's_cbranch_scc1 {l}d')
    if PS0: a.e(f's_sleep {PS0 if sleep else PS0 // 2}')
    if PP <= 1:
        a.loop([f'{l}:'] + ([f's_sleep {PS1}'] if PS1 else []) + [ld(vt), 's_waitcnt vmcnt(0)', f'v_cmp_eq_u32 vcc, 0, v{vt}',
                f's_add_u32 s{S_CNT}, s{S_CNT}, 1', f's_cmp_gt_u32 s{S_CNT}, {SPIN}', f's_cbranch_scc1 {l}d', f's_cbranch_vccnz {l}'])
    else:
        R = [214 + i for i in range(PP)]
        for i in range(PP - 1): a.e(ld(R[i]), f's_sleep {PSL}')
        body = [f'{l}:']
        for i in range(PP):
            body += [ld(R[(i + PP - 1) % PP]), f's_waitcnt vmcnt({PP-1})', f'v_cmp_eq_u32 vcc, 0, v{R[i]}', f's_cbranch_vccz {l}d']
        a.loop(body + [f's_add_u32 s{S_CNT}, s{S_CNT}, 1', f's_cmp_le_u32 s{S_CNT}, {SPIN}', f's_cbranch_scc1 {l}'])
    a.e(f'{l}d:')
    if ONEP: a.e('s_barrier')

def dma_groups(groups, lw_s):
    L = []
    for g in groups:
        L.append(f's_add_u32 m0, s{lw_s}, s{g["sg"]}')
        for (v, imm, st, ex) in g['dmas']:
            srdn, so, fl = (SRD_A, S_OA, LDF) if st == 'A' else (SRD_B, S_OB, '')
            if ex: L.append(f's_mov_b64 exec, {ex}')
            L.append(f'buffer_load_dwordx4 v{v}, {S4(srdn)}, s{so} offen offset:{imm} {fl} lds')
            if ex: L.append('s_mov_b64 exec, -1')
    return L

def issue(NK, NS, stage, base, stepA, stepB, gA, gW, roll=None):
    L = next_k(NK)
    if gA: L += [f's_mul_i32 s{S_OA}, s{S_K}, {stepA}', f's_add_u32 s{S_OA}, s{S_OA}, s{S_BA}']
    if gW: L += [f's_mul_i32 s{S_OB}, s{S_K}, {stepB}', f's_add_u32 s{S_OB}, s{S_OB}, s{S_BB}']
    if roll:
        L += [f's_cmp_eq_u32 s{S_P}, s{S_PHI}', f's_cselect_b32 s{S_T0}, s59, s58', f's_cselect_b32 s{S_T1}, {roll[1]}, 0', f's_add_u32 s59, s59, s{S_T1}',
              f'buffer_load_dword v135, v{roll[0]}, {S4(SRD_B)}, s{S_T0} offen']
    if not (EXP == 'nodma' and NK in (16, 32)): L += dma_groups(gA + gW, S_LW)
    L += [f's_add_u32 s{S_LW}, s{S_LW}, {stage}', f's_cmp_eq_u32 s{S_LW}, {base + NS*stage}', f's_cselect_b32 s{S_LW}, {base}, s{S_LW}']
    return L

def pre_w(a, NK, NS, AH, stage, base, stepB, gW):
    a.e(*INITK, f's_mov_b32 s{S_LW}, {base}')
    for s in range(AH): a.e(*issue(NK, NS, stage, base, 0, stepB, [], gW))

def l_loop(a, NK, NS, AH, stage, base, stepA, stepB, gA, gW, tail=0, hooks=(), early=(), st=False, roll=None):
    nA = sum(len(g['dmas']) for g in gA); n = nA + sum(len(g['dmas']) for g in gW) + (1 if roll else 0)
    lst = ['s_memrealtime s[58:59]', 's_waitcnt lgkmcnt(0)', 's_mov_b32 m0, s60', 's_add_u32 s60, s60, 1', 'v_writelane_b32 v255, s58, m0'] if st and PROF else []
    if lst: a.e(f's_lshl_b32 s60, s{S_VAR}, 5')
    iss = lambda: lst + issue(NK, NS, stage, base, stepA, stepB, gA, gW, roll)
    t0 = 0
    if gA:
        a.e(*INITK, f's_mov_b32 s{S_LW}, {base}')
        for s in range(AH): a.e(*issue(NK, NS, stage, base, stepA, stepB, gA, []))
        for t in range(AH - 1):
            a.e(f's_waitcnt vmcnt({(AH - 1 - t) * nA + t * n})', 's_barrier', *iss())
        t0 = AH - 1
        if early: a.e(f'{early[0]}:', 's_nop 1')
        for h in early[1:]:
            a.e(f's_waitcnt vmcnt({(AH-1)*n})', 's_barrier', *iss()); h(n); t0 += 1
    if roll and not gA:
        for t in range(AH - 1): a.e(f's_waitcnt vmcnt({(AH - 1 - t) * (n - 1) + t * n})', 's_barrier', *iss())
        t0 = AH - 1
    l = lab('ll')
    a.e(f's_mov_b32 s{S_CNT}, {NK - AH - t0 - len(hooks)}')
    a.loop([f'{l}:', f's_waitcnt vmcnt({(AH-1)*n})', 's_barrier'] + iss() + [f's_sub_u32 s{S_CNT}, s{S_CNT}, 1', f's_cmp_lg_u32 s{S_CNT}, 0', f's_cbranch_scc1 {l}'])
    for h in hooks:
        a.e(f's_waitcnt vmcnt({(AH-1)*n})', 's_barrier', *iss()); h(n)
    for j in range(AH - tail):
        a.e(f's_waitcnt vmcnt({(AH-1-j)*n + (8 if hooks else 0)})', 's_barrier')

def c_loop(a, NK, NS, stage, reads, mfmas, addr_regs, late, st0, peel=None, extra0=(), fin=None):
    if EXP == 'noread': reads = [reads[0][:1], reads[1][:1]]
    if EXP == 'rp2': RP = 2
    adv = adv_s(NS, stage)
    advv = [f'v_add_u32 v{r}, s{S_DELTA}, v{r}' for r in addr_regs]
    a.e(f's_mov_b32 s{S_CUR}, 0', f's_mov_b32 s{S_CNT}, {NK - 1 - len(peel or [])}', 's_barrier', *stamp(st0))
    a.e(*reads[0]); a.e(*adv)
    q0 = [Ins(x).wr for x in reads[0]]
    def it(pre=(), post=()):
        q = list(q0)
        L = sched(mfmas[0], bundle(reads[1], advv), q, 1)
        if not late: L.append('s_waitcnt lgkmcnt(0)'); q.clear()
        L += list(pre) + ['s_barrier'] + list(post) + sched(mfmas[1], spread(reads[0], adv), q, 1)
        assert q == q0[len(q0) - len(q):]
        return L
    for p in peel or []: a.e(*it(*p))
    l = lab('cl')
    a.loop([f'{l}:'] + it() + [f's_sub_u32 s{S_CNT}, s{S_CNT}, 1', f's_cmp_lg_u32 s{S_CNT}, 0', f's_cbranch_scc1 {l}'])
    q = list(q0)
    a.e(*sched(mfmas[0], reads[1] + list(extra0), q, 1))
    if fin: a.e('s_waitcnt lgkmcnt(0)', *stamp(st0 + 1)); fin(mfmas[1])
    else: a.e(*sched(mfmas[1], [], q)); a.e('s_waitcnt lgkmcnt(0)', *stamp(st0 + 1))

S_LM, S_B0, S_B1 = 48, 49, 50
def c_direct(a, NK, NS, stage, reads, mf, addr_regs, DR, D, vaddr, init, st0, slots=None):
    R = NK // 8
    advv = lambda src: [f'v_add_u32 v{r}, {src}, v{r}' for r in addr_regs]
    def nk(t):
        p = t % 8
        L = []
        if p == 0 and t != 0: L += [f's_mov_b32 s{S_B0}, s{S_B1}', f's_add_u32 s{S_B1}, s{S_B1}, 65536', f's_cmp_eq_u32 s{S_B1}, s{S_T2}', f's_cselect_b32 s{S_B1}, s{S_BA}, s{S_B1}']
        return L + [f's_bitcmp1_b32 s{S_LM}, {p}', f's_cselect_b32 s{S_OA}, s{S_B1}, s{S_B0}', f's_add_u32 s{S_OA}, s{S_OA}, {p*8192}']
    ld = lambda slot, i: f'buffer_load_dwordx4 {vr(DR+16*slot+4*i,4)}, v{88+i}, {S4(SRD_A)}, s{S_OA} offen {LDF}'
    adv = [] if slots else adv_s(NS, stage)
    vq = []
    for sl in range(D):
        a.e(*nk(sl))
        for i in range(4 if sl < D - 1 else 2):
            a.e(ld(sl, i)); vq.append(Ins(ld(sl, i)).wr)
    init(4 * D - 2)
    a.e(f's_mov_b32 s{S_CUR}, 0', f's_mov_b32 s{S_CNT}, {R - 1}', 's_barrier', *stamp(st0))
    a.e(*reads[0]); a.e(*adv)
    q0 = [Ins(x).wr for x in reads[0]]
    def mix(items, loads, pos):
        items = [list(x) for x in items]
        for l, p in zip(loads, pos): items[p] = items[p] + [l]
        return items
    def step(t, vq, generic):
        slot = t % D
        q = list(q0)
        final = not generic and t == NK - 1
        l0 = [ld((slot - 1) % D, 2), ld((slot - 1) % D, 3)] if generic or t - 1 + D < NK else []
        av = [] if final else advv(f's{S_DELTA}' if not slots else (slots[t + 1] - slots[t]) & 0xffffffff)
        L = sched(mf(0, DR + 16 * slot), mix(bundle(reads[1], av), l0, (2, 6)), q, 1, vq=vq)
        if final: return L + sched(mf(1, DR + 16 * slot + 8), [], q, 1, vq=vq)
        more = generic or t + D < NK
        it = [[r] for r in reads[0]]
        sc = (nk(t + D) if more else []) + adv
        for i, x in enumerate(sc): it[min(i // 2, len(it) - 1)].append(x)
        l1 = [ld(slot, 0), ld(slot, 1)] if more else []
        return L + ([] if slots else ['s_barrier']) + sched(mf(1, DR + 16 * slot + 8), mix(it, l1, (4, 7)), q, 1, vq=vq)
    if slots:
        for t in range(NK): a.e(*step(t, vq, False))
    else:
        v1 = list(vq); l = lab('cd')
        body = [f'{l}:']
        for t in range(8, 16): body += step(t, v1, True)
        assert v1 == vq
        a.loop(body + [f's_sub_u32 s{S_CNT}, s{S_CNT}, 1', f's_cmp_lg_u32 s{S_CNT}, 0', f's_cbranch_scc1 {l}'])
        for t in range(NK - 8, NK): a.e(*step(t, vq, False))
    a.e('s_waitcnt lgkmcnt(0)', *stamp(st0 + 1))

def by_first_use(reads, mfmas):
    key = lambda r: min(i for i, m in enumerate(mfmas) if Ins(m).srcab & Ins(r).wr)
    return sorted(reads, key=key)

def chain_order(tiles_):
    return [(t, h ^ (i & 1)) for i, t in enumerate(tiles_) for h in (0, 1)]

def c_full(a, NK, NS, stage, reads, mf, addr_regs, st0):
    adv = adv_s(NS, stage)
    advv = [f'v_add_u32 v{r}, s{S_DELTA}, v{r}' for r in addr_regs]
    rd = [by_first_use(reads(p), mf(p)) for p in range(2)]
    a.e(f's_mov_b32 s{S_CUR}, 0', f's_mov_b32 s{S_CNT}, {(NK - 2) // 2}', *adv, 's_barrier', *stamp(st0))
    a.e(*rd[0], *advv)
    def it(p, last=False):
        q = [Ins(x).wr for x in rd[p]]
        if last: return sched(mf(p), [], q)
        f = bundle(rd[1 - p], advv)
        for i, x in enumerate(adv): f[i // 2].append(x)
        first_adv = min(i for i, b in enumerate(f) if any(y in advv for y in b))
        assert first_adv > 2
        return ['s_barrier'] + sched(mf(p), f, q, 1)
    l = lab('cf')
    a.loop([f'{l}:'] + it(0) + it(1) + [f's_sub_u32 s{S_CNT}, s{S_CNT}, 1', f's_cmp_lg_u32 s{S_CNT}, 0', f's_cbranch_scc1 {l}'])
    a.e(*it(0)); a.e(*it(1, True)); a.e('s_waitcnt lgkmcnt(0)', *stamp(st0 + 1))

def c_direct2(a, NK, NS, stage, reads, mf, addr_regs, DR, D, vaddr, init, st0, slots=None):
    R = NK // 8
    advv = lambda src: [f'v_add_u32 v{r}, {src}, v{r}' for r in addr_regs]
    def nk(t):
        p = t % 8
        L = []
        if p == 0 and t != 0: L += [f's_mov_b32 s{S_B0}, s{S_B1}', f's_add_u32 s{S_B1}, s{S_B1}, 65536', f's_cmp_eq_u32 s{S_B1}, s{S_T2}', f's_cselect_b32 s{S_B1}, s{S_BA}, s{S_B1}']
        return L + [f's_bitcmp1_b32 s{S_LM}, {p}', f's_cselect_b32 s{S_OA}, s{S_B1}, s{S_B0}', f's_add_u32 s{S_OA}, s{S_OA}, {p*8192}']
    ld = lambda slot, i: f'buffer_load_dwordx4 {vr(DR+16*slot+4*i,4)}, v{88+i}, {S4(SRD_A)}, s{S_OA} offen {LDF}'
    LO = (0, 2, 3, 1)
    adv = [] if slots else adv_s(NS, stage)
    rd = [by_first_use(reads(p), mf(p, DR)) for p in range(2)]
    dl = lambda t: f's{S_DELTA}' if not slots else (slots[t + 1] - slots[t]) & 0xffffffff
    vq = []
    for sl in range(D - 1):
        a.e(*nk(sl))
        for i in LO: a.e(ld(sl, i)); vq.append(Ins(ld(sl, i)).wr)
    init(4 * (D - 1))
    a.e(f's_mov_b32 s{S_CUR}, 0', f's_mov_b32 s{S_CNT}, {R - 1}', *adv, 's_barrier', *stamp(st0))
    a.e(*rd[0], *advv(dl(0)))
    def step(t, vq, generic):
        slot = t % D; p = t & 1
        q = [Ins(x).wr for x in rd[p]]
        if not generic and t == NK - 1: return sched(mf(p, DR + 16 * slot), [], q, 1, vq=vq)
        more = generic or t + D - 1 < NK
        f = bundle(rd[1 - p], advv(dl(t + 1)) if generic or t + 2 < NK else [])
        for i, x in enumerate(adv + (nk(t + D - 1) if more else [])): f[i // 2].append(x)
        if more:
            for i, pos in zip(LO, (6, 9, 12, 15)): f[pos].append(ld((slot - 1) % D, i))
        return ([] if slots else ['s_barrier']) + sched(mf(p, DR + 16 * slot), f, q, 1, vq=vq)
    if slots:
        for t in range(NK): a.e(*step(t, vq, False))
    else:
        v1 = list(vq); l = lab('cd')
        body = [f'{l}:']
        for t in range(8, 16): body += step(t, v1, True)
        assert v1 == vq
        a.loop(body + [f's_sub_u32 s{S_CNT}, s{S_CNT}, 1', f's_cmp_lg_u32 s{S_CNT}, 0', f's_cbranch_scc1 {l}'])
        for t in range(NK - 8, NK): a.e(*step(t, vq, False))
    a.e('s_waitcnt lgkmcnt(0)', *stamp(st0 + 1))

FB = (16, 188)
def w_reads2(regs): return lambda p: [f'ds_read_b64_tr_b16 {vr(FB[p]+16*h+4*n+2*q,2)}, v{regs[n]} offset:{h*4096+q*512}' for n in range(4) for h in range(2) for q in range(2)]
SN8 = [(n, x) for n in range(4) for x in ((0, 1) if n % 2 == 0 else (1, 0))]

def lanemap(a, v, hi, lo, add=0):
    f = lambda x: f's{x[1]}' if isinstance(x, tuple) else str(x)
    a.e(f's_lshl_b32 s{S_T0}, {f(hi)}, 1', f's_add_u32 s{S_T0}, s{S_T0}, {f(lo)}', f's_cmp_eq_u32 s{S_T0}, 3', f's_addc_u32 s{S_T0}, s{S_T0}, 5', f's_lshl_b32 s{S_T0}, s{S_T0}, 7',
        's_mov_b32 vcc_lo, 0xff000000', 's_mov_b32 vcc_hi, 0', f'v_mov_b32 v{v}, s{S_T0}', f'v_cndmask_b32 v{v}, 0, v{v}, vcc', f'v_lshl_add_u32 v{v}, v0, 4, v{v}')
    if add: a.e(f'v_add_u32 v{v}, {add}, v{v}')

def direct_setup(a, NK):
    a.e(f's_lshl_b32 s{S_LM}, 0x303, s{S_PHI}', f's_lshr_b32 s{S_LM}, s{S_LM}, 8', f's_mov_b32 s{S_B0}, s{S_BA}', f's_add_u32 s{S_B1}, s{S_BA}, 65536',
        f's_add_u32 s{S_T2}, s{S_BA}, {NK*8192}', f's_and_b32 s{S_T1}, s{S_WAVE}, 1')
    for b in range(2):
        lanemap(a, 88 + b, ('s', S_T1), b, 2048 * b)
        a.e(f'v_add_u32 v{90+b}, 4096, v{88+b}')

def w_reads(regs):
    return [[f'ds_read_b64_tr_b16 {vr(16+16*h+4*n+2*q,2)}, v{regs[n]} offset:{h*4096+q*512}' for n in range(4) for q in range(2)] for h in range(2)]

def sel(a, d, ptr0, off0, ptr1, off1, nbytes): G.srd_sel(a, d, ptr0, off0, ptr1, off1, nbytes)

XT = 18432; ST1 = XT + 24576; SL = 3 * ST1; QKV = ST1; PITCH = 400; PB = 72 * PITCH
WO_SLOTS = [131072 + 8192 * i for i in range(4)] + [100608 + 8192 * i for i in range(3)] + [8192 * i for i in range(5)] + [QKV + 8192 * i for i in range(4)]
K4_BASE, K4_NS, K4_AH = 98304, 8, 6
K4_SCR = 90112
D = 4; DR = 120
PF1 = int(env('PF1', '0'), 0); CPRIO = int(env('CPRIO', '0'))
NPF = int(env('NPF', '0')); K0W = int(env('K0W', '0')); W1_K0 = K0W * 256 * 64 * 128
REUSE = int(env('REUSE', '0')); WARM0 = int(env('WARM0', '1')); PF2N = int(env('PF2N', '14')); PF2D = int(env('PF2D', '1')); PF2S = int(env('PF2S', '0')); ROLL = int(env('ROLL', '4')); PF5 = int(env('PF5', '3')); PF5E = int(env('PF5E', '1')); PF4 = int(env('PF4', '1')); PFT = int(env('PFT', '0')); PF3 = int(env('PF3', '0')); CODEPF = env('CODEPF', '0') == '1'; PF2 = env('PF2', '1') == '1'; LATEW = env('LATEW', '1') == '1'

def gen_mega(a):
    kn = 'mega'
    a.e('.p2align 8', f'{MEGA}:', 's_cmp_ge_u32 s2, 256', f's_cbranch_scc1 {kn}_end',
        's_load_dwordx16 s[64:79], s[0:1], 0', 's_load_dwordx2 s[80:81], s[0:1], 64', 's_load_dwordx2 s[84:85], s[0:1], 80', f's_load_dwordx2 s[{P_DB}:{P_DB+1}], s[0:1], 72',
        'v_lshrrev_b32 v1, 6, v0', 'v_and_b32 v0, 63, v0', f'v_readfirstlane_b32 s{S_WAVE}, v1', f's_mov_b32 s{S_VAR}, 0')
    if PROF: a.e(f'v_mov_b32 v{PV}, 0', *stamp(-1))
    a.e('v_mov_b32 v130, 0', 'v_mov_b32 v131, 0', 'v_mov_b32 v134, 0', f's_cmp_ge_u32 s{S_WAVE}, 4', f's_cbranch_scc1 L_start')

    ACC1 = 112
    def acc1(m, rt): return ACC1 + 36 * m + 4 * rt
    MK = 86; AK0, AK1, AQ, AV0, AV1, AO = 220, 221, 223, 222, 254, 1
    def attn_static():
        a.e(f's_lshr_b32 s{S_T1}, s{S_WAVE}, 1', f's_and_b32 s{S_T2}, s{S_WAVE}, 1',
            f's_mul_i32 s{S_T0}, s{S_T2}, {PB}', f's_add_u32 s{S_T0}, s{S_T0}, {QKV}', f's_lshl_b32 s{S_G0+5}, s{S_T1}, 4')
        a.e(f'v_add_u32 v76, s{S_G0+5}, v4', 'v_lshlrev_b32 v77, 4, v5', f'v_add_u32 v77, s{S_T0}, v77',
            f'v_mul_u32_u24 v78, {PITCH}, v76', f'v_add_u32 v{AK0}, v78, v77', f'v_add_u32 v{AQ}, {8*PITCH}, v{AK0}', f'v_add_u32 v{AK0}, 128, v{AK0}',
            'v_add_u32 v76, 16, v76', 'v_min_u32 v76, 71, v76', f'v_mul_u32_u24 v78, {PITCH}, v76', f'v_add3_u32 v{AK1}, v78, v77, 64', f'v_add_u32 v{AK1}, 64, v{AK1}')
        a.e('v_lshl_add_u32 v76, v5, 2, v6', f'v_add_u32 v76, s{S_G0+5}, v76', 'v_lshlrev_b32 v77, 4, v7', f'v_add_u32 v77, s{S_T0}, v77', 'v_add_u32 v77, 256, v77',
            f'v_mul_u32_u24 v78, {PITCH}, v76', f'v_add_u32 v{AV0}, v78, v77',
            'v_add_u32 v76, 16, v76', 'v_min_u32 v76, 71, v76', f'v_mul_u32_u24 v78, {PITCH}, v76', f'v_add_u32 v{AV1}, v78, v77')
        a.e(f's_lshl_b32 s{S_G0+6}, s{S_TI}, 2', f's_add_u32 s{S_G0+6}, s{S_G0+6}, s{S_T1}', f's_lshl_b32 s{S_G0+6}, s{S_G0+6}, 17',
            f's_lshl_b32 s{S_G0+7}, s{S_TJ}, 13', f's_add_u32 s{S_G0+6}, s{S_G0+6}, s{S_G0+7}', f's_lshl_b32 s{S_G0+7}, s{S_T2}, 11', f's_add_u32 s{S_G0+6}, s{S_G0+6}, s{S_G0+7}',
            f's_and_b32 s{S_G0+7}, s{S_T1}, 1')
        lanemap(a, AO, ('s', S_G0 + 7), ('s', S_T2))
        a.e(f'v_add_u32 v{AO}, s{S_G0+6}, v{AO}')
        a.e('v_lshlrev_b32 v76, 2, v5', 'v_sub_u32 v76, v76, v4', f's_or_b32 s{S_G0+7}, s{S_TI}, s{S_T1}', f's_cmp_eq_u32 s{S_G0+7}, 0', f's_cselect_b32 s{S_G0+7}, 0, -1')
        for k in range(8):
            a.e(f'v_add_u32 v77, {16 * (k >> 2) + (k & 3) - 1}, v76', f'v_cmp_gt_u32 s[{MK+2*k}:{MK+1+2*k}], 8, v77')
        for k in range(4): a.e(f's_and_b32 s{MK+2*k}, s{MK+2*k}, s{S_G0+7}')
    def k1_setup_c():
        tiles(a, 8, 1)
        lane_fields(a)
        tr128_addr(a, [8], XT, 21, 22)
        a.e(f's_lshl_b32 s{S_T0}, s{S_WAVE}, 5', f'v_xor_b32 v8, s{S_T0}, v8',
            'v_lshrrev_b32 v21, 1, v4', 'v_xor_b32 v21, v21, v5', 'v_lshlrev_b32 v21, 4, v21', 'v_lshlrev_b32 v22, 7, v4', 'v_add_u32 v9, v21, v22', 'v_xor_b32 v10, 64, v9',
            'v_and_b32 v21, 1, v4', f'v_mul_u32_u24 v21, {PB}, v21', 'v_lshrrev_b32 v22, 1, v4', f'v_mul_u32_u24 v22, {PITCH}, v22',
            'v_lshlrev_b32 v23, 3, v5', 'v_add3_u32 v11, v21, v22, v23', f's_add_u32 s{S_T0}, s{S_T0}, {QKV}',
            f'v_add_u32 v11, s{S_T0}, v11', 'v_lshlrev_b32 v12, 3, v4', f'v_add_u32 v12, {SL}, v12')
        for r in range(ACC1, ACC1 + 108, 2): a.e(f'v_mov_b64 {vr(r,2)}, 0')
    if CPRIO: a.e(f's_setprio {CPRIO}')
    k1_setup_c()
    attn_static()
    a.e('s_waitcnt lgkmcnt(0)', f's_mov_b32 s{P_WL}, s{P_WS}', f's_mov_b32 s{P_WL+1}, s{P_WS+1}')
    def slow_strip():
        if not PF5: return
        srd(a, SRD_C, P_WQKV, 0, 1024 * 3072 * 2)
        a.e(f's_lshr_b32 s{S_T0}, s2, 3', f's_lshl_b32 s{S_T0}, s{S_T0}, 1', f's_add_u32 s{S_T0}, s{S_T0}, s{S_WAVE}', f's_sub_u32 s{S_T0}, s{S_T0}, 1', f's_lshl_b32 s{S_T0}, s{S_T0}, 6',
            f'v_add_u32 v16, s{S_T0}, v0', 'v_mul_u32_u24 v17, 21846, v16', 'v_lshrrev_b32 v17, 16, v17', 'v_mul_u32_u24 v18, 3, v17', 'v_sub_u32 v18, v16, v18',
            'v_mul_u32_u24 v17, 6144, v17', 'v_lshl_add_u32 v14, v18, 11, v17', f's_and_b32 s{S_T0}, s2, 1', f's_lshl_b32 s{S_T0}, s{S_T0}, 10', f's_add_u32 s{S_T0}, s{S_T0}, 384',
            f's_sub_u32 s{S_T1}, s{S_WAVE}, 1', f's_cmp_lt_u32 s{S_T1}, 2', f's_cselect_b32 s{SRD_C+2}, s{SRD_C+2}, 0',
            f'buffer_load_dword v15, v14, {S4(SRD_C)}, s{S_T0} offen')
        if ROLL & 4:
            srd(a, SRD_C, P_WO, 0, 1024 * 1024 * 2)
            a.e(f's_lshr_b32 s{S_T1}, s2, 3', f's_lshl_b32 s{S_T1}, s{S_T1}, 5', 'v_and_b32 v16, 31, v0', f'v_add_u32 v16, s{S_T1}, v16', 'v_lshlrev_b32 v14, 11, v16',
                f's_cmp_eq_u32 s{S_WAVE}, 3', f's_cselect_b32 s{SRD_C+2}, s{SRD_C+2}, 0', f'buffer_load_dword v15, v14, {S4(SRD_C)}, s{S_T0} offen')
    if PF5 & 1 and PF5E: slow_strip()
    srd(a, SRD_B, P_WS, 0, 0)
    srd(a, SRD_D, P_WQKV, 0, 1024 * 3072 * 2 * WARM0)
    a.e(f's_cmp_eq_u32 s{S_WAVE}, 3', f's_cselect_b32 s{SRD_D}, s{P_WO}, s{SRD_D}', f's_cselect_b32 s{SRD_D+1}, s{P_WO+1}, s{SRD_D+1}', f's_cselect_b32 s{SRD_D+2}, {2*MB*WARM0}, s{SRD_D+2}',
        f's_cselect_b32 s47, 0, s{S_WAVE}', 's_lshl_b32 s47, s47, 8', 's_add_u32 s47, s47, s2', 's_lshl_b32 s47, s47, 13', 'v_lshlrev_b32 v13, 7, v0', 's_barrier')
    warm = f'buffer_load_dword v15, v13, {S4(SRD_D)}, s47 offen'
    def warm_if(w, l): return [f's_cmp_lg_u32 s51, {w}', f's_cbranch_scc1 {l}', warm, f'{l}:']
    a.e(f's_mov_b32 s51, s{S_WAVE}', *warm_if(0, 'C_wm0'))
    if PF5 & 1 and not PF5E: slow_strip()
    if CODEPF:
        a.e(f's_cmp_lg_u32 s{S_WAVE}, 3', 's_cbranch_scc1 C_nc', 's_getpc_b64 s[44:45]', 'C_pc:', 's_lshr_b32 s46, s2, 3', 's_lshl_b32 s46, s46, 11', 'v_and_b32 v16, 15, v0',
            'v_lshlrev_b32 v16, 7, v16', 'v_add_u32 v16, s46, v16', 'v_min_u32 v16, mega_end-C_pc, v16', 'global_load_dword v15, v16, s[44:45]', 'C_nc:')
    a.e('C_top:'); a.flush_hist()
    reads = [[], []]; mf = [[], []]
    for h in range(2):
        F = 16 + 48 * h
        ra = [[f'ds_read_b64_tr_b16 {vr(F+4*m,2)}, v8 offset:{m*8192+h*4096}', f'ds_read_b64_tr_b16 {vr(F+4*m+2,2)}, v8 offset:{m*8192+h*4096+512}'] for m in range(3)]
        rb = [f'ds_read_b128 {vr(F+12+4*rt,4)}, v{9+h} offset:{rt*2048}' for rt in range(9)]
        reads[h] = ra[0] + [rb[0]] + ra[1] + ra[2] + rb[1:]
        mf[h] = [f'{MF16} {vr(acc1(m,rt),4)}, {vr(F+4*m,4)}, {vr(F+12+4*rt,4)}, {vr(acc1(m,rt),4)}' for rt in range(9) for m in (range(3) if rt % 2 == 0 or not SNAKE else range(2, -1, -1))]
    peel = [([], warm_if(1, 'C_wm1')), ([], warm_if(2, 'C_wm2')), ([], warm_if(3, 'C_wm3'))]
    STR, CW = 224, 242
    def fold(rt, o):
        ms = [m for m in range(3) if not (m == 0 and rt == 0)]
        st = vr(STR + 2 * rt, 2); L = []
        for m in ms: L += [f'v_pk_fma_f32 {vr(acc1(m,rt)+e,2)}, {vr(CW+4*m+e,2)}, {st}, {vr(acc1(m,rt)+e,2)} op_sel_hi:[1,0,1] neg_lo:[0,1,0] neg_hi:[0,1,0]' for e in (0, 2)]
        for m in ms: L += [f'v_pk_mul_f32 {vr(acc1(m,rt)+e,2)}, {vr(acc1(m,rt)+e,2)}, {st} op_sel:[0,1] op_sel_hi:[1,1]' for e in (0, 2)]
        for i, m in enumerate(ms):
            d = acc1(m, rt); r = o + 2 * i
            L += [f'v_cvt_pk_bf16_f32 v{r}, v{d}, v{d+1}', f'v_cvt_pk_bf16_f32 v{r+1}, v{d+2}, v{d+3}', f'ds_write_b64 v11, {vr(r,2)} offset:{rt*8*PITCH+m*128}']
        return L
    def fin1(mfs, m0):
        work = [f'v_mov_b32_dpp v{CW+4*m+r}, v{acc1(m,0)+r} row_newbcast:0 row_mask:0xf bank_mask:0xf' for m in range(m0, 3) for r in range(4)]
        ready = [len(work)]
        for rt in range(9): work += fold(rt, 16 + 6 * (rt % 8)); ready.append(len(work))
        done = 0
        for i, m in enumerate(mfs):
            a.e(m)
            rt = (i + m0) // 3 - 1
            lim = ready[rt + 1] if rt >= 0 else 0
            n = min(lim - done, 7)
            if n > 0: a.e(*work[done:done + n]); done += n
        a.e('s_barrier')
        a.e(*work[done:])
    sreads = [f'ds_read_b64 {vr(STR+2*rt,2)}, v12 offset:{rt*128}' for rt in range(9)]
    c_loop(a, 16, 3, ST1, reads, mf, [8, 9, 10], False, 0, peel, sreads, lambda mfs: fin1(mfs, 0))
    if CWREUSE:
        a.e('s_branch attn', 'C_top1:'); a.flush_hist()
        c_loop(a, 16, 3, ST1, reads, [x[1:] for x in mf], [8, 9, 10], False, 0, None, sreads, lambda mfs: fin1(mfs, 1))
    a.e('attn:'); a.flush_hist()
    cs = (32 ** -0.5) * 1.4426950408889634
    a.e(f'v_mov_b32 v18, {f32(cs)}', 'v_mov_b32 v19, 0xff800000')
    srd(a, SRD_D, P_WL, O_OFF, XP)
    a.e('s_mov_b32 s49, 4096')
    a.e('s_waitcnt lgkmcnt(0)', 's_barrier')
    B = [32, 80]
    for hd in range(2):
        b = B[hd]; o = 64 * hd
        a.e(f'ds_read_b128 {vr(b,4)}, v{AQ} offset:{o}', f'ds_read_b128 {vr(b+4,4)}, v{AK0} offset:{o}', f'ds_read_b128 {vr(b+8,4)}, v{AK1} offset:{o}')
    for hd in range(2):
        b = B[hd]; o = 64 * hd
        for dt in range(2): a.e(f'ds_read_b64_tr_b16 {vr(b+12+4*dt,2)}, v{AV0} offset:{o+8*dt}', f'ds_read_b64_tr_b16 {vr(b+14+4*dt,2)}, v{AV1} offset:{o+8*dt}')
    for hd in range(2):
        b = B[hd]
        a.e(f's_waitcnt lgkmcnt({11 - 3*hd})', f'{MF16} {vr(b+20,4)}, {vr(b+4,4)}, {vr(b,4)}, 0', f'{MF16} {vr(b+24,4)}, {vr(b+8,4)}, {vr(b,4)}, 0')
    def both(f):
        for x, y in zip(f(B[0]), f(B[1])): a.e(x, y)
    both(lambda b: [f'v_cndmask_b32 v{b+20+k}, v19, v{b+20+k}, s[{MK+2*k}:{MK+1+2*k}]' for k in range(8)])
    both(lambda b: [f'v_max3_f32 v{b+28}, v{b+20}, v{b+21}, v{b+22}', f'v_max3_f32 v{b+29}, v{b+23}, v{b+24}, v{b+25}',
                    f'v_max3_f32 v{b+28}, v{b+28}, v{b+26}, v{b+27}', f'v_max_f32 v{b+28}, v{b+28}, v{b+29}', f'v_mov_b32 v{b+29}, v{b+28}',
                    f'v_permlane16_swap_b32 v{b+28}, v{b+29}', f'v_max_f32 v{b+28}, v{b+28}, v{b+29}', f'v_mov_b32 v{b+29}, v{b+28}',
                    f'v_permlane32_swap_b32 v{b+28}, v{b+29}', f'v_max_f32 v{b+28}, v{b+28}, v{b+29}', f'v_mul_f32 v{b+28}, v18, v{b+28}'])
    both(lambda b: [f'v_fma_f32 v{b+20+k}, v{b+20+k}, v18, -v{b+28}' for k in range(8)])
    both(lambda b: [f'v_exp_f32 v{b+20+k}, v{b+20+k}' for k in range(8)])
    both(lambda b: [f'v_pk_add_f32 {vr(b+28,2)}, {vr(b+20,2)}, {vr(b+22,2)}', f'v_pk_add_f32 {vr(b+30,2)}, {vr(b+24,2)}, {vr(b+26,2)}',
                    f'v_pk_add_f32 {vr(b+28,2)}, {vr(b+28,2)}, {vr(b+30,2)}', f'v_add_f32 v{b+28}, v{b+28}, v{b+29}', f'v_mov_b32 v{b+29}, v{b+28}',
                    f'v_permlane16_swap_b32 v{b+28}, v{b+29}', f'v_add_f32 v{b+28}, v{b+28}, v{b+29}', f'v_mov_b32 v{b+29}, v{b+28}',
                    f'v_permlane32_swap_b32 v{b+28}, v{b+29}', f'v_add_f32 v{b+28}, v{b+28}, v{b+29}', f'v_rcp_f32 v{b+28}, v{b+28}'])
    both(lambda b: [f'v_pk_mul_f32 {vr(b+20+e,2)}, {vr(b+20+e,2)}, {vr(b+28,2)} op_sel_hi:[1,0]' for e in range(0, 8, 2)])
    both(lambda b: [f'v_cvt_pk_bf16_f32 v{b+32+e}, v{b+20+2*e}, v{b+21+2*e}' for e in range(4)])
    a.e('s_waitcnt lgkmcnt(0)')
    both(lambda b: [f'{MF16} {vr(b+36+4*dt,4)}, {vr(b+12+4*dt,4)}, {vr(b+32,4)}, 0' for dt in range(2)])
    both(lambda b: [f'v_cvt_pk_bf16_f32 v{b+e}, v{b+36+2*e}, v{b+37+2*e}' for e in range(4)])
    for hd in range(2): a.e(f'buffer_store_dwordx4 {vr(B[hd],4)}, v{AO}, {S4(SRD_D)}, {"s49" if hd else "0"} offen {SC}')
    a.e(f's_cmp_ge_u32 s{S_WAVE}, 4', 's_cbranch_scc1 L_k1done')

    ACC = 48; RES = 96
    def acc2(t, b): return ACC + 16 * b + 4 * t
    a.e(f's_lshl_b32 s{S_T0}, s{S_TI}, 2', f's_add_u32 s{S_T0}, s{S_T0}, s{S_WAVE}', f's_lshl_b32 s{S_BA}, s{S_T0}, 17', f's_lshl_b32 s{S_T1}, s{S_T0}, 5', f's_lshl_b32 s52, s{S_T0}, {8+STS}',
        'v_lshlrev_b32 v13, 1, v4', f'v_add_u32 v13, s{S_T1}, v13',
        'v_lshlrev_b32 v12, 11, v13', 'v_lshl_add_u32 v12, v3, 4, v12', f's_lshl_b32 s{S_T0}, s{S_TJ}, 7', f'v_add_u32 v12, s{S_T0}, v12', 'v_lshlrev_b32 v14, 4, v0',
        'v_lshlrev_b32 v87, 8, v13', 'v_lshl_add_u32 v87, v3, 4, v87', f's_lshl_b32 s{S_T0}, s{S_TJ}, 19', f'v_add_u32 v87, s{S_T0}, v87')
    srd(a, SRD_A, P_WL, O_OFF, XP)
    sel(a, SRD_C, P_X, 0, P_WS, X2_OFF, XB)
    a.e(f's_lshl_b32 s{SRD_C+2}, s{SRD_C+2}, s{S_VAR}')
    sel(a, SRD_B, P_WS, 0, P_WS, LSTR, 0); a.e(f's_add_u32 s{SRD_B}, s{SRD_B}, {ST_OFF}', f's_addc_u32 s{SRD_B+1}, s{SRD_B+1}, 0', f's_mov_b32 s{SRD_B+2}, {16*32768}')
    tr128_addr(a, [8, 9, 10, 11], WO_SLOTS[0], 16, 17)
    a.e('v_lshl_add_u32 v16, v4, 1, v2', 'v_lshlrev_b32 v16, 3, v16', 'v_add_u32 v16, s52, v16', f's_lshl_b32 s{S_T0}, s{S_TJ}, {14+STS}', f'v_add_u32 v112, s{S_T0}, v16',
        'v_lshrrev_b32 v17, 5, v0', f'v_lshlrev_b32 v17, {17+STS}, v17', 'v_add_u32 v113, v16, v17')
    a.e(f's_lshl_b32 s{S_T0}, s{S_WAVE}, 12', 'v_lshlrev_b32 v16, 8, v4', 'v_lshl_add_u32 v16, v5, 3, v16', f'v_add_u32 v16, s{S_T0}, v16',
        'v_and_b32 v17, 1, v4', 'v_bfe_u32 v18, v4, 2, 1', 'v_lshl_or_b32 v17, v18, 1, v17', 'v_lshl_add_u32 v114, v17, 5, v16',
        f's_lshl_b32 s{S_G0}, s{S_TJ}, 8', f's_lshl_b32 s{S_T1}, s{S_TI}, 2', f's_add_u32 s{S_G0}, s{S_G0}, s{S_T1}', f's_add_u32 s{S_G0}, s{S_G0}, s{S_WAVE}', f's_lshl_b32 s{S_G0}, s{S_G0}, 11')
    tr128_addr(a, [115], 0, 16, 17)
    a.e(f'v_add_u32 v115, s{S_T0}, v115')
    for t in range(1, 4): a.e(f's_add_u32 s{S_G0+t}, s{S_G0}, {t*131072}')
    for p in range(1, 8): a.e(f'v_add_u32 v{79+p}, {p*16384 << STS}, v113')
    direct_setup(a, 16)
    for t in range(2): lanemap(a, 92 + t, ('s', S_T1), t)
    for i in range(4): lanemap(a, 192 + i, i >> 1, i & 1, 2048 * i)
    a.e(f's_lshl_b32 s53, s{S_TJ}, 13', f's_add_u32 s53, s53, s{S_BA}')
    poll_setup(a, SRD_E, 119, 0, 0, [f's_lshl_b32 s{S_T0}, s{S_TI}, 4'], 16)
    a.e('s_waitcnt vmcnt(0)', 's_barrier', *stamp(2))
    a.e(f's_cmp_lg_u32 s{S_VAR}, 0', 's_cbranch_scc1 C_r1')
    for b in range(2):
        for P in range(2): a.e(f'buffer_load_dwordx4 {vr(RES+8*b+4*P,4)}, v12, {S4(SRD_C)}, 0 offen offset:{b*2048+P*64}')
    a.e('s_branch C_r2', 'C_r1:')
    for b in range(2):
        for P in range(2): a.e(f'buffer_load_dwordx4 {vr(RES+8*b+4*P,4)}, v87, {S4(SRD_C)}, 0 offen offset:{b*256+P*64} {LDF}')
    a.e('C_r2:')
    poll(a, SRD_E, 119, 16)
    a.e(*stamp(3))
    def init2(out):
        a.e(f's_waitcnt vmcnt({out})')
        for b in range(2):
            for P in range(2):
                r = RES + 8 * b + 4 * P
                a.e(f'v_permlane16_swap_b32 v{r}, v{r+2}', f'v_permlane16_swap_b32 v{r+1}, v{r+3}')
        for b in range(2):
            for P in range(2):
                r = RES + 8 * b + 4 * P
                a.e(*unpack4(r, r + 1, acc2(2 * P, b)), *unpack4(r + 2, r + 3, acc2(2 * P + 1, b)))
    mf2 = lambda h, bb: [f'{MF16} {vr(acc2(t,b),4)}, {vr(16+16*h+4*t,4)}, {vr(bb+4*b,4)}, {vr(acc2(t,b),4)}' for t in range(4) for b in ((0, 1) if t % 2 == 0 or not SNAKE else (1, 0))]
    if CHAIN & 2:
        mc2 = lambda p, bb: [f'{MF16} {vr(acc2(t,b),4)}, {vr(FB[p]+16*h+4*t,4)}, {vr(bb+8*h+4*b,4)}, {vr(acc2(t,b),4)}' for (t, b), h in chain_order(SN8)]
        c_direct2(a, 16, 0, 0, w_reads2([8, 9, 10, 11]), mc2, [8, 9, 10, 11], DR, D, 14, init2, 4, slots=WO_SLOTS)
    else: c_direct(a, 16, 0, 0, w_reads([8, 9, 10, 11]), mf2, [8, 9, 10, 11], DR, D, 14, init2, 4, slots=WO_SLOTS)
    a.e('s_barrier')
    srd(a, SRD_D, P_WL, X1_OFF, XP)
    srd(a, SRD_E, P_WL, H_OFF, XP)
    for b in range(2):
        d = acc2(0, b); T = 16 + 4 * b
        a.e(f'v_pk_add_f32 {vr(T,2)}, {vr(d,2)}, {vr(d+2,2)}', f'v_pk_mul_f32 {vr(T+2,2)}, {vr(d,2)}, {vr(d,2)}', f'v_pk_fma_f32 {vr(T+2,2)}, {vr(d+2,2)}, {vr(d+2,2)}, {vr(T+2,2)}')
        for e in range(4, 16, 2):
            a.e(f'v_pk_add_f32 {vr(T,2)}, {vr(T,2)}, {vr(d+e,2)}', f'v_pk_fma_f32 {vr(T+2,2)}, {vr(d+e,2)}, {vr(d+e,2)}, {vr(T+2,2)}')
        a.e(f'v_add_f32 v{24+b}, v{T}, v{T+1}', f'v_add_f32 v{26+b}, v{T+2}, v{T+3}')
    a.e('v_permlane16_swap_b32 v24, v25', 'v_permlane16_swap_b32 v26, v27', 'v_add_f32 v28, v24, v25', 'v_add_f32 v29, v26, v27',
        'v_mov_b32 v30, v28', 'v_mov_b32 v31, v29', 'v_permlane32_swap_b32 v28, v30', 'v_permlane32_swap_b32 v29, v31',
        'v_add_f32 v28, v28, v30', 'v_add_f32 v29, v29, v31', 'v_and_b32 v29, 0x7fffffff, v29',
        's_mov_b32 exec_hi, 0', f'buffer_store_dwordx2 v[28:29], v112, {S4(SRD_B)}, 0 offen {SC}', 's_mov_b64 exec, -1')
    for b in range(2):
        for t in range(4):
            r = RES + 8 * b + 2 * t; d = acc2(t, b)
            a.e(f'v_cvt_pk_bf16_f32 v{r}, v{d}, v{d+1}', f'v_cvt_pk_bf16_f32 v{r+1}, v{d+2}, v{d+3}')
    for b in range(2):
        for P in range(2):
            r = RES + 8 * b + 4 * P
            a.e(f'v_permlane16_swap_b32 v{r}, v{r+2}', f'v_permlane16_swap_b32 v{r+1}, v{r+3}')
    for t in range(1, 4): a.e(f'v_xor_b32 v{115+t}, {t << 5}, v115', f'v_xor_b32 v{120+t}, {t << 5}, v114')
    a.e('v_mov_b32 v120, v114', f's_mov_b32 s{S_CNT}, 0')
    body = ['k2_poll:'] + [f'buffer_load_dwordx2 {vr(32+2*p,2)}, v{113 if p == 0 else 79+p}, {S4(SRD_B)}, 0 offen {SC}' for p in range(8)]
    body += ['s_waitcnt vmcnt(0)', 'v_min3_i32 v16, v33, v35, v37', 'v_min3_i32 v17, v39, v41, v43', 'v_min3_i32 v16, v16, v45, v47',
             'v_min_i32 v16, v16, v17', 'v_cmp_gt_i32 vcc, 0, v16', f's_add_u32 s{S_CNT}, s{S_CNT}, 1', f's_cmp_gt_u32 s{S_CNT}, {SPIN}',
             's_cbranch_scc1 k2_pdone', 's_cbranch_vccnz k2_poll']
    a.loop(body)
    a.e('k2_pdone:', *stamp(6))
    for b in range(2):
        for P in range(2): a.e(f'buffer_store_dwordx4 {vr(RES+8*b+4*P,4)}, v{192+2*P+b}, {S4(SRD_D)}, s53 offen {SC}')
    a.e('v_pk_add_f32 v[32:33], v[32:33], v[34:35]', 'v_pk_add_f32 v[36:37], v[36:37], v[38:39]', 'v_pk_add_f32 v[40:41], v[40:41], v[42:43]',
        'v_pk_add_f32 v[44:45], v[44:45], v[46:47]', 'v_pk_add_f32 v[32:33], v[32:33], v[36:37]', 'v_pk_add_f32 v[40:41], v[40:41], v[44:45]',
        'v_pk_add_f32 v[32:33], v[32:33], v[40:41]', 'v_mov_b32 v34, v32', 'v_mov_b32 v35, v33',
        'v_permlane32_swap_b32 v32, v34', 'v_permlane32_swap_b32 v33, v35', 'v_add_f32 v32, v32, v34', 'v_add_f32 v33, v33, v35')
    stats_finish(a, 32, 33, 36, True)
    a.e('v_mov_b32 v34, v32', 'v_mov_b32 v35, v33', 'v_permlane16_swap_b32 v32, v34', 'v_permlane16_swap_b32 v33, v35')
    for b in range(2):
        st = vr(32 + 2 * b, 2); d = acc2(0, b); o = 160 + 8 * b
        for e in range(0, 16, 2): a.e(f'v_pk_add_f32 {vr(d+e,2)}, {vr(d+e,2)}, {st} op_sel_hi:[1,0] neg_lo:[0,1] neg_hi:[0,1]')
        for e in range(0, 16, 2): a.e(f'v_pk_mul_f32 {vr(d+e,2)}, {vr(d+e,2)}, {st} op_sel:[0,1] op_sel_hi:[1,1]')
        for t in range(4):
            a.e(f'v_cvt_pk_bf16_f32 v{o+2*t}, v{d+4*t}, v{d+4*t+1}', f'v_cvt_pk_bf16_f32 v{o+2*t+1}, v{d+4*t+2}, v{d+4*t+3}',
                f'ds_write_b64 v{120+t}, {vr(o+2*t,2)} offset:{128*b}')
    a.e('s_waitcnt lgkmcnt(0)')
    for t in range(4): a.e(f'ds_read_b64_tr_b16 {vr(176+4*t,2)}, v{115+t}', f'ds_read_b64_tr_b16 {vr(178+4*t,2)}, v{115+t} offset:512')
    for t in range(4): a.e(f's_waitcnt lgkmcnt({6-2*t})', f'buffer_store_dwordx4 {vr(176+4*t,4)}, v{92+(t&1)}, {S4(SRD_E)}, s{S_G0+t} offen {SC}')
    a.e('s_cmp_ge_u32 s2, 224', 's_cbranch_scc1 C_k3skip')

    ACC3 = 80
    def acc3(tf, td): return ACC3 + 16 * td + 4 * tf
    tiles(a, 7, 2)
    a.e(f's_and_b32 s{S_G0+2}, s{S_WAVE}, 1', f's_lshr_b32 s{S_T2}, s{S_WAVE}, 1',
        f's_lshl_b32 s{S_T0}, s{S_TJ}, 8', f's_lshl_b32 s{S_G0}, s{S_G0+2}, 7', f's_add_u32 s{S_T0}, s{S_T0}, s{S_G0}',
        'v_lshlrev_b32 v16, 3, v5', f'v_add_u32 v16, s{S_T0}, v16')
    srd(a, SRD_C, P_B1, 0, 3584 * 2)
    a.e('v_mov_b32 v155, v16')
    srd(a, SRD_D, P_WL, U_OFF, UP)
    a.e('v_lshl_add_u32 v17, v5, 3, v6', 'v_lshlrev_b32 v17, 8, v17', 'v_lshl_add_u32 v17, v7, 3, v17', 'v_lshl_or_b32 v18, v2, 2, v6', 'v_lshl_add_u32 v17, v18, 5, v17',
        f's_lshl_b32 s{S_T0}, s{S_G0+2}, 7', f's_add_u32 s{S_T0}, s{S_T0}, 16384', f'v_xor_b32 v18, s{S_T0}, v17', f's_lshl_b32 s{S_T0}, s{S_T2}, 13', f'v_add_u32 v12, s{S_T0}, v14')
    for t in range(4): a.e(f'v_xor_b32 v{8+t}, {t << 5}, v18')
    a.e('v_bfe_u32 v19, v4, 2, 1', 'v_lshlrev_b32 v17, 11, v19', 'v_lshl_add_u32 v17, v3, 8, v17', 'v_lshrrev_b32 v18, 3, v4', 'v_lshl_add_u32 v17, v18, 6, v17',
        'v_lshl_add_u32 v152, v7, 4, v17', 'v_add_u32 v153, 128, v152', 'v_cmp_eq_u32 vcc, 1, v3', 'v_lshlrev_b32 v17, 7, v19', 'v_add_u32 v18, 640, v17', 'v_lshlrev_b32 v17, 8, v19', 'v_add_u32 v17, 896, v17',
        'v_cndmask_b32 v18, 0, v18, vcc', 'v_cndmask_b32 v17, 0, v17, vcc', 'v_add_u32 v154, v153, v17', 'v_add_u32 v153, v153, v18',
        f's_lshl_b32 s{S_T0}, s{S_TI}, 1', f's_add_u32 s{S_T0}, s{S_T0}, s{S_T2}', f's_mul_i32 s{S_T0}, s{S_T0}, 224',
        f's_lshl_b32 s{S_G0}, s{S_TJ}, 2', f's_add_u32 s{S_T0}, s{S_T0}, s{S_G0}', f's_lshl_b32 s{S_G0}, s{S_G0+2}, 1', f's_add_u32 s{S_T0}, s{S_T0}, s{S_G0}',
        f's_lshl_b32 s{S_G0}, s{S_T0}, 12', f's_add_u32 s{S_G0+1}, s{S_G0}, {112*4096}', f's_add_u32 s{S_G0+2}, s{S_G0}, 4096', f's_add_u32 s{S_G0+3}, s{S_G0+1}, 4096')
    a.e('s_waitcnt vmcnt(0)', 's_barrier', *stamp(7))
    for tf in range(4): a.e(f'buffer_load_dwordx2 {vr(144+2*tf,2)}, v155, {S4(SRD_C)}, 0 offen offset:{32*tf}')
    a.e('s_waitcnt vmcnt(0)')
    for tf in range(4):
        a.e(*unpack4(144 + 2 * tf, 145 + 2 * tf, acc3(tf, 0)))
        for td in range(1, 4): a.e(f'v_mov_b64 {vr(acc3(tf,td),2)}, {vr(acc3(tf,0),2)}', f'v_mov_b64 {vr(acc3(tf,td)+2,2)}, {vr(acc3(tf,0)+2,2)}')
    reads = [[], []]; mf = [[], []]
    for h in range(2):
        F = 16 + 32 * h
        rd = lambda dst, av: [f'ds_read_b64_tr_b16 {vr(dst,2)}, v{av} offset:{h*8192}', f'ds_read_b64_tr_b16 {vr(dst+2,2)}, v{av} offset:{h*8192+1024}']
        ra = [rd(F + 4 * t, 8 + t) for t in range(4)]
        rb = [[f'ds_read_b128 {vr(F+16+4*t,4)}, v12 offset:{(2*t+h)*1024}'] for t in range(4)]
        if SNAKE:
            reads[h] = ra[0] + rb[0] + rb[1] + ra[1] + ra[2] + rb[2] + rb[3] + ra[3]
            order = [(0,0),(0,1),(1,1),(1,0),(2,0),(2,1),(2,2),(1,2),(0,2),(0,3),(1,3),(2,3),(3,3),(3,2),(3,1),(3,0)]
        else:
            for t in range(4): reads[h] += ra[t] + rb[t]
            order = sorted([(tf, td) for tf in range(4) for td in range(4)], key=lambda x: (max(x), x))
        for tf, td in order:
            mf[h].append(f'{MF16} {vr(acc3(tf,td),4)}, {vr(F+4*tf,4)}, {vr(F+16+4*td,4)}, {vr(acc3(tf,td),4)}')
    if ONEP: a.e('s_barrier')
    if CHAIN & 1:
        F3 = (16, 156)
        r3 = lambda p: [f'ds_read_b64_tr_b16 {vr(F3[p]+32*h+4*t+2*q,2)}, v{8+t} offset:{h*8192+q*1024}' for t in range(4) for h in range(2) for q in range(2)] + \
                       [f'ds_read_b128 {vr(F3[p]+32*h+16+4*t,4)}, v12 offset:{(2*t+h)*1024}' for t in range(4) for h in range(2)]
        m3 = lambda p: [f'{MF16} {vr(acc3(tf,td),4)}, {vr(F3[p]+32*h+4*tf,4)}, {vr(F3[p]+32*h+16+4*td,4)}, {vr(acc3(tf,td),4)}' for (tf, td), h in chain_order(order)]
        c_full(a, 32, 5, 32768, r3, m3, list(range(8, 13)), 8)
    else: c_loop(a, 32, 5, 32768, reads, mf, list(range(8, 13)), True, 8)
    c1 = -2.0 * 0.7978845608028654 * 1.4426950408889634
    a.e(f'v_mov_b32 v16, {f32(c1)}', f'v_mov_b32 v17, {f32(c1 * 0.044715)}')
    k = 0
    for td in range(4):
        for P in range(2):
            d = acc3(2 * P, td); T = 24 + 16 * (k & 1); k += 1
            O = 160 + 4 * k
            for e in range(0, 8, 2): a.e(f'v_pk_mul_f32 {vr(T+e,2)}, {vr(d+e,2)}, {vr(d+e,2)}')
            for e in range(0, 8, 2): a.e(f'v_pk_fma_f32 {vr(T+e,2)}, {vr(T+e,2)}, v[16:17], v[16:17] op_sel:[0,1,0] op_sel_hi:[1,1,0]')
            for e in range(0, 8, 2): a.e(f'v_pk_mul_f32 {vr(T+e,2)}, {vr(T+e,2)}, {vr(d+e,2)}')
            for e in range(8): a.e(f'v_exp_f32 v{T+e}, v{T+e}')
            for e in range(0, 8, 2): a.e(f'v_pk_add_f32 {vr(T+e,2)}, {vr(T+e,2)}, 1.0 op_sel_hi:[1,0]')
            for e in range(8): a.e(f'v_rcp_f32 v{T+e}, v{T+e}')
            for e in range(0, 8, 2): a.e(f'v_pk_mul_f32 {vr(T+e,2)}, {vr(T+e,2)}, {vr(d+e,2)}')
            for e in range(4): a.e(f'v_cvt_pk_bf16_f32 v{O+e}, v{T+2*e}, v{T+2*e+1}')
            a.e(f'v_permlane16_swap_b32 v{O}, v{O+2}', f'v_permlane16_swap_b32 v{O+1}, v{O+3}')
            a.e(f'buffer_store_dwordx4 {vr(O,4)}, v{(152, 153, 152, 154)[td]}, {S4(SRD_D)}, s{S_G0+(td>>1)+2*P} offen {SC}')
    a.e('C_k3skip:'); a.flush_hist()

    def acc4(aa, n): return ACC + 8 * n + 4 * aa
    tiles(a, 8, 2)
    a.e(f's_lshl_b32 s{S_T0}, s{S_TJ}, 6', f'v_add_u32 v13, s{S_T0}, v4', 'v_lshlrev_b32 v13, 1, v13',
        f's_lshl_b32 s{S_T1}, s{S_WAVE}, 4', f's_add_u32 s{S_T0}, s{S_T0}, s{S_T1}', f'v_add_u32 v16, s{S_T0}, v5',
        'v_lshlrev_b32 v12, 11, v16', 'v_lshl_add_u32 v12, v4, 4, v12', f's_lshl_b32 s{S_T0}, s{S_TI}, 8', f'v_add_u32 v12, s{S_T0}, v12',
        'v_lshlrev_b32 v186, 8, v16', 'v_and_b32 v17, 7, v0', 'v_lshl_add_u32 v186, v17, 4, v186', 'v_lshrrev_b32 v17, 3, v4', 'v_lshl_add_u32 v186, v17, 19, v186',
        f's_lshl_b32 s{S_T0}, s{S_TI}, 20', f'v_add_u32 v186, s{S_T0}, v186',
        'v_mul_u32_u24 v189, 272, v4', 'v_lshl_add_u32 v189, v5, 4, v189', f's_lshl_b32 s{S_T0}, s{S_WAVE}, 6', f's_add_u32 s{S_T0}, s{S_T0}, 1024', f'v_add_u32 v189, s{S_T0}, v189',
        f'v_add_u32 v16, s{S_T1}, v5', 'v_mul_u32_u24 v190, 272, v16', 'v_lshl_add_u32 v190, v4, 4, v190', 'v_add_u32 v190, 1024, v190',
        f's_lshl_b32 s{S_BA}, s{S_TI}, 2', f's_add_u32 s{S_BA}, s{S_BA}, s{S_WAVE}', f's_mul_i32 s{S_BA}, s{S_BA}, {56*8192}',
        's_mov_b32 s45, 8192', 's_mov_b32 s46, 16384', 's_mov_b32 s47, 24576')
    so = ['0', 's45', 's46', 's47']
    sb = ['0', 's52', 's53', 's54']
    a.e('v_lshrrev_b32 v16, 1, v4', 'v_lshlrev_b32 v16, 4, v16', 'v_lshl_add_u32 v16, v3, 8, v16', 'v_and_b32 v17, 1, v4', 'v_lshl_add_u32 v187, v17, 11, v16',
        f's_and_b32 s{S_T0}, s{S_WAVE}, 1', f's_lshl_b32 s{S_T0}, s{S_T0}, 1', f'v_add_u32 v17, s{S_T0}, v17', 'v_cmp_eq_u32 vcc, 3, v17', 'v_addc_co_u32 v17, vcc, 5, v17, vcc',
        'v_lshlrev_b32 v17, 7, v17', 'v_cmp_eq_u32 vcc, 1, v3', 'v_add_u32 v188, 128, v187', 'v_cndmask_b32 v17, 0, v17, vcc', 'v_add_u32 v188, v188, v17',
        f's_lshl_b32 s44, s{S_TJ}, 6', f's_lshl_b32 s{S_T0}, s{S_TI}, 2', f's_add_u32 s44, s44, s{S_T0}', f's_add_u32 s44, s44, s{S_WAVE}', 's_lshl_b32 s44, s44, 12', 's_add_u32 s51, s44, 131072')
    srd(a, SRD_A, P_WL, U_OFF, UP)
    srd(a, SRD_C, P_WL, X1_OFF, XP)
    srd(a, SRD_B, P_B2, 0, 4096)
    tr128_addr(a, [8, 9, 10, 11], K4_BASE, 16, 17)
    direct_setup(a, 56)
    a.e('v_lshlrev_b32 v184, 3, v0', f's_lshl_b32 s{S_T0}, s{S_WAVE}, 9', f's_add_u32 s{S_T0}, s{S_T0}, {K4_SCR}', f'v_add_u32 v185, s{S_T0}, v184')
    poll_setup(a, SRD_E, 15, 2, 0, [f's_lshl_b32 s{S_T0}, s{S_TI}, 5'], 28)
    a.e('s_waitcnt vmcnt(0)', 's_barrier', *stamp(10))
    for n in range(4): a.e(f'buffer_load_ushort v{RES+16+2*n}, v13, {S4(SRD_B)}, 0 offen offset:{32*n}')
    if PF2:
        a.e('s_cmp_lt_u32 s2, 224', 's_cbranch_scc1 C_nopf', f's_cmp_lg_u32 s{S_VAR}, 0', 's_cbranch_scc1 C_nopf')
        srd(a, SRD_D, P_W2, 0, 3584 * 2048 * 2)
        a.e(f's_sub_u32 s{S_T0}, s2, 224', f's_lshl_b32 s{S_T0}, s{S_T0}, 2', f's_add_u32 s{S_T0}, s{S_T0}, s{S_WAVE}', f's_lshl_b32 s{S_T0}, s{S_T0}, 13', 'v_lshlrev_b32 v17, 7, v0')
        for j in range(PF2D): a.e('s_sleep 127')
        for j in range(PF2N):
            if PF2S: a.e(f's_sleep {PF2S}')
            a.e(f'buffer_load_dword v18, v17, {S4(SRD_D)}, s{S_T0} offen', f's_add_u32 s{S_T0}, s{S_T0}, {128*8192}', *(['s_waitcnt vmcnt(1)'] if j else []))
        a.e('C_nopf:')
    poll(a, SRD_E, 15, 16)
    a.e(*stamp(11))
    for n in range(4): a.e(f'buffer_load_dwordx4 {vr(RES+4*n,4)}, v{187+(n&1)}, {S4(SRD_C)}, s{51 if n >> 1 else 44} offen {LDF}')
    sel(a, SRD_E, P_WS, X2_OFF, P_OUT, 0, XP)
    a.e(f's_lshr_b32 s{SRD_E+2}, s{SRD_E+2}, s{S_VAR}')
    srd(a, SRD_B, P_WS, LSTR + RS_OFF, 8 * 32768)
    def init4(out):
        a.e(f's_waitcnt vmcnt({out})')
        for n in range(4):
            a.e(f'v_lshlrev_b32 v{RES+16+2*n}, 16, v{RES+16+2*n}')
            a.e(*unpack4(RES + 4 * n, RES + 4 * n + 1, acc4(0, n)), *unpack4(RES + 4 * n + 2, RES + 4 * n + 3, acc4(1, n)))
            for e in range(0, 8, 2): a.e(f'v_pk_add_f32 {vr(acc4(0,n)+e,2)}, {vr(acc4(0,n)+e,2)}, {vr(RES+16+2*n,2)} op_sel_hi:[1,0]')
    mf4 = lambda h, b: [f'{MF16} {vr(acc4(aa,n),4)}, {vr(b+4*aa,4)}, {vr(16+16*h+4*n,4)}, {vr(acc4(aa,n),4)}' for n in range(4) for aa in ((0, 1) if n % 2 == 0 or not SNAKE else (1, 0))]
    if CHAIN & 4:
        mc4 = lambda p, bb: [f'{MF16} {vr(acc4(aa,n),4)}, {vr(bb+8*h+4*aa,4)}, {vr(FB[p]+16*h+4*n,4)}, {vr(acc4(aa,n),4)}' for (n, aa), h in chain_order(SN8)]
        c_direct2(a, 56, K4_NS, 8192, w_reads2([8, 9, 10, 11]), mc4, [8, 9, 10, 11], DR, D, 14, init4, 12)
    else: c_direct(a, 56, K4_NS, 8192, w_reads([8, 9, 10, 11]), mf4, [8, 9, 10, 11], DR, D, 14, init4, 12)
    def st4a():
        for n in range(4):
            for e in range(4): a.e(f'v_cvt_pk_bf16_f32 v{RES+4*n+e}, v{acc4(0,n)+2*e}, v{acc4(0,n)+2*e+1}')
            a.e(f'ds_write_b128 v189, {vr(RES+4*n,4)} offset:{n*16*272}')
    def st4b(blk):
        for q in range(4): a.e(f'ds_read_b128 {vr(RES+4*q,4)}, v190 offset:{q*4*272}')
        for q in range(4):
            a.e(f's_waitcnt lgkmcnt({3-q})', f'buffer_store_dwordx4 {vr(RES+4*q,4)}, v186, {S4(SRD_E)}, 0 offen offset:{1024*q} {SC}' if blk else
                f'buffer_store_dwordx4 {vr(RES+4*q,4)}, v12, {S4(SRD_E)}, {so[q]} offen')
    a.e(f's_cmp_eq_u32 s{S_VAR}, 0', 's_cbranch_scc1 C_st')
    st4a()
    a.e('s_waitcnt lgkmcnt(0)', 's_barrier')
    st4b(False)
    a.e('s_branch C_end', 'C_st:', 's_nop 7')
    for n in range(4):
        d = acc4(0, n); T = 16 + 4 * n
        a.e(f'v_pk_add_f32 {vr(T,2)}, {vr(d,2)}, {vr(d+2,2)}', f'v_pk_mul_f32 {vr(T+2,2)}, {vr(d,2)}, {vr(d,2)}', f'v_pk_fma_f32 {vr(T+2,2)}, {vr(d+2,2)}, {vr(d+2,2)}, {vr(T+2,2)}')
        for e in (4, 6): a.e(f'v_pk_add_f32 {vr(T,2)}, {vr(T,2)}, {vr(d+e,2)}', f'v_pk_fma_f32 {vr(T+2,2)}, {vr(d+e,2)}, {vr(d+e,2)}, {vr(T+2,2)}')
        a.e(f'v_add_f32 v{32+n}, v{T}, v{T+1}', f'v_add_f32 v{36+n}, v{T+2}, v{T+3}')
    for b in (32, 36): a.e(f'v_permlane16_swap_b32 v{b}, v{b+1}', f'v_permlane16_swap_b32 v{b+2}, v{b+3}')
    for b in (32, 36): a.e(f'v_add_f32 v{b}, v{b}, v{b+1}', f'v_add_f32 v{b+2}, v{b+2}, v{b+3}')
    a.e('v_permlane32_swap_b32 v32, v34', 'v_permlane32_swap_b32 v36, v38', 'v_add_f32 v40, v32, v34', 'v_add_f32 v41, v36, v38',
        'ds_write_b64 v185, v[40:41]', f's_lshl_b32 s{S_T0}, s{S_TI}, 15', f's_lshl_b32 s{S_T1}, s{S_TJ}, 10', f's_add_u32 s{S_T0}, s{S_T0}, s{S_T1}', f's_add_u32 s{S_T0}, s{S_T0}, 512',
        )
    st4a()
    a.e('s_waitcnt lgkmcnt(0)', 's_barrier',
        f's_cmp_lg_u32 s{S_WAVE}, 0', 's_cbranch_scc1 C_nost',
        'ds_read_b64 v[44:45], v185 offset:512', 'ds_read_b64 v[46:47], v185 offset:1024', 'ds_read_b64 v[18:19], v185 offset:1536', 's_waitcnt lgkmcnt(0)',
        'v_pk_add_f32 v[40:41], v[40:41], v[44:45]', 'v_pk_add_f32 v[46:47], v[46:47], v[18:19]', 'v_pk_add_f32 v[40:41], v[40:41], v[46:47]',
        f'buffer_store_dwordx2 v[40:41], v184, {S4(SRD_B)}, s{S_T0} offen {SC}', 'C_nost:', 's_nop 1')
    st4b(True)
    k1_setup_c()
    a.e('s_waitcnt vmcnt(0)', 's_barrier', *stamp(14))
    if PF5 & 2: slow_strip()
    if ONEP: a.e('s_barrier')
    a.e(f's_mov_b32 s{S_VAR}, 1', 's_mov_b32 s51, 9', f's_add_u32 s{P_WL}, s{P_WS}, {0 if REUSE else LSTR}', f's_addc_u32 s{P_WL+1}, s{P_WS+1}, 0', 's_branch C_top1' if CWREUSE else 's_branch C_top')
    a.e('C_end:'); dump(a)
    a.e('s_endpgm')

    gx = dict(sg=S_G0, dmas=[(8 + i, 1024 * i, 'A', None) for i in range(4)])
    gw = [dict(sg=S_G0 + 2 + m, dmas=[(13 + 2 * m, 0, 'B', None), (14 + 2 * m, 1024, 'B', None)]) for m in range(3)]
    gh = dict(sg=S_G0 + 1, dmas=[(12, 0, 'A', 's[52:53]')])
    def k1_setup_l(layer):
        tiles(a, 8, 1)
        a.e(f's_mov_b32 s{S_T2}, s{S_LWV}')
        dma_w128(a, [13, 14], 6144, swz128(a), 16, 2, 3, 4)
        a.e('v_add_u32 v15, 2048, v13', 'v_add_u32 v16, 2048, v14', 'v_add_u32 v17, 4096, v13', 'v_add_u32 v18, 4096, v14',
            f's_lshl_b32 s{S_G0+2}, s{S_T2}, 11', f's_add_u32 s{S_G0+2}, s{S_G0+2}, {XT}', f's_add_u32 s{S_G0+3}, s{S_G0+2}, 8192', f's_add_u32 s{S_G0+4}, s{S_G0+2}, 16384',
            f's_lshl_b32 s{S_BB}, s{S_TJ}, 7')
        if layer == 1:
            srd(a, SRD_B, P_WQKV, 0, 1024 * 3072 * 2)
            pre_w(a, 16, 3, 2, ST1, 0, 64 * 6144, gw)
        def xaddr(v, comp):
            a.e('v_lshrrev_b32 v2, 3, v0', f'v_add_u32 v2, s{S_T0}, v2', 'v_bfe_u32 v3, v2, 1, 3', 'v_and_b32 v4, 7, v0', 'v_xor_b32 v3, v3, v4', 'v_lshlrev_b32 v3, 4, v3',
                f'v_add_u32 v2, s{S_T1}, v2', 'v_max_i32 v2, 0, v2', f'v_lshlrev_b32 v2, {8 if layer else 11}, v2', f'v_add_u32 v{v}, v2, v3')
            if comp: a.e(f'v_subrev_u32 v{v}, {comp}, v{v}')
        a.e(f's_lshl_b32 s{S_T1}, s{S_TI}, 7', f's_sub_u32 s{S_T1}, s{S_T1}, 16')
        for i in range(2):
            a.e(f's_lshl_b32 s{S_T0}, s{S_T2}, 5', f's_add_u32 s{S_T0}, s{S_T0}, {16+8*i}')
            xaddr(8 + i, 1024 * i)
            a.e(f'v_add_u32 v{10+i}, {16*(256 if layer else 2048)-2048}, v{8+i}')
        a.e(f's_lshl_b32 s{S_T0}, s{S_T2}, 3'); xaddr(12, 0)
        a.e(f's_lshl_b32 s{S_G0}, s{S_T2}, 12', f's_add_u32 s{S_G0}, s{S_G0}, 2048', f's_lshl_b32 s{S_G0+1}, s{S_T2}, 10', f's_mov_b32 s{S_BA}, 0', f's_mov_b32 s54, {524288 if layer else 128}',
            f's_cmp_eq_u32 s{S_T2}, 0', 's_cselect_b32 s52, 0xffffff00, -1', 's_mov_b32 s53, -1')
        a.e('v_mov_b32 v20, 0x3f803f80', 'v_mov_b32 v21, v20', 'v_mov_b32 v22, v20', 'v_mov_b32 v23, v20', 'v_lshlrev_b32 v24, 4, v0', f'v_add_u32 v25, {2*ST1}, v24',
            's_mov_b64 exec, 0xff', 'ds_write_b128 v24, v[20:23]', f'ds_write_b128 v24, v[20:23] offset:{ST1}', 'ds_write_b128 v25, v[20:23]', 's_mov_b64 exec, -1')
        a.e(f's_lshl_b32 s{S_T0}, s{S_T2}, 6', f'v_add_u32 v26, s{S_T0}, v0', 'v_min_u32 v26, 143, v26', f'v_add_u32 v27, s{S_T1}, v26', 'v_max_i32 v27, 0, v27',
            'v_lshrrev_b32 v2, 6, v27', 'v_and_b32 v27, 63, v27', 'v_lshlrev_b32 v27, 3, v27', 'v_lshl_add_u32 v27, v2, 10, v27', 'v_add_u32 v27, 512, v27', 'v_lshlrev_b32 v26, 3, v26', f'v_add_u32 v26, {SL}, v26')
        if layer == 1:
            srd(a, SRD_A, P_WS, X2_OFF, XP)
            srd(a, SRD_D, P_WS, LSTR + RS_OFF, 8 * 32768)
            a.e('s_waitcnt lgkmcnt(0)')
    a.e('L_start:'); a.flush_hist()
    a.e(f's_sub_u32 s{S_LWV}, s{S_WAVE}, 4', 'v_and_b32 v134, 3, v0', 'v_lshlrev_b32 v134, 6, v134')
    k1_setup_l(0)
    a.e(f's_lshl_b32 s{S_T0}, s2, 3', f's_lshl_b32 s{S_T1}, s{S_LWV}, 1', f's_add_u32 s{S_T0}, s{S_T0}, s{S_T1}',
        'v_lshrrev_b32 v72, 5, v0', f'v_add_u32 v72, s{S_T0}, v72', 'v_lshlrev_b32 v46, 11, v72', 'v_and_b32 v2, 31, v0', 'v_lshl_add_u32 v46, v2, 4, v46',
        'v_lshrrev_b32 v2, 6, v72', 'v_and_b32 v72, 63, v72', 'v_lshlrev_b32 v72, 3, v72', 'v_lshl_add_u32 v72, v2, 10, v72', f'v_add_u32 v72, {RS_OFF + 512}, v72',
        f's_cmp_eq_u32 s{S_LWV}, 0', 's_cselect_b32 s58, 0, -1', 'v_mov_b32 v64, s58', 'v_mov_b32 v65, s58', 'v_mov_b32 v66, s58', 'v_mov_b32 v67, s58',
        'v_lshrrev_b32 v2, 3, v0', f'v_lshlrev_b32 v2, {8+FSH}, v2', 'v_and_b32 v3, 7, v0', 'v_lshl_add_u32 v2, v3, 4, v2', 'v_lshrrev_b32 v4, 4, v0', 'v_and_b32 v3, 15, v0', 'v_lshlrev_b32 v3, 4, v3', f'v_lshl_add_u32 v3, v4, {8+STS}, v3',
        's_cselect_b64 vcc, -1, 0', f's_lshl_b32 s58, s2, {FSH}', f's_add_u32 s58, s58, {FL_OFF}', f's_lshl_b32 s59, s2, {10+STS}', f's_add_u32 s59, s59, {ST_OFF}',
        f's_cmp_eq_u32 s{S_LWV}, 0', 's_cselect_b32 s58, s58, s59', f's_add_u32 s59, s59, {LSTR}', f's_cmp_eq_u32 s{S_LWV}, 2', 's_cselect_b32 s58, s59, s58',
        f's_cmp_eq_u32 s{S_LWV}, 3', f's_cselect_b32 s58, {128*MB}, s58',
        'v_cndmask_b32 v47, v3, v2, vcc', 's_and_b32 s59, s2, 3', 's_lshl_b32 s59, s59, 6', 'v_mov_b32 v73, s59', 'v_mov_b32 v74, 1')
    flag_idx(a, 0, S_TI, 16, S_TJ)
    a.e(f's_mov_b32 s{S_LW}, 0', *lstamp(29), 's_waitcnt lgkmcnt(0)', *lstamp(61))
    srd(a, SRD_A, P_X, 0, XB)
    srd(a, SRD_B, P_WQKV, 0, 1024 * 3072 * 2)
    a.e('s_branch L_first')
    a.e('L_top:'); a.flush_hist()
    flag_idx(a, 0, S_TI, 16, S_TJ)
    srd(a, SRD_E, P_W1, 0, 2048 * 3584 * 2)
    gl = f'global_load_dword v29, v134, s[{P_DB}:{P_DB+1}] {SC}'
    def h_gate(n):
        if SINGLE: a.e(gl)
    def h_fetch(n):
        l = lab('st')
        if SINGLE:
            a.e(f's_cmp_lg_u32 s{S_VAR}, 0', f's_cbranch_scc1 {l}g', f's_waitcnt vmcnt({n})', 's_mov_b32 s61, 0')
            a.loop([f'{l}p:', 'v_cmp_gt_u32 vcc, 64, v29', 's_add_u32 s61, s61, 1', f's_cmp_gt_u32 s61, {SPIN}', f's_cbranch_scc1 {l}g', f's_cbranch_vccz {l}g', gl, 's_waitcnt vmcnt(0)', f's_branch {l}p'])
            a.e(f'{l}g:')
        for p in range(8):
            if p: a.e(f's_mov_b32 s{S_T0}, {p*32768}')
            a.e(f'buffer_load_dwordx2 {vr(30+2*p,2)}, v27, {S4(SRD_D)}, {"0" if p == 0 else f"s{S_T0}"} offen {LDF}')
    def h_fin(n):
        a.e(f's_waitcnt vmcnt({n})', 'v_pk_add_f32 v[30:31], v[30:31], v[32:33]', 'v_pk_add_f32 v[34:35], v[34:35], v[36:37]', 'v_pk_add_f32 v[38:39], v[38:39], v[40:41]',
            'v_pk_add_f32 v[42:43], v[42:43], v[44:45]', 'v_pk_add_f32 v[30:31], v[30:31], v[34:35]', 'v_pk_add_f32 v[38:39], v[38:39], v[42:43]',
            'v_pk_add_f32 v[30:31], v[30:31], v[38:39]')
        stats_finish(a, 30, 31, 32, False)
        a.e('ds_write_b64 v26, v[30:31]', 's_waitcnt lgkmcnt(0)')
    HK = (h_gate, h_fetch)
    def only0(f):
        def g(n):
            l = lab('e'); a.e(f's_cmp_lg_u32 s{S_VAR}, 0', f's_cbranch_scc1 {l}'); f(n); a.e(f'{l}:', 's_nop 1')
        return g
    def e_load(n):
        a.e(*lstamp(63))
        for c in range(4): a.e(f'buffer_load_dwordx4 {vr(48+4*c,4)}, v46, {S4(SRD_A)}, 0 offen offset:{512*c}')
        a.e(f'buffer_store_dwordx4 v[64:67], v47, {S4(SRD_C)}, s58 offen {SC}', 's_barrier')
    def e_stat(n):
        a.e('v_mov_b32 v68, 0', 'v_mov_b32 v69, 0', 'v_mov_b32 v70, 0x3f803f80', f's_waitcnt vmcnt({n+1})')
        for e in range(16): a.e(f'v_dot2c_f32_bf16 v68, v70, v{48+e}', f'v_dot2c_f32_bf16 v69, v{48+e}, v{48+e}')
        for ctl in ('quad_perm:[1,0,3,2]', 'quad_perm:[2,3,0,1]', 'row_half_mirror', 'row_mirror'):
            a.e(f'v_add_f32_dpp v68, v68, v68 {ctl} row_mask:0xf bank_mask:0xf', f'v_add_f32_dpp v69, v69, v69 {ctl} row_mask:0xf bank_mask:0xf')
        a.e('v_mov_b32 v70, v68', 'v_mov_b32 v71, v69', 'v_permlane16_swap_b32 v68, v70', 'v_permlane16_swap_b32 v69, v71', 'v_add_f32 v68, v68, v70', 'v_add_f32 v69, v69, v71',
            's_mov_b32 exec_lo, 1', 's_mov_b32 exec_hi, 1', f'buffer_store_dwordx2 v[68:69], v72, {S4(SRD_C)}, 0 offen {SC}', 's_mov_b64 exec, -1')
    def e_gate(n):
        l = lab('g'); a.e(f's_cmp_lg_u32 s{S_LWV}, 0', f's_cbranch_scc1 {l}', 's_mov_b64 exec, 1', f'global_atomic_add v73, v74, s[{P_DB}:{P_DB+1}] sc1', 's_mov_b64 exec, -1', f'{l}:')
    a.e(f's_cmp_ge_u32 s{S_LWV}, 2', 's_cbranch_scc1 L_k1B')
    l_loop(a, 16, 3, 2, ST1, 0, 's54', 64 * 6144, [gh, gx], gw, tail=1, hooks=HK, early=('L_jA', lambda n: None, only0(e_gate)), st=env('STK', '3') == '1')
    a.e('s_branch L_k1t', 'L_k1B:'); a.flush_hist()
    l_loop(a, 16, 3, 2, ST1, 0, 's54', 64 * 6144, [gx], gw, tail=1, hooks=HK, early=('L_jB', lambda n: None, only0(e_gate)))
    a.e('s_branch L_k1t')
    a.e('L_first:'); a.flush_hist()
    a.e(f's_cmp_ge_u32 s{S_LWV}, 2', 's_cbranch_scc1 L_firstB')
    for gA, n, tag in (([gh, gx], 11, 'A'), ([gx], 10, 'B')):
        if tag == 'B': a.e('L_firstB:'); a.flush_hist()
        iss = lambda: issue(16, 3, ST1, 0, 's54', 64 * 6144, gA, gw)
        a.e(*iss(), *lstamp(62))
        srd(a, SRD_C, P_WS, 0, 112 * MB)
        srd(a, SRD_D, P_WS, RS_OFF, 32768)
        a.e(f's_mov_b32 s{P_WL}, s{P_WS}', f's_mov_b32 s{P_WL+1}, s{P_WS+1}', *iss())
        e_load(n)
        a.e(f's_waitcnt vmcnt({n+5})', 's_barrier', *iss())
        e_stat(n)
        a.e(f's_branch L_j{tag}')
    a.e('L_k1t:'); a.flush_hist()
    h_fin(0)
    a.e(f's_mov_b32 s{S_T2}, s{S_LWV}')
    dma_w128(a, [130, 131], 2048, swz128(a), 16, 2, 3, 4)
    srd(a, SRD_B, P_WO, 0, 1024 * 1024 * 2)
    a.e(*INITK, f's_lshl_b32 s{S_G0+8}, s{S_LWV}, 11')
    def wo(t0, t1):
        for t in range(t0, t1):
            a.e(*next_k(16), f's_lshl_b32 s{S_OB}, s{S_K}, 17', f's_add_u32 s{S_OB}, s{S_OB}, s{S_BB}', f's_add_u32 m0, s{S_G0+8}, {WO_SLOTS[t]}',
                f'buffer_load_dwordx4 v130, {S4(SRD_B)}, s{S_OB} offen lds', f'buffer_load_dwordx4 v131, {S4(SRD_B)}, s{S_OB} offen offset:1024 lds')
    wo(0, 4)
    def pf3(j):
        if PF3 > j: a.e(f's_add_u32 s{S_T0}, s54, {j*8*MB}', f'buffer_load_dword v135, v132, {S4(SRD_E)}, s{S_T0} offen')
    if PF3:
        a.e(f's_cmp_eq_u32 s{S_VAR}, 0', f's_cselect_b32 s{SRD_E+2}, s{SRD_E+2}, 0', 's_lshl_b32 s54, s2, 2', f's_add_u32 s54, s54, s{S_LWV}', 's_lshl_b32 s54, s54, 13',
            f's_add_u32 s54, s54, {W1_K0}', 'v_lshlrev_b32 v132, 7, v0')
    pf3(0)
    x = 1 if PF3 else 0
    if PFT:
        srd(a, SRD_C, P_W2, 0, 3584 * 2048 * 2)
        a.e(f's_cmp_eq_u32 s{S_VAR}, 0', f's_cselect_b32 s{SRD_E+2}, s{SRD_E+2}, 0', f's_cselect_b32 s{SRD_C+2}, s{SRD_C+2}, 0',
            's_lshr_b32 s54, s2, 3', 's_lshl_b32 s54, s54, 2', f's_add_u32 s54, s54, s{S_LWV}', 's_lshl_b32 s54, s54, 18', 'v_lshlrev_b32 v132, 12, v0', 'v_add_u32 v132, s54, v132',
            f'v_subrev_u32 v133, {16*MB}, v132', f'buffer_load_dword v135, v132, {S4(SRD_E)}, 0 offen', f'buffer_load_dword v135, v133, {S4(SRD_C)}, 0 offen')
        x += 2
    a.e(f's_waitcnt vmcnt({8+x})', 's_barrier')
    wo(4, 7)
    only0(lambda n: (lane_fields(a), attn_static()))(0)
    a.e('s_waitcnt lgkmcnt(0)', 's_barrier')
    pf3(1)
    wo(7, 12)
    a.e('s_branch attn')
    a.e('L_k1done:'); a.flush_hist()
    publish_pre(a)
    a.e('s_waitcnt vmcnt(0)', 's_barrier')
    publish(a, 2)
    wo(12, 16)
    flag_idx(a, 1, S_TJ, 16, S_TI)
    if ONEP: a.e('s_barrier')
    a.e('s_waitcnt vmcnt(0)', 's_barrier')
    g4 = [dict(sg=S_G0 + 1, dmas=[(9, 0, 'B', None), (10, 1024, 'B', None)])]
    def k4_setup_l():
        tiles(a, 8, 2)
        a.e(f's_mov_b32 s{S_T2}, s{S_LWV}', f's_lshl_b32 s{S_G0+1}, s{S_T2}, 11')
        dma_w128(a, [9, 10], 4096, swz128(a), 16, 2, 3, 4)
        a.e(f's_lshl_b32 s{S_BB}, s{S_TJ}, 7')
        srd(a, SRD_B, P_W2, 0, 3584 * 2048 * 2)
        if ROLL & 2:
            a.e(f's_lshr_b32 s{S_T0}, s2, 3', f's_lshl_b32 s{S_T0}, s{S_T0}, 2', f's_add_u32 s{S_T0}, s{S_T0}, s{S_LWV}', f's_lshl_b32 s{S_T0}, s{S_T0}, 2',
                'v_and_b32 v2, 3, v0', 'v_lshrrev_b32 v3, 2, v0', 'v_lshl_add_u32 v2, v3, 9, v2', f'v_add_u32 v2, s{S_T0}, v2', 'v_lshlrev_b32 v2, 12, v2',
                f's_and_b32 s{S_T0}, s2, 3', f's_lshl_b32 s{S_T0}, s{S_T0}, 10', f's_add_u32 s{S_T0}, s{S_T0}, 384', f'v_add_u32 v2, s{S_T0}, v2', 'v_mov_b32 v3, 0x40000000',
                'v_cmp_gt_u32 vcc, 4, v0', 'v_cmp_gt_u32 s[58:59], 12, v0', 'v_cndmask_b32 v24, v3, v2, vcc', 'v_cndmask_b32 v25, v3, v2, s[58:59]',
                's_mov_b32 s58, 0x40000000', f's_mov_b32 s59, {2*512*4096}', f's_cmp_lt_u32 s{S_PHI}, {K4_AH}', f's_cselect_b32 s59, {3*512*4096}, s59')
    a.e('s_cmp_ge_u32 s2, 224', 's_cbranch_scc1 L_k3skip')
    tiles(a, 7, 2)
    a.e(f's_lshl_b32 s{S_G0}, s{S_LWV}, 12', f's_add_u32 s{S_G0+1}, s{S_G0}, 16384',
        'v_lshrrev_b32 v2, 4, v0', 'v_lshlrev_b32 v3, 1, v2', 'v_and_b32 v4, 15, v0', 'v_xor_b32 v3, v3, v4', 'v_lshlrev_b32 v3, 4, v3',
        f's_lshl_b32 s{S_T0}, s{S_LWV}, 4', f'v_add_u32 v2, s{S_T0}, v2', f's_mov_b32 s{S_T0}, 7168', f'v_mul_lo_u32 v2, v2, s{S_T0}',
        'v_add_u32 v9, v2, v3', 'v_xor_b32 v3, 128, v3', 'v_add_u32 v11, v2, v3',
        f'v_add_u32 v10, {4*7168-1024}, v9', f'v_add_u32 v12, {3*(4*7168-1024)}, v11', f'v_add_u32 v11, {2*(4*7168-1024)}, v11',
        f's_lshl_b32 s{S_BA}, s{S_TI}, 2', f's_add_u32 s{S_BA}, s{S_BA}, s{S_LWV}', f's_lshl_b32 s{S_BA}, s{S_BA}, 18', f's_lshl_b32 s{S_BB}, s{S_TJ}, 8')
    for i in range(4): lanemap(a, 20 + i, i & 1, i >> 1, (i & 1) * 2048 + (i >> 1) * 131072 - 1024 * i)
    srd(a, SRD_A, P_WL, H_OFF, XP)
    srd(a, SRD_B, P_W1, 0, 2048 * 3584 * 2)
    g3a = [dict(sg=S_G0, dmas=[(20 + i, 1024 * i, 'A', None) for i in range(4)])]
    g3w = [dict(sg=S_G0 + 1, dmas=[(9 + i, 1024 * i, 'B', None) for i in range(4)])]
    poll_setup(a, SRD_C, 14, 1, 0, [f's_lshl_b32 s{S_T0}, s{S_TI}, 5'], 32)
    if ROLL & 1:
        a.e(f's_and_b32 s{S_T0}, s2, 3', f's_mul_i32 s{S_T0}, s{S_T0}, 14', f's_sub_u32 s{S_T1}, 3, s{S_T0}', f's_and_b32 s{S_T1}, s{S_T1}, 7',
            'v_and_b32 v2, 1, v0', 'v_lshlrev_b32 v2, 3, v2', f'v_add_u32 v2, s{S_T1}, v2', 'v_cmp_gt_u32 vcc, 14, v2', f'v_add_u32 v2, s{S_T0}, v2', 'v_lshlrev_b32 v2, 7, v2',
            f's_lshr_b32 s{S_T0}, s2, 3', f's_lshl_b32 s{S_T0}, s{S_T0}, 2', f's_add_u32 s{S_T0}, s{S_T0}, s{S_LWV}', f's_mul_i32 s{S_T0}, s{S_T0}, 5',
            'v_lshrrev_b32 v3, 1, v0', 'v_cmp_gt_u32 s[58:59], 5, v3', 'v_cmp_gt_u32 s[60:61], 15, v3', 'v_mul_u32_u24 v4, 52, v3', 'v_lshrrev_b32 v4, 8, v4', 'v_mul_u32_u24 v4, 507, v4', 'v_add_u32 v3, v3, v4',
            f'v_add_u32 v3, s{S_T0}, v3', 'v_mul_u32_u24 v3, 7168, v3', 'v_add_u32 v2, v2, v3', 'v_mov_b32 v3, 0x40000000',
            's_and_b64 s[58:59], s[58:59], vcc', 's_and_b64 s[60:61], s[60:61], vcc', 'v_cndmask_b32 v24, v3, v2, s[58:59]', 'v_cndmask_b32 v25, v3, v2, s[60:61]',
            's_mov_b32 s58, 0x40000000', f's_mov_b32 s59, {2*512*7168}', f's_cmp_lt_u32 s{S_PHI}, 3', f's_cselect_b32 s59, {3*512*7168}, s59')
    for j in range(PF4):
        a.e(f's_lshr_b32 s{S_T0}, s2, 3', f's_add_u32 s{S_T0}, s{S_T0}, {28*j}', f's_lshl_b32 s{S_T0}, s{S_T0}, 2', f's_add_u32 s{S_T0}, s{S_T0}, s{S_LWV}', f's_lshl_b32 s{S_T0}, s{S_T0}, 6',
            f'v_add_u32 v2, s{S_T0}, v0', 'v_mul_u32_u24 v3, 74899, v2', 'v_lshrrev_b32 v3, 20, v3', 'v_mul_u32_u24 v4, 14, v3', 'v_sub_u32 v4, v2, v4',
            'v_add_u32 v3, 192, v3', 'v_mul_u32_u24 v3, 7168, v3', 'v_lshl_add_u32 v3, v4, 7, v3', f's_and_b32 s{S_T0}, s2, 3', f's_mul_i32 s{S_T0}, s{S_T0}, 1792', f's_lshl_b32 s{S_T1}, s{S_VAR}, 30', f's_add_u32 s{S_T0}, s{S_T0}, s{S_T1}', f'v_add_u32 v{16+j}, s{S_T0}, v3')
    a.e('s_barrier')
    if not LATEW: pre_w(a, 32, 5, 3, 32768, 0, 64 * 7168, g3w)
    a.e('s_barrier')
    publish(a, 2)
    if LATEW: pre_w(a, 32, 5, 3, 32768, 0, 64 * 7168, g3w)
    if ROLL & 1: a.e(f'buffer_load_dword v135, v25, {S4(SRD_B)}, 0 offen')
    for j in range(PF4): a.e(f'buffer_load_dword v135, v{16+j}, {S4(SRD_B)}, 0 offen')
    flag_idx(a, 2, S_TI, 32, S_TJ)
    poll(a, SRD_C, 14, 15)
    l_loop(a, 32, 5, 3, 32768, 0, 4096, 64 * 7168, g3a, g3w, st=env('STK', '3') == '3', roll=(24, 512 * 7168) if ROLL & 1 else None)
    k4_setup_l()
    a.e('s_branch L_k4', 'L_k3skip:'); a.flush_hist()
    k4_setup_l()
    a.e('s_barrier')
    a.e('L_k4:'); a.flush_hist()
    if ROLL & 2: a.e(f'buffer_load_dword v135, v25, {S4(SRD_B)}, 0 offen')
    pre_w(a, 56, K4_NS, K4_AH, 8192, K4_BASE, 64 * 4096, g4)
    a.e('s_barrier')
    publish(a, 2)
    flag_idx(a, 3, S_TJ, 8, S_TI)
    if ONEP: a.e('s_barrier')
    l_loop(a, 56, K4_NS, K4_AH, 8192, K4_BASE, 0, 64 * 4096, [], g4, roll=(24, 512 * 4096) if ROLL & 2 else None)
    a.e(f's_cmp_lg_u32 s{S_VAR}, 0', 's_cbranch_scc1 L_end')
    k1_setup_l(1)
    poll_setup(a, SRD_C, 28, 3, 0, [f's_lshl_b32 s{S_T0}, s{S_TI}, 4', f's_sub_u32 s{S_T0}, s{S_T0}, 8'], 24)
    a.e('s_barrier', 's_barrier')
    publish(a, 2)
    poll(a, SRD_C, 28, 29)
    a.e(f's_mov_b32 s{S_VAR}, 1', f's_add_u32 s{P_WL}, s{P_WS}, {0 if REUSE else LSTR}', f's_addc_u32 s{P_WL+1}, s{P_WS+1}, 0', 's_branch L_top')
    a.e('L_end:')
    if PROF: a.e(f's_cmp_lg_u32 s{S_LWV}, 0', f's_cbranch_scc1 {kn}_end', 's_lshl_b32 s58, s2, 8', f's_add_u32 s58, s58, {PR_OFF + MB}', 'v_lshlrev_b32 v254, 2, v0', 'v_add_u32 v254, s58, v254', f'global_store_dword v254, v255, s[{P_WS}:{P_WS+1}]')
    a.e(f'{kn}_end:', 's_endpgm')

def dump(a):
    if not PROF: return
    a.e('s_waitcnt vmcnt(0)', *stamp(14), f's_cmp_lg_u32 s{S_WAVE}, 0', 's_cbranch_scc1 nodump', 's_lshl_b32 s58, s2, 8', f's_add_u32 s58, s58, {PR_OFF}',
        'v_lshlrev_b32 v254, 2, v0', 'v_add_u32 v254, s58, v254', f'global_store_dword v254, v{PV}, s[{P_WS}:{P_WS+1}]', 'nodump:')

def gen_k0(a):
    a.e('.p2align 8', 'k0_kernel:', 's_cmp_ge_u32 s2, 256', 's_cbranch_scc1 k0_end',
        's_load_dwordx16 s[64:79], s[0:1], 0', 's_load_dwordx2 s[84:85], s[0:1], 80',
        'v_lshrrev_b32 v1, 6, v0', 'v_lshlrev_b32 v20, 4, v0', 'v_and_b32 v0, 63, v0', f'v_readfirstlane_b32 s{S_WAVE}, v1',
        's_lshl_b32 s30, s2, 3', f's_add_u32 s30, s30, s{S_WAVE}',
        's_lshl_b32 s31, s30, 11', 'v_lshlrev_b32 v2, 5, v0',
        's_lshl_b32 s32, s2, 2', f's_and_b32 s33, s{S_WAVE}, 3', 's_add_u32 s32, s32, s33', 's_lshl_b32 s32, s32, 13', 'v_lshlrev_b32 v3, 7, v0', 'v_add_u32 v3, s32, v3',
        f'v_subrev_u32 v4, {1024*3072*2}, v3', 's_waitcnt lgkmcnt(0)')
    srd(a, SRD_A, P_X, 0, XB)
    a.e(f'buffer_load_dwordx4 v[8:11], v2, {S4(SRD_A)}, s31 offen', f'buffer_load_dwordx4 v[12:15], v2, {S4(SRD_A)}, s31 offen offset:16')
    KW = int(env('K0WARM', '1'))
    srd(a, SRD_B, P_WQKV, 0, 1024 * 3072 * 2 * KW)
    srd(a, SRD_C, P_WO, 0, 1024 * 1024 * 2 * KW)
    srd(a, SRD_E, P_W1, 0, W1_K0)
    a.e(f's_sub_u32 s33, s{S_WAVE}, 4', 's_lshl_b32 s33, s33, 8', 's_add_u32 s33, s33, s2', 's_lshl_b32 s33, s33, 13', 'v_lshlrev_b32 v7, 7, v0',
        f's_cmp_ge_u32 s{S_WAVE}, 4', 's_cbranch_scc1 k0_nw', f'buffer_load_dword v5, v3, {S4(SRD_B)}, 0 offen', f'buffer_load_dword v6, v4, {S4(SRD_C)}, 0 offen', 's_branch k0_nx',
        'k0_nw:', f'buffer_load_dword v5, v7, {S4(SRD_E)}, s33 offen', 'k0_nx:')
    if CODEPF:
        a.e(f's_cmp_lg_u32 s{S_WAVE}, 7', 's_cbranch_scc1 k0_nc', 's_getpc_b64 s[40:41]', 'k0_pc:', 's_add_u32 s40, s40, mega_kernel-k0_pc', 's_addc_u32 s41, s41, 0',
            's_lshr_b32 s42, s2, 3', 's_lshl_b32 s42, s42, 11', 'v_and_b32 v25, 15, v0', 'v_lshlrev_b32 v25, 7, v25', 'v_add_u32 v25, s42, v25',
            'v_min_u32 v25, mega_end-mega_kernel, v25', 'global_load_dword v26, v25, s[40:41]', 'k0_nc:')
    srd(a, SRD_D, P_WS, 0, 64 * MB)
    a.e(f's_cmp_eq_u32 s{S_WAVE}, 0', 's_cselect_b32 s33, 0, -1', 'v_mov_b32 v16, s33', 'v_mov_b32 v17, s33', 'v_mov_b32 v18, s33', 'v_mov_b32 v19, s33',
        f's_mov_b32 s34, {ST_OFF}', f's_cselect_b32 s34, {FL_OFF}, s34', f's_cmp_eq_u32 s{S_WAVE}, 2', f's_cselect_b32 s34, {LSTR + ST_OFF}, s34', 's_lshl_b32 s35, s2, 10', 's_add_u32 s34, s34, s35',
        'v_lshlrev_b32 v20, 4, v0', f's_cmp_ge_u32 s{S_WAVE}, 3', 's_cbranch_scc1 k0_nr', f'buffer_store_dwordx4 v[16:19], v20, {S4(SRD_D)}, s34 offen', 'k0_nr:')
    a.e('v_mov_b32 v22, 0', 'v_mov_b32 v23, 0', 'v_mov_b32 v21, 0x3f803f80', 'v_lshrrev_b32 v24, 3, v0', 'v_lshlrev_b32 v24, 14, v24', 's_lshl_b32 s36, s30, 3', f's_add_u32 s36, s36, {RS_OFF}',
        's_waitcnt vmcnt(0)')
    for e in range(8): a.e(f'v_dot2c_f32_bf16 v22, v21, v{8+e}', f'v_dot2c_f32_bf16 v23, v{8+e}, v{8+e}')
    for ctl in ('quad_perm:[1,0,3,2]', 'quad_perm:[2,3,0,1]', 'row_half_mirror'):
        a.e(f'v_add_f32_dpp v22, v22, v22 {ctl} row_mask:0xf bank_mask:0xf', f'v_add_f32_dpp v23, v23, v23 {ctl} row_mask:0xf bank_mask:0xf')
    a.e('s_mov_b32 exec_lo, 0x01010101', 's_mov_b32 exec_hi, 0x01010101', f'buffer_store_dwordx2 v[22:23], v24, {S4(SRD_D)}, s36 offen', 'k0_end:', 's_endpgm')

def main(out):
    a = Asm()
    if not SINGLE: gen_k0(a); a.flush_hist()
    gen_mega(a)
    info = {} if SINGLE else {'k0_kernel': (32, 0)}
    info[MEGA] = (256, 163840)
    ref = open(os.path.join(os.path.dirname(os.path.abspath(__file__)), '..', NAME + '.s.ref')).read().splitlines()
    hdr = [l for l in ref if l.startswith(';') and '@launch' not in l and 'Override launch' not in l and 'grid=ceil' not in l]
    if SINGLE: hdr += ['; @launch grid=(256,1,1) block=(512,1,1) lds=163840']
    else: hdr += [f'; @launch kernel={n} grid=(256,1,1) block=(512,1,1) lds={v[1]}' for n, v in info.items()]
    s = '\n'.join(hdr) + '\n; generated by gen/gen2.py\n.amdgcn_target "amdgcn-amd-amdhsa--gfx950"\n.text\n'
    if SINGLE: s += f'.globl {MEGA}\n.type {MEGA},@function\n'
    s += a.text() + '.section .rodata,"a"\n'
    for n, (vg, _) in info.items():
        s += f'''.p2align 6
.amdhsa_kernel {n}
  .amdhsa_next_free_vgpr {vg}
  .amdhsa_next_free_sgpr 102
  .amdhsa_accum_offset {vg}
  .amdhsa_group_segment_fixed_size 0
  .amdhsa_kernarg_size 88
  .amdhsa_user_sgpr_count 2
  .amdhsa_user_sgpr_kernarg_segment_ptr 1
  .amdhsa_system_sgpr_workgroup_id_x 1
.end_amdhsa_kernel
'''
    open(out, 'w').write(s)

if __name__ == '__main__':
    main(sys.argv[1])
```

```python
import sys, os, struct
sys.path.insert(0, os.path.dirname(os.path.abspath(__file__)))
from asmlib import *
import gen as G
from gen import (NAME, MB, XB, UB, f32, env, S4, srd, next_k, adv_s, sched, bundle, spread, lane_fields, tr128_addr, swz128, unpack4,
                 dma_w128, stats_finish, MF16, S_VAR, S_WAVE, S_LI, S_LJ, S_PHI, SRD_A, SRD_B, SRD_C, SRD_D, SRD_E, S_TI, S_TJ,
                 S_P, S_W, S_T0, S_K, S_BA, S_BB, S_OA, S_OB, S_LW, S_CNT, S_T1, S_T2, S_DELTA, S_CUR, S_G0,
                 P_X, P_WQKV, P_WO, P_W1, P_B1, P_W2, P_B2, P_OUT, P_WS)

LSTR = 48 * MB
O_OFF, X1_OFF, H_OFF, U_OFF, ST_OFF, RS_OFF = 0, 8 * MB, 16 * MB, 24 * MB, 40 * MB, 41 * MB
X2_OFF, FL_OFF, PR_OFF = 96 * MB, 104 * MB, 128 * MB
XP = 2 * XB; UP = 2 * UB
STP = 16384 + int(env('STPAD', '0')); FSH = int(env('FSH', '7')); STS = int(env('STS', '0'))
P_WL = 82
S_LWV, S_FLG = 57, 56
SC = 'sc0 sc1'
LDF = env('LDF', 'sc1')
PROF = env('PROF') == '1'
PV = 255
SINGLE = env('SINGLE', '1') == '1'
MEGA = NAME + '_kernel' if SINGLE else 'mega_kernel'
P_DB = 62
SPIN = 1000000
EXP = env('EXP', '')
SNAKE = int(env('SNAKE', '1')); CWREUSE = int(env('CWREUSE', '1')); CHAIN = int(env('CHAIN', '1'))
ONEP = int(env('ONEP', '1')); PS0 = int(env('PS0', '8')); PS1 = int(env('PS1', '0')); PP = int(env('PP', '1')); PSL = int(env('PSL', '4'))

def stamp(k):
    if not PROF: return []
    return ['s_memrealtime s[58:59]', 's_memtime s[56:57]', 's_waitcnt lgkmcnt(0)', f's_lshl_b32 s60, s{S_VAR}, 4', f's_add_u32 m0, s60, {k+1}', 's_nop 0', f'v_writelane_b32 v{PV}, s58, m0',
            's_add_u32 m0, m0, 32', 's_nop 0', f'v_writelane_b32 v{PV}, s56, m0']
G.stamp = lambda idx=None: []
G.cstamp = lambda idx: []

def lstamp(k): return ['s_memrealtime s[60:61]', 's_waitcnt lgkmcnt(0)', f'v_writelane_b32 v255, s60, {k}'] if PROF else []

def tiles(a, LN, xshift):
    a.e(f's_lshr_b32 s{S_T0}, s2, 3')
    if LN == 8: a.e(f's_lshr_b32 s{S_LI}, s{S_T0}, 3', f's_and_b32 s{S_LJ}, s{S_T0}, 7')
    else: a.e(f's_mul_i32 s{S_LI}, s{S_T0}, {65536 // LN + 1}', f's_lshr_b32 s{S_LI}, s{S_LI}, 16', f's_mul_i32 s{S_LJ}, s{S_LI}, {LN}', f's_sub_u32 s{S_LJ}, s{S_T0}, s{S_LJ}')
    a.e(f's_lshl_b32 s{S_PHI}, s{S_LI}, 1', f's_add_u32 s{S_PHI}, s{S_PHI}, s{S_LJ}', f's_and_b32 s{S_PHI}, s{S_PHI}, 7',
        f's_and_b32 s{S_T0}, s2, 7', f's_lshr_b32 s{S_TI}, s{S_T0}, {xshift}', f's_lshl_b32 s{S_TI}, s{S_TI}, 2', f's_add_u32 s{S_TI}, s{S_TI}, s{S_LI}',
        f's_and_b32 s{S_TJ}, s{S_T0}, {(1 << xshift) - 1}')
    if (TJS >> {(8, 1): 0, (7, 2): 1, (8, 2): 2}[(LN, xshift)]) & 1: a.e(f's_lshl_b32 s{S_T0}, s{S_LJ}, {xshift}', f's_add_u32 s{S_TJ}, s{S_TJ}, s{S_T0}', *INITK)
    else: a.e(f's_mul_i32 s{S_TJ}, s{S_TJ}, {LN}', f's_add_u32 s{S_TJ}, s{S_TJ}, s{S_LJ}', *INITK)
TJS = int(env('TJS', '0'))
INITK = [f's_mov_b32 s{S_P}, 7', f's_mov_b32 s{S_W}, -1']

def flag_idx(a, ph, hi, mul, lo):
    a.e(f's_lshl_b32 s{S_FLG}, s{S_VAR}, 10', f's_mul_i32 s{S_T0}, s{hi}, {mul}', f's_add_u32 s{S_FLG}, s{S_FLG}, s{S_T0}', f's_add_u32 s{S_FLG}, s{S_FLG}, s{lo}',
        f's_add_u32 s{S_FLG}, s{S_FLG}, {ph*256}', f's_lshl_b32 s{S_FLG}, s{S_FLG}, {FSH}')

_n = [0]
def lab(p): _n[0] += 1; return f'{p}{_n[0]}'

def publish_pre(a):
    srd(a, SRD_E, P_WS, FL_OFF, 8 * 256 * 256)
    a.e('v_mov_b32 v136, 0', 'v_mov_b32 v137, 1', f's_cmp_eq_u32 s{S_LWV}, 0', f's_cselect_b32 s{SRD_E+2}, s{SRD_E+2}, 0')

def publish(a, vt=None):
    a.e('s_mov_b64 exec, 1', f'buffer_store_dword v137, v136, {S4(SRD_E)}, s{S_FLG} offen {SC}', 's_mov_b64 exec, -1')

def poll_setup(a, sr_, va, ph, dl, base_lines, n, skip=None):
    srd(a, sr_, P_WS, FL_OFF, 8 * 256 * 256)
    a.e(f'v_min_u32 v{va}, {n-1}, v0')
    if skip: a.e(f'v_and_b32 v17, {skip[0]}, v{va}', f'v_cmp_eq_u32 vcc, {skip[1]}, v17', f'v_subbrev_co_u32 v{va}, vcc, 0, v{va}, vcc')
    a.e(*base_lines, f'v_add_u32 v{va}, s{S_T0}, v{va}', f'v_max_i32 v{va}, 0, v{va}', f'v_lshlrev_b32 v{va}, {FSH}, v{va}',
        f's_lshl_b32 s55, s{S_VAR}, {10+FSH}', f's_add_u32 s55, s55, {(dl * 4 + ph) << (8 + FSH)}')

def poll(a, sr_, va, vt, sleep=True, bar=True):
    l = lab('poll')
    ld = lambda v: f'buffer_load_dword v{v}, v{va}, {S4(sr_)}, s55 offen {SC}'
    a.e(f's_mov_b32 s{S_CNT}, 0')
    if ONEP: a.e(f's_and_b32 s{S_T0}, s{S_WAVE}, 3', f's_cmp_lg_u32 s{S_T0}, 0', f's_cbranch_scc1 {l}d')
    if PS0: a.e(f's_sleep {PS0 if sleep else PS0 // 2}')
    if PP <= 1:
        a.loop([f'{l}:'] + ([f's_sleep {PS1}'] if PS1 else []) + [ld(vt), 's_waitcnt vmcnt(0)', f'v_cmp_eq_u32 vcc, 0, v{vt}',
                f's_add_u32 s{S_CNT}, s{S_CNT}, 1', f's_cmp_gt_u32 s{S_CNT}, {SPIN}', f's_cbranch_scc1 {l}d', f's_cbranch_vccnz {l}'])
    else:
        R = [214 + i for i in range(PP)]
        for i in range(PP - 1): a.e(ld(R[i]), f's_sleep {PSL}')
        body = [f'{l}:']
        for i in range(PP):
            body += [ld(R[(i + PP - 1) % PP]), f's_waitcnt vmcnt({PP-1})', f'v_cmp_eq_u32 vcc, 0, v{R[i]}', f's_cbranch_vccz {l}d']
        a.loop(body + [f's_add_u32 s{S_CNT}, s{S_CNT}, 1', f's_cmp_le_u32 s{S_CNT}, {SPIN}', f's_cbranch_scc1 {l}'])
    a.e(f'{l}d:')
    if ONEP and bar: a.e('s_barrier')

def dma_groups(groups, lw_s):
    L = []
    for g in groups:
        L.append(f's_add_u32 m0, s{lw_s}, s{g["sg"]}')
        for (v, imm, st, ex) in g['dmas']:
            srdn, so, fl = (SRD_A, S_OA, LDF) if st == 'A' else (SRD_B, S_OB, '')
            if ex: L.append(f's_mov_b64 exec, {ex}')
            L.append(f'buffer_load_dwordx4 v{v}, {S4(srdn)}, s{so} offen offset:{imm} {fl} lds')
            if ex: L.append('s_mov_b64 exec, -1')
    return L

def issue(NK, NS, stage, base, stepA, stepB, gA, gW, roll=None):
    L = next_k(NK)
    if NK == 56 and LAZY & 2:
        tab = sum(v << (4 * i) for i, v in enumerate(PERM4))
        L = L[:-1] + [f's_lshl_b32 s{S_T0}, s{S_P}, 2', f's_lshr_b32 s{S_T0}, {tab}, s{S_T0}', f's_and_b32 s{S_T0}, s{S_T0}, 7', f's_add_u32 s{S_K}, s{S_K}, s{S_T0}']
    if gA: L += [f's_mul_i32 s{S_OA}, s{S_K}, {stepA}', f's_add_u32 s{S_OA}, s{S_OA}, s{S_BA}']
    if gW: L += [f's_mul_i32 s{S_OB}, s{S_K}, {stepB}', f's_add_u32 s{S_OB}, s{S_OB}, s{S_BB}']
    if roll:
        L += [f's_cmp_eq_u32 s{S_P}, s{S_PHI}', f's_cselect_b32 s{S_T0}, s59, s58', f's_cselect_b32 s{S_T1}, {roll[1]}, 0', f's_add_u32 s59, s59, s{S_T1}',
              f'buffer_load_dword v135, v{roll[0]}, {S4(SRD_B)}, s{S_T0} offen']
    if not (EXP == 'nodma' and NK in (16, 32)): L += dma_groups(gA + gW, S_LW)
    L += [f's_add_u32 s{S_LW}, s{S_LW}, {stage}', f's_cmp_eq_u32 s{S_LW}, {base + NS*stage}', f's_cselect_b32 s{S_LW}, {base}, s{S_LW}']
    return L

def pre_w(a, NK, NS, AH, stage, base, stepB, gW):
    a.e(*INITK, f's_mov_b32 s{S_LW}, {base}')
    for s in range(AH): a.e(*issue(NK, NS, stage, base, 0, stepB, [], gW))

def l_loop(a, NK, NS, AH, stage, base, stepA, stepB, gA, gW, tail=0, hooks=(), early=(), st=False, roll=None, first=()):
    nA = sum(len(g['dmas']) for g in gA); n = nA + sum(len(g['dmas']) for g in gW) + (1 if roll else 0)
    lst = ['s_memrealtime s[58:59]', 's_waitcnt lgkmcnt(0)', 's_mov_b32 m0, s60', 's_add_u32 s60, s60, 1', 'v_writelane_b32 v255, s58, m0'] if st and PROF else []
    if lst: a.e(f's_lshl_b32 s60, s{S_VAR}, 5')
    iss = lambda: lst + issue(NK, NS, stage, base, stepA, stepB, gA, gW, roll)
    t0 = 0
    if gA:
        a.e(*INITK, f's_mov_b32 s{S_LW}, {base}')
        for s in range(AH): a.e(*issue(NK, NS, stage, base, stepA, stepB, gA, []))
        for t in range(AH - 1):
            a.e(f's_waitcnt vmcnt({(AH - 1 - t) * nA + t * n})', 's_barrier', *iss())
        t0 = AH - 1
        if early: a.e(f'{early[0]}:', 's_nop 1')
        for h in early[1:]:
            a.e(f's_waitcnt vmcnt({(AH-1)*n})', 's_barrier', *iss()); h(n); t0 += 1
    if roll and not gA:
        for t in range(AH - 1): a.e(f's_waitcnt vmcnt({(AH - 1 - t) * (n - 1) + t * n})', 's_barrier', *iss())
        t0 = AH - 1
    for h in first:
        a.e(f's_waitcnt vmcnt({(AH-1)*n})', 's_barrier', *iss()); h(n); t0 += 1
    l = lab('ll')
    a.e(f's_mov_b32 s{S_CNT}, {NK - AH - t0 - len(hooks)}')
    a.loop([f'{l}:', f's_waitcnt vmcnt({(AH-1)*n})', 's_barrier'] + iss() + [f's_sub_u32 s{S_CNT}, s{S_CNT}, 1', f's_cmp_lg_u32 s{S_CNT}, 0', f's_cbranch_scc1 {l}'])
    for h in hooks:
        a.e(f's_waitcnt vmcnt({(AH-1)*n})', 's_barrier', *iss()); h(n)
    for j in range(AH - tail):
        a.e(f's_waitcnt vmcnt({(AH-1-j)*n + (8 if hooks else 0)})', 's_barrier')

def c_loop(a, NK, NS, stage, reads, mfmas, addr_regs, late, st0, peel=None, extra0=(), fin=None):
    if EXP == 'noread': reads = [reads[0][:1], reads[1][:1]]
    if EXP == 'rp2': RP = 2
    adv = adv_s(NS, stage)
    advv = [f'v_add_u32 v{r}, s{S_DELTA}, v{r}' for r in addr_regs]
    a.e(f's_mov_b32 s{S_CUR}, 0', f's_mov_b32 s{S_CNT}, {NK - 1 - len(peel or [])}', 's_barrier', *stamp(st0))
    a.e(*reads[0]); a.e(*adv)
    q0 = [Ins(x).wr for x in reads[0]]
    def it(pre=(), post=()):
        q = list(q0)
        L = sched(mfmas[0], bundle(reads[1], advv), q, 1)
        if not late: L.append('s_waitcnt lgkmcnt(0)'); q.clear()
        L += list(pre) + ['s_barrier'] + list(post) + sched(mfmas[1], spread(reads[0], adv), q, 1)
        assert q == q0[len(q0) - len(q):]
        return L
    for p in peel or []: a.e(*it(*p))
    l = lab('cl')
    a.loop([f'{l}:'] + it() + [f's_sub_u32 s{S_CNT}, s{S_CNT}, 1', f's_cmp_lg_u32 s{S_CNT}, 0', f's_cbranch_scc1 {l}'])
    q = list(q0)
    a.e(*sched(mfmas[0], reads[1] + list(extra0), q, 1))
    if fin: a.e('s_waitcnt lgkmcnt(0)', *stamp(st0 + 1)); fin(mfmas[1])
    else: a.e(*sched(mfmas[1], [], q)); a.e('s_waitcnt lgkmcnt(0)', *stamp(st0 + 1))

S_LM, S_B0, S_B1 = 48, 49, 50
def c_direct(a, NK, NS, stage, reads, mf, addr_regs, DR, D, vaddr, init, st0, slots=None):
    R = NK // 8
    advv = lambda src: [f'v_add_u32 v{r}, {src}, v{r}' for r in addr_regs]
    def nk(t):
        p = t % 8
        L = []
        if slots and LAZY & 1:
            p, w = SEQ2[t]
            return (['s_barrier'] if t == 14 else []) + [f's_bitcmp1_b32 s{S_LM}, {p}', f's_cselect_b32 s{S_OA}, s{S_B0 if w else S_B1}, s{S_B1 if w else S_B0}', f's_add_u32 s{S_OA}, s{S_OA}, {p*8192}']
        if p == 0 and t != 0: L += [f's_mov_b32 s{S_B0}, s{S_B1}', f's_add_u32 s{S_B1}, s{S_B1}, 65536', f's_cmp_eq_u32 s{S_B1}, s{S_T2}', f's_cselect_b32 s{S_B1}, s{S_BA}, s{S_B1}']
        return L + [f's_bitcmp1_b32 s{S_LM}, {p}', f's_cselect_b32 s{S_OA}, s{S_B1}, s{S_B0}', f's_add_u32 s{S_OA}, s{S_OA}, {(PERM4[p] if LAZY & 2 and not slots else p)*8192}']
    ld = lambda slot, i: f'buffer_load_dwordx4 {vr(DR+16*slot+4*i,4)}, v{88+i}, {S4(SRD_A)}, s{S_OA} offen {LDF}'
    adv = [] if slots else adv_s(NS, stage)
    vq = []
    for sl in range(D):
        a.e(*nk(sl))
        for i in range(4 if sl < D - 1 else 2):
            a.e(ld(sl, i)); vq.append(Ins(ld(sl, i)).wr)
    init(4 * D - 2)
    a.e(f's_mov_b32 s{S_CUR}, 0', f's_mov_b32 s{S_CNT}, {R - 1}', 's_barrier', *stamp(st0))
    a.e(*reads[0]); a.e(*adv)
    q0 = [Ins(x).wr for x in reads[0]]
    def mix(items, loads, pos):
        items = [list(x) for x in items]
        for l, p in zip(loads, pos): items[p] = items[p] + [l]
        return items
    def step(t, vq, generic):
        slot = t % D
        q = list(q0)
        final = not generic and t == NK - 1
        l0 = [ld((slot - 1) % D, 2), ld((slot - 1) % D, 3)] if generic or t - 1 + D < NK else []
        av = [] if final else advv(f's{S_DELTA}' if not slots else (slots[t + 1] - slots[t]) & 0xffffffff)
        L = sched(mf(0, DR + 16 * slot), mix(bundle(reads[1], av), l0, (2, 6)), q, 1, vq=vq)
        if final: return L + sched(mf(1, DR + 16 * slot + 8), [], q, 1, vq=vq)
        more = generic or t + D < NK
        it = [[r] for r in reads[0]]
        sc = (nk(t + D) if more else []) + adv
        for i, x in enumerate(sc): it[min(i // 2, len(it) - 1)].append(x)
        l1 = [ld(slot, 0), ld(slot, 1)] if more else []
        return L + ([] if slots else ['s_barrier']) + sched(mf(1, DR + 16 * slot + 8), mix(it, l1, (4, 7)), q, 1, vq=vq)
    if slots:
        for t in range(NK): a.e(*step(t, vq, False))
    else:
        v1 = list(vq); l = lab('cd')
        body = [f'{l}:']
        for t in range(8, 16): body += step(t, v1, True)
        assert v1 == vq
        a.loop(body + [f's_sub_u32 s{S_CNT}, s{S_CNT}, 1', f's_cmp_lg_u32 s{S_CNT}, 0', f's_cbranch_scc1 {l}'])
        for t in range(NK - 8, NK): a.e(*step(t, vq, False))
    a.e('s_waitcnt lgkmcnt(0)', *stamp(st0 + 1))

SEQ2 = [(p, 0) for p in (0, 1, 2, 4, 5, 6, 7)] + [(p, 1) for p in (0, 1, 2, 4, 5, 6, 7)] + [(3, 0), (3, 1)]
PERM4 = (0, 1, 4, 5, 6, 7, 2, 3)

def by_first_use(reads, mfmas):
    key = lambda r: min(i for i, m in enumerate(mfmas) if Ins(m).srcab & Ins(r).wr)
    return sorted(reads, key=key)

def chain_order(tiles_):
    return [(t, h ^ (i & 1)) for i, t in enumerate(tiles_) for h in (0, 1)]

def c_full(a, NK, NS, stage, reads, mf, addr_regs, st0):
    adv = adv_s(NS, stage)
    advv = [f'v_add_u32 v{r}, s{S_DELTA}, v{r}' for r in addr_regs]
    rd = [by_first_use(reads(p), mf(p)) for p in range(2)]
    a.e(f's_mov_b32 s{S_CUR}, 0', f's_mov_b32 s{S_CNT}, {(NK - 2) // 2}', *adv, 's_barrier', *stamp(st0))
    a.e(*rd[0], *advv)
    def it(p, last=False):
        q = [Ins(x).wr for x in rd[p]]
        if last: return sched(mf(p), [], q)
        f = bundle(rd[1 - p], advv)
        for i, x in enumerate(adv): f[i // 2].append(x)
        first_adv = min(i for i, b in enumerate(f) if any(y in advv for y in b))
        assert first_adv > 2
        return ['s_barrier'] + sched(mf(p), f, q, 1)
    l = lab('cf')
    a.loop([f'{l}:'] + it(0) + it(1) + [f's_sub_u32 s{S_CNT}, s{S_CNT}, 1', f's_cmp_lg_u32 s{S_CNT}, 0', f's_cbranch_scc1 {l}'])
    a.e(*it(0)); a.e(*it(1, True)); a.e('s_waitcnt lgkmcnt(0)', *stamp(st0 + 1))

def c_direct2(a, NK, NS, stage, reads, mf, addr_regs, DR, D, vaddr, init, st0, slots=None):
    R = NK // 8
    advv = lambda src: [f'v_add_u32 v{r}, {src}, v{r}' for r in addr_regs]
    def nk(t):
        p = t % 8
        L = []
        if p == 0 and t != 0: L += [f's_mov_b32 s{S_B0}, s{S_B1}', f's_add_u32 s{S_B1}, s{S_B1}, 65536', f's_cmp_eq_u32 s{S_B1}, s{S_T2}', f's_cselect_b32 s{S_B1}, s{S_BA}, s{S_B1}']
        return L + [f's_bitcmp1_b32 s{S_LM}, {p}', f's_cselect_b32 s{S_OA}, s{S_B1}, s{S_B0}', f's_add_u32 s{S_OA}, s{S_OA}, {p*8192}']
    ld = lambda slot, i: f'buffer_load_dwordx4 {vr(DR+16*slot+4*i,4)}, v{88+i}, {S4(SRD_A)}, s{S_OA} offen {LDF}'
    LO = (0, 2, 3, 1)
    adv = [] if slots else adv_s(NS, stage)
    rd = [by_first_use(reads(p), mf(p, DR)) for p in range(2)]
    dl = lambda t: f's{S_DELTA}' if not slots else (slots[t + 1] - slots[t]) & 0xffffffff
    vq = []
    for sl in range(D - 1):
        a.e(*nk(sl))
        for i in LO: a.e(ld(sl, i)); vq.append(Ins(ld(sl, i)).wr)
    init(4 * (D - 1))
    a.e(f's_mov_b32 s{S_CUR}, 0', f's_mov_b32 s{S_CNT}, {R - 1}', *adv, 's_barrier', *stamp(st0))
    a.e(*rd[0], *advv(dl(0)))
    def step(t, vq, generic):
        slot = t % D; p = t & 1
        q = [Ins(x).wr for x in rd[p]]
        if not generic and t == NK - 1: return sched(mf(p, DR + 16 * slot), [], q, 1, vq=vq)
        more = generic or t + D - 1 < NK
        f = bundle(rd[1 - p], advv(dl(t + 1)) if generic or t + 2 < NK else [])
        for i, x in enumerate(adv + (nk(t + D - 1) if more else [])): f[i // 2].append(x)
        if more:
            for i, pos in zip(LO, (6, 9, 12, 15)): f[pos].append(ld((slot - 1) % D, i))
        return ([] if slots else ['s_barrier']) + sched(mf(p, DR + 16 * slot), f, q, 1, vq=vq)
    if slots:
        for t in range(NK): a.e(*step(t, vq, False))
    else:
        v1 = list(vq); l = lab('cd')
        body = [f'{l}:']
        for t in range(8, 16): body += step(t, v1, True)
        assert v1 == vq
        a.loop(body + [f's_sub_u32 s{S_CNT}, s{S_CNT}, 1', f's_cmp_lg_u32 s{S_CNT}, 0', f's_cbranch_scc1 {l}'])
        for t in range(NK - 8, NK): a.e(*step(t, vq, False))
    a.e('s_waitcnt lgkmcnt(0)', *stamp(st0 + 1))

FB = (16, 188)
def w_reads2(regs): return lambda p: [f'ds_read_b64_tr_b16 {vr(FB[p]+16*h+4*n+2*q,2)}, v{regs[n]} offset:{h*4096+q*512}' for n in range(4) for h in range(2) for q in range(2)]
SN8 = [(n, x) for n in range(4) for x in ((0, 1) if n % 2 == 0 else (1, 0))]

def lanemap(a, v, hi, lo, add=0, top=0):
    f = lambda x: f's{x[1]}' if isinstance(x, tuple) else str(x)
    a.e(f's_lshl_b32 s{S_T0}, {f(hi)}, 1', f's_add_u32 s{S_T0}, s{S_T0}, {f(lo)}', f's_cmp_eq_u32 s{S_T0}, 3', *([f's_cselect_b32 s{S_T0}, -5, s{S_T0}', f's_add_u32 s{S_T0}, s{S_T0}, 10'] if top else [f's_addc_u32 s{S_T0}, s{S_T0}, 5']), f's_lshl_b32 s{S_T0}, s{S_T0}, 7',
        's_mov_b32 vcc_lo, 0xff000000', 's_mov_b32 vcc_hi, 0', f'v_mov_b32 v{v}, s{S_T0}', f'v_cndmask_b32 v{v}, 0, v{v}, vcc', f'v_lshl_add_u32 v{v}, v0, 4, v{v}')
    if add: a.e(f'v_add_u32 v{v}, {add}, v{v}')

def direct_setup(a, NK, bal=0):
    a.e(f's_lshl_b32 s{S_LM}, 0x303, s{S_PHI}', f's_lshr_b32 s{S_LM}, s{S_LM}, 8', f's_mov_b32 s{S_B0}, s{S_BA}', f's_add_u32 s{S_B1}, s{S_BA}, 65536',
        f's_add_u32 s{S_T2}, s{S_BA}, {NK*8192}', f's_and_b32 s{S_T1}, s{S_WAVE}, 1')
    for b in range(2):
        lanemap(a, 88 + b, ('s', S_T1), b, 2048 * b)
        if bal: lanemap(a, 90 + b, ('s', S_T1), b, 4096 + 2048 * b, top=1)
        else: a.e(f'v_add_u32 v{90+b}, 4096, v{88+b}')

def w_reads(regs):
    return [[f'ds_read_b64_tr_b16 {vr(16+16*h+4*n+2*q,2)}, v{regs[n]} offset:{h*4096+q*512}' for n in range(4) for q in range(2)] for h in range(2)]

def sel(a, d, ptr0, off0, ptr1, off1, nbytes): G.srd_sel(a, d, ptr0, off0, ptr1, off1, nbytes)

XT = 18432; ST1 = XT + 24576; SL = 3 * ST1; QKV = ST1; PITCH = 400; PB = 72 * PITCH
WO_SLOTS = [131072 + 8192 * i for i in range(4)] + [100608 + 8192 * i for i in range(3)] + [8192 * i for i in range(5)] + [QKV + 8192 * i for i in range(4)]
K4_BASE, K4_NS, K4_AH = 98304, 8, 6
K4_SCR = 90112
D = 4; DR = 120
PF1 = int(env('PF1', '0'), 0); CPRIO = int(env('CPRIO', '0'))
NPF = int(env('NPF', '0')); K0W = int(env('K0W', '0')); W1_K0 = K0W * 256 * 64 * 128
REUSE = int(env('REUSE', '0')); WARM0 = int(env('WARM0', '1')); PF2N = int(env('PF2N', '14')); PF2D = int(env('PF2D', '1')); PF2S = int(env('PF2S', '0')); ELATE = int(env('ELATE', '0')); WARME = int(env('WARME', '0')); LAZY = int(env('LAZY', '0')); SS0 = int(env('SS0', '0')); UBAL = int(env('UBAL', '0')); ROLL = int(env('ROLL', '0')); PF5 = int(env('PF5', '3')); PF5E = int(env('PF5E', '0')); PF4 = int(env('PF4', '1')); PFT = int(env('PFT', '0')); PF3 = int(env('PF3', '0')); CODEPF = env('CODEPF', '0') == '1'; PF2 = env('PF2', '1') == '1'; LATEW = env('LATEW', '1') == '1'

def gen_mega(a):
    kn = 'mega'
    a.e('.p2align 8', f'{MEGA}:', 's_cmp_ge_u32 s2, 256', f's_cbranch_scc1 {kn}_end',
        's_load_dwordx16 s[64:79], s[0:1], 0', 's_load_dwordx2 s[80:81], s[0:1], 64', 's_load_dwordx2 s[84:85], s[0:1], 80', f's_load_dwordx2 s[{P_DB}:{P_DB+1}], s[0:1], 72',
        'v_lshrrev_b32 v1, 6, v0', 'v_and_b32 v0, 63, v0', f'v_readfirstlane_b32 s{S_WAVE}, v1', f's_mov_b32 s{S_VAR}, 0')
    if PROF: a.e(f'v_mov_b32 v{PV}, 0', *stamp(-1))
    a.e('v_mov_b32 v130, 0', 'v_mov_b32 v131, 0', 'v_mov_b32 v134, 0', f's_cmp_ge_u32 s{S_WAVE}, 4', f's_cbranch_scc1 L_start')

    ACC1 = 112
    def acc1(m, rt): return ACC1 + 36 * m + 4 * rt
    MK = 86; AK0, AK1, AQ, AV0, AV1, AO = 220, 221, 223, 222, 254, 1
    def attn_static():
        a.e(f's_lshr_b32 s{S_T1}, s{S_WAVE}, 1', f's_and_b32 s{S_T2}, s{S_WAVE}, 1',
            f's_mul_i32 s{S_T0}, s{S_T2}, {PB}', f's_add_u32 s{S_T0}, s{S_T0}, {QKV}', f's_lshl_b32 s{S_G0+5}, s{S_T1}, 4')
        a.e(f'v_add_u32 v76, s{S_G0+5}, v4', 'v_lshlrev_b32 v77, 4, v5', f'v_add_u32 v77, s{S_T0}, v77',
            f'v_mul_u32_u24 v78, {PITCH}, v76', f'v_add_u32 v{AK0}, v78, v77', f'v_add_u32 v{AQ}, {8*PITCH}, v{AK0}', f'v_add_u32 v{AK0}, 128, v{AK0}',
            'v_add_u32 v76, 16, v76', 'v_min_u32 v76, 71, v76', f'v_mul_u32_u24 v78, {PITCH}, v76', f'v_add3_u32 v{AK1}, v78, v77, 64', f'v_add_u32 v{AK1}, 64, v{AK1}')
        a.e('v_lshl_add_u32 v76, v5, 2, v6', f'v_add_u32 v76, s{S_G0+5}, v76', 'v_lshlrev_b32 v77, 4, v7', f'v_add_u32 v77, s{S_T0}, v77', 'v_add_u32 v77, 256, v77',
            f'v_mul_u32_u24 v78, {PITCH}, v76', f'v_add_u32 v{AV0}, v78, v77',
            'v_add_u32 v76, 16, v76', 'v_min_u32 v76, 71, v76', f'v_mul_u32_u24 v78, {PITCH}, v76', f'v_add_u32 v{AV1}, v78, v77')
        a.e(f's_lshl_b32 s{S_G0+6}, s{S_TI}, 2', f's_add_u32 s{S_G0+6}, s{S_G0+6}, s{S_T1}', f's_lshl_b32 s{S_G0+6}, s{S_G0+6}, 17',
            f's_lshl_b32 s{S_G0+7}, s{S_TJ}, 13', f's_add_u32 s{S_G0+6}, s{S_G0+6}, s{S_G0+7}', f's_lshl_b32 s{S_G0+7}, s{S_T2}, 11', f's_add_u32 s{S_G0+6}, s{S_G0+6}, s{S_G0+7}',
            f's_and_b32 s{S_G0+7}, s{S_T1}, 1')
        lanemap(a, AO, ('s', S_G0 + 7), ('s', S_T2))
        a.e(f'v_add_u32 v{AO}, s{S_G0+6}, v{AO}')
        a.e('v_lshlrev_b32 v76, 2, v5', 'v_sub_u32 v76, v76, v4', f's_or_b32 s{S_G0+7}, s{S_TI}, s{S_T1}', f's_cmp_eq_u32 s{S_G0+7}, 0', f's_cselect_b32 s{S_G0+7}, 0, -1')
        for k in range(8):
            a.e(f'v_add_u32 v77, {16 * (k >> 2) + (k & 3) - 1}, v76', f'v_cmp_gt_u32 s[{MK+2*k}:{MK+1+2*k}], 8, v77')
        for k in range(4): a.e(f's_and_b32 s{MK+2*k}, s{MK+2*k}, s{S_G0+7}')
    def k1_setup_c():
        tiles(a, 8, 1)
        lane_fields(a)
        tr128_addr(a, [8], XT, 21, 22)
        a.e(f's_lshl_b32 s{S_T0}, s{S_WAVE}, 5', f'v_xor_b32 v8, s{S_T0}, v8',
            'v_lshrrev_b32 v21, 1, v4', 'v_xor_b32 v21, v21, v5', 'v_lshlrev_b32 v21, 4, v21', 'v_lshlrev_b32 v22, 7, v4', 'v_add_u32 v9, v21, v22', 'v_xor_b32 v10, 64, v9',
            'v_and_b32 v21, 1, v4', f'v_mul_u32_u24 v21, {PB}, v21', 'v_lshrrev_b32 v22, 1, v4', f'v_mul_u32_u24 v22, {PITCH}, v22',
            'v_lshlrev_b32 v23, 3, v5', 'v_add3_u32 v11, v21, v22, v23', f's_add_u32 s{S_T0}, s{S_T0}, {QKV}',
            f'v_add_u32 v11, s{S_T0}, v11', 'v_lshlrev_b32 v12, 3, v4', f'v_add_u32 v12, {SL}, v12')
        for r in range(ACC1, ACC1 + 108, 2): a.e(f'v_mov_b64 {vr(r,2)}, 0')
    if CPRIO: a.e(f's_setprio {CPRIO}')
    k1_setup_c()
    attn_static()
    a.e('s_waitcnt lgkmcnt(0)', f's_mov_b32 s{P_WL}, s{P_WS}', f's_mov_b32 s{P_WL+1}, s{P_WS+1}')
    def slow_strip():
        if not PF5: return
        srd(a, SRD_C, P_WQKV, 0, 1024 * 3072 * 2)
        a.e(f's_lshr_b32 s{S_T0}, s2, 3', f's_lshl_b32 s{S_T0}, s{S_T0}, 1', f's_add_u32 s{S_T0}, s{S_T0}, s{S_WAVE}', f's_sub_u32 s{S_T0}, s{S_T0}, 1', f's_lshl_b32 s{S_T0}, s{S_T0}, 6',
            f'v_add_u32 v16, s{S_T0}, v0', 'v_mul_u32_u24 v17, 21846, v16', 'v_lshrrev_b32 v17, 16, v17', 'v_mul_u32_u24 v18, 3, v17', 'v_sub_u32 v18, v16, v18',
            'v_mul_u32_u24 v17, 6144, v17', 'v_lshl_add_u32 v14, v18, 11, v17', f's_and_b32 s{S_T0}, s2, 1', f's_lshl_b32 s{S_T0}, s{S_T0}, 10', f's_add_u32 s{S_T0}, s{S_T0}, 384',
            f's_sub_u32 s{S_T1}, s{S_WAVE}, 1', f's_cmp_lt_u32 s{S_T1}, 2', f's_cselect_b32 s{SRD_C+2}, s{SRD_C+2}, 0',
            f'buffer_load_dword v15, v14, {S4(SRD_C)}, s{S_T0} offen')
        if ROLL & 4:
            srd(a, SRD_C, P_WO, 0, 1024 * 1024 * 2)
            a.e(f's_lshr_b32 s{S_T1}, s2, 3', f's_lshl_b32 s{S_T1}, s{S_T1}, 5', 'v_and_b32 v16, 31, v0', f'v_add_u32 v16, s{S_T1}, v16', 'v_lshlrev_b32 v14, 11, v16',
                f's_cmp_eq_u32 s{S_WAVE}, 3', f's_cselect_b32 s{SRD_C+2}, s{SRD_C+2}, 0', f'buffer_load_dword v15, v14, {S4(SRD_C)}, s{S_T0} offen')
    if PF5 & 1 and PF5E: slow_strip()
    srd(a, SRD_B, P_WS, 0, 0)
    srd(a, SRD_D, P_WQKV, 0, 1024 * 3072 * 2 * WARM0)
    a.e(f's_cmp_eq_u32 s{S_WAVE}, 3', f's_cselect_b32 s{SRD_D}, s{P_WO}, s{SRD_D}', f's_cselect_b32 s{SRD_D+1}, s{P_WO+1}, s{SRD_D+1}', f's_cselect_b32 s{SRD_D+2}, {2*MB*WARM0}, s{SRD_D+2}',
        f's_cselect_b32 s47, 0, s{S_WAVE}', 's_lshl_b32 s47, s47, 8', 's_add_u32 s47, s47, s2', 's_lshl_b32 s47, s47, 13', 'v_lshlrev_b32 v13, 7, v0', f's_mov_b32 s51, s{S_WAVE}')
    warm = f'buffer_load_dword v15, v13, {S4(SRD_D)}, s47 offen'
    def warm_if(w, l): return [f's_cmp_lg_u32 s51, {w}', f's_cbranch_scc1 {l}', warm, f'{l}:']
    WS = {0: ((), (0,), (1,), (2,), (3,)), 1: ((0,), (1,), (2,), (3,), ()), 2: ((), (0, 1), (2,), (), (3,)), 3: ((0,), (1, 2), (), (), (3,))}[WARME]
    wl = lambda i: [x for w in WS[i] for x in warm_if(w, f'C_wm{w}')]
    a.e(*wl(0), 's_barrier', *wl(1))
    if PF5 & 1 and not PF5E: slow_strip()
    if CODEPF:
        a.e(f's_cmp_lg_u32 s{S_WAVE}, 3', 's_cbranch_scc1 C_nc', 's_getpc_b64 s[44:45]', 'C_pc:', 's_lshr_b32 s46, s2, 3', 's_lshl_b32 s46, s46, 11', 'v_and_b32 v16, 15, v0',
            'v_lshlrev_b32 v16, 7, v16', 'v_add_u32 v16, s46, v16', 'v_min_u32 v16, mega_end-C_pc, v16', 'global_load_dword v15, v16, s[44:45]', 'C_nc:')
    a.e('C_top:'); a.flush_hist()
    reads = [[], []]; mf = [[], []]
    for h in range(2):
        F = 16 + 48 * h
        ra = [[f'ds_read_b64_tr_b16 {vr(F+4*m,2)}, v8 offset:{m*8192+h*4096}', f'ds_read_b64_tr_b16 {vr(F+4*m+2,2)}, v8 offset:{m*8192+h*4096+512}'] for m in range(3)]
        rb = [f'ds_read_b128 {vr(F+12+4*rt,4)}, v{9+h} offset:{rt*2048}' for rt in range(9)]
        reads[h] = ra[0] + [rb[0]] + ra[1] + ra[2] + rb[1:]
        mf[h] = [f'{MF16} {vr(acc1(m,rt),4)}, {vr(F+4*m,4)}, {vr(F+12+4*rt,4)}, {vr(acc1(m,rt),4)}' for rt in range(9) for m in (range(3) if rt % 2 == 0 or not SNAKE else range(2, -1, -1))]
    peel = [([], wl(2)), ([], wl(3)), ([], wl(4))]
    STR, CW = 224, 242
    def fold(rt, o):
        ms = [m for m in range(3) if not (m == 0 and rt == 0)]
        st = vr(STR + 2 * rt, 2); L = []
        for m in ms: L += [f'v_pk_fma_f32 {vr(acc1(m,rt)+e,2)}, {vr(CW+4*m+e,2)}, {st}, {vr(acc1(m,rt)+e,2)} op_sel_hi:[1,0,1] neg_lo:[0,1,0] neg_hi:[0,1,0]' for e in (0, 2)]
        for m in ms: L += [f'v_pk_mul_f32 {vr(acc1(m,rt)+e,2)}, {vr(acc1(m,rt)+e,2)}, {st} op_sel:[0,1] op_sel_hi:[1,1]' for e in (0, 2)]
        for i, m in enumerate(ms):
            d = acc1(m, rt); r = o + 2 * i
            L += [f'v_cvt_pk_bf16_f32 v{r}, v{d}, v{d+1}', f'v_cvt_pk_bf16_f32 v{r+1}, v{d+2}, v{d+3}', f'ds_write_b64 v11, {vr(r,2)} offset:{rt*8*PITCH+m*128}']
        return L
    def fin1(mfs, m0):
        work = [f'v_mov_b32_dpp v{CW+4*m+r}, v{acc1(m,0)+r} row_newbcast:0 row_mask:0xf bank_mask:0xf' for m in range(m0, 3) for r in range(4)]
        ready = [len(work)]
        for rt in range(9): work += fold(rt, 16 + 6 * (rt % 8)); ready.append(len(work))
        done = 0
        for i, m in enumerate(mfs):
            a.e(m)
            rt = (i + m0) // 3 - 1
            lim = ready[rt + 1] if rt >= 0 else 0
            n = min(lim - done, 7)
            if n > 0: a.e(*work[done:done + n]); done += n
        a.e('s_barrier')
        a.e(*work[done:])
    sreads = [f'ds_read_b64 {vr(STR+2*rt,2)}, v12 offset:{rt*128}' for rt in range(9)]
    c_loop(a, 16, 3, ST1, reads, mf, [8, 9, 10], False, 0, peel, sreads, lambda mfs: fin1(mfs, 0))
    if CWREUSE:
        a.e('s_branch attn', 'C_top1:'); a.flush_hist()
        c_loop(a, 16, 3, ST1, reads, [x[1:] for x in mf], [8, 9, 10], False, 0, None, sreads, lambda mfs: fin1(mfs, 1))
    a.e('attn:'); a.flush_hist()
    cs = (32 ** -0.5) * 1.4426950408889634
    a.e(f'v_mov_b32 v18, {f32(cs)}', 'v_mov_b32 v19, 0xff800000')
    srd(a, SRD_D, P_WL, O_OFF, XP)
    a.e('s_mov_b32 s49, 4096')
    a.e('s_waitcnt lgkmcnt(0)', 's_barrier')
    B = [32, 80]
    for hd in range(2):
        b = B[hd]; o = 64 * hd
        a.e(f'ds_read_b128 {vr(b,4)}, v{AQ} offset:{o}', f'ds_read_b128 {vr(b+4,4)}, v{AK0} offset:{o}', f'ds_read_b128 {vr(b+8,4)}, v{AK1} offset:{o}')
    for hd in range(2):
        b = B[hd]; o = 64 * hd
        for dt in range(2): a.e(f'ds_read_b64_tr_b16 {vr(b+12+4*dt,2)}, v{AV0} offset:{o+8*dt}', f'ds_read_b64_tr_b16 {vr(b+14+4*dt,2)}, v{AV1} offset:{o+8*dt}')
    for hd in range(2):
        b = B[hd]
        a.e(f's_waitcnt lgkmcnt({11 - 3*hd})', f'{MF16} {vr(b+20,4)}, {vr(b+4,4)}, {vr(b,4)}, 0', f'{MF16} {vr(b+24,4)}, {vr(b+8,4)}, {vr(b,4)}, 0')
    def both(f):
        for x, y in zip(f(B[0]), f(B[1])): a.e(x, y)
    both(lambda b: [f'v_cndmask_b32 v{b+20+k}, v19, v{b+20+k}, s[{MK+2*k}:{MK+1+2*k}]' for k in range(8)])
    both(lambda b: [f'v_max3_f32 v{b+28}, v{b+20}, v{b+21}, v{b+22}', f'v_max3_f32 v{b+29}, v{b+23}, v{b+24}, v{b+25}',
                    f'v_max3_f32 v{b+28}, v{b+28}, v{b+26}, v{b+27}', f'v_max_f32 v{b+28}, v{b+28}, v{b+29}', f'v_mov_b32 v{b+29}, v{b+28}',
                    f'v_permlane16_swap_b32 v{b+28}, v{b+29}', f'v_max_f32 v{b+28}, v{b+28}, v{b+29}', f'v_mov_b32 v{b+29}, v{b+28}',
                    f'v_permlane32_swap_b32 v{b+28}, v{b+29}', f'v_max_f32 v{b+28}, v{b+28}, v{b+29}', f'v_mul_f32 v{b+28}, v18, v{b+28}'])
    both(lambda b: [f'v_fma_f32 v{b+20+k}, v{b+20+k}, v18, -v{b+28}' for k in range(8)])
    both(lambda b: [f'v_exp_f32 v{b+20+k}, v{b+20+k}' for k in range(8)])
    both(lambda b: [f'v_pk_add_f32 {vr(b+28,2)}, {vr(b+20,2)}, {vr(b+22,2)}', f'v_pk_add_f32 {vr(b+30,2)}, {vr(b+24,2)}, {vr(b+26,2)}',
                    f'v_pk_add_f32 {vr(b+28,2)}, {vr(b+28,2)}, {vr(b+30,2)}', f'v_add_f32 v{b+28}, v{b+28}, v{b+29}', f'v_mov_b32 v{b+29}, v{b+28}',
                    f'v_permlane16_swap_b32 v{b+28}, v{b+29}', f'v_add_f32 v{b+28}, v{b+28}, v{b+29}', f'v_mov_b32 v{b+29}, v{b+28}',
                    f'v_permlane32_swap_b32 v{b+28}, v{b+29}', f'v_add_f32 v{b+28}, v{b+28}, v{b+29}', f'v_rcp_f32 v{b+28}, v{b+28}'])
    both(lambda b: [f'v_pk_mul_f32 {vr(b+20+e,2)}, {vr(b+20+e,2)}, {vr(b+28,2)} op_sel_hi:[1,0]' for e in range(0, 8, 2)])
    both(lambda b: [f'v_cvt_pk_bf16_f32 v{b+32+e}, v{b+20+2*e}, v{b+21+2*e}' for e in range(4)])
    a.e('s_waitcnt lgkmcnt(0)')
    both(lambda b: [f'{MF16} {vr(b+36+4*dt,4)}, {vr(b+12+4*dt,4)}, {vr(b+32,4)}, 0' for dt in range(2)])
    both(lambda b: [f'v_cvt_pk_bf16_f32 v{b+e}, v{b+36+2*e}, v{b+37+2*e}' for e in range(4)])
    for hd in range(2): a.e(f'buffer_store_dwordx4 {vr(B[hd],4)}, v{AO}, {S4(SRD_D)}, {"s49" if hd else "0"} offen {SC}')
    a.e(f's_cmp_ge_u32 s{S_WAVE}, 4', 's_cbranch_scc1 L_k1done')

    ACC = 48; RES = 96
    def acc2(t, b): return ACC + 16 * b + 4 * t
    a.e(f's_lshl_b32 s{S_T0}, s{S_TI}, 2', f's_add_u32 s{S_T0}, s{S_T0}, s{S_WAVE}', f's_lshl_b32 s{S_BA}, s{S_T0}, 17', f's_lshl_b32 s{S_T1}, s{S_T0}, 5', f's_lshl_b32 s52, s{S_T0}, {8+STS}',
        'v_lshlrev_b32 v13, 1, v4', f'v_add_u32 v13, s{S_T1}, v13',
        'v_lshlrev_b32 v12, 11, v13', 'v_lshl_add_u32 v12, v3, 4, v12', f's_lshl_b32 s{S_T0}, s{S_TJ}, 7', f'v_add_u32 v12, s{S_T0}, v12', 'v_lshlrev_b32 v14, 4, v0',
        'v_lshlrev_b32 v87, 8, v13', 'v_lshl_add_u32 v87, v3, 4, v87', f's_lshl_b32 s{S_T0}, s{S_TJ}, 19', f'v_add_u32 v87, s{S_T0}, v87')
    srd(a, SRD_A, P_WL, O_OFF, XP)
    sel(a, SRD_C, P_X, 0, P_WS, X2_OFF, XB)
    a.e(f's_lshl_b32 s{SRD_C+2}, s{SRD_C+2}, s{S_VAR}')
    sel(a, SRD_B, P_WS, 0, P_WS, LSTR, 0); a.e(f's_add_u32 s{SRD_B}, s{SRD_B}, {ST_OFF}', f's_addc_u32 s{SRD_B+1}, s{SRD_B+1}, 0', f's_mov_b32 s{SRD_B+2}, {16*32768}')
    tr128_addr(a, [8, 9, 10, 11], WO_SLOTS[0], 16, 17)
    a.e('v_lshl_add_u32 v16, v4, 1, v2', 'v_lshlrev_b32 v16, 3, v16', 'v_add_u32 v16, s52, v16', f's_mul_i32 s{S_T0}, s{S_TJ}, {STP}', f'v_add_u32 v112, s{S_T0}, v16',
        'v_lshrrev_b32 v17, 5, v0', f'v_mul_u32_u24 v17, {8*STP}, v17', 'v_add_u32 v113, v16, v17')
    a.e(f's_lshl_b32 s{S_T0}, s{S_WAVE}, 12', 'v_lshlrev_b32 v16, 8, v4', 'v_lshl_add_u32 v16, v5, 3, v16', f'v_add_u32 v16, s{S_T0}, v16',
        'v_and_b32 v17, 1, v4', 'v_bfe_u32 v18, v4, 2, 1', 'v_lshl_or_b32 v17, v18, 1, v17', 'v_lshl_add_u32 v114, v17, 5, v16',
        f's_lshl_b32 s{S_G0}, s{S_TJ}, 8', f's_lshl_b32 s{S_T1}, s{S_TI}, 2', f's_add_u32 s{S_G0}, s{S_G0}, s{S_T1}', f's_add_u32 s{S_G0}, s{S_G0}, s{S_WAVE}', f's_lshl_b32 s{S_G0}, s{S_G0}, 11')
    tr128_addr(a, [115], 0, 16, 17)
    a.e(f'v_add_u32 v115, s{S_T0}, v115')
    for t in range(1, 4): a.e(f's_add_u32 s{S_G0+t}, s{S_G0}, {t*131072}')
    for p in range(1, 8): a.e(f'v_add_u32 v{79+p}, {p*STP}, v113')
    direct_setup(a, 16)
    for t in range(2): lanemap(a, 92 + t, ('s', S_T1), t)
    for i in range(4): lanemap(a, 192 + i, i >> 1, i & 1, 2048 * i)
    a.e(f's_lshl_b32 s53, s{S_TJ}, 13', f's_add_u32 s53, s53, s{S_BA}')
    poll_setup(a, SRD_E, 119, 0, 0, [f's_lshl_b32 s{S_T0}, s{S_TI}, 4'], 16, (7, 3) if LAZY & 1 else None)
    a.e('s_waitcnt vmcnt(0)', 's_barrier', *stamp(2))
    a.e(f's_cmp_lg_u32 s{S_VAR}, 0', 's_cbranch_scc1 C_r1')
    for b in range(2):
        for P in range(2): a.e(f'buffer_load_dwordx4 {vr(RES+8*b+4*P,4)}, v12, {S4(SRD_C)}, 0 offen offset:{b*2048+P*64}')
    a.e('s_branch C_r2', 'C_r1:')
    for b in range(2):
        for P in range(2): a.e(f'buffer_load_dwordx4 {vr(RES+8*b+4*P,4)}, v87, {S4(SRD_C)}, 0 offen offset:{b*256+P*64} {LDF}')
    a.e('C_r2:')
    poll(a, SRD_E, 119, 16)
    a.e(*stamp(3))
    def init2(out):
        a.e(f's_waitcnt vmcnt({out})')
        for b in range(2):
            for P in range(2):
                r = RES + 8 * b + 4 * P
                a.e(f'v_permlane16_swap_b32 v{r}, v{r+2}', f'v_permlane16_swap_b32 v{r+1}, v{r+3}')
        for b in range(2):
            for P in range(2):
                r = RES + 8 * b + 4 * P
                a.e(*unpack4(r, r + 1, acc2(2 * P, b)), *unpack4(r + 2, r + 3, acc2(2 * P + 1, b)))
    mf2 = lambda h, bb: [f'{MF16} {vr(acc2(t,b),4)}, {vr(16+16*h+4*t,4)}, {vr(bb+4*b,4)}, {vr(acc2(t,b),4)}' for t in range(4) for b in ((0, 1) if t % 2 == 0 or not SNAKE else (1, 0))]
    if CHAIN & 2:
        mc2 = lambda p, bb: [f'{MF16} {vr(acc2(t,b),4)}, {vr(FB[p]+16*h+4*t,4)}, {vr(bb+8*h+4*b,4)}, {vr(acc2(t,b),4)}' for (t, b), h in chain_order(SN8)]
        c_direct2(a, 16, 0, 0, w_reads2([8, 9, 10, 11]), mc2, [8, 9, 10, 11], DR, D, 14, init2, 4, slots=WO_SLOTS)
    else: c_direct(a, 16, 0, 0, w_reads([8, 9, 10, 11]), mf2, [8, 9, 10, 11], DR, D, 14, init2, 4, slots=WO_SLOTS)
    a.e('s_barrier')
    srd(a, SRD_D, P_WL, X1_OFF, XP)
    srd(a, SRD_E, P_WL, H_OFF, XP)
    for b in range(2):
        d = acc2(0, b); T = 16 + 4 * b
        a.e(f'v_pk_add_f32 {vr(T,2)}, {vr(d,2)}, {vr(d+2,2)}', f'v_pk_mul_f32 {vr(T+2,2)}, {vr(d,2)}, {vr(d,2)}', f'v_pk_fma_f32 {vr(T+2,2)}, {vr(d+2,2)}, {vr(d+2,2)}, {vr(T+2,2)}')
        for e in range(4, 16, 2):
            a.e(f'v_pk_add_f32 {vr(T,2)}, {vr(T,2)}, {vr(d+e,2)}', f'v_pk_fma_f32 {vr(T+2,2)}, {vr(d+e,2)}, {vr(d+e,2)}, {vr(T+2,2)}')
        a.e(f'v_add_f32 v{24+b}, v{T}, v{T+1}', f'v_add_f32 v{26+b}, v{T+2}, v{T+3}')
    a.e('v_permlane16_swap_b32 v24, v25', 'v_permlane16_swap_b32 v26, v27', 'v_add_f32 v28, v24, v25', 'v_add_f32 v29, v26, v27',
        'v_mov_b32 v30, v28', 'v_mov_b32 v31, v29', 'v_permlane32_swap_b32 v28, v30', 'v_permlane32_swap_b32 v29, v31',
        'v_add_f32 v28, v28, v30', 'v_add_f32 v29, v29, v31', 'v_and_b32 v29, 0x7fffffff, v29',
        's_mov_b32 exec_hi, 0', f'buffer_store_dwordx2 v[28:29], v112, {S4(SRD_B)}, 0 offen {SC}', 's_mov_b64 exec, -1')
    for b in range(2):
        for t in range(4):
            r = RES + 8 * b + 2 * t; d = acc2(t, b)
            a.e(f'v_cvt_pk_bf16_f32 v{r}, v{d}, v{d+1}', f'v_cvt_pk_bf16_f32 v{r+1}, v{d+2}, v{d+3}')
    for b in range(2):
        for P in range(2):
            r = RES + 8 * b + 4 * P
            a.e(f'v_permlane16_swap_b32 v{r}, v{r+2}', f'v_permlane16_swap_b32 v{r+1}, v{r+3}')
    for t in range(1, 4): a.e(f'v_xor_b32 v{115+t}, {t << 5}, v115', f'v_xor_b32 v{120+t}, {t << 5}, v114')
    a.e('v_mov_b32 v120, v114', f's_mov_b32 s{S_CNT}, 0')
    if SS0: a.e(f's_sleep {SS0}')
    body = ['k2_poll:'] + [f'buffer_load_dwordx2 {vr(32+2*p,2)}, v{113 if p == 0 else 79+p}, {S4(SRD_B)}, 0 offen {SC}' for p in range(8)]
    body += ['s_waitcnt vmcnt(0)', 'v_min3_i32 v16, v33, v35, v37', 'v_min3_i32 v17, v39, v41, v43', 'v_min3_i32 v16, v16, v45, v47',
             'v_min_i32 v16, v16, v17', 'v_cmp_gt_i32 vcc, 0, v16', f's_add_u32 s{S_CNT}, s{S_CNT}, 1', f's_cmp_gt_u32 s{S_CNT}, {SPIN}',
             's_cbranch_scc1 k2_pdone', 's_cbranch_vccnz k2_poll']
    a.loop(body)
    a.e('k2_pdone:', *stamp(6))
    for b in range(2):
        for P in range(2): a.e(f'buffer_store_dwordx4 {vr(RES+8*b+4*P,4)}, v{192+2*P+b}, {S4(SRD_D)}, s53 offen {SC}')
    a.e('v_pk_add_f32 v[32:33], v[32:33], v[34:35]', 'v_pk_add_f32 v[36:37], v[36:37], v[38:39]', 'v_pk_add_f32 v[40:41], v[40:41], v[42:43]',
        'v_pk_add_f32 v[44:45], v[44:45], v[46:47]', 'v_pk_add_f32 v[32:33], v[32:33], v[36:37]', 'v_pk_add_f32 v[40:41], v[40:41], v[44:45]',
        'v_pk_add_f32 v[32:33], v[32:33], v[40:41]', 'v_mov_b32 v34, v32', 'v_mov_b32 v35, v33',
        'v_permlane32_swap_b32 v32, v34', 'v_permlane32_swap_b32 v33, v35', 'v_add_f32 v32, v32, v34', 'v_add_f32 v33, v33, v35')
    stats_finish(a, 32, 33, 36, True)
    a.e('v_mov_b32 v34, v32', 'v_mov_b32 v35, v33', 'v_permlane16_swap_b32 v32, v34', 'v_permlane16_swap_b32 v33, v35')
    for b in range(2):
        st = vr(32 + 2 * b, 2); d = acc2(0, b); o = 160 + 8 * b
        for e in range(0, 16, 2): a.e(f'v_pk_add_f32 {vr(d+e,2)}, {vr(d+e,2)}, {st} op_sel_hi:[1,0] neg_lo:[0,1] neg_hi:[0,1]')
        for e in range(0, 16, 2): a.e(f'v_pk_mul_f32 {vr(d+e,2)}, {vr(d+e,2)}, {st} op_sel:[0,1] op_sel_hi:[1,1]')
        for t in range(4):
            a.e(f'v_cvt_pk_bf16_f32 v{o+2*t}, v{d+4*t}, v{d+4*t+1}', f'v_cvt_pk_bf16_f32 v{o+2*t+1}, v{d+4*t+2}, v{d+4*t+3}',
                f'ds_write_b64 v{120+t}, {vr(o+2*t,2)} offset:{128*b}')
    a.e('s_waitcnt lgkmcnt(0)')
    for t in range(4): a.e(f'ds_read_b64_tr_b16 {vr(176+4*t,2)}, v{115+t}', f'ds_read_b64_tr_b16 {vr(178+4*t,2)}, v{115+t} offset:512')
    for t in range(4): a.e(f's_waitcnt lgkmcnt({6-2*t})', f'buffer_store_dwordx4 {vr(176+4*t,4)}, v{92+(t&1)}, {S4(SRD_E)}, s{S_G0+t} offen {SC}')
    a.e('s_cmp_ge_u32 s2, 224', 's_cbranch_scc1 C_k3skip')

    ACC3 = 80
    def acc3(tf, td): return ACC3 + 16 * td + 4 * tf
    tiles(a, 7, 2)
    a.e(f's_and_b32 s{S_G0+2}, s{S_WAVE}, 1', f's_lshr_b32 s{S_T2}, s{S_WAVE}, 1',
        f's_lshl_b32 s{S_T0}, s{S_TJ}, 8', f's_lshl_b32 s{S_G0}, s{S_G0+2}, 7', f's_add_u32 s{S_T0}, s{S_T0}, s{S_G0}',
        'v_lshlrev_b32 v16, 3, v5', f'v_add_u32 v16, s{S_T0}, v16')
    srd(a, SRD_C, P_B1, 0, 3584 * 2)
    a.e('v_mov_b32 v155, v16')
    srd(a, SRD_D, P_WL, U_OFF, UP)
    a.e('v_lshl_add_u32 v17, v5, 3, v6', 'v_lshlrev_b32 v17, 8, v17', 'v_lshl_add_u32 v17, v7, 3, v17', 'v_lshl_or_b32 v18, v2, 2, v6', 'v_lshl_add_u32 v17, v18, 5, v17',
        f's_lshl_b32 s{S_T0}, s{S_G0+2}, 7', f's_add_u32 s{S_T0}, s{S_T0}, 16384', f'v_xor_b32 v18, s{S_T0}, v17', f's_lshl_b32 s{S_T0}, s{S_T2}, 13', f'v_add_u32 v12, s{S_T0}, v14')
    for t in range(4): a.e(f'v_xor_b32 v{8+t}, {t << 5}, v18')
    a.e('v_bfe_u32 v19, v4, 2, 1', 'v_lshlrev_b32 v17, 11, v19', 'v_lshl_add_u32 v17, v3, 8, v17', 'v_lshrrev_b32 v18, 3, v4', 'v_lshl_add_u32 v17, v18, 6, v17',
        'v_lshl_add_u32 v152, v7, 4, v17', 'v_add_u32 v153, 128, v152', 'v_cmp_eq_u32 vcc, 1, v3', 'v_lshlrev_b32 v17, 7, v19', 'v_add_u32 v18, 640, v17', 'v_lshlrev_b32 v17, 8, v19', 'v_add_u32 v17, 896, v17',
        'v_cndmask_b32 v18, 0, v18, vcc', 'v_cndmask_b32 v17, 0, v17, vcc', 'v_add_u32 v154, v153, v17', 'v_add_u32 v153, v153, v18',
        f's_lshl_b32 s{S_T0}, s{S_TI}, 1', f's_add_u32 s{S_T0}, s{S_T0}, s{S_T2}', f's_mul_i32 s{S_T0}, s{S_T0}, 224',
        f's_lshl_b32 s{S_G0}, s{S_TJ}, 2', f's_add_u32 s{S_T0}, s{S_T0}, s{S_G0}', f's_lshl_b32 s{S_G0}, s{S_G0+2}, 1', f's_add_u32 s{S_T0}, s{S_T0}, s{S_G0}',
        f's_lshl_b32 s{S_G0}, s{S_T0}, 12', f's_add_u32 s{S_G0+1}, s{S_G0}, {112*4096}', f's_add_u32 s{S_G0+2}, s{S_G0}, 4096', f's_add_u32 s{S_G0+3}, s{S_G0+1}, 4096')
    a.e('s_waitcnt vmcnt(0)', 's_barrier', *stamp(7))
    for tf in range(4): a.e(f'buffer_load_dwordx2 {vr(144+2*tf,2)}, v155, {S4(SRD_C)}, 0 offen offset:{32*tf}')
    a.e('s_waitcnt vmcnt(0)')
    for tf in range(4):
        a.e(*unpack4(144 + 2 * tf, 145 + 2 * tf, acc3(tf, 0)))
        for td in range(1, 4): a.e(f'v_mov_b64 {vr(acc3(tf,td),2)}, {vr(acc3(tf,0),2)}', f'v_mov_b64 {vr(acc3(tf,td)+2,2)}, {vr(acc3(tf,0)+2,2)}')
    reads = [[], []]; mf = [[], []]
    for h in range(2):
        F = 16 + 32 * h
        rd = lambda dst, av: [f'ds_read_b64_tr_b16 {vr(dst,2)}, v{av} offset:{h*8192}', f'ds_read_b64_tr_b16 {vr(dst+2,2)}, v{av} offset:{h*8192+1024}']
        ra = [rd(F + 4 * t, 8 + t) for t in range(4)]
        rb = [[f'ds_read_b128 {vr(F+16+4*t,4)}, v12 offset:{(2*t+h)*1024}'] for t in range(4)]
        if SNAKE:
            reads[h] = ra[0] + rb[0] + rb[1] + ra[1] + ra[2] + rb[2] + rb[3] + ra[3]
            order = [(0,0),(0,1),(1,1),(1,0),(2,0),(2,1),(2,2),(1,2),(0,2),(0,3),(1,3),(2,3),(3,3),(3,2),(3,1),(3,0)]
        else:
            for t in range(4): reads[h] += ra[t] + rb[t]
            order = sorted([(tf, td) for tf in range(4) for td in range(4)], key=lambda x: (max(x), x))
        for tf, td in order:
            mf[h].append(f'{MF16} {vr(acc3(tf,td),4)}, {vr(F+4*tf,4)}, {vr(F+16+4*td,4)}, {vr(acc3(tf,td),4)}')
    if ONEP: a.e('s_barrier')
    if CHAIN & 1:
        F3 = (16, 156)
        r3 = lambda p: [f'ds_read_b64_tr_b16 {vr(F3[p]+32*h+4*t+2*q,2)}, v{8+t} offset:{h*8192+q*1024}' for t in range(4) for h in range(2) for q in range(2)] + \
                       [f'ds_read_b128 {vr(F3[p]+32*h+16+4*t,4)}, v12 offset:{(2*t+h)*1024}' for t in range(4) for h in range(2)]
        m3 = lambda p: [f'{MF16} {vr(acc3(tf,td),4)}, {vr(F3[p]+32*h+4*tf,4)}, {vr(F3[p]+32*h+16+4*td,4)}, {vr(acc3(tf,td),4)}' for (tf, td), h in chain_order(order)]
        c_full(a, 32, 5, 32768, r3, m3, list(range(8, 13)), 8)
    else: c_loop(a, 32, 5, 32768, reads, mf, list(range(8, 13)), True, 8)
    c1 = -2.0 * 0.7978845608028654 * 1.4426950408889634
    a.e(f'v_mov_b32 v16, {f32(c1)}', f'v_mov_b32 v17, {f32(c1 * 0.044715)}')
    if UBAL:
        a.e('v_bfe_u32 v19, v4, 2, 1', 'v_cmp_eq_u32 vcc, 1, v3', 'v_lshlrev_b32 v18, 7, v19', 'v_add_u32 v18, 1280, v18', 'v_mul_u32_u24 v19, 896, v19', 'v_sub_u32 v19, 1536, v19',
            'v_cndmask_b32 v18, 0, v18, vcc', 'v_cndmask_b32 v19, 0, v19, vcc', 'v_add3_u32 v144, v152, v18, 64', 'v_add3_u32 v145, v152, v19, 64', 'v_add_u32 v144, 64, v144', 'v_add_u32 v145, 64, v145')
    k = 0
    for td in range(4):
        for P in range(2):
            d = acc3(2 * P, td); T = 24 + 16 * (k & 1); k += 1
            O = 160 + 4 * k
            for e in range(0, 8, 2): a.e(f'v_pk_mul_f32 {vr(T+e,2)}, {vr(d+e,2)}, {vr(d+e,2)}')
            for e in range(0, 8, 2): a.e(f'v_pk_fma_f32 {vr(T+e,2)}, {vr(T+e,2)}, v[16:17], v[16:17] op_sel:[0,1,0] op_sel_hi:[1,1,0]')
            for e in range(0, 8, 2): a.e(f'v_pk_mul_f32 {vr(T+e,2)}, {vr(T+e,2)}, {vr(d+e,2)}')
            for e in range(8): a.e(f'v_exp_f32 v{T+e}, v{T+e}')
            for e in range(0, 8, 2): a.e(f'v_pk_add_f32 {vr(T+e,2)}, {vr(T+e,2)}, 1.0 op_sel_hi:[1,0]')
            for e in range(8): a.e(f'v_rcp_f32 v{T+e}, v{T+e}')
            for e in range(0, 8, 2): a.e(f'v_pk_mul_f32 {vr(T+e,2)}, {vr(T+e,2)}, {vr(d+e,2)}')
            for e in range(4): a.e(f'v_cvt_pk_bf16_f32 v{O+e}, v{T+2*e}, v{T+2*e+1}')
            a.e(f'v_permlane16_swap_b32 v{O}, v{O+2}', f'v_permlane16_swap_b32 v{O+1}, v{O+3}')
            a.e(f'buffer_store_dwordx4 {vr(O,4)}, v{((152, 144, 152, 145) if UBAL and P else (152, 153, 152, 154))[td]}, {S4(SRD_D)}, s{S_G0+(td>>1)+2*P} offen {SC}')
    a.e('C_k3skip:'); a.flush_hist()

    def acc4(aa, n): return ACC + 8 * n + 4 * aa
    tiles(a, 8, 2)
    a.e(f's_lshl_b32 s{S_T0}, s{S_TJ}, 6', f'v_add_u32 v13, s{S_T0}, v4', 'v_lshlrev_b32 v13, 1, v13',
        f's_lshl_b32 s{S_T1}, s{S_WAVE}, 4', f's_add_u32 s{S_T0}, s{S_T0}, s{S_T1}', f'v_add_u32 v16, s{S_T0}, v5',
        'v_lshlrev_b32 v12, 11, v16', 'v_lshl_add_u32 v12, v4, 4, v12', f's_lshl_b32 s{S_T0}, s{S_TI}, 8', f'v_add_u32 v12, s{S_T0}, v12',
        'v_lshlrev_b32 v186, 8, v16', 'v_and_b32 v17, 7, v0', 'v_lshl_add_u32 v186, v17, 4, v186', 'v_lshrrev_b32 v17, 3, v4', 'v_lshl_add_u32 v186, v17, 19, v186',
        f's_lshl_b32 s{S_T0}, s{S_TI}, 20', f'v_add_u32 v186, s{S_T0}, v186',
        'v_mul_u32_u24 v189, 272, v4', 'v_lshl_add_u32 v189, v5, 4, v189', f's_lshl_b32 s{S_T0}, s{S_WAVE}, 6', f's_add_u32 s{S_T0}, s{S_T0}, 1024', f'v_add_u32 v189, s{S_T0}, v189',
        f'v_add_u32 v16, s{S_T1}, v5', 'v_mul_u32_u24 v190, 272, v16', 'v_lshl_add_u32 v190, v4, 4, v190', 'v_add_u32 v190, 1024, v190',
        f's_lshl_b32 s{S_BA}, s{S_TI}, 2', f's_add_u32 s{S_BA}, s{S_BA}, s{S_WAVE}', f's_mul_i32 s{S_BA}, s{S_BA}, {56*8192}',
        's_mov_b32 s45, 8192', 's_mov_b32 s46, 16384', 's_mov_b32 s47, 24576')
    so = ['0', 's45', 's46', 's47']
    sb = ['0', 's52', 's53', 's54']
    a.e('v_lshrrev_b32 v16, 1, v4', 'v_lshlrev_b32 v16, 4, v16', 'v_lshl_add_u32 v16, v3, 8, v16', 'v_and_b32 v17, 1, v4', 'v_lshl_add_u32 v187, v17, 11, v16',
        f's_and_b32 s{S_T0}, s{S_WAVE}, 1', f's_lshl_b32 s{S_T0}, s{S_T0}, 1', f'v_add_u32 v17, s{S_T0}, v17', 'v_cmp_eq_u32 vcc, 3, v17', 'v_addc_co_u32 v17, vcc, 5, v17, vcc',
        'v_lshlrev_b32 v17, 7, v17', 'v_cmp_eq_u32 vcc, 1, v3', 'v_add_u32 v188, 128, v187', 'v_cndmask_b32 v17, 0, v17, vcc', 'v_add_u32 v188, v188, v17',
        f's_lshl_b32 s44, s{S_TJ}, 6', f's_lshl_b32 s{S_T0}, s{S_TI}, 2', f's_add_u32 s44, s44, s{S_T0}', f's_add_u32 s44, s44, s{S_WAVE}', 's_lshl_b32 s44, s44, 12', 's_add_u32 s51, s44, 131072')
    srd(a, SRD_A, P_WL, U_OFF, UP)
    srd(a, SRD_C, P_WL, X1_OFF, XP)
    srd(a, SRD_B, P_B2, 0, 4096)
    tr128_addr(a, [8, 9, 10, 11], K4_BASE, 16, 17)
    direct_setup(a, 56, UBAL)
    a.e('v_lshlrev_b32 v184, 3, v0', f's_lshl_b32 s{S_T0}, s{S_WAVE}, 9', f's_add_u32 s{S_T0}, s{S_T0}, {K4_SCR}', f'v_add_u32 v185, s{S_T0}, v184')
    poll_setup(a, SRD_E, 15, 2, 0, [f's_lshl_b32 s{S_T0}, s{S_TI}, 5'], 28, (3, 1) if LAZY & 2 else None)
    a.e('s_waitcnt vmcnt(0)', 's_barrier', *stamp(10))
    for n in range(4): a.e(f'buffer_load_ushort v{RES+16+2*n}, v13, {S4(SRD_B)}, 0 offen offset:{32*n}')
    if PF2:
        a.e('s_cmp_lt_u32 s2, 224', 's_cbranch_scc1 C_nopf', f's_cmp_lg_u32 s{S_VAR}, 0', 's_cbranch_scc1 C_nopf')
        srd(a, SRD_D, P_W2, 0, 3584 * 2048 * 2)
        a.e(f's_sub_u32 s{S_T0}, s2, 224', f's_lshl_b32 s{S_T0}, s{S_T0}, 2', f's_add_u32 s{S_T0}, s{S_T0}, s{S_WAVE}', f's_lshl_b32 s{S_T0}, s{S_T0}, 13', 'v_lshlrev_b32 v17, 7, v0')
        for j in range(PF2D): a.e('s_sleep 127')
        for j in range(PF2N):
            if PF2S: a.e(f's_sleep {PF2S}')
            a.e(f'buffer_load_dword v18, v17, {S4(SRD_D)}, s{S_T0} offen', f's_add_u32 s{S_T0}, s{S_T0}, {128*8192}', *(['s_waitcnt vmcnt(1)'] if j else []))
        a.e('C_nopf:')
    poll(a, SRD_E, 15, 16)
    a.e(*stamp(11))
    for n in range(4): a.e(f'buffer_load_dwordx4 {vr(RES+4*n,4)}, v{187+(n&1)}, {S4(SRD_C)}, s{51 if n >> 1 else 44} offen {LDF}')
    sel(a, SRD_E, P_WS, X2_OFF, P_OUT, 0, XP)
    a.e(f's_lshr_b32 s{SRD_E+2}, s{SRD_E+2}, s{S_VAR}')
    srd(a, SRD_B, P_WS, LSTR + RS_OFF, 8 * 32768)
    def init4(out):
        a.e(f's_waitcnt vmcnt({out})')
        for n in range(4):
            a.e(f'v_lshlrev_b32 v{RES+16+2*n}, 16, v{RES+16+2*n}')
            a.e(*unpack4(RES + 4 * n, RES + 4 * n + 1, acc4(0, n)), *unpack4(RES + 4 * n + 2, RES + 4 * n + 3, acc4(1, n)))
            for e in range(0, 8, 2): a.e(f'v_pk_add_f32 {vr(acc4(0,n)+e,2)}, {vr(acc4(0,n)+e,2)}, {vr(RES+16+2*n,2)} op_sel_hi:[1,0]')
    mf4 = lambda h, b: [f'{MF16} {vr(acc4(aa,n),4)}, {vr(b+4*aa,4)}, {vr(16+16*h+4*n,4)}, {vr(acc4(aa,n),4)}' for n in range(4) for aa in ((0, 1) if n % 2 == 0 or not SNAKE else (1, 0))]
    if CHAIN & 4:
        mc4 = lambda p, bb: [f'{MF16} {vr(acc4(aa,n),4)}, {vr(bb+8*h+4*aa,4)}, {vr(FB[p]+16*h+4*n,4)}, {vr(acc4(aa,n),4)}' for (n, aa), h in chain_order(SN8)]
        c_direct2(a, 56, K4_NS, 8192, w_reads2([8, 9, 10, 11]), mc4, [8, 9, 10, 11], DR, D, 14, init4, 12)
    else: c_direct(a, 56, K4_NS, 8192, w_reads([8, 9, 10, 11]), mf4, [8, 9, 10, 11], DR, D, 14, init4, 12)
    def st4a():
        for n in range(4):
            for e in range(4): a.e(f'v_cvt_pk_bf16_f32 v{RES+4*n+e}, v{acc4(0,n)+2*e}, v{acc4(0,n)+2*e+1}')
            a.e(f'ds_write_b128 v189, {vr(RES+4*n,4)} offset:{n*16*272}')
    def st4b(blk):
        for q in range(4): a.e(f'ds_read_b128 {vr(RES+4*q,4)}, v190 offset:{q*4*272}')
        for q in range(4):
            a.e(f's_waitcnt lgkmcnt({3-q})', f'buffer_store_dwordx4 {vr(RES+4*q,4)}, v186, {S4(SRD_E)}, 0 offen offset:{1024*q} {SC}' if blk else
                f'buffer_store_dwordx4 {vr(RES+4*q,4)}, v12, {S4(SRD_E)}, {so[q]} offen')
    a.e(f's_cmp_eq_u32 s{S_VAR}, 0', 's_cbranch_scc1 C_st')
    st4a()
    a.e('s_waitcnt lgkmcnt(0)', 's_barrier')
    st4b(False)
    a.e('s_branch C_end', 'C_st:', 's_nop 7')
    for n in range(4):
        d = acc4(0, n); T = 16 + 4 * n
        a.e(f'v_pk_add_f32 {vr(T,2)}, {vr(d,2)}, {vr(d+2,2)}', f'v_pk_mul_f32 {vr(T+2,2)}, {vr(d,2)}, {vr(d,2)}', f'v_pk_fma_f32 {vr(T+2,2)}, {vr(d+2,2)}, {vr(d+2,2)}, {vr(T+2,2)}')
        for e in (4, 6): a.e(f'v_pk_add_f32 {vr(T,2)}, {vr(T,2)}, {vr(d+e,2)}', f'v_pk_fma_f32 {vr(T+2,2)}, {vr(d+e,2)}, {vr(d+e,2)}, {vr(T+2,2)}')
        a.e(f'v_add_f32 v{32+n}, v{T}, v{T+1}', f'v_add_f32 v{36+n}, v{T+2}, v{T+3}')
    for b in (32, 36): a.e(f'v_permlane16_swap_b32 v{b}, v{b+1}', f'v_permlane16_swap_b32 v{b+2}, v{b+3}')
    for b in (32, 36): a.e(f'v_add_f32 v{b}, v{b}, v{b+1}', f'v_add_f32 v{b+2}, v{b+2}, v{b+3}')
    a.e('v_permlane32_swap_b32 v32, v34', 'v_permlane32_swap_b32 v36, v38', 'v_add_f32 v40, v32, v34', 'v_add_f32 v41, v36, v38',
        'ds_write_b64 v185, v[40:41]', f's_lshl_b32 s{S_T0}, s{S_TI}, 15', f's_lshl_b32 s{S_T1}, s{S_TJ}, 10', f's_add_u32 s{S_T0}, s{S_T0}, s{S_T1}', f's_add_u32 s{S_T0}, s{S_T0}, 512',
        )
    st4a()
    a.e('s_waitcnt lgkmcnt(0)', 's_barrier',
        f's_cmp_lg_u32 s{S_WAVE}, 0', 's_cbranch_scc1 C_nost',
        'ds_read_b64 v[44:45], v185 offset:512', 'ds_read_b64 v[46:47], v185 offset:1024', 'ds_read_b64 v[18:19], v185 offset:1536', 's_waitcnt lgkmcnt(0)',
        'v_pk_add_f32 v[40:41], v[40:41], v[44:45]', 'v_pk_add_f32 v[46:47], v[46:47], v[18:19]', 'v_pk_add_f32 v[40:41], v[40:41], v[46:47]',
        f'buffer_store_dwordx2 v[40:41], v184, {S4(SRD_B)}, s{S_T0} offen {SC}', 'C_nost:', 's_nop 1')
    st4b(True)
    k1_setup_c()
    a.e('s_waitcnt vmcnt(0)', 's_barrier', *stamp(14))
    if PF5 & 2: slow_strip()
    if ONEP: a.e('s_barrier')
    a.e(f's_mov_b32 s{S_VAR}, 1', 's_mov_b32 s51, 9', f's_add_u32 s{P_WL}, s{P_WS}, {0 if REUSE else LSTR}', f's_addc_u32 s{P_WL+1}, s{P_WS+1}, 0', 's_branch C_top1' if CWREUSE else 's_branch C_top')
    a.e('C_end:'); dump(a)
    a.e('s_endpgm')

    gx = dict(sg=S_G0, dmas=[(8 + i, 1024 * i, 'A', None) for i in range(4)])
    gw = [dict(sg=S_G0 + 2 + m, dmas=[(13 + 2 * m, 0, 'B', None), (14 + 2 * m, 1024, 'B', None)]) for m in range(3)]
    gh = dict(sg=S_G0 + 1, dmas=[(12, 0, 'A', 's[52:53]')])
    def k1_setup_l(layer):
        tiles(a, 8, 1)
        a.e(f's_mov_b32 s{S_T2}, s{S_LWV}')
        dma_w128(a, [13, 14], 6144, swz128(a), 16, 2, 3, 4)
        a.e('v_add_u32 v15, 2048, v13', 'v_add_u32 v16, 2048, v14', 'v_add_u32 v17, 4096, v13', 'v_add_u32 v18, 4096, v14',
            f's_lshl_b32 s{S_G0+2}, s{S_T2}, 11', f's_add_u32 s{S_G0+2}, s{S_G0+2}, {XT}', f's_add_u32 s{S_G0+3}, s{S_G0+2}, 8192', f's_add_u32 s{S_G0+4}, s{S_G0+2}, 16384',
            f's_lshl_b32 s{S_BB}, s{S_TJ}, 7')
        if layer == 1:
            srd(a, SRD_B, P_WQKV, 0, 1024 * 3072 * 2)
            pre_w(a, 16, 3, 2, ST1, 0, 64 * 6144, gw)
        def xaddr(v, comp):
            a.e('v_lshrrev_b32 v2, 3, v0', f'v_add_u32 v2, s{S_T0}, v2', 'v_bfe_u32 v3, v2, 1, 3', 'v_and_b32 v4, 7, v0', 'v_xor_b32 v3, v3, v4', 'v_lshlrev_b32 v3, 4, v3',
                f'v_add_u32 v2, s{S_T1}, v2', 'v_max_i32 v2, 0, v2', f'v_lshlrev_b32 v2, {8 if layer else 11}, v2', f'v_add_u32 v{v}, v2, v3')
            if comp: a.e(f'v_subrev_u32 v{v}, {comp}, v{v}')
        a.e(f's_lshl_b32 s{S_T1}, s{S_TI}, 7', f's_sub_u32 s{S_T1}, s{S_T1}, 16')
        for i in range(2):
            a.e(f's_lshl_b32 s{S_T0}, s{S_T2}, 5', f's_add_u32 s{S_T0}, s{S_T0}, {16+8*i}')
            xaddr(8 + i, 1024 * i)
            a.e(f'v_add_u32 v{10+i}, {16*(256 if layer else 2048)-2048}, v{8+i}')
        a.e(f's_lshl_b32 s{S_T0}, s{S_T2}, 3'); xaddr(12, 0)
        a.e(f's_lshl_b32 s{S_G0}, s{S_T2}, 12', f's_add_u32 s{S_G0}, s{S_G0}, 2048', f's_lshl_b32 s{S_G0+1}, s{S_T2}, 10', f's_mov_b32 s{S_BA}, 0', f's_mov_b32 s54, {524288 if layer else 128}',
            f's_cmp_eq_u32 s{S_T2}, 0', 's_cselect_b32 s52, 0xffffff00, -1', 's_mov_b32 s53, -1')
        a.e('v_mov_b32 v20, 0x3f803f80', 'v_mov_b32 v21, v20', 'v_mov_b32 v22, v20', 'v_mov_b32 v23, v20', 'v_lshlrev_b32 v24, 4, v0', f'v_add_u32 v25, {2*ST1}, v24',
            's_mov_b64 exec, 0xff', 'ds_write_b128 v24, v[20:23]', f'ds_write_b128 v24, v[20:23] offset:{ST1}', 'ds_write_b128 v25, v[20:23]', 's_mov_b64 exec, -1')
        a.e(f's_lshl_b32 s{S_T0}, s{S_T2}, 6', f'v_add_u32 v26, s{S_T0}, v0', 'v_min_u32 v26, 143, v26', f'v_add_u32 v27, s{S_T1}, v26', 'v_max_i32 v27, 0, v27',
            'v_lshrrev_b32 v2, 6, v27', 'v_and_b32 v27, 63, v27', 'v_lshlrev_b32 v27, 3, v27', 'v_lshl_add_u32 v27, v2, 10, v27', 'v_add_u32 v27, 512, v27', 'v_lshlrev_b32 v26, 3, v26', f'v_add_u32 v26, {SL}, v26')
        if layer == 1:
            srd(a, SRD_A, P_WS, X2_OFF, XP)
            srd(a, SRD_D, P_WS, LSTR + RS_OFF, 8 * 32768)
            a.e('s_waitcnt lgkmcnt(0)')
    a.e('L_start:'); a.flush_hist()
    a.e(f's_sub_u32 s{S_LWV}, s{S_WAVE}, 4', 'v_and_b32 v134, 3, v0', 'v_lshlrev_b32 v134, 6, v134')
    k1_setup_l(0)
    a.e(f's_lshl_b32 s{S_T0}, s2, 3', f's_lshl_b32 s{S_T1}, s{S_LWV}, 1', f's_add_u32 s{S_T0}, s{S_T0}, s{S_T1}',
        'v_lshrrev_b32 v72, 5, v0', f'v_add_u32 v72, s{S_T0}, v72', 'v_lshlrev_b32 v46, 11, v72', 'v_and_b32 v2, 31, v0', 'v_lshl_add_u32 v46, v2, 4, v46',
        'v_lshrrev_b32 v2, 6, v72', 'v_and_b32 v72, 63, v72', 'v_lshlrev_b32 v72, 3, v72', 'v_lshl_add_u32 v72, v2, 10, v72', f'v_add_u32 v72, {RS_OFF + 512}, v72',
        f's_cmp_eq_u32 s{S_LWV}, 0', 's_cselect_b32 s58, 0, -1', 'v_mov_b32 v64, s58', 'v_mov_b32 v65, s58', 'v_mov_b32 v66, s58', 'v_mov_b32 v67, s58',
        'v_lshrrev_b32 v2, 3, v0', f'v_lshlrev_b32 v2, {8+FSH}, v2', 'v_and_b32 v3, 7, v0', 'v_lshl_add_u32 v2, v3, 4, v2', 'v_lshrrev_b32 v4, 4, v0', 'v_and_b32 v3, 15, v0', 'v_lshlrev_b32 v3, 4, v3', f'v_lshl_add_u32 v3, v4, {8+STS}, v3',
        's_cselect_b64 vcc, -1, 0', f's_lshl_b32 s58, s2, {FSH}', f's_add_u32 s58, s58, {FL_OFF}', f's_lshl_b32 s59, s2, {10+STS}', f's_add_u32 s59, s59, {ST_OFF}',
        f's_cmp_eq_u32 s{S_LWV}, 0', 's_cselect_b32 s58, s58, s59', f's_add_u32 s59, s59, {LSTR}', f's_cmp_eq_u32 s{S_LWV}, 2', 's_cselect_b32 s58, s59, s58',
        f's_lshr_b32 s59, s2, 2', f's_mul_i32 s59, s59, {LSTR}', f's_and_b32 s{S_T0}, s2, 3', f's_lshl_b32 s{S_T0}, s{S_T0}, 10', f's_add_u32 s59, s59, s{S_T0}', f's_add_u32 s59, s59, {ST_OFF + 262144}',
        's_cmp_lt_u32 s2, 8', f's_cselect_b32 s59, s59, {128*MB}', f's_cmp_eq_u32 s{S_LWV}, 3', 's_cselect_b32 s58, s59, s58',
        'v_cndmask_b32 v47, v3, v2, vcc', 's_and_b32 s59, s2, 3', 's_lshl_b32 s59, s59, 6', 'v_mov_b32 v73, s59', 'v_mov_b32 v74, 1')
    flag_idx(a, 0, S_TI, 16, S_TJ)
    a.e(f's_mov_b32 s{S_LW}, 0', *lstamp(29), 's_waitcnt lgkmcnt(0)', *lstamp(61))
    srd(a, SRD_A, P_X, 0, XB)
    srd(a, SRD_B, P_WQKV, 0, 1024 * 3072 * 2)
    a.e('s_branch L_first')
    a.e('L_top:'); a.flush_hist()
    flag_idx(a, 0, S_TI, 16, S_TJ)
    srd(a, SRD_E, P_W1, 0, 2048 * 3584 * 2)
    gl = f'global_load_dword v29, v134, s[{P_DB}:{P_DB+1}] {SC}'
    def h_gate(n):
        if SINGLE: a.e(gl)
    def h_fetch(n):
        l = lab('st')
        if SINGLE:
            a.e(f's_cmp_lg_u32 s{S_VAR}, 0', f's_cbranch_scc1 {l}g', f's_waitcnt vmcnt({n})', 's_mov_b32 s61, 0')
            a.loop([f'{l}p:', 'v_cmp_gt_u32 vcc, 64, v29', 's_add_u32 s61, s61, 1', f's_cmp_gt_u32 s61, {SPIN}', f's_cbranch_scc1 {l}g', f's_cbranch_vccz {l}g', gl, 's_waitcnt vmcnt(0)', f's_branch {l}p'])
            a.e(f'{l}g:')
        for p in range(8):
            if p: a.e(f's_mov_b32 s{S_T0}, {p*32768}')
            a.e(f'buffer_load_dwordx2 {vr(30+2*p,2)}, v27, {S4(SRD_D)}, {"0" if p == 0 else f"s{S_T0}"} offen {LDF}')
    def h_fin(n):
        a.e(f's_waitcnt vmcnt({n})', 'v_pk_add_f32 v[30:31], v[30:31], v[32:33]', 'v_pk_add_f32 v[34:35], v[34:35], v[36:37]', 'v_pk_add_f32 v[38:39], v[38:39], v[40:41]',
            'v_pk_add_f32 v[42:43], v[42:43], v[44:45]', 'v_pk_add_f32 v[30:31], v[30:31], v[34:35]', 'v_pk_add_f32 v[38:39], v[38:39], v[42:43]',
            'v_pk_add_f32 v[30:31], v[30:31], v[38:39]')
        stats_finish(a, 30, 31, 32, False)
        a.e('ds_write_b64 v26, v[30:31]', 's_waitcnt lgkmcnt(0)')
    HK = (h_gate, h_fetch)
    def only0(f):
        def g(n):
            l = lab('e'); a.e(f's_cmp_lg_u32 s{S_VAR}, 0', f's_cbranch_scc1 {l}'); f(n); a.e(f'{l}:', 's_nop 1')
        return g
    def e_load(n):
        a.e(*lstamp(63))
        for c in range(4): a.e(f'buffer_load_dwordx4 {vr(48+4*c,4)}, v46, {S4(SRD_A)}, 0 offen offset:{512*c}')
        a.e(f'buffer_store_dwordx4 v[64:67], v47, {S4(SRD_C)}, s58 offen {SC}')
    def e_stat(n):
        a.e('v_mov_b32 v68, 0', 'v_mov_b32 v69, 0', 'v_mov_b32 v70, 0x3f803f80', f's_waitcnt vmcnt({n+1})')
        for e in range(16): a.e(f'v_dot2c_f32_bf16 v68, v70, v{48+e}', f'v_dot2c_f32_bf16 v69, v{48+e}, v{48+e}')
        for ctl in ('quad_perm:[1,0,3,2]', 'quad_perm:[2,3,0,1]', 'row_half_mirror', 'row_mirror'):
            a.e(f'v_add_f32_dpp v68, v68, v68 {ctl} row_mask:0xf bank_mask:0xf', f'v_add_f32_dpp v69, v69, v69 {ctl} row_mask:0xf bank_mask:0xf')
        a.e('v_mov_b32 v70, v68', 'v_mov_b32 v71, v69', 'v_permlane16_swap_b32 v68, v70', 'v_permlane16_swap_b32 v69, v71', 'v_add_f32 v68, v68, v70', 'v_add_f32 v69, v69, v71',
            's_mov_b32 exec_lo, 1', 's_mov_b32 exec_hi, 1', f'buffer_store_dwordx2 v[68:69], v72, {S4(SRD_C)}, 0 offen {SC}', 's_mov_b64 exec, -1')
    def e_gate(n):
        l = lab('g'); a.e(f's_cmp_lg_u32 s{S_LWV}, 0', f's_cbranch_scc1 {l}', 's_mov_b64 exec, 1', f'global_atomic_add v73, v74, s[{P_DB}:{P_DB+1}] sc1', 's_mov_b64 exec, -1', f'{l}:')
    nop = lambda n: None
    EH = (nop,) * (ELATE - 1) + (only0(e_load), only0(e_stat), nop, only0(e_gate)) if ELATE else (nop, only0(e_gate))
    a.e(f's_cmp_ge_u32 s{S_LWV}, 2', 's_cbranch_scc1 L_k1B')
    l_loop(a, 16, 3, 2, ST1, 0, 's54', 64 * 6144, [gh, gx], gw, tail=1, hooks=HK, early=('L_jA',) + EH, st=env('STK', '3') == '1')
    a.e('s_branch L_k1t', 'L_k1B:'); a.flush_hist()
    l_loop(a, 16, 3, 2, ST1, 0, 's54', 64 * 6144, [gx], gw, tail=1, hooks=HK, early=('L_jB',) + EH)
    a.e('s_branch L_k1t')
    a.e('L_first:'); a.flush_hist()
    a.e(f's_cmp_ge_u32 s{S_LWV}, 2', 's_cbranch_scc1 L_firstB')
    for gA, n, tag in (([gh, gx], 11, 'A'), ([gx], 10, 'B')):
        if tag == 'B': a.e('L_firstB:'); a.flush_hist()
        iss = lambda: issue(16, 3, ST1, 0, 's54', 64 * 6144, gA, gw)
        a.e(*iss(), *lstamp(62))
        srd(a, SRD_C, P_WS, 0, 112 * MB)
        srd(a, SRD_D, P_WS, RS_OFF, 32768)
        a.e(f's_mov_b32 s{P_WL}, s{P_WS}', f's_mov_b32 s{P_WL+1}, s{P_WS+1}', *iss())
        if not ELATE: e_load(n)
        a.e('s_barrier', f's_waitcnt vmcnt({n if ELATE else n+5})', 's_barrier', *iss())
        a.e(*lstamp(20))
        if not ELATE: e_stat(n)
        a.e(*lstamp(21), 's_mov_b32 s60, 0', f's_branch L_j{tag}')
    a.e('L_k1t:'); a.flush_hist()
    h_fin(0)
    a.e(f's_mov_b32 s{S_T2}, s{S_LWV}')
    dma_w128(a, [130, 131], 2048, swz128(a), 16, 2, 3, 4)
    srd(a, SRD_B, P_WO, 0, 1024 * 1024 * 2)
    a.e(*INITK, f's_lshl_b32 s{S_G0+8}, s{S_LWV}, 11', f's_lshl_b32 s53, 0x303, s{S_PHI}', 's_lshr_b32 s53, s53, 8')
    def wo(t0, t1):
        for t in range(t0, t1):
            if LAZY & 1:
                p, w = SEQ2[t]
                kc = [f's_bitcmp1_b32 s53, {p}', f's_cselect_b32 s{S_K}, {8 - 8*w}, {8*w}', f's_add_u32 s{S_K}, s{S_K}, {p}']
            else: kc = next_k(16)
            a.e(*kc, f's_lshl_b32 s{S_OB}, s{S_K}, 17', f's_add_u32 s{S_OB}, s{S_OB}, s{S_BB}', f's_add_u32 m0, s{S_G0+8}, {WO_SLOTS[t]}',
                f'buffer_load_dwordx4 v130, {S4(SRD_B)}, s{S_OB} offen lds', f'buffer_load_dwordx4 v131, {S4(SRD_B)}, s{S_OB} offen offset:1024 lds')
    wo(0, 4)
    def pf3(j):
        if PF3 > j: a.e(f's_add_u32 s{S_T0}, s54, {j*8*MB}', f'buffer_load_dword v135, v132, {S4(SRD_E)}, s{S_T0} offen')
    if PF3:
        a.e(f's_cmp_eq_u32 s{S_VAR}, 0', f's_cselect_b32 s{SRD_E+2}, s{SRD_E+2}, 0', 's_lshl_b32 s54, s2, 2', f's_add_u32 s54, s54, s{S_LWV}', 's_lshl_b32 s54, s54, 13',
            f's_add_u32 s54, s54, {W1_K0}', 'v_lshlrev_b32 v132, 7, v0')
    pf3(0)
    x = 1 if PF3 else 0
    if PFT:
        srd(a, SRD_C, P_W2, 0, 3584 * 2048 * 2)
        a.e(f's_cmp_eq_u32 s{S_VAR}, 0', f's_cselect_b32 s{SRD_E+2}, s{SRD_E+2}, 0', f's_cselect_b32 s{SRD_C+2}, s{SRD_C+2}, 0',
            's_lshr_b32 s54, s2, 3', 's_lshl_b32 s54, s54, 2', f's_add_u32 s54, s54, s{S_LWV}', 's_lshl_b32 s54, s54, 18', 'v_lshlrev_b32 v132, 12, v0', 'v_add_u32 v132, s54, v132',
            f'v_subrev_u32 v133, {16*MB}, v132', f'buffer_load_dword v135, v132, {S4(SRD_E)}, 0 offen', f'buffer_load_dword v135, v133, {S4(SRD_C)}, 0 offen')
        x += 2
    a.e(f's_waitcnt vmcnt({8+x})', 's_barrier')
    wo(4, 7)
    only0(lambda n: (lane_fields(a), attn_static()))(0)
    a.e('s_waitcnt lgkmcnt(0)', 's_barrier')
    pf3(1)
    wo(7, 12)
    a.e('s_branch attn')
    a.e('L_k1done:'); a.flush_hist()
    publish_pre(a)
    a.e('s_waitcnt vmcnt(0)', 's_barrier')
    publish(a, 2)
    wo(12, 16)
    flag_idx(a, 1, S_TJ, 16, S_TI)
    if ONEP: a.e('s_barrier')
    a.e('s_waitcnt vmcnt(0)', 's_barrier')
    if LAZY & 1:
        poll_setup(a, SRD_C, 14, 0, 0, [f's_lshl_b32 s{S_T0}, s{S_TI}, 4'], 16)
        poll(a, SRD_C, 14, 15, sleep=False)
    g4 = [dict(sg=S_G0 + 1, dmas=[(9, 0, 'B', None), (10, 1024, 'B', None)])]
    def k4_setup_l():
        tiles(a, 8, 2)
        a.e(f's_mov_b32 s{S_T2}, s{S_LWV}', f's_lshl_b32 s{S_G0+1}, s{S_T2}, 11')
        dma_w128(a, [9, 10], 4096, swz128(a), 16, 2, 3, 4)
        a.e(f's_lshl_b32 s{S_BB}, s{S_TJ}, 7')
        srd(a, SRD_B, P_W2, 0, 3584 * 2048 * 2)
        if ROLL & 2:
            a.e(f's_lshr_b32 s{S_T0}, s2, 3', f's_lshl_b32 s{S_T0}, s{S_T0}, 2', f's_add_u32 s{S_T0}, s{S_T0}, s{S_LWV}', f's_lshl_b32 s{S_T0}, s{S_T0}, 2',
                'v_and_b32 v2, 3, v0', 'v_lshrrev_b32 v3, 2, v0', 'v_lshl_add_u32 v2, v3, 9, v2', f'v_add_u32 v2, s{S_T0}, v2', 'v_lshlrev_b32 v2, 12, v2',
                f's_and_b32 s{S_T0}, s2, 3', f's_lshl_b32 s{S_T0}, s{S_T0}, 10', f's_add_u32 s{S_T0}, s{S_T0}, 384', f'v_add_u32 v2, s{S_T0}, v2', 'v_mov_b32 v3, 0x40000000',
                'v_cmp_gt_u32 vcc, 4, v0', 'v_cmp_gt_u32 s[58:59], 12, v0', 'v_cndmask_b32 v24, v3, v2, vcc', 'v_cndmask_b32 v25, v3, v2, s[58:59]',
                's_mov_b32 s58, 0x40000000', f's_mov_b32 s59, {2*512*4096}', f's_cmp_lt_u32 s{S_PHI}, {K4_AH}', f's_cselect_b32 s59, {3*512*4096}, s59')
    a.e('s_cmp_ge_u32 s2, 224', 's_cbranch_scc1 L_k3skip')
    tiles(a, 7, 2)
    a.e(f's_lshl_b32 s{S_G0}, s{S_LWV}, 12', f's_add_u32 s{S_G0+1}, s{S_G0}, 16384',
        'v_lshrrev_b32 v2, 4, v0', 'v_lshlrev_b32 v3, 1, v2', 'v_and_b32 v4, 15, v0', 'v_xor_b32 v3, v3, v4', 'v_lshlrev_b32 v3, 4, v3',
        f's_lshl_b32 s{S_T0}, s{S_LWV}, 4', f'v_add_u32 v2, s{S_T0}, v2', f's_mov_b32 s{S_T0}, 7168', f'v_mul_lo_u32 v2, v2, s{S_T0}',
        'v_add_u32 v9, v2, v3', 'v_xor_b32 v3, 128, v3', 'v_add_u32 v11, v2, v3',
        f'v_add_u32 v10, {4*7168-1024}, v9', f'v_add_u32 v12, {3*(4*7168-1024)}, v11', f'v_add_u32 v11, {2*(4*7168-1024)}, v11',
        f's_lshl_b32 s{S_BA}, s{S_TI}, 2', f's_add_u32 s{S_BA}, s{S_BA}, s{S_LWV}', f's_lshl_b32 s{S_BA}, s{S_BA}, 18', f's_lshl_b32 s{S_BB}, s{S_TJ}, 8')
    for i in range(4): lanemap(a, 20 + i, i & 1, i >> 1, (i & 1) * 2048 + (i >> 1) * 131072 - 1024 * i)
    srd(a, SRD_A, P_WL, H_OFF, XP)
    srd(a, SRD_B, P_W1, 0, 2048 * 3584 * 2)
    g3a = [dict(sg=S_G0, dmas=[(20 + i, 1024 * i, 'A', None) for i in range(4)])]
    g3w = [dict(sg=S_G0 + 1, dmas=[(9 + i, 1024 * i, 'B', None) for i in range(4)])]
    poll_setup(a, SRD_C, 14, 1, 0, [f's_lshl_b32 s{S_T0}, s{S_TI}, 5'], 32)
    if ROLL & 1:
        a.e(f's_and_b32 s{S_T0}, s2, 3', f's_mul_i32 s{S_T0}, s{S_T0}, 14', f's_sub_u32 s{S_T1}, 3, s{S_T0}', f's_and_b32 s{S_T1}, s{S_T1}, 7',
            'v_and_b32 v2, 1, v0', 'v_lshlrev_b32 v2, 3, v2', f'v_add_u32 v2, s{S_T1}, v2', 'v_cmp_gt_u32 vcc, 14, v2', f'v_add_u32 v2, s{S_T0}, v2', 'v_lshlrev_b32 v2, 7, v2',
            f's_lshr_b32 s{S_T0}, s2, 3', f's_lshl_b32 s{S_T0}, s{S_T0}, 2', f's_add_u32 s{S_T0}, s{S_T0}, s{S_LWV}', f's_mul_i32 s{S_T0}, s{S_T0}, 5',
            'v_lshrrev_b32 v3, 1, v0', 'v_cmp_gt_u32 s[58:59], 5, v3', 'v_cmp_gt_u32 s[60:61], 15, v3', 'v_mul_u32_u24 v4, 52, v3', 'v_lshrrev_b32 v4, 8, v4', 'v_mul_u32_u24 v4, 507, v4', 'v_add_u32 v3, v3, v4',
            f'v_add_u32 v3, s{S_T0}, v3', 'v_mul_u32_u24 v3, 7168, v3', 'v_add_u32 v2, v2, v3', 'v_mov_b32 v3, 0x40000000',
            's_and_b64 s[58:59], s[58:59], vcc', 's_and_b64 s[60:61], s[60:61], vcc', 'v_cndmask_b32 v24, v3, v2, s[58:59]', 'v_cndmask_b32 v25, v3, v2, s[60:61]',
            's_mov_b32 s58, 0x40000000', f's_mov_b32 s59, {2*512*7168}', f's_cmp_lt_u32 s{S_PHI}, 3', f's_cselect_b32 s59, {3*512*7168}, s59')
    for j in range(PF4):
        a.e(f's_lshr_b32 s{S_T0}, s2, 3', f's_add_u32 s{S_T0}, s{S_T0}, {28*j}', f's_lshl_b32 s{S_T0}, s{S_T0}, 2', f's_add_u32 s{S_T0}, s{S_T0}, s{S_LWV}', f's_lshl_b32 s{S_T0}, s{S_T0}, 6',
            f'v_add_u32 v2, s{S_T0}, v0', 'v_mul_u32_u24 v3, 74899, v2', 'v_lshrrev_b32 v3, 20, v3', 'v_mul_u32_u24 v4, 14, v3', 'v_sub_u32 v4, v2, v4',
            'v_add_u32 v3, 192, v3', 'v_mul_u32_u24 v3, 7168, v3', 'v_lshl_add_u32 v3, v4, 7, v3', f's_and_b32 s{S_T0}, s2, 3', f's_mul_i32 s{S_T0}, s{S_T0}, 1792', f's_lshl_b32 s{S_T1}, s{S_VAR}, 30', f's_add_u32 s{S_T0}, s{S_T0}, s{S_T1}', f'v_add_u32 v{16+j}, s{S_T0}, v3')
    a.e('s_barrier')
    if not LATEW: pre_w(a, 32, 5, 3, 32768, 0, 64 * 7168, g3w)
    a.e('s_barrier')
    publish(a, 2)
    if LATEW: pre_w(a, 32, 5, 3, 32768, 0, 64 * 7168, g3w)
    if ROLL & 1: a.e(f'buffer_load_dword v135, v25, {S4(SRD_B)}, 0 offen')
    for j in range(PF4): a.e(f'buffer_load_dword v135, v{16+j}, {S4(SRD_B)}, 0 offen')
    flag_idx(a, 2, S_TI, 32, S_TJ)
    poll(a, SRD_C, 14, 15)
    l_loop(a, 32, 5, 3, 32768, 0, 4096, 64 * 7168, g3a, g3w, st=env('STK', '3') == '3', roll=(24, 512 * 7168) if ROLL & 1 else None)
    k4_setup_l()
    a.e('s_branch L_k4', 'L_k3skip:'); a.flush_hist()
    k4_setup_l()
    a.e('s_barrier')
    a.e('L_k4:'); a.flush_hist()
    if ROLL & 2: a.e(f'buffer_load_dword v135, v25, {S4(SRD_B)}, 0 offen')
    pre_w(a, 56, K4_NS, K4_AH, 8192, K4_BASE, 64 * 4096, g4)
    a.e('s_barrier')
    publish(a, 2)
    flag_idx(a, 3, S_TJ, 8, S_TI)
    if ONEP: a.e('s_barrier')
    def full4(n):
        poll_setup(a, SRD_C, 14, 2, 0, [f's_lshl_b32 s{S_T0}, s{S_TI}, 5'], 28)
        poll(a, SRD_C, 14, 15, sleep=False, bar=False)
    l_loop(a, 56, K4_NS, K4_AH, 8192, K4_BASE, 0, 64 * 4096, [], g4, first=(lambda n: None, full4) if LAZY & 2 else ())
    a.e(f's_cmp_lg_u32 s{S_VAR}, 0', 's_cbranch_scc1 L_end')
    k1_setup_l(1)
    poll_setup(a, SRD_C, 28, 3, 0, [f's_lshl_b32 s{S_T0}, s{S_TI}, 4', f's_sub_u32 s{S_T0}, s{S_T0}, 8'], 24)
    a.e('s_barrier', 's_barrier')
    publish(a, 2)
    poll(a, SRD_C, 28, 29)
    a.e(f's_mov_b32 s{S_VAR}, 1', f's_add_u32 s{P_WL}, s{P_WS}, {0 if REUSE else LSTR}', f's_addc_u32 s{P_WL+1}, s{P_WS+1}, 0', 's_branch L_top')
    a.e('L_end:')
    if PROF: a.e(f's_cmp_lg_u32 s{S_LWV}, 0', f's_cbranch_scc1 {kn}_end', 's_lshl_b32 s58, s2, 8', f's_add_u32 s58, s58, {PR_OFF + MB}', 'v_lshlrev_b32 v254, 2, v0', 'v_add_u32 v254, s58, v254', f'global_store_dword v254, v255, s[{P_WS}:{P_WS+1}]')
    a.e(f'{kn}_end:', 's_endpgm')

def dump(a):
    if not PROF: return
    a.e('s_waitcnt vmcnt(0)', *stamp(14), f's_cmp_lg_u32 s{S_WAVE}, 0', 's_cbranch_scc1 nodump', 's_lshl_b32 s58, s2, 8', f's_add_u32 s58, s58, {PR_OFF}',
        'v_lshlrev_b32 v254, 2, v0', 'v_add_u32 v254, s58, v254', f'global_store_dword v254, v{PV}, s[{P_WS}:{P_WS+1}]', 'nodump:')

def gen_k0(a):
    a.e('.p2align 8', 'k0_kernel:', 's_cmp_ge_u32 s2, 256', 's_cbranch_scc1 k0_end',
        's_load_dwordx16 s[64:79], s[0:1], 0', 's_load_dwordx2 s[84:85], s[0:1], 80',
        'v_lshrrev_b32 v1, 6, v0', 'v_lshlrev_b32 v20, 4, v0', 'v_and_b32 v0, 63, v0', f'v_readfirstlane_b32 s{S_WAVE}, v1',
        's_lshl_b32 s30, s2, 3', f's_add_u32 s30, s30, s{S_WAVE}',
        's_lshl_b32 s31, s30, 11', 'v_lshlrev_b32 v2, 5, v0',
        's_lshl_b32 s32, s2, 2', f's_and_b32 s33, s{S_WAVE}, 3', 's_add_u32 s32, s32, s33', 's_lshl_b32 s32, s32, 13', 'v_lshlrev_b32 v3, 7, v0', 'v_add_u32 v3, s32, v3',
        f'v_subrev_u32 v4, {1024*3072*2}, v3', 's_waitcnt lgkmcnt(0)')
    srd(a, SRD_A, P_X, 0, XB)
    a.e(f'buffer_load_dwordx4 v[8:11], v2, {S4(SRD_A)}, s31 offen', f'buffer_load_dwordx4 v[12:15], v2, {S4(SRD_A)}, s31 offen offset:16')
    KW = int(env('K0WARM', '1'))
    srd(a, SRD_B, P_WQKV, 0, 1024 * 3072 * 2 * KW)
    srd(a, SRD_C, P_WO, 0, 1024 * 1024 * 2 * KW)
    srd(a, SRD_E, P_W1, 0, W1_K0)
    a.e(f's_sub_u32 s33, s{S_WAVE}, 4', 's_lshl_b32 s33, s33, 8', 's_add_u32 s33, s33, s2', 's_lshl_b32 s33, s33, 13', 'v_lshlrev_b32 v7, 7, v0',
        f's_cmp_ge_u32 s{S_WAVE}, 4', 's_cbranch_scc1 k0_nw', f'buffer_load_dword v5, v3, {S4(SRD_B)}, 0 offen', f'buffer_load_dword v6, v4, {S4(SRD_C)}, 0 offen', 's_branch k0_nx',
        'k0_nw:', f'buffer_load_dword v5, v7, {S4(SRD_E)}, s33 offen', 'k0_nx:')
    if CODEPF:
        a.e(f's_cmp_lg_u32 s{S_WAVE}, 7', 's_cbranch_scc1 k0_nc', 's_getpc_b64 s[40:41]', 'k0_pc:', 's_add_u32 s40, s40, mega_kernel-k0_pc', 's_addc_u32 s41, s41, 0',
            's_lshr_b32 s42, s2, 3', 's_lshl_b32 s42, s42, 11', 'v_and_b32 v25, 15, v0', 'v_lshlrev_b32 v25, 7, v25', 'v_add_u32 v25, s42, v25',
            'v_min_u32 v25, mega_end-mega_kernel, v25', 'global_load_dword v26, v25, s[40:41]', 'k0_nc:')
    srd(a, SRD_D, P_WS, 0, 64 * MB)
    a.e(f's_cmp_eq_u32 s{S_WAVE}, 0', 's_cselect_b32 s33, 0, -1', 'v_mov_b32 v16, s33', 'v_mov_b32 v17, s33', 'v_mov_b32 v18, s33', 'v_mov_b32 v19, s33',
        f's_mov_b32 s34, {ST_OFF}', f's_cselect_b32 s34, {FL_OFF}, s34', f's_cmp_eq_u32 s{S_WAVE}, 2', f's_cselect_b32 s34, {LSTR + ST_OFF}, s34', 's_lshl_b32 s35, s2, 10', 's_add_u32 s34, s34, s35',
        'v_lshlrev_b32 v20, 4, v0', f's_cmp_ge_u32 s{S_WAVE}, 3', 's_cbranch_scc1 k0_nr', f'buffer_store_dwordx4 v[16:19], v20, {S4(SRD_D)}, s34 offen', 'k0_nr:')
    a.e('v_mov_b32 v22, 0', 'v_mov_b32 v23, 0', 'v_mov_b32 v21, 0x3f803f80', 'v_lshrrev_b32 v24, 3, v0', 'v_lshlrev_b32 v24, 14, v24', 's_lshl_b32 s36, s30, 3', f's_add_u32 s36, s36, {RS_OFF}',
        's_waitcnt vmcnt(0)')
    for e in range(8): a.e(f'v_dot2c_f32_bf16 v22, v21, v{8+e}', f'v_dot2c_f32_bf16 v23, v{8+e}, v{8+e}')
    for ctl in ('quad_perm:[1,0,3,2]', 'quad_perm:[2,3,0,1]', 'row_half_mirror'):
        a.e(f'v_add_f32_dpp v22, v22, v22 {ctl} row_mask:0xf bank_mask:0xf', f'v_add_f32_dpp v23, v23, v23 {ctl} row_mask:0xf bank_mask:0xf')
    a.e('s_mov_b32 exec_lo, 0x01010101', 's_mov_b32 exec_hi, 0x01010101', f'buffer_store_dwordx2 v[22:23], v24, {S4(SRD_D)}, s36 offen', 'k0_end:', 's_endpgm')

def main(out):
    a = Asm()
    if not SINGLE: gen_k0(a); a.flush_hist()
    gen_mega(a)
    info = {} if SINGLE else {'k0_kernel': (32, 0)}
    info[MEGA] = (256, 163840)
    ref = open(os.path.join(os.path.dirname(os.path.abspath(__file__)), '..', NAME + '.s.ref')).read().splitlines()
    hdr = [l for l in ref if l.startswith(';') and '@launch' not in l and 'Override launch' not in l and 'grid=ceil' not in l]
    if SINGLE: hdr += ['; @launch grid=(256,1,1) block=(512,1,1) lds=163840']
    else: hdr += [f'; @launch kernel={n} grid=(256,1,1) block=(512,1,1) lds={v[1]}' for n, v in info.items()]
    s = '\n'.join(hdr) + '\n; generated by gen/gen2.py\n.amdgcn_target "amdgcn-amd-amdhsa--gfx950"\n.text\n'
    if SINGLE: s += f'.globl {MEGA}\n.type {MEGA},@function\n'
    s += a.text() + '.section .rodata,"a"\n'
    for n, (vg, _) in info.items():
        s += f'''.p2align 6
.amdhsa_kernel {n}
  .amdhsa_next_free_vgpr {vg}
  .amdhsa_next_free_sgpr 102
  .amdhsa_accum_offset {vg}
  .amdhsa_group_segment_fixed_size 0
  .amdhsa_kernarg_size 88
  .amdhsa_user_sgpr_count 2
  .amdhsa_user_sgpr_kernarg_segment_ptr 1
  .amdhsa_system_sgpr_workgroup_id_x 1
.end_amdhsa_kernel
'''
    open(out, 'w').write(s)

if __name__ == '__main__':
    main(sys.argv[1])
```

```python
import sys, os, struct
sys.path.insert(0, os.path.dirname(os.path.abspath(__file__)))
from asmlib import *
import gen as G
from gen import (NAME, MB, XB, UB, f32, env, S4, srd, next_k, adv_s, sched, bundle, spread, lane_fields, tr128_addr, swz128, unpack4,
                 dma_w128, stats_finish, MF16, S_VAR, S_WAVE, S_LI, S_LJ, S_PHI, SRD_A, SRD_B, SRD_C, SRD_D, SRD_E, S_TI, S_TJ,
                 S_P, S_W, S_T0, S_K, S_BA, S_BB, S_OA, S_OB, S_LW, S_CNT, S_T1, S_T2, S_DELTA, S_CUR, S_G0,
                 P_X, P_WQKV, P_WO, P_W1, P_B1, P_W2, P_B2, P_OUT, P_WS)

LSTR = 48 * MB
O_OFF, X1_OFF, H_OFF, U_OFF, ST_OFF, RS_OFF = 0, 8 * MB, 16 * MB, 24 * MB, 40 * MB, 41 * MB
X2_OFF, FL_OFF, PR_OFF = 96 * MB, 104 * MB, 128 * MB
XP = 2 * XB; UP = 2 * UB
STP = 16384 + int(env('STPAD', '0')); FSH = int(env('FSH', '7')); STS = int(env('STS', '0'))
P_WL = 82
S_LWV, S_FLG = 57, 56
SC = 'sc0 sc1'
LDF = env('LDF', 'sc1')
PROF = env('PROF') == '1'
PV = 255
SINGLE = env('SINGLE', '1') == '1'
MEGA = NAME + '_kernel' if SINGLE else 'mega_kernel'
P_DB = 62
SPIN = 1000000
EXP = env('EXP', '')
SNAKE = int(env('SNAKE', '1')); CWREUSE = int(env('CWREUSE', '1')); CHAIN = int(env('CHAIN', '1'))
ONEP = int(env('ONEP', '1')); PS0 = int(env('PS0', '8')); PS1 = int(env('PS1', '0')); PP = int(env('PP', '1')); PSL = int(env('PSL', '4'))

def stamp(k):
    if not PROF: return []
    return ['s_memrealtime s[58:59]', 's_memtime s[56:57]', 's_waitcnt lgkmcnt(0)', f's_lshl_b32 s60, s{S_VAR}, 4', f's_add_u32 m0, s60, {k+1}', 's_nop 0', f'v_writelane_b32 v{PV}, s58, m0',
            's_add_u32 m0, m0, 32', 's_nop 0', f'v_writelane_b32 v{PV}, s56, m0']
G.stamp = lambda idx=None: []
G.cstamp = lambda idx: []

def lstamp(k): return ['s_memrealtime s[60:61]', 's_waitcnt lgkmcnt(0)', f'v_writelane_b32 v255, s60, {k}'] if PROF else []

def tiles(a, LN, xshift):
    a.e(f's_lshr_b32 s{S_T0}, s2, 3')
    if LN == 8: a.e(f's_lshr_b32 s{S_LI}, s{S_T0}, 3', f's_and_b32 s{S_LJ}, s{S_T0}, 7')
    else: a.e(f's_mul_i32 s{S_LI}, s{S_T0}, {65536 // LN + 1}', f's_lshr_b32 s{S_LI}, s{S_LI}, 16', f's_mul_i32 s{S_LJ}, s{S_LI}, {LN}', f's_sub_u32 s{S_LJ}, s{S_T0}, s{S_LJ}')
    a.e(f's_lshl_b32 s{S_PHI}, s{S_LI}, 1', f's_add_u32 s{S_PHI}, s{S_PHI}, s{S_LJ}', f's_and_b32 s{S_PHI}, s{S_PHI}, 7',
        f's_and_b32 s{S_T0}, s2, 7', f's_lshr_b32 s{S_TI}, s{S_T0}, {xshift}', f's_lshl_b32 s{S_TI}, s{S_TI}, 2', f's_add_u32 s{S_TI}, s{S_TI}, s{S_LI}',
        f's_and_b32 s{S_TJ}, s{S_T0}, {(1 << xshift) - 1}')
    if (TJS >> {(8, 1): 0, (7, 2): 1, (8, 2): 2}[(LN, xshift)]) & 1: a.e(f's_lshl_b32 s{S_T0}, s{S_LJ}, {xshift}', f's_add_u32 s{S_TJ}, s{S_TJ}, s{S_T0}', *INITK)
    else: a.e(f's_mul_i32 s{S_TJ}, s{S_TJ}, {LN}', f's_add_u32 s{S_TJ}, s{S_TJ}, s{S_LJ}', *INITK)
TJS = int(env('TJS', '0'))
INITK = [f's_mov_b32 s{S_P}, 7', f's_mov_b32 s{S_W}, -1']

def flag_idx(a, ph, hi, mul, lo):
    a.e(f's_lshl_b32 s{S_FLG}, s{S_VAR}, 10', f's_mul_i32 s{S_T0}, s{hi}, {mul}', f's_add_u32 s{S_FLG}, s{S_FLG}, s{S_T0}', f's_add_u32 s{S_FLG}, s{S_FLG}, s{lo}',
        f's_add_u32 s{S_FLG}, s{S_FLG}, {ph*256}', f's_lshl_b32 s{S_FLG}, s{S_FLG}, {FSH}')

_n = [0]
def lab(p): _n[0] += 1; return f'{p}{_n[0]}'

def publish_pre(a):
    srd(a, SRD_E, P_WS, FL_OFF, 8 * 256 * 256)
    a.e('v_mov_b32 v136, 0', 'v_mov_b32 v137, 1', f's_cmp_eq_u32 s{S_LWV}, 0', f's_cselect_b32 s{SRD_E+2}, s{SRD_E+2}, 0')

def publish(a, vt=None):
    a.e('s_mov_b64 exec, 1', f'buffer_store_dword v137, v136, {S4(SRD_E)}, s{S_FLG} offen {SC}', 's_mov_b64 exec, -1')

def poll_setup(a, sr_, va, ph, dl, base_lines, n, skip=None):
    srd(a, sr_, P_WS, FL_OFF, 8 * 256 * 256)
    a.e(f'v_min_u32 v{va}, {n-1}, v0')
    if skip: a.e(f'v_and_b32 v17, {skip[0]}, v{va}', f'v_cmp_eq_u32 vcc, {skip[1]}, v17', f'v_subbrev_co_u32 v{va}, vcc, 0, v{va}, vcc')
    a.e(*base_lines, f'v_add_u32 v{va}, s{S_T0}, v{va}', f'v_max_i32 v{va}, 0, v{va}', f'v_lshlrev_b32 v{va}, {FSH}, v{va}',
        f's_lshl_b32 s55, s{S_VAR}, {10+FSH}', f's_add_u32 s55, s55, {(dl * 4 + ph) << (8 + FSH)}')

def poll(a, sr_, va, vt, sleep=True, bar=True):
    l = lab('poll')
    ld = lambda v: f'buffer_load_dword v{v}, v{va}, {S4(sr_)}, s55 offen {SC}'
    a.e(f's_mov_b32 s{S_CNT}, 0')
    if ONEP: a.e(f's_and_b32 s{S_T0}, s{S_WAVE}, 3', f's_cmp_lg_u32 s{S_T0}, 0', f's_cbranch_scc1 {l}d')
    if PS0: a.e(f's_sleep {PS0 if sleep else PS0 // 2}')
    if PP <= 1:
        a.loop([f'{l}:'] + ([f's_sleep {PS1}'] if PS1 else []) + [ld(vt), 's_waitcnt vmcnt(0)', f'v_cmp_eq_u32 vcc, 0, v{vt}',
                f's_add_u32 s{S_CNT}, s{S_CNT}, 1', f's_cmp_gt_u32 s{S_CNT}, {SPIN}', f's_cbranch_scc1 {l}d', f's_cbranch_vccnz {l}'])
    else:
        R = [214 + i for i in range(PP)]
        for i in range(PP - 1): a.e(ld(R[i]), f's_sleep {PSL}')
        body = [f'{l}:']
        for i in range(PP):
            body += [ld(R[(i + PP - 1) % PP]), f's_waitcnt vmcnt({PP-1})', f'v_cmp_eq_u32 vcc, 0, v{R[i]}', f's_cbranch_vccz {l}d']
        a.loop(body + [f's_add_u32 s{S_CNT}, s{S_CNT}, 1', f's_cmp_le_u32 s{S_CNT}, {SPIN}', f's_cbranch_scc1 {l}'])
    a.e(f'{l}d:')
    if ONEP and bar: a.e('s_barrier')

def dma_groups(groups, lw_s):
    L = []
    for g in groups:
        L.append(f's_add_u32 m0, s{lw_s}, s{g["sg"]}')
        for (v, imm, st, ex) in g['dmas']:
            srdn, so, fl = (SRD_A, S_OA, LDF) if st == 'A' else (SRD_B, S_OB, '')
            if ex: L.append(f's_mov_b64 exec, {ex}')
            L.append(f'buffer_load_dwordx4 v{v}, {S4(srdn)}, s{so} offen offset:{imm} {fl} lds')
            if ex: L.append('s_mov_b64 exec, -1')
    return L

def issue(NK, NS, stage, base, stepA, stepB, gA, gW, roll=None):
    L = next_k(NK)
    if NK == 56 and LAZY & 2:
        tab = sum(v << (4 * i) for i, v in enumerate(PERM4))
        L = L[:-1] + [f's_lshl_b32 s{S_T0}, s{S_P}, 2', f's_lshr_b32 s{S_T0}, {tab}, s{S_T0}', f's_and_b32 s{S_T0}, s{S_T0}, 7', f's_add_u32 s{S_K}, s{S_K}, s{S_T0}']
    if gA: L += [f's_mul_i32 s{S_OA}, s{S_K}, {stepA}', f's_add_u32 s{S_OA}, s{S_OA}, s{S_BA}']
    if gW: L += [f's_mul_i32 s{S_OB}, s{S_K}, {stepB}', f's_add_u32 s{S_OB}, s{S_OB}, s{S_BB}']
    if roll:
        L += [f's_cmp_eq_u32 s{S_P}, s{S_PHI}', f's_cselect_b32 s{S_T0}, s59, s58', f's_cselect_b32 s{S_T1}, {roll[1]}, 0', f's_add_u32 s59, s59, s{S_T1}',
              f'buffer_load_dword v135, v{roll[0]}, {S4(SRD_B)}, s{S_T0} offen']
    if not (EXP == 'nodma' and NK in (16, 32)): L += dma_groups(gA + gW, S_LW)
    L += [f's_add_u32 s{S_LW}, s{S_LW}, {stage}', f's_cmp_eq_u32 s{S_LW}, {base + NS*stage}', f's_cselect_b32 s{S_LW}, {base}, s{S_LW}']
    return L

def pre_w(a, NK, NS, AH, stage, base, stepB, gW):
    a.e(*INITK, f's_mov_b32 s{S_LW}, {base}')
    for s in range(AH): a.e(*issue(NK, NS, stage, base, 0, stepB, [], gW))

def l_loop(a, NK, NS, AH, stage, base, stepA, stepB, gA, gW, tail=0, hooks=(), early=(), st=False, roll=None, first=()):
    nA = sum(len(g['dmas']) for g in gA); n = nA + sum(len(g['dmas']) for g in gW) + (1 if roll else 0)
    lst = ['s_memrealtime s[58:59]', 's_waitcnt lgkmcnt(0)', 's_mov_b32 m0, s60', 's_add_u32 s60, s60, 1', 'v_writelane_b32 v255, s58, m0'] if st and PROF else []
    if lst: a.e(f's_lshl_b32 s60, s{S_VAR}, 5')
    iss = lambda: lst + issue(NK, NS, stage, base, stepA, stepB, gA, gW, roll)
    t0 = 0
    if gA:
        a.e(*INITK, f's_mov_b32 s{S_LW}, {base}')
        for s in range(AH): a.e(*issue(NK, NS, stage, base, stepA, stepB, gA, []))
        for t in range(AH - 1):
            a.e(f's_waitcnt vmcnt({(AH - 1 - t) * nA + t * n})', 's_barrier', *iss())
        t0 = AH - 1
        if early: a.e(f'{early[0]}:', 's_nop 1')
        for h in early[1:]:
            a.e(f's_waitcnt vmcnt({(AH-1)*n})', 's_barrier', *iss()); h(n); t0 += 1
    if roll and not gA:
        for t in range(AH - 1): a.e(f's_waitcnt vmcnt({(AH - 1 - t) * (n - 1) + t * n})', 's_barrier', *iss())
        t0 = AH - 1
    for h in first:
        a.e(f's_waitcnt vmcnt({(AH-1)*n})', 's_barrier', *iss()); h(n); t0 += 1
    l = lab('ll')
    a.e(f's_mov_b32 s{S_CNT}, {NK - AH - t0 - len(hooks)}')
    a.loop([f'{l}:', f's_waitcnt vmcnt({(AH-1)*n})', 's_barrier'] + iss() + [f's_sub_u32 s{S_CNT}, s{S_CNT}, 1', f's_cmp_lg_u32 s{S_CNT}, 0', f's_cbranch_scc1 {l}'])
    for h in hooks:
        a.e(f's_waitcnt vmcnt({(AH-1)*n})', 's_barrier', *iss()); h(n)
    for j in range(AH - tail):
        a.e(f's_waitcnt vmcnt({(AH-1-j)*n + (8 if hooks else 0)})', 's_barrier')

def c_loop(a, NK, NS, stage, reads, mfmas, addr_regs, late, st0, peel=None, extra0=(), fin=None):
    if EXP == 'noread': reads = [reads[0][:1], reads[1][:1]]
    if EXP == 'rp2': RP = 2
    adv = adv_s(NS, stage)
    advv = [f'v_add_u32 v{r}, s{S_DELTA}, v{r}' for r in addr_regs]
    a.e(f's_mov_b32 s{S_CUR}, 0', f's_mov_b32 s{S_CNT}, {NK - 1 - len(peel or [])}', 's_barrier', *stamp(st0))
    a.e(*reads[0]); a.e(*adv)
    q0 = [Ins(x).wr for x in reads[0]]
    def it(pre=(), post=()):
        q = list(q0)
        L = sched(mfmas[0], bundle(reads[1], advv), q, 1)
        if not late: L.append('s_waitcnt lgkmcnt(0)'); q.clear()
        L += list(pre) + ['s_barrier'] + list(post) + sched(mfmas[1], spread(reads[0], adv), q, 1)
        assert q == q0[len(q0) - len(q):]
        return L
    for p in peel or []: a.e(*it(*p))
    l = lab('cl')
    a.loop([f'{l}:'] + it() + [f's_sub_u32 s{S_CNT}, s{S_CNT}, 1', f's_cmp_lg_u32 s{S_CNT}, 0', f's_cbranch_scc1 {l}'])
    q = list(q0)
    a.e(*sched(mfmas[0], reads[1] + list(extra0), q, 1))
    if fin: a.e('s_waitcnt lgkmcnt(0)', *stamp(st0 + 1)); fin(mfmas[1])
    else: a.e(*sched(mfmas[1], [], q)); a.e('s_waitcnt lgkmcnt(0)', *stamp(st0 + 1))

S_LM, S_B0, S_B1 = 48, 49, 50
def c_direct(a, NK, NS, stage, reads, mf, addr_regs, DR, D, vaddr, init, st0, slots=None):
    R = NK // 8
    advv = lambda src: [f'v_add_u32 v{r}, {src}, v{r}' for r in addr_regs]
    def nk(t):
        p = t % 8
        L = []
        if slots and LAZY & 1:
            p, w = SEQ2[t]
            return (['s_barrier'] if t == 14 else []) + [f's_bitcmp1_b32 s{S_LM}, {p}', f's_cselect_b32 s{S_OA}, s{S_B0 if w else S_B1}, s{S_B1 if w else S_B0}', f's_add_u32 s{S_OA}, s{S_OA}, {p*8192}']
        if p == 0 and t != 0: L += [f's_mov_b32 s{S_B0}, s{S_B1}', f's_add_u32 s{S_B1}, s{S_B1}, 65536', f's_cmp_eq_u32 s{S_B1}, s{S_T2}', f's_cselect_b32 s{S_B1}, s{S_BA}, s{S_B1}']
        return L + [f's_bitcmp1_b32 s{S_LM}, {p}', f's_cselect_b32 s{S_OA}, s{S_B1}, s{S_B0}', f's_add_u32 s{S_OA}, s{S_OA}, {(PERM4[p] if LAZY & 2 and not slots else p)*8192}']
    ld = lambda slot, i: f'buffer_load_dwordx4 {vr(DR+16*slot+4*i,4)}, v{88+i}, {S4(SRD_A)}, s{S_OA} offen {LDF}'
    adv = [] if slots else adv_s(NS, stage)
    vq = []
    for sl in range(D):
        a.e(*nk(sl))
        for i in range(4 if sl < D - 1 else 2):
            a.e(ld(sl, i)); vq.append(Ins(ld(sl, i)).wr)
    init(4 * D - 2)
    a.e(f's_mov_b32 s{S_CUR}, 0', f's_mov_b32 s{S_CNT}, {R - 1}', 's_barrier', *stamp(st0))
    a.e(*reads[0]); a.e(*adv)
    q0 = [Ins(x).wr for x in reads[0]]
    def mix(items, loads, pos):
        items = [list(x) for x in items]
        for l, p in zip(loads, pos): items[p] = items[p] + [l]
        return items
    def step(t, vq, generic):
        slot = t % D
        q = list(q0)
        final = not generic and t == NK - 1
        l0 = [ld((slot - 1) % D, 2), ld((slot - 1) % D, 3)] if generic or t - 1 + D < NK else []
        av = [] if final else advv(f's{S_DELTA}' if not slots else (slots[t + 1] - slots[t]) & 0xffffffff)
        L = sched(mf(0, DR + 16 * slot), mix(bundle(reads[1], av), l0, (2, 6)), q, 1, vq=vq)
        if final: return L + sched(mf(1, DR + 16 * slot + 8), [], q, 1, vq=vq)
        more = generic or t + D < NK
        it = [[r] for r in reads[0]]
        sc = (nk(t + D) if more else []) + adv
        for i, x in enumerate(sc): it[min(i // 2, len(it) - 1)].append(x)
        l1 = [ld(slot, 0), ld(slot, 1)] if more else []
        return L + ([] if slots else ['s_barrier']) + sched(mf(1, DR + 16 * slot + 8), mix(it, l1, (4, 7)), q, 1, vq=vq)
    if slots:
        for t in range(NK): a.e(*step(t, vq, False))
    else:
        v1 = list(vq); l = lab('cd')
        body = [f'{l}:']
        for t in range(8, 16): body += step(t, v1, True)
        assert v1 == vq
        a.loop(body + [f's_sub_u32 s{S_CNT}, s{S_CNT}, 1', f's_cmp_lg_u32 s{S_CNT}, 0', f's_cbranch_scc1 {l}'])
        for t in range(NK - 8, NK): a.e(*step(t, vq, False))
    a.e('s_waitcnt lgkmcnt(0)', *stamp(st0 + 1))

SEQ2 = [(p, 0) for p in (0, 1, 2, 4, 5, 6, 7)] + [(p, 1) for p in (0, 1, 2, 4, 5, 6, 7)] + [(3, 0), (3, 1)]
PERM4 = (0, 1, 4, 5, 6, 7, 2, 3)

def by_first_use(reads, mfmas):
    key = lambda r: min(i for i, m in enumerate(mfmas) if Ins(m).srcab & Ins(r).wr)
    return sorted(reads, key=key)

def chain_order(tiles_):
    return [(t, h ^ (i & 1)) for i, t in enumerate(tiles_) for h in (0, 1)]

def c_full(a, NK, NS, stage, reads, mf, addr_regs, st0):
    adv = adv_s(NS, stage)
    advv = [f'v_add_u32 v{r}, s{S_DELTA}, v{r}' for r in addr_regs]
    rd = [by_first_use(reads(p), mf(p)) for p in range(2)]
    a.e(f's_mov_b32 s{S_CUR}, 0', f's_mov_b32 s{S_CNT}, {(NK - 2) // 2}', *adv, 's_barrier', *stamp(st0))
    a.e(*rd[0], *advv)
    def it(p, last=False):
        q = [Ins(x).wr for x in rd[p]]
        if last: return sched(mf(p), [], q)
        f = bundle(rd[1 - p], advv)
        for i, x in enumerate(adv): f[i // 2].append(x)
        first_adv = min(i for i, b in enumerate(f) if any(y in advv for y in b))
        assert first_adv > 2
        return ['s_barrier'] + sched(mf(p), f, q, 1)
    l = lab('cf')
    a.loop([f'{l}:'] + it(0) + it(1) + [f's_sub_u32 s{S_CNT}, s{S_CNT}, 1', f's_cmp_lg_u32 s{S_CNT}, 0', f's_cbranch_scc1 {l}'])
    a.e(*it(0)); a.e(*it(1, True)); a.e('s_waitcnt lgkmcnt(0)', *stamp(st0 + 1))

def c_direct2(a, NK, NS, stage, reads, mf, addr_regs, DR, D, vaddr, init, st0, slots=None):
    R = NK // 8
    advv = lambda src: [f'v_add_u32 v{r}, {src}, v{r}' for r in addr_regs]
    def nk(t):
        p = t % 8
        L = []
        if p == 0 and t != 0: L += [f's_mov_b32 s{S_B0}, s{S_B1}', f's_add_u32 s{S_B1}, s{S_B1}, 65536', f's_cmp_eq_u32 s{S_B1}, s{S_T2}', f's_cselect_b32 s{S_B1}, s{S_BA}, s{S_B1}']
        return L + [f's_bitcmp1_b32 s{S_LM}, {p}', f's_cselect_b32 s{S_OA}, s{S_B1}, s{S_B0}', f's_add_u32 s{S_OA}, s{S_OA}, {p*8192}']
    ld = lambda slot, i: f'buffer_load_dwordx4 {vr(DR+16*slot+4*i,4)}, v{88+i}, {S4(SRD_A)}, s{S_OA} offen {LDF}'
    LO = (0, 2, 3, 1)
    adv = [] if slots else adv_s(NS, stage)
    rd = [by_first_use(reads(p), mf(p, DR)) for p in range(2)]
    dl = lambda t: f's{S_DELTA}' if not slots else (slots[t + 1] - slots[t]) & 0xffffffff
    vq = []
    for sl in range(D - 1):
        a.e(*nk(sl))
        for i in LO: a.e(ld(sl, i)); vq.append(Ins(ld(sl, i)).wr)
    init(4 * (D - 1))
    a.e(f's_mov_b32 s{S_CUR}, 0', f's_mov_b32 s{S_CNT}, {R - 1}', *adv, 's_barrier', *stamp(st0))
    a.e(*rd[0], *advv(dl(0)))
    def step(t, vq, generic):
        slot = t % D; p = t & 1
        q = [Ins(x).wr for x in rd[p]]
        if not generic and t == NK - 1: return sched(mf(p, DR + 16 * slot), [], q, 1, vq=vq)
        more = generic or t + D - 1 < NK
        f = bundle(rd[1 - p], advv(dl(t + 1)) if generic or t + 2 < NK else [])
        for i, x in enumerate(adv + (nk(t + D - 1) if more else [])): f[i // 2].append(x)
        if more:
            for i, pos in zip(LO, (6, 9, 12, 15)): f[pos].append(ld((slot - 1) % D, i))
        return ([] if slots else ['s_barrier']) + sched(mf(p, DR + 16 * slot), f, q, 1, vq=vq)
    if slots:
        for t in range(NK): a.e(*step(t, vq, False))
    else:
        v1 = list(vq); l = lab('cd')
        body = [f'{l}:']
        for t in range(8, 16): body += step(t, v1, True)
        assert v1 == vq
        a.loop(body + [f's_sub_u32 s{S_CNT}, s{S_CNT}, 1', f's_cmp_lg_u32 s{S_CNT}, 0', f's_cbranch_scc1 {l}'])
        for t in range(NK - 8, NK): a.e(*step(t, vq, False))
    a.e('s_waitcnt lgkmcnt(0)', *stamp(st0 + 1))

FB = (16, 188)
def w_reads2(regs): return lambda p: [f'ds_read_b64_tr_b16 {vr(FB[p]+16*h+4*n+2*q,2)}, v{regs[n]} offset:{h*4096+q*512}' for n in range(4) for h in range(2) for q in range(2)]
SN8 = [(n, x) for n in range(4) for x in ((0, 1) if n % 2 == 0 else (1, 0))]

def lanemap(a, v, hi, lo, add=0, top=0):
    f = lambda x: f's{x[1]}' if isinstance(x, tuple) else str(x)
    a.e(f's_lshl_b32 s{S_T0}, {f(hi)}, 1', f's_add_u32 s{S_T0}, s{S_T0}, {f(lo)}', f's_cmp_eq_u32 s{S_T0}, 3', *([f's_cselect_b32 s{S_T0}, -5, s{S_T0}', f's_add_u32 s{S_T0}, s{S_T0}, 10'] if top else [f's_addc_u32 s{S_T0}, s{S_T0}, 5']), f's_lshl_b32 s{S_T0}, s{S_T0}, 7',
        's_mov_b32 vcc_lo, 0xff000000', 's_mov_b32 vcc_hi, 0', f'v_mov_b32 v{v}, s{S_T0}', f'v_cndmask_b32 v{v}, 0, v{v}, vcc', f'v_lshl_add_u32 v{v}, v0, 4, v{v}')
    if add: a.e(f'v_add_u32 v{v}, {add}, v{v}')

def direct_setup(a, NK, bal=0):
    a.e(f's_lshl_b32 s{S_LM}, 0x303, s{S_PHI}', f's_lshr_b32 s{S_LM}, s{S_LM}, 8', f's_mov_b32 s{S_B0}, s{S_BA}', f's_add_u32 s{S_B1}, s{S_BA}, 65536',
        f's_add_u32 s{S_T2}, s{S_BA}, {NK*8192}', f's_and_b32 s{S_T1}, s{S_WAVE}, 1')
    for b in range(2):
        lanemap(a, 88 + b, ('s', S_T1), b, 2048 * b)
        if bal: lanemap(a, 90 + b, ('s', S_T1), b, 4096 + 2048 * b, top=1)
        else: a.e(f'v_add_u32 v{90+b}, 4096, v{88+b}')

def w_reads(regs):
    return [[f'ds_read_b64_tr_b16 {vr(16+16*h+4*n+2*q,2)}, v{regs[n]} offset:{h*4096+q*512}' for n in range(4) for q in range(2)] for h in range(2)]

def sel(a, d, ptr0, off0, ptr1, off1, nbytes): G.srd_sel(a, d, ptr0, off0, ptr1, off1, nbytes)

XT = 18432; ST1 = XT + 24576; SL = 3 * ST1; QKV = ST1; PITCH = 400; PB = 72 * PITCH
WO_SLOTS = [131072 + 8192 * i for i in range(4)] + [100608 + 8192 * i for i in range(3)] + [8192 * i for i in range(5)] + [QKV + 8192 * i for i in range(4)]
K4_BASE, K4_NS, K4_AH = 98304, 8, 6
K4_SCR = 90112
D = 4; DR = 120
PF1 = int(env('PF1', '0'), 0); CPRIO = int(env('CPRIO', '0'))
NPF = int(env('NPF', '0')); K0W = int(env('K0W', '0')); W1_K0 = K0W * 256 * 64 * 128
REUSE = int(env('REUSE', '0')); WARM0 = int(env('WARM0', '1')); PF2N = int(env('PF2N', '14')); PF2D = int(env('PF2D', '1')); PF2S = int(env('PF2S', '0')); PF6 = int(env('PF6', '1')); ELATE = int(env('ELATE', '0')); WARME = int(env('WARME', '0')); LAZY = int(env('LAZY', '0')); SS0 = int(env('SS0', '0')); UBAL = int(env('UBAL', '0')); ROLL = int(env('ROLL', '0')); PF5 = int(env('PF5', '3')); PF5E = int(env('PF5E', '0')); PF4 = int(env('PF4', '1')); PFT = int(env('PFT', '0')); PF3 = int(env('PF3', '0')); CODEPF = env('CODEPF', '0') == '1'; PF2 = env('PF2', '1') == '1'; LATEW = env('LATEW', '1') == '1'

def gen_mega(a):
    kn = 'mega'
    a.e('.p2align 8', f'{MEGA}:', 's_cmp_ge_u32 s2, 256', f's_cbranch_scc1 {kn}_end',
        's_load_dwordx16 s[64:79], s[0:1], 0', 's_load_dwordx2 s[80:81], s[0:1], 64', 's_load_dwordx2 s[84:85], s[0:1], 80', f's_load_dwordx2 s[{P_DB}:{P_DB+1}], s[0:1], 72',
        'v_lshrrev_b32 v1, 6, v0', 'v_and_b32 v0, 63, v0', f'v_readfirstlane_b32 s{S_WAVE}, v1', f's_mov_b32 s{S_VAR}, 0')
    if PROF: a.e(f'v_mov_b32 v{PV}, 0', *stamp(-1))
    a.e('v_mov_b32 v130, 0', 'v_mov_b32 v131, 0', 'v_mov_b32 v134, 0', f's_cmp_ge_u32 s{S_WAVE}, 4', f's_cbranch_scc1 L_start')

    ACC1 = 112
    def acc1(m, rt): return ACC1 + 36 * m + 4 * rt
    MK = 86; AK0, AK1, AQ, AV0, AV1, AO = 220, 221, 223, 222, 254, 1
    def attn_static():
        a.e(f's_lshr_b32 s{S_T1}, s{S_WAVE}, 1', f's_and_b32 s{S_T2}, s{S_WAVE}, 1',
            f's_mul_i32 s{S_T0}, s{S_T2}, {PB}', f's_add_u32 s{S_T0}, s{S_T0}, {QKV}', f's_lshl_b32 s{S_G0+5}, s{S_T1}, 4')
        a.e(f'v_add_u32 v76, s{S_G0+5}, v4', 'v_lshlrev_b32 v77, 4, v5', f'v_add_u32 v77, s{S_T0}, v77',
            f'v_mul_u32_u24 v78, {PITCH}, v76', f'v_add_u32 v{AK0}, v78, v77', f'v_add_u32 v{AQ}, {8*PITCH}, v{AK0}', f'v_add_u32 v{AK0}, 128, v{AK0}',
            'v_add_u32 v76, 16, v76', 'v_min_u32 v76, 71, v76', f'v_mul_u32_u24 v78, {PITCH}, v76', f'v_add3_u32 v{AK1}, v78, v77, 64', f'v_add_u32 v{AK1}, 64, v{AK1}')
        a.e('v_lshl_add_u32 v76, v5, 2, v6', f'v_add_u32 v76, s{S_G0+5}, v76', 'v_lshlrev_b32 v77, 4, v7', f'v_add_u32 v77, s{S_T0}, v77', 'v_add_u32 v77, 256, v77',
            f'v_mul_u32_u24 v78, {PITCH}, v76', f'v_add_u32 v{AV0}, v78, v77',
            'v_add_u32 v76, 16, v76', 'v_min_u32 v76, 71, v76', f'v_mul_u32_u24 v78, {PITCH}, v76', f'v_add_u32 v{AV1}, v78, v77')
        a.e(f's_lshl_b32 s{S_G0+6}, s{S_TI}, 2', f's_add_u32 s{S_G0+6}, s{S_G0+6}, s{S_T1}', f's_lshl_b32 s{S_G0+6}, s{S_G0+6}, 17',
            f's_lshl_b32 s{S_G0+7}, s{S_TJ}, 13', f's_add_u32 s{S_G0+6}, s{S_G0+6}, s{S_G0+7}', f's_lshl_b32 s{S_G0+7}, s{S_T2}, 11', f's_add_u32 s{S_G0+6}, s{S_G0+6}, s{S_G0+7}',
            f's_and_b32 s{S_G0+7}, s{S_T1}, 1')
        lanemap(a, AO, ('s', S_G0 + 7), ('s', S_T2))
        a.e(f'v_add_u32 v{AO}, s{S_G0+6}, v{AO}')
        a.e('v_lshlrev_b32 v76, 2, v5', 'v_sub_u32 v76, v76, v4', f's_or_b32 s{S_G0+7}, s{S_TI}, s{S_T1}', f's_cmp_eq_u32 s{S_G0+7}, 0', f's_cselect_b32 s{S_G0+7}, 0, -1')
        for k in range(8):
            a.e(f'v_add_u32 v77, {16 * (k >> 2) + (k & 3) - 1}, v76', f'v_cmp_gt_u32 s[{MK+2*k}:{MK+1+2*k}], 8, v77')
        for k in range(4): a.e(f's_and_b32 s{MK+2*k}, s{MK+2*k}, s{S_G0+7}')
    def k1_setup_c():
        tiles(a, 8, 1)
        lane_fields(a)
        tr128_addr(a, [8], XT, 21, 22)
        a.e(f's_lshl_b32 s{S_T0}, s{S_WAVE}, 5', f'v_xor_b32 v8, s{S_T0}, v8',
            'v_lshrrev_b32 v21, 1, v4', 'v_xor_b32 v21, v21, v5', 'v_lshlrev_b32 v21, 4, v21', 'v_lshlrev_b32 v22, 7, v4', 'v_add_u32 v9, v21, v22', 'v_xor_b32 v10, 64, v9',
            'v_and_b32 v21, 1, v4', f'v_mul_u32_u24 v21, {PB}, v21', 'v_lshrrev_b32 v22, 1, v4', f'v_mul_u32_u24 v22, {PITCH}, v22',
            'v_lshlrev_b32 v23, 3, v5', 'v_add3_u32 v11, v21, v22, v23', f's_add_u32 s{S_T0}, s{S_T0}, {QKV}',
            f'v_add_u32 v11, s{S_T0}, v11', 'v_lshlrev_b32 v12, 3, v4', f'v_add_u32 v12, {SL}, v12')
        for r in range(ACC1, ACC1 + 108, 2): a.e(f'v_mov_b64 {vr(r,2)}, 0')
    if CPRIO: a.e(f's_setprio {CPRIO}')
    k1_setup_c()
    attn_static()
    a.e('s_waitcnt lgkmcnt(0)', f's_mov_b32 s{P_WL}, s{P_WS}', f's_mov_b32 s{P_WL+1}, s{P_WS+1}')
    def slow_strip():
        if not PF5: return
        srd(a, SRD_C, P_WQKV, 0, 1024 * 3072 * 2)
        a.e(f's_lshr_b32 s{S_T0}, s2, 3', f's_lshl_b32 s{S_T0}, s{S_T0}, 1', f's_add_u32 s{S_T0}, s{S_T0}, s{S_WAVE}', f's_sub_u32 s{S_T0}, s{S_T0}, 1', f's_lshl_b32 s{S_T0}, s{S_T0}, 6',
            f'v_add_u32 v16, s{S_T0}, v0', 'v_mul_u32_u24 v17, 21846, v16', 'v_lshrrev_b32 v17, 16, v17', 'v_mul_u32_u24 v18, 3, v17', 'v_sub_u32 v18, v16, v18',
            'v_mul_u32_u24 v17, 6144, v17', 'v_lshl_add_u32 v14, v18, 11, v17', f's_and_b32 s{S_T0}, s2, 1', f's_lshl_b32 s{S_T0}, s{S_T0}, 10', f's_add_u32 s{S_T0}, s{S_T0}, 384',
            f's_sub_u32 s{S_T1}, s{S_WAVE}, 1', f's_cmp_lt_u32 s{S_T1}, 2', f's_cselect_b32 s{SRD_C+2}, s{SRD_C+2}, 0',
            f'buffer_load_dword v15, v14, {S4(SRD_C)}, s{S_T0} offen')
        if ROLL & 4:
            srd(a, SRD_C, P_WO, 0, 1024 * 1024 * 2)
            a.e(f's_lshr_b32 s{S_T1}, s2, 3', f's_lshl_b32 s{S_T1}, s{S_T1}, 5', 'v_and_b32 v16, 31, v0', f'v_add_u32 v16, s{S_T1}, v16', 'v_lshlrev_b32 v14, 11, v16',
                f's_cmp_eq_u32 s{S_WAVE}, 3', f's_cselect_b32 s{SRD_C+2}, s{SRD_C+2}, 0', f'buffer_load_dword v15, v14, {S4(SRD_C)}, s{S_T0} offen')
    if PF5 & 1 and PF5E: slow_strip()
    srd(a, SRD_B, P_WS, 0, 0)
    srd(a, SRD_D, P_WQKV, 0, 1024 * 3072 * 2 * WARM0)
    a.e(f's_cmp_eq_u32 s{S_WAVE}, 3', f's_cselect_b32 s{SRD_D}, s{P_WO}, s{SRD_D}', f's_cselect_b32 s{SRD_D+1}, s{P_WO+1}, s{SRD_D+1}', f's_cselect_b32 s{SRD_D+2}, {2*MB*WARM0}, s{SRD_D+2}',
        f's_cselect_b32 s47, 0, s{S_WAVE}', 's_lshl_b32 s47, s47, 8', 's_add_u32 s47, s47, s2', 's_lshl_b32 s47, s47, 13', 'v_lshlrev_b32 v13, 7, v0', f's_mov_b32 s51, s{S_WAVE}')
    warm = f'buffer_load_dword v15, v13, {S4(SRD_D)}, s47 offen'
    def warm_if(w, l): return [f's_cmp_lg_u32 s51, {w}', f's_cbranch_scc1 {l}', warm, f'{l}:']
    WS = {0: ((), (0,), (1,), (2,), (3,)), 1: ((0,), (1,), (2,), (3,), ()), 2: ((), (0, 1), (2,), (), (3,)), 3: ((0,), (1, 2), (), (), (3,))}[WARME]
    wl = lambda i: [x for w in WS[i] for x in warm_if(w, f'C_wm{w}')]
    a.e(*wl(0), 's_barrier', *wl(1))
    if PF5 & 1 and not PF5E: slow_strip()
    if CODEPF:
        a.e(f's_cmp_lg_u32 s{S_WAVE}, 3', 's_cbranch_scc1 C_nc', 's_getpc_b64 s[44:45]', 'C_pc:', 's_lshr_b32 s46, s2, 3', 's_lshl_b32 s46, s46, 11', 'v_and_b32 v16, 15, v0',
            'v_lshlrev_b32 v16, 7, v16', 'v_add_u32 v16, s46, v16', 'v_min_u32 v16, mega_end-C_pc, v16', 'global_load_dword v15, v16, s[44:45]', 'C_nc:')
    a.e('C_top:'); a.flush_hist()
    reads = [[], []]; mf = [[], []]
    for h in range(2):
        F = 16 + 48 * h
        ra = [[f'ds_read_b64_tr_b16 {vr(F+4*m,2)}, v8 offset:{m*8192+h*4096}', f'ds_read_b64_tr_b16 {vr(F+4*m+2,2)}, v8 offset:{m*8192+h*4096+512}'] for m in range(3)]
        rb = [f'ds_read_b128 {vr(F+12+4*rt,4)}, v{9+h} offset:{rt*2048}' for rt in range(9)]
        reads[h] = ra[0] + [rb[0]] + ra[1] + ra[2] + rb[1:]
        mf[h] = [f'{MF16} {vr(acc1(m,rt),4)}, {vr(F+4*m,4)}, {vr(F+12+4*rt,4)}, {vr(acc1(m,rt),4)}' for rt in range(9) for m in (range(3) if rt % 2 == 0 or not SNAKE else range(2, -1, -1))]
    peel = [([], wl(2)), ([], wl(3)), ([], wl(4))]
    STR, CW = 224, 242
    def fold(rt, o):
        ms = [m for m in range(3) if not (m == 0 and rt == 0)]
        st = vr(STR + 2 * rt, 2); L = []
        for m in ms: L += [f'v_pk_fma_f32 {vr(acc1(m,rt)+e,2)}, {vr(CW+4*m+e,2)}, {st}, {vr(acc1(m,rt)+e,2)} op_sel_hi:[1,0,1] neg_lo:[0,1,0] neg_hi:[0,1,0]' for e in (0, 2)]
        for m in ms: L += [f'v_pk_mul_f32 {vr(acc1(m,rt)+e,2)}, {vr(acc1(m,rt)+e,2)}, {st} op_sel:[0,1] op_sel_hi:[1,1]' for e in (0, 2)]
        for i, m in enumerate(ms):
            d = acc1(m, rt); r = o + 2 * i
            L += [f'v_cvt_pk_bf16_f32 v{r}, v{d}, v{d+1}', f'v_cvt_pk_bf16_f32 v{r+1}, v{d+2}, v{d+3}', f'ds_write_b64 v11, {vr(r,2)} offset:{rt*8*PITCH+m*128}']
        return L
    def fin1(mfs, m0):
        work = [f'v_mov_b32_dpp v{CW+4*m+r}, v{acc1(m,0)+r} row_newbcast:0 row_mask:0xf bank_mask:0xf' for m in range(m0, 3) for r in range(4)]
        ready = [len(work)]
        for rt in range(9): work += fold(rt, 16 + 6 * (rt % 8)); ready.append(len(work))
        done = 0
        for i, m in enumerate(mfs):
            a.e(m)
            rt = (i + m0) // 3 - 1
            lim = ready[rt + 1] if rt >= 0 else 0
            n = min(lim - done, 7)
            if n > 0: a.e(*work[done:done + n]); done += n
        a.e('s_barrier')
        a.e(*work[done:])
    sreads = [f'ds_read_b64 {vr(STR+2*rt,2)}, v12 offset:{rt*128}' for rt in range(9)]
    c_loop(a, 16, 3, ST1, reads, mf, [8, 9, 10], False, 0, peel, sreads, lambda mfs: fin1(mfs, 0))
    if CWREUSE:
        a.e('s_branch attn', 'C_top1:'); a.flush_hist()
        c_loop(a, 16, 3, ST1, reads, [x[1:] for x in mf], [8, 9, 10], False, 0, None, sreads, lambda mfs: fin1(mfs, 1))
    a.e('attn:'); a.flush_hist()
    cs = (32 ** -0.5) * 1.4426950408889634
    a.e(f'v_mov_b32 v18, {f32(cs)}', 'v_mov_b32 v19, 0xff800000')
    srd(a, SRD_D, P_WL, O_OFF, XP)
    a.e('s_mov_b32 s49, 4096')
    a.e('s_waitcnt lgkmcnt(0)', 's_barrier')
    B = [32, 80]
    for hd in range(2):
        b = B[hd]; o = 64 * hd
        a.e(f'ds_read_b128 {vr(b,4)}, v{AQ} offset:{o}', f'ds_read_b128 {vr(b+4,4)}, v{AK0} offset:{o}', f'ds_read_b128 {vr(b+8,4)}, v{AK1} offset:{o}')
    for hd in range(2):
        b = B[hd]; o = 64 * hd
        for dt in range(2): a.e(f'ds_read_b64_tr_b16 {vr(b+12+4*dt,2)}, v{AV0} offset:{o+8*dt}', f'ds_read_b64_tr_b16 {vr(b+14+4*dt,2)}, v{AV1} offset:{o+8*dt}')
    for hd in range(2):
        b = B[hd]
        a.e(f's_waitcnt lgkmcnt({11 - 3*hd})', f'{MF16} {vr(b+20,4)}, {vr(b+4,4)}, {vr(b,4)}, 0', f'{MF16} {vr(b+24,4)}, {vr(b+8,4)}, {vr(b,4)}, 0')
    def both(f):
        for x, y in zip(f(B[0]), f(B[1])): a.e(x, y)
    both(lambda b: [f'v_cndmask_b32 v{b+20+k}, v19, v{b+20+k}, s[{MK+2*k}:{MK+1+2*k}]' for k in range(8)])
    both(lambda b: [f'v_max3_f32 v{b+28}, v{b+20}, v{b+21}, v{b+22}', f'v_max3_f32 v{b+29}, v{b+23}, v{b+24}, v{b+25}',
                    f'v_max3_f32 v{b+28}, v{b+28}, v{b+26}, v{b+27}', f'v_max_f32 v{b+28}, v{b+28}, v{b+29}', f'v_mov_b32 v{b+29}, v{b+28}',
                    f'v_permlane16_swap_b32 v{b+28}, v{b+29}', f'v_max_f32 v{b+28}, v{b+28}, v{b+29}', f'v_mov_b32 v{b+29}, v{b+28}',
                    f'v_permlane32_swap_b32 v{b+28}, v{b+29}', f'v_max_f32 v{b+28}, v{b+28}, v{b+29}', f'v_mul_f32 v{b+28}, v18, v{b+28}'])
    both(lambda b: [f'v_fma_f32 v{b+20+k}, v{b+20+k}, v18, -v{b+28}' for k in range(8)])
    both(lambda b: [f'v_exp_f32 v{b+20+k}, v{b+20+k}' for k in range(8)])
    both(lambda b: [f'v_pk_add_f32 {vr(b+28,2)}, {vr(b+20,2)}, {vr(b+22,2)}', f'v_pk_add_f32 {vr(b+30,2)}, {vr(b+24,2)}, {vr(b+26,2)}',
                    f'v_pk_add_f32 {vr(b+28,2)}, {vr(b+28,2)}, {vr(b+30,2)}', f'v_add_f32 v{b+28}, v{b+28}, v{b+29}', f'v_mov_b32 v{b+29}, v{b+28}',
                    f'v_permlane16_swap_b32 v{b+28}, v{b+29}', f'v_add_f32 v{b+28}, v{b+28}, v{b+29}', f'v_mov_b32 v{b+29}, v{b+28}',
                    f'v_permlane32_swap_b32 v{b+28}, v{b+29}', f'v_add_f32 v{b+28}, v{b+28}, v{b+29}', f'v_rcp_f32 v{b+28}, v{b+28}'])
    both(lambda b: [f'v_pk_mul_f32 {vr(b+20+e,2)}, {vr(b+20+e,2)}, {vr(b+28,2)} op_sel_hi:[1,0]' for e in range(0, 8, 2)])
    both(lambda b: [f'v_cvt_pk_bf16_f32 v{b+32+e}, v{b+20+2*e}, v{b+21+2*e}' for e in range(4)])
    a.e('s_waitcnt lgkmcnt(0)')
    both(lambda b: [f'{MF16} {vr(b+36+4*dt,4)}, {vr(b+12+4*dt,4)}, {vr(b+32,4)}, 0' for dt in range(2)])
    both(lambda b: [f'v_cvt_pk_bf16_f32 v{b+e}, v{b+36+2*e}, v{b+37+2*e}' for e in range(4)])
    for hd in range(2): a.e(f'buffer_store_dwordx4 {vr(B[hd],4)}, v{AO}, {S4(SRD_D)}, {"s49" if hd else "0"} offen {SC}')
    a.e(f's_cmp_ge_u32 s{S_WAVE}, 4', 's_cbranch_scc1 L_k1done')

    ACC = 48; RES = 96
    def acc2(t, b): return ACC + 16 * b + 4 * t
    a.e(f's_lshl_b32 s{S_T0}, s{S_TI}, 2', f's_add_u32 s{S_T0}, s{S_T0}, s{S_WAVE}', f's_lshl_b32 s{S_BA}, s{S_T0}, 17', f's_lshl_b32 s{S_T1}, s{S_T0}, 5', f's_lshl_b32 s52, s{S_T0}, {8+STS}',
        'v_lshlrev_b32 v13, 1, v4', f'v_add_u32 v13, s{S_T1}, v13',
        'v_lshlrev_b32 v12, 11, v13', 'v_lshl_add_u32 v12, v3, 4, v12', f's_lshl_b32 s{S_T0}, s{S_TJ}, 7', f'v_add_u32 v12, s{S_T0}, v12', 'v_lshlrev_b32 v14, 4, v0',
        'v_lshlrev_b32 v87, 8, v13', 'v_lshl_add_u32 v87, v3, 4, v87', f's_lshl_b32 s{S_T0}, s{S_TJ}, 19', f'v_add_u32 v87, s{S_T0}, v87')
    srd(a, SRD_A, P_WL, O_OFF, XP)
    sel(a, SRD_C, P_X, 0, P_WS, X2_OFF, XB)
    a.e(f's_lshl_b32 s{SRD_C+2}, s{SRD_C+2}, s{S_VAR}')
    sel(a, SRD_B, P_WS, 0, P_WS, LSTR, 0); a.e(f's_add_u32 s{SRD_B}, s{SRD_B}, {ST_OFF}', f's_addc_u32 s{SRD_B+1}, s{SRD_B+1}, 0', f's_mov_b32 s{SRD_B+2}, {16*32768}')
    tr128_addr(a, [8, 9, 10, 11], WO_SLOTS[0], 16, 17)
    a.e('v_lshl_add_u32 v16, v4, 1, v2', 'v_lshlrev_b32 v16, 3, v16', 'v_add_u32 v16, s52, v16', f's_mul_i32 s{S_T0}, s{S_TJ}, {STP}', f'v_add_u32 v112, s{S_T0}, v16',
        'v_lshrrev_b32 v17, 5, v0', f'v_mul_u32_u24 v17, {8*STP}, v17', 'v_add_u32 v113, v16, v17')
    a.e(f's_lshl_b32 s{S_T0}, s{S_WAVE}, 12', 'v_lshlrev_b32 v16, 8, v4', 'v_lshl_add_u32 v16, v5, 3, v16', f'v_add_u32 v16, s{S_T0}, v16',
        'v_and_b32 v17, 1, v4', 'v_bfe_u32 v18, v4, 2, 1', 'v_lshl_or_b32 v17, v18, 1, v17', 'v_lshl_add_u32 v114, v17, 5, v16',
        f's_lshl_b32 s{S_G0}, s{S_TJ}, 8', f's_lshl_b32 s{S_T1}, s{S_TI}, 2', f's_add_u32 s{S_G0}, s{S_G0}, s{S_T1}', f's_add_u32 s{S_G0}, s{S_G0}, s{S_WAVE}', f's_lshl_b32 s{S_G0}, s{S_G0}, 11')
    tr128_addr(a, [115], 0, 16, 17)
    a.e(f'v_add_u32 v115, s{S_T0}, v115')
    for t in range(1, 4): a.e(f's_add_u32 s{S_G0+t}, s{S_G0}, {t*131072}')
    for p in range(1, 8): a.e(f'v_add_u32 v{79+p}, {p*STP}, v113')
    direct_setup(a, 16)
    for t in range(2): lanemap(a, 92 + t, ('s', S_T1), t)
    for i in range(4): lanemap(a, 192 + i, i >> 1, i & 1, 2048 * i)
    a.e(f's_lshl_b32 s53, s{S_TJ}, 13', f's_add_u32 s53, s53, s{S_BA}')
    poll_setup(a, SRD_E, 119, 0, 0, [f's_lshl_b32 s{S_T0}, s{S_TI}, 4'], 16, (7, 3) if LAZY & 1 else None)
    a.e('s_waitcnt vmcnt(0)', 's_barrier', *stamp(2))
    a.e(f's_cmp_lg_u32 s{S_VAR}, 0', 's_cbranch_scc1 C_r1')
    for b in range(2):
        for P in range(2): a.e(f'buffer_load_dwordx4 {vr(RES+8*b+4*P,4)}, v12, {S4(SRD_C)}, 0 offen offset:{b*2048+P*64}')
    a.e('s_branch C_r2', 'C_r1:')
    for b in range(2):
        for P in range(2): a.e(f'buffer_load_dwordx4 {vr(RES+8*b+4*P,4)}, v87, {S4(SRD_C)}, 0 offen offset:{b*256+P*64} {LDF}')
    a.e('C_r2:')
    poll(a, SRD_E, 119, 16)
    a.e(*stamp(3))
    def init2(out):
        a.e(f's_waitcnt vmcnt({out})')
        for b in range(2):
            for P in range(2):
                r = RES + 8 * b + 4 * P
                a.e(f'v_permlane16_swap_b32 v{r}, v{r+2}', f'v_permlane16_swap_b32 v{r+1}, v{r+3}')
        for b in range(2):
            for P in range(2):
                r = RES + 8 * b + 4 * P
                a.e(*unpack4(r, r + 1, acc2(2 * P, b)), *unpack4(r + 2, r + 3, acc2(2 * P + 1, b)))
    mf2 = lambda h, bb: [f'{MF16} {vr(acc2(t,b),4)}, {vr(16+16*h+4*t,4)}, {vr(bb+4*b,4)}, {vr(acc2(t,b),4)}' for t in range(4) for b in ((0, 1) if t % 2 == 0 or not SNAKE else (1, 0))]
    if CHAIN & 2:
        mc2 = lambda p, bb: [f'{MF16} {vr(acc2(t,b),4)}, {vr(FB[p]+16*h+4*t,4)}, {vr(bb+8*h+4*b,4)}, {vr(acc2(t,b),4)}' for (t, b), h in chain_order(SN8)]
        c_direct2(a, 16, 0, 0, w_reads2([8, 9, 10, 11]), mc2, [8, 9, 10, 11], DR, D, 14, init2, 4, slots=WO_SLOTS)
    else: c_direct(a, 16, 0, 0, w_reads([8, 9, 10, 11]), mf2, [8, 9, 10, 11], DR, D, 14, init2, 4, slots=WO_SLOTS)
    a.e('s_barrier')
    srd(a, SRD_D, P_WL, X1_OFF, XP)
    srd(a, SRD_E, P_WL, H_OFF, XP)
    for b in range(2):
        d = acc2(0, b); T = 16 + 4 * b
        a.e(f'v_pk_add_f32 {vr(T,2)}, {vr(d,2)}, {vr(d+2,2)}', f'v_pk_mul_f32 {vr(T+2,2)}, {vr(d,2)}, {vr(d,2)}', f'v_pk_fma_f32 {vr(T+2,2)}, {vr(d+2,2)}, {vr(d+2,2)}, {vr(T+2,2)}')
        for e in range(4, 16, 2):
            a.e(f'v_pk_add_f32 {vr(T,2)}, {vr(T,2)}, {vr(d+e,2)}', f'v_pk_fma_f32 {vr(T+2,2)}, {vr(d+e,2)}, {vr(d+e,2)}, {vr(T+2,2)}')
        a.e(f'v_add_f32 v{24+b}, v{T}, v{T+1}', f'v_add_f32 v{26+b}, v{T+2}, v{T+3}')
    a.e('v_permlane16_swap_b32 v24, v25', 'v_permlane16_swap_b32 v26, v27', 'v_add_f32 v28, v24, v25', 'v_add_f32 v29, v26, v27',
        'v_mov_b32 v30, v28', 'v_mov_b32 v31, v29', 'v_permlane32_swap_b32 v28, v30', 'v_permlane32_swap_b32 v29, v31',
        'v_add_f32 v28, v28, v30', 'v_add_f32 v29, v29, v31', 'v_and_b32 v29, 0x7fffffff, v29',
        's_mov_b32 exec_hi, 0', f'buffer_store_dwordx2 v[28:29], v112, {S4(SRD_B)}, 0 offen {SC}', 's_mov_b64 exec, -1')
    for b in range(2):
        for t in range(4):
            r = RES + 8 * b + 2 * t; d = acc2(t, b)
            a.e(f'v_cvt_pk_bf16_f32 v{r}, v{d}, v{d+1}', f'v_cvt_pk_bf16_f32 v{r+1}, v{d+2}, v{d+3}')
    for b in range(2):
        for P in range(2):
            r = RES + 8 * b + 4 * P
            a.e(f'v_permlane16_swap_b32 v{r}, v{r+2}', f'v_permlane16_swap_b32 v{r+1}, v{r+3}')
    for t in range(1, 4): a.e(f'v_xor_b32 v{115+t}, {t << 5}, v115', f'v_xor_b32 v{120+t}, {t << 5}, v114')
    a.e('v_mov_b32 v120, v114', f's_mov_b32 s{S_CNT}, 0')
    if SS0: a.e(f's_sleep {SS0}')
    body = ['k2_poll:'] + [f'buffer_load_dwordx2 {vr(32+2*p,2)}, v{113 if p == 0 else 79+p}, {S4(SRD_B)}, 0 offen {SC}' for p in range(8)]
    body += ['s_waitcnt vmcnt(0)', 'v_min3_i32 v16, v33, v35, v37', 'v_min3_i32 v17, v39, v41, v43', 'v_min3_i32 v16, v16, v45, v47',
             'v_min_i32 v16, v16, v17', 'v_cmp_gt_i32 vcc, 0, v16', f's_add_u32 s{S_CNT}, s{S_CNT}, 1', f's_cmp_gt_u32 s{S_CNT}, {SPIN}',
             's_cbranch_scc1 k2_pdone', 's_cbranch_vccnz k2_poll']
    a.loop(body)
    a.e('k2_pdone:', *stamp(6))
    for b in range(2):
        for P in range(2): a.e(f'buffer_store_dwordx4 {vr(RES+8*b+4*P,4)}, v{192+2*P+b}, {S4(SRD_D)}, s53 offen {SC}')
    a.e('v_pk_add_f32 v[32:33], v[32:33], v[34:35]', 'v_pk_add_f32 v[36:37], v[36:37], v[38:39]', 'v_pk_add_f32 v[40:41], v[40:41], v[42:43]',
        'v_pk_add_f32 v[44:45], v[44:45], v[46:47]', 'v_pk_add_f32 v[32:33], v[32:33], v[36:37]', 'v_pk_add_f32 v[40:41], v[40:41], v[44:45]',
        'v_pk_add_f32 v[32:33], v[32:33], v[40:41]', 'v_mov_b32 v34, v32', 'v_mov_b32 v35, v33',
        'v_permlane32_swap_b32 v32, v34', 'v_permlane32_swap_b32 v33, v35', 'v_add_f32 v32, v32, v34', 'v_add_f32 v33, v33, v35')
    stats_finish(a, 32, 33, 36, True)
    a.e('v_mov_b32 v34, v32', 'v_mov_b32 v35, v33', 'v_permlane16_swap_b32 v32, v34', 'v_permlane16_swap_b32 v33, v35')
    for b in range(2):
        st = vr(32 + 2 * b, 2); d = acc2(0, b); o = 160 + 8 * b
        for e in range(0, 16, 2): a.e(f'v_pk_add_f32 {vr(d+e,2)}, {vr(d+e,2)}, {st} op_sel_hi:[1,0] neg_lo:[0,1] neg_hi:[0,1]')
        for e in range(0, 16, 2): a.e(f'v_pk_mul_f32 {vr(d+e,2)}, {vr(d+e,2)}, {st} op_sel:[0,1] op_sel_hi:[1,1]')
        for t in range(4):
            a.e(f'v_cvt_pk_bf16_f32 v{o+2*t}, v{d+4*t}, v{d+4*t+1}', f'v_cvt_pk_bf16_f32 v{o+2*t+1}, v{d+4*t+2}, v{d+4*t+3}',
                f'ds_write_b64 v{120+t}, {vr(o+2*t,2)} offset:{128*b}')
    a.e('s_waitcnt lgkmcnt(0)')
    for t in range(4): a.e(f'ds_read_b64_tr_b16 {vr(176+4*t,2)}, v{115+t}', f'ds_read_b64_tr_b16 {vr(178+4*t,2)}, v{115+t} offset:512')
    for t in range(4): a.e(f's_waitcnt lgkmcnt({6-2*t})', f'buffer_store_dwordx4 {vr(176+4*t,4)}, v{92+(t&1)}, {S4(SRD_E)}, s{S_G0+t} offen {SC}')
    a.e('s_cmp_ge_u32 s2, 224', 's_cbranch_scc1 C_k3skip')

    ACC3 = 80
    def acc3(tf, td): return ACC3 + 16 * td + 4 * tf
    tiles(a, 7, 2)
    a.e(f's_and_b32 s{S_G0+2}, s{S_WAVE}, 1', f's_lshr_b32 s{S_T2}, s{S_WAVE}, 1',
        f's_lshl_b32 s{S_T0}, s{S_TJ}, 8', f's_lshl_b32 s{S_G0}, s{S_G0+2}, 7', f's_add_u32 s{S_T0}, s{S_T0}, s{S_G0}',
        'v_lshlrev_b32 v16, 3, v5', f'v_add_u32 v16, s{S_T0}, v16')
    srd(a, SRD_C, P_B1, 0, 3584 * 2)
    a.e('v_mov_b32 v155, v16')
    srd(a, SRD_D, P_WL, U_OFF, UP)
    a.e('v_lshl_add_u32 v17, v5, 3, v6', 'v_lshlrev_b32 v17, 8, v17', 'v_lshl_add_u32 v17, v7, 3, v17', 'v_lshl_or_b32 v18, v2, 2, v6', 'v_lshl_add_u32 v17, v18, 5, v17',
        f's_lshl_b32 s{S_T0}, s{S_G0+2}, 7', f's_add_u32 s{S_T0}, s{S_T0}, 16384', f'v_xor_b32 v18, s{S_T0}, v17', f's_lshl_b32 s{S_T0}, s{S_T2}, 13', f'v_add_u32 v12, s{S_T0}, v14')
    for t in range(4): a.e(f'v_xor_b32 v{8+t}, {t << 5}, v18')
    a.e('v_bfe_u32 v19, v4, 2, 1', 'v_lshlrev_b32 v17, 11, v19', 'v_lshl_add_u32 v17, v3, 8, v17', 'v_lshrrev_b32 v18, 3, v4', 'v_lshl_add_u32 v17, v18, 6, v17',
        'v_lshl_add_u32 v152, v7, 4, v17', 'v_add_u32 v153, 128, v152', 'v_cmp_eq_u32 vcc, 1, v3', 'v_lshlrev_b32 v17, 7, v19', 'v_add_u32 v18, 640, v17', 'v_lshlrev_b32 v17, 8, v19', 'v_add_u32 v17, 896, v17',
        'v_cndmask_b32 v18, 0, v18, vcc', 'v_cndmask_b32 v17, 0, v17, vcc', 'v_add_u32 v154, v153, v17', 'v_add_u32 v153, v153, v18',
        f's_lshl_b32 s{S_T0}, s{S_TI}, 1', f's_add_u32 s{S_T0}, s{S_T0}, s{S_T2}', f's_mul_i32 s{S_T0}, s{S_T0}, 224',
        f's_lshl_b32 s{S_G0}, s{S_TJ}, 2', f's_add_u32 s{S_T0}, s{S_T0}, s{S_G0}', f's_lshl_b32 s{S_G0}, s{S_G0+2}, 1', f's_add_u32 s{S_T0}, s{S_T0}, s{S_G0}',
        f's_lshl_b32 s{S_G0}, s{S_T0}, 12', f's_add_u32 s{S_G0+1}, s{S_G0}, {112*4096}', f's_add_u32 s{S_G0+2}, s{S_G0}, 4096', f's_add_u32 s{S_G0+3}, s{S_G0+1}, 4096')
    a.e('s_waitcnt vmcnt(0)', 's_barrier', *stamp(7))
    for tf in range(4): a.e(f'buffer_load_dwordx2 {vr(144+2*tf,2)}, v155, {S4(SRD_C)}, 0 offen offset:{32*tf}')
    a.e('s_waitcnt vmcnt(0)')
    for tf in range(4):
        a.e(*unpack4(144 + 2 * tf, 145 + 2 * tf, acc3(tf, 0)))
        for td in range(1, 4): a.e(f'v_mov_b64 {vr(acc3(tf,td),2)}, {vr(acc3(tf,0),2)}', f'v_mov_b64 {vr(acc3(tf,td)+2,2)}, {vr(acc3(tf,0)+2,2)}')
    reads = [[], []]; mf = [[], []]
    for h in range(2):
        F = 16 + 32 * h
        rd = lambda dst, av: [f'ds_read_b64_tr_b16 {vr(dst,2)}, v{av} offset:{h*8192}', f'ds_read_b64_tr_b16 {vr(dst+2,2)}, v{av} offset:{h*8192+1024}']
        ra = [rd(F + 4 * t, 8 + t) for t in range(4)]
        rb = [[f'ds_read_b128 {vr(F+16+4*t,4)}, v12 offset:{(2*t+h)*1024}'] for t in range(4)]
        if SNAKE:
            reads[h] = ra[0] + rb[0] + rb[1] + ra[1] + ra[2] + rb[2] + rb[3] + ra[3]
            order = [(0,0),(0,1),(1,1),(1,0),(2,0),(2,1),(2,2),(1,2),(0,2),(0,3),(1,3),(2,3),(3,3),(3,2),(3,1),(3,0)]
        else:
            for t in range(4): reads[h] += ra[t] + rb[t]
            order = sorted([(tf, td) for tf in range(4) for td in range(4)], key=lambda x: (max(x), x))
        for tf, td in order:
            mf[h].append(f'{MF16} {vr(acc3(tf,td),4)}, {vr(F+4*tf,4)}, {vr(F+16+4*td,4)}, {vr(acc3(tf,td),4)}')
    if ONEP: a.e('s_barrier')
    if CHAIN & 1:
        F3 = (16, 156)
        r3 = lambda p: [f'ds_read_b64_tr_b16 {vr(F3[p]+32*h+4*t+2*q,2)}, v{8+t} offset:{h*8192+q*1024}' for t in range(4) for h in range(2) for q in range(2)] + \
                       [f'ds_read_b128 {vr(F3[p]+32*h+16+4*t,4)}, v12 offset:{(2*t+h)*1024}' for t in range(4) for h in range(2)]
        m3 = lambda p: [f'{MF16} {vr(acc3(tf,td),4)}, {vr(F3[p]+32*h+4*tf,4)}, {vr(F3[p]+32*h+16+4*td,4)}, {vr(acc3(tf,td),4)}' for (tf, td), h in chain_order(order)]
        c_full(a, 32, 5, 32768, r3, m3, list(range(8, 13)), 8)
    else: c_loop(a, 32, 5, 32768, reads, mf, list(range(8, 13)), True, 8)
    c1 = -2.0 * 0.7978845608028654 * 1.4426950408889634
    a.e(f'v_mov_b32 v16, {f32(c1)}', f'v_mov_b32 v17, {f32(c1 * 0.044715)}')
    if UBAL:
        a.e('v_bfe_u32 v19, v4, 2, 1', 'v_cmp_eq_u32 vcc, 1, v3', 'v_lshlrev_b32 v18, 7, v19', 'v_add_u32 v18, 1280, v18', 'v_mul_u32_u24 v19, 896, v19', 'v_sub_u32 v19, 1536, v19',
            'v_cndmask_b32 v18, 0, v18, vcc', 'v_cndmask_b32 v19, 0, v19, vcc', 'v_add3_u32 v144, v152, v18, 64', 'v_add3_u32 v145, v152, v19, 64', 'v_add_u32 v144, 64, v144', 'v_add_u32 v145, 64, v145')
    k = 0
    for td in range(4):
        for P in range(2):
            d = acc3(2 * P, td); T = 24 + 16 * (k & 1); k += 1
            O = 160 + 4 * k
            for e in range(0, 8, 2): a.e(f'v_pk_mul_f32 {vr(T+e,2)}, {vr(d+e,2)}, {vr(d+e,2)}')
            for e in range(0, 8, 2): a.e(f'v_pk_fma_f32 {vr(T+e,2)}, {vr(T+e,2)}, v[16:17], v[16:17] op_sel:[0,1,0] op_sel_hi:[1,1,0]')
            for e in range(0, 8, 2): a.e(f'v_pk_mul_f32 {vr(T+e,2)}, {vr(T+e,2)}, {vr(d+e,2)}')
            for e in range(8): a.e(f'v_exp_f32 v{T+e}, v{T+e}')
            for e in range(0, 8, 2): a.e(f'v_pk_add_f32 {vr(T+e,2)}, {vr(T+e,2)}, 1.0 op_sel_hi:[1,0]')
            for e in range(8): a.e(f'v_rcp_f32 v{T+e}, v{T+e}')
            for e in range(0, 8, 2): a.e(f'v_pk_mul_f32 {vr(T+e,2)}, {vr(T+e,2)}, {vr(d+e,2)}')
            for e in range(4): a.e(f'v_cvt_pk_bf16_f32 v{O+e}, v{T+2*e}, v{T+2*e+1}')
            a.e(f'v_permlane16_swap_b32 v{O}, v{O+2}', f'v_permlane16_swap_b32 v{O+1}, v{O+3}')
            a.e(f'buffer_store_dwordx4 {vr(O,4)}, v{((152, 144, 152, 145) if UBAL and P else (152, 153, 152, 154))[td]}, {S4(SRD_D)}, s{S_G0+(td>>1)+2*P} offen {SC}')
    a.e('C_k3skip:'); a.flush_hist()

    def acc4(aa, n): return ACC + 8 * n + 4 * aa
    tiles(a, 8, 2)
    a.e(f's_lshl_b32 s{S_T0}, s{S_TJ}, 6', f'v_add_u32 v13, s{S_T0}, v4', 'v_lshlrev_b32 v13, 1, v13',
        f's_lshl_b32 s{S_T1}, s{S_WAVE}, 4', f's_add_u32 s{S_T0}, s{S_T0}, s{S_T1}', f'v_add_u32 v16, s{S_T0}, v5',
        'v_lshlrev_b32 v12, 11, v16', 'v_lshl_add_u32 v12, v4, 4, v12', f's_lshl_b32 s{S_T0}, s{S_TI}, 8', f'v_add_u32 v12, s{S_T0}, v12',
        'v_lshlrev_b32 v186, 8, v16', 'v_and_b32 v17, 7, v0', 'v_lshl_add_u32 v186, v17, 4, v186', 'v_lshrrev_b32 v17, 3, v4', 'v_lshl_add_u32 v186, v17, 19, v186',
        f's_lshl_b32 s{S_T0}, s{S_TI}, 20', f'v_add_u32 v186, s{S_T0}, v186',
        'v_mul_u32_u24 v189, 272, v4', 'v_lshl_add_u32 v189, v5, 4, v189', f's_lshl_b32 s{S_T0}, s{S_WAVE}, 6', f's_add_u32 s{S_T0}, s{S_T0}, 1024', f'v_add_u32 v189, s{S_T0}, v189',
        f'v_add_u32 v16, s{S_T1}, v5', 'v_mul_u32_u24 v190, 272, v16', 'v_lshl_add_u32 v190, v4, 4, v190', 'v_add_u32 v190, 1024, v190',
        f's_lshl_b32 s{S_BA}, s{S_TI}, 2', f's_add_u32 s{S_BA}, s{S_BA}, s{S_WAVE}', f's_mul_i32 s{S_BA}, s{S_BA}, {56*8192}',
        's_mov_b32 s45, 8192', 's_mov_b32 s46, 16384', 's_mov_b32 s47, 24576')
    so = ['0', 's45', 's46', 's47']
    sb = ['0', 's52', 's53', 's54']
    a.e('v_lshrrev_b32 v16, 1, v4', 'v_lshlrev_b32 v16, 4, v16', 'v_lshl_add_u32 v16, v3, 8, v16', 'v_and_b32 v17, 1, v4', 'v_lshl_add_u32 v187, v17, 11, v16',
        f's_and_b32 s{S_T0}, s{S_WAVE}, 1', f's_lshl_b32 s{S_T0}, s{S_T0}, 1', f'v_add_u32 v17, s{S_T0}, v17', 'v_cmp_eq_u32 vcc, 3, v17', 'v_addc_co_u32 v17, vcc, 5, v17, vcc',
        'v_lshlrev_b32 v17, 7, v17', 'v_cmp_eq_u32 vcc, 1, v3', 'v_add_u32 v188, 128, v187', 'v_cndmask_b32 v17, 0, v17, vcc', 'v_add_u32 v188, v188, v17',
        f's_lshl_b32 s44, s{S_TJ}, 6', f's_lshl_b32 s{S_T0}, s{S_TI}, 2', f's_add_u32 s44, s44, s{S_T0}', f's_add_u32 s44, s44, s{S_WAVE}', 's_lshl_b32 s44, s44, 12', 's_add_u32 s51, s44, 131072')
    srd(a, SRD_A, P_WL, U_OFF, UP)
    srd(a, SRD_C, P_WL, X1_OFF, XP)
    srd(a, SRD_B, P_B2, 0, 4096)
    tr128_addr(a, [8, 9, 10, 11], K4_BASE, 16, 17)
    direct_setup(a, 56, UBAL)
    a.e('v_lshlrev_b32 v184, 3, v0', f's_lshl_b32 s{S_T0}, s{S_WAVE}, 9', f's_add_u32 s{S_T0}, s{S_T0}, {K4_SCR}', f'v_add_u32 v185, s{S_T0}, v184')
    poll_setup(a, SRD_E, 15, 2, 0, [f's_lshl_b32 s{S_T0}, s{S_TI}, 5'], 28, (3, 1) if LAZY & 2 else None)
    a.e('s_waitcnt vmcnt(0)', 's_barrier', *stamp(10))
    for n in range(4): a.e(f'buffer_load_ushort v{RES+16+2*n}, v13, {S4(SRD_B)}, 0 offen offset:{32*n}')
    if PF2:
        a.e('s_cmp_lt_u32 s2, 224', 's_cbranch_scc1 C_nopf')
        if PF6:
            srd(a, SRD_D, P_W1, 0, 2048 * 3584 * 2)
            a.e(f's_and_b32 s{S_T0}, s2, 3', f's_mul_i32 s{S_T0}, s{S_T0}, 14', f's_sub_u32 s{S_T1}, 3, s{S_T0}', f's_and_b32 s{S_T1}, s{S_T1}, 7',
                'v_and_b32 v17, 1, v0', 'v_lshlrev_b32 v17, 3, v17', f'v_add_u32 v17, s{S_T1}, v17', 'v_cmp_gt_u32 vcc, 14, v17', f'v_add_u32 v17, s{S_T0}, v17', 'v_lshlrev_b32 v17, 7, v17',
                f's_sub_u32 s{S_T0}, s2, 224', f's_lshr_b32 s{S_T0}, s{S_T0}, 3', f's_lshl_b32 s{S_T0}, s{S_T0}, 2', f's_add_u32 s{S_T0}, s{S_T0}, s{S_WAVE}', f's_lshl_b32 s{S_T0}, s{S_T0}, 5',
                'v_lshrrev_b32 v18, 1, v0', f'v_add_u32 v18, s{S_T0}, v18', 'v_mul_u32_u24 v18, 7168, v18', 'v_add_u32 v17, v17, v18', 'v_mov_b32 v18, 0x40000000', 'v_cndmask_b32 v17, v18, v17, vcc',
                f's_mov_b32 s{S_T0}, 0')
            for j in range(4):
                a.e(f'buffer_load_dword v18, v17, {S4(SRD_D)}, s{S_T0} offen', f's_add_u32 s{S_T0}, s{S_T0}, {512*7168}', *([f's_sleep {PF6}'] if PF6 > 1 else []))
        a.e(f's_cmp_lg_u32 s{S_VAR}, 0', 's_cbranch_scc1 C_nopf')
        srd(a, SRD_D, P_W2, 0, 3584 * 2048 * 2)
        a.e(f's_sub_u32 s{S_T0}, s2, 224', f's_lshl_b32 s{S_T0}, s{S_T0}, 2', f's_add_u32 s{S_T0}, s{S_T0}, s{S_WAVE}', f's_lshl_b32 s{S_T0}, s{S_T0}, 13', 'v_lshlrev_b32 v17, 7, v0')
        for j in range(PF2D): a.e('s_sleep 127')
        for j in range(PF2N):
            if PF2S: a.e(f's_sleep {PF2S}')
            a.e(f'buffer_load_dword v18, v17, {S4(SRD_D)}, s{S_T0} offen', f's_add_u32 s{S_T0}, s{S_T0}, {128*8192}', *(['s_waitcnt vmcnt(1)'] if j else []))
        a.e('C_nopf:')
    poll(a, SRD_E, 15, 16)
    a.e(*stamp(11))
    for n in range(4): a.e(f'buffer_load_dwordx4 {vr(RES+4*n,4)}, v{187+(n&1)}, {S4(SRD_C)}, s{51 if n >> 1 else 44} offen {LDF}')
    sel(a, SRD_E, P_WS, X2_OFF, P_OUT, 0, XP)
    a.e(f's_lshr_b32 s{SRD_E+2}, s{SRD_E+2}, s{S_VAR}')
    srd(a, SRD_B, P_WS, LSTR + RS_OFF, 8 * 32768)
    def init4(out):
        a.e(f's_waitcnt vmcnt({out})')
        for n in range(4):
            a.e(f'v_lshlrev_b32 v{RES+16+2*n}, 16, v{RES+16+2*n}')
            a.e(*unpack4(RES + 4 * n, RES + 4 * n + 1, acc4(0, n)), *unpack4(RES + 4 * n + 2, RES + 4 * n + 3, acc4(1, n)))
            for e in range(0, 8, 2): a.e(f'v_pk_add_f32 {vr(acc4(0,n)+e,2)}, {vr(acc4(0,n)+e,2)}, {vr(RES+16+2*n,2)} op_sel_hi:[1,0]')
    mf4 = lambda h, b: [f'{MF16} {vr(acc4(aa,n),4)}, {vr(b+4*aa,4)}, {vr(16+16*h+4*n,4)}, {vr(acc4(aa,n),4)}' for n in range(4) for aa in ((0, 1) if n % 2 == 0 or not SNAKE else (1, 0))]
    if CHAIN & 4:
        mc4 = lambda p, bb: [f'{MF16} {vr(acc4(aa,n),4)}, {vr(bb+8*h+4*aa,4)}, {vr(FB[p]+16*h+4*n,4)}, {vr(acc4(aa,n),4)}' for (n, aa), h in chain_order(SN8)]
        c_direct2(a, 56, K4_NS, 8192, w_reads2([8, 9, 10, 11]), mc4, [8, 9, 10, 11], DR, D, 14, init4, 12)
    else: c_direct(a, 56, K4_NS, 8192, w_reads([8, 9, 10, 11]), mf4, [8, 9, 10, 11], DR, D, 14, init4, 12)
    def st4a():
        for n in range(4):
            for e in range(4): a.e(f'v_cvt_pk_bf16_f32 v{RES+4*n+e}, v{acc4(0,n)+2*e}, v{acc4(0,n)+2*e+1}')
            a.e(f'ds_write_b128 v189, {vr(RES+4*n,4)} offset:{n*16*272}')
    def st4b(blk):
        for q in range(4): a.e(f'ds_read_b128 {vr(RES+4*q,4)}, v190 offset:{q*4*272}')
        for q in range(4):
            a.e(f's_waitcnt lgkmcnt({3-q})', f'buffer_store_dwordx4 {vr(RES+4*q,4)}, v186, {S4(SRD_E)}, 0 offen offset:{1024*q} {SC}' if blk else
                f'buffer_store_dwordx4 {vr(RES+4*q,4)}, v12, {S4(SRD_E)}, {so[q]} offen')
    a.e(f's_cmp_eq_u32 s{S_VAR}, 0', 's_cbranch_scc1 C_st')
    st4a()
    a.e('s_waitcnt lgkmcnt(0)', 's_barrier')
    st4b(False)
    a.e('s_branch C_end', 'C_st:', 's_nop 7')
    for n in range(4):
        d = acc4(0, n); T = 16 + 4 * n
        a.e(f'v_pk_add_f32 {vr(T,2)}, {vr(d,2)}, {vr(d+2,2)}', f'v_pk_mul_f32 {vr(T+2,2)}, {vr(d,2)}, {vr(d,2)}', f'v_pk_fma_f32 {vr(T+2,2)}, {vr(d+2,2)}, {vr(d+2,2)}, {vr(T+2,2)}')
        for e in (4, 6): a.e(f'v_pk_add_f32 {vr(T,2)}, {vr(T,2)}, {vr(d+e,2)}', f'v_pk_fma_f32 {vr(T+2,2)}, {vr(d+e,2)}, {vr(d+e,2)}, {vr(T+2,2)}')
        a.e(f'v_add_f32 v{32+n}, v{T}, v{T+1}', f'v_add_f32 v{36+n}, v{T+2}, v{T+3}')
    for b in (32, 36): a.e(f'v_permlane16_swap_b32 v{b}, v{b+1}', f'v_permlane16_swap_b32 v{b+2}, v{b+3}')
    for b in (32, 36): a.e(f'v_add_f32 v{b}, v{b}, v{b+1}', f'v_add_f32 v{b+2}, v{b+2}, v{b+3}')
    a.e('v_permlane32_swap_b32 v32, v34', 'v_permlane32_swap_b32 v36, v38', 'v_add_f32 v40, v32, v34', 'v_add_f32 v41, v36, v38',
        'ds_write_b64 v185, v[40:41]', f's_lshl_b32 s{S_T0}, s{S_TI}, 15', f's_lshl_b32 s{S_T1}, s{S_TJ}, 10', f's_add_u32 s{S_T0}, s{S_T0}, s{S_T1}', f's_add_u32 s{S_T0}, s{S_T0}, 512',
        )
    st4a()
    a.e('s_waitcnt lgkmcnt(0)', 's_barrier',
        f's_cmp_lg_u32 s{S_WAVE}, 0', 's_cbranch_scc1 C_nost',
        'ds_read_b64 v[44:45], v185 offset:512', 'ds_read_b64 v[46:47], v185 offset:1024', 'ds_read_b64 v[18:19], v185 offset:1536', 's_waitcnt lgkmcnt(0)',
        'v_pk_add_f32 v[40:41], v[40:41], v[44:45]', 'v_pk_add_f32 v[46:47], v[46:47], v[18:19]', 'v_pk_add_f32 v[40:41], v[40:41], v[46:47]',
        f'buffer_store_dwordx2 v[40:41], v184, {S4(SRD_B)}, s{S_T0} offen {SC}', 'C_nost:', 's_nop 1')
    st4b(True)
    k1_setup_c()
    a.e('s_waitcnt vmcnt(0)', 's_barrier', *stamp(14))
    if PF5 & 2: slow_strip()
    if ONEP: a.e('s_barrier')
    a.e(f's_mov_b32 s{S_VAR}, 1', 's_mov_b32 s51, 9', f's_add_u32 s{P_WL}, s{P_WS}, {0 if REUSE else LSTR}', f's_addc_u32 s{P_WL+1}, s{P_WS+1}, 0', 's_branch C_top1' if CWREUSE else 's_branch C_top')
    a.e('C_end:'); dump(a)
    a.e('s_endpgm')

    gx = dict(sg=S_G0, dmas=[(8 + i, 1024 * i, 'A', None) for i in range(4)])
    gw = [dict(sg=S_G0 + 2 + m, dmas=[(13 + 2 * m, 0, 'B', None), (14 + 2 * m, 1024, 'B', None)]) for m in range(3)]
    gh = dict(sg=S_G0 + 1, dmas=[(12, 0, 'A', 's[52:53]')])
    def k1_setup_l(layer):
        tiles(a, 8, 1)
        a.e(f's_mov_b32 s{S_T2}, s{S_LWV}')
        dma_w128(a, [13, 14], 6144, swz128(a), 16, 2, 3, 4)
        a.e('v_add_u32 v15, 2048, v13', 'v_add_u32 v16, 2048, v14', 'v_add_u32 v17, 4096, v13', 'v_add_u32 v18, 4096, v14',
            f's_lshl_b32 s{S_G0+2}, s{S_T2}, 11', f's_add_u32 s{S_G0+2}, s{S_G0+2}, {XT}', f's_add_u32 s{S_G0+3}, s{S_G0+2}, 8192', f's_add_u32 s{S_G0+4}, s{S_G0+2}, 16384',
            f's_lshl_b32 s{S_BB}, s{S_TJ}, 7')
        if layer == 1:
            srd(a, SRD_B, P_WQKV, 0, 1024 * 3072 * 2)
            pre_w(a, 16, 3, 2, ST1, 0, 64 * 6144, gw)
        def xaddr(v, comp):
            a.e('v_lshrrev_b32 v2, 3, v0', f'v_add_u32 v2, s{S_T0}, v2', 'v_bfe_u32 v3, v2, 1, 3', 'v_and_b32 v4, 7, v0', 'v_xor_b32 v3, v3, v4', 'v_lshlrev_b32 v3, 4, v3',
                f'v_add_u32 v2, s{S_T1}, v2', 'v_max_i32 v2, 0, v2', f'v_lshlrev_b32 v2, {8 if layer else 11}, v2', f'v_add_u32 v{v}, v2, v3')
            if comp: a.e(f'v_subrev_u32 v{v}, {comp}, v{v}')
        a.e(f's_lshl_b32 s{S_T1}, s{S_TI}, 7', f's_sub_u32 s{S_T1}, s{S_T1}, 16')
        for i in range(2):
            a.e(f's_lshl_b32 s{S_T0}, s{S_T2}, 5', f's_add_u32 s{S_T0}, s{S_T0}, {16+8*i}')
            xaddr(8 + i, 1024 * i)
            a.e(f'v_add_u32 v{10+i}, {16*(256 if layer else 2048)-2048}, v{8+i}')
        a.e(f's_lshl_b32 s{S_T0}, s{S_T2}, 3'); xaddr(12, 0)
        a.e(f's_lshl_b32 s{S_G0}, s{S_T2}, 12', f's_add_u32 s{S_G0}, s{S_G0}, 2048', f's_lshl_b32 s{S_G0+1}, s{S_T2}, 10', f's_mov_b32 s{S_BA}, 0', f's_mov_b32 s54, {524288 if layer else 128}',
            f's_cmp_eq_u32 s{S_T2}, 0', 's_cselect_b32 s52, 0xffffff00, -1', 's_mov_b32 s53, -1')
        a.e('v_mov_b32 v20, 0x3f803f80', 'v_mov_b32 v21, v20', 'v_mov_b32 v22, v20', 'v_mov_b32 v23, v20', 'v_lshlrev_b32 v24, 4, v0', f'v_add_u32 v25, {2*ST1}, v24',
            's_mov_b64 exec, 0xff', 'ds_write_b128 v24, v[20:23]', f'ds_write_b128 v24, v[20:23] offset:{ST1}', 'ds_write_b128 v25, v[20:23]', 's_mov_b64 exec, -1')
        a.e(f's_lshl_b32 s{S_T0}, s{S_T2}, 6', f'v_add_u32 v26, s{S_T0}, v0', 'v_min_u32 v26, 143, v26', f'v_add_u32 v27, s{S_T1}, v26', 'v_max_i32 v27, 0, v27',
            'v_lshrrev_b32 v2, 6, v27', 'v_and_b32 v27, 63, v27', 'v_lshlrev_b32 v27, 3, v27', 'v_lshl_add_u32 v27, v2, 10, v27', 'v_add_u32 v27, 512, v27', 'v_lshlrev_b32 v26, 3, v26', f'v_add_u32 v26, {SL}, v26')
        if layer == 1:
            srd(a, SRD_A, P_WS, X2_OFF, XP)
            srd(a, SRD_D, P_WS, LSTR + RS_OFF, 8 * 32768)
            a.e('s_waitcnt lgkmcnt(0)')
    a.e('L_start:'); a.flush_hist()
    a.e(f's_sub_u32 s{S_LWV}, s{S_WAVE}, 4', 'v_and_b32 v134, 3, v0', 'v_lshlrev_b32 v134, 6, v134')
    k1_setup_l(0)
    a.e(f's_lshl_b32 s{S_T0}, s2, 3', f's_lshl_b32 s{S_T1}, s{S_LWV}, 1', f's_add_u32 s{S_T0}, s{S_T0}, s{S_T1}',
        'v_lshrrev_b32 v72, 5, v0', f'v_add_u32 v72, s{S_T0}, v72', 'v_lshlrev_b32 v46, 11, v72', 'v_and_b32 v2, 31, v0', 'v_lshl_add_u32 v46, v2, 4, v46',
        'v_lshrrev_b32 v2, 6, v72', 'v_and_b32 v72, 63, v72', 'v_lshlrev_b32 v72, 3, v72', 'v_lshl_add_u32 v72, v2, 10, v72', f'v_add_u32 v72, {RS_OFF + 512}, v72',
        f's_cmp_eq_u32 s{S_LWV}, 0', 's_cselect_b32 s58, 0, -1', 'v_mov_b32 v64, s58', 'v_mov_b32 v65, s58', 'v_mov_b32 v66, s58', 'v_mov_b32 v67, s58',
        'v_lshrrev_b32 v2, 3, v0', f'v_lshlrev_b32 v2, {8+FSH}, v2', 'v_and_b32 v3, 7, v0', 'v_lshl_add_u32 v2, v3, 4, v2', 'v_lshrrev_b32 v4, 4, v0', 'v_and_b32 v3, 15, v0', 'v_lshlrev_b32 v3, 4, v3', f'v_lshl_add_u32 v3, v4, {8+STS}, v3',
        's_cselect_b64 vcc, -1, 0', f's_lshl_b32 s58, s2, {FSH}', f's_add_u32 s58, s58, {FL_OFF}', f's_lshl_b32 s59, s2, {10+STS}', f's_add_u32 s59, s59, {ST_OFF}',
        f's_cmp_eq_u32 s{S_LWV}, 0', 's_cselect_b32 s58, s58, s59', f's_add_u32 s59, s59, {LSTR}', f's_cmp_eq_u32 s{S_LWV}, 2', 's_cselect_b32 s58, s59, s58',
        f's_lshr_b32 s59, s2, 2', f's_mul_i32 s59, s59, {LSTR}', f's_and_b32 s{S_T0}, s2, 3', f's_lshl_b32 s{S_T0}, s{S_T0}, 10', f's_add_u32 s59, s59, s{S_T0}', f's_add_u32 s59, s59, {ST_OFF + 262144}',
        's_cmp_lt_u32 s2, 8', f's_cselect_b32 s59, s59, {128*MB}', f's_cmp_eq_u32 s{S_LWV}, 3', 's_cselect_b32 s58, s59, s58',
        'v_cndmask_b32 v47, v3, v2, vcc', 's_and_b32 s59, s2, 3', 's_lshl_b32 s59, s59, 6', 'v_mov_b32 v73, s59', 'v_mov_b32 v74, 1')
    flag_idx(a, 0, S_TI, 16, S_TJ)
    a.e(f's_mov_b32 s{S_LW}, 0', *lstamp(29), 's_waitcnt lgkmcnt(0)', *lstamp(61))
    srd(a, SRD_A, P_X, 0, XB)
    srd(a, SRD_B, P_WQKV, 0, 1024 * 3072 * 2)
    a.e('s_branch L_first')
    a.e('L_top:'); a.flush_hist()
    flag_idx(a, 0, S_TI, 16, S_TJ)
    srd(a, SRD_E, P_W1, 0, 2048 * 3584 * 2)
    gl = f'global_load_dword v29, v134, s[{P_DB}:{P_DB+1}] {SC}'
    def h_gate(n):
        if SINGLE: a.e(gl)
    def h_fetch(n):
        l = lab('st')
        if SINGLE:
            a.e(f's_cmp_lg_u32 s{S_VAR}, 0', f's_cbranch_scc1 {l}g', f's_waitcnt vmcnt({n})', 's_mov_b32 s61, 0')
            a.loop([f'{l}p:', 'v_cmp_gt_u32 vcc, 64, v29', 's_add_u32 s61, s61, 1', f's_cmp_gt_u32 s61, {SPIN}', f's_cbranch_scc1 {l}g', f's_cbranch_vccz {l}g', gl, 's_waitcnt vmcnt(0)', f's_branch {l}p'])
            a.e(f'{l}g:')
        for p in range(8):
            if p: a.e(f's_mov_b32 s{S_T0}, {p*32768}')
            a.e(f'buffer_load_dwordx2 {vr(30+2*p,2)}, v27, {S4(SRD_D)}, {"0" if p == 0 else f"s{S_T0}"} offen {LDF}')
    def h_fin(n):
        a.e(f's_waitcnt vmcnt({n})', 'v_pk_add_f32 v[30:31], v[30:31], v[32:33]', 'v_pk_add_f32 v[34:35], v[34:35], v[36:37]', 'v_pk_add_f32 v[38:39], v[38:39], v[40:41]',
            'v_pk_add_f32 v[42:43], v[42:43], v[44:45]', 'v_pk_add_f32 v[30:31], v[30:31], v[34:35]', 'v_pk_add_f32 v[38:39], v[38:39], v[42:43]',
            'v_pk_add_f32 v[30:31], v[30:31], v[38:39]')
        stats_finish(a, 30, 31, 32, False)
        a.e('ds_write_b64 v26, v[30:31]', 's_waitcnt lgkmcnt(0)')
    HK = (h_gate, h_fetch)
    def only0(f):
        def g(n):
            l = lab('e'); a.e(f's_cmp_lg_u32 s{S_VAR}, 0', f's_cbranch_scc1 {l}'); f(n); a.e(f'{l}:', 's_nop 1')
        return g
    def e_load(n):
        a.e(*lstamp(63))
        for c in range(4): a.e(f'buffer_load_dwordx4 {vr(48+4*c,4)}, v46, {S4(SRD_A)}, 0 offen offset:{512*c}')
        a.e(f'buffer_store_dwordx4 v[64:67], v47, {S4(SRD_C)}, s58 offen {SC}')
    def e_stat(n):
        a.e('v_mov_b32 v68, 0', 'v_mov_b32 v69, 0', 'v_mov_b32 v70, 0x3f803f80', f's_waitcnt vmcnt({n+1})')
        for e in range(16): a.e(f'v_dot2c_f32_bf16 v68, v70, v{48+e}', f'v_dot2c_f32_bf16 v69, v{48+e}, v{48+e}')
        for ctl in ('quad_perm:[1,0,3,2]', 'quad_perm:[2,3,0,1]', 'row_half_mirror', 'row_mirror'):
            a.e(f'v_add_f32_dpp v68, v68, v68 {ctl} row_mask:0xf bank_mask:0xf', f'v_add_f32_dpp v69, v69, v69 {ctl} row_mask:0xf bank_mask:0xf')
        a.e('v_mov_b32 v70, v68', 'v_mov_b32 v71, v69', 'v_permlane16_swap_b32 v68, v70', 'v_permlane16_swap_b32 v69, v71', 'v_add_f32 v68, v68, v70', 'v_add_f32 v69, v69, v71',
            's_mov_b32 exec_lo, 1', 's_mov_b32 exec_hi, 1', f'buffer_store_dwordx2 v[68:69], v72, {S4(SRD_C)}, 0 offen {SC}', 's_mov_b64 exec, -1')
    def e_gate(n):
        l = lab('g'); a.e(f's_cmp_lg_u32 s{S_LWV}, 0', f's_cbranch_scc1 {l}', 's_mov_b64 exec, 1', f'global_atomic_add v73, v74, s[{P_DB}:{P_DB+1}] sc1', 's_mov_b64 exec, -1', f'{l}:')
    nop = lambda n: None
    EH = (nop,) * (ELATE - 1) + (only0(e_load), only0(e_stat), nop, only0(e_gate)) if ELATE else (nop, only0(e_gate))
    a.e(f's_cmp_ge_u32 s{S_LWV}, 2', 's_cbranch_scc1 L_k1B')
    l_loop(a, 16, 3, 2, ST1, 0, 's54', 64 * 6144, [gh, gx], gw, tail=1, hooks=HK, early=('L_jA',) + EH, st=env('STK', '3') == '1')
    a.e('s_branch L_k1t', 'L_k1B:'); a.flush_hist()
    l_loop(a, 16, 3, 2, ST1, 0, 's54', 64 * 6144, [gx], gw, tail=1, hooks=HK, early=('L_jB',) + EH)
    a.e('s_branch L_k1t')
    a.e('L_first:'); a.flush_hist()
    a.e(f's_cmp_ge_u32 s{S_LWV}, 2', 's_cbranch_scc1 L_firstB')
    for gA, n, tag in (([gh, gx], 11, 'A'), ([gx], 10, 'B')):
        if tag == 'B': a.e('L_firstB:'); a.flush_hist()
        iss = lambda: issue(16, 3, ST1, 0, 's54', 64 * 6144, gA, gw)
        a.e(*iss(), *lstamp(62))
        srd(a, SRD_C, P_WS, 0, 112 * MB)
        srd(a, SRD_D, P_WS, RS_OFF, 32768)
        a.e(f's_mov_b32 s{P_WL}, s{P_WS}', f's_mov_b32 s{P_WL+1}, s{P_WS+1}', *iss())
        if not ELATE: e_load(n)
        a.e('s_barrier', f's_waitcnt vmcnt({n if ELATE else n+5})', 's_barrier', *iss())
        a.e(*lstamp(20))
        if not ELATE: e_stat(n)
        a.e(*lstamp(21), 's_mov_b32 s60, 0', f's_branch L_j{tag}')
    a.e('L_k1t:'); a.flush_hist()
    h_fin(0)
    a.e(f's_mov_b32 s{S_T2}, s{S_LWV}')
    dma_w128(a, [130, 131], 2048, swz128(a), 16, 2, 3, 4)
    srd(a, SRD_B, P_WO, 0, 1024 * 1024 * 2)
    a.e(*INITK, f's_lshl_b32 s{S_G0+8}, s{S_LWV}, 11', f's_lshl_b32 s53, 0x303, s{S_PHI}', 's_lshr_b32 s53, s53, 8')
    def wo(t0, t1):
        for t in range(t0, t1):
            if LAZY & 1:
                p, w = SEQ2[t]
                kc = [f's_bitcmp1_b32 s53, {p}', f's_cselect_b32 s{S_K}, {8 - 8*w}, {8*w}', f's_add_u32 s{S_K}, s{S_K}, {p}']
            else: kc = next_k(16)
            a.e(*kc, f's_lshl_b32 s{S_OB}, s{S_K}, 17', f's_add_u32 s{S_OB}, s{S_OB}, s{S_BB}', f's_add_u32 m0, s{S_G0+8}, {WO_SLOTS[t]}',
                f'buffer_load_dwordx4 v130, {S4(SRD_B)}, s{S_OB} offen lds', f'buffer_load_dwordx4 v131, {S4(SRD_B)}, s{S_OB} offen offset:1024 lds')
    wo(0, 4)
    def pf3(j):
        if PF3 > j: a.e(f's_add_u32 s{S_T0}, s54, {j*8*MB}', f'buffer_load_dword v135, v132, {S4(SRD_E)}, s{S_T0} offen')
    if PF3:
        a.e(f's_cmp_eq_u32 s{S_VAR}, 0', f's_cselect_b32 s{SRD_E+2}, s{SRD_E+2}, 0', 's_lshl_b32 s54, s2, 2', f's_add_u32 s54, s54, s{S_LWV}', 's_lshl_b32 s54, s54, 13',
            f's_add_u32 s54, s54, {W1_K0}', 'v_lshlrev_b32 v132, 7, v0')
    pf3(0)
    x = 1 if PF3 else 0
    if PFT:
        srd(a, SRD_C, P_W2, 0, 3584 * 2048 * 2)
        a.e(f's_cmp_eq_u32 s{S_VAR}, 0', f's_cselect_b32 s{SRD_E+2}, s{SRD_E+2}, 0', f's_cselect_b32 s{SRD_C+2}, s{SRD_C+2}, 0',
            's_lshr_b32 s54, s2, 3', 's_lshl_b32 s54, s54, 2', f's_add_u32 s54, s54, s{S_LWV}', 's_lshl_b32 s54, s54, 18', 'v_lshlrev_b32 v132, 12, v0', 'v_add_u32 v132, s54, v132',
            f'v_subrev_u32 v133, {16*MB}, v132', f'buffer_load_dword v135, v132, {S4(SRD_E)}, 0 offen', f'buffer_load_dword v135, v133, {S4(SRD_C)}, 0 offen')
        x += 2
    a.e(f's_waitcnt vmcnt({8+x})', 's_barrier')
    wo(4, 7)
    only0(lambda n: (lane_fields(a), attn_static()))(0)
    a.e('s_waitcnt lgkmcnt(0)', 's_barrier')
    pf3(1)
    wo(7, 12)
    a.e('s_branch attn')
    a.e('L_k1done:'); a.flush_hist()
    publish_pre(a)
    a.e('s_waitcnt vmcnt(0)', 's_barrier')
    publish(a, 2)
    wo(12, 16)
    flag_idx(a, 1, S_TJ, 16, S_TI)
    if ONEP: a.e('s_barrier')
    a.e('s_waitcnt vmcnt(0)', 's_barrier')
    if LAZY & 1:
        poll_setup(a, SRD_C, 14, 0, 0, [f's_lshl_b32 s{S_T0}, s{S_TI}, 4'], 16)
        poll(a, SRD_C, 14, 15, sleep=False)
    g4 = [dict(sg=S_G0 + 1, dmas=[(9, 0, 'B', None), (10, 1024, 'B', None)])]
    def k4_setup_l():
        tiles(a, 8, 2)
        a.e(f's_mov_b32 s{S_T2}, s{S_LWV}', f's_lshl_b32 s{S_G0+1}, s{S_T2}, 11')
        dma_w128(a, [9, 10], 4096, swz128(a), 16, 2, 3, 4)
        a.e(f's_lshl_b32 s{S_BB}, s{S_TJ}, 7')
        srd(a, SRD_B, P_W2, 0, 3584 * 2048 * 2)
        if ROLL & 2:
            a.e(f's_lshr_b32 s{S_T0}, s2, 3', f's_lshl_b32 s{S_T0}, s{S_T0}, 2', f's_add_u32 s{S_T0}, s{S_T0}, s{S_LWV}', f's_lshl_b32 s{S_T0}, s{S_T0}, 2',
                'v_and_b32 v2, 3, v0', 'v_lshrrev_b32 v3, 2, v0', 'v_lshl_add_u32 v2, v3, 9, v2', f'v_add_u32 v2, s{S_T0}, v2', 'v_lshlrev_b32 v2, 12, v2',
                f's_and_b32 s{S_T0}, s2, 3', f's_lshl_b32 s{S_T0}, s{S_T0}, 10', f's_add_u32 s{S_T0}, s{S_T0}, 384', f'v_add_u32 v2, s{S_T0}, v2', 'v_mov_b32 v3, 0x40000000',
                'v_cmp_gt_u32 vcc, 4, v0', 'v_cmp_gt_u32 s[58:59], 12, v0', 'v_cndmask_b32 v24, v3, v2, vcc', 'v_cndmask_b32 v25, v3, v2, s[58:59]',
                's_mov_b32 s58, 0x40000000', f's_mov_b32 s59, {2*512*4096}', f's_cmp_lt_u32 s{S_PHI}, {K4_AH}', f's_cselect_b32 s59, {3*512*4096}, s59')
    a.e('s_cmp_ge_u32 s2, 224', 's_cbranch_scc1 L_k3skip')
    tiles(a, 7, 2)
    a.e(f's_lshl_b32 s{S_G0}, s{S_LWV}, 12', f's_add_u32 s{S_G0+1}, s{S_G0}, 16384',
        'v_lshrrev_b32 v2, 4, v0', 'v_lshlrev_b32 v3, 1, v2', 'v_and_b32 v4, 15, v0', 'v_xor_b32 v3, v3, v4', 'v_lshlrev_b32 v3, 4, v3',
        f's_lshl_b32 s{S_T0}, s{S_LWV}, 4', f'v_add_u32 v2, s{S_T0}, v2', f's_mov_b32 s{S_T0}, 7168', f'v_mul_lo_u32 v2, v2, s{S_T0}',
        'v_add_u32 v9, v2, v3', 'v_xor_b32 v3, 128, v3', 'v_add_u32 v11, v2, v3',
        f'v_add_u32 v10, {4*7168-1024}, v9', f'v_add_u32 v12, {3*(4*7168-1024)}, v11', f'v_add_u32 v11, {2*(4*7168-1024)}, v11',
        f's_lshl_b32 s{S_BA}, s{S_TI}, 2', f's_add_u32 s{S_BA}, s{S_BA}, s{S_LWV}', f's_lshl_b32 s{S_BA}, s{S_BA}, 18', f's_lshl_b32 s{S_BB}, s{S_TJ}, 8')
    for i in range(4): lanemap(a, 20 + i, i & 1, i >> 1, (i & 1) * 2048 + (i >> 1) * 131072 - 1024 * i)
    srd(a, SRD_A, P_WL, H_OFF, XP)
    srd(a, SRD_B, P_W1, 0, 2048 * 3584 * 2)
    g3a = [dict(sg=S_G0, dmas=[(20 + i, 1024 * i, 'A', None) for i in range(4)])]
    g3w = [dict(sg=S_G0 + 1, dmas=[(9 + i, 1024 * i, 'B', None) for i in range(4)])]
    poll_setup(a, SRD_C, 14, 1, 0, [f's_lshl_b32 s{S_T0}, s{S_TI}, 5'], 32)
    if ROLL & 1:
        a.e(f's_and_b32 s{S_T0}, s2, 3', f's_mul_i32 s{S_T0}, s{S_T0}, 14', f's_sub_u32 s{S_T1}, 3, s{S_T0}', f's_and_b32 s{S_T1}, s{S_T1}, 7',
            'v_and_b32 v2, 1, v0', 'v_lshlrev_b32 v2, 3, v2', f'v_add_u32 v2, s{S_T1}, v2', 'v_cmp_gt_u32 vcc, 14, v2', f'v_add_u32 v2, s{S_T0}, v2', 'v_lshlrev_b32 v2, 7, v2',
            f's_lshr_b32 s{S_T0}, s2, 3', f's_lshl_b32 s{S_T0}, s{S_T0}, 2', f's_add_u32 s{S_T0}, s{S_T0}, s{S_LWV}', f's_mul_i32 s{S_T0}, s{S_T0}, 5',
            'v_lshrrev_b32 v3, 1, v0', 'v_cmp_gt_u32 s[58:59], 5, v3', 'v_cmp_gt_u32 s[60:61], 15, v3', 'v_mul_u32_u24 v4, 52, v3', 'v_lshrrev_b32 v4, 8, v4', 'v_mul_u32_u24 v4, 507, v4', 'v_add_u32 v3, v3, v4',
            f'v_add_u32 v3, s{S_T0}, v3', 'v_mul_u32_u24 v3, 7168, v3', 'v_add_u32 v2, v2, v3', 'v_mov_b32 v3, 0x40000000',
            's_and_b64 s[58:59], s[58:59], vcc', 's_and_b64 s[60:61], s[60:61], vcc', 'v_cndmask_b32 v24, v3, v2, s[58:59]', 'v_cndmask_b32 v25, v3, v2, s[60:61]',
            's_mov_b32 s58, 0x40000000', f's_mov_b32 s59, {2*512*7168}', f's_cmp_lt_u32 s{S_PHI}, 3', f's_cselect_b32 s59, {3*512*7168}, s59')
    for j in range(PF4):
        a.e(f's_lshr_b32 s{S_T0}, s2, 3', f's_add_u32 s{S_T0}, s{S_T0}, {28*j}', f's_lshl_b32 s{S_T0}, s{S_T0}, 2', f's_add_u32 s{S_T0}, s{S_T0}, s{S_LWV}', f's_lshl_b32 s{S_T0}, s{S_T0}, 6',
            f'v_add_u32 v2, s{S_T0}, v0', 'v_mul_u32_u24 v3, 74899, v2', 'v_lshrrev_b32 v3, 20, v3', 'v_mul_u32_u24 v4, 14, v3', 'v_sub_u32 v4, v2, v4',
            'v_add_u32 v3, 192, v3', 'v_mul_u32_u24 v3, 7168, v3', 'v_lshl_add_u32 v3, v4, 7, v3', f's_and_b32 s{S_T0}, s2, 3', f's_mul_i32 s{S_T0}, s{S_T0}, 1792', f's_lshl_b32 s{S_T1}, s{S_VAR}, 30', f's_add_u32 s{S_T0}, s{S_T0}, s{S_T1}', f'v_add_u32 v{16+j}, s{S_T0}, v3')
    a.e('s_barrier')
    if not LATEW: pre_w(a, 32, 5, 3, 32768, 0, 64 * 7168, g3w)
    a.e('s_barrier')
    publish(a, 2)
    if LATEW: pre_w(a, 32, 5, 3, 32768, 0, 64 * 7168, g3w)
    if ROLL & 1: a.e(f'buffer_load_dword v135, v25, {S4(SRD_B)}, 0 offen')
    for j in range(PF4): a.e(f'buffer_load_dword v135, v{16+j}, {S4(SRD_B)}, 0 offen')
    flag_idx(a, 2, S_TI, 32, S_TJ)
    poll(a, SRD_C, 14, 15)
    l_loop(a, 32, 5, 3, 32768, 0, 4096, 64 * 7168, g3a, g3w, st=env('STK', '3') == '3', roll=(24, 512 * 7168) if ROLL & 1 else None)
    k4_setup_l()
    a.e('s_branch L_k4', 'L_k3skip:'); a.flush_hist()
    k4_setup_l()
    a.e('s_barrier')
    a.e('L_k4:'); a.flush_hist()
    if ROLL & 2: a.e(f'buffer_load_dword v135, v25, {S4(SRD_B)}, 0 offen')
    pre_w(a, 56, K4_NS, K4_AH, 8192, K4_BASE, 64 * 4096, g4)
    a.e('s_barrier')
    publish(a, 2)
    flag_idx(a, 3, S_TJ, 8, S_TI)
    if ONEP: a.e('s_barrier')
    def full4(n):
        poll_setup(a, SRD_C, 14, 2, 0, [f's_lshl_b32 s{S_T0}, s{S_TI}, 5'], 28)
        poll(a, SRD_C, 14, 15, sleep=False, bar=False)
    l_loop(a, 56, K4_NS, K4_AH, 8192, K4_BASE, 0, 64 * 4096, [], g4, first=(lambda n: None, full4) if LAZY & 2 else ())
    a.e(f's_cmp_lg_u32 s{S_VAR}, 0', 's_cbranch_scc1 L_end')
    k1_setup_l(1)
    poll_setup(a, SRD_C, 28, 3, 0, [f's_lshl_b32 s{S_T0}, s{S_TI}, 4', f's_sub_u32 s{S_T0}, s{S_T0}, 8'], 24)
    a.e('s_barrier', 's_barrier')
    publish(a, 2)
    poll(a, SRD_C, 28, 29)
    a.e(f's_mov_b32 s{S_VAR}, 1', f's_add_u32 s{P_WL}, s{P_WS}, {0 if REUSE else LSTR}', f's_addc_u32 s{P_WL+1}, s{P_WS+1}, 0', 's_branch L_top')
    a.e('L_end:')
    if PROF: a.e(f's_cmp_lg_u32 s{S_LWV}, 0', f's_cbranch_scc1 {kn}_end', 's_lshl_b32 s58, s2, 8', f's_add_u32 s58, s58, {PR_OFF + MB}', 'v_lshlrev_b32 v254, 2, v0', 'v_add_u32 v254, s58, v254', f'global_store_dword v254, v255, s[{P_WS}:{P_WS+1}]')
    a.e(f'{kn}_end:', 's_endpgm')

def dump(a):
    if not PROF: return
    a.e('s_waitcnt vmcnt(0)', *stamp(14), f's_cmp_lg_u32 s{S_WAVE}, 0', 's_cbranch_scc1 nodump', 's_lshl_b32 s58, s2, 8', f's_add_u32 s58, s58, {PR_OFF}',
        'v_lshlrev_b32 v254, 2, v0', 'v_add_u32 v254, s58, v254', f'global_store_dword v254, v{PV}, s[{P_WS}:{P_WS+1}]', 'nodump:')

def gen_k0(a):
    a.e('.p2align 8', 'k0_kernel:', 's_cmp_ge_u32 s2, 256', 's_cbranch_scc1 k0_end',
        's_load_dwordx16 s[64:79], s[0:1], 0', 's_load_dwordx2 s[84:85], s[0:1], 80',
        'v_lshrrev_b32 v1, 6, v0', 'v_lshlrev_b32 v20, 4, v0', 'v_and_b32 v0, 63, v0', f'v_readfirstlane_b32 s{S_WAVE}, v1',
        's_lshl_b32 s30, s2, 3', f's_add_u32 s30, s30, s{S_WAVE}',
        's_lshl_b32 s31, s30, 11', 'v_lshlrev_b32 v2, 5, v0',
        's_lshl_b32 s32, s2, 2', f's_and_b32 s33, s{S_WAVE}, 3', 's_add_u32 s32, s32, s33', 's_lshl_b32 s32, s32, 13', 'v_lshlrev_b32 v3, 7, v0', 'v_add_u32 v3, s32, v3',
        f'v_subrev_u32 v4, {1024*3072*2}, v3', 's_waitcnt lgkmcnt(0)')
    srd(a, SRD_A, P_X, 0, XB)
    a.e(f'buffer_load_dwordx4 v[8:11], v2, {S4(SRD_A)}, s31 offen', f'buffer_load_dwordx4 v[12:15], v2, {S4(SRD_A)}, s31 offen offset:16')
    KW = int(env('K0WARM', '1'))
    srd(a, SRD_B, P_WQKV, 0, 1024 * 3072 * 2 * KW)
    srd(a, SRD_C, P_WO, 0, 1024 * 1024 * 2 * KW)
    srd(a, SRD_E, P_W1, 0, W1_K0)
    a.e(f's_sub_u32 s33, s{S_WAVE}, 4', 's_lshl_b32 s33, s33, 8', 's_add_u32 s33, s33, s2', 's_lshl_b32 s33, s33, 13', 'v_lshlrev_b32 v7, 7, v0',
        f's_cmp_ge_u32 s{S_WAVE}, 4', 's_cbranch_scc1 k0_nw', f'buffer_load_dword v5, v3, {S4(SRD_B)}, 0 offen', f'buffer_load_dword v6, v4, {S4(SRD_C)}, 0 offen', 's_branch k0_nx',
        'k0_nw:', f'buffer_load_dword v5, v7, {S4(SRD_E)}, s33 offen', 'k0_nx:')
    if CODEPF:
        a.e(f's_cmp_lg_u32 s{S_WAVE}, 7', 's_cbranch_scc1 k0_nc', 's_getpc_b64 s[40:41]', 'k0_pc:', 's_add_u32 s40, s40, mega_kernel-k0_pc', 's_addc_u32 s41, s41, 0',
            's_lshr_b32 s42, s2, 3', 's_lshl_b32 s42, s42, 11', 'v_and_b32 v25, 15, v0', 'v_lshlrev_b32 v25, 7, v25', 'v_add_u32 v25, s42, v25',
            'v_min_u32 v25, mega_end-mega_kernel, v25', 'global_load_dword v26, v25, s[40:41]', 'k0_nc:')
    srd(a, SRD_D, P_WS, 0, 64 * MB)
    a.e(f's_cmp_eq_u32 s{S_WAVE}, 0', 's_cselect_b32 s33, 0, -1', 'v_mov_b32 v16, s33', 'v_mov_b32 v17, s33', 'v_mov_b32 v18, s33', 'v_mov_b32 v19, s33',
        f's_mov_b32 s34, {ST_OFF}', f's_cselect_b32 s34, {FL_OFF}, s34', f's_cmp_eq_u32 s{S_WAVE}, 2', f's_cselect_b32 s34, {LSTR + ST_OFF}, s34', 's_lshl_b32 s35, s2, 10', 's_add_u32 s34, s34, s35',
        'v_lshlrev_b32 v20, 4, v0', f's_cmp_ge_u32 s{S_WAVE}, 3', 's_cbranch_scc1 k0_nr', f'buffer_store_dwordx4 v[16:19], v20, {S4(SRD_D)}, s34 offen', 'k0_nr:')
    a.e('v_mov_b32 v22, 0', 'v_mov_b32 v23, 0', 'v_mov_b32 v21, 0x3f803f80', 'v_lshrrev_b32 v24, 3, v0', 'v_lshlrev_b32 v24, 14, v24', 's_lshl_b32 s36, s30, 3', f's_add_u32 s36, s36, {RS_OFF}',
        's_waitcnt vmcnt(0)')
    for e in range(8): a.e(f'v_dot2c_f32_bf16 v22, v21, v{8+e}', f'v_dot2c_f32_bf16 v23, v{8+e}, v{8+e}')
    for ctl in ('quad_perm:[1,0,3,2]', 'quad_perm:[2,3,0,1]', 'row_half_mirror'):
        a.e(f'v_add_f32_dpp v22, v22, v22 {ctl} row_mask:0xf bank_mask:0xf', f'v_add_f32_dpp v23, v23, v23 {ctl} row_mask:0xf bank_mask:0xf')
    a.e('s_mov_b32 exec_lo, 0x01010101', 's_mov_b32 exec_hi, 0x01010101', f'buffer_store_dwordx2 v[22:23], v24, {S4(SRD_D)}, s36 offen', 'k0_end:', 's_endpgm')

def main(out):
    a = Asm()
    if not SINGLE: gen_k0(a); a.flush_hist()
    gen_mega(a)
    info = {} if SINGLE else {'k0_kernel': (32, 0)}
    info[MEGA] = (256, 163840)
    ref = open(os.path.join(os.path.dirname(os.path.abspath(__file__)), '..', NAME + '.s.ref')).read().splitlines()
    hdr = [l for l in ref if l.startswith(';') and '@launch' not in l and 'Override launch' not in l and 'grid=ceil' not in l]
    if SINGLE: hdr += ['; @launch grid=(256,1,1) block=(512,1,1) lds=163840']
    else: hdr += [f'; @launch kernel={n} grid=(256,1,1) block=(512,1,1) lds={v[1]}' for n, v in info.items()]
    s = '\n'.join(hdr) + '\n; generated by gen/gen2.py\n.amdgcn_target "amdgcn-amd-amdhsa--gfx950"\n.text\n'
    if SINGLE: s += f'.globl {MEGA}\n.type {MEGA},@function\n'
    s += a.text() + '.section .rodata,"a"\n'
    for n, (vg, _) in info.items():
        s += f'''.p2align 6
.amdhsa_kernel {n}
  .amdhsa_next_free_vgpr {vg}
  .amdhsa_next_free_sgpr 102
  .amdhsa_accum_offset {vg}
  .amdhsa_group_segment_fixed_size 0
  .amdhsa_kernarg_size 88
  .amdhsa_user_sgpr_count 2
  .amdhsa_user_sgpr_kernarg_segment_ptr 1
  .amdhsa_system_sgpr_workgroup_id_x 1
.end_amdhsa_kernel
'''
    open(out, 'w').write(s)

if __name__ == '__main__':
    main(sys.argv[1])
```

```python
import sys, os, struct
sys.path.insert(0, os.path.dirname(os.path.abspath(__file__)))
from asmlib import *
import gen as G
from gen import (NAME, MB, XB, UB, f32, env, S4, srd, next_k, adv_s, sched, bundle, spread, lane_fields, tr128_addr, swz128, unpack4,
                 dma_w128, stats_finish, MF16, S_VAR, S_WAVE, S_LI, S_LJ, S_PHI, SRD_A, SRD_B, SRD_C, SRD_D, SRD_E, S_TI, S_TJ,
                 S_P, S_W, S_T0, S_K, S_BA, S_BB, S_OA, S_OB, S_LW, S_CNT, S_T1, S_T2, S_DELTA, S_CUR, S_G0,
                 P_X, P_WQKV, P_WO, P_W1, P_B1, P_W2, P_B2, P_OUT, P_WS)

LSTR = 48 * MB
O_OFF, X1_OFF, H_OFF, U_OFF, ST_OFF, RS_OFF = 0, 8 * MB, 16 * MB, 24 * MB, 40 * MB, 41 * MB
X2_OFF, FL_OFF, PR_OFF = 96 * MB, 104 * MB, 128 * MB
XP = 2 * XB; UP = 2 * UB
STP = 16384 + int(env('STPAD', '0')); FSH = int(env('FSH', '7')); STS = int(env('STS', '0'))
P_WL = 82
S_LWV, S_FLG = 57, 56
SC = 'sc0 sc1'
LDF = env('LDF', 'sc1')
PROF = env('PROF') == '1'
PV = 255
SINGLE = env('SINGLE', '1') == '1'
MEGA = NAME + '_kernel' if SINGLE else 'mega_kernel'
P_DB = 62
SPIN = 1000000
EXP = env('EXP', '')
SNAKE = int(env('SNAKE', '1')); CWREUSE = int(env('CWREUSE', '1')); CHAIN = int(env('CHAIN', '1'))
ONEP = int(env('ONEP', '1')); PS0 = int(env('PS0', '8')); PS1 = int(env('PS1', '0')); PP = int(env('PP', '1')); PSL = int(env('PSL', '4'))

def stamp(k):
    if not PROF: return []
    return ['s_memrealtime s[58:59]', 's_memtime s[56:57]', 's_waitcnt lgkmcnt(0)', f's_lshl_b32 s60, s{S_VAR}, 4', f's_add_u32 m0, s60, {k+1}', 's_nop 0', f'v_writelane_b32 v{PV}, s58, m0',
            's_add_u32 m0, m0, 32', 's_nop 0', f'v_writelane_b32 v{PV}, s56, m0']
G.stamp = lambda idx=None: []
G.cstamp = lambda idx: []

def lstamp(k): return ['s_memrealtime s[60:61]', 's_waitcnt lgkmcnt(0)', f'v_writelane_b32 v255, s60, {k}'] if PROF else []

def tiles(a, LN, xshift):
    a.e(f's_lshr_b32 s{S_T0}, s2, 3')
    if LN == 8: a.e(f's_lshr_b32 s{S_LI}, s{S_T0}, 3', f's_and_b32 s{S_LJ}, s{S_T0}, 7')
    else: a.e(f's_mul_i32 s{S_LI}, s{S_T0}, {65536 // LN + 1}', f's_lshr_b32 s{S_LI}, s{S_LI}, 16', f's_mul_i32 s{S_LJ}, s{S_LI}, {LN}', f's_sub_u32 s{S_LJ}, s{S_T0}, s{S_LJ}')
    a.e(f's_lshl_b32 s{S_PHI}, s{S_LI}, 1', f's_add_u32 s{S_PHI}, s{S_PHI}, s{S_LJ}', f's_and_b32 s{S_PHI}, s{S_PHI}, 7',
        f's_and_b32 s{S_T0}, s2, 7', f's_lshr_b32 s{S_TI}, s{S_T0}, {xshift}', f's_lshl_b32 s{S_TI}, s{S_TI}, 2', f's_add_u32 s{S_TI}, s{S_TI}, s{S_LI}',
        f's_and_b32 s{S_TJ}, s{S_T0}, {(1 << xshift) - 1}')
    if (TJS >> {(8, 1): 0, (7, 2): 1, (8, 2): 2}[(LN, xshift)]) & 1: a.e(f's_lshl_b32 s{S_T0}, s{S_LJ}, {xshift}', f's_add_u32 s{S_TJ}, s{S_TJ}, s{S_T0}', *INITK)
    else: a.e(f's_mul_i32 s{S_TJ}, s{S_TJ}, {LN}', f's_add_u32 s{S_TJ}, s{S_TJ}, s{S_LJ}', *INITK)
TJS = int(env('TJS', '0'))
INITK = [f's_mov_b32 s{S_P}, 7', f's_mov_b32 s{S_W}, -1']

def flag_idx(a, ph, hi, mul, lo):
    a.e(f's_lshl_b32 s{S_FLG}, s{S_VAR}, 10', f's_mul_i32 s{S_T0}, s{hi}, {mul}', f's_add_u32 s{S_FLG}, s{S_FLG}, s{S_T0}', f's_add_u32 s{S_FLG}, s{S_FLG}, s{lo}',
        f's_add_u32 s{S_FLG}, s{S_FLG}, {ph*256}', f's_lshl_b32 s{S_FLG}, s{S_FLG}, {FSH}')

_n = [0]
def lab(p): _n[0] += 1; return f'{p}{_n[0]}'

def publish_pre(a):
    srd(a, SRD_E, P_WS, FL_OFF, 8 * 256 * 256)
    a.e('v_mov_b32 v136, 0', 'v_mov_b32 v137, 1', f's_cmp_eq_u32 s{S_LWV}, 0', f's_cselect_b32 s{SRD_E+2}, s{SRD_E+2}, 0')

def publish(a, vt=None):
    a.e('s_mov_b64 exec, 1', f'buffer_store_dword v137, v136, {S4(SRD_E)}, s{S_FLG} offen {SC}', 's_mov_b64 exec, -1')

def poll_setup(a, sr_, va, ph, dl, base_lines, n, skip=None):
    srd(a, sr_, P_WS, FL_OFF, 8 * 256 * 256)
    a.e(f'v_min_u32 v{va}, {n-1}, v0')
    if skip: a.e(f'v_and_b32 v17, {skip[0]}, v{va}', f'v_cmp_eq_u32 vcc, {skip[1]}, v17', f'v_subbrev_co_u32 v{va}, vcc, 0, v{va}, vcc')
    a.e(*base_lines, f'v_add_u32 v{va}, s{S_T0}, v{va}', f'v_max_i32 v{va}, 0, v{va}', f'v_lshlrev_b32 v{va}, {FSH}, v{va}',
        f's_lshl_b32 s55, s{S_VAR}, {10+FSH}', f's_add_u32 s55, s55, {(dl * 4 + ph) << (8 + FSH)}')

def poll(a, sr_, va, vt, sleep=True, bar=True):
    l = lab('poll')
    ld = lambda v: f'buffer_load_dword v{v}, v{va}, {S4(sr_)}, s55 offen {SC}'
    a.e(f's_mov_b32 s{S_CNT}, 0')
    if ONEP: a.e(f's_and_b32 s{S_T0}, s{S_WAVE}, 3', f's_cmp_lg_u32 s{S_T0}, 0', f's_cbranch_scc1 {l}d')
    if PS0: a.e(f's_sleep {PS0 if sleep else PS0 // 2}')
    if PP <= 1:
        a.loop([f'{l}:'] + ([f's_sleep {PS1}'] if PS1 else []) + [ld(vt), 's_waitcnt vmcnt(0)', f'v_cmp_eq_u32 vcc, 0, v{vt}',
                f's_add_u32 s{S_CNT}, s{S_CNT}, 1', f's_cmp_gt_u32 s{S_CNT}, {SPIN}', f's_cbranch_scc1 {l}d', f's_cbranch_vccnz {l}'])
    else:
        R = [214 + i for i in range(PP)]
        for i in range(PP - 1): a.e(ld(R[i]), f's_sleep {PSL}')
        body = [f'{l}:']
        for i in range(PP):
            body += [ld(R[(i + PP - 1) % PP]), f's_waitcnt vmcnt({PP-1})', f'v_cmp_eq_u32 vcc, 0, v{R[i]}', f's_cbranch_vccz {l}d']
        a.loop(body + [f's_add_u32 s{S_CNT}, s{S_CNT}, 1', f's_cmp_le_u32 s{S_CNT}, {SPIN}', f's_cbranch_scc1 {l}'])
    a.e(f'{l}d:')
    if ONEP and bar: a.e('s_barrier')

def dma_groups(groups, lw_s):
    L = []
    for g in groups:
        L.append(f's_add_u32 m0, s{lw_s}, s{g["sg"]}')
        for (v, imm, st, ex) in g['dmas']:
            srdn, so, fl = (SRD_A, S_OA, LDF) if st == 'A' else (SRD_B, S_OB, '')
            if ex: L.append(f's_mov_b64 exec, {ex}')
            L.append(f'buffer_load_dwordx4 v{v}, {S4(srdn)}, s{so} offen offset:{imm} {fl} lds')
            if ex: L.append('s_mov_b64 exec, -1')
    return L

def issue(NK, NS, stage, base, stepA, stepB, gA, gW, roll=None):
    L = next_k(NK)
    if NK == 56 and LAZY & 2:
        tab = sum(v << (4 * i) for i, v in enumerate(PERM4))
        L = L[:-1] + [f's_lshl_b32 s{S_T0}, s{S_P}, 2', f's_lshr_b32 s{S_T0}, {tab}, s{S_T0}', f's_and_b32 s{S_T0}, s{S_T0}, 7', f's_add_u32 s{S_K}, s{S_K}, s{S_T0}']
    if gA: L += [f's_mul_i32 s{S_OA}, s{S_K}, {stepA}', f's_add_u32 s{S_OA}, s{S_OA}, s{S_BA}']
    if gW: L += [f's_mul_i32 s{S_OB}, s{S_K}, {stepB}', f's_add_u32 s{S_OB}, s{S_OB}, s{S_BB}']
    if roll:
        L += [f's_cmp_eq_u32 s{S_P}, s{S_PHI}', f's_cselect_b32 s{S_T0}, s59, s58', f's_cselect_b32 s{S_T1}, {roll[1]}, 0', f's_add_u32 s59, s59, s{S_T1}',
              f'buffer_load_dword v135, v{roll[0]}, {S4(SRD_B)}, s{S_T0} offen']
    if not (EXP == 'nodma' and NK in (16, 32)): L += dma_groups(gA + gW, S_LW)
    L += [f's_add_u32 s{S_LW}, s{S_LW}, {stage}', f's_cmp_eq_u32 s{S_LW}, {base + NS*stage}', f's_cselect_b32 s{S_LW}, {base}, s{S_LW}']
    return L

def pre_w(a, NK, NS, AH, stage, base, stepB, gW):
    a.e(*INITK, f's_mov_b32 s{S_LW}, {base}')
    for s in range(AH): a.e(*issue(NK, NS, stage, base, 0, stepB, [], gW))

def l_loop(a, NK, NS, AH, stage, base, stepA, stepB, gA, gW, tail=0, hooks=(), early=(), st=False, roll=None, first=(), xw=0):
    nA = sum(len(g['dmas']) for g in gA); n = nA + sum(len(g['dmas']) for g in gW) + (1 if roll else 0)
    lst = ['s_memrealtime s[58:59]', 's_waitcnt lgkmcnt(0)', 's_mov_b32 m0, s60', 's_add_u32 s60, s60, 1', 'v_writelane_b32 v255, s58, m0'] if st and PROF else []
    if lst: a.e(f's_lshl_b32 s60, s{S_VAR}, 5')
    iss = lambda: lst + issue(NK, NS, stage, base, stepA, stepB, gA, gW, roll)
    t0 = 0
    if gA:
        a.e(*INITK, f's_mov_b32 s{S_LW}, {base}')
        for s in range(AH): a.e(*issue(NK, NS, stage, base, stepA, stepB, gA, []))
        grp = [nA] * AH
        for t in range(AH - 1 + xw):
            a.e(f's_waitcnt vmcnt({sum(grp[t+1:])})', 's_barrier')
            if t < xw: a.e(*issue(NK, NS, stage, base, stepA, stepB, gA, [])); grp.append(nA)
            else: a.e(*iss()); grp.append(n)
        t0 = AH - 1 + xw
        if early: a.e(f'{early[0]}:', 's_nop 1')
        for h in early[1:]:
            a.e(f's_waitcnt vmcnt({(AH-1)*n})', 's_barrier', *iss()); h(n); t0 += 1
    if roll and not gA:
        for t in range(AH - 1): a.e(f's_waitcnt vmcnt({(AH - 1 - t) * (n - 1) + t * n})', 's_barrier', *iss())
        t0 = AH - 1
    if xw and not gA:
        for t in range(xw): a.e(f's_waitcnt vmcnt({(AH + xw - 1 - t) * n})', 's_barrier')
        t0 = xw
    for h in first:
        a.e(f's_waitcnt vmcnt({(AH-1)*n})', 's_barrier', *iss()); h(n); t0 += 1
    l = lab('ll')
    a.e(f's_mov_b32 s{S_CNT}, {NK - AH - t0 - len(hooks)}')
    a.loop([f'{l}:', f's_waitcnt vmcnt({(AH-1)*n})', 's_barrier'] + iss() + [f's_sub_u32 s{S_CNT}, s{S_CNT}, 1', f's_cmp_lg_u32 s{S_CNT}, 0', f's_cbranch_scc1 {l}'])
    for h in hooks:
        a.e(f's_waitcnt vmcnt({(AH-1)*n})', 's_barrier', *iss()); h(n)
    for j in range(AH - tail):
        a.e(f's_waitcnt vmcnt({(AH-1-j)*n + (8 if hooks else 0)})', 's_barrier')

def c_loop(a, NK, NS, stage, reads, mfmas, addr_regs, late, st0, peel=None, extra0=(), fin=None):
    if EXP == 'noread': reads = [reads[0][:1], reads[1][:1]]
    if EXP == 'rp2': RP = 2
    adv = adv_s(NS, stage)
    advv = [f'v_add_u32 v{r}, s{S_DELTA}, v{r}' for r in addr_regs]
    a.e(f's_mov_b32 s{S_CUR}, 0', f's_mov_b32 s{S_CNT}, {NK - 1 - len(peel or [])}', 's_barrier', *stamp(st0))
    a.e(*reads[0]); a.e(*adv)
    q0 = [Ins(x).wr for x in reads[0]]
    def it(pre=(), post=()):
        q = list(q0)
        L = sched(mfmas[0], bundle(reads[1], advv), q, 1)
        if not late: L.append('s_waitcnt lgkmcnt(0)'); q.clear()
        L += list(pre) + ['s_barrier'] + list(post) + sched(mfmas[1], spread(reads[0], adv), q, 1)
        assert q == q0[len(q0) - len(q):]
        return L
    for p in peel or []: a.e(*it(*p))
    l = lab('cl')
    a.loop([f'{l}:'] + it() + [f's_sub_u32 s{S_CNT}, s{S_CNT}, 1', f's_cmp_lg_u32 s{S_CNT}, 0', f's_cbranch_scc1 {l}'])
    q = list(q0)
    a.e(*sched(mfmas[0], reads[1] + list(extra0), q, 1))
    if fin: a.e('s_waitcnt lgkmcnt(0)', *stamp(st0 + 1)); fin(mfmas[1])
    else: a.e(*sched(mfmas[1], [], q)); a.e('s_waitcnt lgkmcnt(0)', *stamp(st0 + 1))

S_LM, S_B0, S_B1 = 48, 49, 50
def c_direct(a, NK, NS, stage, reads, mf, addr_regs, DR, D, vaddr, init, st0, slots=None):
    R = NK // 8
    advv = lambda src: [f'v_add_u32 v{r}, {src}, v{r}' for r in addr_regs]
    def nk(t):
        p = t % 8
        L = []
        if slots and LAZY & 1:
            p, w = SEQ2[t]
            return (['s_barrier'] if t == 14 else []) + [f's_bitcmp1_b32 s{S_LM}, {p}', f's_cselect_b32 s{S_OA}, s{S_B0 if w else S_B1}, s{S_B1 if w else S_B0}', f's_add_u32 s{S_OA}, s{S_OA}, {p*8192}']
        if p == 0 and t != 0: L += [f's_mov_b32 s{S_B0}, s{S_B1}', f's_add_u32 s{S_B1}, s{S_B1}, 65536', f's_cmp_eq_u32 s{S_B1}, s{S_T2}', f's_cselect_b32 s{S_B1}, s{S_BA}, s{S_B1}']
        return L + [f's_bitcmp1_b32 s{S_LM}, {p}', f's_cselect_b32 s{S_OA}, s{S_B1}, s{S_B0}', f's_add_u32 s{S_OA}, s{S_OA}, {(PERM4[p] if LAZY & 2 and not slots else p)*8192}']
    ld = lambda slot, i: f'buffer_load_dwordx4 {vr(DR+16*slot+4*i,4)}, v{88+i}, {S4(SRD_A)}, s{S_OA} offen {LDF}'
    adv = [] if slots else adv_s(NS, stage)
    vq = []
    for sl in range(D):
        a.e(*nk(sl))
        for i in range(4 if sl < D - 1 else 2):
            a.e(ld(sl, i)); vq.append(Ins(ld(sl, i)).wr)
    init(4 * D - 2)
    a.e(f's_mov_b32 s{S_CUR}, 0', f's_mov_b32 s{S_CNT}, {R - 1}', 's_barrier', *stamp(st0))
    a.e(*reads[0]); a.e(*adv)
    q0 = [Ins(x).wr for x in reads[0]]
    def mix(items, loads, pos):
        items = [list(x) for x in items]
        for l, p in zip(loads, pos): items[p] = items[p] + [l]
        return items
    def step(t, vq, generic):
        slot = t % D
        q = list(q0)
        final = not generic and t == NK - 1
        l0 = [ld((slot - 1) % D, 2), ld((slot - 1) % D, 3)] if generic or t - 1 + D < NK else []
        av = [] if final else advv(f's{S_DELTA}' if not slots else (slots[t + 1] - slots[t]) & 0xffffffff)
        L = sched(mf(0, DR + 16 * slot), mix(bundle(reads[1], av), l0, (2, 6)), q, 1, vq=vq)
        if final: return L + sched(mf(1, DR + 16 * slot + 8), [], q, 1, vq=vq)
        more = generic or t + D < NK
        it = [[r] for r in reads[0]]
        sc = (nk(t + D) if more else []) + adv
        for i, x in enumerate(sc): it[min(i // 2, len(it) - 1)].append(x)
        l1 = [ld(slot, 0), ld(slot, 1)] if more else []
        return L + ([] if slots else ['s_barrier']) + sched(mf(1, DR + 16 * slot + 8), mix(it, l1, (4, 7)), q, 1, vq=vq)
    if slots:
        for t in range(NK): a.e(*step(t, vq, False))
    else:
        v1 = list(vq); l = lab('cd')
        body = [f'{l}:']
        for t in range(8, 16): body += step(t, v1, True)
        assert v1 == vq
        a.loop(body + [f's_sub_u32 s{S_CNT}, s{S_CNT}, 1', f's_cmp_lg_u32 s{S_CNT}, 0', f's_cbranch_scc1 {l}'])
        for t in range(NK - 8, NK): a.e(*step(t, vq, False))
    a.e('s_waitcnt lgkmcnt(0)', *stamp(st0 + 1))

SEQ2 = [(p, 0) for p in (0, 1, 2, 4, 5, 6, 7)] + [(p, 1) for p in (0, 1, 2, 4, 5, 6, 7)] + [(3, 0), (3, 1)]
PERM4 = (0, 1, 4, 5, 6, 7, 2, 3)

def by_first_use(reads, mfmas):
    key = lambda r: min(i for i, m in enumerate(mfmas) if Ins(m).srcab & Ins(r).wr)
    return sorted(reads, key=key)

def chain_order(tiles_):
    return [(t, h ^ (i & 1)) for i, t in enumerate(tiles_) for h in (0, 1)]

def c_full(a, NK, NS, stage, reads, mf, addr_regs, st0):
    adv = adv_s(NS, stage)
    advv = [f'v_add_u32 v{r}, s{S_DELTA}, v{r}' for r in addr_regs]
    rd = [by_first_use(reads(p), mf(p)) for p in range(2)]
    a.e(f's_mov_b32 s{S_CUR}, 0', f's_mov_b32 s{S_CNT}, {(NK - 2) // 2}', *adv, 's_barrier', *stamp(st0))
    a.e(*rd[0], *advv)
    def it(p, last=False):
        q = [Ins(x).wr for x in rd[p]]
        if last: return sched(mf(p), [], q)
        f = bundle(rd[1 - p], advv)
        for i, x in enumerate(adv): f[i // 2].append(x)
        first_adv = min(i for i, b in enumerate(f) if any(y in advv for y in b))
        assert first_adv > 2
        return ['s_barrier'] + sched(mf(p), f, q, 1)
    l = lab('cf')
    a.loop([f'{l}:'] + it(0) + it(1) + [f's_sub_u32 s{S_CNT}, s{S_CNT}, 1', f's_cmp_lg_u32 s{S_CNT}, 0', f's_cbranch_scc1 {l}'])
    a.e(*it(0)); a.e(*it(1, True)); a.e('s_waitcnt lgkmcnt(0)', *stamp(st0 + 1))

def c_direct2(a, NK, NS, stage, reads, mf, addr_regs, DR, D, vaddr, init, st0, slots=None):
    R = NK // 8
    advv = lambda src: [f'v_add_u32 v{r}, {src}, v{r}' for r in addr_regs]
    def nk(t):
        p = t % 8
        L = []
        if p == 0 and t != 0: L += [f's_mov_b32 s{S_B0}, s{S_B1}', f's_add_u32 s{S_B1}, s{S_B1}, 65536', f's_cmp_eq_u32 s{S_B1}, s{S_T2}', f's_cselect_b32 s{S_B1}, s{S_BA}, s{S_B1}']
        return L + [f's_bitcmp1_b32 s{S_LM}, {p}', f's_cselect_b32 s{S_OA}, s{S_B1}, s{S_B0}', f's_add_u32 s{S_OA}, s{S_OA}, {p*8192}']
    ld = lambda slot, i: f'buffer_load_dwordx4 {vr(DR+16*slot+4*i,4)}, v{88+i}, {S4(SRD_A)}, s{S_OA} offen {LDF}'
    LO = (0, 2, 3, 1)
    adv = [] if slots else adv_s(NS, stage)
    rd = [by_first_use(reads(p), mf(p, DR)) for p in range(2)]
    dl = lambda t: f's{S_DELTA}' if not slots else (slots[t + 1] - slots[t]) & 0xffffffff
    vq = []
    for sl in range(D - 1):
        a.e(*nk(sl))
        for i in LO: a.e(ld(sl, i)); vq.append(Ins(ld(sl, i)).wr)
    init(4 * (D - 1))
    a.e(f's_mov_b32 s{S_CUR}, 0', f's_mov_b32 s{S_CNT}, {R - 1}', *adv, 's_barrier', *stamp(st0))
    a.e(*rd[0], *advv(dl(0)))
    def step(t, vq, generic):
        slot = t % D; p = t & 1
        q = [Ins(x).wr for x in rd[p]]
        if not generic and t == NK - 1: return sched(mf(p, DR + 16 * slot), [], q, 1, vq=vq)
        more = generic or t + D - 1 < NK
        f = bundle(rd[1 - p], advv(dl(t + 1)) if generic or t + 2 < NK else [])
        for i, x in enumerate(adv + (nk(t + D - 1) if more else [])): f[i // 2].append(x)
        if more:
            for i, pos in zip(LO, (6, 9, 12, 15)): f[pos].append(ld((slot - 1) % D, i))
        return ([] if slots else ['s_barrier']) + sched(mf(p, DR + 16 * slot), f, q, 1, vq=vq)
    if slots:
        for t in range(NK): a.e(*step(t, vq, False))
    else:
        v1 = list(vq); l = lab('cd')
        body = [f'{l}:']
        for t in range(8, 16): body += step(t, v1, True)
        assert v1 == vq
        a.loop(body + [f's_sub_u32 s{S_CNT}, s{S_CNT}, 1', f's_cmp_lg_u32 s{S_CNT}, 0', f's_cbranch_scc1 {l}'])
        for t in range(NK - 8, NK): a.e(*step(t, vq, False))
    a.e('s_waitcnt lgkmcnt(0)', *stamp(st0 + 1))

FB = (16, 188)
def w_reads2(regs): return lambda p: [f'ds_read_b64_tr_b16 {vr(FB[p]+16*h+4*n+2*q,2)}, v{regs[n]} offset:{h*4096+q*512}' for n in range(4) for h in range(2) for q in range(2)]
SN8 = [(n, x) for n in range(4) for x in ((0, 1) if n % 2 == 0 else (1, 0))]

def lanemap(a, v, hi, lo, add=0, top=0):
    f = lambda x: f's{x[1]}' if isinstance(x, tuple) else str(x)
    a.e(f's_lshl_b32 s{S_T0}, {f(hi)}, 1', f's_add_u32 s{S_T0}, s{S_T0}, {f(lo)}', f's_cmp_eq_u32 s{S_T0}, 3', *([f's_cselect_b32 s{S_T0}, -5, s{S_T0}', f's_add_u32 s{S_T0}, s{S_T0}, 10'] if top else [f's_addc_u32 s{S_T0}, s{S_T0}, 5']), f's_lshl_b32 s{S_T0}, s{S_T0}, 7',
        's_mov_b32 vcc_lo, 0xff000000', 's_mov_b32 vcc_hi, 0', f'v_mov_b32 v{v}, s{S_T0}', f'v_cndmask_b32 v{v}, 0, v{v}, vcc', f'v_lshl_add_u32 v{v}, v0, 4, v{v}')
    if add: a.e(f'v_add_u32 v{v}, {add}, v{v}')

def direct_setup(a, NK, bal=0):
    a.e(f's_lshl_b32 s{S_LM}, 0x303, s{S_PHI}', f's_lshr_b32 s{S_LM}, s{S_LM}, 8', f's_mov_b32 s{S_B0}, s{S_BA}', f's_add_u32 s{S_B1}, s{S_BA}, 65536',
        f's_add_u32 s{S_T2}, s{S_BA}, {NK*8192}', f's_and_b32 s{S_T1}, s{S_WAVE}, 1')
    for b in range(2):
        lanemap(a, 88 + b, ('s', S_T1), b, 2048 * b)
        if bal: lanemap(a, 90 + b, ('s', S_T1), b, 4096 + 2048 * b, top=1)
        else: a.e(f'v_add_u32 v{90+b}, 4096, v{88+b}')

def w_reads(regs):
    return [[f'ds_read_b64_tr_b16 {vr(16+16*h+4*n+2*q,2)}, v{regs[n]} offset:{h*4096+q*512}' for n in range(4) for q in range(2)] for h in range(2)]

def sel(a, d, ptr0, off0, ptr1, off1, nbytes): G.srd_sel(a, d, ptr0, off0, ptr1, off1, nbytes)

XT = 18432; ST1 = XT + 24576; SL = 3 * ST1; QKV = ST1; PITCH = 400; PB = 72 * PITCH
WO_SLOTS = [131072 + 8192 * i for i in range(4)] + [100608 + 8192 * i for i in range(3)] + [8192 * i for i in range(5)] + [QKV + 8192 * i for i in range(4)]
K4_NS = int(env('K4NS', '12')); K4_BASE = 163840 - 8192 * K4_NS; K4_AH = K4_NS - 2
K4_SCR = 45056
XW4 = int(env('XW4', '2')); XW = int(env('XW', '0'))
D = 4; DR = 120
PF1 = int(env('PF1', '0'), 0); CPRIO = int(env('CPRIO', '0'))
NPF = int(env('NPF', '0')); K0W = int(env('K0W', '0')); W1_K0 = K0W * 256 * 64 * 128
REUSE = int(env('REUSE', '0')); WARM0 = int(env('WARM0', '1')); PF2N = int(env('PF2N', '14')); PF2D = int(env('PF2D', '1')); PF2S = int(env('PF2S', '0')); GSPLIT = int(env('GSPLIT', '0')); PF6 = int(env('PF6', '1')); ELATE = int(env('ELATE', '0')); WARME = int(env('WARME', '0')); LAZY = int(env('LAZY', '0')); SS0 = int(env('SS0', '0')); UBAL = int(env('UBAL', '0')); ROLL = int(env('ROLL', '0')); PF5 = int(env('PF5', '3')); PF5E = int(env('PF5E', '0')); PF4 = int(env('PF4', '1')); PFT = int(env('PFT', '0')); PF3 = int(env('PF3', '0')); CODEPF = env('CODEPF', '0') == '1'; PF2 = env('PF2', '1') == '1'; LATEW = env('LATEW', '1') == '1'

def gen_mega(a):
    kn = 'mega'
    a.e('.p2align 8', f'{MEGA}:', 's_cmp_ge_u32 s2, 256', f's_cbranch_scc1 {kn}_end',
        's_load_dwordx16 s[64:79], s[0:1], 0', 's_load_dwordx2 s[80:81], s[0:1], 64', 's_load_dwordx2 s[84:85], s[0:1], 80', f's_load_dwordx2 s[{P_DB}:{P_DB+1}], s[0:1], 72',
        'v_lshrrev_b32 v1, 6, v0', 'v_and_b32 v0, 63, v0', f'v_readfirstlane_b32 s{S_WAVE}, v1', f's_mov_b32 s{S_VAR}, 0')
    if PROF: a.e(f'v_mov_b32 v{PV}, 0', *stamp(-1))
    a.e('v_mov_b32 v130, 0', 'v_mov_b32 v131, 0', 'v_mov_b32 v134, 0', f's_cmp_ge_u32 s{S_WAVE}, 4', f's_cbranch_scc1 L_start')

    ACC1 = 112
    def acc1(m, rt): return ACC1 + 36 * m + 4 * rt
    MK = 86; AK0, AK1, AQ, AV0, AV1, AO = 220, 221, 223, 222, 254, 1
    def attn_static():
        a.e(f's_lshr_b32 s{S_T1}, s{S_WAVE}, 1', f's_and_b32 s{S_T2}, s{S_WAVE}, 1',
            f's_mul_i32 s{S_T0}, s{S_T2}, {PB}', f's_add_u32 s{S_T0}, s{S_T0}, {QKV}', f's_lshl_b32 s{S_G0+5}, s{S_T1}, 4')
        a.e(f'v_add_u32 v76, s{S_G0+5}, v4', 'v_lshlrev_b32 v77, 4, v5', f'v_add_u32 v77, s{S_T0}, v77',
            f'v_mul_u32_u24 v78, {PITCH}, v76', f'v_add_u32 v{AK0}, v78, v77', f'v_add_u32 v{AQ}, {8*PITCH}, v{AK0}', f'v_add_u32 v{AK0}, 128, v{AK0}',
            'v_add_u32 v76, 16, v76', 'v_min_u32 v76, 71, v76', f'v_mul_u32_u24 v78, {PITCH}, v76', f'v_add3_u32 v{AK1}, v78, v77, 64', f'v_add_u32 v{AK1}, 64, v{AK1}')
        a.e('v_lshl_add_u32 v76, v5, 2, v6', f'v_add_u32 v76, s{S_G0+5}, v76', 'v_lshlrev_b32 v77, 4, v7', f'v_add_u32 v77, s{S_T0}, v77', 'v_add_u32 v77, 256, v77',
            f'v_mul_u32_u24 v78, {PITCH}, v76', f'v_add_u32 v{AV0}, v78, v77',
            'v_add_u32 v76, 16, v76', 'v_min_u32 v76, 71, v76', f'v_mul_u32_u24 v78, {PITCH}, v76', f'v_add_u32 v{AV1}, v78, v77')
        a.e(f's_lshl_b32 s{S_G0+6}, s{S_TI}, 2', f's_add_u32 s{S_G0+6}, s{S_G0+6}, s{S_T1}', f's_lshl_b32 s{S_G0+6}, s{S_G0+6}, 17',
            f's_lshl_b32 s{S_G0+7}, s{S_TJ}, 13', f's_add_u32 s{S_G0+6}, s{S_G0+6}, s{S_G0+7}', f's_lshl_b32 s{S_G0+7}, s{S_T2}, 11', f's_add_u32 s{S_G0+6}, s{S_G0+6}, s{S_G0+7}',
            f's_and_b32 s{S_G0+7}, s{S_T1}, 1')
        lanemap(a, AO, ('s', S_G0 + 7), ('s', S_T2))
        a.e(f'v_add_u32 v{AO}, s{S_G0+6}, v{AO}')
        a.e('v_lshlrev_b32 v76, 2, v5', 'v_sub_u32 v76, v76, v4', f's_or_b32 s{S_G0+7}, s{S_TI}, s{S_T1}', f's_cmp_eq_u32 s{S_G0+7}, 0', f's_cselect_b32 s{S_G0+7}, 0, -1')
        for k in range(8):
            a.e(f'v_add_u32 v77, {16 * (k >> 2) + (k & 3) - 1}, v76', f'v_cmp_gt_u32 s[{MK+2*k}:{MK+1+2*k}], 8, v77')
        for k in range(4): a.e(f's_and_b32 s{MK+2*k}, s{MK+2*k}, s{S_G0+7}')
    def k1_setup_c():
        tiles(a, 8, 1)
        lane_fields(a)
        tr128_addr(a, [8], XT, 21, 22)
        a.e(f's_lshl_b32 s{S_T0}, s{S_WAVE}, 5', f'v_xor_b32 v8, s{S_T0}, v8',
            'v_lshrrev_b32 v21, 1, v4', 'v_xor_b32 v21, v21, v5', 'v_lshlrev_b32 v21, 4, v21', 'v_lshlrev_b32 v22, 7, v4', 'v_add_u32 v9, v21, v22', 'v_xor_b32 v10, 64, v9',
            'v_and_b32 v21, 1, v4', f'v_mul_u32_u24 v21, {PB}, v21', 'v_lshrrev_b32 v22, 1, v4', f'v_mul_u32_u24 v22, {PITCH}, v22',
            'v_lshlrev_b32 v23, 3, v5', 'v_add3_u32 v11, v21, v22, v23', f's_add_u32 s{S_T0}, s{S_T0}, {QKV}',
            f'v_add_u32 v11, s{S_T0}, v11', 'v_lshlrev_b32 v12, 3, v4', f'v_add_u32 v12, {SL}, v12')
        for r in range(ACC1, ACC1 + 108, 2): a.e(f'v_mov_b64 {vr(r,2)}, 0')
    if CPRIO: a.e(f's_setprio {CPRIO}')
    k1_setup_c()
    attn_static()
    a.e('s_waitcnt lgkmcnt(0)', f's_mov_b32 s{P_WL}, s{P_WS}', f's_mov_b32 s{P_WL+1}, s{P_WS+1}')
    def slow_strip():
        if not PF5: return
        srd(a, SRD_C, P_WQKV, 0, 1024 * 3072 * 2)
        a.e(f's_lshr_b32 s{S_T0}, s2, 3', f's_lshl_b32 s{S_T0}, s{S_T0}, 1', f's_add_u32 s{S_T0}, s{S_T0}, s{S_WAVE}', f's_sub_u32 s{S_T0}, s{S_T0}, 1', f's_lshl_b32 s{S_T0}, s{S_T0}, 6',
            f'v_add_u32 v16, s{S_T0}, v0', 'v_mul_u32_u24 v17, 21846, v16', 'v_lshrrev_b32 v17, 16, v17', 'v_mul_u32_u24 v18, 3, v17', 'v_sub_u32 v18, v16, v18',
            'v_mul_u32_u24 v17, 6144, v17', 'v_lshl_add_u32 v14, v18, 11, v17', f's_and_b32 s{S_T0}, s2, 1', f's_lshl_b32 s{S_T0}, s{S_T0}, 10', f's_add_u32 s{S_T0}, s{S_T0}, 384',
            f's_sub_u32 s{S_T1}, s{S_WAVE}, 1', f's_cmp_lt_u32 s{S_T1}, 2', f's_cselect_b32 s{SRD_C+2}, s{SRD_C+2}, 0',
            f'buffer_load_dword v15, v14, {S4(SRD_C)}, s{S_T0} offen')
        if ROLL & 4:
            srd(a, SRD_C, P_WO, 0, 1024 * 1024 * 2)
            a.e(f's_lshr_b32 s{S_T1}, s2, 3', f's_lshl_b32 s{S_T1}, s{S_T1}, 5', 'v_and_b32 v16, 31, v0', f'v_add_u32 v16, s{S_T1}, v16', 'v_lshlrev_b32 v14, 11, v16',
                f's_cmp_eq_u32 s{S_WAVE}, 3', f's_cselect_b32 s{SRD_C+2}, s{SRD_C+2}, 0', f'buffer_load_dword v15, v14, {S4(SRD_C)}, s{S_T0} offen')
    if PF5 & 1 and PF5E: slow_strip()
    srd(a, SRD_B, P_WS, 0, 0)
    srd(a, SRD_D, P_WQKV, 0, 1024 * 3072 * 2 * WARM0)
    a.e(f's_cmp_eq_u32 s{S_WAVE}, 3', f's_cselect_b32 s{SRD_D}, s{P_WO}, s{SRD_D}', f's_cselect_b32 s{SRD_D+1}, s{P_WO+1}, s{SRD_D+1}', f's_cselect_b32 s{SRD_D+2}, {2*MB*WARM0}, s{SRD_D+2}',
        f's_cselect_b32 s47, 0, s{S_WAVE}', 's_lshl_b32 s47, s47, 8', 's_add_u32 s47, s47, s2', 's_lshl_b32 s47, s47, 13', 'v_lshlrev_b32 v13, 7, v0', f's_mov_b32 s51, s{S_WAVE}')
    warm = f'buffer_load_dword v15, v13, {S4(SRD_D)}, s47 offen'
    def warm_if(w, l): return [f's_cmp_lg_u32 s51, {w}', f's_cbranch_scc1 {l}', warm, f'{l}:']
    WS = {0: ((), (0,), (1,), (2,), (3,)), 1: ((0,), (1,), (2,), (3,), ()), 2: ((), (0, 1), (2,), (), (3,)), 3: ((0,), (1, 2), (), (), (3,))}[WARME]
    wl = lambda i: [x for w in WS[i] for x in warm_if(w, f'C_wm{w}')]
    a.e(*wl(0), 's_barrier', *wl(1))
    if PF5 & 1 and not PF5E: slow_strip()
    if CODEPF:
        a.e(f's_cmp_lg_u32 s{S_WAVE}, 3', 's_cbranch_scc1 C_nc', 's_getpc_b64 s[44:45]', 'C_pc:', 's_lshr_b32 s46, s2, 3', 's_lshl_b32 s46, s46, 11', 'v_and_b32 v16, 15, v0',
            'v_lshlrev_b32 v16, 7, v16', 'v_add_u32 v16, s46, v16', 'v_min_u32 v16, mega_end-C_pc, v16', 'global_load_dword v15, v16, s[44:45]', 'C_nc:')
    a.e('C_top:'); a.flush_hist()
    reads = [[], []]; mf = [[], []]
    for h in range(2):
        F = 16 + 48 * h
        ra = [[f'ds_read_b64_tr_b16 {vr(F+4*m,2)}, v8 offset:{m*8192+h*4096}', f'ds_read_b64_tr_b16 {vr(F+4*m+2,2)}, v8 offset:{m*8192+h*4096+512}'] for m in range(3)]
        rb = [f'ds_read_b128 {vr(F+12+4*rt,4)}, v{9+h} offset:{rt*2048}' for rt in range(9)]
        reads[h] = ra[0] + [rb[0]] + ra[1] + ra[2] + rb[1:]
        mf[h] = [f'{MF16} {vr(acc1(m,rt),4)}, {vr(F+4*m,4)}, {vr(F+12+4*rt,4)}, {vr(acc1(m,rt),4)}' for rt in range(9) for m in (range(3) if rt % 2 == 0 or not SNAKE else range(2, -1, -1))]
    peel = [([], wl(2)), ([], wl(3)), ([], wl(4))]
    STR, CW = 224, 242
    def fold(rt, o):
        ms = [m for m in range(3) if not (m == 0 and rt == 0)]
        st = vr(STR + 2 * rt, 2); L = []
        for m in ms: L += [f'v_pk_fma_f32 {vr(acc1(m,rt)+e,2)}, {vr(CW+4*m+e,2)}, {st}, {vr(acc1(m,rt)+e,2)} op_sel_hi:[1,0,1] neg_lo:[0,1,0] neg_hi:[0,1,0]' for e in (0, 2)]
        for m in ms: L += [f'v_pk_mul_f32 {vr(acc1(m,rt)+e,2)}, {vr(acc1(m,rt)+e,2)}, {st} op_sel:[0,1] op_sel_hi:[1,1]' for e in (0, 2)]
        for i, m in enumerate(ms):
            d = acc1(m, rt); r = o + 2 * i
            L += [f'v_cvt_pk_bf16_f32 v{r}, v{d}, v{d+1}', f'v_cvt_pk_bf16_f32 v{r+1}, v{d+2}, v{d+3}', f'ds_write_b64 v11, {vr(r,2)} offset:{rt*8*PITCH+m*128}']
        return L
    def fin1(mfs, m0):
        work = [f'v_mov_b32_dpp v{CW+4*m+r}, v{acc1(m,0)+r} row_newbcast:0 row_mask:0xf bank_mask:0xf' for m in range(m0, 3) for r in range(4)]
        ready = [len(work)]
        for rt in range(9): work += fold(rt, 16 + 6 * (rt % 8)); ready.append(len(work))
        done = 0
        for i, m in enumerate(mfs):
            a.e(m)
            rt = (i + m0) // 3 - 1
            lim = ready[rt + 1] if rt >= 0 else 0
            n = min(lim - done, 7)
            if n > 0: a.e(*work[done:done + n]); done += n
        a.e('s_barrier')
        a.e(*work[done:])
    sreads = [f'ds_read_b64 {vr(STR+2*rt,2)}, v12 offset:{rt*128}' for rt in range(9)]
    c_loop(a, 16, 3, ST1, reads, mf, [8, 9, 10], False, 0, peel, sreads, lambda mfs: fin1(mfs, 0))
    if CWREUSE:
        a.e('s_branch attn', 'C_top1:'); a.flush_hist()
        c_loop(a, 16, 3, ST1, reads, [x[1:] for x in mf], [8, 9, 10], False, 0, None, sreads, lambda mfs: fin1(mfs, 1))
    a.e('attn:'); a.flush_hist()
    cs = (32 ** -0.5) * 1.4426950408889634
    a.e(f'v_mov_b32 v18, {f32(cs)}', 'v_mov_b32 v19, 0xff800000')
    srd(a, SRD_D, P_WL, O_OFF, XP)
    a.e('s_mov_b32 s49, 4096')
    a.e('s_waitcnt lgkmcnt(0)', 's_barrier')
    B = [32, 80]
    for hd in range(2):
        b = B[hd]; o = 64 * hd
        a.e(f'ds_read_b128 {vr(b,4)}, v{AQ} offset:{o}', f'ds_read_b128 {vr(b+4,4)}, v{AK0} offset:{o}', f'ds_read_b128 {vr(b+8,4)}, v{AK1} offset:{o}')
    for hd in range(2):
        b = B[hd]; o = 64 * hd
        for dt in range(2): a.e(f'ds_read_b64_tr_b16 {vr(b+12+4*dt,2)}, v{AV0} offset:{o+8*dt}', f'ds_read_b64_tr_b16 {vr(b+14+4*dt,2)}, v{AV1} offset:{o+8*dt}')
    for hd in range(2):
        b = B[hd]
        a.e(f's_waitcnt lgkmcnt({11 - 3*hd})', f'{MF16} {vr(b+20,4)}, {vr(b+4,4)}, {vr(b,4)}, 0', f'{MF16} {vr(b+24,4)}, {vr(b+8,4)}, {vr(b,4)}, 0')
    def both(f):
        for x, y in zip(f(B[0]), f(B[1])): a.e(x, y)
    both(lambda b: [f'v_cndmask_b32 v{b+20+k}, v19, v{b+20+k}, s[{MK+2*k}:{MK+1+2*k}]' for k in range(8)])
    both(lambda b: [f'v_max3_f32 v{b+28}, v{b+20}, v{b+21}, v{b+22}', f'v_max3_f32 v{b+29}, v{b+23}, v{b+24}, v{b+25}',
                    f'v_max3_f32 v{b+28}, v{b+28}, v{b+26}, v{b+27}', f'v_max_f32 v{b+28}, v{b+28}, v{b+29}', f'v_mov_b32 v{b+29}, v{b+28}',
                    f'v_permlane16_swap_b32 v{b+28}, v{b+29}', f'v_max_f32 v{b+28}, v{b+28}, v{b+29}', f'v_mov_b32 v{b+29}, v{b+28}',
                    f'v_permlane32_swap_b32 v{b+28}, v{b+29}', f'v_max_f32 v{b+28}, v{b+28}, v{b+29}', f'v_mul_f32 v{b+28}, v18, v{b+28}'])
    both(lambda b: [f'v_fma_f32 v{b+20+k}, v{b+20+k}, v18, -v{b+28}' for k in range(8)])
    both(lambda b: [f'v_exp_f32 v{b+20+k}, v{b+20+k}' for k in range(8)])
    both(lambda b: [f'v_pk_add_f32 {vr(b+28,2)}, {vr(b+20,2)}, {vr(b+22,2)}', f'v_pk_add_f32 {vr(b+30,2)}, {vr(b+24,2)}, {vr(b+26,2)}',
                    f'v_pk_add_f32 {vr(b+28,2)}, {vr(b+28,2)}, {vr(b+30,2)}', f'v_add_f32 v{b+28}, v{b+28}, v{b+29}', f'v_mov_b32 v{b+29}, v{b+28}',
                    f'v_permlane16_swap_b32 v{b+28}, v{b+29}', f'v_add_f32 v{b+28}, v{b+28}, v{b+29}', f'v_mov_b32 v{b+29}, v{b+28}',
                    f'v_permlane32_swap_b32 v{b+28}, v{b+29}', f'v_add_f32 v{b+28}, v{b+28}, v{b+29}', f'v_rcp_f32 v{b+28}, v{b+28}'])
    both(lambda b: [f'v_pk_mul_f32 {vr(b+20+e,2)}, {vr(b+20+e,2)}, {vr(b+28,2)} op_sel_hi:[1,0]' for e in range(0, 8, 2)])
    both(lambda b: [f'v_cvt_pk_bf16_f32 v{b+32+e}, v{b+20+2*e}, v{b+21+2*e}' for e in range(4)])
    a.e('s_waitcnt lgkmcnt(0)')
    both(lambda b: [f'{MF16} {vr(b+36+4*dt,4)}, {vr(b+12+4*dt,4)}, {vr(b+32,4)}, 0' for dt in range(2)])
    both(lambda b: [f'v_cvt_pk_bf16_f32 v{b+e}, v{b+36+2*e}, v{b+37+2*e}' for e in range(4)])
    for hd in range(2): a.e(f'buffer_store_dwordx4 {vr(B[hd],4)}, v{AO}, {S4(SRD_D)}, {"s49" if hd else "0"} offen {SC}')
    a.e(f's_cmp_ge_u32 s{S_WAVE}, 4', 's_cbranch_scc1 L_k1done')

    ACC = 48; RES = 96
    def acc2(t, b): return ACC + 16 * b + 4 * t
    a.e(f's_lshl_b32 s{S_T0}, s{S_TI}, 2', f's_add_u32 s{S_T0}, s{S_T0}, s{S_WAVE}', f's_lshl_b32 s{S_BA}, s{S_T0}, 17', f's_lshl_b32 s{S_T1}, s{S_T0}, 5', f's_lshl_b32 s52, s{S_T0}, {8+STS}',
        'v_lshlrev_b32 v13, 1, v4', f'v_add_u32 v13, s{S_T1}, v13',
        'v_lshlrev_b32 v12, 11, v13', 'v_lshl_add_u32 v12, v3, 4, v12', f's_lshl_b32 s{S_T0}, s{S_TJ}, 7', f'v_add_u32 v12, s{S_T0}, v12', 'v_lshlrev_b32 v14, 4, v0',
        'v_lshlrev_b32 v87, 8, v13', 'v_lshl_add_u32 v87, v3, 4, v87', f's_lshl_b32 s{S_T0}, s{S_TJ}, 19', f'v_add_u32 v87, s{S_T0}, v87')
    srd(a, SRD_A, P_WL, O_OFF, XP)
    sel(a, SRD_C, P_X, 0, P_WS, X2_OFF, XB)
    a.e(f's_lshl_b32 s{SRD_C+2}, s{SRD_C+2}, s{S_VAR}')
    sel(a, SRD_B, P_WS, 0, P_WS, LSTR, 0); a.e(f's_add_u32 s{SRD_B}, s{SRD_B}, {ST_OFF}', f's_addc_u32 s{SRD_B+1}, s{SRD_B+1}, 0', f's_mov_b32 s{SRD_B+2}, {16*32768}')
    tr128_addr(a, [8, 9, 10, 11], WO_SLOTS[0], 16, 17)
    a.e('v_lshl_add_u32 v16, v4, 1, v2', 'v_lshlrev_b32 v16, 3, v16', 'v_add_u32 v16, s52, v16', f's_mul_i32 s{S_T0}, s{S_TJ}, {STP}', f'v_add_u32 v112, s{S_T0}, v16',
        'v_lshrrev_b32 v17, 5, v0', f'v_mul_u32_u24 v17, {8*STP}, v17', 'v_add_u32 v113, v16, v17')
    a.e(f's_lshl_b32 s{S_T0}, s{S_WAVE}, 12', 'v_lshlrev_b32 v16, 8, v4', 'v_lshl_add_u32 v16, v5, 3, v16', f'v_add_u32 v16, s{S_T0}, v16',
        'v_and_b32 v17, 1, v4', 'v_bfe_u32 v18, v4, 2, 1', 'v_lshl_or_b32 v17, v18, 1, v17', 'v_lshl_add_u32 v114, v17, 5, v16',
        f's_lshl_b32 s{S_G0}, s{S_TJ}, 8', f's_lshl_b32 s{S_T1}, s{S_TI}, 2', f's_add_u32 s{S_G0}, s{S_G0}, s{S_T1}', f's_add_u32 s{S_G0}, s{S_G0}, s{S_WAVE}', f's_lshl_b32 s{S_G0}, s{S_G0}, 11')
    tr128_addr(a, [115], 0, 16, 17)
    a.e(f'v_add_u32 v115, s{S_T0}, v115')
    for t in range(1, 4): a.e(f's_add_u32 s{S_G0+t}, s{S_G0}, {t*131072}')
    for p in range(1, 8): a.e(f'v_add_u32 v{79+p}, {p*STP}, v113')
    direct_setup(a, 16)
    for t in range(2): lanemap(a, 92 + t, ('s', S_T1), t)
    for i in range(4): lanemap(a, 192 + i, i >> 1, i & 1, 2048 * i)
    a.e(f's_lshl_b32 s53, s{S_TJ}, 13', f's_add_u32 s53, s53, s{S_BA}')
    poll_setup(a, SRD_E, 119, 0, 0, [f's_lshl_b32 s{S_T0}, s{S_TI}, 4'], 16, (7, 3) if LAZY & 1 else None)
    a.e('s_waitcnt vmcnt(0)', 's_barrier', *stamp(2))
    a.e(f's_cmp_lg_u32 s{S_VAR}, 0', 's_cbranch_scc1 C_r1')
    for b in range(2):
        for P in range(2): a.e(f'buffer_load_dwordx4 {vr(RES+8*b+4*P,4)}, v12, {S4(SRD_C)}, 0 offen offset:{b*2048+P*64}')
    a.e('s_branch C_r2', 'C_r1:')
    for b in range(2):
        for P in range(2): a.e(f'buffer_load_dwordx4 {vr(RES+8*b+4*P,4)}, v87, {S4(SRD_C)}, 0 offen offset:{b*256+P*64} {LDF}')
    a.e('C_r2:')
    poll(a, SRD_E, 119, 16)
    a.e(*stamp(3))
    def init2(out):
        a.e(f's_waitcnt vmcnt({out})')
        for b in range(2):
            for P in range(2):
                r = RES + 8 * b + 4 * P
                a.e(f'v_permlane16_swap_b32 v{r}, v{r+2}', f'v_permlane16_swap_b32 v{r+1}, v{r+3}')
        for b in range(2):
            for P in range(2):
                r = RES + 8 * b + 4 * P
                a.e(*unpack4(r, r + 1, acc2(2 * P, b)), *unpack4(r + 2, r + 3, acc2(2 * P + 1, b)))
    mf2 = lambda h, bb: [f'{MF16} {vr(acc2(t,b),4)}, {vr(16+16*h+4*t,4)}, {vr(bb+4*b,4)}, {vr(acc2(t,b),4)}' for t in range(4) for b in ((0, 1) if t % 2 == 0 or not SNAKE else (1, 0))]
    if CHAIN & 2:
        mc2 = lambda p, bb: [f'{MF16} {vr(acc2(t,b),4)}, {vr(FB[p]+16*h+4*t,4)}, {vr(bb+8*h+4*b,4)}, {vr(acc2(t,b),4)}' for (t, b), h in chain_order(SN8)]
        c_direct2(a, 16, 0, 0, w_reads2([8, 9, 10, 11]), mc2, [8, 9, 10, 11], DR, D, 14, init2, 4, slots=WO_SLOTS)
    else: c_direct(a, 16, 0, 0, w_reads([8, 9, 10, 11]), mf2, [8, 9, 10, 11], DR, D, 14, init2, 4, slots=WO_SLOTS)
    a.e('s_barrier')
    srd(a, SRD_D, P_WL, X1_OFF, XP)
    srd(a, SRD_E, P_WL, H_OFF, XP)
    for b in range(2):
        d = acc2(0, b); T = 16 + 4 * b
        a.e(f'v_pk_add_f32 {vr(T,2)}, {vr(d,2)}, {vr(d+2,2)}', f'v_pk_mul_f32 {vr(T+2,2)}, {vr(d,2)}, {vr(d,2)}', f'v_pk_fma_f32 {vr(T+2,2)}, {vr(d+2,2)}, {vr(d+2,2)}, {vr(T+2,2)}')
        for e in range(4, 16, 2):
            a.e(f'v_pk_add_f32 {vr(T,2)}, {vr(T,2)}, {vr(d+e,2)}', f'v_pk_fma_f32 {vr(T+2,2)}, {vr(d+e,2)}, {vr(d+e,2)}, {vr(T+2,2)}')
        a.e(f'v_add_f32 v{24+b}, v{T}, v{T+1}', f'v_add_f32 v{26+b}, v{T+2}, v{T+3}')
    a.e('v_permlane16_swap_b32 v24, v25', 'v_permlane16_swap_b32 v26, v27', 'v_add_f32 v28, v24, v25', 'v_add_f32 v29, v26, v27',
        'v_mov_b32 v30, v28', 'v_mov_b32 v31, v29', 'v_permlane32_swap_b32 v28, v30', 'v_permlane32_swap_b32 v29, v31',
        'v_add_f32 v28, v28, v30', 'v_add_f32 v29, v29, v31', 'v_and_b32 v29, 0x7fffffff, v29',
        's_mov_b32 exec_hi, 0', f'buffer_store_dwordx2 v[28:29], v112, {S4(SRD_B)}, 0 offen {SC}', 's_mov_b64 exec, -1')
    for b in range(2):
        for t in range(4):
            r = RES + 8 * b + 2 * t; d = acc2(t, b)
            a.e(f'v_cvt_pk_bf16_f32 v{r}, v{d}, v{d+1}', f'v_cvt_pk_bf16_f32 v{r+1}, v{d+2}, v{d+3}')
    for b in range(2):
        for P in range(2):
            r = RES + 8 * b + 4 * P
            a.e(f'v_permlane16_swap_b32 v{r}, v{r+2}', f'v_permlane16_swap_b32 v{r+1}, v{r+3}')
    for t in range(1, 4): a.e(f'v_xor_b32 v{115+t}, {t << 5}, v115', f'v_xor_b32 v{120+t}, {t << 5}, v114')
    a.e('v_mov_b32 v120, v114', f's_mov_b32 s{S_CNT}, 0')
    if SS0: a.e(f's_sleep {SS0}')
    body = ['k2_poll:'] + [f'buffer_load_dwordx2 {vr(32+2*p,2)}, v{113 if p == 0 else 79+p}, {S4(SRD_B)}, 0 offen {SC}' for p in range(8)]
    body += ['s_waitcnt vmcnt(0)', 'v_min3_i32 v16, v33, v35, v37', 'v_min3_i32 v17, v39, v41, v43', 'v_min3_i32 v16, v16, v45, v47',
             'v_min_i32 v16, v16, v17', 'v_cmp_gt_i32 vcc, 0, v16', f's_add_u32 s{S_CNT}, s{S_CNT}, 1', f's_cmp_gt_u32 s{S_CNT}, {SPIN}',
             's_cbranch_scc1 k2_pdone', 's_cbranch_vccnz k2_poll']
    a.loop(body)
    a.e('k2_pdone:', *stamp(6))
    for b in range(2):
        for P in range(2): a.e(f'buffer_store_dwordx4 {vr(RES+8*b+4*P,4)}, v{192+2*P+b}, {S4(SRD_D)}, s53 offen {SC}')
    a.e('v_pk_add_f32 v[32:33], v[32:33], v[34:35]', 'v_pk_add_f32 v[36:37], v[36:37], v[38:39]', 'v_pk_add_f32 v[40:41], v[40:41], v[42:43]',
        'v_pk_add_f32 v[44:45], v[44:45], v[46:47]', 'v_pk_add_f32 v[32:33], v[32:33], v[36:37]', 'v_pk_add_f32 v[40:41], v[40:41], v[44:45]',
        'v_pk_add_f32 v[32:33], v[32:33], v[40:41]', 'v_mov_b32 v34, v32', 'v_mov_b32 v35, v33',
        'v_permlane32_swap_b32 v32, v34', 'v_permlane32_swap_b32 v33, v35', 'v_add_f32 v32, v32, v34', 'v_add_f32 v33, v33, v35')
    stats_finish(a, 32, 33, 36, True)
    a.e('v_mov_b32 v34, v32', 'v_mov_b32 v35, v33', 'v_permlane16_swap_b32 v32, v34', 'v_permlane16_swap_b32 v33, v35')
    for b in range(2):
        st = vr(32 + 2 * b, 2); d = acc2(0, b); o = 160 + 8 * b
        for e in range(0, 16, 2): a.e(f'v_pk_add_f32 {vr(d+e,2)}, {vr(d+e,2)}, {st} op_sel_hi:[1,0] neg_lo:[0,1] neg_hi:[0,1]')
        for e in range(0, 16, 2): a.e(f'v_pk_mul_f32 {vr(d+e,2)}, {vr(d+e,2)}, {st} op_sel:[0,1] op_sel_hi:[1,1]')
        for t in range(4):
            a.e(f'v_cvt_pk_bf16_f32 v{o+2*t}, v{d+4*t}, v{d+4*t+1}', f'v_cvt_pk_bf16_f32 v{o+2*t+1}, v{d+4*t+2}, v{d+4*t+3}',
                f'ds_write_b64 v{120+t}, {vr(o+2*t,2)} offset:{128*b}')
    a.e('s_waitcnt lgkmcnt(0)')
    for t in range(4): a.e(f'ds_read_b64_tr_b16 {vr(176+4*t,2)}, v{115+t}', f'ds_read_b64_tr_b16 {vr(178+4*t,2)}, v{115+t} offset:512')
    for t in range(4): a.e(f's_waitcnt lgkmcnt({6-2*t})', f'buffer_store_dwordx4 {vr(176+4*t,4)}, v{92+(t&1)}, {S4(SRD_E)}, s{S_G0+t} offen {SC}')
    a.e('s_cmp_ge_u32 s2, 224', 's_cbranch_scc1 C_k3skip')

    ACC3 = 80
    def acc3(tf, td): return ACC3 + 16 * td + 4 * tf
    tiles(a, 7, 2)
    a.e(f's_and_b32 s{S_G0+2}, s{S_WAVE}, 1', f's_lshr_b32 s{S_T2}, s{S_WAVE}, 1',
        f's_lshl_b32 s{S_T0}, s{S_TJ}, 8', f's_lshl_b32 s{S_G0}, s{S_G0+2}, 7', f's_add_u32 s{S_T0}, s{S_T0}, s{S_G0}',
        'v_lshlrev_b32 v16, 3, v5', f'v_add_u32 v16, s{S_T0}, v16')
    srd(a, SRD_C, P_B1, 0, 3584 * 2)
    a.e('v_mov_b32 v155, v16')
    srd(a, SRD_D, P_WL, U_OFF, UP)
    a.e('v_lshl_add_u32 v17, v5, 3, v6', 'v_lshlrev_b32 v17, 8, v17', 'v_lshl_add_u32 v17, v7, 3, v17', 'v_lshl_or_b32 v18, v2, 2, v6', 'v_lshl_add_u32 v17, v18, 5, v17',
        f's_lshl_b32 s{S_T0}, s{S_G0+2}, 7', f's_add_u32 s{S_T0}, s{S_T0}, 16384', f'v_xor_b32 v18, s{S_T0}, v17', f's_lshl_b32 s{S_T0}, s{S_T2}, 13', f'v_add_u32 v12, s{S_T0}, v14')
    for t in range(4): a.e(f'v_xor_b32 v{8+t}, {t << 5}, v18')
    def u_addr(wf, wd, sg, r):
        a.e('v_bfe_u32 v19, v4, 2, 1', 'v_lshlrev_b32 v17, 11, v19', 'v_lshl_add_u32 v17, v3, 8, v17', 'v_lshrrev_b32 v18, 3, v4', 'v_lshl_add_u32 v17, v18, 6, v17',
            f'v_lshl_add_u32 v{r}, v7, 4, v17', f'v_add_u32 v{r+1}, 128, v{r}', 'v_cmp_eq_u32 vcc, 1, v3', 'v_lshlrev_b32 v17, 7, v19', 'v_add_u32 v18, 640, v17', 'v_lshlrev_b32 v17, 8, v19', 'v_add_u32 v17, 896, v17',
            'v_cndmask_b32 v18, 0, v18, vcc', 'v_cndmask_b32 v17, 0, v17, vcc', f'v_add_u32 v{r+2}, v{r+1}, v17', f'v_add_u32 v{r+1}, v{r+1}, v18',
            f's_lshl_b32 s{S_T0}, s{S_TI}, 1', f's_add_u32 s{S_T0}, s{S_T0}, s{wd}', f's_mul_i32 s{S_T0}, s{S_T0}, 224',
            f's_lshl_b32 s{sg}, s{S_TJ}, 2', f's_add_u32 s{S_T0}, s{S_T0}, s{sg}', f's_lshl_b32 s{sg}, s{wf}, 1', f's_add_u32 s{S_T0}, s{S_T0}, s{sg}',
            f's_lshl_b32 s{sg}, s{S_T0}, 12', f's_add_u32 s{sg+1}, s{sg}, {112*4096}', f's_add_u32 s{sg+2}, s{sg}, 4096', f's_add_u32 s{sg+3}, s{sg+1}, 4096')
    a.e(f's_mov_b32 s{S_T1}, s{S_G0+2}')
    u_addr(S_T1, S_T2, S_G0, 152)
    a.e(f's_lshl_b32 s{S_T0}, s{S_WAVE}, 13', f's_add_u32 s{S_T0}, s{S_T0}, 65536', f'v_add_u32 v13, s{S_T0}, v14')
    a.e('s_waitcnt vmcnt(0)', 's_barrier', *stamp(7))
    for tf in range(4): a.e(f'buffer_load_dwordx2 {vr(144+2*tf,2)}, v155, {S4(SRD_C)}, 0 offen offset:{32*tf}')
    a.e('s_waitcnt vmcnt(0)')
    for tf in range(4):
        a.e(*unpack4(144 + 2 * tf, 145 + 2 * tf, acc3(tf, 0)))
        for td in range(1, 4): a.e(f'v_mov_b64 {vr(acc3(tf,td),2)}, {vr(acc3(tf,0),2)}', f'v_mov_b64 {vr(acc3(tf,td)+2,2)}, {vr(acc3(tf,0)+2,2)}')
    reads = [[], []]; mf = [[], []]
    for h in range(2):
        F = 16 + 32 * h
        rd = lambda dst, av: [f'ds_read_b64_tr_b16 {vr(dst,2)}, v{av} offset:{h*8192}', f'ds_read_b64_tr_b16 {vr(dst+2,2)}, v{av} offset:{h*8192+1024}']
        ra = [rd(F + 4 * t, 8 + t) for t in range(4)]
        rb = [[f'ds_read_b128 {vr(F+16+4*t,4)}, v12 offset:{(2*t+h)*1024}'] for t in range(4)]
        if SNAKE:
            reads[h] = ra[0] + rb[0] + rb[1] + ra[1] + ra[2] + rb[2] + rb[3] + ra[3]
            order = [(0,0),(0,1),(1,1),(1,0),(2,0),(2,1),(2,2),(1,2),(0,2),(0,3),(1,3),(2,3),(3,3),(3,2),(3,1),(3,0)]
        else:
            for t in range(4): reads[h] += ra[t] + rb[t]
            order = sorted([(tf, td) for tf in range(4) for td in range(4)], key=lambda x: (max(x), x))
        for tf, td in order:
            mf[h].append(f'{MF16} {vr(acc3(tf,td),4)}, {vr(F+4*tf,4)}, {vr(F+16+4*td,4)}, {vr(acc3(tf,td),4)}')
    if ONEP: a.e('s_barrier')
    if CHAIN & 1:
        F3 = (16, 156)
        r3 = lambda p: [f'ds_read_b64_tr_b16 {vr(F3[p]+32*h+4*t+2*q,2)}, v{8+t} offset:{h*8192+q*1024}' for t in range(4) for h in range(2) for q in range(2)] + \
                       [f'ds_read_b128 {vr(F3[p]+32*h+16+4*t,4)}, v12 offset:{(2*t+h)*1024}' for t in range(4) for h in range(2)]
        m3 = lambda p: [f'{MF16} {vr(acc3(tf,td),4)}, {vr(F3[p]+32*h+4*tf,4)}, {vr(F3[p]+32*h+16+4*td,4)}, {vr(acc3(tf,td),4)}' for (tf, td), h in chain_order(order)]
        c_full(a, 32, 5, 32768, r3, m3, list(range(8, 13)), 8)
    else: c_loop(a, 32, 5, 32768, reads, mf, list(range(8, 13)), True, 8)
    def gelu(tds, accf, sg, r):
        c1 = -2.0 * 0.7978845608028654 * 1.4426950408889634
        a.e(f'v_mov_b32 v16, {f32(c1)}', f'v_mov_b32 v17, {f32(c1 * 0.044715)}')
        k = 0
        for td in tds:
            for P in range(2):
                d = accf(2 * P, td); T = 24 + 16 * (k & 1); k += 1
                O = 160 + 4 * k
                for e in range(0, 8, 2): a.e(f'v_pk_mul_f32 {vr(T+e,2)}, {vr(d+e,2)}, {vr(d+e,2)}')
                for e in range(0, 8, 2): a.e(f'v_pk_fma_f32 {vr(T+e,2)}, {vr(T+e,2)}, v[16:17], v[16:17] op_sel:[0,1,0] op_sel_hi:[1,1,0]')
                for e in range(0, 8, 2): a.e(f'v_pk_mul_f32 {vr(T+e,2)}, {vr(T+e,2)}, {vr(d+e,2)}')
                for e in range(8): a.e(f'v_exp_f32 v{T+e}, v{T+e}')
                for e in range(0, 8, 2): a.e(f'v_pk_add_f32 {vr(T+e,2)}, {vr(T+e,2)}, 1.0 op_sel_hi:[1,0]')
                for e in range(8): a.e(f'v_rcp_f32 v{T+e}, v{T+e}')
                for e in range(0, 8, 2): a.e(f'v_pk_mul_f32 {vr(T+e,2)}, {vr(T+e,2)}, {vr(d+e,2)}')
                for e in range(4): a.e(f'v_cvt_pk_bf16_f32 v{O+e}, v{T+2*e}, v{T+2*e+1}')
                a.e(f'v_permlane16_swap_b32 v{O}, v{O+2}', f'v_permlane16_swap_b32 v{O+1}, v{O+3}')
                a.e(f'buffer_store_dwordx4 {vr(O,4)}, v{(r, r+1, r, r+2)[td]}, {S4(SRD_D)}, s{sg+(td>>1)+2*P} offen {SC}')
    if GSPLIT:
        for i in range(8): a.e(f'ds_write_b128 v13, {vr(acc3(0,2)+4*i,4)} offset:{1024*i}')
        a.e('s_waitcnt lgkmcnt(0)', 's_barrier')
    gelu((0, 1) if GSPLIT else range(4), acc3, S_G0, 152)
    a.e('C_k3skip:'); a.flush_hist()

    def acc4(aa, n): return ACC + 8 * n + 4 * aa
    tiles(a, 8, 2)
    a.e(f's_lshl_b32 s{S_T0}, s{S_TJ}, 6', f'v_add_u32 v13, s{S_T0}, v4', 'v_lshlrev_b32 v13, 1, v13',
        f's_lshl_b32 s{S_T1}, s{S_WAVE}, 4', f's_add_u32 s{S_T0}, s{S_T0}, s{S_T1}', f'v_add_u32 v16, s{S_T0}, v5',
        'v_lshlrev_b32 v12, 11, v16', 'v_lshl_add_u32 v12, v4, 4, v12', f's_lshl_b32 s{S_T0}, s{S_TI}, 8', f'v_add_u32 v12, s{S_T0}, v12',
        'v_lshlrev_b32 v186, 8, v16', 'v_and_b32 v17, 7, v0', 'v_lshl_add_u32 v186, v17, 4, v186', 'v_lshrrev_b32 v17, 3, v4', 'v_lshl_add_u32 v186, v17, 19, v186',
        f's_lshl_b32 s{S_T0}, s{S_TI}, 20', f'v_add_u32 v186, s{S_T0}, v186',
        'v_mul_u32_u24 v189, 272, v4', 'v_lshl_add_u32 v189, v5, 4, v189', f's_lshl_b32 s{S_T0}, s{S_WAVE}, 6', f's_add_u32 s{S_T0}, s{S_T0}, 1024', f'v_add_u32 v189, s{S_T0}, v189',
        f'v_add_u32 v16, s{S_T1}, v5', 'v_mul_u32_u24 v190, 272, v16', 'v_lshl_add_u32 v190, v4, 4, v190', 'v_add_u32 v190, 1024, v190',
        f's_lshl_b32 s{S_BA}, s{S_TI}, 2', f's_add_u32 s{S_BA}, s{S_BA}, s{S_WAVE}', f's_mul_i32 s{S_BA}, s{S_BA}, {56*8192}',
        's_mov_b32 s45, 8192', 's_mov_b32 s46, 16384', 's_mov_b32 s47, 24576')
    so = ['0', 's45', 's46', 's47']
    sb = ['0', 's52', 's53', 's54']
    a.e('v_lshrrev_b32 v16, 1, v4', 'v_lshlrev_b32 v16, 4, v16', 'v_lshl_add_u32 v16, v3, 8, v16', 'v_and_b32 v17, 1, v4', 'v_lshl_add_u32 v187, v17, 11, v16',
        f's_and_b32 s{S_T0}, s{S_WAVE}, 1', f's_lshl_b32 s{S_T0}, s{S_T0}, 1', f'v_add_u32 v17, s{S_T0}, v17', 'v_cmp_eq_u32 vcc, 3, v17', 'v_addc_co_u32 v17, vcc, 5, v17, vcc',
        'v_lshlrev_b32 v17, 7, v17', 'v_cmp_eq_u32 vcc, 1, v3', 'v_add_u32 v188, 128, v187', 'v_cndmask_b32 v17, 0, v17, vcc', 'v_add_u32 v188, v188, v17',
        f's_lshl_b32 s44, s{S_TJ}, 6', f's_lshl_b32 s{S_T0}, s{S_TI}, 2', f's_add_u32 s44, s44, s{S_T0}', f's_add_u32 s44, s44, s{S_WAVE}', 's_lshl_b32 s44, s44, 12', 's_add_u32 s51, s44, 131072')
    srd(a, SRD_A, P_WL, U_OFF, UP)
    srd(a, SRD_C, P_WL, X1_OFF, XP)
    srd(a, SRD_B, P_B2, 0, 4096)
    tr128_addr(a, [8, 9, 10, 11], K4_BASE, 16, 17)
    direct_setup(a, 56, UBAL)
    a.e('v_lshlrev_b32 v184, 3, v0', f's_lshl_b32 s{S_T0}, s{S_WAVE}, 9', f's_add_u32 s{S_T0}, s{S_T0}, {K4_SCR}', f'v_add_u32 v185, s{S_T0}, v184')
    poll_setup(a, SRD_E, 15, 2, 0, [f's_lshl_b32 s{S_T0}, s{S_TI}, 5'], 28, (3, 1) if LAZY & 2 else None)
    a.e('s_waitcnt vmcnt(0)', 's_barrier', *stamp(10))
    for n in range(4): a.e(f'buffer_load_ushort v{RES+16+2*n}, v13, {S4(SRD_B)}, 0 offen offset:{32*n}')
    if PF2:
        a.e('s_cmp_lt_u32 s2, 224', 's_cbranch_scc1 C_nopf')
        if PF6:
            srd(a, SRD_D, P_W1, 0, 2048 * 3584 * 2)
            a.e(f's_and_b32 s{S_T0}, s2, 3', f's_mul_i32 s{S_T0}, s{S_T0}, 14', f's_sub_u32 s{S_T1}, 3, s{S_T0}', f's_and_b32 s{S_T1}, s{S_T1}, 7',
                'v_and_b32 v17, 1, v0', 'v_lshlrev_b32 v17, 3, v17', f'v_add_u32 v17, s{S_T1}, v17', 'v_cmp_gt_u32 vcc, 14, v17', f'v_add_u32 v17, s{S_T0}, v17', 'v_lshlrev_b32 v17, 7, v17',
                f's_sub_u32 s{S_T0}, s2, 224', f's_lshr_b32 s{S_T0}, s{S_T0}, 3', f's_lshl_b32 s{S_T0}, s{S_T0}, 2', f's_add_u32 s{S_T0}, s{S_T0}, s{S_WAVE}', f's_lshl_b32 s{S_T0}, s{S_T0}, 5',
                'v_lshrrev_b32 v18, 1, v0', f'v_add_u32 v18, s{S_T0}, v18', 'v_mul_u32_u24 v18, 7168, v18', 'v_add_u32 v17, v17, v18', 'v_mov_b32 v18, 0x40000000', 'v_cndmask_b32 v17, v18, v17, vcc',
                f's_mov_b32 s{S_T0}, 0')
            for j in range(4):
                a.e(f'buffer_load_dword v18, v17, {S4(SRD_D)}, s{S_T0} offen', f's_add_u32 s{S_T0}, s{S_T0}, {512*7168}', *([f's_sleep {PF6}'] if PF6 > 1 else []))
        a.e(f's_cmp_lg_u32 s{S_VAR}, 0', 's_cbranch_scc1 C_nopf')
        srd(a, SRD_D, P_W2, 0, 3584 * 2048 * 2)
        a.e(f's_sub_u32 s{S_T0}, s2, 224', f's_lshl_b32 s{S_T0}, s{S_T0}, 2', f's_add_u32 s{S_T0}, s{S_T0}, s{S_WAVE}', f's_lshl_b32 s{S_T0}, s{S_T0}, 13', 'v_lshlrev_b32 v17, 7, v0')
        for j in range(PF2D): a.e('s_sleep 127')
        for j in range(PF2N):
            if PF2S: a.e(f's_sleep {PF2S}')
            a.e(f'buffer_load_dword v18, v17, {S4(SRD_D)}, s{S_T0} offen', f's_add_u32 s{S_T0}, s{S_T0}, {128*8192}', *(['s_waitcnt vmcnt(1)'] if j else []))
        a.e('C_nopf:')
    poll(a, SRD_E, 15, 16)
    a.e(*stamp(11))
    for n in range(4): a.e(f'buffer_load_dwordx4 {vr(RES+4*n,4)}, v{187+(n&1)}, {S4(SRD_C)}, s{51 if n >> 1 else 44} offen {LDF}')
    sel(a, SRD_E, P_WS, X2_OFF, P_OUT, 0, XP)
    a.e(f's_lshr_b32 s{SRD_E+2}, s{SRD_E+2}, s{S_VAR}')
    srd(a, SRD_B, P_WS, LSTR + RS_OFF, 8 * 32768)
    def init4(out):
        a.e(f's_waitcnt vmcnt({out})')
        for n in range(4):
            a.e(f'v_lshlrev_b32 v{RES+16+2*n}, 16, v{RES+16+2*n}')
            a.e(*unpack4(RES + 4 * n, RES + 4 * n + 1, acc4(0, n)), *unpack4(RES + 4 * n + 2, RES + 4 * n + 3, acc4(1, n)))
            for e in range(0, 8, 2): a.e(f'v_pk_add_f32 {vr(acc4(0,n)+e,2)}, {vr(acc4(0,n)+e,2)}, {vr(RES+16+2*n,2)} op_sel_hi:[1,0]')
    mf4 = lambda h, b: [f'{MF16} {vr(acc4(aa,n),4)}, {vr(b+4*aa,4)}, {vr(16+16*h+4*n,4)}, {vr(acc4(aa,n),4)}' for n in range(4) for aa in ((0, 1) if n % 2 == 0 or not SNAKE else (1, 0))]
    if CHAIN & 4:
        mc4 = lambda p, bb: [f'{MF16} {vr(acc4(aa,n),4)}, {vr(bb+8*h+4*aa,4)}, {vr(FB[p]+16*h+4*n,4)}, {vr(acc4(aa,n),4)}' for (n, aa), h in chain_order(SN8)]
        c_direct2(a, 56, K4_NS, 8192, w_reads2([8, 9, 10, 11]), mc4, [8, 9, 10, 11], DR, D, 14, init4, 12)
    else: c_direct(a, 56, K4_NS, 8192, w_reads([8, 9, 10, 11]), mf4, [8, 9, 10, 11], DR, D, 14, init4, 12)
    def st4a():
        for n in range(4):
            for e in range(4): a.e(f'v_cvt_pk_bf16_f32 v{RES+4*n+e}, v{acc4(0,n)+2*e}, v{acc4(0,n)+2*e+1}')
            a.e(f'ds_write_b128 v189, {vr(RES+4*n,4)} offset:{n*16*272}')
    def st4b(blk):
        for q in range(4): a.e(f'ds_read_b128 {vr(RES+4*q,4)}, v190 offset:{q*4*272}')
        for q in range(4):
            a.e(f's_waitcnt lgkmcnt({3-q})', f'buffer_store_dwordx4 {vr(RES+4*q,4)}, v186, {S4(SRD_E)}, 0 offen offset:{1024*q} {SC}' if blk else
                f'buffer_store_dwordx4 {vr(RES+4*q,4)}, v12, {S4(SRD_E)}, {so[q]} offen')
    a.e(f's_cmp_eq_u32 s{S_VAR}, 0', 's_cbranch_scc1 C_st')
    st4a()
    a.e('s_waitcnt lgkmcnt(0)', 's_barrier')
    st4b(False)
    a.e('s_branch C_end', 'C_st:', 's_nop 7')
    for n in range(4):
        d = acc4(0, n); T = 16 + 4 * n
        a.e(f'v_pk_add_f32 {vr(T,2)}, {vr(d,2)}, {vr(d+2,2)}', f'v_pk_mul_f32 {vr(T+2,2)}, {vr(d,2)}, {vr(d,2)}', f'v_pk_fma_f32 {vr(T+2,2)}, {vr(d+2,2)}, {vr(d+2,2)}, {vr(T+2,2)}')
        for e in (4, 6): a.e(f'v_pk_add_f32 {vr(T,2)}, {vr(T,2)}, {vr(d+e,2)}', f'v_pk_fma_f32 {vr(T+2,2)}, {vr(d+e,2)}, {vr(d+e,2)}, {vr(T+2,2)}')
        a.e(f'v_add_f32 v{32+n}, v{T}, v{T+1}', f'v_add_f32 v{36+n}, v{T+2}, v{T+3}')
    for b in (32, 36): a.e(f'v_permlane16_swap_b32 v{b}, v{b+1}', f'v_permlane16_swap_b32 v{b+2}, v{b+3}')
    for b in (32, 36): a.e(f'v_add_f32 v{b}, v{b}, v{b+1}', f'v_add_f32 v{b+2}, v{b+2}, v{b+3}')
    a.e('v_permlane32_swap_b32 v32, v34', 'v_permlane32_swap_b32 v36, v38', 'v_add_f32 v40, v32, v34', 'v_add_f32 v41, v36, v38',
        'ds_write_b64 v185, v[40:41]', f's_lshl_b32 s{S_T0}, s{S_TI}, 15', f's_lshl_b32 s{S_T1}, s{S_TJ}, 10', f's_add_u32 s{S_T0}, s{S_T0}, s{S_T1}', f's_add_u32 s{S_T0}, s{S_T0}, 512',
        )
    st4a()
    a.e('s_waitcnt lgkmcnt(0)', 's_barrier',
        f's_cmp_lg_u32 s{S_WAVE}, 0', 's_cbranch_scc1 C_nost',
        'ds_read_b64 v[44:45], v185 offset:512', 'ds_read_b64 v[46:47], v185 offset:1024', 'ds_read_b64 v[18:19], v185 offset:1536', 's_waitcnt lgkmcnt(0)',
        'v_pk_add_f32 v[40:41], v[40:41], v[44:45]', 'v_pk_add_f32 v[46:47], v[46:47], v[18:19]', 'v_pk_add_f32 v[40:41], v[40:41], v[46:47]',
        f'buffer_store_dwordx2 v[40:41], v184, {S4(SRD_B)}, s{S_T0} offen {SC}', 'C_nost:', 's_nop 1')
    st4b(True)
    k1_setup_c()
    a.e('s_waitcnt vmcnt(0)', 's_barrier', *stamp(14))
    if PF5 & 2: slow_strip()
    if ONEP: a.e('s_barrier')
    a.e(f's_mov_b32 s{S_VAR}, 1', 's_mov_b32 s51, 9', f's_add_u32 s{P_WL}, s{P_WS}, {0 if REUSE else LSTR}', f's_addc_u32 s{P_WL+1}, s{P_WS+1}, 0', 's_branch C_top1' if CWREUSE else 's_branch C_top')
    a.e('C_end:'); dump(a)
    a.e('s_endpgm')

    gx = dict(sg=S_G0, dmas=[(8 + i, 1024 * i, 'A', None) for i in range(4)])
    gw = [dict(sg=S_G0 + 2 + m, dmas=[(13 + 2 * m, 0, 'B', None), (14 + 2 * m, 1024, 'B', None)]) for m in range(3)]
    gh = dict(sg=S_G0 + 1, dmas=[(12, 0, 'A', 's[52:53]')])
    def k1_setup_l(layer):
        tiles(a, 8, 1)
        a.e(f's_mov_b32 s{S_T2}, s{S_LWV}')
        dma_w128(a, [13, 14], 6144, swz128(a), 16, 2, 3, 4)
        a.e('v_add_u32 v15, 2048, v13', 'v_add_u32 v16, 2048, v14', 'v_add_u32 v17, 4096, v13', 'v_add_u32 v18, 4096, v14',
            f's_lshl_b32 s{S_G0+2}, s{S_T2}, 11', f's_add_u32 s{S_G0+2}, s{S_G0+2}, {XT}', f's_add_u32 s{S_G0+3}, s{S_G0+2}, 8192', f's_add_u32 s{S_G0+4}, s{S_G0+2}, 16384',
            f's_lshl_b32 s{S_BB}, s{S_TJ}, 7')
        if layer == 1:
            srd(a, SRD_B, P_WQKV, 0, 1024 * 3072 * 2)
            pre_w(a, 16, 3, 2, ST1, 0, 64 * 6144, gw)
        def xaddr(v, comp):
            a.e('v_lshrrev_b32 v2, 3, v0', f'v_add_u32 v2, s{S_T0}, v2', 'v_bfe_u32 v3, v2, 1, 3', 'v_and_b32 v4, 7, v0', 'v_xor_b32 v3, v3, v4', 'v_lshlrev_b32 v3, 4, v3',
                f'v_add_u32 v2, s{S_T1}, v2', 'v_max_i32 v2, 0, v2', f'v_lshlrev_b32 v2, {8 if layer else 11}, v2', f'v_add_u32 v{v}, v2, v3')
            if comp: a.e(f'v_subrev_u32 v{v}, {comp}, v{v}')
        a.e(f's_lshl_b32 s{S_T1}, s{S_TI}, 7', f's_sub_u32 s{S_T1}, s{S_T1}, 16')
        for i in range(2):
            a.e(f's_lshl_b32 s{S_T0}, s{S_T2}, 5', f's_add_u32 s{S_T0}, s{S_T0}, {16+8*i}')
            xaddr(8 + i, 1024 * i)
            a.e(f'v_add_u32 v{10+i}, {16*(256 if layer else 2048)-2048}, v{8+i}')
        a.e(f's_lshl_b32 s{S_T0}, s{S_T2}, 3'); xaddr(12, 0)
        a.e(f's_lshl_b32 s{S_G0}, s{S_T2}, 12', f's_add_u32 s{S_G0}, s{S_G0}, 2048', f's_lshl_b32 s{S_G0+1}, s{S_T2}, 10', f's_mov_b32 s{S_BA}, 0', f's_mov_b32 s54, {524288 if layer else 128}',
            f's_cmp_eq_u32 s{S_T2}, 0', 's_cselect_b32 s52, 0xffffff00, -1', 's_mov_b32 s53, -1')
        a.e('v_mov_b32 v20, 0x3f803f80', 'v_mov_b32 v21, v20', 'v_mov_b32 v22, v20', 'v_mov_b32 v23, v20', 'v_lshlrev_b32 v24, 4, v0', f'v_add_u32 v25, {2*ST1}, v24',
            's_mov_b64 exec, 0xff', 'ds_write_b128 v24, v[20:23]', f'ds_write_b128 v24, v[20:23] offset:{ST1}', 'ds_write_b128 v25, v[20:23]', 's_mov_b64 exec, -1')
        a.e(f's_lshl_b32 s{S_T0}, s{S_T2}, 6', f'v_add_u32 v26, s{S_T0}, v0', 'v_min_u32 v26, 143, v26', f'v_add_u32 v27, s{S_T1}, v26', 'v_max_i32 v27, 0, v27',
            'v_lshrrev_b32 v2, 6, v27', 'v_and_b32 v27, 63, v27', 'v_lshlrev_b32 v27, 3, v27', 'v_lshl_add_u32 v27, v2, 10, v27', 'v_add_u32 v27, 512, v27', 'v_lshlrev_b32 v26, 3, v26', f'v_add_u32 v26, {SL}, v26')
        if layer == 1:
            srd(a, SRD_A, P_WS, X2_OFF, XP)
            srd(a, SRD_D, P_WS, LSTR + RS_OFF, 8 * 32768)
            a.e('s_waitcnt lgkmcnt(0)')
    a.e('L_start:'); a.flush_hist()
    if int(env('LPRIO', '0')): a.e(f"s_setprio {env('LPRIO', '0')}")
    a.e(f's_sub_u32 s{S_LWV}, s{S_WAVE}, 4', 'v_and_b32 v134, 3, v0', 'v_lshlrev_b32 v134, 6, v134')
    k1_setup_l(0)
    a.e(f's_lshl_b32 s{S_T0}, s2, 3', f's_lshl_b32 s{S_T1}, s{S_LWV}, 1', f's_add_u32 s{S_T0}, s{S_T0}, s{S_T1}',
        'v_lshrrev_b32 v72, 5, v0', f'v_add_u32 v72, s{S_T0}, v72', 'v_lshlrev_b32 v46, 11, v72', 'v_and_b32 v2, 31, v0', 'v_lshl_add_u32 v46, v2, 4, v46',
        'v_lshrrev_b32 v2, 6, v72', 'v_and_b32 v72, 63, v72', 'v_lshlrev_b32 v72, 3, v72', 'v_lshl_add_u32 v72, v2, 10, v72', f'v_add_u32 v72, {RS_OFF + 512}, v72',
        f's_cmp_eq_u32 s{S_LWV}, 0', 's_cselect_b32 s58, 0, -1', 'v_mov_b32 v64, s58', 'v_mov_b32 v65, s58', 'v_mov_b32 v66, s58', 'v_mov_b32 v67, s58',
        'v_lshrrev_b32 v2, 3, v0', f'v_lshlrev_b32 v2, {8+FSH}, v2', 'v_and_b32 v3, 7, v0', 'v_lshl_add_u32 v2, v3, 4, v2', 'v_lshrrev_b32 v4, 4, v0', 'v_and_b32 v3, 15, v0', 'v_lshlrev_b32 v3, 4, v3', f'v_lshl_add_u32 v3, v4, {8+STS}, v3',
        's_cselect_b64 vcc, -1, 0', f's_lshl_b32 s58, s2, {FSH}', f's_add_u32 s58, s58, {FL_OFF}', f's_lshl_b32 s59, s2, {10+STS}', f's_add_u32 s59, s59, {ST_OFF}',
        f's_cmp_eq_u32 s{S_LWV}, 0', 's_cselect_b32 s58, s58, s59', f's_add_u32 s59, s59, {LSTR}', f's_cmp_eq_u32 s{S_LWV}, 2', 's_cselect_b32 s58, s59, s58',
        f's_lshr_b32 s59, s2, 2', f's_mul_i32 s59, s59, {LSTR}', f's_and_b32 s{S_T0}, s2, 3', f's_lshl_b32 s{S_T0}, s{S_T0}, 10', f's_add_u32 s59, s59, s{S_T0}', f's_add_u32 s59, s59, {ST_OFF + 262144}',
        's_cmp_lt_u32 s2, 8', f's_cselect_b32 s59, s59, {128*MB}', f's_cmp_eq_u32 s{S_LWV}, 3', 's_cselect_b32 s58, s59, s58',
        'v_cndmask_b32 v47, v3, v2, vcc', 's_and_b32 s59, s2, 3', 's_lshl_b32 s59, s59, 6', 'v_mov_b32 v73, s59', 'v_mov_b32 v74, 1')
    flag_idx(a, 0, S_TI, 16, S_TJ)
    a.e(f's_mov_b32 s{S_LW}, 0', *lstamp(29), 's_waitcnt lgkmcnt(0)', *lstamp(61))
    srd(a, SRD_A, P_X, 0, XB)
    srd(a, SRD_B, P_WQKV, 0, 1024 * 3072 * 2)
    a.e('s_branch L_first')
    a.e('L_top:'); a.flush_hist()
    flag_idx(a, 0, S_TI, 16, S_TJ)
    srd(a, SRD_E, P_W1, 0, 2048 * 3584 * 2)
    gl = f'global_load_dword v29, v134, s[{P_DB}:{P_DB+1}] {SC}'
    def h_gate(n):
        if SINGLE: a.e(gl)
    def h_fetch(n):
        l = lab('st')
        if SINGLE:
            a.e(f's_cmp_lg_u32 s{S_VAR}, 0', f's_cbranch_scc1 {l}g', f's_waitcnt vmcnt({n})', 's_mov_b32 s61, 0')
            a.loop([f'{l}p:', 'v_cmp_gt_u32 vcc, 64, v29', 's_add_u32 s61, s61, 1', f's_cmp_gt_u32 s61, {SPIN}', f's_cbranch_scc1 {l}g', f's_cbranch_vccz {l}g', gl, 's_waitcnt vmcnt(0)', f's_branch {l}p'])
            a.e(f'{l}g:')
        for p in range(8):
            if p: a.e(f's_mov_b32 s{S_T0}, {p*32768}')
            a.e(f'buffer_load_dwordx2 {vr(30+2*p,2)}, v27, {S4(SRD_D)}, {"0" if p == 0 else f"s{S_T0}"} offen {LDF}')
    def h_fin(n):
        a.e(f's_waitcnt vmcnt({n})', 'v_pk_add_f32 v[30:31], v[30:31], v[32:33]', 'v_pk_add_f32 v[34:35], v[34:35], v[36:37]', 'v_pk_add_f32 v[38:39], v[38:39], v[40:41]',
            'v_pk_add_f32 v[42:43], v[42:43], v[44:45]', 'v_pk_add_f32 v[30:31], v[30:31], v[34:35]', 'v_pk_add_f32 v[38:39], v[38:39], v[42:43]',
            'v_pk_add_f32 v[30:31], v[30:31], v[38:39]')
        stats_finish(a, 30, 31, 32, False)
        a.e('ds_write_b64 v26, v[30:31]', 's_waitcnt lgkmcnt(0)')
    HK = (h_gate, h_fetch)
    def only0(f):
        def g(n):
            l = lab('e'); a.e(f's_cmp_lg_u32 s{S_VAR}, 0', f's_cbranch_scc1 {l}'); f(n); a.e(f'{l}:', 's_nop 1')
        return g
    def e_load(n):
        a.e(*lstamp(63))
        for c in range(4): a.e(f'buffer_load_dwordx4 {vr(48+4*c,4)}, v46, {S4(SRD_A)}, 0 offen offset:{512*c}')
        a.e(f'buffer_store_dwordx4 v[64:67], v47, {S4(SRD_C)}, s58 offen {SC}')
    def e_stat(n):
        a.e('v_mov_b32 v68, 0', 'v_mov_b32 v69, 0', 'v_mov_b32 v70, 0x3f803f80', f's_waitcnt vmcnt({n+1})')
        for e in range(16): a.e(f'v_dot2c_f32_bf16 v68, v70, v{48+e}', f'v_dot2c_f32_bf16 v69, v{48+e}, v{48+e}')
        for ctl in ('quad_perm:[1,0,3,2]', 'quad_perm:[2,3,0,1]', 'row_half_mirror', 'row_mirror'):
            a.e(f'v_add_f32_dpp v68, v68, v68 {ctl} row_mask:0xf bank_mask:0xf', f'v_add_f32_dpp v69, v69, v69 {ctl} row_mask:0xf bank_mask:0xf')
        a.e('v_mov_b32 v70, v68', 'v_mov_b32 v71, v69', 'v_permlane16_swap_b32 v68, v70', 'v_permlane16_swap_b32 v69, v71', 'v_add_f32 v68, v68, v70', 'v_add_f32 v69, v69, v71',
            's_mov_b32 exec_lo, 1', 's_mov_b32 exec_hi, 1', f'buffer_store_dwordx2 v[68:69], v72, {S4(SRD_C)}, 0 offen {SC}', 's_mov_b64 exec, -1')
    def e_gate(n):
        l = lab('g'); a.e(f's_cmp_lg_u32 s{S_LWV}, 0', f's_cbranch_scc1 {l}', 's_mov_b64 exec, 1', f'global_atomic_add v73, v74, s[{P_DB}:{P_DB+1}] sc1', 's_mov_b64 exec, -1', f'{l}:')
    nop = lambda n: None
    EH = (nop,) * (ELATE - 1) + (only0(e_load), only0(e_stat), nop, only0(e_gate)) if ELATE else (nop, only0(e_gate))
    a.e(f's_cmp_ge_u32 s{S_LWV}, 2', 's_cbranch_scc1 L_k1B')
    l_loop(a, 16, 3, 2, ST1, 0, 's54', 64 * 6144, [gh, gx], gw, tail=1, hooks=HK, early=('L_jA',) + EH, st=env('STK', '3') == '1')
    a.e('s_branch L_k1t', 'L_k1B:'); a.flush_hist()
    l_loop(a, 16, 3, 2, ST1, 0, 's54', 64 * 6144, [gx], gw, tail=1, hooks=HK, early=('L_jB',) + EH)
    a.e('s_branch L_k1t')
    a.e('L_first:'); a.flush_hist()
    a.e(f's_cmp_ge_u32 s{S_LWV}, 2', 's_cbranch_scc1 L_firstB')
    for gA, n, tag in (([gh, gx], 11, 'A'), ([gx], 10, 'B')):
        if tag == 'B': a.e('L_firstB:'); a.flush_hist()
        iss = lambda: issue(16, 3, ST1, 0, 's54', 64 * 6144, gA, gw)
        a.e(*iss(), *lstamp(62))
        srd(a, SRD_C, P_WS, 0, 112 * MB)
        srd(a, SRD_D, P_WS, RS_OFF, 32768)
        a.e(f's_mov_b32 s{P_WL}, s{P_WS}', f's_mov_b32 s{P_WL+1}, s{P_WS+1}', *iss())
        if not ELATE: e_load(n)
        a.e('s_barrier', f's_waitcnt vmcnt({n if ELATE else n+5})', 's_barrier', *iss())
        a.e(*lstamp(20))
        if not ELATE: e_stat(n)
        a.e(*lstamp(21), 's_mov_b32 s60, 0', f's_branch L_j{tag}')
    a.e('L_k1t:'); a.flush_hist()
    h_fin(0)
    a.e(f's_mov_b32 s{S_T2}, s{S_LWV}')
    dma_w128(a, [130, 131], 2048, swz128(a), 16, 2, 3, 4)
    srd(a, SRD_B, P_WO, 0, 1024 * 1024 * 2)
    a.e(*INITK, f's_lshl_b32 s{S_G0+8}, s{S_LWV}, 11', f's_lshl_b32 s53, 0x303, s{S_PHI}', 's_lshr_b32 s53, s53, 8')
    def wo(t0, t1):
        for t in range(t0, t1):
            if LAZY & 1:
                p, w = SEQ2[t]
                kc = [f's_bitcmp1_b32 s53, {p}', f's_cselect_b32 s{S_K}, {8 - 8*w}, {8*w}', f's_add_u32 s{S_K}, s{S_K}, {p}']
            else: kc = next_k(16)
            a.e(*kc, f's_lshl_b32 s{S_OB}, s{S_K}, 17', f's_add_u32 s{S_OB}, s{S_OB}, s{S_BB}', f's_add_u32 m0, s{S_G0+8}, {WO_SLOTS[t]}',
                f'buffer_load_dwordx4 v130, {S4(SRD_B)}, s{S_OB} offen lds', f'buffer_load_dwordx4 v131, {S4(SRD_B)}, s{S_OB} offen offset:1024 lds')
    wo(0, 4)
    def pf3(j):
        if PF3 > j: a.e(f's_add_u32 s{S_T0}, s54, {j*8*MB}', f'buffer_load_dword v135, v132, {S4(SRD_E)}, s{S_T0} offen')
    if PF3:
        a.e(f's_cmp_eq_u32 s{S_VAR}, 0', f's_cselect_b32 s{SRD_E+2}, s{SRD_E+2}, 0', 's_lshl_b32 s54, s2, 2', f's_add_u32 s54, s54, s{S_LWV}', 's_lshl_b32 s54, s54, 13',
            f's_add_u32 s54, s54, {W1_K0}', 'v_lshlrev_b32 v132, 7, v0')
    pf3(0)
    x = 1 if PF3 else 0
    if PFT:
        srd(a, SRD_C, P_W2, 0, 3584 * 2048 * 2)
        a.e(f's_cmp_eq_u32 s{S_VAR}, 0', f's_cselect_b32 s{SRD_E+2}, s{SRD_E+2}, 0', f's_cselect_b32 s{SRD_C+2}, s{SRD_C+2}, 0',
            's_lshr_b32 s54, s2, 3', 's_lshl_b32 s54, s54, 2', f's_add_u32 s54, s54, s{S_LWV}', 's_lshl_b32 s54, s54, 18', 'v_lshlrev_b32 v132, 12, v0', 'v_add_u32 v132, s54, v132',
            f'v_subrev_u32 v133, {16*MB}, v132', f'buffer_load_dword v135, v132, {S4(SRD_E)}, 0 offen', f'buffer_load_dword v135, v133, {S4(SRD_C)}, 0 offen')
        x += 2
    a.e(f's_waitcnt vmcnt({8+x})', 's_barrier')
    wo(4, 7)
    only0(lambda n: (lane_fields(a), attn_static()))(0)
    a.e('s_waitcnt lgkmcnt(0)', 's_barrier')
    pf3(1)
    wo(7, 12)
    a.e('s_branch attn')
    a.e('L_k1done:'); a.flush_hist()
    publish_pre(a)
    a.e('s_waitcnt vmcnt(0)', 's_barrier')
    publish(a, 2)
    wo(12, 16)
    flag_idx(a, 1, S_TJ, 16, S_TI)
    if ONEP: a.e('s_barrier')
    a.e('s_waitcnt vmcnt(0)', 's_barrier')
    if LAZY & 1:
        poll_setup(a, SRD_C, 14, 0, 0, [f's_lshl_b32 s{S_T0}, s{S_TI}, 4'], 16)
        poll(a, SRD_C, 14, 15, sleep=False)
    g4 = [dict(sg=S_G0 + 1, dmas=[(9, 0, 'B', None), (10, 1024, 'B', None)])]
    def k4_setup_l():
        tiles(a, 8, 2)
        a.e(f's_mov_b32 s{S_T2}, s{S_LWV}', f's_lshl_b32 s{S_G0+1}, s{S_T2}, 11')
        dma_w128(a, [9, 10], 4096, swz128(a), 16, 2, 3, 4)
        a.e(f's_lshl_b32 s{S_BB}, s{S_TJ}, 7')
        srd(a, SRD_B, P_W2, 0, 3584 * 2048 * 2)
        if ROLL & 2:
            a.e(f's_lshr_b32 s{S_T0}, s2, 3', f's_lshl_b32 s{S_T0}, s{S_T0}, 2', f's_add_u32 s{S_T0}, s{S_T0}, s{S_LWV}', f's_lshl_b32 s{S_T0}, s{S_T0}, 2',
                'v_and_b32 v2, 3, v0', 'v_lshrrev_b32 v3, 2, v0', 'v_lshl_add_u32 v2, v3, 9, v2', f'v_add_u32 v2, s{S_T0}, v2', 'v_lshlrev_b32 v2, 12, v2',
                f's_and_b32 s{S_T0}, s2, 3', f's_lshl_b32 s{S_T0}, s{S_T0}, 10', f's_add_u32 s{S_T0}, s{S_T0}, 384', f'v_add_u32 v2, s{S_T0}, v2', 'v_mov_b32 v3, 0x40000000',
                'v_cmp_gt_u32 vcc, 4, v0', 'v_cmp_gt_u32 s[58:59], 12, v0', 'v_cndmask_b32 v24, v3, v2, vcc', 'v_cndmask_b32 v25, v3, v2, s[58:59]',
                's_mov_b32 s58, 0x40000000', f's_mov_b32 s59, {2*512*4096}', f's_cmp_lt_u32 s{S_PHI}, {K4_AH}', f's_cselect_b32 s59, {3*512*4096}, s59')
    a.e('s_cmp_ge_u32 s2, 224', 's_cbranch_scc1 L_k3skip')
    tiles(a, 7, 2)
    a.e(f's_lshl_b32 s{S_G0}, s{S_LWV}, 12', f's_add_u32 s{S_G0+1}, s{S_G0}, 16384',
        'v_lshrrev_b32 v2, 4, v0', 'v_lshlrev_b32 v3, 1, v2', 'v_and_b32 v4, 15, v0', 'v_xor_b32 v3, v3, v4', 'v_lshlrev_b32 v3, 4, v3',
        f's_lshl_b32 s{S_T0}, s{S_LWV}, 4', f'v_add_u32 v2, s{S_T0}, v2', f's_mov_b32 s{S_T0}, 7168', f'v_mul_lo_u32 v2, v2, s{S_T0}',
        'v_add_u32 v9, v2, v3', 'v_xor_b32 v3, 128, v3', 'v_add_u32 v11, v2, v3',
        f'v_add_u32 v10, {4*7168-1024}, v9', f'v_add_u32 v12, {3*(4*7168-1024)}, v11', f'v_add_u32 v11, {2*(4*7168-1024)}, v11',
        f's_lshl_b32 s{S_BA}, s{S_TI}, 2', f's_add_u32 s{S_BA}, s{S_BA}, s{S_LWV}', f's_lshl_b32 s{S_BA}, s{S_BA}, 18', f's_lshl_b32 s{S_BB}, s{S_TJ}, 8')
    for i in range(4): lanemap(a, 20 + i, i & 1, i >> 1, (i & 1) * 2048 + (i >> 1) * 131072 - 1024 * i)
    srd(a, SRD_A, P_WL, H_OFF, XP)
    srd(a, SRD_B, P_W1, 0, 2048 * 3584 * 2)
    g3a = [dict(sg=S_G0, dmas=[(20 + i, 1024 * i, 'A', None) for i in range(4)])]
    g3w = [dict(sg=S_G0 + 1, dmas=[(9 + i, 1024 * i, 'B', None) for i in range(4)])]
    if GSPLIT:
        lane_fields(a)
        a.e(f's_and_b32 s{S_T1}, s{S_LWV}, 1', f's_lshr_b32 s{S_T2}, s{S_LWV}, 1')
        u_addr(S_T1, S_T2, 46, 140)
        srd(a, SRD_D, P_WL, U_OFF, UP)
        a.e(f's_lshl_b32 s{S_T0}, s{S_LWV}, 13', f's_add_u32 s{S_T0}, s{S_T0}, 65536', 'v_lshlrev_b32 v143, 4, v0', f'v_add_u32 v143, s{S_T0}, v143')
    poll_setup(a, SRD_C, 14, 1, 0, [f's_lshl_b32 s{S_T0}, s{S_TI}, 5'], 32)
    if ROLL & 1:
        a.e(f's_and_b32 s{S_T0}, s2, 3', f's_mul_i32 s{S_T0}, s{S_T0}, 14', f's_sub_u32 s{S_T1}, 3, s{S_T0}', f's_and_b32 s{S_T1}, s{S_T1}, 7',
            'v_and_b32 v2, 1, v0', 'v_lshlrev_b32 v2, 3, v2', f'v_add_u32 v2, s{S_T1}, v2', 'v_cmp_gt_u32 vcc, 14, v2', f'v_add_u32 v2, s{S_T0}, v2', 'v_lshlrev_b32 v2, 7, v2',
            f's_lshr_b32 s{S_T0}, s2, 3', f's_lshl_b32 s{S_T0}, s{S_T0}, 2', f's_add_u32 s{S_T0}, s{S_T0}, s{S_LWV}', f's_mul_i32 s{S_T0}, s{S_T0}, 5',
            'v_lshrrev_b32 v3, 1, v0', 'v_cmp_gt_u32 s[58:59], 5, v3', 'v_cmp_gt_u32 s[60:61], 15, v3', 'v_mul_u32_u24 v4, 52, v3', 'v_lshrrev_b32 v4, 8, v4', 'v_mul_u32_u24 v4, 507, v4', 'v_add_u32 v3, v3, v4',
            f'v_add_u32 v3, s{S_T0}, v3', 'v_mul_u32_u24 v3, 7168, v3', 'v_add_u32 v2, v2, v3', 'v_mov_b32 v3, 0x40000000',
            's_and_b64 s[58:59], s[58:59], vcc', 's_and_b64 s[60:61], s[60:61], vcc', 'v_cndmask_b32 v24, v3, v2, s[58:59]', 'v_cndmask_b32 v25, v3, v2, s[60:61]',
            's_mov_b32 s58, 0x40000000', f's_mov_b32 s59, {2*512*7168}', f's_cmp_lt_u32 s{S_PHI}, 3', f's_cselect_b32 s59, {3*512*7168}, s59')
    for j in range(PF4):
        a.e(f's_lshr_b32 s{S_T0}, s2, 3', f's_add_u32 s{S_T0}, s{S_T0}, {28*j}', f's_lshl_b32 s{S_T0}, s{S_T0}, 2', f's_add_u32 s{S_T0}, s{S_T0}, s{S_LWV}', f's_lshl_b32 s{S_T0}, s{S_T0}, 6',
            f'v_add_u32 v2, s{S_T0}, v0', 'v_mul_u32_u24 v3, 74899, v2', 'v_lshrrev_b32 v3, 20, v3', 'v_mul_u32_u24 v4, 14, v3', 'v_sub_u32 v4, v2, v4',
            'v_add_u32 v3, 192, v3', 'v_mul_u32_u24 v3, 7168, v3', 'v_lshl_add_u32 v3, v4, 7, v3', f's_and_b32 s{S_T0}, s2, 3', f's_mul_i32 s{S_T0}, s{S_T0}, 1792', f's_lshl_b32 s{S_T1}, s{S_VAR}, 30', f's_add_u32 s{S_T0}, s{S_T0}, s{S_T1}', f'v_add_u32 v{16+j}, s{S_T0}, v3')
    a.e('s_barrier')
    if not LATEW: pre_w(a, 32, 5, 3 + XW, 32768, 0, 64 * 7168, g3w)
    a.e('s_barrier')
    publish(a, 2)
    if LATEW: pre_w(a, 32, 5, 3 + XW, 32768, 0, 64 * 7168, g3w)
    if ROLL & 1: a.e(f'buffer_load_dword v135, v25, {S4(SRD_B)}, 0 offen')
    for j in range(PF4): a.e(f'buffer_load_dword v135, v{16+j}, {S4(SRD_B)}, 0 offen')
    flag_idx(a, 2, S_TI, 32, S_TJ)
    poll(a, SRD_C, 14, 15)
    l_loop(a, 32, 5, 3, 32768, 0, 4096, 64 * 7168, g3a, g3w, st=env('STK', '3') == '3', roll=(24, 512 * 7168) if ROLL & 1 else None, xw=XW)
    k4_setup_l()
    if GSPLIT:
        pre_w(a, 56, K4_NS, 6, 8192, K4_BASE, 64 * 4096, g4)
        a.e('s_barrier')
        for i in range(8): a.e(f'ds_read_b128 {vr(64+4*i,4)}, v143 offset:{1024*i}')
        a.e('s_waitcnt lgkmcnt(0)')
        gelu((2, 3), lambda tf, td: 32 + 16 * td + 4 * tf, 46, 140)
        a.e('s_waitcnt vmcnt(0)', 's_branch L_k4b')
    else: a.e('s_branch L_k4')
    a.e('L_k3skip:'); a.flush_hist()
    k4_setup_l()
    a.e('s_barrier')
    a.e('L_k4:'); a.flush_hist()
    if ROLL & 2: a.e(f'buffer_load_dword v135, v25, {S4(SRD_B)}, 0 offen')
    pre_w(a, 56, K4_NS, 6, 8192, K4_BASE, 64 * 4096, g4)
    a.e('L_k4b:', 's_barrier')
    publish(a, 2)
    for _ in range(K4_AH + XW4 - 6): a.e(*issue(56, K4_NS, 8192, K4_BASE, 0, 64 * 4096, [], g4))
    flag_idx(a, 3, S_TJ, 8, S_TI)
    if ONEP: a.e('s_barrier')
    def full4(n):
        poll_setup(a, SRD_C, 14, 2, 0, [f's_lshl_b32 s{S_T0}, s{S_TI}, 5'], 28)
        poll(a, SRD_C, 14, 15, sleep=False, bar=False)
    l_loop(a, 56, K4_NS, K4_AH, 8192, K4_BASE, 0, 64 * 4096, [], g4, first=(lambda n: None, full4) if LAZY & 2 else (), xw=XW4)
    a.e(f's_cmp_lg_u32 s{S_VAR}, 0', 's_cbranch_scc1 L_end')
    k1_setup_l(1)
    poll_setup(a, SRD_C, 28, 3, 0, [f's_lshl_b32 s{S_T0}, s{S_TI}, 4', f's_sub_u32 s{S_T0}, s{S_T0}, 8'], 24)
    a.e('s_barrier', 's_barrier')
    publish(a, 2)
    poll(a, SRD_C, 28, 29)
    a.e(f's_mov_b32 s{S_VAR}, 1', f's_add_u32 s{P_WL}, s{P_WS}, {0 if REUSE else LSTR}', f's_addc_u32 s{P_WL+1}, s{P_WS+1}, 0', 's_branch L_top')
    a.e('L_end:')
    if PROF: a.e(f's_cmp_lg_u32 s{S_LWV}, 0', f's_cbranch_scc1 {kn}_end', 's_lshl_b32 s58, s2, 8', f's_add_u32 s58, s58, {PR_OFF + MB}', 'v_lshlrev_b32 v254, 2, v0', 'v_add_u32 v254, s58, v254', f'global_store_dword v254, v255, s[{P_WS}:{P_WS+1}]')
    a.e(f'{kn}_end:', 's_endpgm')

def dump(a):
    if not PROF: return
    a.e('s_waitcnt vmcnt(0)', *stamp(14), f's_cmp_lg_u32 s{S_WAVE}, 0', 's_cbranch_scc1 nodump', 's_lshl_b32 s58, s2, 8', f's_add_u32 s58, s58, {PR_OFF}',
        'v_lshlrev_b32 v254, 2, v0', 'v_add_u32 v254, s58, v254', f'global_store_dword v254, v{PV}, s[{P_WS}:{P_WS+1}]', 'nodump:')

def gen_k0(a):
    a.e('.p2align 8', 'k0_kernel:', 's_cmp_ge_u32 s2, 256', 's_cbranch_scc1 k0_end',
        's_load_dwordx16 s[64:79], s[0:1], 0', 's_load_dwordx2 s[84:85], s[0:1], 80',
        'v_lshrrev_b32 v1, 6, v0', 'v_lshlrev_b32 v20, 4, v0', 'v_and_b32 v0, 63, v0', f'v_readfirstlane_b32 s{S_WAVE}, v1',
        's_lshl_b32 s30, s2, 3', f's_add_u32 s30, s30, s{S_WAVE}',
        's_lshl_b32 s31, s30, 11', 'v_lshlrev_b32 v2, 5, v0',
        's_lshl_b32 s32, s2, 2', f's_and_b32 s33, s{S_WAVE}, 3', 's_add_u32 s32, s32, s33', 's_lshl_b32 s32, s32, 13', 'v_lshlrev_b32 v3, 7, v0', 'v_add_u32 v3, s32, v3',
        f'v_subrev_u32 v4, {1024*3072*2}, v3', 's_waitcnt lgkmcnt(0)')
    srd(a, SRD_A, P_X, 0, XB)
    a.e(f'buffer_load_dwordx4 v[8:11], v2, {S4(SRD_A)}, s31 offen', f'buffer_load_dwordx4 v[12:15], v2, {S4(SRD_A)}, s31 offen offset:16')
    KW = int(env('K0WARM', '1'))
    srd(a, SRD_B, P_WQKV, 0, 1024 * 3072 * 2 * KW)
    srd(a, SRD_C, P_WO, 0, 1024 * 1024 * 2 * KW)
    srd(a, SRD_E, P_W1, 0, W1_K0)
    a.e(f's_sub_u32 s33, s{S_WAVE}, 4', 's_lshl_b32 s33, s33, 8', 's_add_u32 s33, s33, s2', 's_lshl_b32 s33, s33, 13', 'v_lshlrev_b32 v7, 7, v0',
        f's_cmp_ge_u32 s{S_WAVE}, 4', 's_cbranch_scc1 k0_nw', f'buffer_load_dword v5, v3, {S4(SRD_B)}, 0 offen', f'buffer_load_dword v6, v4, {S4(SRD_C)}, 0 offen', 's_branch k0_nx',
        'k0_nw:', f'buffer_load_dword v5, v7, {S4(SRD_E)}, s33 offen', 'k0_nx:')
    if CODEPF:
        a.e(f's_cmp_lg_u32 s{S_WAVE}, 7', 's_cbranch_scc1 k0_nc', 's_getpc_b64 s[40:41]', 'k0_pc:', 's_add_u32 s40, s40, mega_kernel-k0_pc', 's_addc_u32 s41, s41, 0',
            's_lshr_b32 s42, s2, 3', 's_lshl_b32 s42, s42, 11', 'v_and_b32 v25, 15, v0', 'v_lshlrev_b32 v25, 7, v25', 'v_add_u32 v25, s42, v25',
            'v_min_u32 v25, mega_end-mega_kernel, v25', 'global_load_dword v26, v25, s[40:41]', 'k0_nc:')
    srd(a, SRD_D, P_WS, 0, 64 * MB)
    a.e(f's_cmp_eq_u32 s{S_WAVE}, 0', 's_cselect_b32 s33, 0, -1', 'v_mov_b32 v16, s33', 'v_mov_b32 v17, s33', 'v_mov_b32 v18, s33', 'v_mov_b32 v19, s33',
        f's_mov_b32 s34, {ST_OFF}', f's_cselect_b32 s34, {FL_OFF}, s34', f's_cmp_eq_u32 s{S_WAVE}, 2', f's_cselect_b32 s34, {LSTR + ST_OFF}, s34', 's_lshl_b32 s35, s2, 10', 's_add_u32 s34, s34, s35',
        'v_lshlrev_b32 v20, 4, v0', f's_cmp_ge_u32 s{S_WAVE}, 3', 's_cbranch_scc1 k0_nr', f'buffer_store_dwordx4 v[16:19], v20, {S4(SRD_D)}, s34 offen', 'k0_nr:')
    a.e('v_mov_b32 v22, 0', 'v_mov_b32 v23, 0', 'v_mov_b32 v21, 0x3f803f80', 'v_lshrrev_b32 v24, 3, v0', 'v_lshlrev_b32 v24, 14, v24', 's_lshl_b32 s36, s30, 3', f's_add_u32 s36, s36, {RS_OFF}',
        's_waitcnt vmcnt(0)')
    for e in range(8): a.e(f'v_dot2c_f32_bf16 v22, v21, v{8+e}', f'v_dot2c_f32_bf16 v23, v{8+e}, v{8+e}')
    for ctl in ('quad_perm:[1,0,3,2]', 'quad_perm:[2,3,0,1]', 'row_half_mirror'):
        a.e(f'v_add_f32_dpp v22, v22, v22 {ctl} row_mask:0xf bank_mask:0xf', f'v_add_f32_dpp v23, v23, v23 {ctl} row_mask:0xf bank_mask:0xf')
    a.e('s_mov_b32 exec_lo, 0x01010101', 's_mov_b32 exec_hi, 0x01010101', f'buffer_store_dwordx2 v[22:23], v24, {S4(SRD_D)}, s36 offen', 'k0_end:', 's_endpgm')

def main(out):
    a = Asm()
    if not SINGLE: gen_k0(a); a.flush_hist()
    gen_mega(a)
    info = {} if SINGLE else {'k0_kernel': (32, 0)}
    info[MEGA] = (256, 163840)
    ref = open(os.path.join(os.path.dirname(os.path.abspath(__file__)), '..', NAME + '.s.ref')).read().splitlines()
    hdr = [l for l in ref if l.startswith(';') and '@launch' not in l and 'Override launch' not in l and 'grid=ceil' not in l]
    if SINGLE: hdr += ['; @launch grid=(256,1,1) block=(512,1,1) lds=163840']
    else: hdr += [f'; @launch kernel={n} grid=(256,1,1) block=(512,1,1) lds={v[1]}' for n, v in info.items()]
    s = '\n'.join(hdr) + '\n; generated by gen/gen2.py\n.amdgcn_target "amdgcn-amd-amdhsa--gfx950"\n.text\n'
    if SINGLE: s += f'.globl {MEGA}\n.type {MEGA},@function\n'
    s += a.text() + '.section .rodata,"a"\n'
    for n, (vg, _) in info.items():
        s += f'''.p2align 6
.amdhsa_kernel {n}
  .amdhsa_next_free_vgpr {vg}
  .amdhsa_next_free_sgpr 102
  .amdhsa_accum_offset {vg}
  .amdhsa_group_segment_fixed_size 0
  .amdhsa_kernarg_size 88
  .amdhsa_user_sgpr_count 2
  .amdhsa_user_sgpr_kernarg_segment_ptr 1
  .amdhsa_system_sgpr_workgroup_id_x 1
.end_amdhsa_kernel
'''
    open(out, 'w').write(s)

if __name__ == '__main__':
    main(sys.argv[1])
```
